```python
import torch

def _softmax(x, axis=-1):
    return torch.softmax(x, dim=axis)
def _gelu(x):
    return torch.nn.functional.gelu(x, approximate="tanh")
def _silu(x):
    return torch.nn.functional.silu(x)
def _sigmoid(x):
    return torch.sigmoid(x)
def _layernorm(x, axis=-1, eps=1e-5):
    m = x.mean(dim=axis, keepdim=True)
    v = x.var(dim=axis, keepdim=True, unbiased=False)
    return (x - m) / torch.sqrt(v + eps)
def _scatter_add(tgt, idx, src, axis=0):
    return tgt.clone().index_add_(axis, idx, src)
def _segment_sum(src, seg, n):
    out = torch.zeros((n,) + src.shape[1:], dtype=src.dtype)
    return out.index_add_(0, seg, src)
def _pad(x, pw):
    flat = tuple(v for pair in reversed(pw) for v in pair)
    return torch.nn.functional.pad(x, flat)

kernel_name = 'recurrent_scan__linear_attn_block__glu_gated_bilinear__prompt'

def setup_inputs():

    _w = (lambda a: (lambda t: t.to(torch.bfloat16) if t.is_floating_point() else t)(torch.as_tensor(a)))
    def _A_setup():
        B, S, D = 1, 2048, 576
        return {
            "x": _w((lambda *s: torch.randn(*s, dtype=torch.bfloat16) * 0.05)(B, S, D)),
            "wqkv": _w((lambda *s: torch.randn(*s, dtype=torch.bfloat16) * 0.8)(D, 3 * D)),
            "wo": _w((lambda *s: torch.randn(*s, dtype=torch.bfloat16) * 0.8)(D, D)),
        }
    _A_in = _A_setup()

    def _B_setup():
        B, S, D, F = 1, 2048, 576, 4608
        return {
            "x": _w((lambda *s: torch.randn(*s, dtype=torch.bfloat16) * 0.05)(B, S, D)),
            "w_gate": _w((lambda *s: torch.randn(*s, dtype=torch.bfloat16) * 0.2)(D, F) * (D ** -0.5)),
            "w_up": _w((lambda *s: torch.randn(*s, dtype=torch.bfloat16) * 0.2)(D, F) * (D ** -0.5)),
            "w_down": _w((lambda *s: torch.randn(*s, dtype=torch.bfloat16) * 0.2)(F, D) * (F ** -0.5)),
        }
    _B_in = _B_setup()

    return {
        "A_x": _A_in["x"],
        "A_wqkv": _A_in["wqkv"],
        "A_wo": _A_in["wo"],
        "B_x": _B_in["x"],
        "B_w_gate": _B_in["w_gate"],
        "B_w_up": _B_in["w_up"],
        "B_w_down": _B_in["w_down"],
    }

def reference(A_x, A_wqkv, A_wo, B_x, B_w_gate, B_w_up, B_w_down):
    def _A_ref(x, wqkv, wo):
        B, S, D = x.shape
        H = 32; Dh = D // H
        qkv = (lambda x, *d: x.permute(*d))((x @ wqkv).reshape(B, S, 3, H, Dh), 2, 0, 3, 1, 4)
        q, k, v = qkv[0], qkv[1], qkv[2]
        phi = lambda t: torch.where(t > 0, t + 1, torch.exp(t)) + 1e-6
        pq, pk = phi(q), phi(k)
        kv = torch.einsum("bhsd,bhse->bhde", pk, v)
        z = torch.einsum("bhsd->bhd", pk)
        num = torch.einsum("bhqd,bhde->bhqe", pq, kv)
        den = torch.einsum("bhqd,bhd->bhq", pq, z)[..., None] + 1e-6
        o = num / den
        return (lambda x, *d: x.permute(*d))(o, 0, 2, 1, 3).reshape(B, S, D) @ wo

    def _B_ref(x, w_gate, w_up, w_down):
        g = torch.einsum("bsd,df->bsf", x, w_gate)
        u = torch.einsum("bsd,df->bsf", x, w_up)
        h = g * u
        return torch.einsum("bsf,fd->bsd", h, w_down)

    x = A_x
    xn = _layernorm(x, axis=-1)
    s = _A_ref(xn, A_wqkv, A_wo)
    g = _silu(_B_ref(xn, B_w_gate, B_w_up, B_w_down))
    return x + s * g
```

```python
import re

REG_RE = re.compile(r'^(-?)(?:abs\()?([vas])(?:\[(\d+):(\d+)\]|(\d+))\)?$')

def regs_of(tok):
    tok = tok.strip()
    if tok in ('vcc',): return [('s', 'vcc')]
    if tok in ('exec',): return [('s', 'exec')]
    if tok == 'm0': return [('s', 'm0')]
    m = REG_RE.match(tok)
    if not m: return []
    k = m.group(2)
    if m.group(3) is not None:
        return [(k, i) for i in range(int(m.group(3)), int(m.group(4)) + 1)]
    return [(k, int(m.group(5)))]

def split_ops(s):
    out, depth, cur = [], 0, ''
    for ch in s:
        if ch in '[(': depth += 1
        if ch in '])': depth -= 1
        if ch == ',' and depth == 0:
            out.append(cur.strip()); cur = ''
        else: cur += ch
    if cur.strip(): out.append(cur.strip())
    return out

TRANS = ('v_exp_f32', 'v_log_f32', 'v_rcp_f32', 'v_rsq_f32', 'v_sqrt_f32')

class I:
    __slots__ = ('text', 'mn', 'rd', 'wr', 'kind', 'passes', 'A', 'B', 'C', 'D', 'tag', 'lds')
    def __init__(self, text, tag=None):
        self.text = text; self.tag = tag
        t = text.split(';')[0].strip()
        mn, _, rest = t.partition(' ')
        self.mn = mn
        ops = split_ops(rest)
        mods = ''
        if ops:
            parts = ops[-1].split()
            ops[-1] = parts[0]; mods = ' '.join(parts[1:])
        self.rd, self.wr = [], []
        self.passes = 0; self.A = self.B = self.C = self.D = []
        self.lds = False
        R = lambda i: regs_of(ops[i]) if i < len(ops) else []
        if mn.startswith('v_mfma'):
            self.kind = 'mfma'
            self.D, self.A, self.B, self.C = R(0), R(1), R(2), R(3)
            self.wr = self.D; self.rd = self.A + self.B + self.C
            if '32x32x16' in mn or mn.endswith('16x16x4_f32'): self.passes = 8
            else: self.passes = 4
            if mn.endswith('x4_f32'): self.kind = 'sgemm'
        elif mn.startswith('ds_read') or mn.startswith('ds_bpermute'):
            self.kind = 'ds'; self.wr = R(0); self.rd = sum((R(i) for i in range(1, len(ops))), [])
        elif mn.startswith('ds_'):
            self.kind = 'ds'; self.rd = sum((R(i) for i in range(len(ops))), [])
        elif mn.startswith('buffer_load'):
            self.kind = 'vmem'
            if 'lds' in mods.split():
                self.lds = True
                self.rd = R(0) + R(1) + R(2) + [('s', 'm0')]
            else:
                self.wr = R(0); self.rd = R(1) + R(2) + R(3)
        elif mn.startswith('buffer_store') or mn.startswith('buffer_atomic'):
            self.kind = 'vmem'; self.rd = R(0) + R(1) + R(2) + R(3); self.D = R(0)
            if mn.startswith('buffer_atomic') and 'sc0' in mods.split(): self.wr = R(0)
        elif mn.startswith('buffer_'):
            self.kind = 'vmem'
        elif mn.startswith('global_load'):
            self.kind = 'vmem'; self.wr = R(0); self.rd = R(1) + R(2)
        elif mn.startswith('s_load') or mn in ('s_memtime', 's_memrealtime'):
            self.kind = 'smem'; self.wr = R(0); self.rd = R(1)
        elif mn in ('s_waitcnt', 's_barrier', 's_nop', 's_sleep', 's_setprio', 's_endpgm') or mn.startswith('s_cbranch') or mn == 's_branch':
            self.kind = 'ctl'
        elif mn.startswith('s_cmp'):
            self.kind = 'salu'; self.rd = R(0) + R(1)
        elif mn.startswith('s_'):
            self.kind = 'salu'; self.wr = R(0); self.rd = sum((R(i) for i in range(1, len(ops))), [])
            if 'saveexec' in mn: self.wr = self.wr + [('s', 'exec')]
        elif mn.startswith('v_'):
            self.kind = 'valu'
            self.wr = R(0); self.rd = sum((R(i) for i in range(1, len(ops))), [])
            if mn.startswith('v_permlane') and 'swap' in mn:
                self.wr = R(0) + R(1); self.rd = R(0) + R(1)
            if mn.startswith(('v_fmac', 'v_dot2c')): self.rd = self.rd + R(0)
            if mn.startswith('v_cndmask') and len(ops) == 3: self.rd = self.rd + [('s', 'vcc')]
        elif mn.endswith(':') or mn.startswith('.') or mn == '':
            self.kind = 'meta'
        else:
            raise ValueError('unknown instr: ' + text)

    def states(self):
        if self.kind == 'meta': return 0
        if self.mn == 's_nop': return int(self.text.split()[1]) + 1
        return 1

def need_states(p, c):
    n = 0
    pw, cr, cw = set(p.wr), set(c.rd), set(c.wr)
    vw = {r for r in pw if r[0] in 'va'}
    sw = {r for r in pw if r[0] == 's'}
    if p.kind == 'valu':
        if c.kind in ('mfma', 'sgemm') and vw & cr: n = max(n, 2)
        if c.mn in ('v_readfirstlane_b32', 'v_readlane_b32') and vw & cr: n = max(n, 1)
        if c.mn.startswith('v_permlane') and vw & cr: n = max(n, 2)
        if 'dpp' in c.text and c.kind == 'valu' and vw & cr: n = max(n, 2)
        if p.mn.split('_e')[0] in TRANS and c.kind == 'valu' and vw & cr: n = max(n, 1)
        if sw:
            if c.kind == 'vmem' and sw & cr: n = max(n, 5)
            if c.kind == 'valu' and sw & cr: n = max(n, 2)
            if c.kind in ('salu',) and sw & cr: n = max(n, 1)
    if p.kind == 'salu' and ('s', 'm0') in pw and c.kind == 'vmem' and c.lds: n = max(n, 1)
    if p.kind in ('mfma', 'sgemm'):
        D = set(p.D); xdl = p.kind == 'mfma'
        t_ab = {4: 8, 8: 12}[p.passes] if xdl else {4: 6, 8: 10}[p.passes]
        if c.kind in ('mfma', 'sgemm'):
            if D & (set(c.A) | set(c.B)): n = max(n, t_ab)
            if D & set(c.C):
                same = (c.C == p.D and c.kind == p.kind and c.passes == p.passes and c.mn == p.mn)
                if not same: n = max(n, {4: 6, 8: 10}[p.passes])
            elif D & set(c.D): n = max(n, t_ab)
        elif c.kind in ('valu', 'vmem', 'ds'):
            if D & (cr | cw): n = max(n, t_ab)
        if xdl and c.kind == 'valu' and set(p.C) & cw: n = max(n, {4: 3, 8: 7}[p.passes])
    if p.kind == 'vmem' and p.D and ('x4' in p.mn or 'x3' in p.mn) and set(p.D) & cw and c.kind != 'vmem':
        n = max(n, 2)
    return n

class Prog:
    def __init__(self):
        self.ins = []
        self.lgq = []
        self.vmq = []
        self.smem_pending = False
        self.nops = 0
        self.forced = None
        self.site = 0
        self.sites = {}
        self.vm_limit = 63

    def raw(self, text):
        self.ins.append(I(text))

    def label(self, name):
        self.ins.append(I(name + ':'))

    def _emit_wait(self, vm=None, lg=None):
        key = self.site; self.site += 1
        self.sites[key] = (vm, lg)
        if self.forced is not None:
            vm, lg = self.forced[key]
        parts = []
        if vm is not None:
            assert vm <= 63; parts.append(f'vmcnt({vm})'); self.vmq = self.vmq[len(self.vmq) - vm:] if vm < len(self.vmq) else self.vmq
            if vm == 0: self.vmq = []
        if lg is not None:
            lg = min(lg, 15); parts.append(f'lgkmcnt({lg})')
            if lg == 0: self.lgq = []; self.smem_pending = False
            elif lg < len(self.lgq): self.lgq = self.lgq[len(self.lgq) - lg:]
        if parts: self.ins.append(I('s_waitcnt ' + ' '.join(parts)))

    def _needed(self, regs):
        regs = set(regs); vm = lg = None
        for k, e in enumerate(self.lgq):
            if e & regs: lg = len(self.lgq) - 1 - k
        for k, e in enumerate(self.vmq):
            if e[0] & regs: vm = len(self.vmq) - 1 - k
        return vm, lg

    def wait_tag(self, tag, extra_lg=None):
        vm = None
        for k, e in enumerate(self.vmq):
            if e[1] == tag: vm = len(self.vmq) - 1 - k
        self._emit_wait(vm, extra_lg)

    def need(self, *toks):
        regs = sum((regs_of(t) for t in toks), [])
        vm, lg = self._needed(regs)
        self._emit_wait(vm, lg)

    def wait_all(self, vm=True, lg=True):
        self._emit_wait(0 if vm else None, 0 if lg else None)

    def wait_lg(self, n=0):
        self._emit_wait(None, n)

    def e(self, text, tag=None):
        i = I(text, tag)
        if i.kind not in ('meta', 'ctl'):
            vm, lg = self._needed(i.rd + i.wr)
            self._emit_wait(vm, lg)
        if i.mn.startswith(('s_cselect', 's_cbranch_scc', 's_addc', 's_subb')):
            for q in reversed(self.ins):
                if q.kind == 'salu' and not q.mn.startswith(('s_mov', 's_cselect', 's_mul', 's_getpc')):
                    want = ('s_cmp',) if not i.mn.startswith(('s_addc', 's_subb')) else ('s_add_u32', 's_sub_u32')
                    assert q.mn.startswith(want), f'SCC feeding {text!r} comes from {q.text!r}'
                    break
        need = 0; dist = 0
        for p in reversed(self.ins):
            if dist >= 20: break
            if p.kind != 'meta':
                n = need_states(p, i) if i.kind not in ('meta',) else 0
                need = max(need, n - dist)
            dist += p.states()
        while need > 0:
            k = min(need, 16); self.ins.append(I(f's_nop {k-1}')); need -= k; self.nops += 1
        self.ins.append(i)
        if i.kind == 'ds': self.lgq.append(set(i.wr))
        elif i.kind == 'smem':
            self.smem_pending = True; self.lgq.append(set(i.wr))
        elif i.kind == 'vmem' and not i.mn.startswith(('buffer_wbl2', 'buffer_inv')):
            self.vmq.append((set(i.wr), tag))
            assert len(self.vmq) <= self.vm_limit, 'vmcnt overflow'
        return i

    def loop(self, body, label, back):
        import copy
        st0 = (copy.deepcopy(self.lgq), copy.deepcopy(self.vmq), list(self.ins), self.site, self.forced, dict(self.sites))
        comb = None
        for rounds in range(4):
            self.lgq, self.vmq, self.ins, self.site = copy.deepcopy(st0[0]), copy.deepcopy(st0[1]), list(st0[2]), st0[3]
            seen = []
            lens = []
            for it in range(3):
                self.site = st0[3]; self.sites = {}
                self.forced = comb
                n0 = len(self.ins)
                body(); back()
                lens.append(len(self.ins) - n0)
                seen.append(dict(self.sites))
            new = {}
            for k in seen[0]:
                def mn(vals):
                    vals = [v for v in vals if v is not None]
                    return min(vals) if vals else None
                vs = [s[k] for s in seen] + ([comb[k]] if comb else [])
                new[k] = (mn([v[0] for v in vs]), mn([v[1] for v in vs]))
            if new == comb: break
            comb = new
        else:
            raise RuntimeError('loop waits did not converge')
        self.lgq, self.vmq, self.ins, self.site = copy.deepcopy(st0[0]), copy.deepcopy(st0[1]), list(st0[2]), st0[3]
        self.forced = comb
        self.label(label)
        n0 = len(self.ins); body(); back(); first = [x.text for x in self.ins[n0:]]
        end_site = self.site
        keep = list(self.ins); q1 = (copy.deepcopy(self.lgq), copy.deepcopy(self.vmq))
        self.site = st0[3]; n1 = len(self.ins); body(); back(); second = [x.text for x in self.ins[n1:]]
        assert first == second, 'loop body differs between first and steady pass (hazard nops or waits)'
        for a, b in ((q1[0], self.lgq), (q1[1], self.vmq)):
            n = min(len(a), len(b))
            assert n == 0 or a[len(a)-n:] == b[len(b)-n:], 'queue tails differ after loop'
        if len(q1[0]) > len(self.lgq): self.lgq = q1[0]
        if len(q1[1]) > len(self.vmq): self.vmq = q1[1]
        self.ins = keep; self.site = end_site; self.forced = st0[4]; self.sites = st0[5]

    def snapshot(self):
        import copy
        return (copy.deepcopy(self.lgq), copy.deepcopy(self.vmq))
    def restore(self, st):
        import copy
        self.lgq, self.vmq = copy.deepcopy(st[0]), copy.deepcopy(st[1])

    def text(self):
        return '\n'.join(('' if i.kind == 'meta' else '  ') + i.text for i in self.ins)

    def count(self):
        from collections import Counter
        return Counter(i.kind for i in self.ins)


class Alloc:
    def __init__(self, kind, lo, hi):
        self.kind, self.nxt, self.hi = kind, lo, hi
        self.names = {}
    def get(self, name, n=1, align=None):
        al = align or (1 if n == 1 else (2 if n < 4 else 4))
        self.nxt = (self.nxt + al - 1) // al * al
        r = self.nxt; self.nxt += n
        assert self.nxt <= self.hi, f'out of {self.kind} regs at {name}'
        self.names[name] = (r, n)
        return r

def R(kind, base, n=1):
    return f'{kind}{base}' if n == 1 else f'{kind}[{base}:{base+n-1}]'
def v(b, n=1): return R('v', b, n)
def a(b, n=1): return R('a', b, n)
def s(b, n=1): return R('s', b, n)

def interleave(p, mains, fillers, per=2):
    def put(x):
        if callable(x): x()
        elif isinstance(x, tuple): p.e(x[0], x[1])
        else: p.e(x)
    for x in fillers.get(-1, []): put(x)
    for k, m in enumerate(mains):
        put(m)
        for x in fillers.get(k, []): put(x)


class Slots:
    def __init__(self, n, cap=2):
        self.n, self.cap = n, cap
        self.f = {}; self.cnt = {}
    @staticmethod
    def cost(x):
        t = x[0] if isinstance(x, tuple) else x
        if isinstance(t, str) and t.startswith('buffer_'): return 2
        if isinstance(t, str) and t.startswith(('v_exp', 'v_rcp', 'v_rsq')): return 2
        return 1
    def fix(self, k, x, cost=None):
        self.f.setdefault(k, []).append(x); self.cnt[k] = self.cnt.get(k, 0) + (cost or self.cost(x))
    def stream(self, start, items, last=None, gap=0, cap=None):
        k = start; cap = cap or self.cap
        last = self.n - 1 if last is None else last
        used = start
        for x in items:
            c = self.cost(x)
            while self.cnt.get(k, 0) + c > cap and k < last: k += 1
            self.fix(k, x); used = k; k = min(k + gap, last)
        return used
```

```python
from asmlib import *
from layout import *

LOG2E = 1.4426950408889634
def fhex(x):
    import struct
    return '0x%08x' % struct.unpack('<I', struct.pack('<f', x))[0]

SP0 = 147456
RED = 114688
CH = 64 * 9216

def gen_k1(name, stamps=False, opt=()):
    p = Prog(); e = p.e
    V = Alloc('v', 1, 256); A = Alloc('a', 0, 256); SG = Alloc('s', 56, 100)
    SX, SQ, SGt, SU, SWS, SH, SJS, SJD = 4, 8, 12, 16, 20, 24, 28, 32
    KA = 36
    sW, sI, sJ, sT, sQF, sM = (SG.get(n) for n in ('w', 'i', 'j', 't', 'qf', 'm'))
    sWo, sCnt, sM0w, sJob, sJo, sT0, sT1, sT2 = (SG.get(n) for n in ('wo', 'cnt', 'm0w', 'job', 'jo', 't0', 't1', 't2'))
    sH = SG.get('h', 4, 1); sKV = SG.get('kv', 6, 1); sSP = SG.get('sp'); sLine = SG.get('line')
    mk = [SG.get(f'mk{k}', 2) for k in range(4)]
    sSt = SG.get('st', 2); sStO = SG.get('sto'); sOnes = SG.get('ones')
    JP = [36, 37, 38, 39, 42, 43, 44, 45, 46, 47, 50, 51]
    ACC = V.get('acc', 64); PR = V.get('prod', 32)
    vTR = V.get('tr', 6, 1); vDM = V.get('dm', 2, 1); vL16 = V.get('l16'); vRS = V.get('rs', 4, 1); vRS2 = V.get('rs2', 4, 1)
    vJS = V.get('js'); vJT = V.get('jt'); vJS2 = V.get('spare'); vT = V.get('tmp', 8, 4)
    NXV = (256 - V.nxt) // 4
    XV = V.get('xv', 4 * NXV)
    WF = A.get('wf', 24); XA = A.get('xa', 4 * (72 - NXV)); JD = A.get('jd', 64)
    def xf(b, ks):
        f = ks * 4 + b
        return v(XV + 4 * f, 4) if f < NXV else a(XA + 4 * (f - NXV), 4)
    def xf_isv(b, ks): return ks * 4 + b < NXV
    def xf_base(b, ks):
        f = ks * 4 + b
        return XV + 4 * f if f < NXV else XA + 4 * (f - NXV)
    nstamp = [0]
    def stamp():
        if not stamps: return
        k = nstamp[0]; nstamp[0] += 1
        p.wait_lg(0)
        e(f's_memrealtime {s(sSt,2)}'); p.wait_lg(0)
        e(f'v_mov_b32 {v(vT+7)}, {s(sSt)}'); e(f's_add_u32 {s(sT2)}, {s(sStO)}, {4*k}')
        e(f'v_mov_b32 {v(vT+6)}, 0')
        e(f'buffer_store_dword {v(vT+7)}, {v(vT+6)}, {s(SWS,4)}, {s(sT2)} offen')
        e(f's_memtime {s(sSt,2)}'); p.wait_lg(0)
        e(f'v_mov_b32 {v(vT+7)}, {s(sSt)}')
        e(f'buffer_store_dword {v(vT+7)}, {v(vT+6)}, {s(SWS,4)}, {s(sT2)} offen offset:128')

    END = f'{name}_end'
    e('s_cmp_ge_u32 s2, 256'); e(f's_cbranch_scc1 {END}')
    e(f's_load_dwordx8 {s(KA,8)}, s[0:1], 0'); e(f's_load_dwordx8 {s(KA+8,8)}, s[0:1], 32'); e(f's_load_dwordx4 {s(KA+16,4)}, s[0:1], 64')
    T = [ACC + 32 + k for k in range(32)] + [PR + k for k in range(32)]
    vLane, vL3, vL4, vC7, vN, vI2, vB = T[0:7]
    vXO = T[8:12]; vXR = T[12:16]
    e(f'v_lshrrev_b32 {v(vB)}, 6, v0'); e(f'v_and_b32 {v(vLane)}, 63, v0')
    e(f'v_readfirstlane_b32 {s(sW)}, {v(vB)}')
    e(f'v_lshrrev_b32 {v(vL3)}, 3, {v(vLane)}'); e(f'v_lshrrev_b32 {v(vL4)}, 4, {v(vLane)}'); e(f'v_and_b32 {v(vC7)}, 7, {v(vLane)}')
    e(f'v_and_b32 {v(vN)}, 15, {v(vLane)}'); e(f'v_lshlrev_b32 {v(vL16)}, 4, {v(vLane)}')
    e(f's_and_b32 {s(sQF)}, s2, 3'); e(f's_bfe_u32 {s(sT0)}, s2, 0x10002'); e(f's_lshr_b32 {s(sT1)}, s2, 5')
    e(f's_lshl_b32 {s(sT0)}, {s(sT0)}, 3'); e(f's_add_u32 {s(sT)}, {s(sT0)}, {s(sT1)}'); e(f's_bfe_u32 {s(sM)}, s2, 0x20003')
    e(f's_lshr_b32 {s(sI)}, {s(sW)}, 1'); e(f's_and_b32 {s(sJ)}, {s(sW)}, 1')
    e(f's_lshl_b32 {s(sM0w)}, {s(sW)}, 12'); e(f's_add_u32 {s(sSP)}, {s(sM0w)}, {SP0}')
    e(f's_lshl_b32 {s(sT0)}, {s(sW)}, 5'); e(f'v_add_u32 {v(vB)}, {s(sT0)}, {v(vL3)}'); e(f'v_mul_u32_u24 {v(vB)}, 1152, {v(vB)}')
    for q in range(4):
        e(f'v_or_b32 {v(vI2)}, {4*(q&1)}, {v(vL4)}'); e(f'v_xor_b32 {v(vI2)}, {v(vI2)}, {v(vC7)}')
        e(f'v_lshl_add_u32 {v(vXO[q])}, {v(vI2)}, 4, {v(vB)}')
        if q: e(f'v_add_u32 {v(vXO[q])}, {8192*q}, {v(vXO[q])}')
    e(f's_mul_i32 {s(sT0)}, {s(sT)}, {128*1152}')
    p.wait_lg(0)
    def srd(r, ptr, nbytes, back=0):
        if back:
            e(f's_sub_u32 {s(r)}, {s(ptr)}, {back}'); e(f's_subb_u32 {s(r+1)}, {s(ptr+1)}, 0')
        else:
            e(f's_mov_b32 {s(r)}, {s(ptr)}'); e(f's_mov_b32 {s(r+1)}, {s(ptr+1)}')
        e(f's_mov_b32 {s(r+2)}, {nbytes + back}'); e(f's_mov_b32 {s(r+3)}, 0x20000')
    srd(SX, KA + 0, S * D * 2)
    for l in range(9):
        e(f's_add_u32 m0, {s(sM0w)}, {l*16384}')
        if l: e(f's_add_u32 {s(sT0)}, {s(sT0)}, 128')
        else: e('s_nop 0')
        for q in range(4):
            e(f'buffer_load_dwordx4 {v(vXO[q])}, {s(SX,4)}, {s(sT0)} offen offset:{1024*q} lds', tag=f'x{l}')
    srd(SQ, KA + 2, D * 3 * D * 2, back=4096); srd(SGt, KA + 8, D * F * 2); srd(SU, KA + 10, D * F * 2, back=2048)
    srd(SWS, KA + 18, WS_USED); srd(SH, KA + 18, 0); srd(SJS, KA + 12, 0); srd(SJD, KA + 18, REC_OFF)
    if stamps:
        e(f's_lshl_b32 {s(sStO)}, s2, 2'); e(f's_add_u32 {s(sStO)}, {s(sStO)}, {s(sW)}'); e(f's_lshl_b32 {s(sStO)}, {s(sStO)}, 8'); e(f's_add_u32 {s(sStO)}, {s(sStO)}, {STAMP_OFF}')
    stamp()
    e(f'v_mov_b32 {v(vI2)}, 0'); e(f's_lshl_b32 {s(sT1)}, s2, 7'); e(f's_add_u32 {s(sT1)}, {s(sT1)}, {FLAG_OFF}')
    e(f'buffer_store_dword {v(vI2)}, {v(vI2)}, {s(SWS,4)}, {s(sT1)} offen')
    e(f's_and_b32 {s(sT1)}, s2, 7'); e(f's_lshl_b32 {s(sT1)}, {s(sT1)}, 7'); e(f's_add_u32 {s(sT1)}, {s(sT1)}, {CNT_OFF}')
    e(f'buffer_store_dword {v(vI2)}, {v(vI2)}, {s(SWS,4)}, {s(sT1)} offen')
    vQ = vL4
    e(f'v_lshrrev_b32 {v(vI2)}, 1, {v(vN)}'); e(f'v_xor_b32 {v(vI2)}, {v(vI2)}, {v(vQ)}'); e(f'v_lshlrev_b32 {v(vI2)}, 4, {v(vI2)}')
    e(f'v_lshl_add_u32 {v(vI2)}, {v(vN)}, 7, {v(vI2)}')
    e(f's_lshl_b32 {s(sT0)}, {s(sI)}, 13'); e(f's_lshl_b32 {s(sT1)}, {s(sJ)}, 12')
    e(f's_add_u32 {s(sT2)}, {s(sT0)}, {s(sT1)}'); e(f'v_add_u32 {v(vXR[0])}, {s(sT2)}, {v(vI2)}')
    e(f's_xor_b32 {s(sT2)}, {s(sT2)}, 4096'); e(f'v_add_u32 {v(vXR[1])}, {s(sT2)}, {v(vI2)}')
    e(f'v_xor_b32 {v(vXR[2])}, 64, {v(vXR[0])}'); e(f'v_xor_b32 {v(vXR[3])}, 64, {v(vXR[1])}')
    def wdma_off(dst, stride, rows_per_wave, pp, bit3):
        e(f's_mul_i32 {s(sT0)}, {s(sW)}, {rows_per_wave}'); e(f's_add_u32 {s(sT0)}, {s(sT0)}, {8*pp}')
        e(f'v_add_u32 {v(vB)}, {s(sT0)}, {v(vL3)}'); e(f'v_mul_u32_u24 {v(vB)}, {stride}, {v(vB)}')
        e(f'v_and_b32 {v(vI2)}, 1, {v(vL4)}'); e(f'v_lshlrev_b32 {v(vI2)}, 1, {v(vI2)}')
        if bit3 == 'w':
            e(f's_lshl_b32 {s(sT0)}, {s(sJ)}, 2'); e(f'v_or_b32 {v(vI2)}, {s(sT0)}, {v(vI2)}')
        elif bit3: e(f'v_or_b32 {v(vI2)}, 4, {v(vI2)}')
        e(f'v_xor_b32 {v(vI2)}, {v(vI2)}, {v(vC7)}'); e(f'v_lshl_add_u32 {v(dst)}, {v(vI2)}, 4, {v(vB)}')
        if pp: e(f'v_subrev_u32 {v(dst)}, {1024*pp}, {v(dst)}')
    wdma_off(vDM, 9216, 16, 0, 0); wdma_off(vDM + 1, 9216, 16, 1, 1)
    vQD = T[16:18]; vKD = T[18]
    wdma_off(vQD[0], 3456, 16, 0, 0); wdma_off(vQD[1], 3456, 16, 1, 1); wdma_off(vKD, 3456, 8, 0, 'w')
    vTL, vU = T[19], T[20]
    e(f'v_lshrrev_b32 {v(vI2)}, 3, {v(vN)}'); e(f'v_and_b32 {v(vU)}, 1, {v(vQ)}'); e(f'v_lshl_or_b32 {v(vI2)}, {v(vU)}, 1, {v(vI2)}')
    e(f'v_lshlrev_b32 {v(vI2)}, 5, {v(vI2)}')
    e(f'v_and_b32 {v(vU)}, 3, {v(vN)}'); e(f'v_lshl_or_b32 {v(vI2)}, {v(vU)}, 3, {v(vI2)}')
    e(f'v_lshrrev_b32 {v(vU)}, 2, {v(vN)}'); e(f'v_lshl_or_b32 {v(vTL)}, {v(vU)}, 7, {v(vI2)}')
    e(f'v_lshrrev_b32 {v(vU)}, 1, {v(vQ)}'); e(f'v_lshlrev_b32 {v(vU)}, 12, {v(vU)}')
    e(f'v_and_b32 {v(vI2)}, 1, {v(vQ)}'); e(f'v_lshl_or_b32 {v(vU)}, {v(vI2)}, 10, {v(vU)}'); e(f'v_or_b32 {v(vU)}, {v(vU)}, {v(vTL)}')
    e(f's_lshl_b32 {s(sT0)}, {s(sJ)}, 6'); e(f'v_xor_b32 {v(vTR)}, {s(sT0)}, {v(vU)}'); e(f'v_xor_b32 {v(vTR+1)}, 32, {v(vTR)}')
    for r in (1, 2):
        for tt in range(2): e(f'v_add_u32 {v(vTR+2*r+tt)}, {65536*r}, {v(vTR+tt)}')
    e(f'v_lshlrev_b32 {v(vI2)}, 1, {v(vL4)}'); e(f'v_xor_b32 {v(vI2)}, {v(vI2)}, {v(vC7)}'); e(f'v_lshlrev_b32 {v(vI2)}, 4, {v(vI2)}')
    e(f'v_mul_u32_u24 {v(vU)}, 1152, {v(vL3)}'); e(f'v_add_u32 {v(vJS)}, {v(vU)}, {v(vI2)}')
    e(f'v_lshlrev_b32 {v(vU)}, 9, {v(vQ)}'); e(f'v_add_u32 {v(vU)}, {s(sSP)}, {v(vU)}'); e(f'v_add_u32 {v(vJT)}, {v(vU)}, {v(vTL)}')
    vONE = T[24]; vSEL = T[28]; vF1 = T[34]
    assert vONE % 4 == 0 and vSEL % 4 == 0
    e(f's_mov_b32 {s(sOnes)}, 0x3f803f80')
    for k in range(4): e(f'v_mov_b32 {v(vONE+k)}, {s(sOnes)}')
    e(f'v_mov_b32 {v(vF1)}, 1.0')
    e(f'v_lshrrev_b32 {v(vU)}, 2, {v(vN)}'); e(f'v_cmp_eq_u32 {s(mk[0],2)}, {v(vU)}, {v(vQ)}')
    e(f'v_and_b32 {v(vU)}, 3, {v(vN)}')
    for k in (1, 2, 3): e(f'v_cmp_eq_u32 {s(mk[k],2)}, {k}, {v(vU)}')
    e(f'v_and_b32 {v(vI2)}, 1, {v(vN)}'); e(f'v_lshlrev_b32 {v(vI2)}, 4, {v(vI2)}'); e(f'v_mov_b32 {v(vB)}, 0x3f80'); e(f'v_lshlrev_b32 {v(vB)}, {v(vI2)}, {v(vB)}')
    e(f'v_cndmask_b32 {v(vB)}, 0, {v(vB)}, {s(mk[0],2)}')
    e(f'v_cmp_gt_u32 vcc, 2, {v(vU)}')
    for k in (0, 1, 4, 5): e(f'v_mov_b32 {v(vSEL+k)}, 0')
    e(f'v_cndmask_b32 {v(vSEL+2)}, 0, {v(vB)}, vcc'); e(f'v_cndmask_b32 {v(vSEL+3)}, {v(vB)}, 0, vcc')
    SUM = lambda b: ACC + 4 * b
    SQ_ = lambda b: ACC + 16 + 4 * b
    pend = []
    def stats(b, ks):
        c0 = '0' if ks == 0 else v(SUM(b), 4); c1 = '0' if ks == 0 else v(SQ_(b), 4)
        e(f'v_mfma_f32_16x16x32_bf16 {v(SUM(b),4)}, {v(vONE,4)}, {xf(b,ks)}, {c0}')
        e(f'v_mfma_f32_16x16x32_bf16 {v(SQ_(b),4)}, {xf(b,ks)}, {xf(b,ks)}, {c1}')
    for l in range(9):
        p.wait_tag(f'x{l}'); e('s_barrier')
        if l in (4, 8):
            for k in range(4): e(f'v_add_u32 {v(vXR[k])}, 65536, {v(vXR[k])}')
        cur = []
        for kk in range(2):
            for b in range(4):
                e(f'ds_read_b128 {xf(b, 2*l+kk)}, {v(vXR[2*kk + (b>>1)])} offset:{(l%4)*16384 + (b&1)*2048}')
                cur.append((b, 2 * l + kk))
                if pend: stats(*pend.pop(0))
        pend = cur
    p.wait_lg(0); e('s_barrier')
    stamp()
    def ffn_dma(slot, tag=None):
        return [f's_add_u32 m0, {s(sM0w)}, {slot*16384}', None,
                (f'buffer_load_dwordx4 {v(vDM)}, {s(SGt,4)}, {s(sWo)} offen lds', tag or f'slot{slot}'),
                (f'buffer_load_dwordx4 {v(vDM+1)}, {s(SGt,4)}, {s(sWo)} offen offset:1024 lds', tag or f'slot{slot}'),
                (f'buffer_load_dwordx4 {v(vDM)}, {s(SU,4)}, {s(sWo)} offen offset:2048 lds', tag or f'slot{slot}'),
                (f'buffer_load_dwordx4 {v(vDM+1)}, {s(SU,4)}, {s(sWo)} offen offset:3072 lds', tag or f'slot{slot}'),
                f's_add_u32 {s(sWo)}, {s(sWo)}, {CH}']
    def put(lst):
        for x in lst:
            if x is None: continue
            if isinstance(x, tuple): e(x[0], x[1])
            else: e(x)
    QB = 73728
    def kv_dma(ks, vk):
        slot = ks % 6; out = []
        for st in range(6):
            if st % 4 == 0: out.append(f's_add_u32 m0, {s(sT2)}, {slot*24576 + (st//4)*4096}')
            out.append((f'buffer_load_dwordx4 {v(vk)}, {s(SQ,4)}, {s(sKV+st)} offen offset:{1024*(st%4)} lds', f'kv{ks}'))
            out.append(f's_add_u32 {s(sKV+st)}, {s(sKV+st)}, {32*3456}')
        return out
    e(f's_mul_i32 {s(sT0)}, {s(sM)}, 5'); e(f's_sub_u32 {s(sT0)}, {s(sT0)}, 2'); e(f's_max_i32 {s(sT0)}, {s(sT0)}, 0')
    e(f's_mul_i32 {s(sT1)}, {s(sQF)}, 18'); e(f's_add_u32 {s(sT0)}, {s(sT0)}, {s(sT1)}')
    e(f's_lshl_b32 {s(sWo)}, {s(sT0)}, 7')
    e(f's_lshl_b32 {s(sT0)}, {s(sT0)}, 1'); e(f's_add_u32 {s(sT0)}, {s(sT0)}, {s(sJ)}'); e(f's_sub_u32 {s(sT0)}, {s(sT0)}, 2')
    e(f's_lshl_b32 {s(sT1)}, {s(sT)}, 3'); e(f's_lshl_b32 {s(sT2)}, {s(sI)}, 2'); e(f's_add_u32 {s(sT1)}, {s(sT1)}, {s(sT2)}')
    e(f's_lshl_b32 {s(sT2)}, {s(sJ)}, 1')
    sTB = [SG.get(f'tb{b}') for b in range(4)]
    for b in range(4):
        e(f's_xor_b32 {s(sTB[b])}, {s(sT2)}, {b}'); e(f's_add_u32 {s(sTB[b])}, {s(sTB[b])}, {s(sT1)}')
        e(f's_mul_i32 {s(sH+b)}, {s(sTB[b])}, 144'); e(f's_add_u32 {s(sH+b)}, {s(sH+b)}, {s(sT0)}'); e(f's_lshl_b32 {s(sH+b)}, {s(sH+b)}, 10')
    e(f's_cmp_eq_u32 {s(sM)}, 0'); e(f's_cselect_b32 {s(sCnt)}, 3, 5')
    e(f's_lshl_b32 {s(sJob)}, s2, 2'); e(f's_add_u32 {s(sJob)}, {s(sJob)}, {s(sW)}')
    e(f's_mul_i32 {s(sLine)}, {s(sQF)}, 3'); e(f's_add_u32 {s(sLine)}, {s(sLine)}, {s(sM)}'); e(f's_sub_u32 {s(sLine)}, {s(sLine)}, 1')
    for n in range(2):
        jb = JP[6 * n: 6 * n + 6]
        e(f's_mov_b32 {s(jb[2])}, {F*D*2}')
        e(f's_cmp_lt_u32 {s(sJob)}, {NJOB_WD}')
        e(f's_cselect_b32 {s(jb[0])}, {s(KA+12)}, {s(KA+4)}'); e(f's_cselect_b32 {s(jb[1])}, {s(KA+13)}, {s(KA+5)}')
        e(f's_cselect_b32 {s(jb[2])}, {s(jb[2])}, {D*D*2}'); e(f's_cselect_b32 {s(sT0)}, 0, {NJOB_WD}'); e(f's_cselect_b32 {s(sT2)}, 0, {16*1152}')
        e(f's_sub_u32 {s(sT0)}, {s(sJob)}, {s(sT0)}'); e(f's_mul_i32 {s(sT1)}, {s(sT0)}, 7282'); e(f's_lshr_b32 {s(sT1)}, {s(sT1)}, 16')
        e(f's_mul_i32 {s(jb[3])}, {s(sT1)}, {32*1152 - 9*128}'); e(f's_lshl_b32 {s(sT0)}, {s(sT0)}, 7'); e(f's_add_u32 {s(jb[3])}, {s(jb[3])}, {s(sT0)}')
        e(f's_mul_i32 {s(sT1)}, {s(sT1)}, 13108'); e(f's_lshr_b32 {s(sT1)}, {s(sT1)}, 16'); e(f's_mul_i32 {s(sT1)}, {s(sT1)}, {s(sT2)}')
        e(f's_sub_u32 {s(jb[3])}, {s(jb[3])}, {s(sT1)}')
        e(f's_lshl_b32 {s(jb[4])}, {s(sJob)}, 12'); e(f's_add_u32 {s(jb[4])}, {s(jb[4])}, {WT_OFF}')
        e(f's_cmp_lt_u32 {s(sJob)}, {NJOB}'); e(f's_cselect_b32 {s(jb[2])}, {s(jb[2])}, 0'); e(f's_cselect_b32 {s(jb[5])}, {REC_OFF}, 0')
        if n == 0: e(f's_add_u32 {s(sJob)}, {s(sJob)}, 1024')
    st0 = p.snapshot()
    e(f's_cmp_eq_u32 {s(sM)}, 0'); e(f's_cbranch_scc1 {name}_pre_kv')
    e(f's_cmp_lt_u32 {s(sLine)}, 9'); e(f's_cbranch_scc1 {name}_pre_q')
    for c in range(8): put(ffn_dma(c))
    stF = p.snapshot()
    e(f's_branch {name}_center')
    p.label(f'{name}_pre_q'); p.restore(st0)
    e(f's_lshl_b32 {s(sT0)}, {s(sLine)}, 7'); e(f's_add_u32 {s(sT0)}, {s(sT0)}, 4096'); e(f's_lshr_b32 {s(sT1)}, {s(sM0w)}, 1')
    for c in range(9):
        e(f's_add_u32 m0, {s(sT1)}, {QB + 8192*c}')
        if c: e(f's_add_u32 {s(sT0)}, {s(sT0)}, {64*3456}')
        else: e('s_nop 0')
        e(f'buffer_load_dwordx4 {v(vQD[0])}, {s(SQ,4)}, {s(sT0)} offen lds', 'q')
        e(f'buffer_load_dwordx4 {v(vQD[1])}, {s(SQ,4)}, {s(sT0)} offen offset:1024 lds', 'q')
    for c in range(4): put(ffn_dma(c))
    stQ = p.snapshot()
    e(f's_branch {name}_center')
    p.label(f'{name}_pre_kv'); p.restore(st0)
    e(f's_lshl_b32 {s(sT0)}, {s(sQF)}, 8')
    for st in range(6):
        e(f's_add_u32 {s(sKV+st)}, {s(sT0)}, {4096 + 1152*(1 + st//3) + 128*(st%3) - 1024*(st%4)}')
    e(f's_mul_i32 {s(sT2)}, {s(sW)}, 6144')
    for ks in range(6): put(kv_dma(ks, vKD))
    stK = p.snapshot()
    p.label(f'{name}_center'); p.restore(([], []))
    while pend: stats(*pend.pop(0))
    tmpv = T[36]
    for b in range(4):
        q_ = SQ_(b)
        e(f'v_cndmask_b32 {v(tmpv+b)}, {v(q_)}, {v(q_+1)}, {s(mk[1],2)}')
        e(f'v_cndmask_b32 {v(tmpv+b)}, {v(tmpv+b)}, {v(q_+2)}, {s(mk[2],2)}')
        e(f'v_cndmask_b32 {v(tmpv+b)}, {v(tmpv+b)}, {v(q_+3)}, {s(mk[3],2)}')
        e(f'v_cndmask_b32 {v(tmpv+b)}, 0, {v(tmpv+b)}, {s(mk[0],2)}')
        for r in range(4): e(f'v_mul_f32 {v(SUM(b)+r)}, {fhex(-1.0/576)}, {v(SUM(b)+r)}')
    for b in range(4): e(f'v_mfma_f32_16x16x4_f32 {v(SQ_(b),4)}, {v(vF1)}, {v(tmpv+b)}, 0')
    CT = [T[40 + 8 * k] for k in range(3)]
    order = [(b, ks) for ks in range(18) for b in range(4)]
    def c_mfma(n):
        b, ks = order[n]; t = CT[n % 3]
        return [f'v_mfma_f32_16x16x32_bf16 {v(t,4)}, {v(vSEL+2,4)}, {xf(b,ks)}, {v(SUM(b),4)}',
                f'v_mfma_f32_16x16x32_bf16 {v(t+4,4)}, {v(vSEL,4)}, {xf(b,ks)}, {v(SUM(b),4)}']
    def c_pack(n):
        b, ks = order[n]; t = CT[n % 3]; base = xf_base(b, ks); out = []
        for d in range(4):
            if xf_isv(b, ks): out.append([f'v_cvt_pk_bf16_f32 {v(base+d)}, {v(t+2*d)}, {v(t+2*d+1)}'])
            else: out.append([f'v_cvt_pk_bf16_f32 {v(t+2*d)}, {v(t+2*d)}, {v(t+2*d+1)}', f'v_accvgpr_write_b32 {a(base+d)}, {v(t+2*d)}'])
        return out
    extra = []
    for b in range(4):
        extra += [f'v_mul_f32 {v(tmpv+b)}, {v(SUM(b))}, {v(SUM(b))}',
                  f'v_fma_f32 {v(tmpv+b)}, {v(SQ_(b))}, {s(sT0)}, -{v(tmpv+b)}',
                  f'v_max_f32 {v(tmpv+b)}, 0, {v(tmpv+b)}', f'v_add_f32 {v(tmpv+b)}, {fhex(1e-5)}, {v(tmpv+b)}',
                  f'v_rsq_f32 {v(vRS+b)}, {v(tmpv+b)}', f'v_rcp_f32 {v(vRS2+b)}, {v(tmpv+b)}']
    e(f's_mov_b32 {s(sT0)}, {fhex(1.0/576)}')
    for n in range(72 + 2):
        m = c_mfma(n) if n < 72 else []
        pk = c_pack(n - 2) if n >= 2 else [[], [], [], []]
        if m: e(m[0])
        for x in pk[0] + pk[1]: e(x)
        if m: e(m[1])
        for x in pk[2] + pk[3]: e(x)
        if n >= 3 and extra: e(extra.pop(0))
    assert not extra
    stamp()
    e(f's_cmp_eq_u32 {s(sM)}, 0'); e(f's_cbranch_scc1 {name}_kv')
    e(f's_cmp_ge_u32 {s(sLine)}, 9'); e(f's_cbranch_scc1 {name}_hdr')

    def phi(dst, src, rs, rsl, t0):
        return [f'v_mul_f32 {v(t0)}, {v(src)}, {v(rsl)}', f'v_fma_f32 {v(dst)}, {v(src)}, {v(rs)}, {s(sT1)}',
                f'v_exp_f32_e64 {v(t0)}, {v(t0)} clamp', f'v_max_f32 {v(dst)}, {s(sT1)}, {v(dst)}', f'v_add_f32 {v(dst)}, {v(dst)}, {v(t0)}']
    wf = lambda g, kk: a(WF + 8 * (g % 3) + 4 * kk, 4)
    def tr4(g, base_reg, off, kstride):
        out = []
        for kk in range(2):
            for h in range(2):
                out.append(f'ds_read_b64_tr_b16 {a(WF + 8*(g%3) + 4*kk + 2*h, 2)}, {v(base_reg)} offset:{off + kk*kstride + h*512}')
        return out
    p.restore(stQ)
    vQT = [ACC + 0, ACC + 1]
    e(f'v_lshrrev_b32 {v(ACC+2)}, 5, v0'); e(f'v_and_b32 {v(ACC+2)}, 1, {v(ACC+2)}'); e(f'v_lshlrev_b32 {v(ACC+2)}, 11, {v(ACC+2)}')
    e(f'v_subrev_u32 {v(ACC+2)}, {QB}, {v(ACC+2)}')
    for tt in range(2): e(f'v_sub_u32 {v(vQT[tt])}, {v(vTR+tt)}, {v(ACC+2)}')
    p.wait_tag('q'); e('s_barrier')
    qtr = lambda g: tr4(g, vQT[g % 2], ((g // 2) % 4) * 8192 + (32768 if g // 2 == 8 else 0), 4096)
    for x in qtr(0) + qtr(1): e(x)
    nxt_slot = 4
    for g in range(18):
        c, tt = g // 2, g % 2
        mains, fl = [], {}
        for b in range(4):
            for kk in range(2):
                acc = PR + 16 * tt + 4 * b
                cc = '0' if (c == 0 and kk == 0) else v(acc, 4)
                mains.append(f'v_mfma_f32_16x16x32_bf16 {v(acc,4)}, {wf(g,kk)}, {xf(b, 2*c+kk)}, {cc}')
        if g + 2 < 18:
            t4 = qtr(g + 2)
            if g + 2 == 8: fl.setdefault(-1, []).extend([f'v_add_u32 {v(vQT[0])}, 32768, {v(vQT[0])}', f'v_add_u32 {v(vQT[1])}, 32768, {v(vQT[1])}'])
            for k in range(4): fl.setdefault(2 * k, []).append(t4[k])
        if g in (2, 6, 10, 14):
            d = [x for x in ffn_dma(nxt_slot) if x]; nxt_slot += 1
            fl.setdefault(-1, []).append('s_barrier')
            for k, x in enumerate(d): fl.setdefault(1 + min(k, 6), []).append(x)
        interleave(p, mains, fl)
    stamp()
    e(f's_mov_b32 {s(sT1)}, {fhex(1e-6)}')
    for b in range(4): e(f'v_mul_f32 {v(ACC+4+b)}, {fhex(LOG2E)}, {v(vRS+b)}')
    for b in range(4):
        seqs = [phi(PR + 16 * tt + 4 * b + r, PR + 16 * tt + 4 * b + r, vRS + b, ACC + 4 + b, ACC + 8 + 4 * tt + r) for tt in range(2) for r in range(4)]
        for k in range(5):
            for sq in seqs: e(sq[k])
        o = PR + 4 * b
        e(f'v_cvt_pk_bf16_f32 {v(o)}, {v(o)}, {v(o+1)}'); e(f'v_cvt_pk_bf16_f32 {v(o+1)}, {v(o+2)}, {v(o+3)}')
        e(f'v_cvt_pk_bf16_f32 {v(o+2)}, {v(o+16)}, {v(o+17)}'); e(f'v_cvt_pk_bf16_f32 {v(o+3)}, {v(o+18)}, {v(o+19)}')
        e(f's_mul_i32 {s(sT0)}, {s(sTB[b])}, 18'); e(f's_lshl_b32 {s(sT2)}, {s(sLine)}, 1'); e(f's_add_u32 {s(sT0)}, {s(sT0)}, {s(sT2)}'); e(f's_add_u32 {s(sT0)}, {s(sT0)}, {s(sJ)}')
        e(f's_lshl_b32 {s(sT0)}, {s(sT0)}, 10'); e(f's_add_u32 {s(sT0)}, {s(sT0)}, {PQ_OFF}')
        e(f'buffer_store_dwordx4 {v(o,4)}, {v(vL16)}, {s(SWS,4)}, {s(sT0)} offen sc1')
    e(f's_branch {name}_hdr')
    p.label(f'{name}_kv'); p.restore(stK)
    def kacc(ct, b):
        n = ct * 16 + 4 * b
        return ('v', ACC + n) if n < 96 else ('a', JD + n - 96)
    vKT = [vT + k for k in range(4)]
    e(f'v_and_b32 {v(vT+4)}, 15, v0'); e(f'v_lshlrev_b32 {v(vT+4)}, 2, {v(vT+4)}'); e(f'v_add_u32 {v(vT+4)}, {s(sSP)}, {v(vT+4)}')
    for b in range(4): e(f'ds_write_b32 {v(vT+4)}, {v(vRS+b)} offset:{64*b}')
    e(f'v_bfe_u32 {v(vT+5)}, v0, 4, 2'); e(f'v_mul_u32_u24 {v(vT+5)}, 6144, {v(vT+5)}')
    e(f'v_and_b32 {v(vT+6)}, 0x1ff, {v(vTR)}'); e(f's_lshl_b32 {s(sT0)}, {s(sJ)}, 6'); e(f'v_xor_b32 {v(vT+6)}, {s(sT0)}, {v(vT+6)}')
    for u in range(4):
        e(f's_add_u32 {s(sT0)}, {s(sQF)}, {u}'); e(f's_and_b32 {s(sT1)}, {s(sT0)}, 3'); e(f's_lshl_b32 {s(sT1)}, {s(sT1)}, 5')
        e(f's_lshr_b32 {s(sT0)}, {s(sT0)}, 2'); e(f's_add_u32 {s(sT0)}, {s(sT0)}, {s(sJ)}'); e(f's_lshl_b32 {s(sT0)}, {s(sT0)}, 10')
        e(f'v_xor_b32 {v(vKT[u])}, {s(sT1)}, {v(vT+6)}'); e(f'v_add3_u32 {v(vKT[u])}, {v(vKT[u])}, {s(sT0)}, {v(vT+5)}')
    vKD2 = vT + 7
    e(f'v_mov_b32 {v(vKD2)}, {v(vKD)}')
    e(f's_mul_i32 {s(sT2)}, {s(sW)}, 6144')
    NR, LA = 6, 3
    kfr = lambda n: WF + 4 * (n % NR)
    def ktr(n):
        ks, ct = divmod(n, 10); aa = ct % 5
        off = (ks % 2) * 24576 + (aa // 4) * 1024 + (ct // 5) * 3072
        return [f'ds_read_b64_tr_b16 {a(kfr(n) + 2*h, 2)}, {v(vKT[aa % 4])} offset:{off + 512*h}' for h in range(2)]
    p.wait_tag('kv0'); e('s_barrier')
    for n in range(LA):
        for x in ktr(n): e(x)
    ffn_at = {14: [0], 15: [1, 2], 16: [3], 17: [4, 5]}
    for ks in range(18):
        mains = []; sl = Slots(40)
        for ct in range(10):
            n = ks * 10 + ct
            for b in range(4):
                kd, base = kacc(ct, b); acc = R(kd, base, 4)
                mains.append(f'v_mfma_f32_16x16x32_bf16 {acc}, {xf(b,ks)}, {a(kfr(n),4)}, {"0" if ks == 0 else acc}')
            sl.fix(4 * ct - 1, lambda n=n: p.need(a(kfr(n), 4)))
            if n + LA < 180:
                if (n + LA) % 10 == 0:
                    nk = (n + LA) // 10
                    sl.fix(4 * ct - 1, lambda nk=nk: p.wait_tag(f'kv{nk}')); sl.fix(4 * ct, 's_barrier')
                    if nk % 2 == 0:
                        dlt = 49152 if nk % 6 else -98304
                        for u in range(4): sl.fix(4 * ct - 3 + u // 2, f'v_add_u32 {v(vKT[u])}, {dlt & 0xffffffff:#x}, {v(vKT[u])}')
                t2 = ktr(n + LA)
                late = (n + LA) % 10 == 0
                early = (n + LA) % 10 == 9
                sl.fix(4 * ct + (1 if late else 0), t2[0]); sl.fix(4 * ct + (0 if early else 2), t2[1])
        dm = []
        if 2 <= ks <= 13: dm = kv_dma(ks + 4, vKD2)
        elif ks in ffn_at: dm = [x for t in ffn_at[ks] for x in ffn_dma(t) if x]
        sl.stream(0, dm, last=26)
        interleave(p, mains, sl.f)
    p.wait_lg(0); e('s_barrier')
    put(ffn_dma(6)); put(ffn_dma(7))
    stamp()
    e(f'v_bfe_u32 {v(vRS)}, v0, 4, 2'); e(f'v_lshlrev_b32 {v(vRS)}, 4, {v(vRS)}'); e(f'v_add_u32 {v(vRS)}, {s(sSP)}, {v(vRS)}')
    for k in range(4): e(f'v_accvgpr_write_b32 {a(WF+k)}, {s(sOnes)}')
    e(f's_mov_b32 {s(sT1)}, {fhex(1e-6)}')
    def pack8(dstkind, dst, src):
        for d in range(4):
            e(f'v_cvt_pk_bf16_f32 {v(dst+d) if dstkind == "v" else v(src+2*d)}, {v(src+2*d)}, {v(src+2*d+1)}')
        if dstkind == 'a':
            for d in range(4): e(f'v_accvgpr_write_b32 {a(dst+d)}, {v(src+2*d)}')
    PV = {}; PK = {}
    for hb in range(2):
        e(f'ds_read_b128 {v(vT,4)}, {v(vRS)} offset:{128*hb}'); e(f'ds_read_b128 {v(vT+4,4)}, {v(vRS)} offset:{128*hb+64}')
        base = ACC + 80 + 8 * hb
        for k in range(8): e(f'v_mul_f32 {v(base+k)}, {v(base+k)}, {v(vT+k)}')
        pack8('a', WF + 4 + 4 * hb, base); PV[0, hb] = a(WF + 4 + 4 * hb, 4)
        TM = ACC + 80
        for T_ in range(1, 5):
            ab = JD + 16 * (T_ - 1) + 8 * hb
            for k in range(8): e(f'v_accvgpr_read_b32 {v(TM+k)}, {a(ab+k)}')
            for k in range(8): e(f'v_mul_f32 {v(TM+k)}, {v(TM+k)}, {v(vT+k)}')
            pack8('a', ab, TM); PV[T_, hb] = a(ab, 4)
        for k in range(8): e(f'v_mul_f32 {v(TM+k)}, {fhex(LOG2E)}, {v(vT+k)}')
        for aa in range(5):
            base = ACC + 16 * aa + 8 * hb
            for half in range(2):
                tt = [vRS + 1, vRS + 2, vRS + 3, vJS2]
                seqs = [phi(base + 4*half + r, base + 4*half + r, vT + 4*half + r, TM + 4*half + r, tt[r]) for r in range(4)]
                for k in range(5):
                    for sq in seqs: e(sq[k])
            pack8('v', base, base); PK[aa, hb] = v(base, 4)
    e(f's_lshl_b32 {s(sT1)}, {s(sT)}, 1'); e(f's_add_u32 {s(sT1)}, {s(sT1)}, {s(sI)}'); e(f's_lshl_b32 {s(sT1)}, {s(sT1)}, 3')
    e(f's_lshl_b32 {s(sT0)}, {s(sQF)}, 1'); e(f's_add_u32 {s(sT0)}, {s(sT0)}, {s(sJ)}'); e(f's_add_u32 {s(sT1)}, {s(sT1)}, {s(sT0)}')
    e(f's_mul_i32 {s(sT1)}, {s(sT1)}, {18*1024}'); e(f's_add_u32 {s(sT1)}, {s(sT1)}, {KVP_OFF}')
    dt = [ACC + 16 * k + 8 * h + 4 for k in range(5) for h in range(2)]
    outs = [(aa, T_) for (aa, T_) in KV_PAIRS] + [(aa, None) for aa in range(5)]
    pend_st = []
    for u, (aa, T_) in enumerate(outs):
        d = v(dt[u % 10], 4)
        for hb in range(2):
            e(f'v_mfma_f32_16x16x32_bf16 {d}, {PK[aa, hb]}, {a(WF,4) if T_ is None else PV[T_, hb]}, {"0" if hb == 0 else d}')
        pend_st.append((u, d))
        if len(pend_st) > 4 or u == 17:
            while pend_st and (len(pend_st) > 4 or u == 17):
                uu, dd = pend_st.pop(0)
                e(f'buffer_store_dwordx4 {dd}, {v(vL16)}, {s(SWS,4)}, {s(sT1)} offen offset:{1024*(uu%4)} sc1')
                if uu % 4 == 3: e(f's_add_u32 {s(sT1)}, {s(sT1)}, 4096')
    p.label(f'{name}_hdr'); p.restore(stF)
    stamp()
    acc = lambda ai, b: ACC + 16 * ai + 4 * b
    def ftr(G):
        G %= 36; c, g = divmod(G, 4)
        return tr4(G, vTR + 2 * (c // 4) + (g >> 1), (c % 4) * 16384 + (g & 1) * 2048, 8192)
    p.wait_tag('slot0'); e('s_barrier')
    for x in ftr(0) + ftr(1): e(x)
    def prod(h, b): return [f'v_mul_f32 {v(PR + 16*h + 4*b + r)}, {v(acc(2*h, b) + r)}, {v(acc(2*h+1, b) + r)}' for r in range(4)]
    def fin(b):
        o = PR + 4 * b
        return ([f'v_mul_f32 {v(o + 16*h + r)}, {v(o + 16*h + r)}, {v(vRS2+b)}' for h in range(2) for r in range(4)] +
                [f'v_cvt_pk_bf16_f32 {v(o)}, {v(o)}, {v(o+1)}', f'v_cvt_pk_bf16_f32 {v(o+1)}, {v(o+2)}, {v(o+3)}',
                 f'v_cvt_pk_bf16_f32 {v(o+2)}, {v(o+16)}, {v(o+17)}', f'v_cvt_pk_bf16_f32 {v(o+3)}, {v(o+18)}, {v(o+19)}',
                 f'buffer_store_dwordx4 {v(o,4)}, {v(vL16)}, {s(SH,4)}, {s(sH+b)} offen sc1', f's_add_u32 {s(sH+b)}, {s(sH+b)}, 2048'])
    def body():
        mains = []; sl = Slots(288)
        for G in range(36):
            c, g = divmod(G, 4)
            for b in range(4):
                for kk in range(2):
                    cc = '0' if (c == 0 and kk == 0) else v(acc(g, b), 4)
                    mains.append(f'v_mfma_f32_16x16x32_bf16 {v(acc(g,b),4)}, {wf(G,kk)}, {xf(b, 2*c+kk)}, {cc}')
            sl.fix(8 * G - 1, lambda G=G: p.need(a(WF + 8 * (G % 3), 8)))
            if g == 2:
                sl.fix(8 * G - 1, lambda c=c: p.wait_tag(f'slot{(c+1)%9}')); sl.fix(8 * G, 's_barrier')
            for k, x in enumerate(ftr(G + 2)): sl.fix(8 * G + 2 * k + (1 if g == 2 else 0), x)
        sl.stream(8 * 33 + 5, prod(0, 0), last=8 * 34 - 1, cap=3)
        sl.stream(8 * 34 + 1, prod(0, 1) + prod(0, 2) + prod(0, 3), last=287)
        sl.stream(0, prod(1, 0) + prod(1, 1) + prod(1, 2) + prod(1, 3), last=15)
        for c in range(9):
            d = [x for x in ffn_dma((c - 1) % 9) if x]
            if c == 0:
                d[-1] = f's_add_u32 {s(sWo)}, {s(sWo)}, {(128 - 8*CH) & 0xffffffff:#x}'
                d += [lambda: put([f's_cmp_eq_u32 {s(sCnt)}, 1', f's_cselect_b32 {s(SGt+2)}, 0, {s(SGt+2)}', f's_cselect_b32 {s(SU+2)}, 0, {s(SU+2)}'])]
            if c < 8: sl.stream(32 * c + 17, d, last=32 * c + 31, gap=1)
            else: sl.stream(32 * c + 17, d, last=287, cap=3)
        j1 = [f's_mov_b32 {s(SJS+q)}, {s(JP[q])}' for q in range(3)] + [f's_mov_b32 {s(sJo)}, {s(JP[3])}', f's_mov_b32 {s(SJD+2)}, {s(JP[5])}']
        k = sl.stream(16, j1, last=31)
        jl = [f's_mov_b32 m0, {s(sSP)}']
        for q in range(4):
            jl += [(f'buffer_load_dwordx4 {v(vJS)}, {s(SJS,4)}, {s(sJo)} offen offset:{1024*q} lds', 'job'), f's_add_u32 {s(sJo)}, {s(sJo)}, 8192']
        k = sl.stream(32, jl, last=47, gap=1)
        k = sl.stream(16, fin(0) + fin(1) + fin(2) + fin(3) + [f's_mov_b32 {s(SH+2)}, {PQ_OFF}'], gap=1)
        j2 = [f's_mov_b32 {s(sJo)}, {s(JP[4])}'] + [f's_mov_b32 {s(JP[q])}, {s(JP[6+q])}' for q in range(6)]
        j2 += [f's_mov_b32 {s(JP[8])}, 0', f's_mov_b32 {s(JP[11])}, 0']
        j2 += [f'v_xor_b32 {v(vT+u)}, {32*u}, {v(vJT)}' for u in range(1, 4)]
        k = sl.stream(k + 1, j2)
        assert k < 32 * 6
        j3 = [lambda: p.wait_tag('job')]
        for u in range(4):
            for h in range(2): j3.append(f'ds_read_b64_tr_b16 {a(JD + 4*u + 2*h, 2)}, {v(vT+u) if u else v(vJT)} offset:{2048*h}')
        k = sl.stream(32 * 6 + 26, j3, gap=1)
        jst = [f'buffer_store_dwordx4 {a(JD+4*u,4)}, {v(vL16)}, {s(SJD,4)}, {s(sJo)} offen offset:{1024*u} sc1' for u in range(4)]
        k = sl.stream(k + 2, jst, gap=3)
        assert k < 8 * 33
        def keep(x):
            t = x[0] if isinstance(x, tuple) else x
            if not isinstance(t, str): return True
            if 'nodma' in opt and t.endswith('lds'): return False
            if 'nobar' in opt and t == 's_barrier': return False
            if 'nost' in opt and t.startswith('buffer_store'): return False
            if 'notr' in opt and t.startswith('ds_read'): return False
            if 'novalu' in opt and t.startswith('v_'): return False
            return True
        interleave(p, mains, {k_: [x for x in l_ if keep(x)] for k_, l_ in sl.f.items()})
    def back():
        e(f's_sub_u32 {s(sCnt)}, {s(sCnt)}, 1'); e(f's_cmp_lg_u32 {s(sCnt)}, 0'); e(f's_cbranch_scc1 {name}_loop')
    p.loop(body, f'{name}_loop', back)
    stamp()
    for b in range(4):
        for x in prod(1, b): e(x)
    for b in range(4):
        for x in fin(b): e(x)
    p.wait_all()
    stamp()
    p.label(END)
    return p, V.nxt, A.nxt, NXV
```

```python
from asmlib import *
from layout import *
from k1 import fhex, LOG2E

SLOT = 36864
OWN = 73728
SPIN = 200000

def gen_k2(name, stamps=False, opt=()):
    p = Prog(); e = p.e
    V = Alloc('v', 1, 256); A = Alloc('a', 0, 256); SG = Alloc('s', 40, 100)
    SWS, SX, SO, SJ, SA = 4, 8, 12, 16, 20
    KA = 24
    sW, sT, sC, sQK, sM0w, sWd, sT0, sT1, sT2, sT3, sJs, sJd, sCo, sPart, sRec, sWo, sPq0, sPq1 = (SG.get(n) for n in 'w t c qk m0 wd t0 t1 t2 t3 js jd co part rec wo pq0 pq1'.split())
    sH = SG.get('h', 2, 1); sSt = SG.get('st', 2); sStO = SG.get('sto'); sAl, sTl, sSpin, sHi = SG.get('al'), SG.get('tl'), SG.get('spin'), SG.get('hi')
    ACC = V.get('acc', 72); BIG = V.get('big', 148)
    vL = V.get('l16', 3, 1); vRD = V.get('rd', 4, 1); vXO = V.get('xo'); vXD = V.get('xd', 12); vT = V.get('t', 8, 4)
    HB = A.get('hb', 128); AR = A.get('ar', 48); WX = A.get('wx', 80)
    nstamp = [0]
    def stamp():
        if not stamps: return
        k = nstamp[0]; nstamp[0] += 1
        p.wait_lg(0)
        e(f's_memrealtime {s(sSt,2)}'); p.wait_lg(0)
        e(f'v_mov_b32 {v(vT+7)}, {s(sSt)}'); e(f's_add_u32 {s(sT3)}, {s(sStO)}, {4*k}'); e(f'v_mov_b32 {v(vT+6)}, 0')
        e(f'buffer_store_dword {v(vT+7)}, {v(vT+6)}, {s(SWS,4)}, {s(sT3)} offen')
        e(f's_memtime {s(sSt,2)}'); p.wait_lg(0)
        e(f'v_mov_b32 {v(vT+7)}, {s(sSt)}'); e(f'buffer_store_dword {v(vT+7)}, {v(vT+6)}, {s(SWS,4)}, {s(sT3)} offen offset:128')
    def put(lst):
        for x in lst:
            if callable(x): x()
            elif isinstance(x, tuple): e(x[0], x[1])
            else: e(x)
    END = f'{name}_end'
    e('s_cmp_ge_u32 s2, 256'); e(f's_cbranch_scc1 {END}')
    e(f's_load_dwordx2 {s(KA,2)}, s[0:1], 0'); e(f's_load_dwordx8 {s(KA+4,8)}, s[0:1], 48')
    e(f'v_lshrrev_b32 {v(vT)}, 6, v0'); e(f'v_and_b32 {v(vT+1)}, 63, v0')
    e(f'v_readfirstlane_b32 {s(sW)}, {v(vT)}')
    e(f'v_lshlrev_b32 {v(vL)}, 4, {v(vT+1)}'); e(f'v_add_u32 {v(vL+1)}, 4096, {v(vL)}'); e(f'v_add_u32 {v(vL+2)}, 8192, {v(vL)}')
    e(f's_and_b32 {s(sQK)}, s2, 3'); e(f's_bfe_u32 {s(sT0)}, s2, 0x10002'); e(f's_lshr_b32 {s(sT1)}, s2, 5')
    e(f's_lshl_b32 {s(sT0)}, {s(sT0)}, 3'); e(f's_add_u32 {s(sT)}, {s(sT0)}, {s(sT1)}'); e(f's_bfe_u32 {s(sC)}, s2, 0x20003')
    e(f's_mul_i32 {s(sM0w)}, {s(sW)}, 9216')
    e(f's_mul_i32 {s(sT0)}, {s(sQK)}, 36'); e(f's_add_u32 {s(sT1)}, {s(sT0)}, {s(sW)}'); e(f's_mul_i32 {s(sT1)}, {s(sT1)}, 36')
    e(f's_mul_i32 {s(sT2)}, {s(sC)}, 9'); e(f's_add_u32 {s(sT1)}, {s(sT1)}, {s(sT2)}'); e(f's_lshl_b32 {s(sT1)}, {s(sT1)}, 10'); e(f's_add_u32 {s(sWd)}, {s(sT1)}, {WT_OFF}')
    e(f's_lshl_b32 {s(sT1)}, {s(sT)}, 3'); e(f's_lshl_b32 {s(sT2)}, {s(sW)}, 1'); e(f's_add_u32 {s(sT1)}, {s(sT1)}, {s(sT2)}')
    e(f's_mul_i32 {s(sT1)}, {s(sT1)}, 144'); e(f's_add_u32 {s(sT1)}, {s(sT1)}, {s(sT0)}'); e(f's_lshl_b32 {s(sH)}, {s(sT1)}, 10'); e(f's_add_u32 {s(sH+1)}, {s(sH)}, {144*1024}')
    p.wait_lg(0)
    def srd(r, ptr, nbytes):
        e(f's_mov_b32 {s(r)}, {s(ptr)}'); e(f's_mov_b32 {s(r+1)}, {s(ptr+1)}'); e(f's_mov_b32 {s(r+2)}, {nbytes}'); e(f's_mov_b32 {s(r+3)}, 0x20000')
    srd(SWS, KA + 10, WS_USED)
    hb = lambda c, b, ks: HB + 32 * (c % 4) + 16 * b + 4 * ks
    def loads(c):
        out = []
        for pc in range(9):
            if pc % 4 == 0: out.append(f's_add_u32 m0, {s(sM0w)}, {(c%4)*SLOT + 4096*(pc//4)}')
            out.append((f'buffer_load_dwordx4 {v(vL + pc//4)}, {s(SWS,4)}, {s(sWd)} offen offset:{1024*(pc%4)} lds', f'w{c}'))
        out.append(f's_add_u32 {s(sWd)}, {s(sWd)}, {4*36*1024}')
        for b in range(2):
            for ks in range(4): out.append(f'buffer_load_dwordx4 {a(hb(c,b,ks),4)}, {v(vL)}, {s(SWS,4)}, {s(sH+b)} offen offset:{1024*ks}')
            out.append(f's_add_u32 {s(sH+b)}, {s(sH+b)}, 4096')
        return out
    put(loads(0))
    srd(SX, KA, S * D * 2); srd(SO, KA + 6, S * D * 2); srd(SJ, KA + 10, 0); srd(SA, KA + 10, 0)
    if stamps:
        e(f's_lshl_b32 {s(sStO)}, s2, 2'); e(f's_add_u32 {s(sStO)}, {s(sStO)}, {s(sW)}'); e(f's_lshl_b32 {s(sStO)}, {s(sStO)}, 8'); e(f's_add_u32 {s(sStO)}, {s(sStO)}, {STAMP_OFF + 256*4*256}')
    stamp()
    for k in range(4): e(f'v_add_u32 {v(vRD+k)}, {k*SLOT}, {v(vL)}')
    e(f's_mul_i32 {s(sT0)}, s2, 10923'); e(f's_lshr_b32 {s(sT0)}, {s(sT0)}, 16')
    e(f's_mul_i32 {s(sT1)}, {s(sT0)}, 6'); e(f's_sub_u32 {s(sT1)}, s2, {s(sT1)}'); e(f's_lshr_b32 {s(sT1)}, {s(sT1)}, 1')
    e(f's_mul_i32 {s(sT2)}, {s(sT0)}, 7282'); e(f's_lshr_b32 {s(sT2)}, {s(sT2)}, 16')
    e(f's_mul_i32 {s(sT3)}, {s(sT2)}, 9'); e(f's_sub_u32 {s(sTl)}, {s(sT0)}, {s(sT3)}')
    e(f's_add_u32 {s(sAl)}, {s(sTl)}, {s(sT1)}'); e(f's_sub_u32 {s(sAl)}, {s(sAl)}, 1')
    e(f's_and_b32 {s(sT3)}, {s(sT0)}, 1'); e(f's_add_u32 {s(sT3)}, {s(sT3)}, {s(sT1)}'); e(f's_sub_u32 {s(sT3)}, {s(sT3)}, 1')
    e(f's_and_b32 {s(sCo)}, s2, 1')
    e(f's_lshl_b32 {s(sJd)}, {s(sCo)}, 10'); e(f's_lshl_b32 {s(sJs)}, {s(sT3)}, 3'); e(f's_add_u32 {s(sJd)}, {s(sJd)}, {s(sJs)}')
    e(f's_lshl_b32 {s(sJs)}, {s(sCo)}, 3'); e(f's_add_u32 {s(sJs)}, {s(sJs)}, 2048')
    e(f's_cmp_lt_u32 {s(sT3)}, 2'); e(f's_cselect_b32 {s(sJd)}, {s(sJd)}, {s(sJs)}')
    e(f's_mul_i32 {s(sT0)}, {s(sT0)}, 3072'); e(f's_add_u32 {s(sJd)}, {s(sJd)}, {s(sT0)}'); e(f's_lshl_b32 {s(sT0)}, {s(sW)}, 8'); e(f's_add_u32 {s(sJd)}, {s(sJd)}, {s(sT0)}')
    e(f's_add_u32 {s(sJd)}, {s(sJd)}, {REC_OFF}')
    e(f's_max_i32 {s(sT0)}, {s(sAl)}, {s(sTl)}'); e(f's_cmp_gt_i32 {s(sT0)}, 4'); e(f's_cselect_b32 {s(sT0)}, 1, 0')
    e(f's_lshl_b32 {s(sT1)}, {s(sT0)}, 2'); e(f's_sub_u32 {s(sT3)}, {s(sAl)}, {s(sT1)}'); e(f's_sub_u32 {s(sT1)}, {s(sTl)}, {s(sT1)}')
    e(f's_add_u32 {s(sT1)}, {s(sT1)}, {s(sT3)}'); e(f's_cmp_eq_u32 {s(sCo)}, 0'); e(f's_cselect_b32 {s(sT1)}, {s(sT1)}, 13'); e(f's_add_u32 {s(sT1)}, {s(sT1)}, {s(sT3)}')
    e(f's_lshl_b32 {s(sT2)}, {s(sT2)}, 1'); e(f's_add_u32 {s(sT2)}, {s(sT2)}, {s(sT0)}'); e(f's_mul_i32 {s(sT2)}, {s(sT2)}, 18'); e(f's_add_u32 {s(sT1)}, {s(sT1)}, {s(sT2)}')
    e(f's_lshl_b32 {s(sT1)}, {s(sT1)}, 10'); e(f's_lshl_b32 {s(sT0)}, {s(sW)}, 8'); e(f's_add_u32 {s(sT1)}, {s(sT1)}, {s(sT0)}'); e(f's_add_u32 {s(sJs)}, {s(sT1)}, {KVP_OFF}')
    e(f's_cmp_lt_u32 {s(sAl)}, 9'); e(f's_cselect_b32 {s(SJ+2)}, {WT_OFF}, 0')
    e(f's_cmp_lt_u32 s2, 216'); e(f's_cselect_b32 {s(SJ+2)}, {s(SJ+2)}, 0'); e(f's_cselect_b32 {s(SA+2)}, {STAMP_OFF}, 0')
    e(f's_and_b32 {s(sCo)}, s2, 7'); e(f's_lshl_b32 {s(sCo)}, {s(sCo)}, 7'); e(f's_add_u32 {s(sCo)}, {s(sCo)}, {CNT_OFF}')
    JL = BIG; vJo, vJd, vHe, vAt = BIG + 40, BIG + 41, BIG + 42, BIG + 43; vJt = BIG + 44
    e(f'v_and_b32 {v(vHe)}, 15, v0'); e(f'v_bfe_u32 {v(vJd)}, v0, 4, 2')
    e(f'v_mul_u32_u24 {v(vJo)}, {8*18*1024}, {v(vJd)}'); e(f'v_lshl_add_u32 {v(vJo)}, {v(vHe)}, 4, {v(vJo)}')
    e(f'v_lshlrev_b32 {v(vJd)}, 28, {v(vJd)}'); e(f'v_lshl_add_u32 {v(vJd)}, {v(vHe)}, 4, {v(vJd)}')
    e(f's_lshl_b32 {s(sT0)}, {s(sTl)}, 4'); e(f'v_add_u32 {v(vHe)}, {s(sT0)}, {v(vHe)}'); e(f'v_mul_u32_u24 {v(vHe)}, 3641, {v(vHe)}'); e(f'v_lshrrev_b32 {v(vHe)}, 16, {v(vHe)}')
    e(f'v_min_u32 {v(vAt)}, 1, v0'); e(f'v_lshlrev_b32 {v(vAt)}, 30, {v(vAt)}')
    jobl = []
    for k in range(8):
        jobl += [f'buffer_load_dwordx4 {v(JL+4*k,4)}, {v(vJo)}, {s(SJ,4)}, {s(sJs)} offen', f's_add_u32 {s(sJs)}, {s(sJs)}, {4*8*18*1024}']
    put(jobl); put(loads(1))
    jobv = []
    for k in range(1, 8):
        jobv += [f'v_add_f32 {v(JL+r)}, {v(JL+r)}, {v(JL+4*k+r)}' for r in range(4)]
    for sw in ('v_permlane32_swap_b32', 'v_permlane16_swap_b32'):
        jobv += [f'v_mov_b32 {v(vJt+r)}, {v(JL+r)}' for r in range(4)]
        jobv += [f'{sw} {v(vJt+r)}, {v(JL+r)}' for r in range(4)]
        jobv += [f'v_add_f32 {v(JL+r)}, {v(JL+r)}, {v(vJt+r)}' for r in range(4)]
    def maskops(r):
        def f():
            e(f's_lshl_b32 {s(sT0)}, {s(sAl)}, 4'); e(f's_lshl_b32 {s(sT1)}, {s(sW)}, 2'); e(f's_add_u32 {s(sT0)}, {s(sT0)}, {s(sT1)}'); e(f's_add_u32 {s(sT0)}, {s(sT0)}, {r}')
            e(f's_mul_i32 {s(sT0)}, {s(sT0)}, 3641'); e(f's_lshr_b32 {s(sHi)}, {s(sT0)}, 16')
        return f
    e(f'v_and_b32 {v(vT)}, 31, v0'); e(f'v_mul_u32_u24 {v(vT)}, 1152, {v(vT)}'); e(f'v_bfe_u32 {v(vT+1)}, v0, 5, 1'); e(f'v_lshl_add_u32 {v(vXO)}, {v(vT+1)}, 4, {v(vT)}')
    e(f's_lshl_b32 {s(sT0)}, {s(sT)}, 2'); e(f's_add_u32 {s(sT0)}, {s(sT0)}, {s(sQK)}'); e(f's_mul_i32 {s(sT0)}, {s(sT0)}, {32*1152}')
    e(f's_mul_i32 {s(sT1)}, {s(sC)}, 288'); e(f's_add_u32 {s(sT0)}, {s(sT0)}, {s(sT1)}'); e(f's_lshl_b32 {s(sT1)}, {s(sW)}, 5'); e(f's_add_u32 {s(sT0)}, {s(sT0)}, {s(sT1)}')
    e(f'v_add_u32 {v(vXO)}, {s(sT0)}, {v(vXO)}')
    e(f's_mul_i32 {s(sRec)}, {s(sW)}, {9*3072}'); e(f's_add_u32 {s(sRec)}, {s(sRec)}, {REC_OFF}')
    e(f's_mul_i32 {s(sWo)}, {s(sW)}, {5*36}'); e(f's_mul_i32 {s(sT1)}, {s(sC)}, 9'); e(f's_add_u32 {s(sWo)}, {s(sWo)}, {s(sT1)}'); e(f's_lshl_b32 {s(sWo)}, {s(sWo)}, 10'); e(f's_add_u32 {s(sWo)}, {s(sWo)}, {WOT_OFF}')
    e(f's_lshl_b32 {s(sT0)}, {s(sT)}, 3'); e(f's_lshl_b32 {s(sT1)}, {s(sQK)}, 1'); e(f's_add_u32 {s(sT0)}, {s(sT0)}, {s(sT1)}'); e(f's_mul_i32 {s(sT0)}, {s(sT0)}, 18')
    e(f's_mul_i32 {s(sT1)}, {s(sW)}, 9'); e(f's_lshr_b32 {s(sT1)}, {s(sT1)}, 1'); e(f's_add_u32 {s(sT0)}, {s(sT0)}, {s(sT1)}'); e(f's_lshl_b32 {s(sT0)}, {s(sT0)}, 10')
    e(f's_add_u32 {s(sPq0)}, {s(sT0)}, {PQ_OFF}'); e(f's_add_u32 {s(sPq1)}, {s(sPq0)}, {18*1024}')
    REC = lambda tl, pc: BIG + 12 * tl + 4 * pc
    PQ = lambda b, g: BIG + 108 + 20 * b + 4 * g
    def wreg(f): return WX + 4 * f if f < 20 else 4 * (f - 20)
    def wload(f):
        aa, pc = divmod(f, 5)
        return [f's_add_u32 {s(sT2)}, {s(sWo)}, {pc*36*1024 + aa*1024}', f'buffer_load_dwordx4 {a(wreg(f),4)}, {v(vL)}, {s(SWS,4)}, {s(sT2)} offen']
    acc = lambda aa, b: ACC + 8 * aa + 4 * b
    ar = lambda n, ks: AR + 16 * (n % 3) + 4 * ks
    def ard(n):
        c, aa = divmod(n, 9)
        return [f'ds_read_b128 {a(ar(n,ks),4)}, {v(vRD + c%4)} offset:{ks*9216 + aa*1024}' for ks in range(4)]
    p.wait_tag('w0'); e('s_barrier')
    put(ard(0) + ard(1))
    stamp()
    mains = []; sl = Slots(648)
    for n in range(81):
        c, aa = divmod(n, 9)
        for b in range(2):
            for ks in range(4):
                cc = '0' if (c == 0 and ks == 0) else v(acc(aa, b), 4)
                mains.append(f'v_mfma_f32_16x16x32_bf16 {v(acc(aa,b),4)}, {a(ar(n,ks),4)}, {a(hb(c,b,ks),4)}, {cc}')
        sl.fix(8 * n - 1, lambda n=n, c=c, aa=aa: p.need(a(ar(n, 0), 16), *([a(HB + 32 * (c % 4), 32)] if aa == 0 else [])))
        late = 0
        if aa == 7 and c < 8:
            sl.fix(8 * n - 1, lambda c=c: p.wait_tag(f'w{c+1}')); sl.fix(8 * n, 's_barrier'); late = 1
        if aa == 1 and 1 <= c <= 5: sl.fix(8 * n - 3, 's_barrier')
        if n + 2 < 81:
            for k, x in enumerate(ard(n + 2)): sl.fix(8 * n + 2 * k + late, x)
    k = sl.stream(0, loads(2)); k = sl.stream(k, loads(3))
    for c in range(1, 6): k = sl.stream(max(k, 72 * c + 6), loads(c + 3))
    k = sl.stream(2, jobv)
    for r in range(4):
        sl.fix(k + 1, maskops(r), cost=2); k = sl.stream(k + 2, [f'v_cmp_eq_u32 vcc, {s(sHi)}, {v(vHe)}'])
        k = sl.stream(k + 2, [f'v_cndmask_b32 {v(JL+r)}, 0, {v(JL+r)}, vcc'])
    k = sl.stream(k, [f'v_cvt_pk_bf16_f32 {v(JL)}, {v(JL)}, {v(JL+1)}', f'v_cvt_pk_bf16_f32 {v(JL+1)}, {v(JL+2)}, {v(JL+3)}',
                      (f'buffer_store_dwordx2 {v(JL,2)}, {v(vJd)}, {s(SA,4)}, {s(sJd)} offen sc1', 'rec'), f'v_mov_b32 {v(vJt)}, 1'])
    assert k < 72 * 2, k
    sl.fix(8 * (18 + 7) - 2, lambda: p.wait_tag('rec'))
    sl.stream(8 * (18 + 7) + 2, [f'buffer_atomic_add {v(vJt)}, {v(vAt)}, {s(SA,4)}, {s(sCo)} offen sc1'])
    xl = [f'buffer_load_dwordx4 {v(vXD,4)}, {v(vXO)}, {s(SX,4)}, 0 offen', f'buffer_load_dwordx4 {v(vXD+4,4)}, {v(vXO)}, {s(SX,4)}, 0 offen offset:128',
          f'buffer_load_dwordx4 {v(vXD+8,4)}, {v(vXO)}, {s(SX,4)}, 0 offen offset:256']
    pql = []
    for b in range(2):
        for g in range(5): pql.append(f'buffer_load_dwordx4 {v(PQ(b,g),4)}, {v(vL + g//4)}, {s(SWS,4)}, {s(sPq0 if b == 0 else sPq1)} offen offset:{1024*(g%4)}')
    poll0 = [f'v_and_b32 {v(vT)}, 7, v0', f'v_lshlrev_b32 {v(vT)}, 7, {v(vT)}', f's_mov_b32 {s(sT1)}, {CNT_OFF}',
             f'buffer_load_dword {v(vT+1)}, {v(vT)}, {s(SWS,4)}, {s(sT1)} offen sc1']
    k = sl.stream(72 * 6, xl + pql + poll0, gap=1)
    def check_cnt():
        e(f'v_cmp_ne_u32 vcc, 27, {v(vT+1)}'); e(f's_mov_b32 {s(sSpin)}, {SPIN}'); e('s_nop 0'); e('s_cmp_eq_u64 vcc, 0'); e(f's_cbranch_scc0 {name}_cspin')
        p.label(f'{name}_cdone')
    sl.fix(72 * 7 - 4, check_cnt, cost=2)
    recl = []
    for f in range(27):
        if f % 12 == 0 and f: recl.append(f's_add_u32 {s(sRec)}, {s(sRec)}, 12288')
        recl.append(f'buffer_load_dwordx4 {v(BIG+4*f,4)}, {v(vL + (f%12)//4)}, {s(SWS,4)}, {s(sRec)} offen offset:{1024*(f%4)} sc1')
    k = sl.stream(72 * 7, recl)
    NW0 = 14
    k = sl.stream(k, [x for f in range(NW0) for x in wload(f)])
    interleave(p, mains, sl.f)
    stamp()
    e(f's_cmp_eq_u32 {s(sW)}, {s(sQK)}'); e(f's_cbranch_scc1 {name}_own')
    st0 = p.snapshot()
    e(f's_and_b32 {s(sT0)}, s2, 0xfc'); e(f's_add_u32 {s(sT0)}, {s(sT0)}, {s(sW)}'); e(f's_lshl_b32 {s(sT0)}, {s(sT0)}, 2'); e(f's_add_u32 {s(sT0)}, {s(sT0)}, {s(sQK)}')
    e(f's_mul_i32 {s(sT0)}, {s(sT0)}, 9216'); e(f's_add_u32 {s(sT0)}, {s(sT0)}, {PART_OFF}')
    for aa in range(9):
        o = acc(aa, 0)
        for d in range(4): e(f'v_cvt_pk_bf16_f32 {v(o+d)}, {v(o+2*d)}, {v(o+2*d+1)}')
        e(f'buffer_store_dwordx4 {v(o,4)}, {v(vL + aa//4)}, {s(SWS,4)}, {s(sT0)} offen offset:{1024*(aa%4)} sc1', 'pub')
    stP = p.snapshot()
    e(f's_branch {name}_att')
    p.label(f'{name}_own'); p.restore(st0)
    for u in range(18): e(f'ds_write_b128 {v(vRD+2)}, {v(ACC+4*u,4)} offset:{1024*u}')
    p.wait_lg(0)
    p.label(f'{name}_att'); p.restore(st0)
    p.vm_limit = 63 - 9
    for r in range(4): e(f'v_mov_b32 {v(vT+4+r)}, {fhex(1e-6)}')
    ND = lambda tl, b, z: ACC + 16 * (tl % 3) + 8 * b + 4 * z
    OF = lambda b, pc: REC(2 * pc, 0) + 4 * b
    e(f's_and_b32 {s(sT0)}, {s(sW)}, 1'); e(f's_cmp_eq_u32 {s(sT0)}, 1'); e(f's_cbranch_scc1 {name}_oodd')
    st1 = p.snapshot()
    for par in range(2):
        if par:
            p.label(f'{name}_oodd'); p.restore(st1)
        late = [wload(f) for f in range(NW0, 45)]
        for step in range(11):
            m32, m16, va = [], [], []
            tl = step
            if tl < 9:
                gl = (tl + par) >> 1
                for b in range(2):
                    m32.append(f'v_mfma_f32_16x16x32_bf16 {v(ND(tl,b,0),4)}, {v(REC(tl,0),4)}, {v(PQ(b,gl),4)}, 0')
                    m32.append(f'v_mfma_f32_16x16x32_bf16 {v(ND(tl,b,1),4)}, {v(REC(tl,1),4)}, {v(PQ(b,gl),4)}, {v(vT+4,4)}')
            tl = step - 1
            if 0 <= tl < 9:
                gl = (tl + par) >> 1; odd = (tl + par) & 1
                gs = gl + 1 if odd else gl - 1
                if not 0 <= gs <= 4: gs = gl
                for b in range(2):
                    half = v(PQ(b, gs) + (0 if odd else 2), 2)
                    m16.append(f'v_mfma_f32_16x16x16_bf16 {v(ND(tl,b,0),4)}, {v(REC(tl,2),2)}, {half}, {v(ND(tl,b,0),4)}')
                    m16.append(f'v_mfma_f32_16x16x16_bf16 {v(ND(tl,b,1),4)}, {v(REC(tl,2)+2,2)}, {half}, {v(ND(tl,b,1),4)}')
            tl = step - 2
            if 0 <= tl < 9:
                for b in range(2): va += [f'v_rcp_f32 {v(ND(tl,b,1)+r)}, {v(ND(tl,b,1)+r)}' for r in range(4)]
                for b in range(2):
                    va += [f'v_mul_f32 {v(ND(tl,b,0)+r)}, {v(ND(tl,b,0)+r)}, {v(ND(tl,b,1)+r)}' for r in range(4)]
                    va += [f'v_cvt_pk_bf16_f32 {v(OF(b, tl>>1) + 2*(tl&1) + d)}, {v(ND(tl,b,0)+2*d)}, {v(ND(tl,b,0)+2*d+1)}' for d in range(2)]
            mm = m32 + m16
            per = -(-len(va) // max(len(mm) - 1, 1))
            for i_, x in enumerate(mm):
                e(x)
                if late and len(p.vmq) < p.vm_limit and i_ % 2 == 0: put(late.pop(0))
                if i_ == 0 and len(mm) > 4: continue
                for y in va[:per]: e(y)
                va = va[per:]
            for y in va: e(y)
        while late: put(late.pop(0))
        if par == 0: stE = p.snapshot()
        else: assert p.snapshot() == stE
        if par == 0: e(f's_branch {name}_odone')
    p.label(f'{name}_odone')
    e('s_nop 1')
    stamp()
    p.need(a(wreg(NW0), 4)); e('s_barrier')
    p.vm_limit = 63
    e(f'v_mov_b32 {v(vT)}, 1'); e(f's_lshl_b32 {s(sT0)}, s2, 7'); e(f's_add_u32 {s(sT0)}, {s(sT0)}, {FLAG_OFF}'); e(f's_mov_b32 {s(SA+2)}, {STAMP_OFF}')
    e(f'v_min_u32 {v(vT+1)}, 1, v0'); e(f'v_lshlrev_b32 {v(vT+1)}, 30, {v(vT+1)}')
    e(f'buffer_store_dword {v(vT)}, {v(vT+1)}, {s(SA,4)}, {s(sT0)} offen sc1')
    e(f's_mul_i32 {s(sT0)}, {s(sW)}, 18432'); e(f'v_add_u32 {v(vT+2)}, {s(sT0)}, {v(vL)}')
    for aa in range(10):
        mm = []
        if aa < 9:
            for b in range(2):
                for pc in range(4):
                    mm.append(f'v_mfma_f32_16x16x32_bf16 {v(acc(aa,b),4)}, {a(wreg(5*aa+pc),4)}, {v(OF(b,pc),4)}, {"0" if pc == 0 else v(acc(aa,b),4)}')
        if aa >= 1:
            for b in range(2):
                mm.insert(min(len(mm), 3 + 4 * b), f'v_mfma_f32_16x16x16_bf16 {v(acc(aa-1,b),4)}, {a(wreg(5*(aa-1)+4),2)}, {v(OF(b,4),2)}, {v(acc(aa-1,b),4)}')
        for k_, x in enumerate(mm):
            e(x)
            if aa >= 2 and k_ in (1, 5) : e(f'ds_write_b128 {v(vT+2)}, {v(acc(aa-2, k_//4),4)} offset:{1024*(2*(aa-2) + k_//4)}')
        if aa == 9:
            e(f'ds_write_b128 {v(vT+2)}, {v(acc(7,1),4)} offset:{1024*15}')
            for b in range(2): e(f'ds_write_b128 {v(vT+2)}, {v(acc(8,b),4)} offset:{1024*(16+b)}')
    stamp()
    e(f'v_and_b32 {v(vT)}, 3, v0'); e(f'v_lshlrev_b32 {v(vT)}, 7, {v(vT)}'); e(f's_and_b32 {s(sT1)}, s2, 0xfc'); e(f's_lshl_b32 {s(sT1)}, {s(sT1)}, 7'); e(f's_add_u32 {s(sT1)}, {s(sT1)}, {FLAG_OFF}')
    e(f's_mov_b32 {s(sSpin)}, {SPIN}')
    p.label(f'{name}_fspin')
    e(f'buffer_load_dword {v(vT+1)}, {v(vT)}, {s(SWS,4)}, {s(sT1)} offen sc1'); p.wait_all(lg=False)
    e(f'v_cmp_ne_u32 vcc, 1, {v(vT+1)}'); e(f's_sub_u32 {s(sSpin)}, {s(sSpin)}, 1'); e('s_cmp_eq_u64 vcc, 0'); e(f's_cbranch_scc1 {name}_fdone')
    e(f's_cmp_lg_u32 {s(sSpin)}, 0'); e(f's_cbranch_scc1 {name}_fspin')
    p.label(f'{name}_fdone')
    stamp()
    PE = lambda pc, q: BIG + 12 * pc + 4 * q
    e(f's_lshl_b32 {s(sT0)}, {s(sW)}, 10'); e(f's_mul_i32 {s(sT2)}, s2, {4*9216}'); e(f's_add_u32 {s(sT2)}, {s(sT2)}, {s(sT0)}'); e(f's_add_u32 {s(sT2)}, {s(sT2)}, {PART_OFF}')
    for q in range(3):
        e(f's_add_u32 {s(sT1)}, {s(sQK)}, {q+1}'); e(f's_and_b32 {s(sT1)}, {s(sT1)}, 3'); e(f's_mul_i32 {s(sT1)}, {s(sT1)}, 9216'); e(f's_add_u32 {s(sPq0 if q == 0 else sPq1 if q == 1 else sRec)}, {s(sT1)}, {s(sT2)}')
    for pc in range(3):
        for q in range(3):
            e(f'buffer_load_dwordx4 {v(PE(pc,q),4)}, {v(vL+pc)}, {s(SWS,4)}, {s(sPq0 if q == 0 else sPq1 if q == 1 else sRec)} offen sc1')
    e(f's_lshl_b32 {s(sT0)}, {s(sW)}, 11'); e(f'v_add_u32 {v(vT+2)}, {s(sT0)}, {v(vL)}'); e(f'v_add_u32 {v(vT+3)}, {OWN}, {v(vT+2)}'); e(f'v_add_u32 {v(vT+4)}, 36864, {v(vT+2)}')
    p.wait_lg(0); e('s_barrier')
    e(f's_mov_b32 {s(sHi)}, 0xffff0000'); e(f's_cmp_eq_u32 {s(sW)}, 0'); e(f's_cselect_b32 {s(sSpin)}, {S*D*2}, 0')
    SS = lambda pc: BIG + 40 + 8 * pc
    DD = lambda pc: BIG + 64 + 8 * pc
    for pc in range(3):
        t = ACC
        for wv in range(4):
            for b in range(2):
                off = (wv & 1) * 18432 + 8192 * pc + 1024 * b
                dst = SS(pc) + 4 * b if wv == 0 else t + 8 * (wv - 1) + 4 * b + 24 * pc
                e(f'ds_read_b128 {v(dst,4)}, {v(vT+2 if wv < 2 else vT+4)} offset:{off}')
        for b in range(2): e(f'ds_read_b128 {v(DD(pc)+4*b,4)}, {v(vT+3)} offset:{8192*pc + 1024*b}')
    for pc in range(3):
        for wv in range(3):
            for k in range(0, 8, 2): e(f'v_pk_add_f32 {v(SS(pc)+k,2)}, {v(SS(pc)+k,2)}, {v(ACC + 24*pc + 8*wv + k,2)}')
    for pc in range(3):
        U = ACC
        for q in range(3):
            for d in range(4):
                e(f'v_lshlrev_b32 {v(U+8*q+2*d)}, 16, {v(PE(pc,q)+d)}'); e(f'v_and_b32 {v(U+8*q+2*d+1)}, {s(sHi)}, {v(PE(pc,q)+d)}')
            for k in range(0, 8, 2): e(f'v_pk_add_f32 {v(DD(pc)+k,2)}, {v(DD(pc)+k,2)}, {v(U+8*q+k,2)}')
        G = ACC + 24
        for k in range(8): e(f'v_mul_f32 {v(G+k)}, {fhex(-LOG2E)}, {v(DD(pc)+k)}')
        for k in range(8): e(f'v_exp_f32 {v(G+k)}, {v(G+k)}')
        for k in range(8): e(f'v_add_f32 {v(G+k)}, 1.0, {v(G+k)}')
        for k in range(8): e(f'v_rcp_f32 {v(G+k)}, {v(G+k)}')
        for k in range(0, 8, 2): e(f'v_pk_mul_f32 {v(DD(pc)+k,2)}, {v(DD(pc)+k,2)}, {v(SS(pc)+k,2)}')
        for k in range(0, 8, 2): e(f'v_pk_mul_f32 {v(G+k,2)}, {v(G+k,2)}, {v(DD(pc)+k,2)}')
        X = ACC + 32
        for d in range(4):
            e(f'v_lshlrev_b32 {v(X+2*d)}, 16, {v(vXD+4*pc+d)}'); e(f'v_and_b32 {v(X+2*d+1)}, {s(sHi)}, {v(vXD+4*pc+d)}')
        for r in range(4): e(f'v_permlane16_swap_b32 {v(G+r)}, {v(G+4+r)}')
        for k in range(0, 8, 2): e(f'v_pk_add_f32 {v(G+k,2)}, {v(G+k,2)}, {v(X+k,2)}')
        O = ACC + 40 + 4 * pc
        for d in range(4): e(f'v_cvt_pk_bf16_f32 {v(O+d)}, {v(G+2*d)}, {v(G+2*d+1)}')
        if pc == 2: e(f's_mov_b32 {s(SO+2)}, {s(sSpin)}')
        e(f'buffer_store_dwordx4 {v(O,4)}, {v(vXO)}, {s(SO,4)}, 0 offen offset:{128*pc}')
    p.wait_all()
    stamp()
    e(f's_branch {END}')
    p.label(f'{name}_cspin')
    p.raw(f'buffer_load_dword {v(vT+1)}, {v(vT)}, {s(SWS,4)}, {s(sT1)} offen sc1'); p.raw('s_waitcnt vmcnt(0)')
    p.raw(f'v_cmp_ne_u32 vcc, 27, {v(vT+1)}'); p.raw(f's_sub_u32 {s(sSpin)}, {s(sSpin)}, 1'); p.raw('s_nop 0'); p.raw('s_cmp_eq_u64 vcc, 0'); p.raw(f's_cbranch_scc1 {name}_cdone')
    p.raw(f's_cmp_lg_u32 {s(sSpin)}, 0'); p.raw(f's_cbranch_scc1 {name}_cspin'); p.raw(f's_branch {name}_cdone')
    p.label(END)
    return p, V.nxt, A.nxt
```

```python
S, D, F = 2048, 576, 4608
H_OFF = 0
PQ_OFF = H_OFF + 128 * 144 * 1024
KVP_OFF = PQ_OFF + 128 * 18 * 1024
WT_OFF = KVP_OFF + 32 * 8 * 18 * 1024
NJOB_WD = 144 * 9
NJOB = NJOB_WD + 18 * 9
WOT_OFF = WT_OFF + NJOB_WD * 4096
REC_OFF = WT_OFF + NJOB * 4096
PART_OFF = REC_OFF + 36 * 3072
FLAG_OFF = PART_OFF + 256 * 4 * 9216
CNT_OFF = FLAG_OFF + 256 * 128
STAMP_OFF = CNT_OFF + 8 * 128
WS_USED = STAMP_OFF + 2 * 256 * 4 * 256
KV_PAIRS = [(a, T) for a in range(5) for T in (a - 1, a, a + 1) if 0 <= T < 5]
assert len(KV_PAIRS) == 13
```

```python
import sys
from asmlib import *
from layout import *
import k1
NAME = 'recurrent_scan__linear_attn_block__glu_gated_bilinear__prompt'
def wrap(name, body, vgpr, accum, sgpr=102):
    return f""".text
.globl {name}
.p2align 8
.type {name},@function
{name}:
{body}
  s_endpgm
.section .rodata,"a"
.p2align 6
.amdhsa_kernel {name}
  .amdhsa_next_free_vgpr {vgpr}
  .amdhsa_next_free_sgpr {sgpr}
  .amdhsa_accum_offset {accum}
  .amdhsa_group_segment_fixed_size 0
  .amdhsa_kernarg_size 80
  .amdhsa_user_sgpr_count 2
  .amdhsa_user_sgpr_kernarg_segment_ptr 1
  .amdhsa_system_sgpr_workgroup_id_x 1
.end_amdhsa_kernel
"""
def build(stamps=False, with_k2=True, opt=()):
    p1, nv, na, nxv = k1.gen_k1('p1_kernel', stamps, opt)
    print('k1', p1.count(), 'vgpr', nv, 'agpr', na, 'x frags in vgpr', nxv, 'nops', sum(1 for i in p1.ins if i.mn == 's_nop'), file=sys.stderr)
    hdr = '; @launch kernel=p1_kernel grid=(256,1,1) block=(256,1,1) lds=163840\n'
    body = wrap('p1_kernel', p1.text(), 512, 256)
    if with_k2:
        import k2
        p2, nv, na = k2.gen_k2('p2_kernel', stamps, opt)
        print('k2', p2.count(), 'vgpr', nv, 'agpr', na, 'nops', sum(1 for i in p2.ins if i.mn == 's_nop'), file=sys.stderr)
        hdr += '; @launch kernel=p2_kernel grid=(256,1,1) block=(256,1,1) lds=163840\n'
        body += wrap('p2_kernel', p2.text(), 512, 256)
    body += '.text\ncode_end:\n'
    ref = open('cdna_kernels/' + NAME + '.s.ref').read().split('\n')
    top = ''.join(l + '\n' for l in ref[:11])
    return top + hdr + '.amdgcn_target "amdgcn-amd-amdhsa--gfx950"\n' + body
if __name__ == '__main__':
    out = sys.argv[1]; st = 'stamps' in sys.argv; k2 = 'nok2' not in sys.argv
    open(out, 'w').write(build(st, k2, sys.argv[2:]))
```

```python
import re

REG_RE = re.compile(r'^(-?)(?:abs\()?([vas])(?:\[(\d+):(\d+)\]|(\d+))\)?$')

def regs_of(tok):
    tok = tok.strip()
    if tok in ('vcc',): return [('s', 'vcc')]
    if tok in ('exec',): return [('s', 'exec')]
    if tok == 'm0': return [('s', 'm0')]
    m = REG_RE.match(tok)
    if not m: return []
    k = m.group(2)
    if m.group(3) is not None:
        return [(k, i) for i in range(int(m.group(3)), int(m.group(4)) + 1)]
    return [(k, int(m.group(5)))]

def split_ops(s):
    out, depth, cur = [], 0, ''
    for ch in s:
        if ch in '[(': depth += 1
        if ch in '])': depth -= 1
        if ch == ',' and depth == 0:
            out.append(cur.strip()); cur = ''
        else: cur += ch
    if cur.strip(): out.append(cur.strip())
    return out

TRANS = ('v_exp_f32', 'v_log_f32', 'v_rcp_f32', 'v_rsq_f32', 'v_sqrt_f32')

class I:
    __slots__ = ('text', 'mn', 'rd', 'wr', 'kind', 'passes', 'A', 'B', 'C', 'D', 'tag', 'lds')
    def __init__(self, text, tag=None):
        self.text = text; self.tag = tag
        t = text.split(';')[0].strip()
        mn, _, rest = t.partition(' ')
        self.mn = mn
        ops = split_ops(rest)
        mods = ''
        if ops:
            parts = ops[-1].split()
            ops[-1] = parts[0]; mods = ' '.join(parts[1:])
        self.rd, self.wr = [], []
        self.passes = 0; self.A = self.B = self.C = self.D = []
        self.lds = False
        R = lambda i: regs_of(ops[i]) if i < len(ops) else []
        if mn.startswith('v_mfma'):
            self.kind = 'mfma'
            self.D, self.A, self.B, self.C = R(0), R(1), R(2), R(3)
            self.wr = self.D; self.rd = self.A + self.B + self.C
            if '32x32x16' in mn or mn.endswith('16x16x4_f32'): self.passes = 8
            else: self.passes = 4
            if mn.endswith('x4_f32'): self.kind = 'sgemm'
        elif mn.startswith('ds_read') or mn.startswith('ds_bpermute'):
            self.kind = 'ds'; self.wr = R(0); self.rd = sum((R(i) for i in range(1, len(ops))), [])
        elif mn.startswith('ds_'):
            self.kind = 'ds'; self.rd = sum((R(i) for i in range(len(ops))), [])
        elif mn.startswith('buffer_load'):
            self.kind = 'vmem'
            if 'lds' in mods.split():
                self.lds = True
                self.rd = R(0) + R(1) + R(2) + [('s', 'm0')]
            else:
                self.wr = R(0); self.rd = R(1) + R(2) + R(3)
        elif mn.startswith('buffer_store') or mn.startswith('buffer_atomic'):
            self.kind = 'vmem'; self.rd = R(0) + R(1) + R(2) + R(3); self.D = R(0)
            if mn.startswith('buffer_atomic') and 'sc0' in mods.split(): self.wr = R(0)
        elif mn.startswith('buffer_'):
            self.kind = 'vmem'
        elif mn.startswith('global_load'):
            self.kind = 'vmem'; self.wr = R(0); self.rd = R(1) + R(2)
        elif mn.startswith('s_load') or mn in ('s_memtime', 's_memrealtime'):
            self.kind = 'smem'; self.wr = R(0); self.rd = R(1)
        elif mn in ('s_waitcnt', 's_barrier', 's_nop', 's_sleep', 's_setprio', 's_endpgm') or mn.startswith('s_cbranch') or mn == 's_branch':
            self.kind = 'ctl'
        elif mn.startswith('s_cmp'):
            self.kind = 'salu'; self.rd = R(0) + R(1)
        elif mn.startswith('s_'):
            self.kind = 'salu'; self.wr = R(0); self.rd = sum((R(i) for i in range(1, len(ops))), [])
            if 'saveexec' in mn: self.wr = self.wr + [('s', 'exec')]
        elif mn.startswith('v_'):
            self.kind = 'valu'
            self.wr = R(0); self.rd = sum((R(i) for i in range(1, len(ops))), [])
            if mn.startswith('v_permlane') and 'swap' in mn:
                self.wr = R(0) + R(1); self.rd = R(0) + R(1)
            if mn.startswith(('v_fmac', 'v_dot2c')): self.rd = self.rd + R(0)
            if mn.startswith('v_cndmask') and len(ops) == 3: self.rd = self.rd + [('s', 'vcc')]
        elif mn.endswith(':') or mn.startswith('.') or mn == '':
            self.kind = 'meta'
        else:
            raise ValueError('unknown instr: ' + text)

    def states(self):
        if self.kind == 'meta': return 0
        if self.mn == 's_nop': return int(self.text.split()[1]) + 1
        return 1

def need_states(p, c):
    n = 0
    pw, cr, cw = set(p.wr), set(c.rd), set(c.wr)
    vw = {r for r in pw if r[0] in 'va'}
    sw = {r for r in pw if r[0] == 's'}
    if p.kind == 'valu':
        if c.kind in ('mfma', 'sgemm') and vw & cr: n = max(n, 2)
        if c.mn in ('v_readfirstlane_b32', 'v_readlane_b32') and vw & cr: n = max(n, 1)
        if c.mn.startswith('v_permlane') and vw & cr: n = max(n, 2)
        if 'dpp' in c.text and c.kind == 'valu' and vw & cr: n = max(n, 2)
        if p.mn.split('_e')[0] in TRANS and c.kind == 'valu' and vw & cr: n = max(n, 1)
        if sw:
            if c.kind == 'vmem' and sw & cr: n = max(n, 5)
            if c.kind == 'valu' and sw & cr: n = max(n, 2)
            if c.kind in ('salu',) and sw & cr: n = max(n, 1)
    if p.kind == 'salu' and ('s', 'm0') in pw and c.kind == 'vmem' and c.lds: n = max(n, 1)
    if p.kind in ('mfma', 'sgemm'):
        D = set(p.D); xdl = p.kind == 'mfma'
        t_ab = {4: 8, 8: 12}[p.passes] if xdl else {4: 6, 8: 10}[p.passes]
        if c.kind in ('mfma', 'sgemm'):
            if D & (set(c.A) | set(c.B)): n = max(n, t_ab)
            if D & set(c.C):
                same = (c.C == p.D and c.kind == p.kind and c.passes == p.passes and c.mn == p.mn)
                if not same: n = max(n, {4: 6, 8: 10}[p.passes])
            elif D & set(c.D): n = max(n, t_ab)
        elif c.kind in ('valu', 'vmem', 'ds'):
            if D & (cr | cw): n = max(n, t_ab)
        if xdl and c.kind == 'valu' and set(p.C) & cw: n = max(n, {4: 3, 8: 7}[p.passes])
    if p.kind == 'vmem' and p.D and ('x4' in p.mn or 'x3' in p.mn) and set(p.D) & cw and c.kind != 'vmem':
        n = max(n, 2)
    return n

class Prog:
    def __init__(self):
        self.ins = []
        self.lgq = []
        self.vmq = []
        self.smem_pending = False
        self.nops = 0
        self.forced = None
        self.site = 0
        self.sites = {}
        self.vm_limit = 63

    def raw(self, text):
        self.ins.append(I(text))

    def label(self, name):
        self.ins.append(I(name + ':'))

    def _emit_wait(self, vm=None, lg=None):
        key = self.site; self.site += 1
        self.sites[key] = (vm, lg)
        if self.forced is not None:
            vm, lg = self.forced[key]
        parts = []
        if vm is not None:
            assert vm <= 63; parts.append(f'vmcnt({vm})'); self.vmq = self.vmq[len(self.vmq) - vm:] if vm < len(self.vmq) else self.vmq
            if vm == 0: self.vmq = []
        if lg is not None:
            lg = min(lg, 15); parts.append(f'lgkmcnt({lg})')
            if lg == 0: self.lgq = []; self.smem_pending = False
            elif lg < len(self.lgq): self.lgq = self.lgq[len(self.lgq) - lg:]
        if parts: self.ins.append(I('s_waitcnt ' + ' '.join(parts)))

    def _needed(self, regs):
        regs = set(regs); vm = lg = None
        for k, e in enumerate(self.lgq):
            if e & regs: lg = len(self.lgq) - 1 - k
        for k, e in enumerate(self.vmq):
            if e[0] & regs: vm = len(self.vmq) - 1 - k
        return vm, lg

    def wait_tag(self, tag, extra_lg=None):
        vm = None
        for k, e in enumerate(self.vmq):
            if e[1] == tag: vm = len(self.vmq) - 1 - k
        self._emit_wait(vm, extra_lg)

    def need(self, *toks):
        regs = sum((regs_of(t) for t in toks), [])
        vm, lg = self._needed(regs)
        self._emit_wait(vm, lg)

    def wait_all(self, vm=True, lg=True):
        self._emit_wait(0 if vm else None, 0 if lg else None)

    def wait_lg(self, n=0):
        self._emit_wait(None, n)

    def e(self, text, tag=None, junk=False):
        i = I(text, tag)
        if junk: i.wr = []
        if i.kind not in ('meta', 'ctl'):
            vm, lg = self._needed(i.rd + i.wr)
            self._emit_wait(vm, lg)
        if i.mn.startswith(('s_cselect', 's_cbranch_scc', 's_addc', 's_subb')):
            for q in reversed(self.ins):
                if q.kind == 'salu' and not q.mn.startswith(('s_mov', 's_cselect', 's_mul', 's_getpc')):
                    want = ('s_cmp',) if not i.mn.startswith(('s_addc', 's_subb')) else ('s_add_u32', 's_sub_u32')
                    assert q.mn.startswith(want), f'SCC feeding {text!r} comes from {q.text!r}'
                    break
        need = 0; dist = 0
        for p in reversed(self.ins):
            if dist >= 20: break
            if p.kind != 'meta':
                n = need_states(p, i) if i.kind not in ('meta',) else 0
                need = max(need, n - dist)
            dist += p.states()
        while need > 0:
            k = min(need, 16); self.ins.append(I(f's_nop {k-1}')); need -= k; self.nops += 1
        self.ins.append(i)
        if i.kind == 'ds': self.lgq.append(set(i.wr))
        elif i.kind == 'smem':
            self.smem_pending = True; self.lgq.append(set(i.wr))
        elif i.kind == 'vmem' and not i.mn.startswith(('buffer_wbl2', 'buffer_inv')):
            self.vmq.append((set(i.wr), tag))
            assert len(self.vmq) <= self.vm_limit, 'vmcnt overflow'
        return i

    def loop(self, body, label, back):
        import copy
        st0 = (copy.deepcopy(self.lgq), copy.deepcopy(self.vmq), list(self.ins), self.site, self.forced, dict(self.sites))
        comb = None
        for rounds in range(4):
            self.lgq, self.vmq, self.ins, self.site = copy.deepcopy(st0[0]), copy.deepcopy(st0[1]), list(st0[2]), st0[3]
            seen = []
            lens = []
            for it in range(3):
                self.site = st0[3]; self.sites = {}
                self.forced = comb
                n0 = len(self.ins)
                body(); back()
                lens.append(len(self.ins) - n0)
                seen.append(dict(self.sites))
            new = {}
            for k in seen[0]:
                def mn(vals):
                    vals = [v for v in vals if v is not None]
                    return min(vals) if vals else None
                vs = [s[k] for s in seen] + ([comb[k]] if comb else [])
                new[k] = (mn([v[0] for v in vs]), mn([v[1] for v in vs]))
            if new == comb: break
            comb = new
        else:
            raise RuntimeError('loop waits did not converge')
        self.lgq, self.vmq, self.ins, self.site = copy.deepcopy(st0[0]), copy.deepcopy(st0[1]), list(st0[2]), st0[3]
        self.forced = comb
        self.label(label)
        n0 = len(self.ins); body(); back(); first = [x.text for x in self.ins[n0:]]
        end_site = self.site
        keep = list(self.ins); q1 = (copy.deepcopy(self.lgq), copy.deepcopy(self.vmq))
        self.site = st0[3]; n1 = len(self.ins); body(); back(); second = [x.text for x in self.ins[n1:]]
        assert first == second, 'loop body differs between first and steady pass (hazard nops or waits)'
        for a, b in ((q1[0], self.lgq), (q1[1], self.vmq)):
            n = min(len(a), len(b))
            assert n == 0 or a[len(a)-n:] == b[len(b)-n:], 'queue tails differ after loop'
        if len(q1[0]) > len(self.lgq): self.lgq = q1[0]
        if len(q1[1]) > len(self.vmq): self.vmq = q1[1]
        self.ins = keep; self.site = end_site; self.forced = st0[4]; self.sites = st0[5]

    def snapshot(self):
        import copy
        return (copy.deepcopy(self.lgq), copy.deepcopy(self.vmq))
    def restore(self, st):
        import copy
        self.lgq, self.vmq = copy.deepcopy(st[0]), copy.deepcopy(st[1])

    def text(self):
        return '\n'.join(('' if i.kind == 'meta' else '  ') + i.text for i in self.ins)

    def count(self):
        from collections import Counter
        return Counter(i.kind for i in self.ins)


class Alloc:
    def __init__(self, kind, lo, hi):
        self.kind, self.nxt, self.hi = kind, lo, hi
        self.names = {}
    def get(self, name, n=1, align=None):
        al = align or (1 if n == 1 else (2 if n < 4 else 4))
        self.nxt = (self.nxt + al - 1) // al * al
        r = self.nxt; self.nxt += n
        assert self.nxt <= self.hi, f'out of {self.kind} regs at {name}'
        self.names[name] = (r, n)
        return r

def R(kind, base, n=1):
    return f'{kind}{base}' if n == 1 else f'{kind}[{base}:{base+n-1}]'
def v(b, n=1): return R('v', b, n)
def a(b, n=1): return R('a', b, n)
def s(b, n=1): return R('s', b, n)

def interleave(p, mains, fillers, per=2):
    def put(x):
        if callable(x): x()
        elif isinstance(x, tuple): p.e(x[0], x[1])
        else: p.e(x)
    for x in fillers.get(-1, []): put(x)
    for k, m in enumerate(mains):
        put(m)
        for x in fillers.get(k, []): put(x)


class Slots:
    def __init__(self, n, cap=2):
        self.n, self.cap = n, cap
        self.f = {}; self.cnt = {}
    @staticmethod
    def cost(x):
        t = x[0] if isinstance(x, tuple) else x
        if isinstance(t, str) and t.startswith('buffer_'): return 2
        if isinstance(t, str) and t.startswith(('v_exp', 'v_rcp', 'v_rsq')): return 2
        return 1
    def fix(self, k, x, cost=None):
        self.f.setdefault(k, []).append(x); self.cnt[k] = self.cnt.get(k, 0) + (cost or self.cost(x))
    def stream(self, start, items, last=None, gap=0, cap=None):
        k = start; cap = cap or self.cap
        last = self.n - 1 if last is None else last
        used = start
        for x in items:
            c = self.cost(x)
            while self.cnt.get(k, 0) + c > cap and k < last: k += 1
            self.fix(k, x); used = k; k = min(k + gap, last)
        return used

    def spread(self, start, last, items):
        nm = sum(1 for x in items if self.cost(x) == 2)
        step = (last - start + 1) / max(nm, 1); done = 0; k = start
        for x in items:
            c = self.cost(x)
            if c == 2:
                k = max(k, start + int(done * step)); done += 1
            elif done < nm:
                k = max(k, start + int(done * step) - 1)
            while self.cnt.get(k, 0) + c > self.cap and k < last: k += 1
            self.fix(k, x)
        return k
```

```python
from asmlib import *
from layout import *

LOG2E = 1.4426950408889634
def fhex(x):
    import struct
    return '0x%08x' % struct.unpack('<I', struct.pack('<f', x))[0]

SP0 = 147456
RED = 114688
CH = 64 * 9216

def gen_k1(name, stamps=False, opt=()):
    p = Prog(); e = p.e
    V = Alloc('v', 1, 256); A = Alloc('a', 0, 256); SG = Alloc('s', 56, 100)
    SX, SQ, SGt, SU, SWS, SH, SJS, SJD = 4, 8, 12, 16, 20, 24, 28, 32
    KA = 36
    sW, sI, sJ, sT, sQF, sM = (SG.get(n) for n in ('w', 'i', 'j', 't', 'qf', 'm'))
    sWo, sCnt, sM0w, sJob, sJo, sT0, sT1, sT2 = (SG.get(n) for n in ('wo', 'cnt', 'm0w', 'job', 'jo', 't0', 't1', 't2'))
    sH = SG.get('h', 4, 1); sKV = SG.get('kv', 6, 1); sSP = SG.get('sp'); sLine = SG.get('line')
    mk = [SG.get(f'mk{k}', 2) for k in range(4)]
    sSt = SG.get('st', 2); sStO = SG.get('sto'); sOnes = SG.get('ones')
    JP = [36, 37, 38, 39, 42, 43, 44, 45, 46, 47, 50, 51]
    ACC = V.get('acc', 64); PR = V.get('prod', 32)
    vTR = V.get('tr', 6, 1); vDM = V.get('dm', 2, 1); vL16 = V.get('l16'); vRS = V.get('rs', 4, 1); vRS2 = V.get('rs2', 4, 1)
    vJS = V.get('js'); vJT = V.get('jt'); vJS2 = V.get('spare'); vT = V.get('tmp', 8, 4)
    NXV = (256 - V.nxt) // 4
    XV = V.get('xv', 4 * NXV)
    WF = A.get('wf', 24); XA = A.get('xa', 4 * (72 - NXV)); JD = A.get('jd', 64)
    def xf(b, ks):
        f = ks * 4 + b
        return v(XV + 4 * f, 4) if f < NXV else a(XA + 4 * (f - NXV), 4)
    def xf_isv(b, ks): return ks * 4 + b < NXV
    def xf_base(b, ks):
        f = ks * 4 + b
        return XV + 4 * f if f < NXV else XA + 4 * (f - NXV)
    nstamp = [0]
    def stamp():
        if not stamps: return
        k = nstamp[0]; nstamp[0] += 1
        p.wait_lg(0)
        if k == 0:
            e(f'v_mov_b32 {v(vT+7)}, s100'); e(f'v_mov_b32 {v(vT+6)}, 0'); e(f'buffer_store_dword {v(vT+7)}, {v(vT+6)}, {s(SWS,4)}, {s(sStO)} offen offset:40')
        e(f's_memrealtime {s(sSt,2)}'); p.wait_lg(0)
        e(f'v_mov_b32 {v(vT+7)}, {s(sSt)}'); e(f's_add_u32 {s(sT2)}, {s(sStO)}, {4*k}')
        e(f'v_mov_b32 {v(vT+6)}, 0')
        e(f'buffer_store_dword {v(vT+7)}, {v(vT+6)}, {s(SWS,4)}, {s(sT2)} offen')
        e(f's_memtime {s(sSt,2)}'); p.wait_lg(0)
        e(f'v_mov_b32 {v(vT+7)}, {s(sSt)}')
        e(f'buffer_store_dword {v(vT+7)}, {v(vT+6)}, {s(SWS,4)}, {s(sT2)} offen offset:128')

    END = f'{name}_end'
    if stamps: p.raw('s_memrealtime s[100:101]')
    e('s_cmp_ge_u32 s2, 256'); e(f's_cbranch_scc1 {END}')
    e(f's_load_dwordx8 {s(KA,8)}, s[0:1], 0'); e(f's_load_dwordx8 {s(KA+8,8)}, s[0:1], 32'); e(f's_load_dwordx4 {s(KA+16,4)}, s[0:1], 64')
    T = [ACC + 32 + k for k in range(32)] + [PR + k for k in range(32)]
    vLane, vL3, vL4, vC7, vN, vI2, vB = T[0:7]
    vXO = T[8:12]; vXR = T[12:16]
    e(f'v_lshrrev_b32 {v(vB)}, 6, v0'); e(f'v_and_b32 {v(vLane)}, 63, v0')
    e(f'v_readfirstlane_b32 {s(sW)}, {v(vB)}')
    e(f'v_lshrrev_b32 {v(vL3)}, 3, {v(vLane)}'); e(f'v_lshrrev_b32 {v(vL4)}, 4, {v(vLane)}'); e(f'v_and_b32 {v(vC7)}, 7, {v(vLane)}')
    e(f'v_and_b32 {v(vN)}, 15, {v(vLane)}'); e(f'v_lshlrev_b32 {v(vL16)}, 4, {v(vLane)}')
    e(f's_and_b32 {s(sQF)}, s2, 3'); e(f's_bfe_u32 {s(sT0)}, s2, 0x10002'); e(f's_lshr_b32 {s(sT1)}, s2, 5')
    e(f's_lshl_b32 {s(sT0)}, {s(sT0)}, 3'); e(f's_add_u32 {s(sT)}, {s(sT0)}, {s(sT1)}'); e(f's_bfe_u32 {s(sM)}, s2, 0x20003')
    e(f's_lshr_b32 {s(sI)}, {s(sW)}, 1'); e(f's_and_b32 {s(sJ)}, {s(sW)}, 1')
    e(f's_lshl_b32 {s(sM0w)}, {s(sW)}, 12'); e(f's_add_u32 {s(sSP)}, {s(sM0w)}, {SP0}')
    e(f's_lshl_b32 {s(sT0)}, {s(sW)}, 5'); e(f'v_add_u32 {v(vB)}, {s(sT0)}, {v(vL3)}'); e(f'v_mul_u32_u24 {v(vB)}, 1152, {v(vB)}')
    for q in range(4):
        e(f'v_or_b32 {v(vI2)}, {4*(q&1)}, {v(vL4)}'); e(f'v_xor_b32 {v(vI2)}, {v(vI2)}, {v(vC7)}')
        e(f'v_lshl_add_u32 {v(vXO[q])}, {v(vI2)}, 4, {v(vB)}')
        if q: e(f'v_add_u32 {v(vXO[q])}, {8192*q}, {v(vXO[q])}')
    e(f's_mul_i32 {s(sT0)}, {s(sT)}, {128*1152}')
    p.wait_lg(0)
    def srd(r, ptr, nbytes, back=0):
        if back:
            e(f's_sub_u32 {s(r)}, {s(ptr)}, {back}'); e(f's_subb_u32 {s(r+1)}, {s(ptr+1)}, 0')
        else:
            e(f's_mov_b32 {s(r)}, {s(ptr)}'); e(f's_mov_b32 {s(r+1)}, {s(ptr+1)}')
        e(f's_mov_b32 {s(r+2)}, {nbytes + back}'); e(f's_mov_b32 {s(r+3)}, 0x20000')
    srd(SX, KA + 0, S * D * 2)
    for l in range(9):
        e(f's_add_u32 m0, {s(sM0w)}, {l*16384}')
        if l: e(f's_add_u32 {s(sT0)}, {s(sT0)}, 128')
        else: e('s_nop 0')
        for q in range(4):
            e(f'buffer_load_dwordx4 {v(vXO[q])}, {s(SX,4)}, {s(sT0)} offen offset:{1024*q} lds', tag=f'x{l}')
    srd(SQ, KA + 2, D * 3 * D * 2, back=4096); srd(SGt, KA + 8, D * F * 2); srd(SU, KA + 10, D * F * 2, back=2048)
    srd(SWS, KA + 18, WS_USED); srd(SH, KA + 18, 0); srd(SJS, KA + 12, 0); srd(SJD, KA + 18, REC_OFF)
    def touch(srd_, per, back, dst):
        e(f's_lshl_b32 {s(sT1)}, s2, 2'); e(f's_add_u32 {s(sT1)}, {s(sT1)}, {s(sW)}'); e(f's_mul_i32 {s(sT1)}, {s(sT1)}, {per*128}')
        if back: e(f's_add_u32 {s(sT1)}, {s(sT1)}, {back}')
        e(f'v_lshlrev_b32 {v(dst)}, 7, {v(vLane)}'); e(f'v_cmp_gt_u32 vcc, {per}, {v(vLane)}'); e(f'v_mov_b32 {v(dst+1)}, 0x40000000')
        e(f'v_cndmask_b32 {v(dst)}, {v(dst+1)}, {v(dst)}, vcc')
        e(f'buffer_load_dword {v(vJS2)}, {v(dst)}, {s(srd_,4)}, {s(sT1)} offen', junk=True)
    if 'touch' in opt:
        touch(SQ, 16, 4096, T[44]); touch(SGt, 41, 0, T[46]); touch(SU, 41, 2048, T[48])
        if 'touchd' in opt:
            e(f's_mov_b32 {s(SJS+2)}, {F*D*2}'); touch(SJS, 41, 0, T[50])
            e(f's_mov_b32 {s(SX)}, {s(KA+4)}'); e(f's_mov_b32 {s(SX+1)}, {s(KA+5)}'); e(f's_mov_b32 {s(SX+2)}, {D*D*2}'); touch(SX, 6, 0, T[52])
    if stamps:
        e(f's_lshl_b32 {s(sStO)}, s2, 2'); e(f's_add_u32 {s(sStO)}, {s(sStO)}, {s(sW)}'); e(f's_lshl_b32 {s(sStO)}, {s(sStO)}, 8'); e(f's_add_u32 {s(sStO)}, {s(sStO)}, {STAMP_OFF}')
    stamp()
    e(f'v_mov_b32 {v(vI2)}, 0'); e(f's_lshl_b32 {s(sT1)}, s2, 7'); e(f's_add_u32 {s(sT1)}, {s(sT1)}, {FLAG_OFF}')
    e(f'buffer_store_dword {v(vI2)}, {v(vI2)}, {s(SWS,4)}, {s(sT1)} offen')
    e(f's_and_b32 {s(sT1)}, s2, 7'); e(f's_lshl_b32 {s(sT1)}, {s(sT1)}, 7'); e(f's_add_u32 {s(sT1)}, {s(sT1)}, {CNT_OFF}')
    e(f'buffer_store_dword {v(vI2)}, {v(vI2)}, {s(SWS,4)}, {s(sT1)} offen')
    vQ = vL4
    e(f'v_lshrrev_b32 {v(vI2)}, 1, {v(vN)}'); e(f'v_xor_b32 {v(vI2)}, {v(vI2)}, {v(vQ)}'); e(f'v_lshlrev_b32 {v(vI2)}, 4, {v(vI2)}')
    e(f'v_lshl_add_u32 {v(vI2)}, {v(vN)}, 7, {v(vI2)}')
    e(f's_lshl_b32 {s(sT0)}, {s(sI)}, 13'); e(f's_lshl_b32 {s(sT1)}, {s(sJ)}, 12')
    e(f's_add_u32 {s(sT2)}, {s(sT0)}, {s(sT1)}'); e(f'v_add_u32 {v(vXR[0])}, {s(sT2)}, {v(vI2)}')
    e(f's_xor_b32 {s(sT2)}, {s(sT2)}, 4096'); e(f'v_add_u32 {v(vXR[1])}, {s(sT2)}, {v(vI2)}')
    e(f'v_xor_b32 {v(vXR[2])}, 64, {v(vXR[0])}'); e(f'v_xor_b32 {v(vXR[3])}, 64, {v(vXR[1])}')
    def wdma_off(dst, stride, rows_per_wave, pp, bit3):
        e(f's_mul_i32 {s(sT0)}, {s(sW)}, {rows_per_wave}'); e(f's_add_u32 {s(sT0)}, {s(sT0)}, {8*pp}')
        e(f'v_add_u32 {v(vB)}, {s(sT0)}, {v(vL3)}'); e(f'v_mul_u32_u24 {v(vB)}, {stride}, {v(vB)}')
        e(f'v_and_b32 {v(vI2)}, 1, {v(vL4)}'); e(f'v_lshlrev_b32 {v(vI2)}, 1, {v(vI2)}')
        if bit3 == 'w':
            e(f's_lshl_b32 {s(sT0)}, {s(sJ)}, 2'); e(f'v_or_b32 {v(vI2)}, {s(sT0)}, {v(vI2)}')
        elif bit3: e(f'v_or_b32 {v(vI2)}, 4, {v(vI2)}')
        e(f'v_xor_b32 {v(vI2)}, {v(vI2)}, {v(vC7)}'); e(f'v_lshl_add_u32 {v(dst)}, {v(vI2)}, 4, {v(vB)}')
        if pp: e(f'v_subrev_u32 {v(dst)}, {1024*pp}, {v(dst)}')
    wdma_off(vDM, 9216, 16, 0, 0); wdma_off(vDM + 1, 9216, 16, 1, 1)
    vQD = T[16:18]; vKD = T[18]
    wdma_off(vQD[0], 3456, 16, 0, 0); wdma_off(vQD[1], 3456, 16, 1, 1); wdma_off(vKD, 3456, 8, 0, 'w')
    vTL, vU = T[19], T[20]
    e(f'v_lshrrev_b32 {v(vI2)}, 3, {v(vN)}'); e(f'v_and_b32 {v(vU)}, 1, {v(vQ)}'); e(f'v_lshl_or_b32 {v(vI2)}, {v(vU)}, 1, {v(vI2)}')
    e(f'v_lshlrev_b32 {v(vI2)}, 5, {v(vI2)}')
    e(f'v_and_b32 {v(vU)}, 3, {v(vN)}'); e(f'v_lshl_or_b32 {v(vI2)}, {v(vU)}, 3, {v(vI2)}')
    e(f'v_lshrrev_b32 {v(vU)}, 2, {v(vN)}'); e(f'v_lshl_or_b32 {v(vTL)}, {v(vU)}, 7, {v(vI2)}')
    e(f'v_lshrrev_b32 {v(vU)}, 1, {v(vQ)}'); e(f'v_lshlrev_b32 {v(vU)}, 12, {v(vU)}')
    e(f'v_and_b32 {v(vI2)}, 1, {v(vQ)}'); e(f'v_lshl_or_b32 {v(vU)}, {v(vI2)}, 10, {v(vU)}'); e(f'v_or_b32 {v(vU)}, {v(vU)}, {v(vTL)}')
    e(f's_lshl_b32 {s(sT0)}, {s(sJ)}, 6'); e(f'v_xor_b32 {v(vTR)}, {s(sT0)}, {v(vU)}'); e(f'v_xor_b32 {v(vTR+1)}, 32, {v(vTR)}')
    for r in (1, 2):
        for tt in range(2): e(f'v_add_u32 {v(vTR+2*r+tt)}, {65536*r}, {v(vTR+tt)}')
    e(f'v_lshlrev_b32 {v(vI2)}, 1, {v(vL4)}'); e(f'v_xor_b32 {v(vI2)}, {v(vI2)}, {v(vC7)}'); e(f'v_lshlrev_b32 {v(vI2)}, 4, {v(vI2)}')
    e(f'v_mul_u32_u24 {v(vU)}, 1152, {v(vL3)}'); e(f'v_add_u32 {v(vJS)}, {v(vU)}, {v(vI2)}')
    e(f'v_lshlrev_b32 {v(vU)}, 9, {v(vQ)}'); e(f'v_add_u32 {v(vU)}, {s(sSP)}, {v(vU)}'); e(f'v_add_u32 {v(vJT)}, {v(vU)}, {v(vTL)}')
    vONE = T[24]; vSEL = T[28]; vF1 = T[34]
    assert vONE % 4 == 0 and vSEL % 4 == 0
    e(f's_mov_b32 {s(sOnes)}, 0x3f803f80')
    for k in range(4): e(f'v_mov_b32 {v(vONE+k)}, {s(sOnes)}')
    e(f'v_mov_b32 {v(vF1)}, 1.0')
    e(f'v_lshrrev_b32 {v(vU)}, 2, {v(vN)}'); e(f'v_cmp_eq_u32 {s(mk[0],2)}, {v(vU)}, {v(vQ)}')
    e(f'v_and_b32 {v(vU)}, 3, {v(vN)}')
    for k in (1, 2, 3): e(f'v_cmp_eq_u32 {s(mk[k],2)}, {k}, {v(vU)}')
    e(f'v_and_b32 {v(vI2)}, 1, {v(vN)}'); e(f'v_lshlrev_b32 {v(vI2)}, 4, {v(vI2)}'); e(f'v_mov_b32 {v(vB)}, 0x3f80'); e(f'v_lshlrev_b32 {v(vB)}, {v(vI2)}, {v(vB)}')
    e(f'v_cndmask_b32 {v(vB)}, 0, {v(vB)}, {s(mk[0],2)}')
    e(f'v_cmp_gt_u32 vcc, 2, {v(vU)}')
    for k in (0, 1, 4, 5): e(f'v_mov_b32 {v(vSEL+k)}, 0')
    e(f'v_cndmask_b32 {v(vSEL+2)}, 0, {v(vB)}, vcc'); e(f'v_cndmask_b32 {v(vSEL+3)}, {v(vB)}, 0, vcc')
    SUM = lambda b: ACC + 4 * b
    SQ_ = lambda b: ACC + 16 + 4 * b
    pend = []
    def stats(b, ks):
        c0 = '0' if ks == 0 else v(SUM(b), 4); c1 = '0' if ks == 0 else v(SQ_(b), 4)
        e(f'v_mfma_f32_16x16x32_bf16 {v(SUM(b),4)}, {v(vONE,4)}, {xf(b,ks)}, {c0}')
        e(f'v_mfma_f32_16x16x32_bf16 {v(SQ_(b),4)}, {xf(b,ks)}, {xf(b,ks)}, {c1}')
    for l in range(9):
        p.wait_tag(f'x{l}'); e('s_barrier')
        if l in (4, 8):
            for k in range(4): e(f'v_add_u32 {v(vXR[k])}, 65536, {v(vXR[k])}')
        cur = []
        for kk in range(2):
            for b in range(4):
                e(f'ds_read_b128 {xf(b, 2*l+kk)}, {v(vXR[2*kk + (b>>1)])} offset:{(l%4)*16384 + (b&1)*2048}')
                cur.append((b, 2 * l + kk))
                if pend: stats(*pend.pop(0))
        pend = cur
    p.wait_lg(0); e('s_barrier')
    stamp()
    def ffn_dma(slot, tag=None):
        return [f's_add_u32 m0, {s(sM0w)}, {slot*16384}', None,
                (f'buffer_load_dwordx4 {v(vDM)}, {s(SGt,4)}, {s(sWo)} offen lds', tag or f'slot{slot}'),
                (f'buffer_load_dwordx4 {v(vDM+1)}, {s(SGt,4)}, {s(sWo)} offen offset:1024 lds', tag or f'slot{slot}'),
                (f'buffer_load_dwordx4 {v(vDM)}, {s(SU,4)}, {s(sWo)} offen offset:2048 lds', tag or f'slot{slot}'),
                (f'buffer_load_dwordx4 {v(vDM+1)}, {s(SU,4)}, {s(sWo)} offen offset:3072 lds', tag or f'slot{slot}'),
                f's_add_u32 {s(sWo)}, {s(sWo)}, {CH}']
    def put(lst):
        for x in lst:
            if x is None: continue
            if isinstance(x, tuple): e(x[0], x[1])
            else: e(x)
    QB = 73728
    def kv_dma(ks, vk):
        slot = ks % 6; out = []
        for st in range(6):
            if st % 4 == 0: out.append(f's_add_u32 m0, {s(sT2)}, {slot*24576 + (st//4)*4096}')
            out.append((f'buffer_load_dwordx4 {v(vk)}, {s(SQ,4)}, {s(sKV+st)} offen offset:{1024*(st%4)} lds', f'kv{ks}'))
            out.append(f's_add_u32 {s(sKV+st)}, {s(sKV+st)}, {32*3456}')
        return out
    e(f's_mul_i32 {s(sT0)}, {s(sM)}, 5'); e(f's_sub_u32 {s(sT0)}, {s(sT0)}, 2'); e(f's_max_i32 {s(sT0)}, {s(sT0)}, 0')
    e(f's_mul_i32 {s(sT1)}, {s(sQF)}, 18'); e(f's_add_u32 {s(sT0)}, {s(sT0)}, {s(sT1)}')
    e(f's_lshl_b32 {s(sWo)}, {s(sT0)}, 7')
    e(f's_lshl_b32 {s(sT0)}, {s(sT0)}, 1'); e(f's_add_u32 {s(sT0)}, {s(sT0)}, {s(sJ)}'); e(f's_sub_u32 {s(sT0)}, {s(sT0)}, 2')
    e(f's_lshl_b32 {s(sT1)}, {s(sT)}, 3'); e(f's_lshl_b32 {s(sT2)}, {s(sI)}, 2'); e(f's_add_u32 {s(sT1)}, {s(sT1)}, {s(sT2)}')
    e(f's_lshl_b32 {s(sT2)}, {s(sJ)}, 1')
    sTB = [SG.get(f'tb{b}') for b in range(4)]
    for b in range(4):
        e(f's_xor_b32 {s(sTB[b])}, {s(sT2)}, {b}'); e(f's_add_u32 {s(sTB[b])}, {s(sTB[b])}, {s(sT1)}')
        e(f's_mul_i32 {s(sH+b)}, {s(sTB[b])}, 144'); e(f's_add_u32 {s(sH+b)}, {s(sH+b)}, {s(sT0)}'); e(f's_lshl_b32 {s(sH+b)}, {s(sH+b)}, 10')
    e(f's_cmp_eq_u32 {s(sM)}, 0'); e(f's_cselect_b32 {s(sCnt)}, 3, 5')
    e(f's_lshl_b32 {s(sJob)}, s2, 2'); e(f's_add_u32 {s(sJob)}, {s(sJob)}, {s(sW)}')
    e(f's_mul_i32 {s(sLine)}, {s(sQF)}, 3'); e(f's_add_u32 {s(sLine)}, {s(sLine)}, {s(sM)}'); e(f's_sub_u32 {s(sLine)}, {s(sLine)}, 1')
    for n in range(2):
        jb = JP[6 * n: 6 * n + 6]
        e(f's_mov_b32 {s(jb[2])}, {F*D*2}')
        e(f's_cmp_lt_u32 {s(sJob)}, {NJOB_WD}')
        e(f's_cselect_b32 {s(jb[0])}, {s(KA+12)}, {s(KA+4)}'); e(f's_cselect_b32 {s(jb[1])}, {s(KA+13)}, {s(KA+5)}')
        e(f's_cselect_b32 {s(jb[2])}, {s(jb[2])}, {D*D*2}'); e(f's_cselect_b32 {s(sT0)}, 0, {NJOB_WD}'); e(f's_cselect_b32 {s(sT2)}, 0, {16*1152}')
        e(f's_sub_u32 {s(sT0)}, {s(sJob)}, {s(sT0)}'); e(f's_mul_i32 {s(sT1)}, {s(sT0)}, 7282'); e(f's_lshr_b32 {s(sT1)}, {s(sT1)}, 16')
        e(f's_mul_i32 {s(jb[3])}, {s(sT1)}, {32*1152 - 9*128}'); e(f's_lshl_b32 {s(sT0)}, {s(sT0)}, 7'); e(f's_add_u32 {s(jb[3])}, {s(jb[3])}, {s(sT0)}')
        e(f's_mul_i32 {s(sT1)}, {s(sT1)}, 13108'); e(f's_lshr_b32 {s(sT1)}, {s(sT1)}, 16'); e(f's_mul_i32 {s(sT1)}, {s(sT1)}, {s(sT2)}')
        e(f's_sub_u32 {s(jb[3])}, {s(jb[3])}, {s(sT1)}')
        e(f's_lshl_b32 {s(jb[4])}, {s(sJob)}, 12'); e(f's_add_u32 {s(jb[4])}, {s(jb[4])}, {WT_OFF}')
        e(f's_cmp_lt_u32 {s(sJob)}, {NJOB}'); e(f's_cselect_b32 {s(jb[2])}, {s(jb[2])}, 0'); e(f's_cselect_b32 {s(jb[5])}, {REC_OFF}, 0')
        if n == 0: e(f's_add_u32 {s(sJob)}, {s(sJob)}, 1024')
    st0 = p.snapshot()
    e(f's_cmp_eq_u32 {s(sM)}, 0'); e(f's_cbranch_scc1 {name}_pre_kv')
    e(f's_cmp_lt_u32 {s(sLine)}, 9'); e(f's_cbranch_scc1 {name}_pre_q')
    for c in range(8): put(ffn_dma(c))
    stF = p.snapshot()
    e(f's_branch {name}_center')
    p.label(f'{name}_pre_q'); p.restore(st0)
    e(f's_lshl_b32 {s(sT0)}, {s(sLine)}, 7'); e(f's_add_u32 {s(sT0)}, {s(sT0)}, 4096'); e(f's_lshr_b32 {s(sT1)}, {s(sM0w)}, 1')
    for c in range(9):
        e(f's_add_u32 m0, {s(sT1)}, {QB + 8192*c}')
        if c: e(f's_add_u32 {s(sT0)}, {s(sT0)}, {64*3456}')
        else: e('s_nop 0')
        e(f'buffer_load_dwordx4 {v(vQD[0])}, {s(SQ,4)}, {s(sT0)} offen lds', 'q')
        e(f'buffer_load_dwordx4 {v(vQD[1])}, {s(SQ,4)}, {s(sT0)} offen offset:1024 lds', 'q')
    for c in range(4): put(ffn_dma(c))
    stQ = p.snapshot()
    e(f's_branch {name}_center')
    p.label(f'{name}_pre_kv'); p.restore(st0)
    e(f's_lshl_b32 {s(sT0)}, {s(sQF)}, 8')
    for st in range(6):
        e(f's_add_u32 {s(sKV+st)}, {s(sT0)}, {4096 + 1152*(1 + st//3) + 128*(st%3) - 1024*(st%4)}')
    e(f's_mul_i32 {s(sT2)}, {s(sW)}, 6144')
    for ks in range(6): put(kv_dma(ks, vKD))
    stK = p.snapshot()
    p.label(f'{name}_center'); p.restore(([], []))
    while pend: stats(*pend.pop(0))
    tmpv = T[36]
    for b in range(4):
        q_ = SQ_(b)
        e(f'v_cndmask_b32 {v(tmpv+b)}, {v(q_)}, {v(q_+1)}, {s(mk[1],2)}')
        e(f'v_cndmask_b32 {v(tmpv+b)}, {v(tmpv+b)}, {v(q_+2)}, {s(mk[2],2)}')
        e(f'v_cndmask_b32 {v(tmpv+b)}, {v(tmpv+b)}, {v(q_+3)}, {s(mk[3],2)}')
        e(f'v_cndmask_b32 {v(tmpv+b)}, 0, {v(tmpv+b)}, {s(mk[0],2)}')
        for r in range(4): e(f'v_mul_f32 {v(SUM(b)+r)}, {fhex(-1.0/576)}, {v(SUM(b)+r)}')
    for b in range(4): e(f'v_mfma_f32_16x16x4_f32 {v(SQ_(b),4)}, {v(vF1)}, {v(tmpv+b)}, 0')
    CT = [T[40 + 8 * k] for k in range(3)]
    order = [(b, ks) for ks in range(18) for b in range(4)]
    def c_mfma(n):
        b, ks = order[n]; t = CT[n % 3]
        return [f'v_mfma_f32_16x16x32_bf16 {v(t,4)}, {v(vSEL+2,4)}, {xf(b,ks)}, {v(SUM(b),4)}',
                f'v_mfma_f32_16x16x32_bf16 {v(t+4,4)}, {v(vSEL,4)}, {xf(b,ks)}, {v(SUM(b),4)}']
    def c_pack(n):
        b, ks = order[n]; t = CT[n % 3]; base = xf_base(b, ks); out = []
        for d in range(4):
            if xf_isv(b, ks): out.append([f'v_cvt_pk_bf16_f32 {v(base+d)}, {v(t+2*d)}, {v(t+2*d+1)}'])
            else: out.append([f'v_cvt_pk_bf16_f32 {v(t+2*d)}, {v(t+2*d)}, {v(t+2*d+1)}', f'v_accvgpr_write_b32 {a(base+d)}, {v(t+2*d)}'])
        return out
    extra = []
    for b in range(4):
        extra += [f'v_mul_f32 {v(tmpv+b)}, {v(SUM(b))}, {v(SUM(b))}',
                  f'v_fma_f32 {v(tmpv+b)}, {v(SQ_(b))}, {s(sT0)}, -{v(tmpv+b)}',
                  f'v_max_f32 {v(tmpv+b)}, 0, {v(tmpv+b)}', f'v_add_f32 {v(tmpv+b)}, {fhex(1e-5)}, {v(tmpv+b)}',
                  f'v_rsq_f32 {v(vRS+b)}, {v(tmpv+b)}', f'v_rcp_f32 {v(vRS2+b)}, {v(tmpv+b)}']
    e(f's_mov_b32 {s(sT0)}, {fhex(1.0/576)}')
    for n in range(72 + 2):
        m = c_mfma(n) if n < 72 else []
        pk = c_pack(n - 2) if n >= 2 else [[], [], [], []]
        if m: e(m[0])
        for x in pk[0] + pk[1]: e(x)
        if m: e(m[1])
        for x in pk[2] + pk[3]: e(x)
        if n >= 3 and extra: e(extra.pop(0))
    assert not extra
    stamp()
    e(f's_cmp_eq_u32 {s(sM)}, 0'); e(f's_cbranch_scc1 {name}_kv')
    e(f's_cmp_ge_u32 {s(sLine)}, 9'); e(f's_cbranch_scc1 {name}_hdr')

    def phi(dst, src, rs, rsl, t0):
        return [f'v_mul_f32 {v(t0)}, {v(src)}, {v(rsl)}', f'v_fma_f32 {v(dst)}, {v(src)}, {v(rs)}, {s(sT1)}',
                f'v_exp_f32_e64 {v(t0)}, {v(t0)} clamp', f'v_max_f32 {v(dst)}, {s(sT1)}, {v(dst)}', f'v_add_f32 {v(dst)}, {v(dst)}, {v(t0)}']
    wf = lambda g, kk: a(WF + 8 * (g % 3) + 4 * kk, 4)
    def tr4(g, base_reg, off, kstride):
        out = []
        for kk in range(2):
            for h in range(2):
                out.append(f'ds_read_b64_tr_b16 {a(WF + 8*(g%3) + 4*kk + 2*h, 2)}, {v(base_reg)} offset:{off + kk*kstride + h*512}')
        return out
    p.restore(stQ)
    vQT = [ACC + 0, ACC + 1]
    e(f'v_lshrrev_b32 {v(ACC+2)}, 5, v0'); e(f'v_and_b32 {v(ACC+2)}, 1, {v(ACC+2)}'); e(f'v_lshlrev_b32 {v(ACC+2)}, 11, {v(ACC+2)}')
    e(f'v_subrev_u32 {v(ACC+2)}, {QB}, {v(ACC+2)}')
    for tt in range(2): e(f'v_sub_u32 {v(vQT[tt])}, {v(vTR+tt)}, {v(ACC+2)}')
    p.wait_tag('q'); e('s_barrier')
    qtr = lambda g: tr4(g, vQT[g % 2], ((g // 2) % 4) * 8192 + (32768 if g // 2 == 8 else 0), 4096)
    for x in qtr(0) + qtr(1): e(x)
    nxt_slot = 4
    for g in range(18):
        c, tt = g // 2, g % 2
        mains, fl = [], {}
        for b in range(4):
            for kk in range(2):
                acc = PR + 16 * tt + 4 * b
                cc = '0' if (c == 0 and kk == 0) else v(acc, 4)
                mains.append(f'v_mfma_f32_16x16x32_bf16 {v(acc,4)}, {wf(g,kk)}, {xf(b, 2*c+kk)}, {cc}')
        if g + 2 < 18:
            t4 = qtr(g + 2)
            if g + 2 == 8: fl.setdefault(-1, []).extend([f'v_add_u32 {v(vQT[0])}, 32768, {v(vQT[0])}', f'v_add_u32 {v(vQT[1])}, 32768, {v(vQT[1])}'])
            for k in range(4): fl.setdefault(2 * k, []).append(t4[k])
        if g in (2, 6, 10, 14):
            d = [x for x in ffn_dma(nxt_slot) if x]; nxt_slot += 1
            fl.setdefault(-1, []).append('s_barrier')
            for k, x in enumerate(d): fl.setdefault(1 + min(k, 6), []).append(x)
        interleave(p, mains, fl)
    stamp()
    e(f's_mov_b32 {s(sT1)}, {fhex(1e-6)}')
    for b in range(4): e(f'v_mul_f32 {v(ACC+4+b)}, {fhex(LOG2E)}, {v(vRS+b)}')
    for b in range(4):
        seqs = [phi(PR + 16 * tt + 4 * b + r, PR + 16 * tt + 4 * b + r, vRS + b, ACC + 4 + b, ACC + 8 + 4 * tt + r) for tt in range(2) for r in range(4)]
        for k in range(5):
            for sq in seqs: e(sq[k])
        o = PR + 4 * b
        e(f'v_cvt_pk_bf16_f32 {v(o)}, {v(o)}, {v(o+1)}'); e(f'v_cvt_pk_bf16_f32 {v(o+1)}, {v(o+2)}, {v(o+3)}')
        e(f'v_cvt_pk_bf16_f32 {v(o+2)}, {v(o+16)}, {v(o+17)}'); e(f'v_cvt_pk_bf16_f32 {v(o+3)}, {v(o+18)}, {v(o+19)}')
        e(f's_mul_i32 {s(sT0)}, {s(sTB[b])}, 18'); e(f's_lshl_b32 {s(sT2)}, {s(sLine)}, 1'); e(f's_add_u32 {s(sT0)}, {s(sT0)}, {s(sT2)}'); e(f's_add_u32 {s(sT0)}, {s(sT0)}, {s(sJ)}')
        e(f's_lshl_b32 {s(sT0)}, {s(sT0)}, 10'); e(f's_add_u32 {s(sT0)}, {s(sT0)}, {PQ_OFF}')
        e(f'buffer_store_dwordx4 {v(o,4)}, {v(vL16)}, {s(SWS,4)}, {s(sT0)} offen sc1')
    e(f's_branch {name}_hdr')
    p.label(f'{name}_kv'); p.restore(stK)
    def kacc(ct, b):
        n = ct * 16 + 4 * b
        return ('v', ACC + n) if n < 96 else ('a', JD + n - 96)
    vKT = [vT + k for k in range(4)]
    e(f'v_and_b32 {v(vT+4)}, 15, v0'); e(f'v_lshlrev_b32 {v(vT+4)}, 2, {v(vT+4)}'); e(f'v_add_u32 {v(vT+4)}, {s(sSP)}, {v(vT+4)}')
    for b in range(4): e(f'ds_write_b32 {v(vT+4)}, {v(vRS+b)} offset:{64*b}')
    e(f'v_bfe_u32 {v(vT+5)}, v0, 4, 2'); e(f'v_mul_u32_u24 {v(vT+5)}, 6144, {v(vT+5)}')
    e(f'v_and_b32 {v(vT+6)}, 0x1ff, {v(vTR)}'); e(f's_lshl_b32 {s(sT0)}, {s(sJ)}, 6'); e(f'v_xor_b32 {v(vT+6)}, {s(sT0)}, {v(vT+6)}')
    for u in range(4):
        e(f's_add_u32 {s(sT0)}, {s(sQF)}, {u}'); e(f's_and_b32 {s(sT1)}, {s(sT0)}, 3'); e(f's_lshl_b32 {s(sT1)}, {s(sT1)}, 5')
        e(f's_lshr_b32 {s(sT0)}, {s(sT0)}, 2'); e(f's_add_u32 {s(sT0)}, {s(sT0)}, {s(sJ)}'); e(f's_lshl_b32 {s(sT0)}, {s(sT0)}, 10')
        e(f'v_xor_b32 {v(vKT[u])}, {s(sT1)}, {v(vT+6)}'); e(f'v_add3_u32 {v(vKT[u])}, {v(vKT[u])}, {s(sT0)}, {v(vT+5)}')
    vKD2 = vT + 7
    e(f'v_mov_b32 {v(vKD2)}, {v(vKD)}')
    e(f's_mul_i32 {s(sT2)}, {s(sW)}, 6144')
    NR, LA = 6, 3
    kfr = lambda n: WF + 4 * (n % NR)
    def ktr(n):
        ks, ct = divmod(n, 10); aa = ct % 5
        off = (ks % 2) * 24576 + (aa // 4) * 1024 + (ct // 5) * 3072
        return [f'ds_read_b64_tr_b16 {a(kfr(n) + 2*h, 2)}, {v(vKT[aa % 4])} offset:{off + 512*h}' for h in range(2)]
    p.wait_tag('kv0'); e('s_barrier')
    for n in range(LA):
        for x in ktr(n): e(x)
    ffn_at = {14: [0], 15: [1, 2], 16: [3], 17: [4, 5]}
    for ks in range(18):
        mains = []; sl = Slots(40)
        for ct in range(10):
            n = ks * 10 + ct
            for b in range(4):
                kd, base = kacc(ct, b); acc = R(kd, base, 4)
                mains.append(f'v_mfma_f32_16x16x32_bf16 {acc}, {xf(b,ks)}, {a(kfr(n),4)}, {"0" if ks == 0 else acc}')
            sl.fix(4 * ct - 1, lambda n=n: p.need(a(kfr(n), 4)))
            if n + LA < 180:
                if (n + LA) % 10 == 0:
                    nk = (n + LA) // 10
                    sl.fix(4 * ct - 1, lambda nk=nk: p.wait_tag(f'kv{nk}')); sl.fix(4 * ct, 's_barrier')
                    if nk % 2 == 0:
                        dlt = 49152 if nk % 6 else -98304
                        for u in range(4): sl.fix(4 * ct - 3 + u // 2, f'v_add_u32 {v(vKT[u])}, {dlt & 0xffffffff:#x}, {v(vKT[u])}')
                t2 = ktr(n + LA)
                late = (n + LA) % 10 == 0
                early = (n + LA) % 10 == 9
                sl.fix(4 * ct + (1 if late else 0), t2[0]); sl.fix(4 * ct + (0 if early else 2), t2[1])
        dm = []
        if 2 <= ks <= 13: dm = kv_dma(ks + 4, vKD2)
        elif ks in ffn_at: dm = [x for t in ffn_at[ks] for x in ffn_dma(t) if x]
        sl.stream(0, dm, last=26)
        interleave(p, mains, sl.f)
    p.wait_lg(0); e('s_barrier')
    put(ffn_dma(6)); put(ffn_dma(7))
    stamp()
    e(f'v_bfe_u32 {v(vRS)}, v0, 4, 2'); e(f'v_lshlrev_b32 {v(vRS)}, 4, {v(vRS)}'); e(f'v_add_u32 {v(vRS)}, {s(sSP)}, {v(vRS)}')
    for k in range(4): e(f'v_accvgpr_write_b32 {a(WF+k)}, {s(sOnes)}')
    e(f's_mov_b32 {s(sT1)}, {fhex(1e-6)}')
    def pack8(dstkind, dst, src):
        for d in range(4):
            e(f'v_cvt_pk_bf16_f32 {v(dst+d) if dstkind == "v" else v(src+2*d)}, {v(src+2*d)}, {v(src+2*d+1)}')
        if dstkind == 'a':
            for d in range(4): e(f'v_accvgpr_write_b32 {a(dst+d)}, {v(src+2*d)}')
    PV = {}; PK = {}
    for hb in range(2):
        e(f'ds_read_b128 {v(vT,4)}, {v(vRS)} offset:{128*hb}'); e(f'ds_read_b128 {v(vT+4,4)}, {v(vRS)} offset:{128*hb+64}')
        base = ACC + 80 + 8 * hb
        for k in range(8): e(f'v_mul_f32 {v(base+k)}, {v(base+k)}, {v(vT+k)}')
        pack8('a', WF + 4 + 4 * hb, base); PV[0, hb] = a(WF + 4 + 4 * hb, 4)
        TM = ACC + 80
        for T_ in range(1, 5):
            ab = JD + 16 * (T_ - 1) + 8 * hb
            for k in range(8): e(f'v_accvgpr_read_b32 {v(TM+k)}, {a(ab+k)}')
            for k in range(8): e(f'v_mul_f32 {v(TM+k)}, {v(TM+k)}, {v(vT+k)}')
            pack8('a', ab, TM); PV[T_, hb] = a(ab, 4)
        for k in range(8): e(f'v_mul_f32 {v(TM+k)}, {fhex(LOG2E)}, {v(vT+k)}')
        for aa in range(5):
            base = ACC + 16 * aa + 8 * hb
            for half in range(2):
                tt = [vRS + 1, vRS + 2, vRS + 3, vJS2]
                seqs = [phi(base + 4*half + r, base + 4*half + r, vT + 4*half + r, TM + 4*half + r, tt[r]) for r in range(4)]
                for k in range(5):
                    for sq in seqs: e(sq[k])
            pack8('v', base, base); PK[aa, hb] = v(base, 4)
    e(f's_lshl_b32 {s(sT1)}, {s(sT)}, 1'); e(f's_add_u32 {s(sT1)}, {s(sT1)}, {s(sI)}'); e(f's_lshl_b32 {s(sT1)}, {s(sT1)}, 3')
    e(f's_lshl_b32 {s(sT0)}, {s(sQF)}, 1'); e(f's_add_u32 {s(sT0)}, {s(sT0)}, {s(sJ)}'); e(f's_add_u32 {s(sT1)}, {s(sT1)}, {s(sT0)}')
    e(f's_mul_i32 {s(sT1)}, {s(sT1)}, {18*1024}'); e(f's_add_u32 {s(sT1)}, {s(sT1)}, {KVP_OFF}')
    dt = [ACC + 16 * k + 8 * h + 4 for k in range(5) for h in range(2)]
    outs = [(aa, T_) for (aa, T_) in KV_PAIRS] + [(aa, None) for aa in range(5)]
    pend_st = []
    for u, (aa, T_) in enumerate(outs):
        d = v(dt[u % 10], 4)
        for hb in range(2):
            e(f'v_mfma_f32_16x16x32_bf16 {d}, {PK[aa, hb]}, {a(WF,4) if T_ is None else PV[T_, hb]}, {"0" if hb == 0 else d}')
        pend_st.append((u, d))
        if len(pend_st) > 4 or u == 17:
            while pend_st and (len(pend_st) > 4 or u == 17):
                uu, dd = pend_st.pop(0)
                e(f'buffer_store_dwordx4 {dd}, {v(vL16)}, {s(SWS,4)}, {s(sT1)} offen offset:{1024*(uu%4)} sc1')
                if uu % 4 == 3: e(f's_add_u32 {s(sT1)}, {s(sT1)}, 4096')
    p.label(f'{name}_hdr'); p.restore(stF)
    stamp()
    acc = lambda ai, b: ACC + 16 * ai + 4 * b
    def ftr(G):
        G %= 36; c, g = divmod(G, 4)
        return tr4(G, vTR + 2 * (c // 4) + (g >> 1), (c % 4) * 16384 + (g & 1) * 2048, 8192)
    p.wait_tag('slot0'); e('s_barrier')
    for x in ftr(0) + ftr(1): e(x)
    def prod(h, b): return [f'v_mul_f32 {v(PR + 16*h + 4*b + r)}, {v(acc(2*h, b) + r)}, {v(acc(2*h+1, b) + r)}' for r in range(4)]
    def fin(b):
        o = PR + 4 * b
        return ([f'v_mul_f32 {v(o + 16*h + r)}, {v(o + 16*h + r)}, {v(vRS2+b)}' for h in range(2) for r in range(4)] +
                [f'v_cvt_pk_bf16_f32 {v(o)}, {v(o)}, {v(o+1)}', f'v_cvt_pk_bf16_f32 {v(o+1)}, {v(o+2)}, {v(o+3)}',
                 f'v_cvt_pk_bf16_f32 {v(o+2)}, {v(o+16)}, {v(o+17)}', f'v_cvt_pk_bf16_f32 {v(o+3)}, {v(o+18)}, {v(o+19)}',
                 f'buffer_store_dwordx4 {v(o,4)}, {v(vL16)}, {s(SH,4)}, {s(sH+b)} offen sc1', f's_add_u32 {s(sH+b)}, {s(sH+b)}, 2048'])
    def body():
        mains = []; sl = Slots(288)
        for G in range(36):
            c, g = divmod(G, 4)
            for b in range(4):
                for kk in range(2):
                    cc = '0' if (c == 0 and kk == 0) else v(acc(g, b), 4)
                    mains.append(f'v_mfma_f32_16x16x32_bf16 {v(acc(g,b),4)}, {wf(G,kk)}, {xf(b, 2*c+kk)}, {cc}')
            sl.fix(8 * G - 1, lambda G=G: p.need(a(WF + 8 * (G % 3), 8)))
            if g == 2:
                sl.fix(8 * G - 1, lambda c=c: p.wait_tag(f'slot{(c+1)%9}')); sl.fix(8 * G, 's_barrier')
            for k, x in enumerate(ftr(G + 2)): sl.fix(8 * G + 2 * k + (1 if g == 2 else 0), x)
        sl.stream(8 * 33 + 5, prod(0, 0), last=8 * 34 - 1, cap=3)
        sl.stream(8 * 34 + 1, prod(0, 1) + prod(0, 2) + prod(0, 3), last=287)
        sl.stream(0, prod(1, 0) + prod(1, 1) + prod(1, 2) + prod(1, 3), last=15)
        for c in range(9):
            d = [x for x in ffn_dma((c - 1) % 9) if x]
            if c == 0:
                d[-1] = f's_add_u32 {s(sWo)}, {s(sWo)}, {(128 - 8*CH) & 0xffffffff:#x}'
                d += [lambda: put([f's_cmp_eq_u32 {s(sCnt)}, 1', f's_cselect_b32 {s(SGt+2)}, 0, {s(SGt+2)}', f's_cselect_b32 {s(SU+2)}, 0, {s(SU+2)}'])]
            if c < 8: sl.stream(32 * c + 17, d, last=32 * c + 31, gap=1)
            else: sl.stream(32 * c + 17, d, last=287, cap=3)
        j1 = [f's_mov_b32 {s(SJS+q)}, {s(JP[q])}' for q in range(3)] + [f's_mov_b32 {s(sJo)}, {s(JP[3])}', f's_mov_b32 {s(SJD+2)}, {s(JP[5])}']
        k = sl.stream(16, j1, last=31)
        jl = [f's_mov_b32 m0, {s(sSP)}']
        for q in range(4):
            jl += [(f'buffer_load_dwordx4 {v(vJS)}, {s(SJS,4)}, {s(sJo)} offen offset:{1024*q} lds', 'job'), f's_add_u32 {s(sJo)}, {s(sJo)}, 8192']
        k = sl.stream(32, jl, last=47, gap=1)
        k = sl.stream(16, fin(0) + fin(1) + fin(2) + fin(3) + [f's_mov_b32 {s(SH+2)}, {PQ_OFF}'], gap=1)
        j2 = [f's_mov_b32 {s(sJo)}, {s(JP[4])}'] + [f's_mov_b32 {s(JP[q])}, {s(JP[6+q])}' for q in range(6)]
        j2 += [f's_mov_b32 {s(JP[8])}, 0', f's_mov_b32 {s(JP[11])}, 0']
        j2 += [f'v_xor_b32 {v(vT+u)}, {32*u}, {v(vJT)}' for u in range(1, 4)]
        k = sl.stream(k + 1, j2)
        assert k < 32 * 6
        j3 = [lambda: p.wait_tag('job')]
        for u in range(4):
            for h in range(2): j3.append(f'ds_read_b64_tr_b16 {a(JD + 4*u + 2*h, 2)}, {v(vT+u) if u else v(vJT)} offset:{2048*h}')
        k = sl.stream(32 * 6 + 26, j3, gap=1)
        jst = [f'buffer_store_dwordx4 {a(JD+4*u,4)}, {v(vL16)}, {s(SJD,4)}, {s(sJo)} offen offset:{1024*u} sc1' for u in range(4)]
        k = sl.stream(k + 2, jst, gap=3)
        assert k < 8 * 33
        def keep(x):
            t = x[0] if isinstance(x, tuple) else x
            if not isinstance(t, str): return True
            if 'nodma' in opt and t.endswith('lds'): return False
            if 'nobar' in opt and t == 's_barrier': return False
            if 'nost' in opt and t.startswith('buffer_store'): return False
            if 'notr' in opt and t.startswith('ds_read'): return False
            if 'novalu' in opt and t.startswith('v_'): return False
            return True
        interleave(p, mains, {k_: [x for x in l_ if keep(x)] for k_, l_ in sl.f.items()})
    def back():
        e(f's_sub_u32 {s(sCnt)}, {s(sCnt)}, 1'); e(f's_cmp_lg_u32 {s(sCnt)}, 0'); e(f's_cbranch_scc1 {name}_loop')
    p.loop(body, f'{name}_loop', back)
    stamp()
    for b in range(4):
        for x in prod(1, b): e(x)
    for b in range(4):
        for x in fin(b): e(x)
    p.wait_all()
    stamp()
    p.label(END)
    return p, V.nxt, A.nxt, NXV
```

```python
from asmlib import *
from layout import *
from k1 import fhex, LOG2E

SLOT = 36864
OWN = 73728
SPIN = 200000

def gen_k2(name, stamps=False, opt=()):
    p = Prog(); e = p.e
    V = Alloc('v', 1, 256); A = Alloc('a', 0, 256); SG = Alloc('s', 40, 100)
    SWS, SX, SO, SJ, SA = 4, 8, 12, 16, 20
    KA = 24
    sW, sT, sC, sQK, sM0w, sWd, sT0, sT1, sT2, sT3, sJs, sJd, sCo, sPart, sRec, sWo, sPq0, sPq1 = (SG.get(n) for n in 'w t c qk m0 wd t0 t1 t2 t3 js jd co part rec wo pq0 pq1'.split())
    sH = SG.get('h', 2, 1); sSt = SG.get('st', 2); sStO = SG.get('sto'); sAl, sTl, sSpin, sHi = SG.get('al'), SG.get('tl'), SG.get('spin'), SG.get('hi')
    ACC = V.get('acc', 72); BIG = V.get('big', 148)
    vL = V.get('l16', 3, 1); vRD = V.get('rd', 4, 1); vXO = V.get('xo'); vXD = V.get('xd', 12); vT = V.get('t', 8, 4)
    HB = A.get('hb', 128); AR = A.get('ar', 48); WX = A.get('wx', 80)
    nstamp = [0]
    def stamp():
        if not stamps: return
        k = nstamp[0]; nstamp[0] += 1
        p.wait_lg(0)
        if k == 0:
            e(f'v_mov_b32 {v(vT+7)}, s100'); e(f'v_mov_b32 {v(vT+6)}, 0'); e(f'buffer_store_dword {v(vT+7)}, {v(vT+6)}, {s(SWS,4)}, {s(sStO)} offen offset:60')
        e(f's_memrealtime {s(sSt,2)}'); p.wait_lg(0)
        e(f'v_mov_b32 {v(vT+7)}, {s(sSt)}'); e(f's_add_u32 {s(sT3)}, {s(sStO)}, {4*k}'); e(f'v_mov_b32 {v(vT+6)}, 0')
        e(f'buffer_store_dword {v(vT+7)}, {v(vT+6)}, {s(SWS,4)}, {s(sT3)} offen')
        e(f's_memtime {s(sSt,2)}'); p.wait_lg(0)
        e(f'v_mov_b32 {v(vT+7)}, {s(sSt)}'); e(f'buffer_store_dword {v(vT+7)}, {v(vT+6)}, {s(SWS,4)}, {s(sT3)} offen offset:128')
    def put(lst):
        for x in lst:
            if callable(x): x()
            elif isinstance(x, tuple): e(x[0], x[1])
            else: e(x)
    END = f'{name}_end'
    if stamps: p.raw('s_memrealtime s[100:101]')
    e('s_cmp_ge_u32 s2, 256'); e(f's_cbranch_scc1 {END}')
    e(f's_load_dwordx2 {s(KA,2)}, s[0:1], 0'); e(f's_load_dwordx8 {s(KA+4,8)}, s[0:1], 48')
    e(f'v_lshrrev_b32 {v(vT)}, 6, v0'); e(f'v_and_b32 {v(vT+1)}, 63, v0')
    e(f'v_readfirstlane_b32 {s(sW)}, {v(vT)}')
    e(f'v_lshlrev_b32 {v(vL)}, 4, {v(vT+1)}'); e(f'v_add_u32 {v(vL+1)}, 4096, {v(vL)}'); e(f'v_add_u32 {v(vL+2)}, 8192, {v(vL)}')
    e(f's_and_b32 {s(sQK)}, s2, 3'); e(f's_bfe_u32 {s(sT0)}, s2, 0x10002'); e(f's_lshr_b32 {s(sT1)}, s2, 5')
    e(f's_lshl_b32 {s(sT0)}, {s(sT0)}, 3'); e(f's_add_u32 {s(sT)}, {s(sT0)}, {s(sT1)}'); e(f's_bfe_u32 {s(sC)}, s2, 0x20003')
    e(f's_mul_i32 {s(sM0w)}, {s(sW)}, 9216')
    e(f's_mul_i32 {s(sT0)}, {s(sQK)}, 36'); e(f's_add_u32 {s(sT1)}, {s(sT0)}, {s(sW)}'); e(f's_mul_i32 {s(sT1)}, {s(sT1)}, 36')
    e(f's_mul_i32 {s(sT2)}, {s(sC)}, 9'); e(f's_add_u32 {s(sT1)}, {s(sT1)}, {s(sT2)}'); e(f's_lshl_b32 {s(sT1)}, {s(sT1)}, 10'); e(f's_add_u32 {s(sWd)}, {s(sT1)}, {WT_OFF}')
    e(f's_lshl_b32 {s(sT1)}, {s(sT)}, 3'); e(f's_lshl_b32 {s(sT2)}, {s(sW)}, 1'); e(f's_add_u32 {s(sT1)}, {s(sT1)}, {s(sT2)}')
    e(f's_mul_i32 {s(sT1)}, {s(sT1)}, 144'); e(f's_add_u32 {s(sT1)}, {s(sT1)}, {s(sT0)}'); e(f's_lshl_b32 {s(sH)}, {s(sT1)}, 10'); e(f's_add_u32 {s(sH+1)}, {s(sH)}, {144*1024}')
    p.wait_lg(0)
    def srd(r, ptr, nbytes):
        e(f's_mov_b32 {s(r)}, {s(ptr)}'); e(f's_mov_b32 {s(r+1)}, {s(ptr+1)}'); e(f's_mov_b32 {s(r+2)}, {nbytes}'); e(f's_mov_b32 {s(r+3)}, 0x20000')
    srd(SWS, KA + 10, WS_USED)
    hb = lambda c, b, ks: HB + 32 * (c % 4) + 16 * b + 4 * ks
    def loads(c):
        out = []
        for pc in range(9):
            if pc % 4 == 0: out.append(f's_add_u32 m0, {s(sM0w)}, {(c%4)*SLOT + 4096*(pc//4)}')
            out.append((f'buffer_load_dwordx4 {v(vL + pc//4)}, {s(SWS,4)}, {s(sWd)} offen offset:{1024*(pc%4)} lds', f'w{c}'))
        out.append(f's_add_u32 {s(sWd)}, {s(sWd)}, {4*36*1024}')
        for b in range(2):
            for ks in range(4): out.append(f'buffer_load_dwordx4 {a(hb(c,b,ks),4)}, {v(vL)}, {s(SWS,4)}, {s(sH+b)} offen offset:{1024*ks}')
            out.append(f's_add_u32 {s(sH+b)}, {s(sH+b)}, 4096')
        return out
    put(loads(0))
    srd(SX, KA, S * D * 2); srd(SO, KA + 6, S * D * 2); srd(SJ, KA + 10, 0); srd(SA, KA + 10, 0)
    if stamps:
        e(f's_lshl_b32 {s(sStO)}, s2, 2'); e(f's_add_u32 {s(sStO)}, {s(sStO)}, {s(sW)}'); e(f's_lshl_b32 {s(sStO)}, {s(sStO)}, 8'); e(f's_add_u32 {s(sStO)}, {s(sStO)}, {STAMP_OFF + 256*4*256}')
    stamp()
    for k in range(4): e(f'v_add_u32 {v(vRD+k)}, {k*SLOT}, {v(vL)}')
    e(f's_mul_i32 {s(sT0)}, s2, 10923'); e(f's_lshr_b32 {s(sT0)}, {s(sT0)}, 16')
    e(f's_mul_i32 {s(sT1)}, {s(sT0)}, 6'); e(f's_sub_u32 {s(sT1)}, s2, {s(sT1)}'); e(f's_lshr_b32 {s(sT1)}, {s(sT1)}, 1')
    e(f's_mul_i32 {s(sT2)}, {s(sT0)}, 7282'); e(f's_lshr_b32 {s(sT2)}, {s(sT2)}, 16')
    e(f's_mul_i32 {s(sT3)}, {s(sT2)}, 9'); e(f's_sub_u32 {s(sTl)}, {s(sT0)}, {s(sT3)}')
    e(f's_add_u32 {s(sAl)}, {s(sTl)}, {s(sT1)}'); e(f's_sub_u32 {s(sAl)}, {s(sAl)}, 1')
    e(f's_and_b32 {s(sT3)}, {s(sT0)}, 1'); e(f's_add_u32 {s(sT3)}, {s(sT3)}, {s(sT1)}'); e(f's_sub_u32 {s(sT3)}, {s(sT3)}, 1')
    e(f's_and_b32 {s(sCo)}, s2, 1')
    e(f's_lshl_b32 {s(sJd)}, {s(sCo)}, 10'); e(f's_lshl_b32 {s(sJs)}, {s(sT3)}, 3'); e(f's_add_u32 {s(sJd)}, {s(sJd)}, {s(sJs)}')
    e(f's_lshl_b32 {s(sJs)}, {s(sCo)}, 3'); e(f's_add_u32 {s(sJs)}, {s(sJs)}, 2048')
    e(f's_cmp_lt_u32 {s(sT3)}, 2'); e(f's_cselect_b32 {s(sJd)}, {s(sJd)}, {s(sJs)}')
    e(f's_mul_i32 {s(sT0)}, {s(sT0)}, 3072'); e(f's_add_u32 {s(sJd)}, {s(sJd)}, {s(sT0)}'); e(f's_lshl_b32 {s(sT0)}, {s(sW)}, 8'); e(f's_add_u32 {s(sJd)}, {s(sJd)}, {s(sT0)}')
    e(f's_add_u32 {s(sJd)}, {s(sJd)}, {REC_OFF}')
    e(f's_max_i32 {s(sT0)}, {s(sAl)}, {s(sTl)}'); e(f's_cmp_gt_i32 {s(sT0)}, 4'); e(f's_cselect_b32 {s(sT0)}, 1, 0')
    e(f's_lshl_b32 {s(sT1)}, {s(sT0)}, 2'); e(f's_sub_u32 {s(sT3)}, {s(sAl)}, {s(sT1)}'); e(f's_sub_u32 {s(sT1)}, {s(sTl)}, {s(sT1)}')
    e(f's_add_u32 {s(sT1)}, {s(sT1)}, {s(sT3)}'); e(f's_cmp_eq_u32 {s(sCo)}, 0'); e(f's_cselect_b32 {s(sT1)}, {s(sT1)}, 13'); e(f's_add_u32 {s(sT1)}, {s(sT1)}, {s(sT3)}')
    e(f's_lshl_b32 {s(sT2)}, {s(sT2)}, 1'); e(f's_add_u32 {s(sT2)}, {s(sT2)}, {s(sT0)}'); e(f's_mul_i32 {s(sT2)}, {s(sT2)}, 18'); e(f's_add_u32 {s(sT1)}, {s(sT1)}, {s(sT2)}')
    e(f's_lshl_b32 {s(sT1)}, {s(sT1)}, 10'); e(f's_lshl_b32 {s(sT0)}, {s(sW)}, 8'); e(f's_add_u32 {s(sT1)}, {s(sT1)}, {s(sT0)}'); e(f's_add_u32 {s(sJs)}, {s(sT1)}, {KVP_OFF}')
    e(f's_cmp_lt_u32 {s(sAl)}, 9'); e(f's_cselect_b32 {s(SJ+2)}, {WT_OFF}, 0')
    e(f's_cmp_lt_u32 s2, 216'); e(f's_cselect_b32 {s(SJ+2)}, {s(SJ+2)}, 0'); e(f's_cselect_b32 {s(SA+2)}, {STAMP_OFF}, 0')
    e(f's_and_b32 {s(sCo)}, s2, 7'); e(f's_lshl_b32 {s(sCo)}, {s(sCo)}, 7'); e(f's_add_u32 {s(sCo)}, {s(sCo)}, {CNT_OFF}')
    JL = BIG; vJo, vJd, vHe, vAt = BIG + 40, BIG + 41, BIG + 42, BIG + 43; vJt = BIG + 44
    e(f'v_and_b32 {v(vHe)}, 15, v0'); e(f'v_bfe_u32 {v(vJd)}, v0, 4, 2')
    e(f'v_mul_u32_u24 {v(vJo)}, {8*18*1024}, {v(vJd)}'); e(f'v_lshl_add_u32 {v(vJo)}, {v(vHe)}, 4, {v(vJo)}')
    e(f'v_lshlrev_b32 {v(vJd)}, 28, {v(vJd)}'); e(f'v_lshl_add_u32 {v(vJd)}, {v(vHe)}, 4, {v(vJd)}')
    e(f's_lshl_b32 {s(sT0)}, {s(sTl)}, 4'); e(f'v_add_u32 {v(vHe)}, {s(sT0)}, {v(vHe)}'); e(f'v_mul_u32_u24 {v(vHe)}, 3641, {v(vHe)}'); e(f'v_lshrrev_b32 {v(vHe)}, 16, {v(vHe)}')
    e(f'v_min_u32 {v(vAt)}, 1, v0'); e(f'v_lshlrev_b32 {v(vAt)}, 30, {v(vAt)}')
    jobl = []
    for k in range(8):
        jobl += [f'buffer_load_dwordx4 {v(JL+4*k,4)}, {v(vJo)}, {s(SJ,4)}, {s(sJs)} offen', f's_add_u32 {s(sJs)}, {s(sJs)}, {4*8*18*1024}']
    put(jobl); put(loads(1))
    if 'la3' in opt: put(loads(2))
    jobv = []
    for k in range(1, 8):
        jobv += [f'v_add_f32 {v(JL+r)}, {v(JL+r)}, {v(JL+4*k+r)}' for r in range(4)]
    for sw in ('v_permlane32_swap_b32', 'v_permlane16_swap_b32'):
        jobv += [f'v_mov_b32 {v(vJt+r)}, {v(JL+r)}' for r in range(4)]
        jobv += [f'{sw} {v(vJt+r)}, {v(JL+r)}' for r in range(4)]
        jobv += [f'v_add_f32 {v(JL+r)}, {v(JL+r)}, {v(vJt+r)}' for r in range(4)]
    def maskops(r):
        def f():
            e(f's_lshl_b32 {s(sT0)}, {s(sAl)}, 4'); e(f's_lshl_b32 {s(sT1)}, {s(sW)}, 2'); e(f's_add_u32 {s(sT0)}, {s(sT0)}, {s(sT1)}'); e(f's_add_u32 {s(sT0)}, {s(sT0)}, {r}')
            e(f's_mul_i32 {s(sT0)}, {s(sT0)}, 3641'); e(f's_lshr_b32 {s(sHi)}, {s(sT0)}, 16')
        return f
    e(f'v_and_b32 {v(vT)}, 31, v0'); e(f'v_mul_u32_u24 {v(vT)}, 1152, {v(vT)}'); e(f'v_bfe_u32 {v(vT+1)}, v0, 5, 1'); e(f'v_lshl_add_u32 {v(vXO)}, {v(vT+1)}, 4, {v(vT)}')
    e(f's_lshl_b32 {s(sT0)}, {s(sT)}, 2'); e(f's_add_u32 {s(sT0)}, {s(sT0)}, {s(sQK)}'); e(f's_mul_i32 {s(sT0)}, {s(sT0)}, {32*1152}')
    e(f's_mul_i32 {s(sT1)}, {s(sC)}, 288'); e(f's_add_u32 {s(sT0)}, {s(sT0)}, {s(sT1)}'); e(f's_lshl_b32 {s(sT1)}, {s(sW)}, 5'); e(f's_add_u32 {s(sT0)}, {s(sT0)}, {s(sT1)}')
    e(f'v_add_u32 {v(vXO)}, {s(sT0)}, {v(vXO)}')
    e(f's_mul_i32 {s(sRec)}, {s(sW)}, {9*3072}'); e(f's_add_u32 {s(sRec)}, {s(sRec)}, {REC_OFF}')
    e(f's_mul_i32 {s(sWo)}, {s(sW)}, {5*36}'); e(f's_mul_i32 {s(sT1)}, {s(sC)}, 9'); e(f's_add_u32 {s(sWo)}, {s(sWo)}, {s(sT1)}'); e(f's_lshl_b32 {s(sWo)}, {s(sWo)}, 10'); e(f's_add_u32 {s(sWo)}, {s(sWo)}, {WOT_OFF}')
    e(f's_lshl_b32 {s(sT0)}, {s(sT)}, 3'); e(f's_lshl_b32 {s(sT1)}, {s(sQK)}, 1'); e(f's_add_u32 {s(sT0)}, {s(sT0)}, {s(sT1)}'); e(f's_mul_i32 {s(sT0)}, {s(sT0)}, 18')
    e(f's_mul_i32 {s(sT1)}, {s(sW)}, 9'); e(f's_lshr_b32 {s(sT1)}, {s(sT1)}, 1'); e(f's_add_u32 {s(sT0)}, {s(sT0)}, {s(sT1)}'); e(f's_lshl_b32 {s(sT0)}, {s(sT0)}, 10')
    e(f's_add_u32 {s(sPq0)}, {s(sT0)}, {PQ_OFF}'); e(f's_add_u32 {s(sPq1)}, {s(sPq0)}, {18*1024}')
    REC = lambda tl, pc: BIG + 12 * tl + 4 * pc
    PQ = lambda b, g: BIG + 108 + 20 * b + 4 * g
    def wreg(f): return WX + 4 * f if f < 20 else 4 * (f - 20)
    def wload(f):
        aa, pc = divmod(f, 5)
        return [f's_add_u32 {s(sT2)}, {s(sWo)}, {pc*36*1024 + aa*1024}', f'buffer_load_dwordx4 {a(wreg(f),4)}, {v(vL)}, {s(SWS,4)}, {s(sT2)} offen']
    acc = lambda aa, b: ACC + 8 * aa + 4 * b
    ar = lambda n, ks: AR + 16 * (n % 3) + 4 * ks
    def ard(n):
        c, aa = divmod(n, 9)
        return [f'ds_read_b128 {a(ar(n,ks),4)}, {v(vRD + c%4)} offset:{ks*9216 + aa*1024}' for ks in range(4)]
    p.wait_tag('w0'); e('s_barrier')
    put(ard(0) + ard(1))
    stamp()
    mains = []; sl = Slots(648)
    for n in range(81):
        c, aa = divmod(n, 9)
        for b in range(2):
            for ks in range(4):
                cc = '0' if (c == 0 and ks == 0) else v(acc(aa, b), 4)
                mains.append(f'v_mfma_f32_16x16x32_bf16 {v(acc(aa,b),4)}, {a(ar(n,ks),4)}, {a(hb(c,b,ks),4)}, {cc}')
        sl.fix(8 * n - 1, lambda n=n, c=c, aa=aa: p.need(a(ar(n, 0), 16), *([a(HB + 32 * (c % 4), 32)] if aa == 0 else [])))
        late = 0
        if aa == 7 and c < 8:
            sl.fix(8 * n - 1, lambda c=c: p.wait_tag(f'w{c+1}')); sl.fix(8 * n, 's_barrier'); late = 1
        if aa == 1 and 1 <= c <= 5 and ('dense' in opt or 'la3' in opt): sl.fix(8 * n - 3, 's_barrier')
        if n + 2 < 81:
            for k, x in enumerate(ard(n + 2)): sl.fix(8 * n + 2 * k + late, x)
    if 'dense' in opt:
        k = sl.stream(0, loads(2)); k = sl.stream(k, loads(3))
        for c in range(1, 6): k = sl.stream(max(k, 72 * c + 6), loads(c + 3))
    elif 'la3' in opt:
        sl.spread(0, 77, loads(3))
        for c in range(1, 6): sl.spread(72 * c + 6, 72 * c + 77, loads(c + 3))
    else:
        sl.spread(0, 71, loads(2))
        for c in range(1, 7): sl.spread(72 * c, 72 * c + 71, loads(c + 2))
    k = sl.stream(2, jobv)
    for r in range(4):
        sl.fix(k + 1, maskops(r), cost=2); k = sl.stream(k + 2, [f'v_cmp_eq_u32 vcc, {s(sHi)}, {v(vHe)}'])
        k = sl.stream(k + 2, [f'v_cndmask_b32 {v(JL+r)}, 0, {v(JL+r)}, vcc'])
    k = sl.stream(k, [f'v_cvt_pk_bf16_f32 {v(JL)}, {v(JL)}, {v(JL+1)}', f'v_cvt_pk_bf16_f32 {v(JL+1)}, {v(JL+2)}, {v(JL+3)}',
                      (f'buffer_store_dwordx2 {v(JL,2)}, {v(vJd)}, {s(SA,4)}, {s(sJd)} offen sc1', 'rec'), f'v_mov_b32 {v(vJt)}, 1'])
    assert k < 72 * 2, k
    sl.fix(8 * (18 + 7) - 2, lambda: p.wait_tag('rec'))
    sl.stream(8 * (18 + 7) + 2, [f'buffer_atomic_add {v(vJt)}, {v(vAt)}, {s(SA,4)}, {s(sCo)} offen sc1'])
    xl = [f'buffer_load_dwordx4 {v(vXD,4)}, {v(vXO)}, {s(SX,4)}, 0 offen', f'buffer_load_dwordx4 {v(vXD+4,4)}, {v(vXO)}, {s(SX,4)}, 0 offen offset:128',
          f'buffer_load_dwordx4 {v(vXD+8,4)}, {v(vXO)}, {s(SX,4)}, 0 offen offset:256']
    pql = []
    for b in range(2):
        for g in range(5): pql.append(f'buffer_load_dwordx4 {v(PQ(b,g),4)}, {v(vL + g//4)}, {s(SWS,4)}, {s(sPq0 if b == 0 else sPq1)} offen offset:{1024*(g%4)}')
    poll0 = [f'v_and_b32 {v(vT)}, 7, v0', f'v_lshlrev_b32 {v(vT)}, 7, {v(vT)}', f's_mov_b32 {s(sT1)}, {CNT_OFF}',
             f'buffer_load_dword {v(vT+1)}, {v(vT)}, {s(SWS,4)}, {s(sT1)} offen sc1']
    k0 = 72 * 6 if ('dense' in opt or 'la3' in opt) else 72 * 7
    k = sl.spread(k0 + 6, k0 + 50, poll0 + xl + pql)
    def check_cnt():
        e(f'v_cmp_ne_u32 vcc, 27, {v(vT+1)}'); e(f's_mov_b32 {s(sSpin)}, {SPIN}'); e('s_nop 0'); e('s_cmp_eq_u64 vcc, 0'); e(f's_cbranch_scc0 {name}_cspin')
        p.label(f'{name}_cdone')
    sl.fix(k0 + 52, check_cnt, cost=2)
    recl = []
    for f in range(27):
        if f % 12 == 0 and f: recl.append(f's_add_u32 {s(sRec)}, {s(sRec)}, 12288')
        recl.append(f'buffer_load_dwordx4 {v(BIG+4*f,4)}, {v(vL + (f%12)//4)}, {s(SWS,4)}, {s(sRec)} offen offset:{1024*(f%4)} sc1')
    NW0 = 14 if k0 == 72 * 6 else 0
    k = sl.spread(k0 + 53, 647, recl + [x for f in range(NW0) for x in wload(f)])
    interleave(p, mains, sl.f)
    p.need(v(PQ(1, 4), 4))
    stamp()
    e(f's_cmp_eq_u32 {s(sW)}, {s(sQK)}'); e(f's_cbranch_scc1 {name}_own')
    st0 = p.snapshot()
    e(f's_and_b32 {s(sT0)}, s2, 0xfc'); e(f's_add_u32 {s(sT0)}, {s(sT0)}, {s(sW)}'); e(f's_lshl_b32 {s(sT0)}, {s(sT0)}, 2'); e(f's_add_u32 {s(sT0)}, {s(sT0)}, {s(sQK)}')
    e(f's_mul_i32 {s(sT0)}, {s(sT0)}, 9216'); e(f's_add_u32 {s(sT0)}, {s(sT0)}, {PART_OFF}')
    for aa in range(9):
        o = acc(aa, 0)
        for d in range(4): e(f'v_cvt_pk_bf16_f32 {v(o+d)}, {v(o+2*d)}, {v(o+2*d+1)}')
        e(f'buffer_store_dwordx4 {v(o,4)}, {v(vL + aa//4)}, {s(SWS,4)}, {s(sT0)} offen offset:{1024*(aa%4)} sc1', 'pub')
    stP = p.snapshot()
    e(f's_branch {name}_att')
    p.label(f'{name}_own'); p.restore(st0)
    for u in range(18): e(f'ds_write_b128 {v(vRD+2)}, {v(ACC+4*u,4)} offset:{1024*u}')
    p.wait_lg(0)
    p.label(f'{name}_att'); p.restore(st0)
    if 'diag' in opt:
        stamp(); p.need(v(BIG + 4 * 26, 4)); stamp(); p.wait_all(); stamp()
    p.vm_limit = 63 - 9
    for r in range(4): e(f'v_mov_b32 {v(vT+4+r)}, {fhex(1e-6)}')
    ND = lambda tl, b, z: ACC + 16 * (tl % 3) + 8 * b + 4 * z
    OF = lambda b, pc: REC(2 * pc, 0) + 4 * b
    e(f's_and_b32 {s(sT0)}, {s(sW)}, 1'); e(f's_cmp_eq_u32 {s(sT0)}, 1'); e(f's_cbranch_scc1 {name}_oodd')
    st1 = p.snapshot()
    for par in range(2):
        if par:
            p.label(f'{name}_oodd'); p.restore(st1)
        late = [wload(f) for f in range(NW0, 45)]
        for step in range(11):
            m32, m16, va = [], [], []
            tl = step
            if tl < 9:
                gl = (tl + par) >> 1
                for b in range(2):
                    m32.append(f'v_mfma_f32_16x16x32_bf16 {v(ND(tl,b,0),4)}, {v(REC(tl,0),4)}, {v(PQ(b,gl),4)}, 0')
                    m32.append(f'v_mfma_f32_16x16x32_bf16 {v(ND(tl,b,1),4)}, {v(REC(tl,1),4)}, {v(PQ(b,gl),4)}, {v(vT+4,4)}')
            tl = step - 1
            if 0 <= tl < 9:
                gl = (tl + par) >> 1; odd = (tl + par) & 1
                gs = gl + 1 if odd else gl - 1
                if not 0 <= gs <= 4: gs = gl
                for b in range(2):
                    half = v(PQ(b, gs) + (0 if odd else 2), 2)
                    m16.append(f'v_mfma_f32_16x16x16_bf16 {v(ND(tl,b,0),4)}, {v(REC(tl,2),2)}, {half}, {v(ND(tl,b,0),4)}')
                    m16.append(f'v_mfma_f32_16x16x16_bf16 {v(ND(tl,b,1),4)}, {v(REC(tl,2)+2,2)}, {half}, {v(ND(tl,b,1),4)}')
            tl = step - 2
            if 0 <= tl < 9:
                for b in range(2): va += [f'v_rcp_f32 {v(ND(tl,b,1)+r)}, {v(ND(tl,b,1)+r)}' for r in range(4)]
                for b in range(2):
                    va += [f'v_mul_f32 {v(ND(tl,b,0)+r)}, {v(ND(tl,b,0)+r)}, {v(ND(tl,b,1)+r)}' for r in range(4)]
                    va += [f'v_cvt_pk_bf16_f32 {v(OF(b, tl>>1) + 2*(tl&1) + d)}, {v(ND(tl,b,0)+2*d)}, {v(ND(tl,b,0)+2*d+1)}' for d in range(2)]
            mm = m32 + m16
            per = -(-len(va) // max(len(mm) - 1, 1))
            for i_, x in enumerate(mm):
                e(x)
                if late and len(p.vmq) < p.vm_limit and i_ % 2 == 0: put(late.pop(0))
                if i_ == 0 and len(mm) > 4: continue
                for y in va[:per]: e(y)
                va = va[per:]
            for y in va: e(y)
        while late: put(late.pop(0))
        if par == 0: stE = p.snapshot()
        else: assert p.snapshot() == stE
        if par == 0: e(f's_branch {name}_odone')
    p.label(f'{name}_odone')
    e('s_nop 1')
    stamp()
    p.need(a(wreg(NW0), 4)); e('s_barrier')
    p.vm_limit = 63
    e(f'v_mov_b32 {v(vT)}, 1'); e(f's_lshl_b32 {s(sT0)}, s2, 7'); e(f's_add_u32 {s(sT0)}, {s(sT0)}, {FLAG_OFF}'); e(f's_mov_b32 {s(SA+2)}, {STAMP_OFF}')
    e(f'v_min_u32 {v(vT+1)}, 1, v0'); e(f'v_lshlrev_b32 {v(vT+1)}, 30, {v(vT+1)}')
    e(f'buffer_store_dword {v(vT)}, {v(vT+1)}, {s(SA,4)}, {s(sT0)} offen sc1')
    e(f's_mul_i32 {s(sT0)}, {s(sW)}, 18432'); e(f'v_add_u32 {v(vT+2)}, {s(sT0)}, {v(vL)}')
    for aa in range(10):
        mm = []
        if aa < 9:
            for b in range(2):
                for pc in range(4):
                    mm.append(f'v_mfma_f32_16x16x32_bf16 {v(acc(aa,b),4)}, {a(wreg(5*aa+pc),4)}, {v(OF(b,pc),4)}, {"0" if pc == 0 else v(acc(aa,b),4)}')
        if aa >= 1:
            for b in range(2):
                mm.insert(min(len(mm), 3 + 4 * b), f'v_mfma_f32_16x16x16_bf16 {v(acc(aa-1,b),4)}, {a(wreg(5*(aa-1)+4),2)}, {v(OF(b,4),2)}, {v(acc(aa-1,b),4)}')
        for k_, x in enumerate(mm):
            e(x)
            if aa >= 2 and k_ in (1, 5) : e(f'ds_write_b128 {v(vT+2)}, {v(acc(aa-2, k_//4),4)} offset:{1024*(2*(aa-2) + k_//4)}')
        if aa == 9:
            e(f'ds_write_b128 {v(vT+2)}, {v(acc(7,1),4)} offset:{1024*15}')
            for b in range(2): e(f'ds_write_b128 {v(vT+2)}, {v(acc(8,b),4)} offset:{1024*(16+b)}')
    stamp()
    e(f'v_and_b32 {v(vT)}, 3, v0'); e(f'v_lshlrev_b32 {v(vT)}, 7, {v(vT)}'); e(f's_and_b32 {s(sT1)}, s2, 0xfc'); e(f's_lshl_b32 {s(sT1)}, {s(sT1)}, 7'); e(f's_add_u32 {s(sT1)}, {s(sT1)}, {FLAG_OFF}')
    e(f's_mov_b32 {s(sSpin)}, {SPIN}')
    p.label(f'{name}_fspin')
    e(f'buffer_load_dword {v(vT+1)}, {v(vT)}, {s(SWS,4)}, {s(sT1)} offen sc1'); p.wait_all(lg=False)
    e(f'v_cmp_ne_u32 vcc, 1, {v(vT+1)}'); e(f's_sub_u32 {s(sSpin)}, {s(sSpin)}, 1'); e('s_cmp_eq_u64 vcc, 0'); e(f's_cbranch_scc1 {name}_fdone')
    e(f's_cmp_lg_u32 {s(sSpin)}, 0'); e(f's_cbranch_scc1 {name}_fspin')
    p.label(f'{name}_fdone')
    stamp()
    PE = lambda pc, q: BIG + 12 * pc + 4 * q
    e(f's_lshl_b32 {s(sT0)}, {s(sW)}, 10'); e(f's_mul_i32 {s(sT2)}, s2, {4*9216}'); e(f's_add_u32 {s(sT2)}, {s(sT2)}, {s(sT0)}'); e(f's_add_u32 {s(sT2)}, {s(sT2)}, {PART_OFF}')
    for q in range(3):
        e(f's_add_u32 {s(sT1)}, {s(sQK)}, {q+1}'); e(f's_and_b32 {s(sT1)}, {s(sT1)}, 3'); e(f's_mul_i32 {s(sT1)}, {s(sT1)}, 9216'); e(f's_add_u32 {s(sPq0 if q == 0 else sPq1 if q == 1 else sRec)}, {s(sT1)}, {s(sT2)}')
    for pc in range(3):
        for q in range(3):
            e(f'buffer_load_dwordx4 {v(PE(pc,q),4)}, {v(vL+pc)}, {s(SWS,4)}, {s(sPq0 if q == 0 else sPq1 if q == 1 else sRec)} offen sc1')
    e(f's_lshl_b32 {s(sT0)}, {s(sW)}, 11'); e(f'v_add_u32 {v(vT+2)}, {s(sT0)}, {v(vL)}'); e(f'v_add_u32 {v(vT+3)}, {OWN}, {v(vT+2)}'); e(f'v_add_u32 {v(vT+4)}, 36864, {v(vT+2)}')
    if 'diag' in opt:
        p.wait_all(); stamp()
    p.wait_lg(0); e('s_barrier')
    e(f's_mov_b32 {s(sHi)}, 0xffff0000'); e(f's_cmp_eq_u32 {s(sW)}, 0'); e(f's_cselect_b32 {s(sSpin)}, {S*D*2}, 0')
    SS = lambda pc: BIG + 40 + 8 * pc
    DD = lambda pc: BIG + 64 + 8 * pc
    for pc in range(3):
        t = ACC
        for wv in range(4):
            for b in range(2):
                off = (wv & 1) * 18432 + 8192 * pc + 1024 * b
                dst = SS(pc) + 4 * b if wv == 0 else t + 8 * (wv - 1) + 4 * b + 24 * pc
                e(f'ds_read_b128 {v(dst,4)}, {v(vT+2 if wv < 2 else vT+4)} offset:{off}')
        for b in range(2): e(f'ds_read_b128 {v(DD(pc)+4*b,4)}, {v(vT+3)} offset:{8192*pc + 1024*b}')
    for pc in range(3):
        for wv in range(3):
            for k in range(0, 8, 2): e(f'v_pk_add_f32 {v(SS(pc)+k,2)}, {v(SS(pc)+k,2)}, {v(ACC + 24*pc + 8*wv + k,2)}')
    for pc in range(3):
        U = ACC
        for q in range(3):
            for d in range(4):
                e(f'v_lshlrev_b32 {v(U+8*q+2*d)}, 16, {v(PE(pc,q)+d)}'); e(f'v_and_b32 {v(U+8*q+2*d+1)}, {s(sHi)}, {v(PE(pc,q)+d)}')
            for k in range(0, 8, 2): e(f'v_pk_add_f32 {v(DD(pc)+k,2)}, {v(DD(pc)+k,2)}, {v(U+8*q+k,2)}')
        G = ACC + 24
        for k in range(8): e(f'v_mul_f32 {v(G+k)}, {fhex(-LOG2E)}, {v(DD(pc)+k)}')
        for k in range(8): e(f'v_exp_f32 {v(G+k)}, {v(G+k)}')
        for k in range(8): e(f'v_add_f32 {v(G+k)}, 1.0, {v(G+k)}')
        for k in range(8): e(f'v_rcp_f32 {v(G+k)}, {v(G+k)}')
        for k in range(0, 8, 2): e(f'v_pk_mul_f32 {v(DD(pc)+k,2)}, {v(DD(pc)+k,2)}, {v(SS(pc)+k,2)}')
        for k in range(0, 8, 2): e(f'v_pk_mul_f32 {v(G+k,2)}, {v(G+k,2)}, {v(DD(pc)+k,2)}')
        X = ACC + 32
        for d in range(4):
            e(f'v_lshlrev_b32 {v(X+2*d)}, 16, {v(vXD+4*pc+d)}'); e(f'v_and_b32 {v(X+2*d+1)}, {s(sHi)}, {v(vXD+4*pc+d)}')
        for r in range(4): e(f'v_permlane16_swap_b32 {v(G+r)}, {v(G+4+r)}')
        for k in range(0, 8, 2): e(f'v_pk_add_f32 {v(G+k,2)}, {v(G+k,2)}, {v(X+k,2)}')
        O = ACC + 40 + 4 * pc
        for d in range(4): e(f'v_cvt_pk_bf16_f32 {v(O+d)}, {v(G+2*d)}, {v(G+2*d+1)}')
        if pc == 2: e(f's_mov_b32 {s(SO+2)}, {s(sSpin)}')
        e(f'buffer_store_dwordx4 {v(O,4)}, {v(vXO)}, {s(SO,4)}, 0 offen offset:{128*pc}')
    p.wait_all()
    stamp()
    e(f's_branch {END}')
    p.label(f'{name}_cspin')
    p.raw(f'buffer_load_dword {v(vT+1)}, {v(vT)}, {s(SWS,4)}, {s(sT1)} offen sc1'); p.raw('s_waitcnt vmcnt(0)')
    p.raw(f'v_cmp_ne_u32 vcc, 27, {v(vT+1)}'); p.raw(f's_sub_u32 {s(sSpin)}, {s(sSpin)}, 1'); p.raw('s_nop 0'); p.raw('s_cmp_eq_u64 vcc, 0'); p.raw(f's_cbranch_scc1 {name}_cdone')
    p.raw(f's_cmp_lg_u32 {s(sSpin)}, 0'); p.raw(f's_cbranch_scc1 {name}_cspin'); p.raw(f's_branch {name}_cdone')
    p.label(END)
    return p, V.nxt, A.nxt
```

```python
import re

REG_RE = re.compile(r'^(-?)(?:abs\()?([vas])(?:\[(\d+):(\d+)\]|(\d+))\)?$')

def regs_of(tok):
    tok = tok.strip()
    if tok in ('vcc',): return [('s', 'vcc')]
    if tok in ('exec',): return [('s', 'exec')]
    if tok == 'm0': return [('s', 'm0')]
    m = REG_RE.match(tok)
    if not m: return []
    k = m.group(2)
    if m.group(3) is not None:
        return [(k, i) for i in range(int(m.group(3)), int(m.group(4)) + 1)]
    return [(k, int(m.group(5)))]

def split_ops(s):
    out, depth, cur = [], 0, ''
    for ch in s:
        if ch in '[(': depth += 1
        if ch in '])': depth -= 1
        if ch == ',' and depth == 0:
            out.append(cur.strip()); cur = ''
        else: cur += ch
    if cur.strip(): out.append(cur.strip())
    return out

TRANS = ('v_exp_f32', 'v_log_f32', 'v_rcp_f32', 'v_rsq_f32', 'v_sqrt_f32')

class I:
    __slots__ = ('text', 'mn', 'rd', 'wr', 'kind', 'passes', 'A', 'B', 'C', 'D', 'tag', 'lds')
    def __init__(self, text, tag=None):
        self.text = text; self.tag = tag
        t = text.split(';')[0].strip()
        mn, _, rest = t.partition(' ')
        self.mn = mn
        ops = split_ops(rest)
        mods = ''
        if ops:
            parts = ops[-1].split()
            ops[-1] = parts[0]; mods = ' '.join(parts[1:])
        self.rd, self.wr = [], []
        self.passes = 0; self.A = self.B = self.C = self.D = []
        self.lds = False
        R = lambda i: regs_of(ops[i]) if i < len(ops) else []
        if mn.startswith('v_mfma'):
            self.kind = 'mfma'
            self.D, self.A, self.B, self.C = R(0), R(1), R(2), R(3)
            self.wr = self.D; self.rd = self.A + self.B + self.C
            if '32x32x16' in mn or mn.endswith('16x16x4_f32'): self.passes = 8
            else: self.passes = 4
            if mn.endswith('x4_f32'): self.kind = 'sgemm'
        elif mn.startswith('ds_read') or mn.startswith('ds_bpermute'):
            self.kind = 'ds'; self.wr = R(0); self.rd = sum((R(i) for i in range(1, len(ops))), [])
        elif mn.startswith('ds_'):
            self.kind = 'ds'; self.rd = sum((R(i) for i in range(len(ops))), [])
        elif mn.startswith('buffer_load'):
            self.kind = 'vmem'
            if 'lds' in mods.split():
                self.lds = True
                self.rd = R(0) + R(1) + R(2) + [('s', 'm0')]
            else:
                self.wr = R(0); self.rd = R(1) + R(2) + R(3)
        elif mn.startswith('buffer_store') or mn.startswith('buffer_atomic'):
            self.kind = 'vmem'; self.rd = R(0) + R(1) + R(2) + R(3); self.D = R(0)
            if mn.startswith('buffer_atomic') and 'sc0' in mods.split(): self.wr = R(0)
        elif mn.startswith('buffer_'):
            self.kind = 'vmem'
        elif mn.startswith('global_store'):
            self.kind = 'vmem'; self.rd = R(0) + R(1) + R(2); self.D = R(1)
        elif mn.startswith('global_load'):
            self.kind = 'vmem'; self.wr = R(0); self.rd = R(1) + R(2)
        elif mn.startswith('s_load') or mn in ('s_memtime', 's_memrealtime'):
            self.kind = 'smem'; self.wr = R(0); self.rd = R(1)
        elif mn in ('s_waitcnt', 's_barrier', 's_nop', 's_sleep', 's_setprio', 's_endpgm') or mn.startswith('s_cbranch') or mn == 's_branch':
            self.kind = 'ctl'
        elif mn.startswith('s_cmp'):
            self.kind = 'salu'; self.rd = R(0) + R(1)
        elif mn.startswith('s_'):
            self.kind = 'salu'; self.wr = R(0); self.rd = sum((R(i) for i in range(1, len(ops))), [])
            if 'saveexec' in mn: self.wr = self.wr + [('s', 'exec')]
        elif mn.startswith('v_'):
            self.kind = 'valu'
            self.wr = R(0); self.rd = sum((R(i) for i in range(1, len(ops))), [])
            if mn.startswith('v_permlane') and 'swap' in mn:
                self.wr = R(0) + R(1); self.rd = R(0) + R(1)
            if mn.startswith(('v_fmac', 'v_dot2c')): self.rd = self.rd + R(0)
            if mn.startswith('v_cndmask') and len(ops) == 3: self.rd = self.rd + [('s', 'vcc')]
        elif mn.endswith(':') or mn.startswith('.') or mn == '':
            self.kind = 'meta'
        else:
            raise ValueError('unknown instr: ' + text)

    def states(self):
        if self.kind == 'meta': return 0
        if self.mn == 's_nop': return int(self.text.split()[1]) + 1
        return 1

def need_states(p, c):
    n = 0
    pw, cr, cw = set(p.wr), set(c.rd), set(c.wr)
    vw = {r for r in pw if r[0] in 'va'}
    sw = {r for r in pw if r[0] == 's'}
    if p.kind == 'valu':
        if c.kind in ('mfma', 'sgemm') and vw & cr: n = max(n, 2)
        if c.mn in ('v_readfirstlane_b32', 'v_readlane_b32') and vw & cr: n = max(n, 1)
        if c.mn.startswith('v_permlane') and vw & cr: n = max(n, 2)
        if 'dpp' in c.text and c.kind == 'valu' and vw & cr: n = max(n, 2)
        if p.mn.split('_e')[0] in TRANS and c.kind == 'valu' and vw & cr: n = max(n, 1)
        if sw:
            if c.kind == 'vmem' and sw & cr: n = max(n, 5)
            if c.kind == 'valu' and sw & cr: n = max(n, 2)
            if c.kind in ('salu',) and sw & cr: n = max(n, 1)
    if p.kind == 'salu' and ('s', 'm0') in pw and c.kind == 'vmem' and c.lds: n = max(n, 1)
    if p.kind in ('mfma', 'sgemm'):
        D = set(p.D); xdl = p.kind == 'mfma'
        t_ab = {4: 8, 8: 12}[p.passes] if xdl else {4: 6, 8: 10}[p.passes]
        if c.kind in ('mfma', 'sgemm'):
            if D & (set(c.A) | set(c.B)): n = max(n, t_ab)
            if D & set(c.C):
                same = (c.C == p.D and c.kind == p.kind and c.passes == p.passes and c.mn == p.mn)
                if not same: n = max(n, {4: 6, 8: 10}[p.passes])
            elif D & set(c.D): n = max(n, t_ab)
        elif c.kind in ('valu', 'vmem', 'ds'):
            if D & (cr | cw): n = max(n, t_ab)
        if xdl and c.kind == 'valu' and set(p.C) & cw: n = max(n, {4: 3, 8: 7}[p.passes])
    if p.kind == 'vmem' and p.D and ('x4' in p.mn or 'x3' in p.mn) and set(p.D) & cw and c.kind != 'vmem':
        n = max(n, 2)
    return n

class Prog:
    def __init__(self):
        self.ins = []
        self.lgq = []
        self.vmq = []
        self.smem_pending = False
        self.nops = 0
        self.forced = None
        self.site = 0
        self.sites = {}
        self.vm_limit = 63

    def raw(self, text):
        self.ins.append(I(text))

    def label(self, name):
        self.ins.append(I(name + ':'))

    def _emit_wait(self, vm=None, lg=None):
        key = self.site; self.site += 1
        self.sites[key] = (vm, lg)
        if self.forced is not None:
            vm, lg = self.forced[key]
        parts = []
        if vm is not None:
            assert vm <= 63; parts.append(f'vmcnt({vm})'); self.vmq = self.vmq[len(self.vmq) - vm:] if vm < len(self.vmq) else self.vmq
            if vm == 0: self.vmq = []
        if lg is not None:
            lg = min(lg, 15); parts.append(f'lgkmcnt({lg})')
            if lg == 0: self.lgq = []; self.smem_pending = False
            elif lg < len(self.lgq): self.lgq = self.lgq[len(self.lgq) - lg:]
        if parts: self.ins.append(I('s_waitcnt ' + ' '.join(parts)))

    def _needed(self, regs):
        regs = set(regs); vm = lg = None
        for k, e in enumerate(self.lgq):
            if e & regs: lg = len(self.lgq) - 1 - k
        for k, e in enumerate(self.vmq):
            if e[0] & regs: vm = len(self.vmq) - 1 - k
        return vm, lg

    def wait_tag(self, tag, extra_lg=None):
        vm = None
        for k, e in enumerate(self.vmq):
            if e[1] == tag: vm = len(self.vmq) - 1 - k
        self._emit_wait(vm, extra_lg)

    def wait_lgtag(self, *tags):
        vm, lg = self._needed([('tag', t) for t in tags])
        self._emit_wait(None, lg)

    def need(self, *toks):
        regs = sum((regs_of(t) for t in toks), [])
        vm, lg = self._needed(regs)
        self._emit_wait(vm, lg)

    def wait_all(self, vm=True, lg=True):
        self._emit_wait(0 if vm else None, 0 if lg else None)

    def wait_lg(self, n=0):
        self._emit_wait(None, n)

    def e(self, text, tag=None, junk=False):
        i = I(text, tag)
        if junk: i.wr = []
        if i.kind not in ('meta', 'ctl'):
            vm, lg = self._needed(i.rd + i.wr)
            self._emit_wait(vm, lg)
        if i.mn.startswith(('s_cselect', 's_cbranch_scc', 's_addc', 's_subb')):
            for q in reversed(self.ins):
                if q.kind == 'salu' and not q.mn.startswith(('s_mov', 's_cselect', 's_mul', 's_getpc')):
                    want = ('s_cmp',) if not i.mn.startswith(('s_addc', 's_subb')) else ('s_add_u32', 's_sub_u32')
                    assert q.mn.startswith(want), f'SCC feeding {text!r} comes from {q.text!r}'
                    break
        need = 0; dist = 0
        for p in reversed(self.ins):
            if dist >= 20: break
            if p.kind != 'meta':
                n = need_states(p, i) if i.kind not in ('meta',) else 0
                need = max(need, n - dist)
            dist += p.states()
        while need > 0:
            k = min(need, 16); self.ins.append(I(f's_nop {k-1}')); need -= k; self.nops += 1
        self.ins.append(i)
        if i.kind == 'ds': self.lgq.append(set(i.wr) | ({('tag', tag)} if tag else set()))
        elif i.kind == 'smem':
            self.smem_pending = True; self.lgq.append(set(i.wr))
        elif i.kind == 'vmem' and not i.mn.startswith(('buffer_wbl2', 'buffer_inv')):
            self.vmq.append((set(i.wr), tag))
            assert len(self.vmq) <= self.vm_limit, 'vmcnt overflow'
        return i

    def loop(self, body, label, back):
        import copy
        st0 = (copy.deepcopy(self.lgq), copy.deepcopy(self.vmq), list(self.ins), self.site, self.forced, dict(self.sites))
        comb = None
        for rounds in range(4):
            self.lgq, self.vmq, self.ins, self.site = copy.deepcopy(st0[0]), copy.deepcopy(st0[1]), list(st0[2]), st0[3]
            seen = []
            lens = []
            for it in range(3):
                self.site = st0[3]; self.sites = {}
                self.forced = comb
                n0 = len(self.ins)
                body(); back()
                lens.append(len(self.ins) - n0)
                seen.append(dict(self.sites))
            new = {}
            for k in seen[0]:
                def mn(vals):
                    vals = [v for v in vals if v is not None]
                    return min(vals) if vals else None
                vs = [s[k] for s in seen] + ([comb[k]] if comb else [])
                new[k] = (mn([v[0] for v in vs]), mn([v[1] for v in vs]))
            if new == comb: break
            comb = new
        else:
            raise RuntimeError('loop waits did not converge')
        self.lgq, self.vmq, self.ins, self.site = copy.deepcopy(st0[0]), copy.deepcopy(st0[1]), list(st0[2]), st0[3]
        self.forced = comb
        self.label(label)
        n0 = len(self.ins); body(); back(); first = [x.text for x in self.ins[n0:]]
        end_site = self.site
        keep = list(self.ins); q1 = (copy.deepcopy(self.lgq), copy.deepcopy(self.vmq))
        self.site = st0[3]; n1 = len(self.ins); body(); back(); second = [x.text for x in self.ins[n1:]]
        assert first == second, 'loop body differs between first and steady pass (hazard nops or waits)'
        for a, b in ((q1[0], self.lgq), (q1[1], self.vmq)):
            n = min(len(a), len(b))
            assert n == 0 or a[len(a)-n:] == b[len(b)-n:], 'queue tails differ after loop'
        if len(q1[0]) > len(self.lgq): self.lgq = q1[0]
        if len(q1[1]) > len(self.vmq): self.vmq = q1[1]
        self.ins = keep; self.site = end_site; self.forced = st0[4]; self.sites = st0[5]

    def snapshot(self):
        import copy
        return (copy.deepcopy(self.lgq), copy.deepcopy(self.vmq))
    def restore(self, st):
        import copy
        self.lgq, self.vmq = copy.deepcopy(st[0]), copy.deepcopy(st[1])

    def text(self):
        return '\n'.join(('' if i.kind == 'meta' else '  ') + i.text for i in self.ins)

    def count(self):
        from collections import Counter
        return Counter(i.kind for i in self.ins)


class Alloc:
    def __init__(self, kind, lo, hi):
        self.kind, self.nxt, self.hi = kind, lo, hi
        self.names = {}
    def get(self, name, n=1, align=None):
        al = align or (1 if n == 1 else (2 if n < 4 else 4))
        self.nxt = (self.nxt + al - 1) // al * al
        r = self.nxt; self.nxt += n
        assert self.nxt <= self.hi, f'out of {self.kind} regs at {name}'
        self.names[name] = (r, n)
        return r

def R(kind, base, n=1):
    return f'{kind}{base}' if n == 1 else f'{kind}[{base}:{base+n-1}]'
def v(b, n=1): return R('v', b, n)
def a(b, n=1): return R('a', b, n)
def s(b, n=1): return R('s', b, n)

def interleave(p, mains, fillers, per=2):
    def put(x):
        if callable(x): x()
        elif isinstance(x, tuple): p.e(x[0], x[1])
        else: p.e(x)
    for x in fillers.get(-1, []): put(x)
    for k, m in enumerate(mains):
        put(m)
        for x in fillers.get(k, []): put(x)


class Slots:
    def __init__(self, n, cap=2):
        self.n, self.cap = n, cap
        self.f = {}; self.cnt = {}
    @staticmethod
    def cost(x):
        t = x[0] if isinstance(x, tuple) else x
        if isinstance(t, str) and t.startswith('buffer_'): return 2
        if isinstance(t, str) and t.startswith(('v_exp', 'v_rcp', 'v_rsq')): return 2
        return 1
    def fix(self, k, x, cost=None):
        self.f.setdefault(k, []).append(x); self.cnt[k] = self.cnt.get(k, 0) + (cost or self.cost(x))
    def stream(self, start, items, last=None, gap=0, cap=None):
        k = start; cap = cap or self.cap
        last = self.n - 1 if last is None else last
        used = start
        for x in items:
            c = self.cost(x)
            while self.cnt.get(k, 0) + c > cap and k < last: k += 1
            self.fix(k, x); used = k; k = min(k + gap, last)
        return used

    def spread(self, start, last, items):
        nm = sum(1 for x in items if self.cost(x) == 2)
        step = (last - start + 1) / max(nm, 1); done = 0; k = start
        for x in items:
            c = self.cost(x)
            if c == 2:
                k = max(k, start + int(done * step)); done += 1
            elif done < nm:
                k = max(k, start + int(done * step) - 1)
            while self.cnt.get(k, 0) + c > self.cap and k < last: k += 1
            self.fix(k, x)
        return k
```

```python
from asmlib import *
from layout import *

LOG2E = 1.4426950408889634
def fhex(x):
    import struct
    return '0x%08x' % struct.unpack('<I', struct.pack('<f', x))[0]

SP0 = 147456
STX = 98304
CH = 64 * 9216

def gen_k1(name, stamps=False, opt=()):
    p = Prog(); e = p.e
    V = Alloc('v', 1, 256); A = Alloc('a', 0, 256); SG = Alloc('s', 56, 100)
    SX, SQ, SGt, SU, SWS, SH, SJS, SJD = 4, 8, 12, 16, 20, 24, 28, 32
    KA = 36
    sW, sI, sJ, sT, sQF, sM = (SG.get(n) for n in ('w', 'i', 'j', 't', 'qf', 'm'))
    sWo, sCnt, sM0w, sJob, sJo, sT0, sT1, sT2 = (SG.get(n) for n in ('wo', 'cnt', 'm0w', 'job', 'jo', 't0', 't1', 't2'))
    sH = SG.get('h', 4, 1); sKV = SG.get('kv', 6, 1); sSP = SG.get('sp'); sLine = SG.get('line'); sKm = SG.get('km')
    mk = [SG.get(f'mk{k}', 2) for k in range(4)]
    sSt = SG.get('st', 2); sStO = SG.get('sto'); sOnes = SG.get('ones')
    JP = [36, 37, 38, 39, 42, 43, 44, 45, 46, 47, 50, 51]
    ACC = V.get('acc', 64); PR = V.get('prod', 32)
    vTR = V.get('tr', 6, 1); vDM = V.get('dm', 2, 1); vL16 = V.get('l16'); vJS2 = V.get('spare'); vRS = V.get('rs', 4, 2); vRS2 = V.get('rs2', 4, 2)
    vJS = V.get('js'); vJT = V.get('jt'); vT = V.get('tmp', 8, 4)
    NXV = (256 - V.nxt) // 4
    XV = V.get('xv', 4 * NXV)
    WF = A.get('wf', 24); XA = A.get('xa', 4 * (72 - NXV)); JD = A.get('jd', 64)
    fidx = lambda b, ks: 2 * ks + b if b < 2 else 36 + 2 * ks + b - 2
    def xf(b, ks):
        f = fidx(b, ks)
        return v(XV + 4 * f, 4) if f < NXV else a(XA + 4 * (f - NXV), 4)
    def xf_isv(b, ks): return fidx(b, ks) < NXV
    nstamp = [0]
    def stamp(k=None):
        if not stamps: return
        if k is None:
            k = nstamp[0]; nstamp[0] += 1
        p.wait_lg(0)
        if k == 0:
            e(f'v_mov_b32 {v(vT+7)}, s100'); e(f'v_mov_b32 {v(vT+6)}, 0'); e(f'buffer_store_dword {v(vT+7)}, {v(vT+6)}, {s(SWS,4)}, {s(sStO)} offen offset:40')
        e(f's_memrealtime {s(sSt,2)}'); p.wait_lg(0)
        e(f'v_mov_b32 {v(vT+7)}, {s(sSt)}'); e(f's_add_u32 {s(sT2)}, {s(sStO)}, {4*k}')
        e(f'v_mov_b32 {v(vT+6)}, 0')
        e(f'buffer_store_dword {v(vT+7)}, {v(vT+6)}, {s(SWS,4)}, {s(sT2)} offen')
        e(f's_memtime {s(sSt,2)}'); p.wait_lg(0)
        e(f'v_mov_b32 {v(vT+7)}, {s(sSt)}')
        e(f'buffer_store_dword {v(vT+7)}, {v(vT+6)}, {s(SWS,4)}, {s(sT2)} offen offset:128')

    END = f'{name}_end'
    if stamps: p.raw('s_memrealtime s[100:101]')
    e('s_cmp_ge_u32 s2, 256'); e(f's_cbranch_scc1 {END}')
    e(f's_load_dwordx8 {s(KA,8)}, s[0:1], 0'); e(f's_load_dwordx8 {s(KA+8,8)}, s[0:1], 32'); e(f's_load_dwordx4 {s(KA+16,4)}, s[0:1], 64')
    T = [ACC + 32 + k for k in range(32)] + [PR + k for k in range(32)]
    vLane, vL3, vL4, vC7, vN, vI2, vB = T[0:7]
    vXO = T[8:12]; vXR = T[12:16]
    e(f'v_lshrrev_b32 {v(vB)}, 6, v0'); e(f'v_and_b32 {v(vLane)}, 63, v0')
    e(f'v_readfirstlane_b32 {s(sW)}, {v(vB)}')
    e(f'v_lshrrev_b32 {v(vL3)}, 3, {v(vLane)}'); e(f'v_lshrrev_b32 {v(vL4)}, 4, {v(vLane)}'); e(f'v_and_b32 {v(vC7)}, 7, {v(vLane)}')
    e(f'v_and_b32 {v(vN)}, 15, {v(vLane)}'); e(f'v_lshlrev_b32 {v(vL16)}, 4, {v(vLane)}')
    e(f's_and_b32 {s(sQF)}, s2, 3'); e(f's_bfe_u32 {s(sT0)}, s2, 0x10002'); e(f's_lshr_b32 {s(sT1)}, s2, 5')
    e(f's_lshl_b32 {s(sT0)}, {s(sT0)}, 3'); e(f's_add_u32 {s(sT)}, {s(sT0)}, {s(sT1)}'); e(f's_bfe_u32 {s(sM)}, s2, 0x20003')
    e(f's_lshr_b32 {s(sI)}, {s(sW)}, 1'); e(f's_and_b32 {s(sJ)}, {s(sW)}, 1')
    e(f's_lshl_b32 {s(sM0w)}, {s(sW)}, 12'); e(f's_add_u32 {s(sSP)}, {s(sM0w)}, {SP0}')
    e(f's_lshl_b32 {s(sT0)}, {s(sW)}, 5'); e(f'v_add_u32 {v(vB)}, {s(sT0)}, {v(vL3)}'); e(f'v_mul_u32_u24 {v(vB)}, 1152, {v(vB)}')
    for q in range(4):
        e(f'v_or_b32 {v(vI2)}, {4*(q&1)}, {v(vL4)}'); e(f'v_xor_b32 {v(vI2)}, {v(vI2)}, {v(vC7)}')
        e(f'v_lshl_add_u32 {v(vXO[q])}, {v(vI2)}, 4, {v(vB)}')
        if q: e(f'v_add_u32 {v(vXO[q])}, {8192*q}, {v(vXO[q])}')
    e(f's_mul_i32 {s(sT0)}, {s(sT)}, {128*1152}')
    p.wait_lg(0)
    def srd(r, ptr, nbytes, back=0):
        if back:
            e(f's_sub_u32 {s(r)}, {s(ptr)}, {back}'); e(f's_subb_u32 {s(r+1)}, {s(ptr+1)}, 0')
        else:
            e(f's_mov_b32 {s(r)}, {s(ptr)}'); e(f's_mov_b32 {s(r+1)}, {s(ptr+1)}')
        e(f's_mov_b32 {s(r+2)}, {nbytes + back}'); e(f's_mov_b32 {s(r+3)}, 0x20000')
    srd(SX, KA + 0, S * D * 2)
    for l in range(9):
        e(f's_add_u32 m0, {s(sM0w)}, {l*16384}')
        if l: e(f's_add_u32 {s(sT0)}, {s(sT0)}, 128')
        else: e('s_nop 0')
        for q in range(4):
            e(f'buffer_load_dwordx4 {v(vXO[q])}, {s(SX,4)}, {s(sT0)} offen offset:{1024*q} lds', tag=f'x{l}')
    if 'nocode' not in opt:
        p.raw(f's_getpc_b64 {s(sSt,2)}'); p.label(f'{name}_pc')
        e(f's_lshl_b32 {s(sT1)}, {s(sW)}, 13'); e(f'v_lshlrev_b32 {v(vI2)}, 7, {v(vLane)}'); e(f'v_add_u32 {v(vI2)}, {s(sT1)}, {v(vI2)}')
        for kk in range(3):
            e(f'v_min_u32 {v(vB)}, code_end - {name}_pc - 4, {v(vI2)}')
            e(f'global_load_dword {v(vJS2)}, {v(vB)}, {s(sSt,2)}', junk=True)
            if kk < 2: e(f'v_add_u32 {v(vI2)}, 32768, {v(vI2)}')
    srd(SQ, KA + 2, D * 3 * D * 2, back=4096); srd(SGt, KA + 8, D * F * 2); srd(SU, KA + 10, D * F * 2, back=2048)
    srd(SWS, KA + 18, WS_USED); srd(SH, KA + 18, 0); srd(SJS, KA + 12, 0); srd(SJD, KA + 18, REC_OFF)
    if stamps:
        e(f's_lshl_b32 {s(sStO)}, s2, 2'); e(f's_add_u32 {s(sStO)}, {s(sStO)}, {s(sW)}'); e(f's_lshl_b32 {s(sStO)}, {s(sStO)}, 8'); e(f's_add_u32 {s(sStO)}, {s(sStO)}, {STAMP_OFF}')
    stamp()
    e(f'v_mov_b32 {v(vI2)}, 0'); e(f's_lshl_b32 {s(sT1)}, s2, 7'); e(f's_add_u32 {s(sT1)}, {s(sT1)}, {FLAG_OFF}')
    e(f'buffer_store_dword {v(vI2)}, {v(vI2)}, {s(SWS,4)}, {s(sT1)} offen')
    e(f's_and_b32 {s(sT1)}, s2, 7'); e(f's_lshl_b32 {s(sT1)}, {s(sT1)}, 7'); e(f's_add_u32 {s(sT1)}, {s(sT1)}, {CNT_OFF}')
    e(f'buffer_store_dword {v(vI2)}, {v(vI2)}, {s(SWS,4)}, {s(sT1)} offen')
    vQ = vL4
    e(f'v_lshrrev_b32 {v(vI2)}, 1, {v(vN)}'); e(f'v_xor_b32 {v(vI2)}, {v(vI2)}, {v(vQ)}'); e(f'v_lshlrev_b32 {v(vI2)}, 4, {v(vI2)}')
    e(f'v_lshl_add_u32 {v(vI2)}, {v(vN)}, 7, {v(vI2)}')
    e(f'v_add_u32 {v(vXR[0])}, {s(sM0w)}, {v(vI2)}'); e(f'v_xor_b32 {v(vXR[1])}, 64, {v(vXR[0])}')
    EX = 114688
    e(f's_add_u32 {s(sT0)}, {s(sM0w)}, {EX}'); e(f'v_add_u32 {v(vXR[2])}, {s(sT0)}, {v(vL16)}'); e(f'v_xor_b32 {v(vXR[3])}, 4096, {v(vXR[2])}')
    def wdma_off(dst, stride, rows_per_wave, pp, bit3):
        e(f's_mul_i32 {s(sT0)}, {s(sW)}, {rows_per_wave}'); e(f's_add_u32 {s(sT0)}, {s(sT0)}, {8*pp}')
        e(f'v_add_u32 {v(vB)}, {s(sT0)}, {v(vL3)}'); e(f'v_mul_u32_u24 {v(vB)}, {stride}, {v(vB)}')
        e(f'v_and_b32 {v(vI2)}, 1, {v(vL4)}'); e(f'v_lshlrev_b32 {v(vI2)}, 1, {v(vI2)}')
        if bit3 == 'w':
            e(f's_lshl_b32 {s(sT0)}, {s(sJ)}, 2'); e(f'v_or_b32 {v(vI2)}, {s(sT0)}, {v(vI2)}')
        elif bit3: e(f'v_or_b32 {v(vI2)}, 4, {v(vI2)}')
        e(f'v_xor_b32 {v(vI2)}, {v(vI2)}, {v(vC7)}'); e(f'v_lshl_add_u32 {v(dst)}, {v(vI2)}, 4, {v(vB)}')
        if pp: e(f'v_subrev_u32 {v(dst)}, {1024*pp}, {v(dst)}')
    wdma_off(vDM, 9216, 16, 0, 0); wdma_off(vDM + 1, 9216, 16, 1, 1)
    vQD = T[16:18]; vKD = T[18]
    wdma_off(vQD[0], 3456, 16, 0, 0); wdma_off(vQD[1], 3456, 16, 1, 1); wdma_off(vKD, 3456, 8, 0, 'w')
    vTL, vU = T[19], T[20]
    e(f'v_lshrrev_b32 {v(vI2)}, 3, {v(vN)}'); e(f'v_and_b32 {v(vU)}, 1, {v(vQ)}'); e(f'v_lshl_or_b32 {v(vI2)}, {v(vU)}, 1, {v(vI2)}')
    e(f'v_lshlrev_b32 {v(vI2)}, 5, {v(vI2)}')
    e(f'v_and_b32 {v(vU)}, 3, {v(vN)}'); e(f'v_lshl_or_b32 {v(vI2)}, {v(vU)}, 3, {v(vI2)}')
    e(f'v_lshrrev_b32 {v(vU)}, 2, {v(vN)}'); e(f'v_lshl_or_b32 {v(vTL)}, {v(vU)}, 7, {v(vI2)}')
    e(f'v_lshrrev_b32 {v(vU)}, 1, {v(vQ)}'); e(f'v_lshlrev_b32 {v(vU)}, 12, {v(vU)}')
    e(f'v_and_b32 {v(vI2)}, 1, {v(vQ)}'); e(f'v_lshl_or_b32 {v(vU)}, {v(vI2)}, 10, {v(vU)}'); e(f'v_or_b32 {v(vU)}, {v(vU)}, {v(vTL)}')
    e(f's_lshl_b32 {s(sT0)}, {s(sJ)}, 6'); e(f'v_xor_b32 {v(vTR)}, {s(sT0)}, {v(vU)}'); e(f'v_xor_b32 {v(vTR+1)}, 32, {v(vTR)}')
    for r in (1, 2):
        for tt in range(2): e(f'v_add_u32 {v(vTR+2*r+tt)}, {65536*r}, {v(vTR+tt)}')
    e(f'v_lshlrev_b32 {v(vI2)}, 1, {v(vL4)}'); e(f'v_xor_b32 {v(vI2)}, {v(vI2)}, {v(vC7)}'); e(f'v_lshlrev_b32 {v(vI2)}, 4, {v(vI2)}')
    e(f'v_mul_u32_u24 {v(vU)}, 1152, {v(vL3)}'); e(f'v_add_u32 {v(vJS)}, {v(vU)}, {v(vI2)}')
    e(f'v_lshlrev_b32 {v(vU)}, 9, {v(vQ)}'); e(f'v_add_u32 {v(vU)}, {s(sSP)}, {v(vU)}'); e(f'v_add_u32 {v(vJT)}, {v(vU)}, {v(vTL)}')
    vONE = T[24]; vSEL = T[28]; vF1 = T[34]
    assert vONE % 4 == 0 and vSEL % 4 == 0
    e(f's_mov_b32 {s(sOnes)}, 0x3f803f80')
    for k in range(4): e(f'v_mov_b32 {v(vONE+k)}, {s(sOnes)}')
    e(f'v_mov_b32 {v(vF1)}, 1.0')
    e(f'v_lshrrev_b32 {v(vU)}, 2, {v(vN)}'); e(f'v_cmp_eq_u32 {s(mk[0],2)}, {v(vU)}, {v(vQ)}')
    e(f'v_and_b32 {v(vU)}, 3, {v(vN)}')
    for k in (1, 2, 3): e(f'v_cmp_eq_u32 {s(mk[k],2)}, {k}, {v(vU)}')
    e(f'v_and_b32 {v(vI2)}, 1, {v(vN)}'); e(f'v_lshlrev_b32 {v(vI2)}, 4, {v(vI2)}'); e(f'v_mov_b32 {v(vB)}, 0x3f80'); e(f'v_lshlrev_b32 {v(vB)}, {v(vI2)}, {v(vB)}')
    e(f'v_cndmask_b32 {v(vB)}, 0, {v(vB)}, {s(mk[0],2)}')
    e(f'v_cmp_gt_u32 vcc, 2, {v(vU)}')
    for k in (0, 1, 4, 5): e(f'v_mov_b32 {v(vSEL+k)}, 0')
    e(f'v_cndmask_b32 {v(vSEL+2)}, 0, {v(vB)}, vcc'); e(f'v_cndmask_b32 {v(vSEL+3)}, {v(vB)}, 0, vcc')
    def ffn_dma(slot, tag=None):
        return [f's_add_u32 m0, {s(sM0w)}, {slot*16384}', None,
                (f'buffer_load_dwordx4 {v(vDM)}, {s(SGt,4)}, {s(sWo)} offen lds', tag or f'slot{slot}'),
                (f'buffer_load_dwordx4 {v(vDM+1)}, {s(SGt,4)}, {s(sWo)} offen offset:1024 lds', tag or f'slot{slot}'),
                (f'buffer_load_dwordx4 {v(vDM)}, {s(SU,4)}, {s(sWo)} offen offset:2048 lds', tag or f'slot{slot}'),
                (f'buffer_load_dwordx4 {v(vDM+1)}, {s(SU,4)}, {s(sWo)} offen offset:3072 lds', tag or f'slot{slot}'),
                f's_add_u32 {s(sWo)}, {s(sWo)}, {CH}']
    def put(lst):
        for x in lst:
            if x is None: continue
            if callable(x): x()
            elif isinstance(x, tuple): e(x[0], x[1])
            else: e(x)
    def kv_dma(ks, vk):
        slot = ks % 6; out = []
        for st in range(6):
            if st % 4 == 0: out.append(f's_add_u32 m0, {s(sKm)}, {slot*24576 + (st//4)*4096}')
            out.append((f'buffer_load_dwordx4 {v(vk)}, {s(SQ,4)}, {s(sKV+st)} offen offset:{1024*(st%4)} lds', f'kv{ks}'))
            out.append(f's_add_u32 {s(sKV+st)}, {s(sKV+st)}, {32*3456}')
        return out
    e(f's_mul_i32 {s(sT0)}, {s(sM)}, 5'); e(f's_sub_u32 {s(sT0)}, {s(sT0)}, 2'); e(f's_max_i32 {s(sT0)}, {s(sT0)}, 0')
    e(f's_mul_i32 {s(sT1)}, {s(sQF)}, 18'); e(f's_add_u32 {s(sT0)}, {s(sT0)}, {s(sT1)}')
    e(f's_lshl_b32 {s(sWo)}, {s(sT0)}, 7')
    e(f's_lshl_b32 {s(sT0)}, {s(sT0)}, 1'); e(f's_add_u32 {s(sT0)}, {s(sT0)}, {s(sJ)}'); e(f's_sub_u32 {s(sT0)}, {s(sT0)}, 2')
    e(f's_lshl_b32 {s(sT1)}, {s(sT)}, 3'); e(f's_lshl_b32 {s(sT2)}, {s(sI)}, 2'); e(f's_add_u32 {s(sT1)}, {s(sT1)}, {s(sT2)}')
    e(f's_lshl_b32 {s(sT2)}, {s(sJ)}, 1')
    sTB = [SG.get(f'tb{b}') for b in range(4)]
    for b in range(4):
        e(f's_xor_b32 {s(sTB[b])}, {s(sT2)}, {b}'); e(f's_add_u32 {s(sTB[b])}, {s(sTB[b])}, {s(sT1)}')
        e(f's_mul_i32 {s(sH+b)}, {s(sTB[b])}, 144'); e(f's_add_u32 {s(sH+b)}, {s(sH+b)}, {s(sT0)}'); e(f's_lshl_b32 {s(sH+b)}, {s(sH+b)}, 10')
    e(f's_cmp_eq_u32 {s(sM)}, 0'); e(f's_cselect_b32 {s(sCnt)}, 3, 5')
    e(f's_lshl_b32 {s(sJob)}, s2, 2'); e(f's_add_u32 {s(sJob)}, {s(sJob)}, {s(sW)}')
    e(f's_mul_i32 {s(sLine)}, {s(sQF)}, 3'); e(f's_add_u32 {s(sLine)}, {s(sLine)}, {s(sM)}'); e(f's_sub_u32 {s(sLine)}, {s(sLine)}, 1')
    for n in range(2):
        jb = JP[6 * n: 6 * n + 6]
        e(f's_mov_b32 {s(jb[2])}, {F*D*2}')
        e(f's_cmp_lt_u32 {s(sJob)}, {NJOB_WD}')
        e(f's_cselect_b32 {s(jb[0])}, {s(KA+12)}, {s(KA+4)}'); e(f's_cselect_b32 {s(jb[1])}, {s(KA+13)}, {s(KA+5)}')
        e(f's_cselect_b32 {s(jb[2])}, {s(jb[2])}, {D*D*2}'); e(f's_cselect_b32 {s(sT0)}, 0, {NJOB_WD}'); e(f's_cselect_b32 {s(sT2)}, 0, {16*1152}')
        e(f's_sub_u32 {s(sT0)}, {s(sJob)}, {s(sT0)}'); e(f's_mul_i32 {s(sT1)}, {s(sT0)}, 7282'); e(f's_lshr_b32 {s(sT1)}, {s(sT1)}, 16')
        e(f's_mul_i32 {s(jb[3])}, {s(sT1)}, {32*1152 - 9*128}'); e(f's_lshl_b32 {s(sT0)}, {s(sT0)}, 7'); e(f's_add_u32 {s(jb[3])}, {s(jb[3])}, {s(sT0)}')
        e(f's_mul_i32 {s(sT1)}, {s(sT1)}, 13108'); e(f's_lshr_b32 {s(sT1)}, {s(sT1)}, 16'); e(f's_mul_i32 {s(sT1)}, {s(sT1)}, {s(sT2)}')
        e(f's_sub_u32 {s(jb[3])}, {s(jb[3])}, {s(sT1)}')
        e(f's_lshl_b32 {s(jb[4])}, {s(sJob)}, 12'); e(f's_add_u32 {s(jb[4])}, {s(jb[4])}, {WT_OFF}')
        e(f's_cmp_lt_u32 {s(sJob)}, {NJOB}'); e(f's_cselect_b32 {s(jb[2])}, {s(jb[2])}, 0'); e(f's_cselect_b32 {s(jb[5])}, {REC_OFF}, 0')
        if n == 0: e(f's_add_u32 {s(sJob)}, {s(sJob)}, 1024')
    QB = 40960
    sQo = sKV
    e(f's_lshl_b32 {s(sT0)}, {s(sQF)}, 8')
    for st in range(6):
        e(f's_add_u32 {s(sKV+st)}, {s(sT0)}, {4096 + 1152*(1 + st//3) + 128*(st%3) - 1024*(st%4)}')
    e(f's_mul_i32 {s(sKm)}, {s(sW)}, 6144')
    e(f's_lshl_b32 {s(sT0)}, {s(sLine)}, 7'); e(f's_add_u32 {s(sT0)}, {s(sT0)}, 4096'); e(f's_lshr_b32 {s(sT1)}, {s(sM0w)}, 1')
    e(f's_cmp_eq_u32 {s(sM)}, 0'); e(f's_cselect_b32 {s(sKV)}, {s(sKV)}, {s(sT0)}'); e(f's_cselect_b32 {s(sKm)}, {s(sKm)}, {s(sT1)}')
    vTc = [T[21], T[22]]; sTc = [SX, SX + 1]
    e(f's_lshl_b32 {s(sT1)}, s2, 2'); e(f's_add_u32 {s(sT1)}, {s(sT1)}, {s(sW)}')
    e(f'v_lshlrev_b32 {v(vU)}, 7, {v(vLane)}'); e(f'v_mov_b32 {v(vI2)}, 0x40000000')
    for n, per in enumerate((41, 16)):
        e(f's_mul_i32 {s(sTc[n])}, {s(sT1)}, {per*128}')
        e(f'v_cmp_gt_u32 vcc, {per}, {v(vLane)}'); e(f'v_cndmask_b32 {v(vTc[n])}, {v(vI2)}, {v(vU)}, vcc')
    e(f's_add_u32 {s(sTc[1])}, {s(sTc[1])}, 4096'); e(f's_mov_b32 {s(SJS+2)}, {F*D*2}')
    junk = lambda t: (lambda: e(t, junk=True))
    touches = [junk(f'buffer_load_dword {v(vJS2)}, {v(vTc[1])}, {s(SQ,4)}, {s(sTc[1])} offen'),
               junk(f'buffer_load_dword {v(vJS2)}, {v(vTc[0])}, {s(SGt,4)}, {s(sTc[0])} offen'),
               junk(f'buffer_load_dword {v(vJS2)}, {v(vTc[0])}, {s(SU,4)}, {s(sTc[0])} offen offset:2048')]
    if 'notouchd' not in opt: touches.append(junk(f'buffer_load_dword {v(vJS2)}, {v(vTc[0])}, {s(SJS,4)}, {s(sTc[0])} offen'))
    if 'notouch' in opt: touches = []
    SUM = lambda b: ACC + 4 * b
    SQ_ = lambda b: ACC + 8 + 4 * b
    pend = []
    def stats(b, ks):
        c0 = '0' if ks == 0 else v(SUM(b), 4); c1 = '0' if ks == 0 else v(SQ_(b), 4)
        e(f'v_mfma_f32_16x16x32_bf16 {v(SUM(b),4)}, {v(vONE,4)}, {xf(b,ks)}, {c0}')
        e(f'v_mfma_f32_16x16x32_bf16 {v(SQ_(b),4)}, {xf(b,ks)}, {xf(b,ks)}, {c1}')
    for l in range(9):
        p.wait_tag(f'x{l}')
        if l in (4, 8):
            for k in range(2): e(f'v_add_u32 {v(vXR[k])}, 65536, {v(vXR[k])}')
        cur = []
        for kk in range(2):
            for b in range(2):
                e(f'ds_read_b128 {xf(b, 2*l+kk)}, {v(vXR[kk])} offset:{(l%4)*16384 + b*2048}')
                cur.append((b, 2 * l + kk))
        while pend: stats(*pend.pop(0))
        pend = cur
    p.wait_lg(0); e('s_barrier')
    stamp()
    while pend: stats(*pend.pop(0))
    st0 = p.snapshot()
    tmpv = T[36]
    CT = [T[40 + 8 * k] for k in range(3)]
    order = [(b, ks) for ks in range(18) for b in range(2)]
    def center(early, mid, late):
        mem = list(early)
        if 'c_late' in opt: mem, late = [], list(early) + list(mid) + list(late); mid = []
        def one():
            while mem:
                x = mem.pop(0); put([x])
                if callable(x) or isinstance(x, tuple): break
        one()
        for b in range(2):
            for r in range(4): e(f'v_mul_f32 {v(SUM(b)+r)}, {fhex(-1.0/576)}, {v(SUM(b)+r)}')
            one()
        extra = []
        for b in range(2):
            q_ = SQ_(b)
            extra += [f'v_cndmask_b32 {v(tmpv+b)}, {v(q_)}, {v(q_+1)}, {s(mk[1],2)}', f'v_cndmask_b32 {v(tmpv+b)}, {v(tmpv+b)}, {v(q_+2)}, {s(mk[2],2)}',
                      f'v_cndmask_b32 {v(tmpv+b)}, {v(tmpv+b)}, {v(q_+3)}, {s(mk[3],2)}', f'v_cndmask_b32 {v(tmpv+b)}, 0, {v(tmpv+b)}, {s(mk[0],2)}']
        extra += [None] + [f'v_mfma_f32_16x16x4_f32 {v(SQ_(b),4)}, {v(vF1)}, {v(tmpv+b)}, 0' for b in range(2)]
        extra += [f'v_mul_f32 {v(tmpv+b)}, {v(SUM(b))}, {v(SUM(b))}' for b in range(2)] + [f's_mov_b32 {s(sT0)}, {fhex(1.0/576)}', None, None]
        for b in range(2):
            extra += [f'v_fma_f32 {v(tmpv+b)}, {v(SQ_(b))}, {s(sT0)}, -{v(tmpv+b)}', f'v_max_f32 {v(tmpv+b)}, 0, {v(tmpv+b)}',
                      f'v_add_f32 {v(tmpv+b)}, {fhex(1e-5)}, {v(tmpv+b)}', f'v_rsq_f32 {v(vRS+b)}, {v(tmpv+b)}', f'v_rcp_f32 {v(vRS2+b)}, {v(tmpv+b)}']
        reads = []
        for n in range(36 + 2):
            pk, wr = [], None
            if n < 36:
                b, ks = order[n]; t = CT[n % 3]
                m = [f'v_mfma_f32_16x16x32_bf16 {v(t,4)}, {v(vSEL+2,4)}, {xf(b,ks)}, {v(SUM(b),4)}',
                     f'v_mfma_f32_16x16x32_bf16 {v(t+4,4)}, {v(vSEL,4)}, {xf(b,ks)}, {v(SUM(b),4)}']
            else: m = [None, None]
            if n >= 2:
                b, ks = order[n - 2]; t = CT[(n - 2) % 3]; l, fi = divmod(n - 2, 4)
                dst = XV + 4 * fidx(b, ks) if xf_isv(b, ks) else t
                pk = [f'v_cvt_pk_bf16_f32 {v(dst+d)}, {v(t+2*d)}, {v(t+2*d+1)}' for d in range(4)]
                wr = (f'ds_write_b128 {v(vXR[2])}, {v(dst,4)} offset:{(l%3)*16384 + fi*1024}', f'xw{l}')
            if 'c_nowr' in opt: wr = None
            put([m[0]] + pk[:2] + [m[1]] + pk[2:] + [wr])
            if n >= 2 and (n - 2) % 4 == 1 and n - 2 >= 4:
                l = (n - 2) // 4 - 1
                p.wait_lgtag(f'xw{l}', f'xr{l-1}', 'sw'); e('s_barrier')
                reads += [(f'ds_read_b128 {xf(2 + fi%2, 2*l + fi//2)}, {v(vXR[3])} offset:{(l%3)*16384 + fi*1024}', f'xr{l}') for fi in range(4)]
                if l == 4:
                    reads += [f'ds_read2st64_b32 {v(vRS+2,2)}, {v(vXR[1])} offset0:0 offset1:1', f'ds_read2st64_b32 {v(vRS2+2,2)}, {v(vXR[1])} offset0:2 offset1:3']
                    reads = [(x, 'xr4') if isinstance(x, str) else x for x in reads]
                if l == 5: mem += list(mid)
                if l == 7: mem += list(late)
            else:
                for _ in range(2):
                    if reads: put([reads.pop(0)])
            for _ in range(2):
                if extra: put([extra.pop(0)])
            if n == 17:
                assert not extra
                e(f'v_lshrrev_b32 {v(vXR[0])}, 2, {v(vL16)}'); e(f's_lshr_b32 {s(sT0)}, {s(sM0w)}, 2'); e(f's_add_u32 {s(sT0)}, {s(sT0)}, {STX}')
                e(f'v_add_u32 {v(vXR[0])}, {s(sT0)}, {v(vXR[0])}'); e(f'v_xor_b32 {v(vXR[1])}, 1024, {v(vXR[0])}')
                e(f'ds_write2st64_b32 {v(vXR[0])}, {v(vRS)}, {v(vRS+1)} offset0:0 offset1:1', 'sw'); e(f'ds_write2st64_b32 {v(vXR[0])}, {v(vRS2)}, {v(vRS2+1)} offset0:2 offset1:3', 'sw')
            one()
        p.wait_lgtag('xw8', 'xr7'); e('s_barrier')
        put([f'ds_read_b128 {xf(2 + fi%2, 16 + fi//2)}, {v(vXR[3])} offset:{2*16384 + fi*1024}' for fi in range(4)])
        put([f'ds_read_b128 {xf(*order[n])}, {v(vXR[2])} offset:{((n//4)%3)*16384 + (n%4)*1024}' for n in range(36) if not xf_isv(*order[n])])
        assert all(n >= 32 for n in range(36) if not xf_isv(*order[n]))
        if 'c_late' in opt: stamp(2)
        while mem: one()
        if 'c_late' not in opt: stamp(2)
    def q_dma(c):
        return [f's_add_u32 m0, {s(sKm)}, {QB + 8192*c}', (f'buffer_load_dwordx4 {v(vQD[0])}, {s(SQ,4)}, {s(sQo)} offen lds', f'q{c}'),
                (f'buffer_load_dwordx4 {v(vQD[1])}, {s(SQ,4)}, {s(sQo)} offen offset:1024 lds', f'q{c}'), f's_add_u32 {s(sQo)}, {s(sQo)}, {64*3456}']
    e(f's_cmp_eq_u32 {s(sM)}, 0'); e(f's_cbranch_scc1 {name}_kv')
    e(f's_cmp_lt_u32 {s(sLine)}, 9'); e(f's_cbranch_scc1 {name}_q')
    center([x for c in range(6) for x in ffn_dma(c)], ffn_dma(6) + touches, ffn_dma(7))
    stF = p.snapshot(); stF = (stF[0], [x for x in stF[1] if str(x[1]).startswith('slot')])
    e(f's_branch {name}_hdr')

    def phi(dst, src, rs, rsl, t0):
        return [f'v_mul_f32 {v(t0)}, {v(src)}, {v(rsl)}', f'v_fma_f32 {v(dst)}, {v(src)}, {v(rs)}, {s(sT1)}',
                f'v_exp_f32_e64 {v(t0)}, {v(t0)} clamp', f'v_max_f32 {v(dst)}, {s(sT1)}, {v(dst)}', f'v_add_f32 {v(dst)}, {v(dst)}, {v(t0)}']
    wf = lambda g, kk: a(WF + 8 * (g % 3) + 4 * kk, 4)
    def tr4(g, base_reg, off, kstride):
        out = []
        for kk in range(2):
            for h in range(2):
                out.append(f'ds_read_b64_tr_b16 {a(WF + 8*(g%3) + 4*kk + 2*h, 2)}, {v(base_reg)} offset:{off + kk*kstride + h*512}')
        return out
    p.label(f'{name}_q'); p.restore(st0)
    center([x for c in range(7) for x in q_dma(c)] + ffn_dma(0) + ffn_dma(1), q_dma(7) + q_dma(8) + touches, [])
    vQT = [ACC + 0, ACC + 1]
    e(f'v_lshrrev_b32 {v(ACC+2)}, 5, v0'); e(f'v_and_b32 {v(ACC+2)}, 1, {v(ACC+2)}'); e(f'v_lshlrev_b32 {v(ACC+2)}, 11, {v(ACC+2)}')
    e(f'v_subrev_u32 {v(ACC+2)}, {QB}, {v(ACC+2)}')
    for tt in range(2): e(f'v_sub_u32 {v(vQT[tt])}, {v(vTR+tt)}, {v(ACC+2)}')
    p.wait_tag('q6'); e('s_barrier')
    qtr = lambda g: tr4(g, vQT[g % 2], ((g // 2) % 4) * 8192 + (32768 if g // 2 == 8 else 0), 4096)
    for x in qtr(0) + qtr(1): e(x)
    nxt_slot = 2
    for g in range(18):
        c, tt = g // 2, g % 2
        mains = []; sl = Slots(8)
        for b in range(4):
            for kk in range(2):
                acc = PR + 16 * tt + 4 * b
                cc = '0' if (c == 0 and kk == 0) else v(acc, 4)
                mains.append(f'v_mfma_f32_16x16x32_bf16 {v(acc,4)}, {wf(g,kk)}, {xf(b, 2*c+kk)}, {cc}')
        sl.fix(-1, lambda g=g: p.need(a(WF + 8 * (g % 3), 8)))
        if g == 10: sl.fix(-1, lambda: p.wait_tag('q8'))
        if g in (2, 6, 10, 14): sl.fix(-1, 's_barrier')
        if g + 2 < 18:
            if g + 2 == 8:
                for tt2 in range(2): sl.fix(-1, f'v_add_u32 {v(vQT[tt2])}, 32768, {v(vQT[tt2])}')
            for k, x in enumerate(qtr(g + 2)): sl.fix(2 * k, x)
        if g in (2, 6, 10, 14):
            sl.stream(0, [x for x in ffn_dma(nxt_slot) if x]); nxt_slot += 1
        interleave(p, mains, sl.f)
    e('s_barrier')
    stamp(3)
    qtail = [x for x in ffn_dma(6) + ffn_dma(7) if x]
    e(f's_mov_b32 {s(sT1)}, {fhex(1e-6)}')
    for b in range(4): e(f'v_mul_f32 {v(ACC+4+b)}, {fhex(LOG2E)}, {v(vRS+b)}')
    for b in range(4):
        seqs = [phi(PR + 16 * tt + 4 * b + r, PR + 16 * tt + 4 * b + r, vRS + b, ACC + 4 + b, ACC + 8 + 4 * tt + r) for tt in range(2) for r in range(4)]
        for k in range(5):
            for sq in seqs: e(sq[k])
            if qtail: put([qtail.pop(0)])
        o = PR + 4 * b
        e(f'v_cvt_pk_bf16_f32 {v(o)}, {v(o)}, {v(o+1)}'); e(f'v_cvt_pk_bf16_f32 {v(o+1)}, {v(o+2)}, {v(o+3)}')
        e(f'v_cvt_pk_bf16_f32 {v(o+2)}, {v(o+16)}, {v(o+17)}'); e(f'v_cvt_pk_bf16_f32 {v(o+3)}, {v(o+18)}, {v(o+19)}')
        e(f's_mul_i32 {s(sT0)}, {s(sTB[b])}, 18'); e(f's_lshl_b32 {s(sT2)}, {s(sLine)}, 1'); e(f's_add_u32 {s(sT0)}, {s(sT0)}, {s(sT2)}'); e(f's_add_u32 {s(sT0)}, {s(sT0)}, {s(sJ)}')
        e(f's_lshl_b32 {s(sT0)}, {s(sT0)}, 10'); e(f's_add_u32 {s(sT0)}, {s(sT0)}, {PQ_OFF}')
        e(f'buffer_store_dwordx4 {v(o,4)}, {v(vL16)}, {s(SWS,4)}, {s(sT0)} offen sc1')
    assert not qtail
    e(f's_branch {name}_hdr')
    p.label(f'{name}_kv'); p.restore(st0)
    center([x for ks in range(4) for x in kv_dma(ks, vKD)], touches, [])
    def kacc(ct, b):
        n = ct * 16 + 4 * b
        return ('v', ACC + n) if n < 96 else ('a', JD + n - 96)
    vKT = [vT + k for k in range(4)]
    e(f'v_and_b32 {v(vT+4)}, 15, v0'); e(f'v_lshlrev_b32 {v(vT+4)}, 2, {v(vT+4)}'); e(f'v_add_u32 {v(vT+4)}, {s(sSP)}, {v(vT+4)}')
    e(f'v_bfe_u32 {v(vT+5)}, v0, 4, 2'); e(f'v_mul_u32_u24 {v(vT+5)}, 6144, {v(vT+5)}')
    e(f'v_and_b32 {v(vT+6)}, 0x1ff, {v(vTR)}'); e(f's_lshl_b32 {s(sT0)}, {s(sJ)}, 6'); e(f'v_xor_b32 {v(vT+6)}, {s(sT0)}, {v(vT+6)}')
    for u in range(4):
        e(f's_add_u32 {s(sT0)}, {s(sQF)}, {u}'); e(f's_and_b32 {s(sT1)}, {s(sT0)}, 3'); e(f's_lshl_b32 {s(sT1)}, {s(sT1)}, 5')
        e(f's_lshr_b32 {s(sT0)}, {s(sT0)}, 2'); e(f's_add_u32 {s(sT0)}, {s(sT0)}, {s(sJ)}'); e(f's_lshl_b32 {s(sT0)}, {s(sT0)}, 10')
        e(f'v_xor_b32 {v(vKT[u])}, {s(sT1)}, {v(vT+6)}'); e(f'v_add3_u32 {v(vKT[u])}, {v(vKT[u])}, {s(sT0)}, {v(vT+5)}')
    vKD2 = vT + 7
    e(f'v_mov_b32 {v(vKD2)}, {v(vKD)}')
    NR, LA = 6, 3
    kfr = lambda n: WF + 4 * (n % NR)
    def ktr(n):
        ks, ct = divmod(n, 10); aa = ct % 5
        off = (ks % 2) * 24576 + (aa // 4) * 1024 + (ct // 5) * 3072
        return [f'ds_read_b64_tr_b16 {a(kfr(n) + 2*h, 2)}, {v(vKT[aa % 4])} offset:{off + 512*h}' for h in range(2)]
    p.wait_tag('kv0'); e('s_barrier')
    for n in range(LA):
        for x in ktr(n): e(x)
    ffn_at = {14: [0], 15: [1, 2], 16: [3], 17: [4, 5]}
    for ks in range(18):
        mains = []; sl = Slots(40)
        for ct in range(10):
            n = ks * 10 + ct
            for b in range(4):
                kd, base = kacc(ct, b); acc = R(kd, base, 4)
                mains.append(f'v_mfma_f32_16x16x32_bf16 {acc}, {xf(b,ks)}, {a(kfr(n),4)}, {"0" if ks == 0 else acc}')
            sl.fix(4 * ct - 1, lambda n=n: p.need(a(kfr(n), 4)))
            if n + LA < 180:
                if (n + LA) % 10 == 0:
                    nk = (n + LA) // 10
                    sl.fix(4 * ct - 1, lambda nk=nk: p.wait_tag(f'kv{nk}')); sl.fix(4 * ct, 's_barrier')
                    if nk % 2 == 0:
                        dlt = 49152 if nk % 6 else -98304
                        for u in range(4): sl.fix(4 * ct - 3 + u // 2, f'v_add_u32 {v(vKT[u])}, {dlt & 0xffffffff:#x}, {v(vKT[u])}')
                t2 = ktr(n + LA)
                late = (n + LA) % 10 == 0
                early = (n + LA) % 10 == 9
                sl.fix(4 * ct + (1 if late else 0), t2[0]); sl.fix(4 * ct + (0 if early else 2), t2[1])
        dm = []
        if ks == 3: sl.stream(30, [f'ds_write_b32 {v(vT+4)}, {v(vRS+b)} offset:{64*b}' for b in range(4)])
        if ks <= 13: dm = kv_dma(ks + 4, vKD2)
        elif ks in ffn_at: dm = [x for t in ffn_at[ks] for x in ffn_dma(t) if x]
        sl.stream(0, dm, last=26)
        interleave(p, mains, sl.f)
    p.wait_lg(0); e('s_barrier')
    put(ffn_dma(6)); put(ffn_dma(7))
    stamp(4)
    e(f'v_bfe_u32 {v(vRS)}, v0, 4, 2'); e(f'v_lshlrev_b32 {v(vRS)}, 4, {v(vRS)}'); e(f'v_add_u32 {v(vRS)}, {s(sSP)}, {v(vRS)}')
    for k in range(4): e(f'v_accvgpr_write_b32 {a(WF+k)}, {s(sOnes)}')
    e(f's_mov_b32 {s(sT1)}, {fhex(1e-6)}')
    def pack8(dstkind, dst, src):
        for d in range(4):
            e(f'v_cvt_pk_bf16_f32 {v(dst+d) if dstkind == "v" else v(src+2*d)}, {v(src+2*d)}, {v(src+2*d+1)}')
        if dstkind == 'a':
            for d in range(4): e(f'v_accvgpr_write_b32 {a(dst+d)}, {v(src+2*d)}')
    PV = {}; PK = {}
    for hb in range(2):
        e(f'ds_read_b128 {v(vT,4)}, {v(vRS)} offset:{128*hb}'); e(f'ds_read_b128 {v(vT+4,4)}, {v(vRS)} offset:{128*hb+64}')
        base = ACC + 80 + 8 * hb
        for k in range(8): e(f'v_mul_f32 {v(base+k)}, {v(base+k)}, {v(vT+k)}')
        pack8('a', WF + 4 + 4 * hb, base); PV[0, hb] = a(WF + 4 + 4 * hb, 4)
        TM = ACC + 80
        for T_ in range(1, 5):
            ab = JD + 16 * (T_ - 1) + 8 * hb
            for k in range(8): e(f'v_accvgpr_read_b32 {v(TM+k)}, {a(ab+k)}')
            for k in range(8): e(f'v_mul_f32 {v(TM+k)}, {v(TM+k)}, {v(vT+k)}')
            pack8('a', ab, TM); PV[T_, hb] = a(ab, 4)
        for k in range(8): e(f'v_mul_f32 {v(TM+k)}, {fhex(LOG2E)}, {v(vT+k)}')
        for aa in range(5):
            base = ACC + 16 * aa + 8 * hb
            for half in range(2):
                tt = [vRS + 1, vRS + 2, vRS + 3, vJS2]
                seqs = [phi(base + 4*half + r, base + 4*half + r, vT + 4*half + r, TM + 4*half + r, tt[r]) for r in range(4)]
                for k in range(5):
                    for sq in seqs: e(sq[k])
            pack8('v', base, base); PK[aa, hb] = v(base, 4)
    e(f's_lshl_b32 {s(sT1)}, {s(sT)}, 1'); e(f's_add_u32 {s(sT1)}, {s(sT1)}, {s(sI)}'); e(f's_lshl_b32 {s(sT1)}, {s(sT1)}, 3')
    e(f's_lshl_b32 {s(sT0)}, {s(sQF)}, 1'); e(f's_add_u32 {s(sT0)}, {s(sT0)}, {s(sJ)}'); e(f's_add_u32 {s(sT1)}, {s(sT1)}, {s(sT0)}')
    e(f's_mul_i32 {s(sT1)}, {s(sT1)}, {18*1024}'); e(f's_add_u32 {s(sT1)}, {s(sT1)}, {KVP_OFF}')
    dt = [ACC + 16 * k + 8 * h + 4 for k in range(5) for h in range(2)]
    outs = [(aa, T_) for (aa, T_) in KV_PAIRS] + [(aa, None) for aa in range(5)]
    pend_st = []
    for u, (aa, T_) in enumerate(outs):
        d = v(dt[u % 10], 4)
        for hb in range(2):
            e(f'v_mfma_f32_16x16x32_bf16 {d}, {PK[aa, hb]}, {a(WF,4) if T_ is None else PV[T_, hb]}, {"0" if hb == 0 else d}')
        pend_st.append((u, d))
        if len(pend_st) > 4 or u == 17:
            while pend_st and (len(pend_st) > 4 or u == 17):
                uu, dd = pend_st.pop(0)
                e(f'buffer_store_dwordx4 {dd}, {v(vL16)}, {s(SWS,4)}, {s(sT1)} offen offset:{1024*(uu%4)} sc1')
                if uu % 4 == 3: e(f's_add_u32 {s(sT1)}, {s(sT1)}, 4096')
    p.label(f'{name}_hdr'); p.restore(stF)
    stamp(5)
    acc = lambda ai, b: ACC + 16 * ai + 4 * b
    def ftr(G):
        G %= 36; c, g = divmod(G, 4)
        return tr4(G, vTR + 2 * (c // 4) + (g >> 1), (c % 4) * 16384 + (g & 1) * 2048, 8192)
    p.wait_tag('slot0'); e('s_barrier')
    for x in ftr(0) + ftr(1): e(x)
    def prod(h, b): return [f'v_mul_f32 {v(PR + 16*h + 4*b + r)}, {v(acc(2*h, b) + r)}, {v(acc(2*h+1, b) + r)}' for r in range(4)]
    def fin(b):
        o = PR + 4 * b
        return ([f'v_mul_f32 {v(o + 16*h + r)}, {v(o + 16*h + r)}, {v(vRS2+b)}' for h in range(2) for r in range(4)] +
                [f'v_cvt_pk_bf16_f32 {v(o)}, {v(o)}, {v(o+1)}', f'v_cvt_pk_bf16_f32 {v(o+1)}, {v(o+2)}, {v(o+3)}',
                 f'v_cvt_pk_bf16_f32 {v(o+2)}, {v(o+16)}, {v(o+17)}', f'v_cvt_pk_bf16_f32 {v(o+3)}, {v(o+18)}, {v(o+19)}',
                 f'buffer_store_dwordx4 {v(o,4)}, {v(vL16)}, {s(SH,4)}, {s(sH+b)} offen sc1', f's_add_u32 {s(sH+b)}, {s(sH+b)}, 2048'])
    def body():
        mains = []; sl = Slots(288)
        for G in range(36):
            c, g = divmod(G, 4)
            for b in range(4):
                for kk in range(2):
                    cc = '0' if (c == 0 and kk == 0) else v(acc(g, b), 4)
                    mains.append(f'v_mfma_f32_16x16x32_bf16 {v(acc(g,b),4)}, {wf(G,kk)}, {xf(b, 2*c+kk)}, {cc}')
            sl.fix(8 * G - 1, lambda G=G: p.need(a(WF + 8 * (G % 3), 8)))
            if g == 2:
                sl.fix(8 * G - 1, lambda c=c: p.wait_tag(f'slot{(c+1)%9}')); sl.fix(8 * G, 's_barrier')
            for k, x in enumerate(ftr(G + 2)): sl.fix(8 * G + 2 * k + (1 if g == 2 else 0), x)
        sl.stream(8 * 33 + 5, prod(0, 0), last=8 * 34 - 1, cap=3)
        sl.stream(8 * 34 + 1, prod(0, 1) + prod(0, 2) + prod(0, 3), last=287)
        sl.stream(0, prod(1, 0) + prod(1, 1) + prod(1, 2) + prod(1, 3), last=15)
        for c in range(9):
            d = [x for x in ffn_dma((c - 1) % 9) if x]
            if c == 0:
                d[-1] = f's_add_u32 {s(sWo)}, {s(sWo)}, {(128 - 8*CH) & 0xffffffff:#x}'
                d += [lambda: put([f's_cmp_eq_u32 {s(sCnt)}, 1', f's_cselect_b32 {s(SGt+2)}, 0, {s(SGt+2)}', f's_cselect_b32 {s(SU+2)}, 0, {s(SU+2)}'])]
            if c < 8: sl.stream(32 * c + 17, d, last=32 * c + 31, gap=1)
            else: sl.stream(32 * c + 17, d, last=287, cap=3)
        j1 = [f's_mov_b32 {s(SJS+q)}, {s(JP[q])}' for q in range(3)] + [f's_mov_b32 {s(sJo)}, {s(JP[3])}', f's_mov_b32 {s(SJD+2)}, {s(JP[5])}']
        k = sl.stream(16, j1, last=31)
        jl = [f's_mov_b32 m0, {s(sSP)}']
        for q in range(4):
            jl += [(f'buffer_load_dwordx4 {v(vJS)}, {s(SJS,4)}, {s(sJo)} offen offset:{1024*q} lds', 'job'), f's_add_u32 {s(sJo)}, {s(sJo)}, 8192']
        k = sl.stream(32, jl, last=47, gap=1)
        k = sl.stream(16, fin(0) + fin(1) + fin(2) + fin(3) + [f's_mov_b32 {s(SH+2)}, {PQ_OFF}'], gap=1)
        j2 = [f's_mov_b32 {s(sJo)}, {s(JP[4])}'] + [f's_mov_b32 {s(JP[q])}, {s(JP[6+q])}' for q in range(6)]
        j2 += [f's_mov_b32 {s(JP[8])}, 0', f's_mov_b32 {s(JP[11])}, 0']
        j2 += [f'v_xor_b32 {v(vT+u)}, {32*u}, {v(vJT)}' for u in range(1, 4)]
        k = sl.stream(k + 1, j2)
        assert k < 32 * 6
        j3 = [lambda: p.wait_tag('job')]
        for u in range(4):
            for h in range(2): j3.append(f'ds_read_b64_tr_b16 {a(JD + 4*u + 2*h, 2)}, {v(vT+u) if u else v(vJT)} offset:{2048*h}')
        k = sl.stream(32 * 6 + 26, j3, gap=1)
        jst = [f'buffer_store_dwordx4 {a(JD+4*u,4)}, {v(vL16)}, {s(SJD,4)}, {s(sJo)} offen offset:{1024*u} sc1' for u in range(4)]
        k = sl.stream(k + 2, jst, gap=3)
        assert k < 8 * 33
        def keep(x):
            t = x[0] if isinstance(x, tuple) else x
            if not isinstance(t, str): return True
            if 'nodma' in opt and t.endswith('lds'): return False
            if 'nobar' in opt and t == 's_barrier': return False
            if 'nost' in opt and t.startswith('buffer_store'): return False
            if 'notr' in opt and t.startswith('ds_read'): return False
            if 'novalu' in opt and t.startswith('v_'): return False
            return True
        interleave(p, mains, {k_: [x for x in l_ if keep(x)] for k_, l_ in sl.f.items()})
    def back():
        e(f's_sub_u32 {s(sCnt)}, {s(sCnt)}, 1'); e(f's_cmp_lg_u32 {s(sCnt)}, 0'); e(f's_cbranch_scc1 {name}_loop')
    p.loop(body, f'{name}_loop', back)
    stamp(6)
    for b in range(4):
        for x in prod(1, b): e(x)
    for b in range(4):
        for x in fin(b): e(x)
    p.wait_all()
    stamp(7)
    p.label(END)
    return p, V.nxt, A.nxt, NXV
```

```python
from asmlib import *
from layout import *

LOG2E = 1.4426950408889634
def fhex(x):
    import struct
    return '0x%08x' % struct.unpack('<I', struct.pack('<f', x))[0]

SP0 = 147456
STX = 98304
CH = 64 * 9216

def gen_k1(name, stamps=False, opt=()):
    p = Prog(); e = p.e
    V = Alloc('v', 1, 256); A = Alloc('a', 0, 256); SG = Alloc('s', 56, 100)
    SX, SQ, SGt, SU, SWS, SH, SJS, SJD = 4, 8, 12, 16, 20, 24, 28, 32
    KA = 36
    sW, sI, sJ, sT, sQF, sM = (SG.get(n) for n in ('w', 'i', 'j', 't', 'qf', 'm'))
    sWo, sCnt, sM0w, sJob, sJo, sT0, sT1, sT2 = (SG.get(n) for n in ('wo', 'cnt', 'm0w', 'job', 'jo', 't0', 't1', 't2'))
    sH = SG.get('h', 4, 1); sKV = SG.get('kv', 6, 1); sSP = SG.get('sp'); sLine = SG.get('line'); sKm = SG.get('km')
    mk = [SG.get(f'mk{k}', 2) for k in range(4)]
    sSt = SG.get('st', 2); sStO = SG.get('sto'); sOnes = SG.get('ones')
    JP = [36, 37, 38, 39, 42, 43, 44, 45, 46, 47, 50, 51]
    ACC = V.get('acc', 64); PR = V.get('prod', 32)
    vTR = V.get('tr', 6, 1); vDM = V.get('dm', 2, 1); vL16 = V.get('l16'); vJS2 = V.get('spare'); vRS = V.get('rs', 4, 2); vRS2 = V.get('rs2', 4, 2)
    vJS = V.get('js'); vJT = V.get('jt'); vT = V.get('tmp', 8, 4)
    NXV = (256 - V.nxt) // 4
    XV = V.get('xv', 4 * NXV)
    WF = A.get('wf', 24); XA = A.get('xa', 4 * (72 - NXV)); JD = A.get('jd', 64)
    fidx = lambda b, ks: 2 * ks + b if b < 2 else 36 + 2 * ks + b - 2
    def xf(b, ks):
        f = fidx(b, ks)
        return v(XV + 4 * f, 4) if f < NXV else a(XA + 4 * (f - NXV), 4)
    def xf_isv(b, ks): return fidx(b, ks) < NXV
    nstamp = [0]
    def stamp(k=None):
        if not stamps: return
        if k is None:
            k = nstamp[0]; nstamp[0] += 1
        p.wait_lg(0)
        if k == 0:
            e(f'v_mov_b32 {v(vT+7)}, s100'); e(f'v_mov_b32 {v(vT+6)}, 0'); e(f'buffer_store_dword {v(vT+7)}, {v(vT+6)}, {s(SWS,4)}, {s(sStO)} offen offset:40')
        e(f's_memrealtime {s(sSt,2)}'); p.wait_lg(0)
        e(f'v_mov_b32 {v(vT+7)}, {s(sSt)}'); e(f's_add_u32 {s(sT2)}, {s(sStO)}, {4*k}')
        e(f'v_mov_b32 {v(vT+6)}, 0')
        e(f'buffer_store_dword {v(vT+7)}, {v(vT+6)}, {s(SWS,4)}, {s(sT2)} offen')
        e(f's_memtime {s(sSt,2)}'); p.wait_lg(0)
        e(f'v_mov_b32 {v(vT+7)}, {s(sSt)}')
        e(f'buffer_store_dword {v(vT+7)}, {v(vT+6)}, {s(SWS,4)}, {s(sT2)} offen offset:128')

    END = f'{name}_end'
    if stamps: p.raw('s_memrealtime s[100:101]')
    e('s_cmp_ge_u32 s2, 256'); e(f's_cbranch_scc1 {END}')
    e(f's_load_dwordx8 {s(KA,8)}, s[0:1], 0'); e(f's_load_dwordx8 {s(KA+8,8)}, s[0:1], 32'); e(f's_load_dwordx4 {s(KA+16,4)}, s[0:1], 64')
    T = [ACC + 32 + k for k in range(32)] + [PR + k for k in range(32)]
    vLane, vL3, vL4, vC7, vN, vI2, vB = T[0:7]
    vXO = T[8:12]; vXR = T[12:16]
    e(f'v_lshrrev_b32 {v(vB)}, 6, v0'); e(f'v_and_b32 {v(vLane)}, 63, v0')
    e(f'v_readfirstlane_b32 {s(sW)}, {v(vB)}')
    e(f'v_lshrrev_b32 {v(vL3)}, 3, {v(vLane)}'); e(f'v_lshrrev_b32 {v(vL4)}, 4, {v(vLane)}'); e(f'v_and_b32 {v(vC7)}, 7, {v(vLane)}')
    e(f'v_and_b32 {v(vN)}, 15, {v(vLane)}'); e(f'v_lshlrev_b32 {v(vL16)}, 4, {v(vLane)}')
    e(f's_and_b32 {s(sQF)}, s2, 3'); e(f's_bfe_u32 {s(sT0)}, s2, 0x10002'); e(f's_lshr_b32 {s(sT1)}, s2, 5')
    e(f's_lshl_b32 {s(sT0)}, {s(sT0)}, 3'); e(f's_add_u32 {s(sT)}, {s(sT0)}, {s(sT1)}'); e(f's_bfe_u32 {s(sM)}, s2, 0x20003')
    e(f's_lshr_b32 {s(sI)}, {s(sW)}, 1'); e(f's_and_b32 {s(sJ)}, {s(sW)}, 1')
    e(f's_lshl_b32 {s(sM0w)}, {s(sW)}, 12'); e(f's_add_u32 {s(sSP)}, {s(sM0w)}, {SP0}')
    e(f's_lshl_b32 {s(sT0)}, {s(sW)}, 5'); e(f'v_add_u32 {v(vB)}, {s(sT0)}, {v(vL3)}'); e(f'v_mul_u32_u24 {v(vB)}, 1152, {v(vB)}')
    for q in range(4):
        e(f'v_or_b32 {v(vI2)}, {4*(q&1)}, {v(vL4)}'); e(f'v_xor_b32 {v(vI2)}, {v(vI2)}, {v(vC7)}')
        e(f'v_lshl_add_u32 {v(vXO[q])}, {v(vI2)}, 4, {v(vB)}')
        if q: e(f'v_add_u32 {v(vXO[q])}, {8192*q}, {v(vXO[q])}')
    e(f's_mul_i32 {s(sT0)}, {s(sT)}, {128*1152}')
    p.wait_lg(0)
    def srd(r, ptr, nbytes, back=0):
        if back:
            e(f's_sub_u32 {s(r)}, {s(ptr)}, {back}'); e(f's_subb_u32 {s(r+1)}, {s(ptr+1)}, 0')
        else:
            e(f's_mov_b32 {s(r)}, {s(ptr)}'); e(f's_mov_b32 {s(r+1)}, {s(ptr+1)}')
        e(f's_mov_b32 {s(r+2)}, {nbytes + back}'); e(f's_mov_b32 {s(r+3)}, 0x20000')
    srd(SX, KA + 0, S * D * 2)
    for l in range(9):
        e(f's_add_u32 m0, {s(sM0w)}, {l*16384}')
        if l: e(f's_add_u32 {s(sT0)}, {s(sT0)}, 128')
        else: e('s_nop 0')
        for q in range(4):
            e(f'buffer_load_dwordx4 {v(vXO[q])}, {s(SX,4)}, {s(sT0)} offen offset:{1024*q} lds', tag=f'x{l}')
    if 'nocode' not in opt:
        p.raw(f's_getpc_b64 {s(sSt,2)}'); p.label(f'{name}_pc')
        e(f's_lshl_b32 {s(sT1)}, {s(sW)}, 13'); e(f'v_lshlrev_b32 {v(vI2)}, 7, {v(vLane)}'); e(f'v_add_u32 {v(vI2)}, {s(sT1)}, {v(vI2)}')
        for kk in range(3):
            e(f'v_min_u32 {v(vB)}, code_end - {name}_pc - 4, {v(vI2)}')
            e(f'global_load_dword {v(vJS2)}, {v(vB)}, {s(sSt,2)}', junk=True)
            if kk < 2: e(f'v_add_u32 {v(vI2)}, 32768, {v(vI2)}')
    srd(SQ, KA + 2, D * 3 * D * 2, back=4096); srd(SGt, KA + 8, D * F * 2); srd(SU, KA + 10, D * F * 2, back=2048)
    srd(SWS, KA + 18, WS_USED); srd(SH, KA + 18, 0); srd(SJS, KA + 12, 0); srd(SJD, KA + 18, REC_OFF)
    if stamps:
        e(f's_lshl_b32 {s(sStO)}, s2, 2'); e(f's_add_u32 {s(sStO)}, {s(sStO)}, {s(sW)}'); e(f's_lshl_b32 {s(sStO)}, {s(sStO)}, 8'); e(f's_add_u32 {s(sStO)}, {s(sStO)}, {STAMP_OFF}')
    stamp()
    e(f'v_mov_b32 {v(vI2)}, 0'); e(f's_lshl_b32 {s(sT1)}, s2, 7'); e(f's_add_u32 {s(sT1)}, {s(sT1)}, {FLAG_OFF}')
    e(f'v_and_b32 {v(vB)}, 3, v0'); e(f'v_lshlrev_b32 {v(vB)}, 2, {v(vB)}')
    e(f'buffer_store_dword {v(vI2)}, {v(vB)}, {s(SWS,4)}, {s(sT1)} offen')
    e(f's_and_b32 {s(sT1)}, s2, 7'); e(f's_lshl_b32 {s(sT1)}, {s(sT1)}, 7'); e(f's_add_u32 {s(sT1)}, {s(sT1)}, {CNT_OFF}')
    e(f'buffer_store_dword {v(vI2)}, {v(vI2)}, {s(SWS,4)}, {s(sT1)} offen')
    vQ = vL4
    e(f'v_lshrrev_b32 {v(vI2)}, 1, {v(vN)}'); e(f'v_xor_b32 {v(vI2)}, {v(vI2)}, {v(vQ)}'); e(f'v_lshlrev_b32 {v(vI2)}, 4, {v(vI2)}')
    e(f'v_lshl_add_u32 {v(vI2)}, {v(vN)}, 7, {v(vI2)}')
    e(f'v_add_u32 {v(vXR[0])}, {s(sM0w)}, {v(vI2)}'); e(f'v_xor_b32 {v(vXR[1])}, 64, {v(vXR[0])}')
    EX = 114688
    e(f's_add_u32 {s(sT0)}, {s(sM0w)}, {EX}'); e(f'v_add_u32 {v(vXR[2])}, {s(sT0)}, {v(vL16)}'); e(f'v_xor_b32 {v(vXR[3])}, 4096, {v(vXR[2])}')
    def wdma_off(dst, stride, rows_per_wave, pp, bit3):
        e(f's_mul_i32 {s(sT0)}, {s(sW)}, {rows_per_wave}'); e(f's_add_u32 {s(sT0)}, {s(sT0)}, {8*pp}')
        e(f'v_add_u32 {v(vB)}, {s(sT0)}, {v(vL3)}'); e(f'v_mul_u32_u24 {v(vB)}, {stride}, {v(vB)}')
        e(f'v_and_b32 {v(vI2)}, 1, {v(vL4)}'); e(f'v_lshlrev_b32 {v(vI2)}, 1, {v(vI2)}')
        if bit3 == 'w':
            e(f's_lshl_b32 {s(sT0)}, {s(sJ)}, 2'); e(f'v_or_b32 {v(vI2)}, {s(sT0)}, {v(vI2)}')
        elif bit3: e(f'v_or_b32 {v(vI2)}, 4, {v(vI2)}')
        e(f'v_xor_b32 {v(vI2)}, {v(vI2)}, {v(vC7)}'); e(f'v_lshl_add_u32 {v(dst)}, {v(vI2)}, 4, {v(vB)}')
        if pp: e(f'v_subrev_u32 {v(dst)}, {1024*pp}, {v(dst)}')
    wdma_off(vDM, 9216, 16, 0, 0); wdma_off(vDM + 1, 9216, 16, 1, 1)
    vQD = T[16:18]; vKD = T[18]
    wdma_off(vQD[0], 3456, 16, 0, 0); wdma_off(vQD[1], 3456, 16, 1, 1); wdma_off(vKD, 3456, 8, 0, 'w')
    vTL, vU = T[19], T[20]
    e(f'v_lshrrev_b32 {v(vI2)}, 3, {v(vN)}'); e(f'v_and_b32 {v(vU)}, 1, {v(vQ)}'); e(f'v_lshl_or_b32 {v(vI2)}, {v(vU)}, 1, {v(vI2)}')
    e(f'v_lshlrev_b32 {v(vI2)}, 5, {v(vI2)}')
    e(f'v_and_b32 {v(vU)}, 3, {v(vN)}'); e(f'v_lshl_or_b32 {v(vI2)}, {v(vU)}, 3, {v(vI2)}')
    e(f'v_lshrrev_b32 {v(vU)}, 2, {v(vN)}'); e(f'v_lshl_or_b32 {v(vTL)}, {v(vU)}, 7, {v(vI2)}')
    e(f'v_lshrrev_b32 {v(vU)}, 1, {v(vQ)}'); e(f'v_lshlrev_b32 {v(vU)}, 12, {v(vU)}')
    e(f'v_and_b32 {v(vI2)}, 1, {v(vQ)}'); e(f'v_lshl_or_b32 {v(vU)}, {v(vI2)}, 10, {v(vU)}'); e(f'v_or_b32 {v(vU)}, {v(vU)}, {v(vTL)}')
    e(f's_lshl_b32 {s(sT0)}, {s(sJ)}, 6'); e(f'v_xor_b32 {v(vTR)}, {s(sT0)}, {v(vU)}'); e(f'v_xor_b32 {v(vTR+1)}, 32, {v(vTR)}')
    for r in (1, 2):
        for tt in range(2): e(f'v_add_u32 {v(vTR+2*r+tt)}, {65536*r}, {v(vTR+tt)}')
    e(f'v_lshlrev_b32 {v(vI2)}, 1, {v(vL4)}'); e(f'v_xor_b32 {v(vI2)}, {v(vI2)}, {v(vC7)}'); e(f'v_lshlrev_b32 {v(vI2)}, 4, {v(vI2)}')
    e(f'v_mul_u32_u24 {v(vU)}, 1152, {v(vL3)}'); e(f'v_add_u32 {v(vJS)}, {v(vU)}, {v(vI2)}')
    e(f'v_lshlrev_b32 {v(vU)}, 9, {v(vQ)}'); e(f'v_add_u32 {v(vU)}, {s(sSP)}, {v(vU)}'); e(f'v_add_u32 {v(vJT)}, {v(vU)}, {v(vTL)}')
    vONE = T[24]; vSEL = T[28]; vF1 = T[34]
    assert vONE % 4 == 0 and vSEL % 4 == 0
    e(f's_mov_b32 {s(sOnes)}, 0x3f803f80')
    for k in range(4): e(f'v_mov_b32 {v(vONE+k)}, {s(sOnes)}')
    e(f'v_mov_b32 {v(vF1)}, 1.0')
    e(f'v_lshrrev_b32 {v(vU)}, 2, {v(vN)}'); e(f'v_cmp_eq_u32 {s(mk[0],2)}, {v(vU)}, {v(vQ)}')
    e(f'v_and_b32 {v(vU)}, 3, {v(vN)}')
    for k in (1, 2, 3): e(f'v_cmp_eq_u32 {s(mk[k],2)}, {k}, {v(vU)}')
    e(f'v_and_b32 {v(vI2)}, 1, {v(vN)}'); e(f'v_lshlrev_b32 {v(vI2)}, 4, {v(vI2)}'); e(f'v_mov_b32 {v(vB)}, 0x3f80'); e(f'v_lshlrev_b32 {v(vB)}, {v(vI2)}, {v(vB)}')
    e(f'v_cndmask_b32 {v(vB)}, 0, {v(vB)}, {s(mk[0],2)}')
    e(f'v_cmp_gt_u32 vcc, 2, {v(vU)}')
    for k in (0, 1, 4, 5): e(f'v_mov_b32 {v(vSEL+k)}, 0')
    e(f'v_cndmask_b32 {v(vSEL+2)}, 0, {v(vB)}, vcc'); e(f'v_cndmask_b32 {v(vSEL+3)}, {v(vB)}, 0, vcc')
    def ffn_dma(slot, tag=None):
        return [f's_add_u32 m0, {s(sM0w)}, {slot*16384}', None,
                (f'buffer_load_dwordx4 {v(vDM)}, {s(SGt,4)}, {s(sWo)} offen lds', tag or f'slot{slot}'),
                (f'buffer_load_dwordx4 {v(vDM+1)}, {s(SGt,4)}, {s(sWo)} offen offset:1024 lds', tag or f'slot{slot}'),
                (f'buffer_load_dwordx4 {v(vDM)}, {s(SU,4)}, {s(sWo)} offen offset:2048 lds', tag or f'slot{slot}'),
                (f'buffer_load_dwordx4 {v(vDM+1)}, {s(SU,4)}, {s(sWo)} offen offset:3072 lds', tag or f'slot{slot}'),
                f's_add_u32 {s(sWo)}, {s(sWo)}, {CH}']
    def put(lst):
        for x in lst:
            if x is None: continue
            if callable(x): x()
            elif isinstance(x, tuple): e(x[0], x[1])
            else: e(x)
    def kv_dma(ks, vk):
        slot = ks % 6; out = []
        for st in range(6):
            if st % 4 == 0: out.append(f's_add_u32 m0, {s(sKm)}, {slot*24576 + (st//4)*4096}')
            out.append((f'buffer_load_dwordx4 {v(vk)}, {s(SQ,4)}, {s(sKV+st)} offen offset:{1024*(st%4)} lds', f'kv{ks}'))
            out.append(f's_add_u32 {s(sKV+st)}, {s(sKV+st)}, {32*3456}')
        return out
    e(f's_mul_i32 {s(sT0)}, {s(sM)}, 5'); e(f's_sub_u32 {s(sT0)}, {s(sT0)}, 2'); e(f's_max_i32 {s(sT0)}, {s(sT0)}, 0')
    e(f's_mul_i32 {s(sT1)}, {s(sQF)}, 18'); e(f's_add_u32 {s(sT0)}, {s(sT0)}, {s(sT1)}')
    e(f's_lshl_b32 {s(sWo)}, {s(sT0)}, 7')
    e(f's_lshl_b32 {s(sT0)}, {s(sT0)}, 1'); e(f's_add_u32 {s(sT0)}, {s(sT0)}, {s(sJ)}'); e(f's_sub_u32 {s(sT0)}, {s(sT0)}, 2')
    e(f's_lshl_b32 {s(sT1)}, {s(sT)}, 3'); e(f's_lshl_b32 {s(sT2)}, {s(sI)}, 2'); e(f's_add_u32 {s(sT1)}, {s(sT1)}, {s(sT2)}')
    e(f's_lshl_b32 {s(sT2)}, {s(sJ)}, 1')
    sTB = [SG.get(f'tb{b}') for b in range(4)]
    for b in range(4):
        e(f's_xor_b32 {s(sTB[b])}, {s(sT2)}, {b}'); e(f's_add_u32 {s(sTB[b])}, {s(sTB[b])}, {s(sT1)}')
        e(f's_mul_i32 {s(sH+b)}, {s(sTB[b])}, 144'); e(f's_add_u32 {s(sH+b)}, {s(sH+b)}, {s(sT0)}'); e(f's_lshl_b32 {s(sH+b)}, {s(sH+b)}, 10')
    e(f's_cmp_eq_u32 {s(sM)}, 0'); e(f's_cselect_b32 {s(sCnt)}, 3, 5')
    e(f's_lshl_b32 {s(sJob)}, s2, 2'); e(f's_add_u32 {s(sJob)}, {s(sJob)}, {s(sW)}')
    e(f's_mul_i32 {s(sLine)}, {s(sQF)}, 3'); e(f's_add_u32 {s(sLine)}, {s(sLine)}, {s(sM)}'); e(f's_sub_u32 {s(sLine)}, {s(sLine)}, 1')
    for n in range(2):
        jb = JP[6 * n: 6 * n + 6]
        e(f's_mov_b32 {s(jb[2])}, {F*D*2}')
        e(f's_cmp_lt_u32 {s(sJob)}, {NJOB_WD}')
        e(f's_cselect_b32 {s(jb[0])}, {s(KA+12)}, {s(KA+4)}'); e(f's_cselect_b32 {s(jb[1])}, {s(KA+13)}, {s(KA+5)}')
        e(f's_cselect_b32 {s(jb[2])}, {s(jb[2])}, {D*D*2}'); e(f's_cselect_b32 {s(sT0)}, 0, {NJOB_WD}')
        e(f's_sub_u32 {s(sT0)}, {s(sJob)}, {s(sT0)}'); e(f's_mul_i32 {s(sT1)}, {s(sT0)}, 7282'); e(f's_lshr_b32 {s(sT1)}, {s(sT1)}, 16')
        e(f's_mul_i32 {s(jb[3])}, {s(sT1)}, {32*1152 - 9*128}'); e(f's_lshl_b32 {s(sT0)}, {s(sT0)}, 7'); e(f's_add_u32 {s(jb[3])}, {s(jb[3])}, {s(sT0)}')
        e(f's_lshl_b32 {s(jb[4])}, {s(sJob)}, 12'); e(f's_add_u32 {s(jb[4])}, {s(jb[4])}, {WT_OFF}')
        e(f's_cmp_lt_u32 {s(sJob)}, {NJOB}'); e(f's_cselect_b32 {s(jb[2])}, {s(jb[2])}, 0'); e(f's_cselect_b32 {s(jb[5])}, {REC_OFF}, 0')
        if n == 0: e(f's_add_u32 {s(sJob)}, {s(sJob)}, 1024')
    QB = 40960
    sQo = sKV
    e(f's_lshl_b32 {s(sT0)}, {s(sQF)}, 8')
    for st in range(6):
        e(f's_add_u32 {s(sKV+st)}, {s(sT0)}, {4096 + 1152*(1 + st//3) + 128*(st%3) - 1024*(st%4)}')
    e(f's_mul_i32 {s(sKm)}, {s(sW)}, 6144')
    e(f's_lshl_b32 {s(sT0)}, {s(sLine)}, 7'); e(f's_add_u32 {s(sT0)}, {s(sT0)}, 4096'); e(f's_lshr_b32 {s(sT1)}, {s(sM0w)}, 1')
    e(f's_cmp_eq_u32 {s(sM)}, 0'); e(f's_cselect_b32 {s(sKV)}, {s(sKV)}, {s(sT0)}'); e(f's_cselect_b32 {s(sKm)}, {s(sKm)}, {s(sT1)}')
    vTc = [T[21], T[22]]; sTc = [SX, SX + 1]
    e(f's_lshl_b32 {s(sT1)}, s2, 2'); e(f's_add_u32 {s(sT1)}, {s(sT1)}, {s(sW)}')
    e(f'v_lshlrev_b32 {v(vU)}, 7, {v(vLane)}'); e(f'v_mov_b32 {v(vI2)}, 0x40000000')
    for n, per in enumerate((41, 16)):
        e(f's_mul_i32 {s(sTc[n])}, {s(sT1)}, {per*128}')
        e(f'v_cmp_gt_u32 vcc, {per}, {v(vLane)}'); e(f'v_cndmask_b32 {v(vTc[n])}, {v(vI2)}, {v(vU)}, vcc')
    e(f's_add_u32 {s(sTc[1])}, {s(sTc[1])}, 4096'); e(f's_mov_b32 {s(SJS+2)}, {F*D*2}')
    junk = lambda t: (lambda: e(t, junk=True))
    touches = [junk(f'buffer_load_dword {v(vJS2)}, {v(vTc[1])}, {s(SQ,4)}, {s(sTc[1])} offen'),
               junk(f'buffer_load_dword {v(vJS2)}, {v(vTc[0])}, {s(SGt,4)}, {s(sTc[0])} offen'),
               junk(f'buffer_load_dword {v(vJS2)}, {v(vTc[0])}, {s(SU,4)}, {s(sTc[0])} offen offset:2048')]
    if 'notouchd' not in opt: touches.append(junk(f'buffer_load_dword {v(vJS2)}, {v(vTc[0])}, {s(SJS,4)}, {s(sTc[0])} offen'))
    if 'notouch' in opt: touches = []
    SUM = lambda b: ACC + 4 * b
    SQ_ = lambda b: ACC + 8 + 4 * b
    pend = []
    def stats(b, ks):
        c0 = '0' if ks == 0 else v(SUM(b), 4); c1 = '0' if ks == 0 else v(SQ_(b), 4)
        e(f'v_mfma_f32_16x16x32_bf16 {v(SUM(b),4)}, {v(vONE,4)}, {xf(b,ks)}, {c0}')
        e(f'v_mfma_f32_16x16x32_bf16 {v(SQ_(b),4)}, {xf(b,ks)}, {xf(b,ks)}, {c1}')
    for l in range(9):
        p.wait_tag(f'x{l}')
        if l in (4, 8):
            for k in range(2): e(f'v_add_u32 {v(vXR[k])}, 65536, {v(vXR[k])}')
        cur = []
        for kk in range(2):
            for b in range(2):
                e(f'ds_read_b128 {xf(b, 2*l+kk)}, {v(vXR[kk])} offset:{(l%4)*16384 + b*2048}')
                cur.append((b, 2 * l + kk))
        while pend: stats(*pend.pop(0))
        pend = cur
    p.wait_lg(0); e('s_barrier')
    stamp()
    while pend: stats(*pend.pop(0))
    st0 = p.snapshot()
    tmpv = T[36]
    CT = [T[40 + 8 * k] for k in range(3)]
    order = [(b, ks) for ks in range(18) for b in range(2)]
    def center(early, mid, late):
        mem = list(early)
        if 'c_late' in opt: mem, late = [], list(early) + list(mid) + list(late); mid = []
        def one():
            while mem:
                x = mem.pop(0); put([x])
                if callable(x) or isinstance(x, tuple): break
        one()
        for b in range(2):
            for r in range(4): e(f'v_mul_f32 {v(SUM(b)+r)}, {fhex(-1.0/576)}, {v(SUM(b)+r)}')
            one()
        extra = []
        for b in range(2):
            q_ = SQ_(b)
            extra += [f'v_cndmask_b32 {v(tmpv+b)}, {v(q_)}, {v(q_+1)}, {s(mk[1],2)}', f'v_cndmask_b32 {v(tmpv+b)}, {v(tmpv+b)}, {v(q_+2)}, {s(mk[2],2)}',
                      f'v_cndmask_b32 {v(tmpv+b)}, {v(tmpv+b)}, {v(q_+3)}, {s(mk[3],2)}', f'v_cndmask_b32 {v(tmpv+b)}, 0, {v(tmpv+b)}, {s(mk[0],2)}']
        extra += [None] + [f'v_mfma_f32_16x16x4_f32 {v(SQ_(b),4)}, {v(vF1)}, {v(tmpv+b)}, 0' for b in range(2)]
        extra += [f'v_mul_f32 {v(tmpv+b)}, {v(SUM(b))}, {v(SUM(b))}' for b in range(2)] + [f's_mov_b32 {s(sT0)}, {fhex(1.0/576)}', None, None]
        for b in range(2):
            extra += [f'v_fma_f32 {v(tmpv+b)}, {v(SQ_(b))}, {s(sT0)}, -{v(tmpv+b)}', f'v_max_f32 {v(tmpv+b)}, 0, {v(tmpv+b)}',
                      f'v_add_f32 {v(tmpv+b)}, {fhex(1e-5)}, {v(tmpv+b)}', f'v_rsq_f32 {v(vRS+b)}, {v(tmpv+b)}', f'v_rcp_f32 {v(vRS2+b)}, {v(tmpv+b)}']
        reads = []
        for n in range(36 + 2):
            pk, wr = [], None
            if n < 36:
                b, ks = order[n]; t = CT[n % 3]
                m = [f'v_mfma_f32_16x16x32_bf16 {v(t,4)}, {v(vSEL+2,4)}, {xf(b,ks)}, {v(SUM(b),4)}',
                     f'v_mfma_f32_16x16x32_bf16 {v(t+4,4)}, {v(vSEL,4)}, {xf(b,ks)}, {v(SUM(b),4)}']
            else: m = [None, None]
            if n >= 2:
                b, ks = order[n - 2]; t = CT[(n - 2) % 3]; l, fi = divmod(n - 2, 4)
                dst = XV + 4 * fidx(b, ks) if xf_isv(b, ks) else t
                pk = [f'v_cvt_pk_bf16_f32 {v(dst+d)}, {v(t+2*d)}, {v(t+2*d+1)}' for d in range(4)]
                wr = (f'ds_write_b128 {v(vXR[2])}, {v(dst,4)} offset:{(l%3)*16384 + fi*1024}', f'xw{l}')
            if 'c_nowr' in opt: wr = None
            put([m[0]] + pk[:2] + [m[1]] + pk[2:] + [wr])
            if n >= 2 and (n - 2) % 4 == 1 and n - 2 >= 4:
                l = (n - 2) // 4 - 1
                p.wait_lgtag(f'xw{l}', f'xr{l-1}', 'sw'); e('s_barrier')
                reads += [(f'ds_read_b128 {xf(2 + fi%2, 2*l + fi//2)}, {v(vXR[3])} offset:{(l%3)*16384 + fi*1024}', f'xr{l}') for fi in range(4)]
                if l == 4:
                    reads += [f'ds_read2st64_b32 {v(vRS+2,2)}, {v(vXR[1])} offset0:0 offset1:1', f'ds_read2st64_b32 {v(vRS2+2,2)}, {v(vXR[1])} offset0:2 offset1:3']
                    reads = [(x, 'xr4') if isinstance(x, str) else x for x in reads]
                if l == 5: mem += list(mid)
                if l == 7: mem += list(late)
            else:
                for _ in range(2):
                    if reads: put([reads.pop(0)])
            for _ in range(2):
                if extra: put([extra.pop(0)])
            if n == 17:
                assert not extra
                e(f'v_lshrrev_b32 {v(vXR[0])}, 2, {v(vL16)}'); e(f's_lshr_b32 {s(sT0)}, {s(sM0w)}, 2'); e(f's_add_u32 {s(sT0)}, {s(sT0)}, {STX}')
                e(f'v_add_u32 {v(vXR[0])}, {s(sT0)}, {v(vXR[0])}'); e(f'v_xor_b32 {v(vXR[1])}, 1024, {v(vXR[0])}')
                e(f'ds_write2st64_b32 {v(vXR[0])}, {v(vRS)}, {v(vRS+1)} offset0:0 offset1:1', 'sw'); e(f'ds_write2st64_b32 {v(vXR[0])}, {v(vRS2)}, {v(vRS2+1)} offset0:2 offset1:3', 'sw')
            one()
        p.wait_lgtag('xw8', 'xr7'); e('s_barrier')
        put([f'ds_read_b128 {xf(2 + fi%2, 16 + fi//2)}, {v(vXR[3])} offset:{2*16384 + fi*1024}' for fi in range(4)])
        put([f'ds_read_b128 {xf(*order[n])}, {v(vXR[2])} offset:{((n//4)%3)*16384 + (n%4)*1024}' for n in range(36) if not xf_isv(*order[n])])
        assert all(n >= 32 for n in range(36) if not xf_isv(*order[n]))
        if 'c_late' in opt: stamp(2)
        while mem: one()
        if 'c_late' not in opt: stamp(2)
    def q_dma(c):
        return [f's_add_u32 m0, {s(sKm)}, {QB + 8192*c}', (f'buffer_load_dwordx4 {v(vQD[0])}, {s(SQ,4)}, {s(sQo)} offen lds', f'q{c}'),
                (f'buffer_load_dwordx4 {v(vQD[1])}, {s(SQ,4)}, {s(sQo)} offen offset:1024 lds', f'q{c}'), f's_add_u32 {s(sQo)}, {s(sQo)}, {64*3456}']
    e(f's_cmp_eq_u32 {s(sM)}, 0'); e(f's_cbranch_scc1 {name}_kv')
    e(f's_cmp_lt_u32 {s(sLine)}, 9'); e(f's_cbranch_scc1 {name}_q')
    center([x for c in range(6) for x in ffn_dma(c)], ffn_dma(6) + touches, ffn_dma(7))
    stF = p.snapshot(); stF = (stF[0], [x for x in stF[1] if str(x[1]).startswith('slot')])
    e(f's_branch {name}_hdr')

    def phi(dst, src, rs, rsl, t0):
        return [f'v_mul_f32 {v(t0)}, {v(src)}, {v(rsl)}', f'v_fma_f32 {v(dst)}, {v(src)}, {v(rs)}, {s(sT1)}',
                f'v_exp_f32_e64 {v(t0)}, {v(t0)} clamp', f'v_max_f32 {v(dst)}, {s(sT1)}, {v(dst)}', f'v_add_f32 {v(dst)}, {v(dst)}, {v(t0)}']
    wf = lambda g, kk: a(WF + 8 * (g % 3) + 4 * kk, 4)
    def tr4(g, base_reg, off, kstride):
        out = []
        for kk in range(2):
            for h in range(2):
                out.append(f'ds_read_b64_tr_b16 {a(WF + 8*(g%3) + 4*kk + 2*h, 2)}, {v(base_reg)} offset:{off + kk*kstride + h*512}')
        return out
    p.label(f'{name}_q'); p.restore(st0)
    center([x for c in range(7) for x in q_dma(c)] + ffn_dma(0) + ffn_dma(1), q_dma(7) + q_dma(8) + touches, [])
    vQT = [ACC + 0, ACC + 1]
    e(f'v_lshrrev_b32 {v(ACC+2)}, 5, v0'); e(f'v_and_b32 {v(ACC+2)}, 1, {v(ACC+2)}'); e(f'v_lshlrev_b32 {v(ACC+2)}, 11, {v(ACC+2)}')
    e(f'v_subrev_u32 {v(ACC+2)}, {QB}, {v(ACC+2)}')
    for tt in range(2): e(f'v_sub_u32 {v(vQT[tt])}, {v(vTR+tt)}, {v(ACC+2)}')
    p.wait_tag('q6'); e('s_barrier')
    qtr = lambda g: tr4(g, vQT[g % 2], ((g // 2) % 4) * 8192 + (32768 if g // 2 == 8 else 0), 4096)
    for x in qtr(0) + qtr(1): e(x)
    nxt_slot = 2
    for g in range(18):
        c, tt = g // 2, g % 2
        mains = []; sl = Slots(8)
        for b in range(4):
            for kk in range(2):
                acc = PR + 16 * tt + 4 * b
                cc = '0' if (c == 0 and kk == 0) else v(acc, 4)
                mains.append(f'v_mfma_f32_16x16x32_bf16 {v(acc,4)}, {wf(g,kk)}, {xf(b, 2*c+kk)}, {cc}')
        sl.fix(-1, lambda g=g: p.need(a(WF + 8 * (g % 3), 8)))
        if g == 10: sl.fix(-1, lambda: p.wait_tag('q8'))
        if g in (2, 6, 10, 14): sl.fix(-1, 's_barrier')
        if g + 2 < 18:
            if g + 2 == 8:
                for tt2 in range(2): sl.fix(-1, f'v_add_u32 {v(vQT[tt2])}, 32768, {v(vQT[tt2])}')
            for k, x in enumerate(qtr(g + 2)): sl.fix(2 * k, x)
        if g in (2, 6, 10, 14):
            sl.stream(0, [x for x in ffn_dma(nxt_slot) if x]); nxt_slot += 1
        interleave(p, mains, sl.f)
    e('s_barrier')
    stamp(3)
    qtail = [x for x in ffn_dma(6) + ffn_dma(7) if x]
    e(f's_mov_b32 {s(sT1)}, {fhex(1e-6)}')
    for b in range(4): e(f'v_mul_f32 {v(ACC+4+b)}, {fhex(LOG2E)}, {v(vRS+b)}')
    for b in range(4):
        seqs = [phi(PR + 16 * tt + 4 * b + r, PR + 16 * tt + 4 * b + r, vRS + b, ACC + 4 + b, ACC + 8 + 4 * tt + r) for tt in range(2) for r in range(4)]
        for k in range(5):
            for sq in seqs: e(sq[k])
            if qtail: put([qtail.pop(0)])
        o = PR + 4 * b
        e(f'v_cvt_pk_bf16_f32 {v(o)}, {v(o)}, {v(o+1)}'); e(f'v_cvt_pk_bf16_f32 {v(o+1)}, {v(o+2)}, {v(o+3)}')
        e(f'v_cvt_pk_bf16_f32 {v(o+2)}, {v(o+16)}, {v(o+17)}'); e(f'v_cvt_pk_bf16_f32 {v(o+3)}, {v(o+18)}, {v(o+19)}')
        e(f's_mul_i32 {s(sT0)}, {s(sTB[b])}, 18'); e(f's_lshl_b32 {s(sT2)}, {s(sLine)}, 1'); e(f's_add_u32 {s(sT0)}, {s(sT0)}, {s(sT2)}'); e(f's_add_u32 {s(sT0)}, {s(sT0)}, {s(sJ)}')
        e(f's_lshl_b32 {s(sT0)}, {s(sT0)}, 10'); e(f's_add_u32 {s(sT0)}, {s(sT0)}, {PQ_OFF}')
        e(f'buffer_store_dwordx4 {v(o,4)}, {v(vL16)}, {s(SWS,4)}, {s(sT0)} offen sc1')
    assert not qtail
    e(f's_branch {name}_hdr')
    p.label(f'{name}_kv'); p.restore(st0)
    center([x for ks in range(4) for x in kv_dma(ks, vKD)], touches, [])
    def kacc(ct, b):
        n = ct * 16 + 4 * b
        return ('v', ACC + n) if n < 96 else ('a', JD + n - 96)
    vKT = [vT + k for k in range(4)]
    e(f'v_and_b32 {v(vT+4)}, 15, v0'); e(f'v_lshlrev_b32 {v(vT+4)}, 2, {v(vT+4)}'); e(f'v_add_u32 {v(vT+4)}, {s(sSP)}, {v(vT+4)}')
    e(f'v_bfe_u32 {v(vT+5)}, v0, 4, 2'); e(f'v_mul_u32_u24 {v(vT+5)}, 6144, {v(vT+5)}')
    e(f'v_and_b32 {v(vT+6)}, 0x1ff, {v(vTR)}'); e(f's_lshl_b32 {s(sT0)}, {s(sJ)}, 6'); e(f'v_xor_b32 {v(vT+6)}, {s(sT0)}, {v(vT+6)}')
    for u in range(4):
        e(f's_add_u32 {s(sT0)}, {s(sQF)}, {u}'); e(f's_and_b32 {s(sT1)}, {s(sT0)}, 3'); e(f's_lshl_b32 {s(sT1)}, {s(sT1)}, 5')
        e(f's_lshr_b32 {s(sT0)}, {s(sT0)}, 2'); e(f's_add_u32 {s(sT0)}, {s(sT0)}, {s(sJ)}'); e(f's_lshl_b32 {s(sT0)}, {s(sT0)}, 10')
        e(f'v_xor_b32 {v(vKT[u])}, {s(sT1)}, {v(vT+6)}'); e(f'v_add3_u32 {v(vKT[u])}, {v(vKT[u])}, {s(sT0)}, {v(vT+5)}')
    vKD2 = vT + 7
    e(f'v_mov_b32 {v(vKD2)}, {v(vKD)}')
    NR, LA = 6, 3
    kfr = lambda n: WF + 4 * (n % NR)
    def ktr(n):
        ks, ct = divmod(n, 10); aa = ct % 5
        off = (ks % 2) * 24576 + (aa // 4) * 1024 + (ct // 5) * 3072
        return [f'ds_read_b64_tr_b16 {a(kfr(n) + 2*h, 2)}, {v(vKT[aa % 4])} offset:{off + 512*h}' for h in range(2)]
    p.wait_tag('kv0'); e('s_barrier')
    for n in range(LA):
        for x in ktr(n): e(x)
    ffn_at = {14: [0], 15: [1, 2], 16: [3], 17: [4, 5]}
    for ks in range(18):
        mains = []; sl = Slots(40)
        for ct in range(10):
            n = ks * 10 + ct
            for b in range(4):
                kd, base = kacc(ct, b); acc = R(kd, base, 4)
                mains.append(f'v_mfma_f32_16x16x32_bf16 {acc}, {xf(b,ks)}, {a(kfr(n),4)}, {"0" if ks == 0 else acc}')
            sl.fix(4 * ct - 1, lambda n=n: p.need(a(kfr(n), 4)))
            if n + LA < 180:
                if (n + LA) % 10 == 0:
                    nk = (n + LA) // 10
                    sl.fix(4 * ct - 1, lambda nk=nk: p.wait_tag(f'kv{nk}')); sl.fix(4 * ct, 's_barrier')
                    if nk % 2 == 0:
                        dlt = 49152 if nk % 6 else -98304
                        for u in range(4): sl.fix(4 * ct - 3 + u // 2, f'v_add_u32 {v(vKT[u])}, {dlt & 0xffffffff:#x}, {v(vKT[u])}')
                t2 = ktr(n + LA)
                late = (n + LA) % 10 == 0
                early = (n + LA) % 10 == 9
                sl.fix(4 * ct + (1 if late else 0), t2[0]); sl.fix(4 * ct + (0 if early else 2), t2[1])
        dm = []
        if ks == 3: sl.stream(30, [f'ds_write_b32 {v(vT+4)}, {v(vRS+b)} offset:{64*b}' for b in range(4)])
        if ks <= 13: dm = kv_dma(ks + 4, vKD2)
        elif ks in ffn_at: dm = [x for t in ffn_at[ks] for x in ffn_dma(t) if x]
        sl.stream(0, dm, last=26)
        interleave(p, mains, sl.f)
    p.wait_lg(0); e('s_barrier')
    put(ffn_dma(6)); put(ffn_dma(7))
    stamp(4)
    e(f'v_bfe_u32 {v(vRS)}, v0, 4, 2'); e(f'v_lshlrev_b32 {v(vRS)}, 4, {v(vRS)}'); e(f'v_add_u32 {v(vRS)}, {s(sSP)}, {v(vRS)}')
    for k in range(4): e(f'v_accvgpr_write_b32 {a(WF+k)}, {s(sOnes)}')
    e(f's_mov_b32 {s(sT1)}, {fhex(1e-6)}')
    def pack8(dstkind, dst, src):
        for d in range(4):
            e(f'v_cvt_pk_bf16_f32 {v(dst+d) if dstkind == "v" else v(src+2*d)}, {v(src+2*d)}, {v(src+2*d+1)}')
        if dstkind == 'a':
            for d in range(4): e(f'v_accvgpr_write_b32 {a(dst+d)}, {v(src+2*d)}')
    PV = {}; PK = {}
    for hb in range(2):
        e(f'ds_read_b128 {v(vT,4)}, {v(vRS)} offset:{128*hb}'); e(f'ds_read_b128 {v(vT+4,4)}, {v(vRS)} offset:{128*hb+64}')
        base = ACC + 80 + 8 * hb
        for k in range(8): e(f'v_mul_f32 {v(base+k)}, {v(base+k)}, {v(vT+k)}')
        pack8('a', WF + 4 + 4 * hb, base); PV[0, hb] = a(WF + 4 + 4 * hb, 4)
        TM = ACC + 80
        for T_ in range(1, 5):
            ab = JD + 16 * (T_ - 1) + 8 * hb
            for k in range(8): e(f'v_accvgpr_read_b32 {v(TM+k)}, {a(ab+k)}')
            for k in range(8): e(f'v_mul_f32 {v(TM+k)}, {v(TM+k)}, {v(vT+k)}')
            pack8('a', ab, TM); PV[T_, hb] = a(ab, 4)
        for k in range(8): e(f'v_mul_f32 {v(TM+k)}, {fhex(LOG2E)}, {v(vT+k)}')
        for aa in range(5):
            base = ACC + 16 * aa + 8 * hb
            for half in range(2):
                tt = [vRS + 1, vRS + 2, vRS + 3, vJS2]
                seqs = [phi(base + 4*half + r, base + 4*half + r, vT + 4*half + r, TM + 4*half + r, tt[r]) for r in range(4)]
                for k in range(5):
                    for sq in seqs: e(sq[k])
            pack8('v', base, base); PK[aa, hb] = v(base, 4)
    e(f's_lshl_b32 {s(sT1)}, {s(sT)}, 1'); e(f's_add_u32 {s(sT1)}, {s(sT1)}, {s(sI)}'); e(f's_lshl_b32 {s(sT1)}, {s(sT1)}, 3')
    e(f's_lshl_b32 {s(sT0)}, {s(sQF)}, 1'); e(f's_add_u32 {s(sT0)}, {s(sT0)}, {s(sJ)}'); e(f's_add_u32 {s(sT1)}, {s(sT1)}, {s(sT0)}')
    e(f's_mul_i32 {s(sT1)}, {s(sT1)}, {18*1024}'); e(f's_add_u32 {s(sT1)}, {s(sT1)}, {KVP_OFF}')
    dt = [ACC + 16 * k + 8 * h + 4 for k in range(5) for h in range(2)]
    outs = [(aa, T_) for (aa, T_) in KV_PAIRS] + [(aa, None) for aa in range(5)]
    pend_st = []
    for u, (aa, T_) in enumerate(outs):
        d = v(dt[u % 10], 4)
        for hb in range(2):
            e(f'v_mfma_f32_16x16x32_bf16 {d}, {PK[aa, hb]}, {a(WF,4) if T_ is None else PV[T_, hb]}, {"0" if hb == 0 else d}')
        pend_st.append((u, d))
        if len(pend_st) > 4 or u == 17:
            while pend_st and (len(pend_st) > 4 or u == 17):
                uu, dd = pend_st.pop(0)
                e(f'buffer_store_dwordx4 {dd}, {v(vL16)}, {s(SWS,4)}, {s(sT1)} offen offset:{1024*(uu%4)} sc1')
                if uu % 4 == 3: e(f's_add_u32 {s(sT1)}, {s(sT1)}, 4096')
    p.label(f'{name}_hdr'); p.restore(stF)
    stamp(5)
    acc = lambda ai, b: ACC + 16 * ai + 4 * b
    def ftr(G):
        G %= 36; c, g = divmod(G, 4)
        return tr4(G, vTR + 2 * (c // 4) + (g >> 1), (c % 4) * 16384 + (g & 1) * 2048, 8192)
    p.wait_tag('slot0'); e('s_barrier')
    for x in ftr(0) + ftr(1): e(x)
    def prod(h, b): return [f'v_mul_f32 {v(PR + 16*h + 4*b + r)}, {v(acc(2*h, b) + r)}, {v(acc(2*h+1, b) + r)}' for r in range(4)]
    def fin(b):
        o = PR + 4 * b
        return ([f'v_mul_f32 {v(o + 16*h + r)}, {v(o + 16*h + r)}, {v(vRS2+b)}' for h in range(2) for r in range(4)] +
                [f'v_cvt_pk_bf16_f32 {v(o)}, {v(o)}, {v(o+1)}', f'v_cvt_pk_bf16_f32 {v(o+1)}, {v(o+2)}, {v(o+3)}',
                 f'v_cvt_pk_bf16_f32 {v(o+2)}, {v(o+16)}, {v(o+17)}', f'v_cvt_pk_bf16_f32 {v(o+3)}, {v(o+18)}, {v(o+19)}',
                 f'buffer_store_dwordx4 {v(o,4)}, {v(vL16)}, {s(SH,4)}, {s(sH+b)} offen sc1', f's_add_u32 {s(sH+b)}, {s(sH+b)}, 2048'])
    def body():
        mains = []; sl = Slots(288)
        for G in range(36):
            c, g = divmod(G, 4)
            for b in range(4):
                for kk in range(2):
                    cc = '0' if (c == 0 and kk == 0) else v(acc(g, b), 4)
                    mains.append(f'v_mfma_f32_16x16x32_bf16 {v(acc(g,b),4)}, {wf(G,kk)}, {xf(b, 2*c+kk)}, {cc}')
            sl.fix(8 * G - 1, lambda G=G: p.need(a(WF + 8 * (G % 3), 8)))
            if g == 2:
                sl.fix(8 * G - 1, lambda c=c: p.wait_tag(f'slot{(c+1)%9}')); sl.fix(8 * G, 's_barrier')
            for k, x in enumerate(ftr(G + 2)): sl.fix(8 * G + 2 * k + (1 if g == 2 else 0), x)
        sl.stream(8 * 33 + 5, prod(0, 0), last=8 * 34 - 1, cap=3)
        sl.stream(8 * 34 + 1, prod(0, 1) + prod(0, 2) + prod(0, 3), last=287)
        sl.stream(0, prod(1, 0) + prod(1, 1) + prod(1, 2) + prod(1, 3), last=15)
        for c in range(9):
            d = [x for x in ffn_dma((c - 1) % 9) if x]
            if c == 0:
                d[-1] = f's_add_u32 {s(sWo)}, {s(sWo)}, {(128 - 8*CH) & 0xffffffff:#x}'
                d += [lambda: put([f's_cmp_eq_u32 {s(sCnt)}, 1', f's_cselect_b32 {s(SGt+2)}, 0, {s(SGt+2)}', f's_cselect_b32 {s(SU+2)}, 0, {s(SU+2)}'])]
            if c < 8: sl.stream(32 * c + 17, d, last=32 * c + 31, gap=1)
            else: sl.stream(32 * c + 17, d, last=287, cap=3)
        j1 = [f's_mov_b32 {s(SJS+q)}, {s(JP[q])}' for q in range(3)] + [f's_mov_b32 {s(sJo)}, {s(JP[3])}', f's_mov_b32 {s(SJD+2)}, {s(JP[5])}']
        k = sl.stream(16, j1, last=31)
        jl = [f's_mov_b32 m0, {s(sSP)}']
        for q in range(4):
            jl += [(f'buffer_load_dwordx4 {v(vJS)}, {s(SJS,4)}, {s(sJo)} offen offset:{1024*q} lds', 'job'), f's_add_u32 {s(sJo)}, {s(sJo)}, 8192']
        k = sl.stream(32, jl, last=47, gap=1)
        k = sl.stream(16, fin(0) + fin(1) + fin(2) + fin(3) + [f's_mov_b32 {s(SH+2)}, {PQ_OFF}'], gap=1)
        j2 = [f's_mov_b32 {s(sJo)}, {s(JP[4])}'] + [f's_mov_b32 {s(JP[q])}, {s(JP[6+q])}' for q in range(6)]
        j2 += [f's_mov_b32 {s(JP[8])}, 0', f's_mov_b32 {s(JP[11])}, 0']
        j2 += [f'v_xor_b32 {v(vT+u)}, {32*u}, {v(vJT)}' for u in range(1, 4)]
        k = sl.stream(k + 1, j2)
        assert k < 32 * 6
        j3 = [lambda: p.wait_tag('job')]
        for u in range(4):
            for h in range(2): j3.append(f'ds_read_b64_tr_b16 {a(JD + 4*u + 2*h, 2)}, {v(vT+u) if u else v(vJT)} offset:{2048*h}')
        k = sl.stream(32 * 6 + 26, j3, gap=1)
        jst = [f'buffer_store_dwordx4 {a(JD+4*u,4)}, {v(vL16)}, {s(SJD,4)}, {s(sJo)} offen offset:{1024*u} sc1' for u in range(4)]
        k = sl.stream(k + 2, jst, gap=3)
        assert k < 8 * 33
        def keep(x):
            t = x[0] if isinstance(x, tuple) else x
            if not isinstance(t, str): return True
            if 'nodma' in opt and t.endswith('lds'): return False
            if 'nobar' in opt and t == 's_barrier': return False
            if 'nost' in opt and t.startswith('buffer_store'): return False
            if 'notr' in opt and t.startswith('ds_read'): return False
            if 'novalu' in opt and t.startswith('v_'): return False
            return True
        interleave(p, mains, {k_: [x for x in l_ if keep(x)] for k_, l_ in sl.f.items()})
    def back():
        e(f's_sub_u32 {s(sCnt)}, {s(sCnt)}, 1'); e(f's_cmp_lg_u32 {s(sCnt)}, 0'); e(f's_cbranch_scc1 {name}_loop')
    p.loop(body, f'{name}_loop', back)
    stamp(6)
    for b in range(4):
        for x in prod(1, b): e(x)
    for b in range(4):
        for x in fin(b): e(x)
    p.wait_all()
    stamp(7)
    p.label(END)
    return p, V.nxt, A.nxt, NXV
```

```python
from asmlib import *
from layout import *
from k1 import fhex, LOG2E

SLOT = 36864
OWN = 73728
OX = 36864
SPIN = 200000

def gen_k2(name, stamps=False, opt=()):
    p = Prog(); e = p.e
    V = Alloc('v', 1, 256); A = Alloc('a', 0, 256); SG = Alloc('s', 40, 100)
    SWS, SX, SO, SJ, SA, SP = 4, 8, 12, 16, 20, 36
    KA = 24
    sW, sT, sC, sQK, sM0w, sWd, sT0, sT1, sT2, sT3, sJs, sJd, sCo, sPart, sRec, sWo, sPq0, sPq1 = (SG.get(n) for n in 'w t c qk m0 wd t0 t1 t2 t3 js jd co part rec wo pq0 pq1'.split())
    sH = SG.get('h', 2, 1); sSt = SG.get('st', 2); sStO = SG.get('sto'); sAl, sTl, sSpin, sHi, sFl, sSel, sW8 = (SG.get(n) for n in 'al tl spin hi fl sel w8'.split())
    vS = V.get('stamp', 2, 1)
    ACC = V.get('acc', 72); BIG = V.get('big', 148)
    vL = V.get('l16', 3, 1); vRD = V.get('rd', 4, 1); vXO = V.get('xo'); vX8 = V.get('x8'); vXD = V.get('xd', 12); vT = V.get('t', 8, 4)
    HB = A.get('hb', 128); AR = A.get('ar', 48); WX = A.get('wx', 80)
    nstamp = [0]
    def stamp(k=None):
        if not stamps: return
        if k is None:
            k = nstamp[0]; nstamp[0] += 1
        p.wait_lg(0)
        if k == 0:
            e(f'v_mov_b32 {v(vS)}, s100'); e(f'v_mov_b32 {v(vS+1)}, 0'); e(f'buffer_store_dword {v(vS)}, {v(vS+1)}, {s(SWS,4)}, {s(sStO)} offen offset:60')
        e(f's_memrealtime {s(sSt,2)}'); p.wait_lg(0)
        e(f'v_mov_b32 {v(vS)}, {s(sSt)}'); e(f's_add_u32 {s(sT3)}, {s(sStO)}, {4*k}'); e(f'v_mov_b32 {v(vS+1)}, 0')
        e(f'buffer_store_dword {v(vS)}, {v(vS+1)}, {s(SWS,4)}, {s(sT3)} offen')
        e(f's_memtime {s(sSt,2)}'); p.wait_lg(0)
        e(f'v_mov_b32 {v(vS)}, {s(sSt)}'); e(f'buffer_store_dword {v(vS)}, {v(vS+1)}, {s(SWS,4)}, {s(sT3)} offen offset:128')
    def put(lst):
        for x in lst:
            if callable(x): x()
            elif isinstance(x, tuple): e(x[0], x[1])
            else: e(x)
    END = f'{name}_end'
    if stamps: p.raw('s_memrealtime s[100:101]')
    e('s_cmp_ge_u32 s2, 256'); e(f's_cbranch_scc1 {END}')
    e(f's_load_dwordx2 {s(KA,2)}, s[0:1], 0'); e(f's_load_dwordx8 {s(KA+4,8)}, s[0:1], 48')
    e(f'v_lshrrev_b32 {v(vT)}, 6, v0'); e(f'v_and_b32 {v(vT+1)}, 63, v0')
    e(f'v_readfirstlane_b32 {s(sW)}, {v(vT)}')
    e(f'v_lshlrev_b32 {v(vL)}, 4, {v(vT+1)}'); e(f'v_add_u32 {v(vL+1)}, 4096, {v(vL)}'); e(f'v_add_u32 {v(vL+2)}, 8192, {v(vL)}')
    e(f's_and_b32 {s(sQK)}, s2, 3'); e(f's_bfe_u32 {s(sT0)}, s2, 0x10002'); e(f's_lshr_b32 {s(sT1)}, s2, 5')
    e(f's_lshl_b32 {s(sT0)}, {s(sT0)}, 3'); e(f's_add_u32 {s(sT)}, {s(sT0)}, {s(sT1)}'); e(f's_bfe_u32 {s(sC)}, s2, 0x20003')
    e(f's_mul_i32 {s(sM0w)}, {s(sW)}, 9216')
    e(f's_mul_i32 {s(sT0)}, {s(sQK)}, 36'); e(f's_add_u32 {s(sT1)}, {s(sT0)}, {s(sW)}'); e(f's_mul_i32 {s(sT1)}, {s(sT1)}, 36')
    e(f's_mul_i32 {s(sT2)}, {s(sC)}, 9'); e(f's_add_u32 {s(sT1)}, {s(sT1)}, {s(sT2)}'); e(f's_lshl_b32 {s(sT1)}, {s(sT1)}, 10'); e(f's_add_u32 {s(sWd)}, {s(sT1)}, {WT_OFF}')
    e(f's_lshl_b32 {s(sT1)}, {s(sT)}, 3'); e(f's_lshl_b32 {s(sT2)}, {s(sW)}, 1'); e(f's_add_u32 {s(sT1)}, {s(sT1)}, {s(sT2)}')
    e(f's_mul_i32 {s(sT1)}, {s(sT1)}, 144'); e(f's_add_u32 {s(sT1)}, {s(sT1)}, {s(sT0)}'); e(f's_lshl_b32 {s(sH)}, {s(sT1)}, 10'); e(f's_add_u32 {s(sH+1)}, {s(sH)}, {144*1024}')
    p.wait_lg(0)
    def srd(r, ptr, nbytes):
        e(f's_mov_b32 {s(r)}, {s(ptr)}'); e(f's_mov_b32 {s(r+1)}, {s(ptr+1)}'); e(f's_mov_b32 {s(r+2)}, {nbytes}'); e(f's_mov_b32 {s(r+3)}, 0x20000')
    srd(SWS, KA + 10, WS_USED)
    hb = lambda c, b, ks: HB + 32 * (c % 4) + 16 * b + 4 * ks
    def loads(c):
        out = []
        for pc in range(9):
            if pc % 4 == 0: out.append(f's_add_u32 m0, {s(sM0w)}, {(c%4)*SLOT + 4096*(pc//4)}')
            out.append((f'buffer_load_dwordx4 {v(vL + pc//4)}, {s(SWS,4)}, {s(sWd)} offen offset:{1024*(pc%4)} lds', f'w{c}'))
        out.append(f's_add_u32 {s(sWd)}, {s(sWd)}, {4*36*1024}')
        for b in range(2):
            for ks in range(4): out.append(f'buffer_load_dwordx4 {a(hb(c,b,ks),4)}, {v(vL)}, {s(SWS,4)}, {s(sH+b)} offen offset:{1024*ks}')
            out.append(f's_add_u32 {s(sH+b)}, {s(sH+b)}, 4096')
        return out
    put(loads(0))
    srd(SX, KA, S * D * 2); srd(SO, KA + 6, S * D * 2); srd(SJ, KA + 10, 0); srd(SA, KA + 10, 0); srd(SP, KA + 10, 0)
    if stamps:
        e(f's_lshl_b32 {s(sStO)}, s2, 2'); e(f's_add_u32 {s(sStO)}, {s(sStO)}, {s(sW)}'); e(f's_lshl_b32 {s(sStO)}, {s(sStO)}, 8'); e(f's_add_u32 {s(sStO)}, {s(sStO)}, {STAMP_OFF + 256*4*256}')
    stamp()
    for k in range(4): e(f'v_add_u32 {v(vRD+k)}, {k*SLOT}, {v(vL)}')
    e(f's_mul_i32 {s(sT0)}, s2, 10923'); e(f's_lshr_b32 {s(sT0)}, {s(sT0)}, 16')
    e(f's_mul_i32 {s(sT1)}, {s(sT0)}, 6'); e(f's_sub_u32 {s(sT1)}, s2, {s(sT1)}'); e(f's_lshr_b32 {s(sT1)}, {s(sT1)}, 1')
    e(f's_mul_i32 {s(sT2)}, {s(sT0)}, 7282'); e(f's_lshr_b32 {s(sT2)}, {s(sT2)}, 16')
    e(f's_mul_i32 {s(sT3)}, {s(sT2)}, 9'); e(f's_sub_u32 {s(sTl)}, {s(sT0)}, {s(sT3)}')
    e(f's_add_u32 {s(sAl)}, {s(sTl)}, {s(sT1)}'); e(f's_sub_u32 {s(sAl)}, {s(sAl)}, 1')
    e(f's_and_b32 {s(sT3)}, {s(sT0)}, 1'); e(f's_add_u32 {s(sT3)}, {s(sT3)}, {s(sT1)}'); e(f's_sub_u32 {s(sT3)}, {s(sT3)}, 1')
    e(f's_and_b32 {s(sCo)}, s2, 1')
    e(f's_lshl_b32 {s(sJd)}, {s(sCo)}, 10'); e(f's_lshl_b32 {s(sJs)}, {s(sT3)}, 3'); e(f's_add_u32 {s(sJd)}, {s(sJd)}, {s(sJs)}')
    e(f's_lshl_b32 {s(sJs)}, {s(sCo)}, 3'); e(f's_add_u32 {s(sJs)}, {s(sJs)}, 2048')
    e(f's_cmp_lt_u32 {s(sT3)}, 2'); e(f's_cselect_b32 {s(sJd)}, {s(sJd)}, {s(sJs)}')
    e(f's_mul_i32 {s(sT0)}, {s(sT0)}, 3072'); e(f's_add_u32 {s(sJd)}, {s(sJd)}, {s(sT0)}'); e(f's_lshl_b32 {s(sT0)}, {s(sW)}, 8'); e(f's_add_u32 {s(sJd)}, {s(sJd)}, {s(sT0)}')
    e(f's_add_u32 {s(sJd)}, {s(sJd)}, {REC_OFF}')
    e(f's_max_i32 {s(sT0)}, {s(sAl)}, {s(sTl)}'); e(f's_cmp_gt_i32 {s(sT0)}, 4'); e(f's_cselect_b32 {s(sT0)}, 1, 0')
    e(f's_lshl_b32 {s(sT1)}, {s(sT0)}, 2'); e(f's_sub_u32 {s(sT3)}, {s(sAl)}, {s(sT1)}'); e(f's_sub_u32 {s(sT1)}, {s(sTl)}, {s(sT1)}')
    e(f's_add_u32 {s(sT1)}, {s(sT1)}, {s(sT3)}'); e(f's_cmp_eq_u32 {s(sCo)}, 0'); e(f's_cselect_b32 {s(sT1)}, {s(sT1)}, 13'); e(f's_add_u32 {s(sT1)}, {s(sT1)}, {s(sT3)}')
    e(f's_lshl_b32 {s(sT2)}, {s(sT2)}, 1'); e(f's_add_u32 {s(sT2)}, {s(sT2)}, {s(sT0)}'); e(f's_mul_i32 {s(sT2)}, {s(sT2)}, 18'); e(f's_add_u32 {s(sT1)}, {s(sT1)}, {s(sT2)}')
    e(f's_lshl_b32 {s(sT1)}, {s(sT1)}, 10'); e(f's_lshl_b32 {s(sT0)}, {s(sW)}, 8'); e(f's_add_u32 {s(sT1)}, {s(sT1)}, {s(sT0)}'); e(f's_add_u32 {s(sJs)}, {s(sT1)}, {KVP_OFF}')
    e(f's_cmp_lt_u32 {s(sAl)}, 9'); e(f's_cselect_b32 {s(SJ+2)}, {WT_OFF}, 0')
    e(f's_cmp_lt_u32 s2, 216'); e(f's_cselect_b32 {s(SJ+2)}, {s(SJ+2)}, 0'); e(f's_cselect_b32 {s(SA+2)}, {STAMP_OFF}, 0')
    e(f's_and_b32 {s(sCo)}, s2, 7'); e(f's_lshl_b32 {s(sCo)}, {s(sCo)}, 7'); e(f's_add_u32 {s(sCo)}, {s(sCo)}, {CNT_OFF}')
    JL = BIG; vJo, vJd, vHe, vAt = BIG + 40, BIG + 41, BIG + 42, BIG + 43; vJt = BIG + 44
    e(f'v_and_b32 {v(vHe)}, 15, v0'); e(f'v_bfe_u32 {v(vJd)}, v0, 4, 2')
    e(f'v_mul_u32_u24 {v(vJo)}, {8*18*1024}, {v(vJd)}'); e(f'v_lshl_add_u32 {v(vJo)}, {v(vHe)}, 4, {v(vJo)}')
    e(f'v_lshlrev_b32 {v(vJd)}, 28, {v(vJd)}'); e(f'v_lshl_add_u32 {v(vJd)}, {v(vHe)}, 4, {v(vJd)}')
    e(f's_lshl_b32 {s(sT0)}, {s(sTl)}, 4'); e(f'v_add_u32 {v(vHe)}, {s(sT0)}, {v(vHe)}'); e(f'v_mul_u32_u24 {v(vHe)}, 3641, {v(vHe)}'); e(f'v_lshrrev_b32 {v(vHe)}, 16, {v(vHe)}')
    e(f'v_min_u32 {v(vAt)}, 1, v0'); e(f'v_lshlrev_b32 {v(vAt)}, 30, {v(vAt)}')
    jobl = []
    for k in range(8):
        jobl += [f'buffer_load_dwordx4 {v(JL+4*k,4)}, {v(vJo)}, {s(SJ,4)}, {s(sJs)} offen', f's_add_u32 {s(sJs)}, {s(sJs)}, {4*8*18*1024}']
    put(jobl); put(loads(1))
    if 'la3' in opt: put(loads(2))
    jobv = []
    for k in range(1, 8):
        jobv += [f'v_add_f32 {v(JL+r)}, {v(JL+r)}, {v(JL+4*k+r)}' for r in range(4)]
    for sw in ('v_permlane32_swap_b32', 'v_permlane16_swap_b32'):
        jobv += [f'v_mov_b32 {v(vJt+r)}, {v(JL+r)}' for r in range(4)]
        jobv += [f'{sw} {v(vJt+r)}, {v(JL+r)}' for r in range(4)]
        jobv += [f'v_add_f32 {v(JL+r)}, {v(JL+r)}, {v(vJt+r)}' for r in range(4)]
    def maskops(r):
        def f():
            e(f's_lshl_b32 {s(sT0)}, {s(sAl)}, 4'); e(f's_lshl_b32 {s(sT1)}, {s(sW)}, 2'); e(f's_add_u32 {s(sT0)}, {s(sT0)}, {s(sT1)}'); e(f's_add_u32 {s(sT0)}, {s(sT0)}, {r}')
            e(f's_mul_i32 {s(sT0)}, {s(sT0)}, 3641'); e(f's_lshr_b32 {s(sHi)}, {s(sT0)}, 16')
        return f
    e(f'v_and_b32 {v(vT)}, 31, v0'); e(f'v_mul_u32_u24 {v(vT)}, 1152, {v(vT)}'); e(f'v_bfe_u32 {v(vT+1)}, v0, 5, 1'); e(f'v_lshl_add_u32 {v(vXO)}, {v(vT+1)}, 4, {v(vT)}')
    e(f's_lshl_b32 {s(sT0)}, {s(sT)}, 2'); e(f's_add_u32 {s(sT0)}, {s(sT0)}, {s(sQK)}'); e(f's_mul_i32 {s(sT0)}, {s(sT0)}, {32*1152}')
    e(f's_mul_i32 {s(sT1)}, {s(sC)}, 288'); e(f's_add_u32 {s(sT0)}, {s(sT0)}, {s(sT1)}'); e(f's_lshl_b32 {s(sT1)}, {s(sW)}, 5'); e(f's_add_u32 {s(sT0)}, {s(sT0)}, {s(sT1)}')
    e(f'v_add_u32 {v(vXO)}, {s(sT0)}, {v(vXO)}')
    e(f's_mul_i32 {s(sRec)}, {s(sW)}, {9*3072}'); e(f's_add_u32 {s(sRec)}, {s(sRec)}, {REC_OFF}')
    e(f's_mul_i32 {s(sT1)}, {s(sC)}, 9'); e(f's_add_u32 {s(sWo)}, {s(sW)}, {s(sT1)}'); e(f's_lshl_b32 {s(sWo)}, {s(sWo)}, 10'); e(f's_add_u32 {s(sWo)}, {s(sWo)}, {WOT_OFF}')
    e(f's_lshl_b32 {s(sT0)}, {s(sT)}, 3'); e(f's_lshl_b32 {s(sT1)}, {s(sQK)}, 1'); e(f's_add_u32 {s(sT0)}, {s(sT0)}, {s(sT1)}'); e(f's_mul_i32 {s(sT0)}, {s(sT0)}, 18')
    e(f's_mul_i32 {s(sT1)}, {s(sW)}, 9'); e(f's_lshr_b32 {s(sT1)}, {s(sT1)}, 1'); e(f's_add_u32 {s(sT0)}, {s(sT0)}, {s(sT1)}'); e(f's_lshl_b32 {s(sT0)}, {s(sT0)}, 10')
    e(f's_add_u32 {s(sPq0)}, {s(sT0)}, {PQ_OFF}'); e(f's_add_u32 {s(sPq1)}, {s(sPq0)}, {18*1024}')
    REC = lambda tl, pc: BIG + 12 * tl + 4 * pc
    PQ = lambda b, g: BIG + 108 + 20 * b + 4 * g
    e(f's_and_b32 {s(sT0)}, s2, 0xfc'); e(f's_add_u32 {s(sT0)}, {s(sT0)}, {s(sW)}'); e(f's_lshl_b32 {s(sFl)}, {s(sT0)}, 5'); e(f's_add_u32 {s(sFl)}, {s(sFl)}, {s(sQK)}')
    e(f's_lshl_b32 {s(sFl)}, {s(sFl)}, 2'); e(f's_add_u32 {s(sFl)}, {s(sFl)}, {FLAG_OFF}')
    e(f's_lshl_b32 {s(sT0)}, {s(sT0)}, 2'); e(f's_add_u32 {s(sT0)}, {s(sT0)}, {s(sQK)}'); e(f's_mul_i32 {s(sT0)}, {s(sT0)}, 9216'); e(f's_add_u32 {s(sPart)}, {s(sT0)}, {PART_OFF}')
    e(f's_cmp_eq_u32 {s(sW)}, {s(sQK)}'); e(f's_cselect_b32 {s(SP+2)}, 0, {STAMP_OFF}')
    e(f's_add_u32 {s(sSel)}, {s(sQK)}, 1'); e(f's_and_b32 {s(sSel)}, {s(sSel)}, 3')
    def wreg(f): return WX + 4 * f if f < 20 else 32 + 4 * (f - 20) if f < 44 else 4 * (f - 44) if f < 52 else AR + 4 * (f - 52)
    def wload(f):
        pc, g = divmod(f, 18)
        base = sWo if pc < 2 else sW8
        return [f's_add_u32 {s(sT2)}, {s(base)}, {g*36*1024 + (4096 if pc == 1 else 0)}', f'buffer_load_dwordx4 {a(wreg(f),4)}, {v(vL)}, {s(SWS,4)}, {s(sT2)} offen']
    e(f's_lshl_b32 {s(sT0)}, {s(sW)}, 10'); e(f's_sub_u32 {s(sW8)}, {s(sWo)}, {s(sT0)}'); e(f's_add_u32 {s(sW8)}, {s(sW8)}, 8192')
    e(f's_lshl_b32 {s(sT0)}, {s(sW)}, 5'); e(f'v_subrev_u32 {v(vX8)}, {s(sT0)}, {v(vXO)}')
    acc = lambda aa, b: ACC + 8 * aa + 4 * b
    ar = lambda n, ks: AR + 16 * (n % 3) + 4 * ks
    def ard(n):
        c, aa = divmod(n, 9)
        return [f'ds_read_b128 {a(ar(n,ks),4)}, {v(vRD + c%4)} offset:{ks*9216 + aa*1024}' for ks in range(4)]
    p.wait_tag('w0'); e('s_barrier')
    put(ard(0) + ard(1))
    stamp()
    mains = []; sl = Slots(648)
    for n in range(81):
        c, aa = divmod(n, 9)
        for b in range(2):
            for ks in range(4):
                cc = '0' if (c == 0 and ks == 0) else v(acc(aa, b), 4)
                mains.append(f'v_mfma_f32_16x16x32_bf16 {v(acc(aa,b),4)}, {a(ar(n,ks),4)}, {a(hb(c,b,ks),4)}, {cc}')
        sl.fix(8 * n - 1, lambda n=n, c=c, aa=aa: p.need(a(ar(n, 0), 16), *([a(HB + 32 * (c % 4), 32)] if aa == 0 else [])))
        late = 0
        if aa == 7 and c < 8:
            sl.fix(8 * n - 1, lambda c=c: p.wait_tag(f'w{c+1}')); sl.fix(8 * n, 's_barrier'); late = 1
        if aa == 1 and 1 <= c <= 5 and ('dense' in opt or 'la3' in opt): sl.fix(8 * n - 3, 's_barrier')
        if n + 2 < 81:
            for k, x in enumerate(ard(n + 2)): sl.fix(8 * n + 2 * k + late, x)
    if 'dense' in opt:
        k = sl.stream(0, loads(2)); k = sl.stream(k, loads(3))
        for c in range(1, 6): k = sl.stream(max(k, 72 * c + 6), loads(c + 3))
    elif 'la3' in opt:
        sl.spread(0, 77, loads(3))
        for c in range(1, 6): sl.spread(72 * c + 6, 72 * c + 77, loads(c + 3))
    else:
        sl.spread(0, 71, loads(2))
        for c in range(1, 7): sl.spread(72 * c, 72 * c + 71, loads(c + 2))
    k = sl.stream(2, jobv)
    for r in range(4):
        sl.fix(k + 1, maskops(r), cost=2); k = sl.stream(k + 2, [f'v_cmp_eq_u32 vcc, {s(sHi)}, {v(vHe)}'])
        k = sl.stream(k + 2, [f'v_cndmask_b32 {v(JL+r)}, 0, {v(JL+r)}, vcc'])
    k = sl.stream(k, [f'v_cvt_pk_bf16_f32 {v(JL)}, {v(JL)}, {v(JL+1)}', f'v_cvt_pk_bf16_f32 {v(JL+1)}, {v(JL+2)}, {v(JL+3)}',
                      (f'buffer_store_dwordx2 {v(JL,2)}, {v(vJd)}, {s(SA,4)}, {s(sJd)} offen sc1', 'rec'), f'v_mov_b32 {v(vJt)}, 1'])
    assert k < 72 * 2, k
    sl.fix(8 * (18 + 7) - 2, lambda: p.wait_tag('rec'))
    sl.stream(8 * (18 + 7) + 2, [f'buffer_atomic_add {v(vJt)}, {v(vAt)}, {s(SA,4)}, {s(sCo)} offen sc1'])
    xl = [f'buffer_load_dwordx4 {v(vXD,4)}, {v(vXO)}, {s(SX,4)}, 0 offen', f'buffer_load_dwordx4 {v(vXD+4,4)}, {v(vXO)}, {s(SX,4)}, 0 offen offset:128',
          f'buffer_load_dwordx4 {v(vXD+8,4)}, {v(vX8)}, {s(SX,4)}, 0 offen offset:256']
    pql = []
    for b in range(2):
        for g in range(5): pql.append(f'buffer_load_dwordx4 {v(PQ(b,g),4)}, {v(vL + g//4)}, {s(SWS,4)}, {s(sPq0 if b == 0 else sPq1)} offen offset:{1024*(g%4)}')
    poll0 = [f'v_and_b32 {v(vT)}, 7, v0', f'v_lshlrev_b32 {v(vT)}, 7, {v(vT)}', f's_mov_b32 {s(sT1)}, {CNT_OFF}',
             f'buffer_load_dword {v(vT+1)}, {v(vT)}, {s(SWS,4)}, {s(sT1)} offen sc1']
    k0 = 72 * 6 if ('dense' in opt or 'la3' in opt) else 72 * 7
    k = sl.spread(k0 + 6, k0 + 50, poll0 + xl + pql)
    def check_cnt():
        e(f'v_cmp_ne_u32 vcc, 27, {v(vT+1)}'); e(f's_mov_b32 {s(sSpin)}, {SPIN}'); e('s_nop 0'); e('s_cmp_eq_u64 vcc, 0'); e(f's_cbranch_scc0 {name}_cspin')
        p.label(f'{name}_cdone')
    sl.fix(k0 + 52, check_cnt, cost=2)
    recl = []
    for f in range(27):
        if f % 12 == 0 and f: recl.append(f's_add_u32 {s(sRec)}, {s(sRec)}, 12288')
        recl.append(f'buffer_load_dwordx4 {v(BIG+4*f,4)}, {v(vL + (f%12)//4)}, {s(SWS,4)}, {s(sRec)} offen offset:{1024*(f%4)} sc1')
    def pub(aa):
        o = acc(aa, 0); t = vT + 4 * (aa & 1)
        return [f'v_cvt_pk_bf16_f32 {v(t+d)}, {v(o+2*d)}, {v(o+2*d+1)}' for d in range(4)] + \
               [(f'buffer_store_dwordx4 {v(t,4)}, {v(vL + aa//4)}, {s(SP,4)}, {s(sPart)} offen offset:{1024*(aa%4)} sc1', 'pub')]
    for aa in range(8): sl.stream(8 * (72 + aa + 1) + 3, pub(aa), last=647)
    NW0 = 9 if k0 == 72 * 6 else 0
    k = sl.spread(k0 + 53, 647, recl + [x for f in range(NW0) for x in wload(f)])
    interleave(p, mains, sl.f)
    p.need(v(PQ(1, 4), 4))
    put(pub(8))
    stamp()
    e(f's_cmp_lg_u32 {s(sW)}, {s(sQK)}'); e(f's_cbranch_scc1 {name}_att')
    for u in range(18): p.raw(f'ds_write_b128 {v(vRD+2)}, {v(ACC+4*u,4)} offset:{1024*u}')
    p.raw('s_waitcnt lgkmcnt(0)')
    p.label(f'{name}_att')
    for r in range(4): e(f'v_mov_b32 {v(vT+r)}, {fhex(1e-6)}')
    ND = lambda tl, b, z: ACC + 16 * (tl % 3) + 8 * b + 4 * z
    OH = lambda tl, b: ACC + 48 + 4 * (tl % 2) + 2 * b
    vOW = ACC + 56
    e(f's_mul_i32 {s(sT0)}, {s(sW)}, 9'); e(f's_lshr_b32 {s(sT0)}, {s(sT0)}, 1'); e(f's_lshl_b32 {s(sT0)}, {s(sT0)}, 10'); e(f'v_add_u32 {v(vOW)}, {s(sT0)}, {v(vRD+1)}')
    e(f's_and_b32 {s(sT0)}, {s(sW)}, 1'); e(f's_cmp_eq_u32 {s(sT0)}, 1'); e(f's_cbranch_scc1 {name}_oodd')
    st1 = p.snapshot()
    for par in range(2):
        if par:
            p.label(f'{name}_oodd'); p.restore(st1)
        late = [wload(f) for f in range(NW0, 36)]
        for step in range(11):
            m32, m16, va = [], [], []
            tl = step
            if tl < 9:
                gl = (tl + par) >> 1
                for b in range(2):
                    m32.append(f'v_mfma_f32_16x16x32_bf16 {v(ND(tl,b,0),4)}, {v(REC(tl,0),4)}, {v(PQ(b,gl),4)}, 0')
                    m32.append(f'v_mfma_f32_16x16x32_bf16 {v(ND(tl,b,1),4)}, {v(REC(tl,1),4)}, {v(PQ(b,gl),4)}, {v(vT,4)}')
            tl = step - 1
            if 0 <= tl < 9:
                gl = (tl + par) >> 1; odd = (tl + par) & 1
                gs = gl + 1 if odd else gl - 1
                if not 0 <= gs <= 4: gs = gl
                for b in range(2):
                    half = v(PQ(b, gs) + (0 if odd else 2), 2)
                    m16.append(f'v_mfma_f32_16x16x16_bf16 {v(ND(tl,b,0),4)}, {v(REC(tl,2),2)}, {half}, {v(ND(tl,b,0),4)}')
                    m16.append(f'v_mfma_f32_16x16x16_bf16 {v(ND(tl,b,1),4)}, {v(REC(tl,2)+2,2)}, {half}, {v(ND(tl,b,1),4)}')
            tl = step - 2
            if 0 <= tl < 9:
                for b in range(2): va += [f'v_rcp_f32 {v(ND(tl,b,1)+r)}, {v(ND(tl,b,1)+r)}' for r in range(4)]
                for b in range(2):
                    va += [f'v_mul_f32 {v(ND(tl,b,0)+r)}, {v(ND(tl,b,0)+r)}, {v(ND(tl,b,1)+r)}' for r in range(4)]
                    va += [f'v_cvt_pk_bf16_f32 {v(OH(tl,b) + d)}, {v(ND(tl,b,0)+2*d)}, {v(ND(tl,b,0)+2*d+1)}' for d in range(2)]
                    va += [f'ds_write_b64 {v(vOW)}, {v(OH(tl,b),2)} offset:{b*18432 + ((tl+par)>>1)*1024 + ((tl+par)&1)*8}']
            mm = m32 + m16
            per = -(-len(va) // max(len(mm) - 1, 1))
            for i_, x in enumerate(mm):
                e(x)
                if late and len(p.vmq) < p.vm_limit and i_ % 3 == 0: put(late.pop(0))
                if i_ == 0 and len(mm) > 4: continue
                for y in va[:per]: e(y)
                va = va[per:]
            for y in va: e(y)
        while late: put(late.pop(0))
        if par == 0:
            stE = p.snapshot(); e(f's_branch {name}_odone')
        else: assert p.snapshot() == stE
    p.label(f'{name}_odone')
    stamp()
    e(f'v_mov_b32 {v(vT)}, 1'); e(f'v_and_b32 {v(vT+1)}, 63, v0'); e(f'v_min_u32 {v(vT+1)}, 1, {v(vT+1)}'); e(f'v_lshlrev_b32 {v(vT+1)}, 30, {v(vT+1)}')
    p.wait_tag('pub')
    e(f'buffer_store_dword {v(vT)}, {v(vT+1)}, {s(SP,4)}, {s(sFl)} offen sc1')
    p.wait_lg(0); e('s_barrier')
    OF = lambda b, g: BIG + 72 * b + 4 * g
    for g in range(18):
        for b in range(2): e(f'ds_read_b128 {v(OF(b,g),4)}, {v(vRD+1)} offset:{b*18432 + g*1024}')
    vPo, vPv = vT + 2, vT + 3
    e(f'v_and_b32 {v(vPo)}, 3, v0'); e(f'v_cmp_eq_u32 vcc, {s(sQK)}, {v(vPo)}'); e(f'v_lshlrev_b32 {v(vPo)}, 2, {v(vPo)}'); e(f's_lshl_b32 {s(sT0)}, {s(sSel)}, 2'); e(f'v_mov_b32 {v(vPv)}, {s(sT0)}')
    e(f'v_cndmask_b32 {v(vPo)}, {v(vPo)}, {v(vPv)}, vcc')
    e(f's_lshl_b32 {s(sFl)}, s2, 7'); e(f's_add_u32 {s(sFl)}, {s(sFl)}, {FLAG_OFF}')
    e(f's_lshl_b32 {s(sT0)}, {s(sW)}, 10'); e(f's_mul_i32 {s(sT2)}, s2, {4*9216}'); e(f's_add_u32 {s(sT2)}, {s(sT2)}, {PART_OFF}')
    sPe = [sPq0, sPq1, sRec]
    for q in range(3):
        e(f's_add_u32 {s(sT1)}, {s(sQK)}, {q+1}'); e(f's_and_b32 {s(sT1)}, {s(sT1)}, 3'); e(f's_mul_i32 {s(sT1)}, {s(sT1)}, 9216'); e(f's_add_u32 {s(sPe[q])}, {s(sT1)}, {s(sT2)}')
    vPa, vOa = vT + 4, vT + 5
    e(f'v_add_u32 {v(vPa)}, {s(sT0)}, {v(vL)}'); e(f's_lshl_b32 {s(sT0)}, {s(sW)}, 11'); e(f'v_add_u32 {v(vOa)}, {s(sT0)}, {v(vRD+2)}')
    e(f's_mov_b32 {s(sHi)}, 0xffff0000')
    e(f's_cmp_eq_u32 {s(sW)}, {s(sSel)}'); e(f's_cbranch_scc1 {name}_three')
    st2 = p.snapshot()
    SS = lambda pc: ACC + 8 * pc
    DD = lambda pc: ACC + 24 + 8 * pc
    U = ACC + 48
    for npc in (2, 3):
        lab = f'{name}_n{npc}'
        if npc == 3:
            p.label(f'{name}_three'); p.restore(st2)
        late = [wload(f) for f in range(36, 54)] if npc == 3 else []
        def smm(pc):
            for b in range(2):
                for g in range(18):
                    e(f'v_mfma_f32_16x16x32_bf16 {v(SS(pc)+4*b,4)}, {a(wreg(18*pc+g),4)}, {v(OF(b,g),4)}, {"0" if g == 0 else v(SS(pc)+4*b,4)}')
                    if late and g % 2 == 0: put(late.pop(0))
        smm(0)
        for pc in range(npc):
            for b in range(2):
                e(f'ds_read_b128 {v(DD(pc)+4*b,4)}, {v(vOa) if pc < 2 else v(vRD+2)} offset:{8192*pc + 1024*b}')
        e(f's_mov_b32 {s(sSpin)}, {SPIN}')
        p.label(f'{lab}_fspin')
        e(f'buffer_load_dword {v(vPv)}, {v(vPo)}, {s(SWS,4)}, {s(sFl)} offen sc1')
        e(f'v_cmp_ne_u32 vcc, 1, {v(vPv)}'); e(f's_sub_u32 {s(sSpin)}, {s(sSpin)}, 1'); e('s_cmp_eq_u64 vcc, 0'); e(f's_cbranch_scc1 {lab}_fdone')
        e(f's_cmp_lg_u32 {s(sSpin)}, 0'); e(f's_cbranch_scc1 {lab}_fspin')
        p.label(f'{lab}_fdone')
        stamp(4)
        PE = lambda pc, q: 4 * (3 * pc + q) + (AR + 8)
        for pc in range(npc):
            for q in range(3):
                e(f'buffer_load_dwordx4 {a(PE(pc,q),4)}, {v(vPa) if pc == 0 else v(vL+2) if pc == 2 else v(vPa)}, {s(SWS,4)}, {s(sPe[q])} offen' + (' offset:0' if pc != 1 else '') + ' sc1' if pc != 1 else
                  f'buffer_load_dwordx4 {a(PE(pc,q),4)}, {v(vT+6)}, {s(SWS,4)}, {s(sPe[q])} offen sc1')
            if pc == 0: e(f'v_add_u32 {v(vT+6)}, 4096, {v(vPa)}')
        for pc in range(1, npc): smm(pc)
        stamp(5)
        X = BIG; G = BIG + 24; O = BIG + 40
        for pc in range(npc):
            for d in range(4):
                e(f'v_lshlrev_b32 {v(X+8*pc+2*d)}, 16, {v(vXD+4*pc+d)}'); e(f'v_and_b32 {v(X+8*pc+2*d+1)}, {s(sHi)}, {v(vXD+4*pc+d)}')
        for pc in range(npc):
            for q in range(3):
                for d in range(4): e(f'v_accvgpr_read_b32 {v(U+8*q+2*d+1)}, {a(PE(pc,q)+d)}')
                for d in range(4):
                    e(f'v_lshlrev_b32 {v(U+8*q+2*d)}, 16, {v(U+8*q+2*d+1)}'); e(f'v_and_b32 {v(U+8*q+2*d+1)}, {s(sHi)}, {v(U+8*q+2*d+1)}')
                for k in range(0, 8, 2): e(f'v_pk_add_f32 {v(DD(pc)+k,2)}, {v(DD(pc)+k,2)}, {v(U+8*q+k,2)}')
            for k in range(8): e(f'v_mul_f32 {v(G+k)}, {fhex(-LOG2E)}, {v(DD(pc)+k)}')
            for k in range(8): e(f'v_exp_f32 {v(G+k)}, {v(G+k)}')
            for k in range(0, 8, 2): e(f'v_pk_mul_f32 {v(DD(pc)+k,2)}, {v(DD(pc)+k,2)}, {v(SS(pc)+k,2)}')
            for k in range(8): e(f'v_add_f32 {v(G+k)}, 1.0, {v(G+k)}')
            for k in range(8): e(f'v_rcp_f32 {v(G+k)}, {v(G+k)}')
            for k in range(0, 8, 2): e(f'v_pk_mul_f32 {v(G+k,2)}, {v(G+k,2)}, {v(DD(pc)+k,2)}')
            for r in range(4): e(f'v_permlane16_swap_b32 {v(G+r)}, {v(G+4+r)}')
            for k in range(0, 8, 2): e(f'v_pk_add_f32 {v(G+k,2)}, {v(G+k,2)}, {v(X+8*pc+k,2)}')
            for d in range(4): e(f'v_cvt_pk_bf16_f32 {v(O+4*pc+d)}, {v(G+2*d)}, {v(G+2*d+1)}')
            e(f'buffer_store_dwordx4 {v(O+4*pc,4)}, {v(vXO) if pc < 2 else v(vX8)}, {s(SO,4)}, 0 offen offset:{128*pc}')
        if stamps: p.wait_all()
        stamp(6)
        e(f's_branch {END}')
    p.label(f'{name}_cspin')
    p.raw(f'buffer_load_dword {v(vT+1)}, {v(vT)}, {s(SWS,4)}, {s(sT1)} offen sc1'); p.raw('s_waitcnt vmcnt(0)')
    p.raw(f'v_cmp_ne_u32 vcc, 27, {v(vT+1)}'); p.raw(f's_sub_u32 {s(sSpin)}, {s(sSpin)}, 1'); p.raw('s_nop 0'); p.raw('s_cmp_eq_u64 vcc, 0'); p.raw(f's_cbranch_scc1 {name}_cdone')
    p.raw(f's_cmp_lg_u32 {s(sSpin)}, 0'); p.raw(f's_cbranch_scc1 {name}_cspin'); p.raw(f's_branch {name}_cdone')
    p.label(END)
    return p, V.nxt, A.nxt
```

```python
from asmlib import *
from layout import *

LOG2E = 1.4426950408889634
def fhex(x):
    import struct
    return '0x%08x' % struct.unpack('<I', struct.pack('<f', x))[0]

SP0 = 147456
STX = 98304
CH = 64 * 9216

def gen_k1(name, stamps=False, opt=()):
    p = Prog(); e = p.e
    V = Alloc('v', 1, 256); A = Alloc('a', 0, 256); SG = Alloc('s', 56, 100)
    SX, SQ, SGt, SU, SWS, SH, SJS, SJD = 4, 8, 12, 16, 20, 24, 28, 32
    KA = 36
    sW, sI, sJ, sT, sQF, sM = (SG.get(n) for n in ('w', 'i', 'j', 't', 'qf', 'm'))
    sWo, sCnt, sM0w, sJob, sJo, sT0, sT1, sT2 = (SG.get(n) for n in ('wo', 'cnt', 'm0w', 'job', 'jo', 't0', 't1', 't2'))
    sH = SG.get('h', 4, 1); sKV = SG.get('kv', 6, 1); sSP = SG.get('sp'); sLine = SG.get('line'); sKm = SG.get('km')
    mk = [SG.get(f'mk{k}', 2) for k in range(4)]
    sSt = SG.get('st', 2); sStO = SG.get('sto'); sOnes = SG.get('ones')
    JP = [36, 37, 38, 39, 42, 43, 44, 45, 46, 47, 50, 51]
    ACC = V.get('acc', 64); PR = V.get('prod', 32)
    vTR = V.get('tr', 6, 1); vDM = V.get('dm', 2, 1); vL16 = V.get('l16'); vJS2 = V.get('spare'); vRS = V.get('rs', 4, 2); vRS2 = V.get('rs2', 4, 2)
    vJS = V.get('js'); vJT = V.get('jt'); vT = V.get('tmp', 8, 4)
    NXV = (256 - V.nxt) // 4
    XV = V.get('xv', 4 * NXV)
    WF = A.get('wf', 24); XA = A.get('xa', 4 * (72 - NXV)); JD = A.get('jd', 64)
    fidx = lambda b, ks: 2 * ks + b if b < 2 else 36 + 2 * ks + b - 2
    def xf(b, ks):
        f = fidx(b, ks)
        return v(XV + 4 * f, 4) if f < NXV else a(XA + 4 * (f - NXV), 4)
    def xf_isv(b, ks): return fidx(b, ks) < NXV
    nstamp = [0]
    def stamp(k=None):
        if not stamps: return
        if k is None:
            k = nstamp[0]; nstamp[0] += 1
        p.wait_lg(0)
        if k == 0:
            e(f'v_mov_b32 {v(vT+7)}, s100'); e(f'v_mov_b32 {v(vT+6)}, 0'); e(f'buffer_store_dword {v(vT+7)}, {v(vT+6)}, {s(SWS,4)}, {s(sStO)} offen offset:40')
        e(f's_memrealtime {s(sSt,2)}'); p.wait_lg(0)
        e(f'v_mov_b32 {v(vT+7)}, {s(sSt)}'); e(f's_add_u32 {s(sT2)}, {s(sStO)}, {4*k}')
        e(f'v_mov_b32 {v(vT+6)}, 0')
        e(f'buffer_store_dword {v(vT+7)}, {v(vT+6)}, {s(SWS,4)}, {s(sT2)} offen')
        e(f's_memtime {s(sSt,2)}'); p.wait_lg(0)
        e(f'v_mov_b32 {v(vT+7)}, {s(sSt)}')
        e(f'buffer_store_dword {v(vT+7)}, {v(vT+6)}, {s(SWS,4)}, {s(sT2)} offen offset:128')

    END = f'{name}_end'
    if stamps: p.raw('s_memrealtime s[100:101]')
    e('s_cmp_ge_u32 s2, 256'); e(f's_cbranch_scc1 {END}')
    e(f's_load_dwordx8 {s(KA,8)}, s[0:1], 0'); e(f's_load_dwordx8 {s(KA+8,8)}, s[0:1], 32'); e(f's_load_dwordx4 {s(KA+16,4)}, s[0:1], 64')
    T = [ACC + 32 + k for k in range(32)] + [PR + k for k in range(32)]
    vLane, vL3, vL4, vC7, vN, vI2, vB = T[0:7]
    vXO = T[8:12]; vXR = T[12:16]
    e(f'v_lshrrev_b32 {v(vB)}, 6, v0'); e(f'v_and_b32 {v(vLane)}, 63, v0')
    e(f'v_readfirstlane_b32 {s(sW)}, {v(vB)}')
    e(f'v_lshrrev_b32 {v(vL3)}, 3, {v(vLane)}'); e(f'v_lshrrev_b32 {v(vL4)}, 4, {v(vLane)}'); e(f'v_and_b32 {v(vC7)}, 7, {v(vLane)}')
    e(f'v_and_b32 {v(vN)}, 15, {v(vLane)}'); e(f'v_lshlrev_b32 {v(vL16)}, 4, {v(vLane)}')
    e(f's_and_b32 {s(sQF)}, s2, 3'); e(f's_bfe_u32 {s(sT0)}, s2, 0x10002'); e(f's_lshr_b32 {s(sT1)}, s2, 5')
    e(f's_lshl_b32 {s(sT0)}, {s(sT0)}, 3'); e(f's_add_u32 {s(sT)}, {s(sT0)}, {s(sT1)}'); e(f's_bfe_u32 {s(sM)}, s2, 0x20003')
    e(f's_lshr_b32 {s(sI)}, {s(sW)}, 1'); e(f's_and_b32 {s(sJ)}, {s(sW)}, 1')
    e(f's_lshl_b32 {s(sM0w)}, {s(sW)}, 12'); e(f's_add_u32 {s(sSP)}, {s(sM0w)}, {SP0}')
    e(f's_lshl_b32 {s(sT0)}, {s(sW)}, 5'); e(f'v_add_u32 {v(vB)}, {s(sT0)}, {v(vL3)}'); e(f'v_mul_u32_u24 {v(vB)}, 1152, {v(vB)}')
    for q in range(4):
        e(f'v_or_b32 {v(vI2)}, {4*(q&1)}, {v(vL4)}'); e(f'v_xor_b32 {v(vI2)}, {v(vI2)}, {v(vC7)}')
        e(f'v_lshl_add_u32 {v(vXO[q])}, {v(vI2)}, 4, {v(vB)}')
        if q: e(f'v_add_u32 {v(vXO[q])}, {8192*q}, {v(vXO[q])}')
    e(f's_mul_i32 {s(sT0)}, {s(sT)}, {128*1152}')
    p.wait_lg(0)
    def srd(r, ptr, nbytes, back=0):
        if back:
            e(f's_sub_u32 {s(r)}, {s(ptr)}, {back}'); e(f's_subb_u32 {s(r+1)}, {s(ptr+1)}, 0')
        else:
            e(f's_mov_b32 {s(r)}, {s(ptr)}'); e(f's_mov_b32 {s(r+1)}, {s(ptr+1)}')
        e(f's_mov_b32 {s(r+2)}, {nbytes + back}'); e(f's_mov_b32 {s(r+3)}, 0x20000')
    srd(SX, KA + 0, S * D * 2)
    for l in range(9):
        e(f's_add_u32 m0, {s(sM0w)}, {l*16384}')
        if l: e(f's_add_u32 {s(sT0)}, {s(sT0)}, 128')
        else: e('s_nop 0')
        for q in range(4):
            e(f'buffer_load_dwordx4 {v(vXO[q])}, {s(SX,4)}, {s(sT0)} offen offset:{1024*q} lds', tag=f'x{l}')
    if 'nocode' not in opt:
        p.raw(f's_getpc_b64 {s(sSt,2)}'); p.label(f'{name}_pc')
        e(f's_lshl_b32 {s(sT1)}, {s(sW)}, 13'); e(f'v_lshlrev_b32 {v(vI2)}, 7, {v(vLane)}'); e(f'v_add_u32 {v(vI2)}, {s(sT1)}, {v(vI2)}')
        for kk in range(3):
            e(f'v_min_u32 {v(vB)}, code_end - {name}_pc - 4, {v(vI2)}')
            e(f'global_load_dword {v(vJS2)}, {v(vB)}, {s(sSt,2)}', junk=True)
            if kk < 2: e(f'v_add_u32 {v(vI2)}, 32768, {v(vI2)}')
    srd(SQ, KA + 2, D * 3 * D * 2, back=4096); srd(SGt, KA + 8, D * F * 2); srd(SU, KA + 10, D * F * 2, back=2048)
    srd(SWS, KA + 18, WS_USED); srd(SH, KA + 18, 0); srd(SJS, KA + 12, 0); srd(SJD, KA + 18, REC_OFF)
    if stamps:
        e(f's_lshl_b32 {s(sStO)}, s2, 2'); e(f's_add_u32 {s(sStO)}, {s(sStO)}, {s(sW)}'); e(f's_lshl_b32 {s(sStO)}, {s(sStO)}, 8'); e(f's_add_u32 {s(sStO)}, {s(sStO)}, {STAMP_OFF}')
    stamp()
    vQ = vL4
    e(f'v_lshrrev_b32 {v(vI2)}, 1, {v(vN)}'); e(f'v_xor_b32 {v(vI2)}, {v(vI2)}, {v(vQ)}'); e(f'v_lshlrev_b32 {v(vI2)}, 4, {v(vI2)}')
    e(f'v_lshl_add_u32 {v(vI2)}, {v(vN)}, 7, {v(vI2)}')
    e(f'v_add_u32 {v(vXR[0])}, {s(sM0w)}, {v(vI2)}'); e(f'v_xor_b32 {v(vXR[1])}, 64, {v(vXR[0])}')
    EX = 114688
    e(f's_add_u32 {s(sT0)}, {s(sM0w)}, {EX}'); e(f'v_add_u32 {v(vXR[2])}, {s(sT0)}, {v(vL16)}'); e(f'v_xor_b32 {v(vXR[3])}, 4096, {v(vXR[2])}')
    def wdma_off(dst, stride, rows_per_wave, pp, bit3):
        e(f's_mul_i32 {s(sT0)}, {s(sW)}, {rows_per_wave}'); e(f's_add_u32 {s(sT0)}, {s(sT0)}, {8*pp}')
        e(f'v_add_u32 {v(vB)}, {s(sT0)}, {v(vL3)}'); e(f'v_mul_u32_u24 {v(vB)}, {stride}, {v(vB)}')
        e(f'v_and_b32 {v(vI2)}, 1, {v(vL4)}'); e(f'v_lshlrev_b32 {v(vI2)}, 1, {v(vI2)}')
        if bit3 == 'w':
            e(f's_lshl_b32 {s(sT0)}, {s(sJ)}, 2'); e(f'v_or_b32 {v(vI2)}, {s(sT0)}, {v(vI2)}')
        elif bit3: e(f'v_or_b32 {v(vI2)}, 4, {v(vI2)}')
        e(f'v_xor_b32 {v(vI2)}, {v(vI2)}, {v(vC7)}'); e(f'v_lshl_add_u32 {v(dst)}, {v(vI2)}, 4, {v(vB)}')
        if pp: e(f'v_subrev_u32 {v(dst)}, {1024*pp}, {v(dst)}')
    wdma_off(vDM, 9216, 16, 0, 0); wdma_off(vDM + 1, 9216, 16, 1, 1)
    vQD = T[16:18]; vKD = T[18]
    wdma_off(vQD[0], 3456, 16, 0, 0); wdma_off(vQD[1], 3456, 16, 1, 1); wdma_off(vKD, 3456, 8, 0, 'w')
    vTL, vU = T[19], T[20]
    e(f'v_lshrrev_b32 {v(vI2)}, 3, {v(vN)}'); e(f'v_and_b32 {v(vU)}, 1, {v(vQ)}'); e(f'v_lshl_or_b32 {v(vI2)}, {v(vU)}, 1, {v(vI2)}')
    e(f'v_lshlrev_b32 {v(vI2)}, 5, {v(vI2)}')
    e(f'v_and_b32 {v(vU)}, 3, {v(vN)}'); e(f'v_lshl_or_b32 {v(vI2)}, {v(vU)}, 3, {v(vI2)}')
    e(f'v_lshrrev_b32 {v(vU)}, 2, {v(vN)}'); e(f'v_lshl_or_b32 {v(vTL)}, {v(vU)}, 7, {v(vI2)}')
    e(f'v_lshrrev_b32 {v(vU)}, 1, {v(vQ)}'); e(f'v_lshlrev_b32 {v(vU)}, 12, {v(vU)}')
    e(f'v_and_b32 {v(vI2)}, 1, {v(vQ)}'); e(f'v_lshl_or_b32 {v(vU)}, {v(vI2)}, 10, {v(vU)}'); e(f'v_or_b32 {v(vU)}, {v(vU)}, {v(vTL)}')
    e(f's_lshl_b32 {s(sT0)}, {s(sJ)}, 6'); e(f'v_xor_b32 {v(vTR)}, {s(sT0)}, {v(vU)}'); e(f'v_xor_b32 {v(vTR+1)}, 32, {v(vTR)}')
    for r in (1, 2):
        for tt in range(2): e(f'v_add_u32 {v(vTR+2*r+tt)}, {65536*r}, {v(vTR+tt)}')
    e(f'v_lshlrev_b32 {v(vI2)}, 1, {v(vL4)}'); e(f'v_xor_b32 {v(vI2)}, {v(vI2)}, {v(vC7)}'); e(f'v_lshlrev_b32 {v(vI2)}, 4, {v(vI2)}')
    e(f'v_mul_u32_u24 {v(vU)}, 1152, {v(vL3)}'); e(f'v_add_u32 {v(vJS)}, {v(vU)}, {v(vI2)}')
    e(f'v_lshlrev_b32 {v(vU)}, 9, {v(vQ)}'); e(f'v_add_u32 {v(vU)}, {s(sSP)}, {v(vU)}'); e(f'v_add_u32 {v(vJT)}, {v(vU)}, {v(vTL)}')
    vONE = T[24]; vSEL = T[28]; vF1 = T[34]
    assert vONE % 4 == 0 and vSEL % 4 == 0
    e(f's_mov_b32 {s(sOnes)}, 0x3f803f80')
    for k in range(4): e(f'v_mov_b32 {v(vONE+k)}, {s(sOnes)}')
    e(f'v_mov_b32 {v(vF1)}, 1.0')
    e(f'v_lshrrev_b32 {v(vU)}, 2, {v(vN)}'); e(f'v_cmp_eq_u32 {s(mk[0],2)}, {v(vU)}, {v(vQ)}')
    e(f'v_and_b32 {v(vU)}, 3, {v(vN)}')
    for k in (1, 2, 3): e(f'v_cmp_eq_u32 {s(mk[k],2)}, {k}, {v(vU)}')
    e(f'v_and_b32 {v(vI2)}, 1, {v(vN)}'); e(f'v_lshlrev_b32 {v(vI2)}, 4, {v(vI2)}'); e(f'v_mov_b32 {v(vB)}, 0x3f80'); e(f'v_lshlrev_b32 {v(vB)}, {v(vI2)}, {v(vB)}')
    e(f'v_cndmask_b32 {v(vB)}, 0, {v(vB)}, {s(mk[0],2)}')
    e(f'v_cmp_gt_u32 vcc, 2, {v(vU)}')
    for k in (0, 1, 4, 5): e(f'v_mov_b32 {v(vSEL+k)}, 0')
    e(f'v_cndmask_b32 {v(vSEL+2)}, 0, {v(vB)}, vcc'); e(f'v_cndmask_b32 {v(vSEL+3)}, {v(vB)}, 0, vcc')
    def ffn_dma(slot, tag=None):
        return [f's_add_u32 m0, {s(sM0w)}, {slot*16384}', None,
                (f'buffer_load_dwordx4 {v(vDM)}, {s(SGt,4)}, {s(sWo)} offen lds', tag or f'slot{slot}'),
                (f'buffer_load_dwordx4 {v(vDM+1)}, {s(SGt,4)}, {s(sWo)} offen offset:1024 lds', tag or f'slot{slot}'),
                (f'buffer_load_dwordx4 {v(vDM)}, {s(SU,4)}, {s(sWo)} offen offset:2048 lds', tag or f'slot{slot}'),
                (f'buffer_load_dwordx4 {v(vDM+1)}, {s(SU,4)}, {s(sWo)} offen offset:3072 lds', tag or f'slot{slot}'),
                f's_add_u32 {s(sWo)}, {s(sWo)}, {CH}']
    def put(lst):
        for x in lst:
            if x is None: continue
            if callable(x): x()
            elif isinstance(x, tuple): e(x[0], x[1])
            else: e(x)
    def kv_dma(ks, vk):
        slot = ks % 6; out = []
        for st in range(6):
            if st % 4 == 0: out.append(f's_add_u32 m0, {s(sKm)}, {slot*24576 + (st//4)*4096}')
            out.append((f'buffer_load_dwordx4 {v(vk)}, {s(SQ,4)}, {s(sKV+st)} offen offset:{1024*(st%4)} lds', f'kv{ks}'))
            out.append(f's_add_u32 {s(sKV+st)}, {s(sKV+st)}, {32*3456}')
        return out
    e(f's_mul_i32 {s(sT0)}, {s(sM)}, 5'); e(f's_sub_u32 {s(sT0)}, {s(sT0)}, 2'); e(f's_max_i32 {s(sT0)}, {s(sT0)}, 0')
    e(f's_mul_i32 {s(sT1)}, {s(sQF)}, 18'); e(f's_add_u32 {s(sT0)}, {s(sT0)}, {s(sT1)}')
    e(f's_lshl_b32 {s(sWo)}, {s(sT0)}, 7')
    e(f's_lshl_b32 {s(sT0)}, {s(sT0)}, 1'); e(f's_add_u32 {s(sT0)}, {s(sT0)}, {s(sJ)}'); e(f's_sub_u32 {s(sT0)}, {s(sT0)}, 2')
    e(f's_lshl_b32 {s(sT1)}, {s(sT)}, 3'); e(f's_lshl_b32 {s(sT2)}, {s(sI)}, 2'); e(f's_add_u32 {s(sT1)}, {s(sT1)}, {s(sT2)}')
    e(f's_lshl_b32 {s(sT2)}, {s(sJ)}, 1')
    sTB = [SG.get(f'tb{b}') for b in range(4)]
    for b in range(4):
        e(f's_xor_b32 {s(sTB[b])}, {s(sT2)}, {b}'); e(f's_add_u32 {s(sTB[b])}, {s(sTB[b])}, {s(sT1)}')
        e(f's_mul_i32 {s(sH+b)}, {s(sTB[b])}, 144'); e(f's_add_u32 {s(sH+b)}, {s(sH+b)}, {s(sT0)}'); e(f's_lshl_b32 {s(sH+b)}, {s(sH+b)}, 10')
    e(f's_cmp_eq_u32 {s(sM)}, 0'); e(f's_cselect_b32 {s(sCnt)}, 3, 5')
    e(f's_lshl_b32 {s(sJob)}, s2, 2'); e(f's_add_u32 {s(sJob)}, {s(sJob)}, {s(sW)}')
    e(f's_mul_i32 {s(sLine)}, {s(sQF)}, 3'); e(f's_add_u32 {s(sLine)}, {s(sLine)}, {s(sM)}'); e(f's_sub_u32 {s(sLine)}, {s(sLine)}, 1')
    for n in range(2):
        jb = JP[6 * n: 6 * n + 6]
        e(f's_mov_b32 {s(jb[2])}, {F*D*2}')
        e(f's_cmp_lt_u32 {s(sJob)}, {NJOB_WD}')
        e(f's_cselect_b32 {s(jb[0])}, {s(KA+12)}, {s(KA+4)}'); e(f's_cselect_b32 {s(jb[1])}, {s(KA+13)}, {s(KA+5)}')
        e(f's_cselect_b32 {s(jb[2])}, {s(jb[2])}, {D*D*2}'); e(f's_cselect_b32 {s(sT0)}, 0, {NJOB_WD}')
        e(f's_sub_u32 {s(sT0)}, {s(sJob)}, {s(sT0)}'); e(f's_mul_i32 {s(sT1)}, {s(sT0)}, 7282'); e(f's_lshr_b32 {s(sT1)}, {s(sT1)}, 16')
        e(f's_mul_i32 {s(jb[3])}, {s(sT1)}, {32*1152 - 9*128}'); e(f's_lshl_b32 {s(sT0)}, {s(sT0)}, 7'); e(f's_add_u32 {s(jb[3])}, {s(jb[3])}, {s(sT0)}')
        e(f's_lshl_b32 {s(jb[4])}, {s(sJob)}, 12'); e(f's_add_u32 {s(jb[4])}, {s(jb[4])}, {WT_OFF}')
        e(f's_cmp_lt_u32 {s(sJob)}, {NJOB}'); e(f's_cselect_b32 {s(jb[2])}, {s(jb[2])}, 0'); e(f's_cselect_b32 {s(jb[5])}, {REC_OFF}, 0')
        if n == 0: e(f's_add_u32 {s(sJob)}, {s(sJob)}, 1024')
    QB = 40960
    sQo = sKV
    e(f's_lshl_b32 {s(sT0)}, {s(sQF)}, 8')
    for st in range(6):
        e(f's_add_u32 {s(sKV+st)}, {s(sT0)}, {4096 + 1152*(1 + st//3) + 128*(st%3) - 1024*(st%4)}')
    e(f's_mul_i32 {s(sKm)}, {s(sW)}, 6144')
    e(f's_lshl_b32 {s(sT0)}, {s(sLine)}, 7'); e(f's_add_u32 {s(sT0)}, {s(sT0)}, 4096'); e(f's_lshr_b32 {s(sT1)}, {s(sM0w)}, 1')
    e(f's_cmp_eq_u32 {s(sM)}, 0'); e(f's_cselect_b32 {s(sKV)}, {s(sKV)}, {s(sT0)}'); e(f's_cselect_b32 {s(sKm)}, {s(sKm)}, {s(sT1)}')
    vTc = [T[21], T[22]]; sTc = [SX, SX + 1]
    e(f's_lshl_b32 {s(sT1)}, s2, 2'); e(f's_add_u32 {s(sT1)}, {s(sT1)}, {s(sW)}')
    e(f'v_lshlrev_b32 {v(vU)}, 7, {v(vLane)}'); e(f'v_mov_b32 {v(vI2)}, 0x40000000')
    for n, per in enumerate((41, 16)):
        e(f's_mul_i32 {s(sTc[n])}, {s(sT1)}, {per*128}')
        e(f'v_cmp_gt_u32 vcc, {per}, {v(vLane)}'); e(f'v_cndmask_b32 {v(vTc[n])}, {v(vI2)}, {v(vU)}, vcc')
    e(f's_add_u32 {s(sTc[1])}, {s(sTc[1])}, 4096'); e(f's_mov_b32 {s(SJS+2)}, {F*D*2}')
    junk = lambda t: (lambda: e(t, junk=True))
    touches = [junk(f'buffer_load_dword {v(vJS2)}, {v(vTc[1])}, {s(SQ,4)}, {s(sTc[1])} offen'),
               junk(f'buffer_load_dword {v(vJS2)}, {v(vTc[0])}, {s(SGt,4)}, {s(sTc[0])} offen'),
               junk(f'buffer_load_dword {v(vJS2)}, {v(vTc[0])}, {s(SU,4)}, {s(sTc[0])} offen offset:2048')]
    if 'notouchd' not in opt: touches.append(junk(f'buffer_load_dword {v(vJS2)}, {v(vTc[0])}, {s(SJS,4)}, {s(sTc[0])} offen'))
    if 'notouch' in opt: touches = []
    if 'tearly' in opt:
        put(touches[:3]); touches = touches[3:]
    SUM = lambda b: ACC + 4 * b
    SQ_ = lambda b: ACC + 8 + 4 * b
    pend = []
    def stats(b, ks):
        c0 = '0' if ks == 0 else v(SUM(b), 4); c1 = '0' if ks == 0 else v(SQ_(b), 4)
        e(f'v_mfma_f32_16x16x32_bf16 {v(SUM(b),4)}, {v(vONE,4)}, {xf(b,ks)}, {c0}')
        e(f'v_mfma_f32_16x16x32_bf16 {v(SQ_(b),4)}, {xf(b,ks)}, {xf(b,ks)}, {c1}')
    for l in range(9):
        p.wait_tag(f'x{l}')
        if l in (4, 8):
            for k in range(2): e(f'v_add_u32 {v(vXR[k])}, 65536, {v(vXR[k])}')
        cur = []
        for kk in range(2):
            for b in range(2):
                e(f'ds_read_b128 {xf(b, 2*l+kk)}, {v(vXR[kk])} offset:{(l%4)*16384 + b*2048}')
                cur.append((b, 2 * l + kk))
        while pend: stats(*pend.pop(0))
        pend = cur
    p.wait_lg(0); e('s_barrier')
    stamp()
    while pend: stats(*pend.pop(0))
    st0 = p.snapshot()
    tmpv = T[36]
    CT = [T[40 + 8 * k] for k in range(3)]
    order = [(b, ks) for ks in range(18) for b in range(2)]
    def center(early, mid, late):
        mem = list(early)
        if 'c_late' in opt: mem, late = [], list(early) + list(mid) + list(late); mid = []
        def one():
            while mem:
                x = mem.pop(0); put([x])
                if callable(x) or isinstance(x, tuple): break
        one()
        for b in range(2):
            for r in range(4): e(f'v_mul_f32 {v(SUM(b)+r)}, {fhex(-1.0/576)}, {v(SUM(b)+r)}')
            one()
        extra = []
        for b in range(2):
            q_ = SQ_(b)
            extra += [f'v_cndmask_b32 {v(tmpv+b)}, {v(q_)}, {v(q_+1)}, {s(mk[1],2)}', f'v_cndmask_b32 {v(tmpv+b)}, {v(tmpv+b)}, {v(q_+2)}, {s(mk[2],2)}',
                      f'v_cndmask_b32 {v(tmpv+b)}, {v(tmpv+b)}, {v(q_+3)}, {s(mk[3],2)}', f'v_cndmask_b32 {v(tmpv+b)}, 0, {v(tmpv+b)}, {s(mk[0],2)}']
        extra += [None] + [f'v_mfma_f32_16x16x4_f32 {v(SQ_(b),4)}, {v(vF1)}, {v(tmpv+b)}, 0' for b in range(2)]
        extra += [f'v_mul_f32 {v(tmpv+b)}, {v(SUM(b))}, {v(SUM(b))}' for b in range(2)] + [f's_mov_b32 {s(sT0)}, {fhex(1.0/576)}', None, None]
        for b in range(2):
            extra += [f'v_fma_f32 {v(tmpv+b)}, {v(SQ_(b))}, {s(sT0)}, -{v(tmpv+b)}', f'v_max_f32 {v(tmpv+b)}, 0, {v(tmpv+b)}',
                      f'v_add_f32 {v(tmpv+b)}, {fhex(1e-5)}, {v(tmpv+b)}', f'v_rsq_f32 {v(vRS+b)}, {v(tmpv+b)}', f'v_rcp_f32 {v(vRS2+b)}, {v(tmpv+b)}']
        reads = []
        for n in range(36 + 2):
            pk, wr = [], None
            if n < 36:
                b, ks = order[n]; t = CT[n % 3]
                m = [f'v_mfma_f32_16x16x32_bf16 {v(t,4)}, {v(vSEL+2,4)}, {xf(b,ks)}, {v(SUM(b),4)}',
                     f'v_mfma_f32_16x16x32_bf16 {v(t+4,4)}, {v(vSEL,4)}, {xf(b,ks)}, {v(SUM(b),4)}']
            else: m = [None, None]
            if n >= 2:
                b, ks = order[n - 2]; t = CT[(n - 2) % 3]; l, fi = divmod(n - 2, 4)
                dst = XV + 4 * fidx(b, ks) if xf_isv(b, ks) else t
                pk = [f'v_cvt_pk_bf16_f32 {v(dst+d)}, {v(t+2*d)}, {v(t+2*d+1)}' for d in range(4)]
                wr = (f'ds_write_b128 {v(vXR[2])}, {v(dst,4)} offset:{(l%3)*16384 + fi*1024}', f'xw{l}')
            if 'c_nowr' in opt: wr = None
            put([m[0]] + pk[:2] + [m[1]] + pk[2:] + [wr])
            if n >= 2 and (n - 2) % 4 == 1 and n - 2 >= 4:
                l = (n - 2) // 4 - 1
                p.wait_lgtag(f'xw{l}', f'xr{l-1}', 'sw'); e('s_barrier')
                reads += [(f'ds_read_b128 {xf(2 + fi%2, 2*l + fi//2)}, {v(vXR[3])} offset:{(l%3)*16384 + fi*1024}', f'xr{l}') for fi in range(4)]
                if l == 4:
                    reads += [f'ds_read2st64_b32 {v(vRS+2,2)}, {v(vXR[1])} offset0:0 offset1:1', f'ds_read2st64_b32 {v(vRS2+2,2)}, {v(vXR[1])} offset0:2 offset1:3']
                    reads = [(x, 'xr4') if isinstance(x, str) else x for x in reads]
                if l == 5: mem += list(mid)
                if l == 7: mem += list(late)
            else:
                for _ in range(2):
                    if reads: put([reads.pop(0)])
            for _ in range(2):
                if extra: put([extra.pop(0)])
            if n == 17:
                assert not extra
                e(f'v_lshrrev_b32 {v(vXR[0])}, 2, {v(vL16)}'); e(f's_lshr_b32 {s(sT0)}, {s(sM0w)}, 2'); e(f's_add_u32 {s(sT0)}, {s(sT0)}, {STX}')
                e(f'v_add_u32 {v(vXR[0])}, {s(sT0)}, {v(vXR[0])}'); e(f'v_xor_b32 {v(vXR[1])}, 1024, {v(vXR[0])}')
                e(f'ds_write2st64_b32 {v(vXR[0])}, {v(vRS)}, {v(vRS+1)} offset0:0 offset1:1', 'sw'); e(f'ds_write2st64_b32 {v(vXR[0])}, {v(vRS2)}, {v(vRS2+1)} offset0:2 offset1:3', 'sw')
            one()
        p.wait_lgtag('xw8', 'xr7'); e('s_barrier')
        put([f'ds_read_b128 {xf(2 + fi%2, 16 + fi//2)}, {v(vXR[3])} offset:{2*16384 + fi*1024}' for fi in range(4)])
        put([f'ds_read_b128 {xf(*order[n])}, {v(vXR[2])} offset:{((n//4)%3)*16384 + (n%4)*1024}' for n in range(36) if not xf_isv(*order[n])])
        assert all(n >= 32 for n in range(36) if not xf_isv(*order[n]))
        if 'c_late' in opt: stamp(2)
        while mem: one()
        if 'c_late' not in opt: stamp(2)
    def q_dma(c):
        return [f's_add_u32 m0, {s(sKm)}, {QB + 8192*c}', (f'buffer_load_dwordx4 {v(vQD[0])}, {s(SQ,4)}, {s(sQo)} offen lds', f'q{c}'),
                (f'buffer_load_dwordx4 {v(vQD[1])}, {s(SQ,4)}, {s(sQo)} offen offset:1024 lds', f'q{c}'), f's_add_u32 {s(sQo)}, {s(sQo)}, {64*3456}']
    e(f's_cmp_eq_u32 {s(sM)}, 0'); e(f's_cbranch_scc1 {name}_kv')
    e(f's_cmp_lt_u32 {s(sLine)}, 9'); e(f's_cbranch_scc1 {name}_q')
    center([x for c in range(6) for x in ffn_dma(c)], ffn_dma(6) + touches, ffn_dma(7))
    stF = p.snapshot(); stF = (stF[0], [x for x in stF[1] if str(x[1]).startswith('slot')])
    e(f's_branch {name}_hdr')

    def phi(dst, src, rs, rsl, t0):
        return [f'v_mul_f32 {v(t0)}, {v(src)}, {v(rsl)}', f'v_fma_f32 {v(dst)}, {v(src)}, {v(rs)}, {s(sT1)}',
                f'v_exp_f32_e64 {v(t0)}, {v(t0)} clamp', f'v_max_f32 {v(dst)}, {s(sT1)}, {v(dst)}', f'v_add_f32 {v(dst)}, {v(dst)}, {v(t0)}']
    wf = lambda g, kk: a(WF + 8 * (g % 3) + 4 * kk, 4)
    def tr4(g, base_reg, off, kstride):
        out = []
        for kk in range(2):
            for h in range(2):
                out.append(f'ds_read_b64_tr_b16 {a(WF + 8*(g%3) + 4*kk + 2*h, 2)}, {v(base_reg)} offset:{off + kk*kstride + h*512}')
        return out
    p.label(f'{name}_q'); p.restore(st0)
    center([x for c in range(7) for x in q_dma(c)] + ffn_dma(0) + ffn_dma(1), q_dma(7) + q_dma(8) + touches, [])
    vQT = [ACC + 0, ACC + 1]
    e(f'v_lshrrev_b32 {v(ACC+2)}, 5, v0'); e(f'v_and_b32 {v(ACC+2)}, 1, {v(ACC+2)}'); e(f'v_lshlrev_b32 {v(ACC+2)}, 11, {v(ACC+2)}')
    e(f'v_subrev_u32 {v(ACC+2)}, {QB}, {v(ACC+2)}')
    for tt in range(2): e(f'v_sub_u32 {v(vQT[tt])}, {v(vTR+tt)}, {v(ACC+2)}')
    p.wait_tag('q6'); e('s_barrier')
    qtr = lambda g: tr4(g, vQT[g % 2], ((g // 2) % 4) * 8192 + (32768 if g // 2 == 8 else 0), 4096)
    for x in qtr(0) + qtr(1): e(x)
    nxt_slot = 2
    for g in range(18):
        c, tt = g // 2, g % 2
        mains = []; sl = Slots(8)
        for b in range(4):
            for kk in range(2):
                acc = PR + 16 * tt + 4 * b
                cc = '0' if (c == 0 and kk == 0) else v(acc, 4)
                mains.append(f'v_mfma_f32_16x16x32_bf16 {v(acc,4)}, {wf(g,kk)}, {xf(b, 2*c+kk)}, {cc}')
        sl.fix(-1, lambda g=g: p.need(a(WF + 8 * (g % 3), 8)))
        if g == 10: sl.fix(-1, lambda: p.wait_tag('q8'))
        if g in (2, 6, 10, 14): sl.fix(-1, 's_barrier')
        if g + 2 < 18:
            if g + 2 == 8:
                for tt2 in range(2): sl.fix(-1, f'v_add_u32 {v(vQT[tt2])}, 32768, {v(vQT[tt2])}')
            for k, x in enumerate(qtr(g + 2)): sl.fix(2 * k, x)
        if g in (2, 6, 10, 14):
            sl.stream(0, [x for x in ffn_dma(nxt_slot) if x]); nxt_slot += 1
        interleave(p, mains, sl.f)
    e('s_barrier')
    stamp(3)
    qtail = [x for x in ffn_dma(6) + ffn_dma(7) if x]
    e(f's_mov_b32 {s(sT1)}, {fhex(1e-6)}')
    for b in range(4): e(f'v_mul_f32 {v(ACC+4+b)}, {fhex(LOG2E)}, {v(vRS+b)}')
    for b in range(4):
        seqs = [phi(PR + 16 * tt + 4 * b + r, PR + 16 * tt + 4 * b + r, vRS + b, ACC + 4 + b, ACC + 8 + 4 * tt + r) for tt in range(2) for r in range(4)]
        for k in range(5):
            for sq in seqs: e(sq[k])
            if qtail: put([qtail.pop(0)])
        o = PR + 4 * b
        e(f'v_cvt_pk_bf16_f32 {v(o)}, {v(o)}, {v(o+1)}'); e(f'v_cvt_pk_bf16_f32 {v(o+1)}, {v(o+2)}, {v(o+3)}')
        e(f'v_cvt_pk_bf16_f32 {v(o+2)}, {v(o+16)}, {v(o+17)}'); e(f'v_cvt_pk_bf16_f32 {v(o+3)}, {v(o+18)}, {v(o+19)}')
        e(f's_mul_i32 {s(sT0)}, {s(sTB[b])}, 18'); e(f's_lshl_b32 {s(sT2)}, {s(sLine)}, 1'); e(f's_add_u32 {s(sT0)}, {s(sT0)}, {s(sT2)}'); e(f's_add_u32 {s(sT0)}, {s(sT0)}, {s(sJ)}')
        e(f's_lshl_b32 {s(sT0)}, {s(sT0)}, 10'); e(f's_add_u32 {s(sT0)}, {s(sT0)}, {PQ_OFF}')
        e(f'buffer_store_dwordx4 {v(o,4)}, {v(vL16)}, {s(SWS,4)}, {s(sT0)} offen sc1')
    assert not qtail
    e(f's_branch {name}_hdr')
    p.label(f'{name}_kv'); p.restore(st0)
    center([x for ks in range(4) for x in kv_dma(ks, vKD)], touches, [])
    def kacc(ct, b):
        n = ct * 16 + 4 * b
        return ('v', ACC + n) if n < 96 else ('a', JD + n - 96)
    vKT = [vT + k for k in range(4)]
    e(f'v_and_b32 {v(vT+4)}, 15, v0'); e(f'v_lshlrev_b32 {v(vT+4)}, 2, {v(vT+4)}'); e(f'v_add_u32 {v(vT+4)}, {s(sSP)}, {v(vT+4)}')
    e(f'v_bfe_u32 {v(vT+5)}, v0, 4, 2'); e(f'v_mul_u32_u24 {v(vT+5)}, 6144, {v(vT+5)}')
    e(f'v_and_b32 {v(vT+6)}, 0x1ff, {v(vTR)}'); e(f's_lshl_b32 {s(sT0)}, {s(sJ)}, 6'); e(f'v_xor_b32 {v(vT+6)}, {s(sT0)}, {v(vT+6)}')
    for u in range(4):
        e(f's_add_u32 {s(sT0)}, {s(sQF)}, {u}'); e(f's_and_b32 {s(sT1)}, {s(sT0)}, 3'); e(f's_lshl_b32 {s(sT1)}, {s(sT1)}, 5')
        e(f's_lshr_b32 {s(sT0)}, {s(sT0)}, 2'); e(f's_add_u32 {s(sT0)}, {s(sT0)}, {s(sJ)}'); e(f's_lshl_b32 {s(sT0)}, {s(sT0)}, 10')
        e(f'v_xor_b32 {v(vKT[u])}, {s(sT1)}, {v(vT+6)}'); e(f'v_add3_u32 {v(vKT[u])}, {v(vKT[u])}, {s(sT0)}, {v(vT+5)}')
    vKD2 = vT + 7
    e(f'v_mov_b32 {v(vKD2)}, {v(vKD)}')
    NR, LA = 6, 3
    kfr = lambda n: WF + 4 * (n % NR)
    def ktr(n):
        ks, ct = divmod(n, 10); aa = ct % 5
        off = (ks % 2) * 24576 + (aa // 4) * 1024 + (ct // 5) * 3072
        return [f'ds_read_b64_tr_b16 {a(kfr(n) + 2*h, 2)}, {v(vKT[aa % 4])} offset:{off + 512*h}' for h in range(2)]
    p.wait_tag('kv0'); e('s_barrier')
    for n in range(LA):
        for x in ktr(n): e(x)
    ffn_at = {14: [0], 15: [1, 2], 16: [3], 17: [4, 5]}
    for ks in range(18):
        mains = []; sl = Slots(40)
        for ct in range(10):
            n = ks * 10 + ct
            for b in range(4):
                kd, base = kacc(ct, b); acc = R(kd, base, 4)
                mains.append(f'v_mfma_f32_16x16x32_bf16 {acc}, {xf(b,ks)}, {a(kfr(n),4)}, {"0" if ks == 0 else acc}')
            sl.fix(4 * ct - 1, lambda n=n: p.need(a(kfr(n), 4)))
            if n + LA < 180:
                if (n + LA) % 10 == 0:
                    nk = (n + LA) // 10
                    sl.fix(4 * ct - 1, lambda nk=nk: p.wait_tag(f'kv{nk}')); sl.fix(4 * ct, 's_barrier')
                    if nk % 2 == 0:
                        dlt = 49152 if nk % 6 else -98304
                        for u in range(4): sl.fix(4 * ct - 3 + u // 2, f'v_add_u32 {v(vKT[u])}, {dlt & 0xffffffff:#x}, {v(vKT[u])}')
                t2 = ktr(n + LA)
                late = (n + LA) % 10 == 0
                early = (n + LA) % 10 == 9
                sl.fix(4 * ct + (1 if late else 0), t2[0]); sl.fix(4 * ct + (0 if early else 2), t2[1])
        dm = []
        if ks == 3: sl.stream(30, [f'ds_write_b32 {v(vT+4)}, {v(vRS+b)} offset:{64*b}' for b in range(4)])
        if ks <= 13: dm = kv_dma(ks + 4, vKD2)
        elif ks in ffn_at: dm = [x for t in ffn_at[ks] for x in ffn_dma(t) if x]
        sl.stream(0, dm, last=26)
        interleave(p, mains, sl.f)
    p.wait_lg(0); e('s_barrier')
    put(ffn_dma(6)); put(ffn_dma(7))
    stamp(4)
    e(f'v_bfe_u32 {v(vRS)}, v0, 4, 2'); e(f'v_lshlrev_b32 {v(vRS)}, 4, {v(vRS)}'); e(f'v_add_u32 {v(vRS)}, {s(sSP)}, {v(vRS)}')
    for k in range(4): e(f'v_accvgpr_write_b32 {a(WF+k)}, {s(sOnes)}')
    e(f's_mov_b32 {s(sT1)}, {fhex(1e-6)}')
    def pack8(dstkind, dst, src):
        for d in range(4):
            e(f'v_cvt_pk_bf16_f32 {v(dst+d) if dstkind == "v" else v(src+2*d)}, {v(src+2*d)}, {v(src+2*d+1)}')
        if dstkind == 'a':
            for d in range(4): e(f'v_accvgpr_write_b32 {a(dst+d)}, {v(src+2*d)}')
    PV = {}; PK = {}
    for hb in range(2):
        e(f'ds_read_b128 {v(vT,4)}, {v(vRS)} offset:{128*hb}'); e(f'ds_read_b128 {v(vT+4,4)}, {v(vRS)} offset:{128*hb+64}')
        base = ACC + 80 + 8 * hb
        for k in range(8): e(f'v_mul_f32 {v(base+k)}, {v(base+k)}, {v(vT+k)}')
        pack8('a', WF + 4 + 4 * hb, base); PV[0, hb] = a(WF + 4 + 4 * hb, 4)
        TM = ACC + 80
        for T_ in range(1, 5):
            ab = JD + 16 * (T_ - 1) + 8 * hb
            for k in range(8): e(f'v_accvgpr_read_b32 {v(TM+k)}, {a(ab+k)}')
            for k in range(8): e(f'v_mul_f32 {v(TM+k)}, {v(TM+k)}, {v(vT+k)}')
            pack8('a', ab, TM); PV[T_, hb] = a(ab, 4)
        for k in range(8): e(f'v_mul_f32 {v(TM+k)}, {fhex(LOG2E)}, {v(vT+k)}')
        for aa in range(5):
            base = ACC + 16 * aa + 8 * hb
            for half in range(2):
                tt = [vRS + 1, vRS + 2, vRS + 3, vJS2]
                seqs = [phi(base + 4*half + r, base + 4*half + r, vT + 4*half + r, TM + 4*half + r, tt[r]) for r in range(4)]
                for k in range(5):
                    for sq in seqs: e(sq[k])
            pack8('v', base, base); PK[aa, hb] = v(base, 4)
    e(f's_lshl_b32 {s(sT1)}, {s(sT)}, 1'); e(f's_add_u32 {s(sT1)}, {s(sT1)}, {s(sI)}'); e(f's_lshl_b32 {s(sT1)}, {s(sT1)}, 3')
    e(f's_lshl_b32 {s(sT0)}, {s(sQF)}, 1'); e(f's_add_u32 {s(sT0)}, {s(sT0)}, {s(sJ)}'); e(f's_add_u32 {s(sT1)}, {s(sT1)}, {s(sT0)}')
    e(f's_mul_i32 {s(sT1)}, {s(sT1)}, {18*1024}'); e(f's_add_u32 {s(sT1)}, {s(sT1)}, {KVP_OFF}')
    dt = [ACC + 16 * k + 8 * h + 4 for k in range(5) for h in range(2)]
    outs = [(aa, T_) for (aa, T_) in KV_PAIRS] + [(aa, None) for aa in range(5)]
    pend_st = []
    for u, (aa, T_) in enumerate(outs):
        d = v(dt[u % 10], 4)
        for hb in range(2):
            e(f'v_mfma_f32_16x16x32_bf16 {d}, {PK[aa, hb]}, {a(WF,4) if T_ is None else PV[T_, hb]}, {"0" if hb == 0 else d}')
        pend_st.append((u, d))
        if len(pend_st) > 4 or u == 17:
            while pend_st and (len(pend_st) > 4 or u == 17):
                uu, dd = pend_st.pop(0)
                e(f'buffer_store_dwordx4 {dd}, {v(vL16)}, {s(SWS,4)}, {s(sT1)} offen offset:{1024*(uu%4)} sc1')
                if uu % 4 == 3: e(f's_add_u32 {s(sT1)}, {s(sT1)}, 4096')
    p.label(f'{name}_hdr'); p.restore(stF)
    stamp(5)
    acc = lambda ai, b: ACC + 16 * ai + 4 * b
    def ftr(G):
        G %= 36; c, g = divmod(G, 4)
        return tr4(G, vTR + 2 * (c // 4) + (g >> 1), (c % 4) * 16384 + (g & 1) * 2048, 8192)
    p.wait_tag('slot0'); e('s_barrier')
    for x in ftr(0) + ftr(1): e(x)
    def prod(h, b): return [f'v_mul_f32 {v(PR + 16*h + 4*b + r)}, {v(acc(2*h, b) + r)}, {v(acc(2*h+1, b) + r)}' for r in range(4)]
    def fin(b):
        o = PR + 4 * b
        return ([f'v_mul_f32 {v(o + 16*h + r)}, {v(o + 16*h + r)}, {v(vRS2+b)}' for h in range(2) for r in range(4)] +
                [f'v_cvt_pk_bf16_f32 {v(o)}, {v(o)}, {v(o+1)}', f'v_cvt_pk_bf16_f32 {v(o+1)}, {v(o+2)}, {v(o+3)}',
                 f'v_cvt_pk_bf16_f32 {v(o+2)}, {v(o+16)}, {v(o+17)}', f'v_cvt_pk_bf16_f32 {v(o+3)}, {v(o+18)}, {v(o+19)}',
                 f'buffer_store_dwordx4 {v(o,4)}, {v(vL16)}, {s(SH,4)}, {s(sH+b)} offen sc1', f's_add_u32 {s(sH+b)}, {s(sH+b)}, 2048'])
    def body():
        mains = []; sl = Slots(288)
        for G in range(36):
            c, g = divmod(G, 4)
            for b in range(4):
                for kk in range(2):
                    cc = '0' if (c == 0 and kk == 0) else v(acc(g, b), 4)
                    mains.append(f'v_mfma_f32_16x16x32_bf16 {v(acc(g,b),4)}, {wf(G,kk)}, {xf(b, 2*c+kk)}, {cc}')
            sl.fix(8 * G - 1, lambda G=G: p.need(a(WF + 8 * (G % 3), 8)))
            if g == 2:
                sl.fix(8 * G - 1, lambda c=c: p.wait_tag(f'slot{(c+1)%9}')); sl.fix(8 * G, 's_barrier')
            for k, x in enumerate(ftr(G + 2)): sl.fix(8 * G + 2 * k + (1 if g == 2 else 0), x)
        sl.stream(8 * 33 + 5, prod(0, 0), last=8 * 34 - 1, cap=3)
        sl.stream(8 * 34 + 1, prod(0, 1) + prod(0, 2) + prod(0, 3), last=287)
        sl.stream(0, prod(1, 0) + prod(1, 1) + prod(1, 2) + prod(1, 3), last=15)
        for c in range(9):
            d = [x for x in ffn_dma((c - 1) % 9) if x]
            if c == 0:
                d[-1] = f's_add_u32 {s(sWo)}, {s(sWo)}, {(128 - 8*CH) & 0xffffffff:#x}'
                d += [lambda: put([f's_cmp_eq_u32 {s(sCnt)}, 1', f's_cselect_b32 {s(SGt+2)}, 0, {s(SGt+2)}', f's_cselect_b32 {s(SU+2)}, 0, {s(SU+2)}'])]
            if c < 8: sl.stream(32 * c + 17, d, last=32 * c + 31, gap=1)
            else: sl.stream(32 * c + 17, d, last=287, cap=3)
        j1 = [f's_mov_b32 {s(SJS+q)}, {s(JP[q])}' for q in range(3)] + [f's_mov_b32 {s(sJo)}, {s(JP[3])}', f's_mov_b32 {s(SJD+2)}, {s(JP[5])}']
        k = sl.stream(16, j1, last=31)
        jl = [f's_mov_b32 m0, {s(sSP)}']
        for q in range(4):
            jl += [(f'buffer_load_dwordx4 {v(vJS)}, {s(SJS,4)}, {s(sJo)} offen offset:{1024*q} lds', 'job'), f's_add_u32 {s(sJo)}, {s(sJo)}, 8192']
        k = sl.stream(32, jl, last=47, gap=1)
        k = sl.stream(16, fin(0) + fin(1) + fin(2) + fin(3) + [f's_mov_b32 {s(SH+2)}, {PQ_OFF}'], gap=1)
        j2 = [f's_mov_b32 {s(sJo)}, {s(JP[4])}'] + [f's_mov_b32 {s(JP[q])}, {s(JP[6+q])}' for q in range(6)]
        j2 += [f's_mov_b32 {s(JP[8])}, 0', f's_mov_b32 {s(JP[11])}, 0']
        j2 += [f'v_xor_b32 {v(vT+u)}, {32*u}, {v(vJT)}' for u in range(1, 4)]
        k = sl.stream(k + 1, j2)
        assert k < 32 * 6
        j3 = [lambda: p.wait_tag('job')]
        for u in range(4):
            for h in range(2): j3.append(f'ds_read_b64_tr_b16 {a(JD + 4*u + 2*h, 2)}, {v(vT+u) if u else v(vJT)} offset:{2048*h}')
        k = sl.stream(32 * 6 + 26, j3, gap=1)
        jst = [f'buffer_store_dwordx4 {a(JD+4*u,4)}, {v(vL16)}, {s(SJD,4)}, {s(sJo)} offen offset:{1024*u} sc1' for u in range(4)]
        k = sl.stream(k + 2, jst, gap=3)
        assert k < 8 * 33
        def keep(x):
            t = x[0] if isinstance(x, tuple) else x
            if not isinstance(t, str): return True
            if 'nodma' in opt and t.endswith('lds'): return False
            if 'nobar' in opt and t == 's_barrier': return False
            if 'nost' in opt and t.startswith('buffer_store'): return False
            if 'notr' in opt and t.startswith('ds_read'): return False
            if 'novalu' in opt and t.startswith('v_'): return False
            return True
        interleave(p, mains, {k_: [x for x in l_ if keep(x)] for k_, l_ in sl.f.items()})
    def back():
        e(f's_sub_u32 {s(sCnt)}, {s(sCnt)}, 1'); e(f's_cmp_lg_u32 {s(sCnt)}, 0'); e(f's_cbranch_scc1 {name}_loop')
    p.loop(body, f'{name}_loop', back)
    stamp(6)
    for b in range(4):
        for x in prod(1, b): e(x)
    for b in range(4):
        for x in fin(b): e(x)
    e(f'v_mov_b32 {v(vT)}, 0'); e(f's_lshl_b32 {s(sT1)}, s2, 7'); e(f's_add_u32 {s(sT1)}, {s(sT1)}, {FLAG_OFF}')
    e(f'v_and_b32 {v(vT+1)}, 3, v0'); e(f'v_lshlrev_b32 {v(vT+1)}, 2, {v(vT+1)}')
    e(f'buffer_store_dword {v(vT)}, {v(vT+1)}, {s(SWS,4)}, {s(sT1)} offen')
    e(f's_and_b32 {s(sT1)}, s2, 7'); e(f's_lshl_b32 {s(sT1)}, {s(sT1)}, 7'); e(f's_add_u32 {s(sT1)}, {s(sT1)}, {CNT_OFF}')
    e(f'buffer_store_dword {v(vT)}, {v(vT)}, {s(SWS,4)}, {s(sT1)} offen')
    if stamps: p.wait_all()
    stamp(7)
    p.label(END)
    return p, V.nxt, A.nxt, NXV
```

```python
import sys, build
from layout import *
MULT = 4
def tkernel(A, B, wgs=None):
    L = []; e = L.append
    e('s_cmp_ge_u32 s2, 1'); e('s_cbranch_scc1 t_end')
    e('s_load_dwordx2 s[4:5], s[0:1], 72'); e('s_waitcnt lgkmcnt(0)')
    e('s_mov_b32 s8, s4'); e('s_mov_b32 s9, s5'); e('s_mov_b32 s10, 0x10000000'); e('s_mov_b32 s11, 0x20000')
    if wgs is None:
        e('v_lshlrev_b32 v1, 12, v0'); offs = [0, 1024, 2048, 3072]
    else:
        base, step = wgs
        e(f'v_lshrrev_b32 v2, 1, v0'); e('v_and_b32 v2, 7, v2'); e('v_lshlrev_b32 v2, 5, v2')
        e('v_and_b32 v3, 1, v0'); e('v_lshlrev_b32 v3, 2, v3'); e('v_or_b32 v2, v2, v3')
        e(f'v_or_b32 v2, {base}, v2'); e('v_lshlrev_b32 v1, 10, v2'); offs = [0, 256, 512, 768]
    for n, (kern, k, op) in enumerate((A, B)):
        e(f's_mov_b32 s12, {STAMP_OFF + kern*262144 + 4*k}')
        for j, o in enumerate(offs): e(f'buffer_load_dword v{4+j}, v1, s[8:11], s12 offen offset:{o} sc1')
        e('s_waitcnt vmcnt(0)')
        for j in range(1, 4): e(f'v_{op}_u32 v4, v4, v{4+j}')
        e('s_nop 1'); e(f'v_readlane_b32 s{20+n}, v4, 0')
        for l in range(1, 64):
            e(f'v_readlane_b32 s13, v4, {l}'); e('s_nop 0'); e(f's_{op}_u32 s{20+n}, s{20+n}, s13')
    e('s_sub_u32 s20, s21, s20'); e('s_min_u32 s20, s20, 20000'); e(f's_mul_i32 s20, s20, {MULT}')
    e('s_memrealtime s[14:15]'); e('s_waitcnt lgkmcnt(0)')
    e('t_spin:'); e('s_memrealtime s[16:17]'); e('s_waitcnt lgkmcnt(0)'); e('s_sub_u32 s18, s16, s14'); e('s_cmp_lt_u32 s18, s20'); e('s_cbranch_scc1 t_spin')
    e('t_end:')
    return build.wrap('t_kernel', '\n'.join(L), 16, 16)
def make(src, out, A, B, wgs=None):
    s = open(src).read()
    i = s.index('.amdgcn_target')
    open(out, 'w').write(s[:i] + '; @launch kernel=t_kernel grid=(1,1,1) block=(64,1,1) lds=0\n' + s[i:] + tkernel(A, B, wgs))
if __name__ == '__main__':
    src = sys.argv[1]
    specs = {'z': ((0,0,'min'), (0,0,'min'), None), 'k1': ((0,0,'min'), (0,7,'max'), None), 'all': ((0,0,'min'), (1,6,'max'), None),
             'k2': ((1,0,'min'), (1,6,'max'), None), 'pro': ((0,0,'min'), (0,2,'max'), None), 'x': ((0,0,'min'), (0,1,'max'), None),
             'floop': ((0,5,'max'), (0,6,'max'), (8+3, 0)), 'kvs': ((0,2,'max'), (0,4,'max'), (0, 0)), 'k2m': ((1,1,'max'), (1,2,'max'), None), 'k2p': ((1,0,'min'), (1,1,'max'), None),
             'e0': ((0,10,'min'), (0,0,'min'), None), 'e0x': ((0,10,'min'), (0,10,'max'), None), 'gap': ((0,7,'max'), (1,15,'min'), None), 'e2': ((1,15,'min'), (1,0,'max'), None), 'tail': ((1,2,'max'), (1,6,'max'), None), 'k1e': ((0,10,'min'), (0,7,'max'), None), 'k2e': ((1,15,'min'), (1,6,'max'), None), 't34': ((1,3,'max'), (1,4,'max'), None), 't56': ((1,5,'max'), (1,6,'max'), None), 't23': ((1,2,'max'), (1,3,'max'), None), 'tot': ((0,10,'min'), (1,6,'max'), None)}
    for n in sys.argv[2:]: make(src, f'p_{n}.s', *specs[n])
```

```python
from asmlib import *
from layout import *

LOG2E = 1.4426950408889634
def fhex(x):
    import struct
    return '0x%08x' % struct.unpack('<I', struct.pack('<f', x))[0]

SP0 = 147456
STX = 98304
CH = 64 * 9216

def gen_k1(name, stamps=False, opt=()):
    p = Prog(); e = p.e
    V = Alloc('v', 1, 256); A = Alloc('a', 0, 256); SG = Alloc('s', 56, 100)
    SX, SQ, SGt, SU, SWS, SH, SJS, SJD = 4, 8, 12, 16, 20, 24, 28, 32
    KA = 36
    sW, sI, sJ, sT, sQF, sM = (SG.get(n) for n in ('w', 'i', 'j', 't', 'qf', 'm'))
    sWo, sCnt, sM0w, sJob, sJo, sT0, sT1, sT2 = (SG.get(n) for n in ('wo', 'cnt', 'm0w', 'job', 'jo', 't0', 't1', 't2'))
    sH = SG.get('h', 4, 1); sKV = SG.get('kv', 6, 1); sSP = SG.get('sp'); sLine = SG.get('line'); sKm = SG.get('km'); sTo = SG.get('to')
    mk = [SG.get(f'mk{k}', 2) for k in range(4)]
    sSt = SG.get('st', 2); sStO = SG.get('sto'); sOnes = SG.get('ones')
    JP = [36, 37, 38, 39, 42, 43, 44, 45, 46, 47, 50, 51]
    vJS = V.get('js'); vJT = V.get('jt'); vTg = V.get('tg')
    ACC = V.get('acc', 64); PR = V.get('prod', 32)
    vTR = V.get('tr', 6, 1); vDM = V.get('dm', 2, 1); vL16 = V.get('l16'); vJS2 = V.get('spare'); vRS = V.get('rs', 4, 2); vRS2 = V.get('rs2', 4, 2)
    vTj = V.get('tj'); vT = V.get('tmp', 8, 4)
    NXV = (256 - V.nxt) // 4
    XV = V.get('xv', 4 * NXV)
    WF = A.get('wf', 24); XA = A.get('xa', 4 * (72 - NXV)); JD = A.get('jd', 64)
    fidx = lambda b, ks: 2 * ks + b if b < 2 else 36 + 2 * ks + b - 2
    def xf(b, ks):
        f = fidx(b, ks)
        return v(XV + 4 * f, 4) if f < NXV else a(XA + 4 * (f - NXV), 4)
    def xf_isv(b, ks): return fidx(b, ks) < NXV
    nstamp = [0]
    def stamp(k=None):
        if not stamps: return
        if k is None:
            k = nstamp[0]; nstamp[0] += 1
        p.wait_lg(0)
        if k == 0:
            e(f'v_mov_b32 {v(vT+7)}, s100'); e(f'v_mov_b32 {v(vT+6)}, 0'); e(f'buffer_store_dword {v(vT+7)}, {v(vT+6)}, {s(SWS,4)}, {s(sStO)} offen offset:40')
        e(f's_memrealtime {s(sSt,2)}'); p.wait_lg(0)
        e(f'v_mov_b32 {v(vT+7)}, {s(sSt)}'); e(f's_add_u32 {s(sT2)}, {s(sStO)}, {4*k}')
        e(f'v_mov_b32 {v(vT+6)}, 0')
        e(f'buffer_store_dword {v(vT+7)}, {v(vT+6)}, {s(SWS,4)}, {s(sT2)} offen')
        e(f's_memtime {s(sSt,2)}'); p.wait_lg(0)
        e(f'v_mov_b32 {v(vT+7)}, {s(sSt)}')
        e(f'buffer_store_dword {v(vT+7)}, {v(vT+6)}, {s(SWS,4)}, {s(sT2)} offen offset:128')

    END = f'{name}_end'
    if stamps: p.raw('s_memrealtime s[100:101]')
    e('s_cmp_ge_u32 s2, 256'); e(f's_cbranch_scc1 {END}')
    e(f's_load_dwordx8 {s(KA,8)}, s[0:1], 0'); e(f's_load_dwordx8 {s(KA+8,8)}, s[0:1], 32'); e(f's_load_dwordx4 {s(KA+16,4)}, s[0:1], 64')
    T = [ACC + 32 + k for k in range(32)] + [PR + k for k in range(32)]
    vLane, vL3, vL4, vC7, vN, vI2, vB = T[0:7]
    vXO = T[8:12]; vXR = T[12:16]
    e(f'v_lshrrev_b32 {v(vB)}, 6, v0'); e(f'v_and_b32 {v(vLane)}, 63, v0')
    e(f'v_readfirstlane_b32 {s(sW)}, {v(vB)}')
    e(f'v_lshrrev_b32 {v(vL3)}, 3, {v(vLane)}'); e(f'v_lshrrev_b32 {v(vL4)}, 4, {v(vLane)}'); e(f'v_and_b32 {v(vC7)}, 7, {v(vLane)}')
    e(f'v_and_b32 {v(vN)}, 15, {v(vLane)}'); e(f'v_lshlrev_b32 {v(vL16)}, 4, {v(vLane)}')
    e(f's_and_b32 {s(sQF)}, s2, 3'); e(f's_bfe_u32 {s(sT0)}, s2, 0x10002'); e(f's_lshr_b32 {s(sT1)}, s2, 5')
    e(f's_lshl_b32 {s(sT0)}, {s(sT0)}, 3'); e(f's_add_u32 {s(sT)}, {s(sT0)}, {s(sT1)}'); e(f's_bfe_u32 {s(sM)}, s2, 0x20003')
    e(f's_lshr_b32 {s(sI)}, {s(sW)}, 1'); e(f's_and_b32 {s(sJ)}, {s(sW)}, 1')
    e(f's_lshl_b32 {s(sM0w)}, {s(sW)}, 12'); e(f's_add_u32 {s(sSP)}, {s(sM0w)}, {SP0}')
    e(f's_lshl_b32 {s(sT0)}, {s(sW)}, 5'); e(f'v_add_u32 {v(vB)}, {s(sT0)}, {v(vL3)}'); e(f'v_mul_u32_u24 {v(vB)}, 1152, {v(vB)}')
    for q in range(4):
        e(f'v_or_b32 {v(vI2)}, {4*(q&1)}, {v(vL4)}'); e(f'v_xor_b32 {v(vI2)}, {v(vI2)}, {v(vC7)}')
        e(f'v_lshl_add_u32 {v(vXO[q])}, {v(vI2)}, 4, {v(vB)}')
        if q: e(f'v_add_u32 {v(vXO[q])}, {8192*q}, {v(vXO[q])}')
    e(f's_mul_i32 {s(sT0)}, {s(sT)}, {128*1152}')
    p.wait_lg(0)
    def srd(r, ptr, nbytes, back=0):
        if back:
            e(f's_sub_u32 {s(r)}, {s(ptr)}, {back}'); e(f's_subb_u32 {s(r+1)}, {s(ptr+1)}, 0')
        else:
            e(f's_mov_b32 {s(r)}, {s(ptr)}'); e(f's_mov_b32 {s(r+1)}, {s(ptr+1)}')
        e(f's_mov_b32 {s(r+2)}, {nbytes + back}'); e(f's_mov_b32 {s(r+3)}, 0x20000')
    srd(SX, KA + 0, S * D * 2)
    for l in range(9):
        e(f's_add_u32 m0, {s(sM0w)}, {l*16384}')
        if l: e(f's_add_u32 {s(sT0)}, {s(sT0)}, 128')
        else: e('s_nop 0')
        for q in range(4):
            e(f'buffer_load_dwordx4 {v(vXO[q])}, {s(SX,4)}, {s(sT0)} offen offset:{1024*q} lds', tag=f'x{l}')
    if 'nocode' not in opt:
        p.raw(f's_getpc_b64 {s(sSt,2)}'); p.label(f'{name}_pc')
        e(f's_lshl_b32 {s(sT1)}, {s(sW)}, 13'); e(f'v_lshlrev_b32 {v(vI2)}, 7, {v(vLane)}'); e(f'v_add_u32 {v(vI2)}, {s(sT1)}, {v(vI2)}')
        for kk in range(3):
            e(f'v_min_u32 {v(vB)}, code_end - {name}_pc - 4, {v(vI2)}')
            e(f'global_load_dword {v(vJS2)}, {v(vB)}, {s(sSt,2)}', junk=True)
            if kk < 2: e(f'v_add_u32 {v(vI2)}, 32768, {v(vI2)}')
    srd(SQ, KA + 2, D * 3 * D * 2, back=4096); srd(SGt, KA + 8, D * F * 2); srd(SU, KA + 10, D * F * 2, back=2048)
    srd(SWS, KA + 18, WS_USED); srd(SH, KA + 18, 0); srd(SJS, KA + 12, 0); srd(SJD, KA + 18, REC_OFF)
    if stamps:
        e(f's_lshl_b32 {s(sStO)}, s2, 2'); e(f's_add_u32 {s(sStO)}, {s(sStO)}, {s(sW)}'); e(f's_lshl_b32 {s(sStO)}, {s(sStO)}, 8'); e(f's_add_u32 {s(sStO)}, {s(sStO)}, {STAMP_OFF}')
    stamp()
    vQ = vL4
    e(f'v_lshrrev_b32 {v(vI2)}, 1, {v(vN)}'); e(f'v_xor_b32 {v(vI2)}, {v(vI2)}, {v(vQ)}'); e(f'v_lshlrev_b32 {v(vI2)}, 4, {v(vI2)}')
    e(f'v_lshl_add_u32 {v(vI2)}, {v(vN)}, 7, {v(vI2)}')
    e(f'v_add_u32 {v(vXR[0])}, {s(sM0w)}, {v(vI2)}'); e(f'v_xor_b32 {v(vXR[1])}, 64, {v(vXR[0])}')
    EX = 114688
    e(f's_add_u32 {s(sT0)}, {s(sM0w)}, {EX}'); e(f'v_add_u32 {v(vXR[2])}, {s(sT0)}, {v(vL16)}'); e(f'v_xor_b32 {v(vXR[3])}, 4096, {v(vXR[2])}')
    def wdma_off(dst, stride, rows_per_wave, pp, bit3):
        e(f's_mul_i32 {s(sT0)}, {s(sW)}, {rows_per_wave}'); e(f's_add_u32 {s(sT0)}, {s(sT0)}, {8*pp}')
        e(f'v_add_u32 {v(vB)}, {s(sT0)}, {v(vL3)}'); e(f'v_mul_u32_u24 {v(vB)}, {stride}, {v(vB)}')
        e(f'v_and_b32 {v(vI2)}, 1, {v(vL4)}'); e(f'v_lshlrev_b32 {v(vI2)}, 1, {v(vI2)}')
        if bit3 == 'w':
            e(f's_lshl_b32 {s(sT0)}, {s(sJ)}, 2'); e(f'v_or_b32 {v(vI2)}, {s(sT0)}, {v(vI2)}')
        elif bit3: e(f'v_or_b32 {v(vI2)}, 4, {v(vI2)}')
        e(f'v_xor_b32 {v(vI2)}, {v(vI2)}, {v(vC7)}'); e(f'v_lshl_add_u32 {v(dst)}, {v(vI2)}, 4, {v(vB)}')
        if pp: e(f'v_subrev_u32 {v(dst)}, {1024*pp}, {v(dst)}')
    wdma_off(vDM, 9216, 16, 0, 0); wdma_off(vDM + 1, 9216, 16, 1, 1)
    vQD = T[16:18]; vKD = T[18]
    wdma_off(vQD[0], 3456, 16, 0, 0); wdma_off(vQD[1], 3456, 16, 1, 1); wdma_off(vKD, 3456, 8, 0, 'w')
    vTL, vU = T[19], T[20]
    e(f'v_lshrrev_b32 {v(vI2)}, 3, {v(vN)}'); e(f'v_and_b32 {v(vU)}, 1, {v(vQ)}'); e(f'v_lshl_or_b32 {v(vI2)}, {v(vU)}, 1, {v(vI2)}')
    e(f'v_lshlrev_b32 {v(vI2)}, 5, {v(vI2)}')
    e(f'v_and_b32 {v(vU)}, 3, {v(vN)}'); e(f'v_lshl_or_b32 {v(vI2)}, {v(vU)}, 3, {v(vI2)}')
    e(f'v_lshrrev_b32 {v(vU)}, 2, {v(vN)}'); e(f'v_lshl_or_b32 {v(vTL)}, {v(vU)}, 7, {v(vI2)}')
    e(f'v_lshrrev_b32 {v(vU)}, 1, {v(vQ)}'); e(f'v_lshlrev_b32 {v(vU)}, 12, {v(vU)}')
    e(f'v_and_b32 {v(vI2)}, 1, {v(vQ)}'); e(f'v_lshl_or_b32 {v(vU)}, {v(vI2)}, 10, {v(vU)}'); e(f'v_or_b32 {v(vU)}, {v(vU)}, {v(vTL)}')
    e(f's_lshl_b32 {s(sT0)}, {s(sJ)}, 6'); e(f'v_xor_b32 {v(vTR)}, {s(sT0)}, {v(vU)}'); e(f'v_xor_b32 {v(vTR+1)}, 32, {v(vTR)}')
    for r in (1, 2):
        for tt in range(2): e(f'v_add_u32 {v(vTR+2*r+tt)}, {65536*r}, {v(vTR+tt)}')
    e(f'v_lshlrev_b32 {v(vI2)}, 1, {v(vL4)}'); e(f'v_xor_b32 {v(vI2)}, {v(vI2)}, {v(vC7)}'); e(f'v_lshlrev_b32 {v(vI2)}, 4, {v(vI2)}')
    e(f'v_mul_u32_u24 {v(vU)}, 1152, {v(vL3)}'); e(f'v_add_u32 {v(vJS)}, {v(vU)}, {v(vI2)}')
    e(f'v_lshlrev_b32 {v(vU)}, 9, {v(vQ)}'); e(f'v_add_u32 {v(vU)}, {s(sSP)}, {v(vU)}'); e(f'v_add_u32 {v(vJT)}, {v(vU)}, {v(vTL)}')
    vONE = T[24]; vSEL = T[28]; vF1 = T[34]
    assert vONE % 4 == 0 and vSEL % 4 == 0
    e(f's_mov_b32 {s(sOnes)}, 0x3f803f80')
    for k in range(4): e(f'v_mov_b32 {v(vONE+k)}, {s(sOnes)}')
    e(f'v_mov_b32 {v(vF1)}, 1.0')
    e(f'v_lshrrev_b32 {v(vU)}, 2, {v(vN)}'); e(f'v_cmp_eq_u32 {s(mk[0],2)}, {v(vU)}, {v(vQ)}')
    e(f'v_and_b32 {v(vU)}, 3, {v(vN)}')
    for k in (1, 2, 3): e(f'v_cmp_eq_u32 {s(mk[k],2)}, {k}, {v(vU)}')
    e(f'v_and_b32 {v(vI2)}, 1, {v(vN)}'); e(f'v_lshlrev_b32 {v(vI2)}, 4, {v(vI2)}'); e(f'v_mov_b32 {v(vB)}, 0x3f80'); e(f'v_lshlrev_b32 {v(vB)}, {v(vI2)}, {v(vB)}')
    e(f'v_cndmask_b32 {v(vB)}, 0, {v(vB)}, {s(mk[0],2)}')
    e(f'v_cmp_gt_u32 vcc, 2, {v(vU)}')
    for k in (0, 1, 4, 5): e(f'v_mov_b32 {v(vSEL+k)}, 0')
    e(f'v_cndmask_b32 {v(vSEL+2)}, 0, {v(vB)}, vcc'); e(f'v_cndmask_b32 {v(vSEL+3)}, {v(vB)}, 0, vcc')
    def ffn_dma(slot, tag=None):
        return [f's_add_u32 m0, {s(sM0w)}, {slot*16384}', None,
                (f'buffer_load_dwordx4 {v(vDM)}, {s(SGt,4)}, {s(sWo)} offen lds', tag or f'slot{slot}'),
                (f'buffer_load_dwordx4 {v(vDM+1)}, {s(SGt,4)}, {s(sWo)} offen offset:1024 lds', tag or f'slot{slot}'),
                (f'buffer_load_dwordx4 {v(vDM)}, {s(SU,4)}, {s(sWo)} offen offset:2048 lds', tag or f'slot{slot}'),
                (f'buffer_load_dwordx4 {v(vDM+1)}, {s(SU,4)}, {s(sWo)} offen offset:3072 lds', tag or f'slot{slot}'),
                f's_add_u32 {s(sWo)}, {s(sWo)}, {CH}']
    def put(lst):
        for x in lst:
            if x is None: continue
            if callable(x): x()
            elif isinstance(x, tuple): e(x[0], x[1])
            else: e(x)
    def kv_dma(ks, vk):
        slot = ks % 6; out = []
        for st in range(6):
            if st % 4 == 0: out.append(f's_add_u32 m0, {s(sKm)}, {slot*24576 + (st//4)*4096}')
            out.append((f'buffer_load_dwordx4 {v(vk)}, {s(SQ,4)}, {s(sKV+st)} offen offset:{1024*(st%4)} lds', f'kv{ks}'))
            out.append(f's_add_u32 {s(sKV+st)}, {s(sKV+st)}, {32*3456}')
        return out
    e(f's_mul_i32 {s(sT0)}, {s(sM)}, 5'); e(f's_sub_u32 {s(sT0)}, {s(sT0)}, 2'); e(f's_max_i32 {s(sT0)}, {s(sT0)}, 0')
    e(f's_mul_i32 {s(sT1)}, {s(sQF)}, 18'); e(f's_add_u32 {s(sT0)}, {s(sT0)}, {s(sT1)}')
    e(f's_lshl_b32 {s(sWo)}, {s(sT0)}, 7')
    e(f's_lshl_b32 {s(sT0)}, {s(sT0)}, 1'); e(f's_add_u32 {s(sT0)}, {s(sT0)}, {s(sJ)}'); e(f's_sub_u32 {s(sT0)}, {s(sT0)}, 2')
    e(f's_lshl_b32 {s(sT1)}, {s(sT)}, 3'); e(f's_lshl_b32 {s(sT2)}, {s(sI)}, 2'); e(f's_add_u32 {s(sT1)}, {s(sT1)}, {s(sT2)}')
    e(f's_lshl_b32 {s(sT2)}, {s(sJ)}, 1')
    sTB = [SG.get(f'tb{b}') for b in range(4)]
    for b in range(4):
        e(f's_xor_b32 {s(sTB[b])}, {s(sT2)}, {b}'); e(f's_add_u32 {s(sTB[b])}, {s(sTB[b])}, {s(sT1)}')
        e(f's_mul_i32 {s(sH+b)}, {s(sTB[b])}, 144'); e(f's_add_u32 {s(sH+b)}, {s(sH+b)}, {s(sT0)}'); e(f's_lshl_b32 {s(sH+b)}, {s(sH+b)}, 10')
    e(f's_cmp_eq_u32 {s(sM)}, 0'); e(f's_cselect_b32 {s(sCnt)}, 3, 5')
    e(f's_lshl_b32 {s(sJob)}, s2, 2'); e(f's_add_u32 {s(sJob)}, {s(sJob)}, {s(sW)}')
    e(f's_mul_i32 {s(sLine)}, {s(sQF)}, 3'); e(f's_add_u32 {s(sLine)}, {s(sLine)}, {s(sM)}'); e(f's_sub_u32 {s(sLine)}, {s(sLine)}, 1')
    for n in range(2):
        jb = JP[6 * n: 6 * n + 6]
        e(f's_mov_b32 {s(jb[2])}, {F*D*2}')
        e(f's_cmp_lt_u32 {s(sJob)}, {NJOB_WD}')
        e(f's_cselect_b32 {s(jb[0])}, {s(KA+12)}, {s(KA+4)}'); e(f's_cselect_b32 {s(jb[1])}, {s(KA+13)}, {s(KA+5)}')
        e(f's_cselect_b32 {s(jb[2])}, {s(jb[2])}, {D*D*2}'); e(f's_cselect_b32 {s(sT0)}, 0, {NJOB_WD}')
        e(f's_sub_u32 {s(sT0)}, {s(sJob)}, {s(sT0)}'); e(f's_mul_i32 {s(sT1)}, {s(sT0)}, 7282'); e(f's_lshr_b32 {s(sT1)}, {s(sT1)}, 16')
        e(f's_mul_i32 {s(jb[3])}, {s(sT1)}, {32*1152 - 9*128}'); e(f's_lshl_b32 {s(sT0)}, {s(sT0)}, 7'); e(f's_add_u32 {s(jb[3])}, {s(jb[3])}, {s(sT0)}')
        e(f's_lshl_b32 {s(jb[4])}, {s(sJob)}, 12'); e(f's_add_u32 {s(jb[4])}, {s(jb[4])}, {WT_OFF}')
        e(f's_cmp_lt_u32 {s(sJob)}, {NJOB}'); e(f's_cselect_b32 {s(jb[2])}, {s(jb[2])}, 0'); e(f's_cselect_b32 {s(jb[5])}, {REC_OFF}, 0')
        if n == 0: e(f's_add_u32 {s(sJob)}, {s(sJob)}, 1024')
    QB = 40960
    sQo = sKV
    e(f's_lshl_b32 {s(sT0)}, {s(sQF)}, 8')
    for st in range(6):
        e(f's_add_u32 {s(sKV+st)}, {s(sT0)}, {4096 + 1152*(1 + st//3) + 128*(st%3) - 1024*(st%4)}')
    e(f's_mul_i32 {s(sKm)}, {s(sW)}, 6144')
    e(f's_lshl_b32 {s(sT0)}, {s(sLine)}, 7'); e(f's_add_u32 {s(sT0)}, {s(sT0)}, 4096'); e(f's_lshr_b32 {s(sT1)}, {s(sM0w)}, 1')
    e(f's_cmp_eq_u32 {s(sM)}, 0'); e(f's_cselect_b32 {s(sKV)}, {s(sKV)}, {s(sT0)}'); e(f's_cselect_b32 {s(sKm)}, {s(sKm)}, {s(sT1)}')
    vTq = T[21]
    e(f's_cmp_lt_u32 {s(sW)}, 2'); e(f's_cselect_b32 {s(SX)}, {s(SGt)}, {s(SU)}'); e(f's_cselect_b32 {s(SX+1)}, {s(SGt+1)}, {s(SU+1)}')
    e(f's_cselect_b32 {s(sT0)}, 0, 2048'); e(f's_add_u32 {s(SX+2)}, {s(sT0)}, {D*F*2}')
    e(f's_add_u32 {s(sTo)}, {s(sWo)}, {s(sT0)}')
    e(f's_mul_i32 {s(sT0)}, {s(sT)}, 36'); e(f's_mul_i32 {s(sT1)}, {s(sJ)}, 18'); e(f's_add_u32 {s(sT1)}, {s(sT1)}, {s(sT0)}')
    e(f'v_add_u32 {v(vU)}, {s(sT1)}, {v(vLane)}'); e(f'v_mul_u32_u24 {v(vU)}, 9216, {v(vU)}'); e(f'v_mov_b32 {v(vI2)}, 0x40000000')
    e(f'v_cmp_gt_u32 vcc, 18, {v(vLane)}'); e(f'v_cndmask_b32 {v(vTg)}, {v(vI2)}, {v(vU)}, vcc')
    e(f'v_mul_u32_u24 {v(vU)}, 57, {v(vLane)}'); e(f'v_lshrrev_b32 {v(vU)}, 9, {v(vU)}')
    e(f'v_mul_u32_u24 {v(vB)}, 9, {v(vU)}'); e(f'v_sub_u32 {v(vB)}, {v(vLane)}, {v(vB)}')
    e(f's_mul_i32 {s(sT1)}, {s(sW)}, 9'); e(f's_add_u32 {s(sT1)}, {s(sT1)}, {s(sT0)}'); e(f'v_add_u32 {v(vB)}, {s(sT1)}, {v(vB)}'); e(f'v_mul_u32_u24 {v(vB)}, 3456, {v(vB)}')
    e(f'v_lshl_add_u32 {v(vB)}, {v(vU)}, 7, {v(vB)}'); e(f'v_cmp_lt_u32 vcc, 2, {v(vU)}'); e(f'v_add_u32 {v(vTq)}, {1152 - 384}, {v(vB)}'); e(f'v_cndmask_b32 {v(vB)}, {v(vB)}, {v(vTq)}, vcc')
    e(f's_cmp_lt_u32 {s(sLine)}, 9'); e(f's_cselect_b32 {s(sT1)}, 1, 0'); e(f's_cmp_eq_u32 {s(sM)}, 0'); e(f's_cselect_b32 {s(sT1)}, 6, {s(sT1)}')
    e(f'v_cmp_gt_u32 vcc, {s(sT1)}, {v(vU)}'); e(f'v_cndmask_b32 {v(vTq)}, {v(vI2)}, {v(vB)}, vcc')
    junk = lambda t: (lambda: e(t, junk=True))
    def gtouch(): return [junk(f'buffer_load_dword {v(vJS2)}, {v(vTg)}, {s(SX,4)}, {s(sTo)} offen'), f's_add_u32 {s(sTo)}, {s(sTo)}, 128']
    e(f'v_mul_u32_u24 {v(vU)}, 1152, {v(vLane)}'); e(f'v_cmp_gt_u32 vcc, 32, {v(vLane)}'); e(f'v_cndmask_b32 {v(vTj)}, {v(vI2)}, {v(vU)}, vcc')
    def jtouch(): return [f's_mov_b32 {s(SJS+q)}, {s(JP[q])}' for q in range(3)] + ([] if 'nojt' in opt else [junk(f'buffer_load_dword {v(vJS2)}, {v(vTj)}, {s(SJS,4)}, {s(JP[3])} offen')])
    touches = gtouch() + jtouch()
    if 'notouch' in opt: touches = jtouch()[:3]
    else: put([junk(f'buffer_load_dword {v(vJS2)}, {v(vTq)}, {s(SQ,4)}, {s(sKV)} offen')] + gtouch())
    SUM = lambda b: ACC + 4 * b
    SQ_ = lambda b: ACC + 8 + 4 * b
    pend = []
    def stats(b, ks):
        c0 = '0' if ks == 0 else v(SUM(b), 4); c1 = '0' if ks == 0 else v(SQ_(b), 4)
        e(f'v_mfma_f32_16x16x32_bf16 {v(SUM(b),4)}, {v(vONE,4)}, {xf(b,ks)}, {c0}')
        e(f'v_mfma_f32_16x16x32_bf16 {v(SQ_(b),4)}, {xf(b,ks)}, {xf(b,ks)}, {c1}')
    for l in range(9):
        p.wait_tag(f'x{l}')
        if l in (4, 8):
            for k in range(2): e(f'v_add_u32 {v(vXR[k])}, 65536, {v(vXR[k])}')
        cur = []
        for kk in range(2):
            for b in range(2):
                e(f'ds_read_b128 {xf(b, 2*l+kk)}, {v(vXR[kk])} offset:{(l%4)*16384 + b*2048}')
                cur.append((b, 2 * l + kk))
        while pend: stats(*pend.pop(0))
        pend = cur
    p.wait_lg(0); e('s_barrier')
    stamp()
    while pend: stats(*pend.pop(0))
    st0 = p.snapshot()
    tmpv = T[36]
    CT = [T[40 + 8 * k] for k in range(3)]
    order = [(b, ks) for ks in range(18) for b in range(2)]
    def center(early, mid, late):
        mem = list(early)
        if 'c_late' in opt: mem, late = [], list(early) + list(mid) + list(late); mid = []
        def one():
            while mem:
                x = mem.pop(0); put([x])
                if callable(x) or isinstance(x, tuple): break
        one()
        for b in range(2):
            for r in range(4): e(f'v_mul_f32 {v(SUM(b)+r)}, {fhex(-1.0/576)}, {v(SUM(b)+r)}')
            one()
        extra = []
        for b in range(2):
            q_ = SQ_(b)
            extra += [f'v_cndmask_b32 {v(tmpv+b)}, {v(q_)}, {v(q_+1)}, {s(mk[1],2)}', f'v_cndmask_b32 {v(tmpv+b)}, {v(tmpv+b)}, {v(q_+2)}, {s(mk[2],2)}',
                      f'v_cndmask_b32 {v(tmpv+b)}, {v(tmpv+b)}, {v(q_+3)}, {s(mk[3],2)}', f'v_cndmask_b32 {v(tmpv+b)}, 0, {v(tmpv+b)}, {s(mk[0],2)}']
        extra += [None] + [f'v_mfma_f32_16x16x4_f32 {v(SQ_(b),4)}, {v(vF1)}, {v(tmpv+b)}, 0' for b in range(2)]
        extra += [f'v_mul_f32 {v(tmpv+b)}, {v(SUM(b))}, {v(SUM(b))}' for b in range(2)] + [f's_mov_b32 {s(sT0)}, {fhex(1.0/576)}', None, None]
        for b in range(2):
            extra += [f'v_fma_f32 {v(tmpv+b)}, {v(SQ_(b))}, {s(sT0)}, -{v(tmpv+b)}', f'v_max_f32 {v(tmpv+b)}, 0, {v(tmpv+b)}',
                      f'v_add_f32 {v(tmpv+b)}, {fhex(1e-5)}, {v(tmpv+b)}', f'v_rsq_f32 {v(vRS+b)}, {v(tmpv+b)}', f'v_rcp_f32 {v(vRS2+b)}, {v(tmpv+b)}']
        reads = []
        for n in range(36 + 2):
            pk, wr = [], None
            if n < 36:
                b, ks = order[n]; t = CT[n % 3]
                m = [f'v_mfma_f32_16x16x32_bf16 {v(t,4)}, {v(vSEL+2,4)}, {xf(b,ks)}, {v(SUM(b),4)}',
                     f'v_mfma_f32_16x16x32_bf16 {v(t+4,4)}, {v(vSEL,4)}, {xf(b,ks)}, {v(SUM(b),4)}']
            else: m = [None, None]
            if n >= 2:
                b, ks = order[n - 2]; t = CT[(n - 2) % 3]; l, fi = divmod(n - 2, 4)
                dst = XV + 4 * fidx(b, ks) if xf_isv(b, ks) else t
                pk = [f'v_cvt_pk_bf16_f32 {v(dst+d)}, {v(t+2*d)}, {v(t+2*d+1)}' for d in range(4)]
                wr = (f'ds_write_b128 {v(vXR[2])}, {v(dst,4)} offset:{(l%3)*16384 + fi*1024}', f'xw{l}')
            if 'c_nowr' in opt: wr = None
            put([m[0]] + pk[:2] + [m[1]] + pk[2:] + [wr])
            if n >= 2 and (n - 2) % 4 == 1 and n - 2 >= 4:
                l = (n - 2) // 4 - 1
                p.wait_lgtag(f'xw{l}', f'xr{l-1}', 'sw'); e('s_barrier')
                reads += [(f'ds_read_b128 {xf(2 + fi%2, 2*l + fi//2)}, {v(vXR[3])} offset:{(l%3)*16384 + fi*1024}', f'xr{l}') for fi in range(4)]
                if l == 4:
                    reads += [f'ds_read2st64_b32 {v(vRS+2,2)}, {v(vXR[1])} offset0:0 offset1:1', f'ds_read2st64_b32 {v(vRS2+2,2)}, {v(vXR[1])} offset0:2 offset1:3']
                    reads = [(x, 'xr4') if isinstance(x, str) else x for x in reads]
                if l == 5: mem += list(mid)
                if l == 7: mem += list(late)
            else:
                for _ in range(2):
                    if reads: put([reads.pop(0)])
            for _ in range(2):
                if extra: put([extra.pop(0)])
            if n == 17:
                assert not extra
                e(f'v_lshrrev_b32 {v(vXR[0])}, 2, {v(vL16)}'); e(f's_lshr_b32 {s(sT0)}, {s(sM0w)}, 2'); e(f's_add_u32 {s(sT0)}, {s(sT0)}, {STX}')
                e(f'v_add_u32 {v(vXR[0])}, {s(sT0)}, {v(vXR[0])}'); e(f'v_xor_b32 {v(vXR[1])}, 1024, {v(vXR[0])}')
                e(f'ds_write2st64_b32 {v(vXR[0])}, {v(vRS)}, {v(vRS+1)} offset0:0 offset1:1', 'sw'); e(f'ds_write2st64_b32 {v(vXR[0])}, {v(vRS2)}, {v(vRS2+1)} offset0:2 offset1:3', 'sw')
            one()
        p.wait_lgtag('xw8', 'xr7'); e('s_barrier')
        put([f'ds_read_b128 {xf(2 + fi%2, 16 + fi//2)}, {v(vXR[3])} offset:{2*16384 + fi*1024}' for fi in range(4)])
        put([f'ds_read_b128 {xf(*order[n])}, {v(vXR[2])} offset:{((n//4)%3)*16384 + (n%4)*1024}' for n in range(36) if not xf_isv(*order[n])])
        assert all(n >= 32 for n in range(36) if not xf_isv(*order[n]))
        if 'c_late' in opt: stamp(2)
        while mem: one()
        if 'c_late' not in opt: stamp(2)
    def q_dma(c):
        return [f's_add_u32 m0, {s(sKm)}, {QB + 8192*c}', (f'buffer_load_dwordx4 {v(vQD[0])}, {s(SQ,4)}, {s(sQo)} offen lds', f'q{c}'),
                (f'buffer_load_dwordx4 {v(vQD[1])}, {s(SQ,4)}, {s(sQo)} offen offset:1024 lds', f'q{c}'), f's_add_u32 {s(sQo)}, {s(sQo)}, {64*3456}']
    e(f's_cmp_eq_u32 {s(sM)}, 0'); e(f's_cbranch_scc1 {name}_kv')
    e(f's_cmp_lt_u32 {s(sLine)}, 9'); e(f's_cbranch_scc1 {name}_q')
    center([x for c in range(6) for x in ffn_dma(c)], ffn_dma(6) + touches, ffn_dma(7))
    stF = p.snapshot(); stF = (stF[0], [x for x in stF[1] if str(x[1]).startswith('slot')])
    e(f's_branch {name}_hdr')

    def phi(dst, src, rs, rsl, t0):
        return [f'v_mul_f32 {v(t0)}, {v(src)}, {v(rsl)}', f'v_fma_f32 {v(dst)}, {v(src)}, {v(rs)}, {s(sT1)}',
                f'v_exp_f32_e64 {v(t0)}, {v(t0)} clamp', f'v_max_f32 {v(dst)}, {s(sT1)}, {v(dst)}', f'v_add_f32 {v(dst)}, {v(dst)}, {v(t0)}']
    wf = lambda g, kk: a(WF + 8 * (g % 3) + 4 * kk, 4)
    def tr4(g, base_reg, off, kstride):
        out = []
        for kk in range(2):
            for h in range(2):
                out.append(f'ds_read_b64_tr_b16 {a(WF + 8*(g%3) + 4*kk + 2*h, 2)}, {v(base_reg)} offset:{off + kk*kstride + h*512}')
        return out
    p.label(f'{name}_q'); p.restore(st0)
    center([x for c in range(7) for x in q_dma(c)] + ffn_dma(0) + ffn_dma(1), q_dma(7) + q_dma(8) + touches, [])
    vQT = [ACC + 0, ACC + 1]
    e(f'v_lshrrev_b32 {v(ACC+2)}, 5, v0'); e(f'v_and_b32 {v(ACC+2)}, 1, {v(ACC+2)}'); e(f'v_lshlrev_b32 {v(ACC+2)}, 11, {v(ACC+2)}')
    e(f'v_subrev_u32 {v(ACC+2)}, {QB}, {v(ACC+2)}')
    for tt in range(2): e(f'v_sub_u32 {v(vQT[tt])}, {v(vTR+tt)}, {v(ACC+2)}')
    p.wait_tag('q6'); e('s_barrier')
    qtr = lambda g: tr4(g, vQT[g % 2], ((g // 2) % 4) * 8192 + (32768 if g // 2 == 8 else 0), 4096)
    for x in qtr(0) + qtr(1): e(x)
    nxt_slot = 2
    for g in range(18):
        c, tt = g // 2, g % 2
        mains = []; sl = Slots(8)
        for b in range(4):
            for kk in range(2):
                acc = PR + 16 * tt + 4 * b
                cc = '0' if (c == 0 and kk == 0) else v(acc, 4)
                mains.append(f'v_mfma_f32_16x16x32_bf16 {v(acc,4)}, {wf(g,kk)}, {xf(b, 2*c+kk)}, {cc}')
        sl.fix(-1, lambda g=g: p.need(a(WF + 8 * (g % 3), 8)))
        if g == 10: sl.fix(-1, lambda: p.wait_tag('q8'))
        if g in (2, 6, 10, 14): sl.fix(-1, 's_barrier')
        if g + 2 < 18:
            if g + 2 == 8:
                for tt2 in range(2): sl.fix(-1, f'v_add_u32 {v(vQT[tt2])}, 32768, {v(vQT[tt2])}')
            for k, x in enumerate(qtr(g + 2)): sl.fix(2 * k, x)
        if g in (2, 6, 10, 14):
            sl.stream(0, [x for x in ffn_dma(nxt_slot) if x]); nxt_slot += 1
        interleave(p, mains, sl.f)
    e('s_barrier')
    stamp(3)
    qtail = [x for x in ffn_dma(6) + ffn_dma(7) if x]
    e(f's_mov_b32 {s(sT1)}, {fhex(1e-6)}')
    for b in range(4): e(f'v_mul_f32 {v(ACC+4+b)}, {fhex(LOG2E)}, {v(vRS+b)}')
    for b in range(4):
        seqs = [phi(PR + 16 * tt + 4 * b + r, PR + 16 * tt + 4 * b + r, vRS + b, ACC + 4 + b, ACC + 8 + 4 * tt + r) for tt in range(2) for r in range(4)]
        for k in range(5):
            for sq in seqs: e(sq[k])
            if qtail: put([qtail.pop(0)])
        o = PR + 4 * b
        e(f'v_cvt_pk_bf16_f32 {v(o)}, {v(o)}, {v(o+1)}'); e(f'v_cvt_pk_bf16_f32 {v(o+1)}, {v(o+2)}, {v(o+3)}')
        e(f'v_cvt_pk_bf16_f32 {v(o+2)}, {v(o+16)}, {v(o+17)}'); e(f'v_cvt_pk_bf16_f32 {v(o+3)}, {v(o+18)}, {v(o+19)}')
        e(f's_mul_i32 {s(sT0)}, {s(sTB[b])}, 18'); e(f's_lshl_b32 {s(sT2)}, {s(sLine)}, 1'); e(f's_add_u32 {s(sT0)}, {s(sT0)}, {s(sT2)}'); e(f's_add_u32 {s(sT0)}, {s(sT0)}, {s(sJ)}')
        e(f's_lshl_b32 {s(sT0)}, {s(sT0)}, 10'); e(f's_add_u32 {s(sT0)}, {s(sT0)}, {PQ_OFF}')
        e(f'buffer_store_dwordx4 {v(o,4)}, {v(vL16)}, {s(SWS,4)}, {s(sT0)} offen sc1')
    assert not qtail
    e(f's_branch {name}_hdr')
    p.label(f'{name}_kv'); p.restore(st0)
    center([x for ks in range(4) for x in kv_dma(ks, vKD)], touches, [])
    def kacc(ct, b):
        n = ct * 16 + 4 * b
        return ('v', ACC + n) if n < 96 else ('a', JD + n - 96)
    vKT = [vT + k for k in range(4)]
    e(f'v_and_b32 {v(vT+4)}, 15, v0'); e(f'v_lshlrev_b32 {v(vT+4)}, 2, {v(vT+4)}'); e(f'v_add_u32 {v(vT+4)}, {s(sSP)}, {v(vT+4)}')
    e(f'v_bfe_u32 {v(vT+5)}, v0, 4, 2'); e(f'v_mul_u32_u24 {v(vT+5)}, 6144, {v(vT+5)}')
    e(f'v_and_b32 {v(vT+6)}, 0x1ff, {v(vTR)}'); e(f's_lshl_b32 {s(sT0)}, {s(sJ)}, 6'); e(f'v_xor_b32 {v(vT+6)}, {s(sT0)}, {v(vT+6)}')
    for u in range(4):
        e(f's_add_u32 {s(sT0)}, {s(sQF)}, {u}'); e(f's_and_b32 {s(sT1)}, {s(sT0)}, 3'); e(f's_lshl_b32 {s(sT1)}, {s(sT1)}, 5')
        e(f's_lshr_b32 {s(sT0)}, {s(sT0)}, 2'); e(f's_add_u32 {s(sT0)}, {s(sT0)}, {s(sJ)}'); e(f's_lshl_b32 {s(sT0)}, {s(sT0)}, 10')
        e(f'v_xor_b32 {v(vKT[u])}, {s(sT1)}, {v(vT+6)}'); e(f'v_add3_u32 {v(vKT[u])}, {v(vKT[u])}, {s(sT0)}, {v(vT+5)}')
    vKD2 = vT + 7
    e(f'v_mov_b32 {v(vKD2)}, {v(vKD)}')
    NR, LA = 6, 3
    kfr = lambda n: WF + 4 * (n % NR)
    def ktr(n):
        ks, ct = divmod(n, 10); aa = ct % 5
        off = (ks % 2) * 24576 + (aa // 4) * 1024 + (ct // 5) * 3072
        return [f'ds_read_b64_tr_b16 {a(kfr(n) + 2*h, 2)}, {v(vKT[aa % 4])} offset:{off + 512*h}' for h in range(2)]
    p.wait_tag('kv0'); e('s_barrier')
    for n in range(LA):
        for x in ktr(n): e(x)
    ffn_at = {14: [0], 15: [1, 2], 16: [3], 17: [4, 5]}
    for ks in range(18):
        mains = []; sl = Slots(40)
        for ct in range(10):
            n = ks * 10 + ct
            for b in range(4):
                kd, base = kacc(ct, b); acc = R(kd, base, 4)
                mains.append(f'v_mfma_f32_16x16x32_bf16 {acc}, {xf(b,ks)}, {a(kfr(n),4)}, {"0" if ks == 0 else acc}')
            sl.fix(4 * ct - 1, lambda n=n: p.need(a(kfr(n), 4)))
            if n + LA < 180:
                if (n + LA) % 10 == 0:
                    nk = (n + LA) // 10
                    sl.fix(4 * ct - 1, lambda nk=nk: p.wait_tag(f'kv{nk}')); sl.fix(4 * ct, 's_barrier')
                    if nk % 2 == 0:
                        dlt = 49152 if nk % 6 else -98304
                        for u in range(4): sl.fix(4 * ct - 3 + u // 2, f'v_add_u32 {v(vKT[u])}, {dlt & 0xffffffff:#x}, {v(vKT[u])}')
                t2 = ktr(n + LA)
                late = (n + LA) % 10 == 0
                early = (n + LA) % 10 == 9
                sl.fix(4 * ct + (1 if late else 0), t2[0]); sl.fix(4 * ct + (0 if early else 2), t2[1])
        dm = []
        if ks == 3: sl.stream(30, [f'ds_write_b32 {v(vT+4)}, {v(vRS+b)} offset:{64*b}' for b in range(4)])
        if ks <= 13: dm = kv_dma(ks + 4, vKD2)
        elif ks in ffn_at: dm = [x for t in ffn_at[ks] for x in ffn_dma(t) if x]
        sl.stream(0, dm, last=26)
        interleave(p, mains, sl.f)
    p.wait_lg(0); e('s_barrier')
    put(ffn_dma(6)); put(ffn_dma(7))
    stamp(4)
    e(f'v_bfe_u32 {v(vRS)}, v0, 4, 2'); e(f'v_lshlrev_b32 {v(vRS)}, 4, {v(vRS)}'); e(f'v_add_u32 {v(vRS)}, {s(sSP)}, {v(vRS)}')
    for k in range(4): e(f'v_accvgpr_write_b32 {a(WF+k)}, {s(sOnes)}')
    e(f's_mov_b32 {s(sT1)}, {fhex(1e-6)}')
    def pack8(dstkind, dst, src):
        for d in range(4):
            e(f'v_cvt_pk_bf16_f32 {v(dst+d) if dstkind == "v" else v(src+2*d)}, {v(src+2*d)}, {v(src+2*d+1)}')
        if dstkind == 'a':
            for d in range(4): e(f'v_accvgpr_write_b32 {a(dst+d)}, {v(src+2*d)}')
    PV = {}; PK = {}
    for hb in range(2):
        e(f'ds_read_b128 {v(vT,4)}, {v(vRS)} offset:{128*hb}'); e(f'ds_read_b128 {v(vT+4,4)}, {v(vRS)} offset:{128*hb+64}')
        base = ACC + 80 + 8 * hb
        for k in range(8): e(f'v_mul_f32 {v(base+k)}, {v(base+k)}, {v(vT+k)}')
        pack8('a', WF + 4 + 4 * hb, base); PV[0, hb] = a(WF + 4 + 4 * hb, 4)
        TM = ACC + 80
        for T_ in range(1, 5):
            ab = JD + 16 * (T_ - 1) + 8 * hb
            for k in range(8): e(f'v_accvgpr_read_b32 {v(TM+k)}, {a(ab+k)}')
            for k in range(8): e(f'v_mul_f32 {v(TM+k)}, {v(TM+k)}, {v(vT+k)}')
            pack8('a', ab, TM); PV[T_, hb] = a(ab, 4)
        for k in range(8): e(f'v_mul_f32 {v(TM+k)}, {fhex(LOG2E)}, {v(vT+k)}')
        for aa in range(5):
            base = ACC + 16 * aa + 8 * hb
            for half in range(2):
                tt = [vRS + 1, vRS + 2, vRS + 3, vJS2]
                seqs = [phi(base + 4*half + r, base + 4*half + r, vT + 4*half + r, TM + 4*half + r, tt[r]) for r in range(4)]
                for k in range(5):
                    for sq in seqs: e(sq[k])
            pack8('v', base, base); PK[aa, hb] = v(base, 4)
    e(f's_lshl_b32 {s(sT1)}, {s(sT)}, 1'); e(f's_add_u32 {s(sT1)}, {s(sT1)}, {s(sI)}'); e(f's_lshl_b32 {s(sT1)}, {s(sT1)}, 3')
    e(f's_lshl_b32 {s(sT0)}, {s(sQF)}, 1'); e(f's_add_u32 {s(sT0)}, {s(sT0)}, {s(sJ)}'); e(f's_add_u32 {s(sT1)}, {s(sT1)}, {s(sT0)}')
    e(f's_mul_i32 {s(sT1)}, {s(sT1)}, {18*1024}'); e(f's_add_u32 {s(sT1)}, {s(sT1)}, {KVP_OFF}')
    dt = [ACC + 16 * k + 8 * h + 4 for k in range(5) for h in range(2)]
    outs = [(aa, T_) for (aa, T_) in KV_PAIRS] + [(aa, None) for aa in range(5)]
    pend_st = []
    for u, (aa, T_) in enumerate(outs):
        d = v(dt[u % 10], 4)
        for hb in range(2):
            e(f'v_mfma_f32_16x16x32_bf16 {d}, {PK[aa, hb]}, {a(WF,4) if T_ is None else PV[T_, hb]}, {"0" if hb == 0 else d}')
        pend_st.append((u, d))
        if len(pend_st) > 4 or u == 17:
            while pend_st and (len(pend_st) > 4 or u == 17):
                uu, dd = pend_st.pop(0)
                e(f'buffer_store_dwordx4 {dd}, {v(vL16)}, {s(SWS,4)}, {s(sT1)} offen offset:{1024*(uu%4)} sc1')
                if uu % 4 == 3: e(f's_add_u32 {s(sT1)}, {s(sT1)}, 4096')
    p.label(f'{name}_hdr'); p.restore(stF)
    stamp(5)
    acc = lambda ai, b: ACC + 16 * ai + 4 * b
    def ftr(G):
        G %= 36; c, g = divmod(G, 4)
        return tr4(G, vTR + 2 * (c // 4) + (g >> 1), (c % 4) * 16384 + (g & 1) * 2048, 8192)
    p.wait_tag('slot0'); e('s_barrier')
    for x in ftr(0) + ftr(1): e(x)
    def prod(h, b): return [f'v_mul_f32 {v(PR + 16*h + 4*b + r)}, {v(acc(2*h, b) + r)}, {v(acc(2*h+1, b) + r)}' for r in range(4)]
    def fin(b):
        o = PR + 4 * b
        return ([f'v_mul_f32 {v(o + 16*h + r)}, {v(o + 16*h + r)}, {v(vRS2+b)}' for h in range(2) for r in range(4)] +
                [f'v_cvt_pk_bf16_f32 {v(o)}, {v(o)}, {v(o+1)}', f'v_cvt_pk_bf16_f32 {v(o+1)}, {v(o+2)}, {v(o+3)}',
                 f'v_cvt_pk_bf16_f32 {v(o+2)}, {v(o+16)}, {v(o+17)}', f'v_cvt_pk_bf16_f32 {v(o+3)}, {v(o+18)}, {v(o+19)}',
                 f'buffer_store_dwordx4 {v(o,4)}, {v(vL16)}, {s(SH,4)}, {s(sH+b)} offen sc1', f's_add_u32 {s(sH+b)}, {s(sH+b)}, 2048'])
    def body():
        mains = []; sl = Slots(288)
        for G in range(36):
            c, g = divmod(G, 4)
            for b in range(4):
                for kk in range(2):
                    cc = '0' if (c == 0 and kk == 0) else v(acc(g, b), 4)
                    mains.append(f'v_mfma_f32_16x16x32_bf16 {v(acc(g,b),4)}, {wf(G,kk)}, {xf(b, 2*c+kk)}, {cc}')
            sl.fix(8 * G - 1, lambda G=G: p.need(a(WF + 8 * (G % 3), 8)))
            if g == 2:
                sl.fix(8 * G - 1, lambda c=c: p.wait_tag(f'slot{(c+1)%9}')); sl.fix(8 * G, 's_barrier')
            for k, x in enumerate(ftr(G + 2)): sl.fix(8 * G + 2 * k + (1 if g == 2 else 0), x)
        sl.stream(8 * 33 + 5, prod(0, 0), last=8 * 34 - 1, cap=3)
        sl.stream(8 * 34 + 1, prod(0, 1) + prod(0, 2) + prod(0, 3), last=287)
        sl.stream(0, prod(1, 0) + prod(1, 1) + prod(1, 2) + prod(1, 3), last=15)
        for c in range(9):
            d = [x for x in ffn_dma((c - 1) % 9) if x]
            if c == 0:
                d[-1] = f's_add_u32 {s(sWo)}, {s(sWo)}, {(128 - 8*CH) & 0xffffffff:#x}'
                d += [lambda: put([f's_cmp_eq_u32 {s(sCnt)}, 1', f's_cselect_b32 {s(SGt+2)}, 0, {s(SGt+2)}', f's_cselect_b32 {s(SU+2)}, 0, {s(SU+2)}'])]
            if c < 8: sl.stream(32 * c + 17, d, last=32 * c + 31, gap=1)
            else: sl.stream(32 * c + 17, d, last=287, cap=3)
        j1 = [f's_mov_b32 {s(sJo)}, {s(JP[3])}', f's_mov_b32 {s(SJD+2)}, {s(JP[5])}']
        k = sl.stream(16, j1, last=31)
        if 'notouch' not in opt:
            g_ = gtouch(); sl.fix(67, g_[0], cost=2); sl.stream(68, g_[1:])
        jl = [f's_mov_b32 m0, {s(sSP)}']
        for q in range(4):
            jl += [(f'buffer_load_dwordx4 {v(vJS)}, {s(SJS,4)}, {s(sJo)} offen offset:{1024*q} lds', 'job'), f's_add_u32 {s(sJo)}, {s(sJo)}, 8192']
        k = sl.stream(32, jl, last=47, gap=1)
        k = sl.stream(16, fin(0) + fin(1) + fin(2) + fin(3) + [f's_mov_b32 {s(SH+2)}, {PQ_OFF}'], gap=1)
        j2 = [f's_mov_b32 {s(sJo)}, {s(JP[4])}'] + [f's_mov_b32 {s(JP[q])}, {s(JP[6+q])}' for q in range(6)]
        j2 += [f's_mov_b32 {s(JP[8])}, 0', f's_mov_b32 {s(JP[11])}, 0']
        j2 += [f'v_xor_b32 {v(vT+u)}, {32*u}, {v(vJT)}' for u in range(1, 4)]
        k = sl.stream(k + 1, j2)
        jt = jtouch(); k = sl.stream(k, jt[:3])
        if jt[3:]:
            k = (k + 2) | 1
            while sl.cnt.get(k, 0): k += 1
            sl.fix(k, jt[3], cost=2)
        assert k < 32 * 6
        j3 = [lambda: p.wait_tag('job')]
        for u in range(4):
            for h in range(2): j3.append(f'ds_read_b64_tr_b16 {a(JD + 4*u + 2*h, 2)}, {v(vT+u) if u else v(vJT)} offset:{2048*h}')
        k = sl.stream(32 * 6 + 26, j3, gap=1)
        jst = [f'buffer_store_dwordx4 {a(JD+4*u,4)}, {v(vL16)}, {s(SJD,4)}, {s(sJo)} offen offset:{1024*u} sc1' for u in range(4)]
        k = sl.stream(k + 2, jst, gap=3)
        assert k < 8 * 33
        def keep(x):
            t = x[0] if isinstance(x, tuple) else x
            if not isinstance(t, str): return True
            if 'nodma' in opt and t.endswith('lds'): return False
            if 'nobar' in opt and t == 's_barrier': return False
            if 'nost' in opt and t.startswith('buffer_store'): return False
            if 'notr' in opt and t.startswith('ds_read'): return False
            if 'novalu' in opt and t.startswith('v_'): return False
            return True
        interleave(p, mains, {k_: [x for x in l_ if keep(x)] for k_, l_ in sl.f.items()})
    def back():
        e(f's_sub_u32 {s(sCnt)}, {s(sCnt)}, 1'); e(f's_cmp_lg_u32 {s(sCnt)}, 0'); e(f's_cbranch_scc1 {name}_loop')
    p.loop(body, f'{name}_loop', back)
    stamp(6)
    for b in range(4):
        for x in prod(1, b): e(x)
    for b in range(4):
        for x in fin(b): e(x)
    e(f'v_mov_b32 {v(vT)}, 0'); e(f's_lshl_b32 {s(sT1)}, s2, 7'); e(f's_add_u32 {s(sT1)}, {s(sT1)}, {FLAG_OFF}')
    e(f'v_and_b32 {v(vT+1)}, 3, v0'); e(f'v_lshlrev_b32 {v(vT+1)}, 2, {v(vT+1)}')
    e(f'buffer_store_dword {v(vT)}, {v(vT+1)}, {s(SWS,4)}, {s(sT1)} offen')
    e(f's_and_b32 {s(sT1)}, s2, 7'); e(f's_lshl_b32 {s(sT1)}, {s(sT1)}, 7'); e(f's_add_u32 {s(sT1)}, {s(sT1)}, {CNT_OFF}')
    e(f'buffer_store_dword {v(vT)}, {v(vT)}, {s(SWS,4)}, {s(sT1)} offen')
    if stamps: p.wait_all()
    stamp(7)
    p.label(END)
    return p, V.nxt, A.nxt, NXV
```

```python
S, D, F = 2048, 576, 4608
H_OFF = 0
PQ_OFF = H_OFF + 128 * 144 * 1024
KVP_OFF = PQ_OFF + 128 * 18 * 1024
WT_OFF = KVP_OFF + 32 * 8 * 18 * 1024
NJOB_WD = 144 * 9
NJOB = NJOB_WD + 18 * 9
WOT_OFF = WT_OFF + NJOB_WD * 4096
REC_OFF = WT_OFF + NJOB * 4096
PART_OFF = REC_OFF + 36 * 3072
PROG_OFF = PART_OFF + 256 * 4 * 9216
RECF_OFF = PROG_OFF + 2048
FLAG_OFF = RECF_OFF + 2048
CL_OFF = FLAG_OFF + 256 * 128
STAMP_OFF = CL_OFF + 64 * 128
WS_USED = STAMP_OFF + 256 * 4 * 256
KV_PAIRS = [(a, T) for a in range(5) for T in (a - 1, a, a + 1) if 0 <= T < 5]
def pos_of_double(d):
    if d < 3: return (12, 13, 17)[d]
    m, r = divmod(d - 3, 5)
    return 3 * r + m if r < 4 else 14 + m
assert sorted(pos_of_double(d) for d in range(18)) == list(range(18))
GPERM = [36 * (G // 36) + 2 * pos_of_double((G % 36) // 2) + (G & 1) for G in range(144)]
```

```python
from asmlib import *
from layout2 import *

LOG2E = 1.4426950408889634
def fhex(x):
    import struct
    return '0x%08x' % struct.unpack('<I', struct.pack('<f', x))[0]

SP0 = 147456
STX = 98304
CH = 64 * 9216

SLOT = 36864
SPIN = 20000
SALT = 0x5bd1e990

def gen(name, stamps=False, opt=()):
    p = Prog(); e = p.e
    V = Alloc('v', 1, 256); A = Alloc('a', 0, 256); SG = Alloc('s', 56, 100)
    SX, SQ, SGt, SU, SWS, SH, SJS, SJD = 4, 8, 12, 16, 20, 24, 28, 32
    KA = 36
    sW, sI, sJ, sT, sQF, sM = (SG.get(n) for n in ('w', 'i', 'j', 't', 'qf', 'm'))
    sWo, sCnt, sM0w, sJob, sJo, sT0, sT1, sT2 = (SG.get(n) for n in ('wo', 'cnt', 'm0w', 'job', 'jo', 't0', 't1', 't2'))
    sH = SG.get('h', 4, 1); sKV = SG.get('kv', 6, 1); sSP = SG.get('sp'); sLine = SG.get('line'); sKm = SG.get('km'); sTo = SG.get('to')
    mk = [SG.get(f'mk{k}', 2) for k in range(4)]
    sSt = SG.get('st', 2); sStO = SG.get('sto'); sOnes = SG.get('ones')
    JP = [36, 37, 38, 39, 42, 43, 44, 45, 46, 47, 50, 51]
    sXp, sN, sDbg, sOp = 40, 48, 52, 54
    sInc, sIncL, sPg, sPc, sCr, sSpin = mk[0], mk[0] + 1, mk[1], mk[1] + 1, mk[2], mk[2] + 1
    sEps = mk[3]
    vJS = V.get('js'); vJT = V.get('jt'); vTg = V.get('tg')
    ACC = V.get('acc', 64); PR = V.get('prod', 32)
    vTR = V.get('tr', 6, 1); vDM = V.get('dm', 2, 1); vL16 = V.get('l16'); vJS2 = V.get('spare'); vRS = V.get('rs', 4, 2); vRS2 = V.get('rs2', 4, 2)
    vTj = V.get('tj'); vS0 = V.get('s0'); vT = V.get('tmp', 8, 4); vS1 = vT + 7
    NXV = (256 - V.nxt) // 4
    XV = V.get('xv', 4 * NXV)
    WF = A.get('wf', 24); XA = A.get('xa', 4 * (72 - NXV)); JD = A.get('jd', 64)
    fidx = lambda b, ks: 2 * ks + b if b < 2 else 36 + 2 * ks + b - 2
    def xf(b, ks):
        f = fidx(b, ks)
        return v(XV + 4 * f, 4) if f < NXV else a(XA + 4 * (f - NXV), 4)
    def xf_isv(b, ks): return fidx(b, ks) < NXV
    nstamp = [0]
    def stamp(k=None):
        if not stamps: return
        if k is None:
            k = nstamp[0]; nstamp[0] += 1
        p.wait_lg(0)
        if k == 0:
            e(f'v_mov_b32 {v(vS0)}, s100'); e(f'v_mov_b32 {v(vS1)}, 0'); e(f'buffer_store_dword {v(vS0)}, {v(vS1)}, {s(SWS,4)}, {s(sStO)} offen offset:60')
        e(f's_memrealtime {s(sSt,2)}'); p.wait_lg(0)
        e(f'v_mov_b32 {v(vS0)}, {s(sSt)}'); e(f'v_mov_b32 {v(vS1)}, {4*k}')
        e(f'buffer_store_dword {v(vS0)}, {v(vS1)}, {s(SWS,4)}, {s(sStO)} offen')
        e(f's_memtime {s(sSt,2)}'); p.wait_lg(0)
        e(f'v_mov_b32 {v(vS0)}, {s(sSt)}')
        e(f'buffer_store_dword {v(vS0)}, {v(vS1)}, {s(SWS,4)}, {s(sStO)} offen offset:128')

    END = f'{name}_end'
    if stamps: p.raw('s_memrealtime s[100:101]')
    e('s_cmp_ge_u32 s2, 256'); e(f's_cbranch_scc1 {END}')
    e(f's_load_dwordx8 {s(KA,8)}, s[0:1], 0'); e(f's_load_dwordx8 {s(KA+8,8)}, s[0:1], 32'); e(f's_load_dwordx4 {s(KA+16,4)}, s[0:1], 64')
    T = [ACC + 32 + k for k in range(32)] + [PR + k for k in range(32)]
    vLane, vL3, vL4, vC7, vN, vI2, vB = T[0:7]
    vXO = T[8:12]; vXR = T[12:16]
    e(f'v_lshrrev_b32 {v(vB)}, 6, v0'); e(f'v_and_b32 {v(vLane)}, 63, v0')
    e(f'v_readfirstlane_b32 {s(sW)}, {v(vB)}')
    e(f'v_lshrrev_b32 {v(vL3)}, 3, {v(vLane)}'); e(f'v_lshrrev_b32 {v(vL4)}, 4, {v(vLane)}'); e(f'v_and_b32 {v(vC7)}, 7, {v(vLane)}')
    e(f'v_and_b32 {v(vN)}, 15, {v(vLane)}'); e(f'v_lshlrev_b32 {v(vL16)}, 4, {v(vLane)}')
    e(f's_and_b32 {s(sQF)}, s2, 3'); e(f's_bfe_u32 {s(sT0)}, s2, 0x10002'); e(f's_lshr_b32 {s(sT1)}, s2, 5')
    e(f's_lshl_b32 {s(sT0)}, {s(sT0)}, 3'); e(f's_add_u32 {s(sT)}, {s(sT0)}, {s(sT1)}'); e(f's_bfe_u32 {s(sM)}, s2, 0x20003')
    e(f's_lshr_b32 {s(sI)}, {s(sW)}, 1'); e(f's_and_b32 {s(sJ)}, {s(sW)}, 1')
    e(f's_lshl_b32 {s(sM0w)}, {s(sW)}, 12'); e(f's_add_u32 {s(sSP)}, {s(sM0w)}, {SP0}')
    e(f's_lshl_b32 {s(sT0)}, {s(sW)}, 5'); e(f'v_add_u32 {v(vB)}, {s(sT0)}, {v(vL3)}'); e(f'v_mul_u32_u24 {v(vB)}, 1152, {v(vB)}')
    for q in range(4):
        e(f'v_or_b32 {v(vI2)}, {4*(q&1)}, {v(vL4)}'); e(f'v_xor_b32 {v(vI2)}, {v(vI2)}, {v(vC7)}')
        e(f'v_lshl_add_u32 {v(vXO[q])}, {v(vI2)}, 4, {v(vB)}')
        if q: e(f'v_add_u32 {v(vXO[q])}, {8192*q}, {v(vXO[q])}')
    e(f's_mul_i32 {s(sT0)}, {s(sT)}, {128*1152}')
    p.wait_lg(0)
    def srd(r, ptr, nbytes, back=0):
        if back:
            e(f's_sub_u32 {s(r)}, {s(ptr)}, {back}'); e(f's_subb_u32 {s(r+1)}, {s(ptr+1)}, 0')
        else:
            e(f's_mov_b32 {s(r)}, {s(ptr)}'); e(f's_mov_b32 {s(r+1)}, {s(ptr+1)}')
        e(f's_mov_b32 {s(r+2)}, {nbytes + back}'); e(f's_mov_b32 {s(r+3)}, 0x20000')
    e('s_cmp_lg_u32 s2, 0'); e(f's_cbranch_scc1 {name}_nn')
    p.raw(f's_memrealtime {s(sSt,2)}'); p.raw('s_waitcnt lgkmcnt(0)')
    p.raw(f's_lshl_b32 {s(sT1)}, {s(sSt+1)}, 4'); p.raw(f's_xor_b32 {s(sT1)}, {s(sT1)}, {SALT}'); p.raw(f's_or_b32 {s(sT2)}, {s(sSt)}, 1')
    p.raw(f'v_mov_b32 {v(vT)}, {s(sT2)}'); p.raw(f'v_mov_b32 {v(vT+1)}, {s(sT1)}'); p.raw(f'v_mov_b32 {v(vT+2)}, 0')
    p.raw(f's_cmp_lg_u32 {s(sW)}, 0'); p.raw(f's_cbranch_scc1 {name}_nn')
    p.raw(f'global_store_dwordx2 {v(vT+2)}, {v(vT,2)}, {s(sDbg,2)} sc1')
    p.label(f'{name}_nn')
    srd(SX, KA + 0, S * D * 2)
    for l in range(9):
        e(f's_add_u32 m0, {s(sM0w)}, {l*16384}')
        if l: e(f's_add_u32 {s(sT0)}, {s(sT0)}, 128')
        else: e('s_nop 0')
        for q in range(4):
            e(f'buffer_load_dwordx4 {v(vXO[q])}, {s(SX,4)}, {s(sT0)} offen offset:{1024*q} lds', tag=f'x{l}')
    if 'nocode' not in opt:
        p.raw(f's_getpc_b64 {s(sSt,2)}'); p.label(f'{name}_pc')
        e(f's_lshl_b32 {s(sT1)}, {s(sW)}, 13'); e(f'v_lshlrev_b32 {v(vI2)}, 7, {v(vLane)}'); e(f'v_add_u32 {v(vI2)}, {s(sT1)}, {v(vI2)}')
        for kk in range(3):
            e(f'v_min_u32 {v(vB)}, code_end - {name}_pc - 4, {v(vI2)}')
            e(f'global_load_dword {v(vJS2)}, {v(vB)}, {s(sSt,2)}', junk=True)
            if kk < 2: e(f'v_add_u32 {v(vI2)}, 32768, {v(vI2)}')
    srd(SQ, KA + 2, D * 3 * D * 2, back=4096); srd(SGt, KA + 8, D * F * 2); srd(SU, KA + 10, D * F * 2, back=2048)
    srd(SWS, KA + 18, WS_USED); srd(SH, KA + 18, 0); srd(SJS, KA + 12, 0); srd(SJD, KA + 18, REC_OFF)
    if stamps:
        e(f's_lshl_b32 {s(sStO)}, s2, 2'); e(f's_add_u32 {s(sStO)}, {s(sStO)}, {s(sW)}'); e(f's_lshl_b32 {s(sStO)}, {s(sStO)}, 8'); e(f's_add_u32 {s(sStO)}, {s(sStO)}, {STAMP_OFF}')
    stamp()
    vQ = vL4
    e(f'v_lshrrev_b32 {v(vI2)}, 1, {v(vN)}'); e(f'v_xor_b32 {v(vI2)}, {v(vI2)}, {v(vQ)}'); e(f'v_lshlrev_b32 {v(vI2)}, 4, {v(vI2)}')
    e(f'v_lshl_add_u32 {v(vI2)}, {v(vN)}, 7, {v(vI2)}')
    e(f'v_add_u32 {v(vXR[0])}, {s(sM0w)}, {v(vI2)}'); e(f'v_xor_b32 {v(vXR[1])}, 64, {v(vXR[0])}')
    EX = 114688
    e(f's_add_u32 {s(sT0)}, {s(sM0w)}, {EX}'); e(f'v_add_u32 {v(vXR[2])}, {s(sT0)}, {v(vL16)}'); e(f'v_xor_b32 {v(vXR[3])}, 4096, {v(vXR[2])}')
    def wdma_off(dst, stride, rows_per_wave, pp, bit3):
        e(f's_mul_i32 {s(sT0)}, {s(sW)}, {rows_per_wave}'); e(f's_add_u32 {s(sT0)}, {s(sT0)}, {8*pp}')
        e(f'v_add_u32 {v(vB)}, {s(sT0)}, {v(vL3)}'); e(f'v_mul_u32_u24 {v(vB)}, {stride}, {v(vB)}')
        e(f'v_and_b32 {v(vI2)}, 1, {v(vL4)}'); e(f'v_lshlrev_b32 {v(vI2)}, 1, {v(vI2)}')
        if bit3 == 'w':
            e(f's_lshl_b32 {s(sT0)}, {s(sJ)}, 2'); e(f'v_or_b32 {v(vI2)}, {s(sT0)}, {v(vI2)}')
        elif bit3: e(f'v_or_b32 {v(vI2)}, 4, {v(vI2)}')
        e(f'v_xor_b32 {v(vI2)}, {v(vI2)}, {v(vC7)}'); e(f'v_lshl_add_u32 {v(dst)}, {v(vI2)}, 4, {v(vB)}')
        if pp: e(f'v_subrev_u32 {v(dst)}, {1024*pp}, {v(dst)}')
    wdma_off(vDM, 9216, 16, 0, 0); wdma_off(vDM + 1, 9216, 16, 1, 1)
    vQD = T[16:18]; vKD = T[18]
    wdma_off(vQD[0], 3456, 16, 0, 0); wdma_off(vQD[1], 3456, 16, 1, 1); wdma_off(vKD, 3456, 8, 0, 'w')
    vTL, vU = T[19], T[20]
    e(f'v_lshrrev_b32 {v(vI2)}, 3, {v(vN)}'); e(f'v_and_b32 {v(vU)}, 1, {v(vQ)}'); e(f'v_lshl_or_b32 {v(vI2)}, {v(vU)}, 1, {v(vI2)}')
    e(f'v_lshlrev_b32 {v(vI2)}, 5, {v(vI2)}')
    e(f'v_and_b32 {v(vU)}, 3, {v(vN)}'); e(f'v_lshl_or_b32 {v(vI2)}, {v(vU)}, 3, {v(vI2)}')
    e(f'v_lshrrev_b32 {v(vU)}, 2, {v(vN)}'); e(f'v_lshl_or_b32 {v(vTL)}, {v(vU)}, 7, {v(vI2)}')
    e(f'v_lshrrev_b32 {v(vU)}, 1, {v(vQ)}'); e(f'v_lshlrev_b32 {v(vU)}, 12, {v(vU)}')
    e(f'v_and_b32 {v(vI2)}, 1, {v(vQ)}'); e(f'v_lshl_or_b32 {v(vU)}, {v(vI2)}, 10, {v(vU)}'); e(f'v_or_b32 {v(vU)}, {v(vU)}, {v(vTL)}')
    e(f's_lshl_b32 {s(sT0)}, {s(sJ)}, 6'); e(f'v_xor_b32 {v(vTR)}, {s(sT0)}, {v(vU)}'); e(f'v_xor_b32 {v(vTR+1)}, 32, {v(vTR)}')
    for r in (1, 2):
        for tt in range(2): e(f'v_add_u32 {v(vTR+2*r+tt)}, {65536*r}, {v(vTR+tt)}')
    e(f'v_lshlrev_b32 {v(vI2)}, 1, {v(vL4)}'); e(f'v_xor_b32 {v(vI2)}, {v(vI2)}, {v(vC7)}'); e(f'v_lshlrev_b32 {v(vI2)}, 4, {v(vI2)}')
    e(f'v_mul_u32_u24 {v(vU)}, 1152, {v(vL3)}'); e(f'v_add_u32 {v(vJS)}, {v(vU)}, {v(vI2)}')
    e(f'v_lshlrev_b32 {v(vU)}, 9, {v(vQ)}'); e(f'v_add_u32 {v(vU)}, {s(sSP)}, {v(vU)}'); e(f'v_add_u32 {v(vJT)}, {v(vU)}, {v(vTL)}')
    vONE = T[24]; vSEL = T[28]; vF1 = T[34]
    assert vONE % 4 == 0 and vSEL % 4 == 0
    e(f's_mov_b32 {s(sOnes)}, 0x3f803f80')
    for k in range(4): e(f'v_mov_b32 {v(vONE+k)}, {s(sOnes)}')
    e(f'v_mov_b32 {v(vF1)}, 1.0')
    e(f'v_lshrrev_b32 {v(vU)}, 2, {v(vN)}'); e(f'v_cmp_eq_u32 {s(mk[0],2)}, {v(vU)}, {v(vQ)}')
    e(f'v_and_b32 {v(vU)}, 3, {v(vN)}')
    for k in (1, 2, 3): e(f'v_cmp_eq_u32 {s(mk[k],2)}, {k}, {v(vU)}')
    e(f'v_and_b32 {v(vI2)}, 1, {v(vN)}'); e(f'v_lshlrev_b32 {v(vI2)}, 4, {v(vI2)}'); e(f'v_mov_b32 {v(vB)}, 0x3f80'); e(f'v_lshlrev_b32 {v(vB)}, {v(vI2)}, {v(vB)}')
    e(f'v_cndmask_b32 {v(vB)}, 0, {v(vB)}, {s(mk[0],2)}')
    e(f'v_cmp_gt_u32 vcc, 2, {v(vU)}')
    for k in (0, 1, 4, 5): e(f'v_mov_b32 {v(vSEL+k)}, 0')
    e(f'v_cndmask_b32 {v(vSEL+2)}, 0, {v(vB)}, vcc'); e(f'v_cndmask_b32 {v(vSEL+3)}, {v(vB)}, 0, vcc')
    def ffn_dma(slot, tag=None):
        return [f's_add_u32 m0, {s(sM0w)}, {slot*16384}', None,
                (f'buffer_load_dwordx4 {v(vDM)}, {s(SGt,4)}, {s(sWo)} offen lds', tag or f'slot{slot}'),
                (f'buffer_load_dwordx4 {v(vDM+1)}, {s(SGt,4)}, {s(sWo)} offen offset:1024 lds', tag or f'slot{slot}'),
                (f'buffer_load_dwordx4 {v(vDM)}, {s(SU,4)}, {s(sWo)} offen offset:2048 lds', tag or f'slot{slot}'),
                (f'buffer_load_dwordx4 {v(vDM+1)}, {s(SU,4)}, {s(sWo)} offen offset:3072 lds', tag or f'slot{slot}'),
                f's_add_u32 {s(sWo)}, {s(sWo)}, {CH}']
    def put(lst):
        for x in lst:
            if x is None: continue
            if callable(x): x()
            elif isinstance(x, tuple): e(x[0], x[1])
            else: e(x)
    def kv_dma(ks, vk):
        slot = ks % 6; out = []
        for st in range(6):
            if st % 4 == 0: out.append(f's_add_u32 m0, {s(sKm)}, {slot*24576 + (st//4)*4096}')
            out.append((f'buffer_load_dwordx4 {v(vk)}, {s(SQ,4)}, {s(sKV+st)} offen offset:{1024*(st%4)} lds', f'kv{ks}'))
            out.append(f's_add_u32 {s(sKV+st)}, {s(sKV+st)}, {32*3456}')
        return out
    e(f's_mul_i32 {s(sT0)}, {s(sM)}, 5'); e(f's_sub_u32 {s(sT0)}, {s(sT0)}, 2'); e(f's_max_i32 {s(sT0)}, {s(sT0)}, 0')
    e(f's_mul_i32 {s(sT1)}, {s(sQF)}, 18'); e(f's_add_u32 {s(sT0)}, {s(sT0)}, {s(sT1)}')
    e(f's_lshl_b32 {s(sWo)}, {s(sT0)}, 7')
    e(f's_sub_u32 {s(sT0)}, {s(sM)}, 4'); e(f's_cmp_eq_u32 {s(sM)}, 0'); e(f's_cselect_b32 {s(sT0)}, 11, {s(sT0)}')
    e(f's_add_u32 {s(sT0)}, {s(sT0)}, {s(sT1)}'); e(f's_lshl_b32 {s(sT0)}, {s(sT0)}, 1'); e(f's_add_u32 {s(sT0)}, {s(sT0)}, {s(sJ)}')
    e(f's_lshl_b32 {s(sT1)}, {s(sT)}, 3'); e(f's_lshl_b32 {s(sT2)}, {s(sI)}, 2'); e(f's_add_u32 {s(sT1)}, {s(sT1)}, {s(sT2)}')
    e(f's_lshl_b32 {s(sT2)}, {s(sJ)}, 1')
    sTB = [SG.get(f'tb{b}') for b in range(4)]
    for b in range(4):
        e(f's_xor_b32 {s(sTB[b])}, {s(sT2)}, {b}'); e(f's_add_u32 {s(sTB[b])}, {s(sTB[b])}, {s(sT1)}')
        e(f's_mul_i32 {s(sH+b)}, {s(sTB[b])}, 144'); e(f's_add_u32 {s(sH+b)}, {s(sH+b)}, {s(sT0)}'); e(f's_lshl_b32 {s(sH+b)}, {s(sH+b)}, 10')
    e(f's_cmp_eq_u32 {s(sM)}, 0'); e(f's_cselect_b32 {s(sCnt)}, 2, 4')
    e(f's_lshr_b32 {s(sT0)}, s2, 5'); e(f's_and_b32 {s(sT1)}, s2, 7'); e(f's_lshl_b32 {s(sT0)}, {s(sT0)}, 3'); e(f's_add_u32 {s(sT0)}, {s(sT0)}, {s(sT1)}')
    e(f's_mul_i32 {s(sT0)}, {s(sT0)}, 3'); e(f's_add_u32 {s(sT0)}, {s(sT0)}, {s(sM)}'); e(f's_sub_u32 {s(sT0)}, {s(sT0)}, 1')
    e(f's_lshl_b32 {s(sT0)}, {s(sT0)}, 2'); e(f's_add_u32 {s(sJob)}, {s(sT0)}, {s(sW)}')
    e(f's_cmp_eq_u32 {s(sM)}, 0'); e(f's_cselect_b32 {s(sJob)}, 4096, {s(sJob)}')
    e(f's_mov_b32 {s(sOp)}, {s(KA+14)}'); e(f's_mov_b32 {s(sOp+1)}, {s(KA+15)}')
    e(f's_mul_i32 {s(sLine)}, {s(sQF)}, 3'); e(f's_add_u32 {s(sLine)}, {s(sLine)}, {s(sM)}'); e(f's_sub_u32 {s(sLine)}, {s(sLine)}, 1')
    for n in range(2):
        jb = JP[6 * n: 6 * n + 6]
        e(f's_mov_b32 {s(jb[2])}, {F*D*2}')
        e(f's_cmp_lt_u32 {s(sJob)}, {NJOB_WD}')
        e(f's_cselect_b32 {s(jb[0])}, {s(KA+12)}, {s(KA+4)}'); e(f's_cselect_b32 {s(jb[1])}, {s(KA+13)}, {s(KA+5)}')
        e(f's_cselect_b32 {s(jb[2])}, {s(jb[2])}, {D*D*2}'); e(f's_cselect_b32 {s(sT0)}, 0, {NJOB_WD}')
        e(f's_sub_u32 {s(sT0)}, {s(sJob)}, {s(sT0)}'); e(f's_mul_i32 {s(sT1)}, {s(sT0)}, 7282'); e(f's_lshr_b32 {s(sT1)}, {s(sT1)}, 16')
        e(f's_mul_i32 {s(jb[3])}, {s(sT1)}, {32*1152 - 9*128}'); e(f's_lshl_b32 {s(sT2)}, {s(sT0)}, 7'); e(f's_add_u32 {s(jb[3])}, {s(jb[3])}, {s(sT2)}')
        e(f's_mul_i32 {s(sT2)}, {s(sT1)}, 9'); e(f's_sub_u32 {s(sT0)}, {s(sT0)}, {s(sT2)}'); e(f's_lshl_b32 {s(sT0)}, {s(sT0)}, 2')
        e(f's_mul_i32 {s(sJo)}, {s(sT0)}, 7282'); e(f's_lshr_b32 {s(sJo)}, {s(sJo)}, 16')
        e(f's_mul_i32 {s(sT2)}, {s(sJo)}, 9'); e(f's_sub_u32 {s(sT0)}, {s(sT0)}, {s(sT2)}')
        e(f's_sub_u32 {s(jb[5])}, 9, {s(sT0)}')
        e(f's_mul_i32 {s(sJo)}, {s(sJo)}, {144*9}'); e(f's_add_u32 {s(sJo)}, {s(sJo)}, {s(sT0)}')
        e(f's_mul_i32 {s(sT0)}, {s(sT1)}, 1821'); e(f's_lshr_b32 {s(sT0)}, {s(sT0)}, 16'); e(f's_mul_i32 {s(sT0)}, {s(sT0)}, 36')
        e(f's_sub_u32 {s(sT1)}, {s(sT1)}, {s(sT0)}'); e(f's_and_b32 {s(sT2)}, {s(sT1)}, 1'); e(f's_add_u32 {s(sT0)}, {s(sT0)}, {s(sT2)}'); e(f's_lshr_b32 {s(sT1)}, {s(sT1)}, 1')
        e(f's_mul_i32 {s(sT2)}, {s(sT1)}, 5')
        lo = sum(pos_of_double(d) << (5 * d) for d in range(6)); mi = sum(pos_of_double(6 + d) << (5 * d) for d in range(6)); hi = sum(pos_of_double(12 + d) << (5 * d) for d in range(6))
        e(f's_mov_b32 {s(jb[4])}, {lo}'); e(f's_cmp_ge_u32 {s(sT1)}, 6'); e(f's_cselect_b32 {s(jb[4])}, {mi}, {s(jb[4])}'); e(f's_cselect_b32 {s(SX+2)}, 30, 0')
        e(f's_cmp_ge_u32 {s(sT1)}, 12'); e(f's_cselect_b32 {s(jb[4])}, {hi}, {s(jb[4])}'); e(f's_cselect_b32 {s(SX+2)}, 60, {s(SX+2)}')
        e(f's_sub_u32 {s(sT2)}, {s(sT2)}, {s(SX+2)}'); e(f's_lshr_b32 {s(jb[4])}, {s(jb[4])}, {s(sT2)}'); e(f's_and_b32 {s(jb[4])}, {s(jb[4])}, 31')
        e(f's_lshl_b32 {s(jb[4])}, {s(jb[4])}, 1'); e(f's_add_u32 {s(sT0)}, {s(sT0)}, {s(jb[4])}'); e(f's_mul_i32 {s(sT0)}, {s(sT0)}, 9'); e(f's_add_u32 {s(sT0)}, {s(sT0)}, {s(sJo)}')
        e(f's_lshl_b32 {s(sT0)}, {s(sT0)}, 10'); e(f's_lshl_b32 {s(sT1)}, {s(sJob)}, 12')
        e(f's_cmp_lt_u32 {s(sJob)}, {NJOB_WD}'); e(f's_cselect_b32 {s(sT0)}, {s(sT0)}, {s(sT1)}'); e(f's_cselect_b32 {s(jb[5])}, {s(jb[5])}, 9')
        e(f's_add_u32 {s(jb[4])}, {s(sT0)}, {WT_OFF}'); e(f's_add_u32 {s(jb[5])}, {s(jb[5])}, {REC_OFF}')
        e(f's_cmp_lt_u32 {s(sJob)}, {NJOB}'); e(f's_cselect_b32 {s(jb[2])}, {s(jb[2])}, 0'); e(f's_cselect_b32 {s(jb[5])}, {s(jb[5])}, 0')
        if n == 0: e(f's_add_u32 {s(sJob)}, {s(sJob)}, 768')
    e(f's_mov_b32 {s(sXp)}, {s(SX)}'); e(f's_mov_b32 {s(sXp+1)}, {s(SX+1)}')
    QB = 40960
    sQo = sKV
    e(f's_lshl_b32 {s(sT0)}, {s(sQF)}, 8')
    for st in range(6):
        e(f's_add_u32 {s(sKV+st)}, {s(sT0)}, {4096 + 1152*(1 + st//3) + 128*(st%3) - 1024*(st%4)}')
    e(f's_mul_i32 {s(sKm)}, {s(sW)}, 6144')
    e(f's_lshl_b32 {s(sT0)}, {s(sLine)}, 7'); e(f's_add_u32 {s(sT0)}, {s(sT0)}, 4096'); e(f's_lshr_b32 {s(sT1)}, {s(sM0w)}, 1')
    e(f's_cmp_eq_u32 {s(sM)}, 0'); e(f's_cselect_b32 {s(sKV)}, {s(sKV)}, {s(sT0)}'); e(f's_cselect_b32 {s(sKm)}, {s(sKm)}, {s(sT1)}')
    vTq = T[21]
    e(f's_cmp_lt_u32 {s(sW)}, 2'); e(f's_cselect_b32 {s(SX)}, {s(SGt)}, {s(SU)}'); e(f's_cselect_b32 {s(SX+1)}, {s(SGt+1)}, {s(SU+1)}')
    e(f's_cselect_b32 {s(sT0)}, 0, 2048'); e(f's_add_u32 {s(SX+2)}, {s(sT0)}, {D*F*2}')
    e(f's_add_u32 {s(sTo)}, {s(sWo)}, {s(sT0)}')
    e(f's_mul_i32 {s(sT0)}, {s(sT)}, 36'); e(f's_mul_i32 {s(sT1)}, {s(sJ)}, 18'); e(f's_add_u32 {s(sT1)}, {s(sT1)}, {s(sT0)}')
    e(f'v_add_u32 {v(vU)}, {s(sT1)}, {v(vLane)}'); e(f'v_mul_u32_u24 {v(vU)}, 9216, {v(vU)}'); e(f'v_mov_b32 {v(vI2)}, 0x40000000')
    e(f'v_cmp_gt_u32 vcc, 18, {v(vLane)}'); e(f'v_cndmask_b32 {v(vTg)}, {v(vI2)}, {v(vU)}, vcc')
    e(f'v_mul_u32_u24 {v(vU)}, 57, {v(vLane)}'); e(f'v_lshrrev_b32 {v(vU)}, 9, {v(vU)}')
    e(f'v_mul_u32_u24 {v(vB)}, 9, {v(vU)}'); e(f'v_sub_u32 {v(vB)}, {v(vLane)}, {v(vB)}')
    e(f's_mul_i32 {s(sT1)}, {s(sW)}, 9'); e(f's_add_u32 {s(sT1)}, {s(sT1)}, {s(sT0)}'); e(f'v_add_u32 {v(vB)}, {s(sT1)}, {v(vB)}'); e(f'v_mul_u32_u24 {v(vB)}, 3456, {v(vB)}')
    e(f'v_lshl_add_u32 {v(vB)}, {v(vU)}, 7, {v(vB)}'); e(f'v_cmp_lt_u32 vcc, 2, {v(vU)}'); e(f'v_add_u32 {v(vTq)}, {1152 - 384}, {v(vB)}'); e(f'v_cndmask_b32 {v(vB)}, {v(vB)}, {v(vTq)}, vcc')
    e(f's_cmp_lt_u32 {s(sLine)}, 9'); e(f's_cselect_b32 {s(sT1)}, 1, 0'); e(f's_cmp_eq_u32 {s(sM)}, 0'); e(f's_cselect_b32 {s(sT1)}, 6, {s(sT1)}')
    e(f'v_cmp_gt_u32 vcc, {s(sT1)}, {v(vU)}'); e(f'v_cndmask_b32 {v(vTq)}, {v(vI2)}, {v(vB)}, vcc')
    junk = lambda t: (lambda: e(t, junk=True))
    def gtouch(): return [junk(f'buffer_load_dword {v(vJS2)}, {v(vTg)}, {s(SX,4)}, {s(sTo)} offen'), f's_add_u32 {s(sTo)}, {s(sTo)}, 128']
    e(f'v_mul_u32_u24 {v(vU)}, 1152, {v(vLane)}'); e(f'v_cmp_gt_u32 vcc, 32, {v(vLane)}'); e(f'v_cndmask_b32 {v(vTj)}, {v(vI2)}, {v(vU)}, vcc')
    def jtouch(): return [f's_mov_b32 {s(SJS+q)}, {s(JP[q])}' for q in range(3)] + ([] if 'nojt' in opt else [junk(f'buffer_load_dword {v(vJS2)}, {v(vTj)}, {s(SJS,4)}, {s(JP[3])} offen')])
    touches = gtouch() + jtouch()
    if 'notouch' in opt: touches = jtouch()[:3]
    else: put([junk(f'buffer_load_dword {v(vJS2)}, {v(vTq)}, {s(SQ,4)}, {s(sKV)} offen')] + gtouch())
    SUM = lambda b: ACC + 4 * b
    SQ_ = lambda b: ACC + 8 + 4 * b
    pend = []
    def stats(b, ks):
        c0 = '0' if ks == 0 else v(SUM(b), 4); c1 = '0' if ks == 0 else v(SQ_(b), 4)
        e(f'v_mfma_f32_16x16x32_bf16 {v(SUM(b),4)}, {v(vONE,4)}, {xf(b,ks)}, {c0}')
        e(f'v_mfma_f32_16x16x32_bf16 {v(SQ_(b),4)}, {xf(b,ks)}, {xf(b,ks)}, {c1}')
    for l in range(9):
        p.wait_tag(f'x{l}')
        if l in (4, 8):
            for k in range(2): e(f'v_add_u32 {v(vXR[k])}, 65536, {v(vXR[k])}')
        cur = []
        for kk in range(2):
            for b in range(2):
                e(f'ds_read_b128 {xf(b, 2*l+kk)}, {v(vXR[kk])} offset:{(l%4)*16384 + b*2048}')
                cur.append((b, 2 * l + kk))
        while pend: stats(*pend.pop(0))
        pend = cur
    p.wait_lg(0); e('s_barrier')
    stamp()
    while pend: stats(*pend.pop(0))
    st0 = p.snapshot()
    tmpv = T[36]
    CT = [T[40 + 8 * k] for k in range(3)]
    order = [(b, ks) for ks in range(18) for b in range(2)]
    vNn, vNz = T[22], T[35]
    slow = []
    def center(early, mid, late, lab):
        e(f'v_mov_b32 {v(vNz)}, 0'); e(f'global_load_dwordx2 {v(vNn,2)}, {v(vNz)}, {s(sDbg,2)} sc1')
        mem = list(early)
        def one():
            while mem:
                x = mem.pop(0); put([x])
                if callable(x) or isinstance(x, tuple): break
        one()
        for b in range(2):
            for r in range(4): e(f'v_mul_f32 {v(SUM(b)+r)}, {fhex(-1.0/576)}, {v(SUM(b)+r)}')
            one()
        extra = []
        for b in range(2):
            q_ = SQ_(b)
            extra += [f'v_cndmask_b32 {v(tmpv+b)}, {v(q_)}, {v(q_+1)}, {s(mk[1],2)}', f'v_cndmask_b32 {v(tmpv+b)}, {v(tmpv+b)}, {v(q_+2)}, {s(mk[2],2)}',
                      f'v_cndmask_b32 {v(tmpv+b)}, {v(tmpv+b)}, {v(q_+3)}, {s(mk[3],2)}', f'v_cndmask_b32 {v(tmpv+b)}, 0, {v(tmpv+b)}, {s(mk[0],2)}']
        extra += [None] + [f'v_mfma_f32_16x16x4_f32 {v(SQ_(b),4)}, {v(vF1)}, {v(tmpv+b)}, 0' for b in range(2)]
        extra += [f'v_mul_f32 {v(tmpv+b)}, {v(SUM(b))}, {v(SUM(b))}' for b in range(2)] + [f's_mov_b32 {s(sT0)}, {fhex(1.0/576)}', None, None]
        for b in range(2):
            extra += [f'v_fma_f32 {v(tmpv+b)}, {v(SQ_(b))}, {s(sT0)}, -{v(tmpv+b)}', f'v_max_f32 {v(tmpv+b)}, 0, {v(tmpv+b)}',
                      f'v_add_f32 {v(tmpv+b)}, {fhex(1e-5)}, {v(tmpv+b)}', f'v_rsq_f32 {v(vRS+b)}, {v(tmpv+b)}', f'v_rcp_f32 {v(vRS2+b)}, {v(tmpv+b)}']
        reads = []
        for n in range(36 + 2):
            pk, wr = [], None
            if n < 36:
                b, ks = order[n]; t = CT[n % 3]
                m = [f'v_mfma_f32_16x16x32_bf16 {v(t,4)}, {v(vSEL+2,4)}, {xf(b,ks)}, {v(SUM(b),4)}',
                     f'v_mfma_f32_16x16x32_bf16 {v(t+4,4)}, {v(vSEL,4)}, {xf(b,ks)}, {v(SUM(b),4)}']
            else: m = [None, None]
            if n >= 2:
                b, ks = order[n - 2]; t = CT[(n - 2) % 3]; l, fi = divmod(n - 2, 4)
                dst = XV + 4 * fidx(b, ks) if xf_isv(b, ks) else t
                pk = [f'v_cvt_pk_bf16_f32 {v(dst+d)}, {v(t+2*d)}, {v(t+2*d+1)}' for d in range(4)]
                wr = (f'ds_write_b128 {v(vXR[2])}, {v(dst,4)} offset:{(l%3)*16384 + fi*1024}', f'xw{l}')
            put([m[0]] + pk[:2] + [m[1]] + pk[2:] + [wr])
            if n >= 2 and (n - 2) % 4 == 1 and n - 2 >= 4:
                l = (n - 2) // 4 - 1
                p.wait_lgtag(f'xw{l}', f'xr{l-1}', 'sw'); e('s_barrier')
                reads += [(f'ds_read_b128 {xf(2 + fi%2, 2*l + fi//2)}, {v(vXR[3])} offset:{(l%3)*16384 + fi*1024}', f'xr{l}') for fi in range(4)]
                if l == 4:
                    reads += [f'ds_read2st64_b32 {v(vRS+2,2)}, {v(vXR[1])} offset0:0 offset1:1', f'ds_read2st64_b32 {v(vRS2+2,2)}, {v(vXR[1])} offset0:2 offset1:3']
                    reads = [(x, 'xr4') if isinstance(x, str) else x for x in reads]
                if l == 5: mem += list(mid)
                if l == 7: mem += list(late)
            else:
                for _ in range(2):
                    if reads: put([reads.pop(0)])
            for _ in range(2):
                if extra: put([extra.pop(0)])
            if n == 17:
                assert not extra
                e(f'v_lshrrev_b32 {v(vXR[0])}, 2, {v(vL16)}'); e(f's_lshr_b32 {s(sT0)}, {s(sM0w)}, 2'); e(f's_add_u32 {s(sT0)}, {s(sT0)}, {STX}')
                e(f'v_add_u32 {v(vXR[0])}, {s(sT0)}, {v(vXR[0])}'); e(f'v_xor_b32 {v(vXR[1])}, 1024, {v(vXR[0])}')
                e(f'ds_write2st64_b32 {v(vXR[0])}, {v(vRS)}, {v(vRS+1)} offset0:0 offset1:1', 'sw'); e(f'ds_write2st64_b32 {v(vXR[0])}, {v(vRS2)}, {v(vRS2+1)} offset0:2 offset1:3', 'sw')
            one()
        p.wait_lgtag('xw8', 'xr7'); e('s_barrier')
        put([f'ds_read_b128 {xf(2 + fi%2, 16 + fi//2)}, {v(vXR[3])} offset:{2*16384 + fi*1024}' for fi in range(4)])
        put([f'ds_read_b128 {xf(*order[n])}, {v(vXR[2])} offset:{((n//4)%3)*16384 + (n%4)*1024}' for n in range(36) if not xf_isv(*order[n])])
        assert all(n >= 32 for n in range(36) if not xf_isv(*order[n]))
        while mem: one()
        e(f'v_readfirstlane_b32 {s(sN)}, {v(vNn)}'); e(f'v_readfirstlane_b32 {s(sN+1)}, {v(vNn+1)}')
        e(f's_cmp_eq_u32 {s(sN)}, 0'); e(f's_cbranch_scc1 {lab}_nw'); p.label(f'{lab}_nd')
        slow.append([f'{lab}_nw:', f's_mov_b32 {s(sSpin)}, {SPIN}', f'{lab}_nw2:', f'global_load_dwordx2 {v(vNn,2)}, {v(vNz)}, {s(sDbg,2)} sc1', 's_waitcnt vmcnt(0)',
                     f'v_readfirstlane_b32 {s(sN)}, {v(vNn)}', f'v_readfirstlane_b32 {s(sN+1)}, {v(vNn+1)}', f's_sub_u32 {s(sSpin)}, {s(sSpin)}, 1',
                     f's_cmp_lg_u32 {s(sN)}, 0', f's_cbranch_scc1 {lab}_nd', f's_cmp_lg_u32 {s(sSpin)}, 0', f's_cbranch_scc1 {lab}_nw2', f's_branch {lab}_nd'])
        stamp(2)
    def q_dma(c):
        return [f's_add_u32 m0, {s(sKm)}, {QB + 8192*c}', (f'buffer_load_dwordx4 {v(vQD[0])}, {s(SQ,4)}, {s(sQo)} offen lds', f'q{c}'),
                (f'buffer_load_dwordx4 {v(vQD[1])}, {s(SQ,4)}, {s(sQo)} offen offset:1024 lds', f'q{c}'), f's_add_u32 {s(sQo)}, {s(sQo)}, {64*3456}']
    e(f's_cmp_eq_u32 {s(sM)}, 0'); e(f's_cbranch_scc1 {name}_kv')
    e(f's_cmp_lt_u32 {s(sLine)}, 9'); e(f's_cbranch_scc1 {name}_q')
    center([x for c in range(6) for x in ffn_dma(c)], ffn_dma(6) + touches, ffn_dma(7), name + '_f')
    stF = p.snapshot(); stF = (stF[0], [x for x in stF[1] if str(x[1]).startswith('slot')])
    e(f's_branch {name}_hdr')

    def phi2(x, rs, rsl, t):
        return [f'v_pk_mul_f32 {v(t,2)}, {v(x,2)}, {v(rsl[0],2)}{rsl[1]}', f'v_pk_fma_f32 {v(x,2)}, {v(x,2)}, {v(rs[0],2)}, {s(sEps,2)}{rs[2]}',
                f'v_exp_f32_e64 {v(t)}, {v(t)} clamp', f'v_exp_f32_e64 {v(t+1)}, {v(t+1)} clamp',
                f'v_max_f32 {v(x)}, {s(sEps)}, {v(x)}', f'v_max_f32 {v(x+1)}, {s(sEps)}, {v(x+1)}', f'v_pk_add_f32 {v(x,2)}, {v(x,2)}, {v(t,2)}']
    def bc(reg):
        h = reg & 1
        return (reg & ~1, f' op_sel:[0,{h}] op_sel_hi:[1,{h}]', f' op_sel:[0,{h},0] op_sel_hi:[1,{h},1]')
    pr = lambda reg: (reg, '', '')
    def weave(seqs, between=None):
        for k in range(max(map(len, seqs))):
            for sq in seqs:
                if k < len(sq): e(sq[k])
            if between: between()
    def set_eps(): e(f's_mov_b32 {s(sEps)}, {fhex(1e-6)}'); e(f's_mov_b32 {s(sEps+1)}, {fhex(1e-6)}')
    wf = lambda g, kk: a(WF + 8 * (g % 3) + 4 * kk, 4)
    def tr4(g, base_reg, off, kstride):
        out = []
        for kk in range(2):
            for h in range(2):
                out.append(f'ds_read_b64_tr_b16 {a(WF + 8*(g%3) + 4*kk + 2*h, 2)}, {v(base_reg)} offset:{off + kk*kstride + h*512}')
        return out
    p.label(f'{name}_q'); p.restore(st0)
    center([x for c in range(7) for x in q_dma(c)] + ffn_dma(0) + ffn_dma(1), q_dma(7) + q_dma(8) + touches, [], name + '_qq')
    vQT = [ACC + 0, ACC + 1]
    e(f'v_lshrrev_b32 {v(ACC+2)}, 5, v0'); e(f'v_and_b32 {v(ACC+2)}, 1, {v(ACC+2)}'); e(f'v_lshlrev_b32 {v(ACC+2)}, 11, {v(ACC+2)}')
    e(f'v_subrev_u32 {v(ACC+2)}, {QB}, {v(ACC+2)}')
    for tt in range(2): e(f'v_sub_u32 {v(vQT[tt])}, {v(vTR+tt)}, {v(ACC+2)}')
    p.wait_tag('q6'); e('s_barrier')
    qtr = lambda g: tr4(g, vQT[g % 2], ((g // 2) % 4) * 8192 + (32768 if g // 2 == 8 else 0), 4096)
    for x in qtr(0) + qtr(1): e(x)
    nxt_slot = 2
    for g in range(18):
        c, tt = g // 2, g % 2
        mains = []; sl = Slots(8)
        for b in range(4):
            for kk in range(2):
                acc = PR + 16 * tt + 4 * b
                cc = '0' if (c == 0 and kk == 0) else v(acc, 4)
                mains.append(f'v_mfma_f32_16x16x32_bf16 {v(acc,4)}, {wf(g,kk)}, {xf(b, 2*c+kk)}, {cc}')
        sl.fix(-1, lambda g=g: p.need(a(WF + 8 * (g % 3), 8)))
        if g == 10: sl.fix(-1, lambda: p.wait_tag('q8'))
        if g in (2, 6, 10, 14): sl.fix(-1, 's_barrier')
        if g + 2 < 18:
            if g + 2 == 8:
                for tt2 in range(2): sl.fix(-1, f'v_add_u32 {v(vQT[tt2])}, 32768, {v(vQT[tt2])}')
            for k, x in enumerate(qtr(g + 2)): sl.fix(2 * k, x)
        if g in (2, 6, 10, 14):
            sl.stream(0, [x for x in ffn_dma(nxt_slot) if x]); nxt_slot += 1
        interleave(p, mains, sl.f)
    e('s_barrier')
    stamp(3)
    qtail = [x for x in ffn_dma(6) + ffn_dma(7) if x]
    set_eps()
    for b in range(4): e(f'v_mul_f32 {v(ACC+4+b)}, {fhex(LOG2E)}, {v(vRS+b)}')
    for b in range(4):
        weave([phi2(PR + 16 * tt + 4 * b + r, bc(vRS + b), bc(ACC + 4 + b), ACC + 8 + 4 * tt + r) for tt in range(2) for r in (0, 2)],
              lambda: put([qtail.pop(0)]) if qtail else None)
        o = PR + 4 * b
        e(f'v_cvt_pk_bf16_f32 {v(o)}, {v(o)}, {v(o+1)}'); e(f'v_cvt_pk_bf16_f32 {v(o+1)}, {v(o+2)}, {v(o+3)}')
        e(f'v_cvt_pk_bf16_f32 {v(o+2)}, {v(o+16)}, {v(o+17)}'); e(f'v_cvt_pk_bf16_f32 {v(o+3)}, {v(o+18)}, {v(o+19)}')
        e(f's_mul_i32 {s(sT0)}, {s(sTB[b])}, 18'); e(f's_lshl_b32 {s(sT2)}, {s(sLine)}, 1'); e(f's_add_u32 {s(sT0)}, {s(sT0)}, {s(sT2)}'); e(f's_add_u32 {s(sT0)}, {s(sT0)}, {s(sJ)}')
        e(f's_lshl_b32 {s(sT0)}, {s(sT0)}, 10'); e(f's_add_u32 {s(sT0)}, {s(sT0)}, {PQ_OFF}')
        e(f'buffer_store_dwordx4 {v(o,4)}, {v(vL16)}, {s(SWS,4)}, {s(sT0)} offen sc1')
    assert not qtail
    e(f's_branch {name}_hdr')
    p.label(f'{name}_kv'); p.restore(st0)
    center([x for ks in range(4) for x in kv_dma(ks, vKD)], touches, [], name + '_kk')
    def kacc(ct, b):
        if ct >= 5: return ('v', ACC + 16 * (ct - 5) + 4 * b)
        return ('v', ACC + 80 + 4 * b) if ct == 0 else ('a', JD + 16 * (ct - 1) + 4 * b)
    vKT = [vT + k for k in range(4)]
    e(f'v_and_b32 {v(vT+4)}, 15, v0'); e(f'v_lshlrev_b32 {v(vT+4)}, 2, {v(vT+4)}'); e(f'v_add_u32 {v(vT+4)}, {s(sSP)}, {v(vT+4)}')
    e(f'v_bfe_u32 {v(vT+5)}, v0, 4, 2'); e(f'v_mul_u32_u24 {v(vT+5)}, 6144, {v(vT+5)}')
    e(f'v_and_b32 {v(vT+6)}, 0x1ff, {v(vTR)}'); e(f's_lshl_b32 {s(sT0)}, {s(sJ)}, 6'); e(f'v_xor_b32 {v(vT+6)}, {s(sT0)}, {v(vT+6)}')
    for u in range(4):
        e(f's_add_u32 {s(sT0)}, {s(sQF)}, {u}'); e(f's_and_b32 {s(sT1)}, {s(sT0)}, 3'); e(f's_lshl_b32 {s(sT1)}, {s(sT1)}, 5')
        e(f's_lshr_b32 {s(sT0)}, {s(sT0)}, 2'); e(f's_add_u32 {s(sT0)}, {s(sT0)}, {s(sJ)}'); e(f's_lshl_b32 {s(sT0)}, {s(sT0)}, 10')
        e(f'v_xor_b32 {v(vKT[u])}, {s(sT1)}, {v(vT+6)}'); e(f'v_add3_u32 {v(vKT[u])}, {v(vKT[u])}, {s(sT0)}, {v(vT+5)}')
    vKD2 = vT + 6
    e(f'v_mov_b32 {v(vKD2)}, {v(vKD)}')
    NR, LA = 6, 3
    kfr = lambda n: WF + 4 * (n % NR)
    def ktr(n):
        ks, ct = divmod(n, 10); aa = ct % 5
        off = (ks % 2) * 24576 + (aa // 4) * 1024 + (ct // 5) * 3072
        return [f'ds_read_b64_tr_b16 {a(kfr(n) + 2*h, 2)}, {v(vKT[aa % 4])} offset:{off + 512*h}' for h in range(2)]
    p.wait_tag('kv0'); e('s_barrier')
    for n in range(LA):
        for x in ktr(n): e(x)
    ffn_at = {14: [0], 15: [1, 2], 16: [3], 17: [4, 5]}
    for ks in range(18):
        mains = []; sl = Slots(40)
        for ct in range(10):
            n = ks * 10 + ct
            for b in range(4):
                kd, base = kacc(ct, b); acc = R(kd, base, 4)
                mains.append(f'v_mfma_f32_16x16x32_bf16 {acc}, {xf(b,ks)}, {a(kfr(n),4)}, {"0" if ks == 0 else acc}')
            sl.fix(4 * ct - 1, lambda n=n: p.need(a(kfr(n), 4)))
            if n + LA < 180:
                if (n + LA) % 10 == 0:
                    nk = (n + LA) // 10
                    sl.fix(4 * ct - 1, lambda nk=nk: p.wait_tag(f'kv{nk}')); sl.fix(4 * ct, 's_barrier')
                    if nk % 2 == 0:
                        dlt = 49152 if nk % 6 else -98304
                        for u in range(4): sl.fix(4 * ct - 3 + u // 2, f'v_add_u32 {v(vKT[u])}, {dlt & 0xffffffff:#x}, {v(vKT[u])}')
                t2 = ktr(n + LA)
                late = (n + LA) % 10 == 0
                early = (n + LA) % 10 == 9
                sl.fix(4 * ct + (1 if late else 0), t2[0]); sl.fix(4 * ct + (0 if early else 2), t2[1])
        dm = []
        if ks == 3: sl.stream(30, [f'ds_write_b32 {v(vT+4)}, {v(vRS+b)} offset:{64*b}' for b in range(4)])
        if ks <= 13: dm = kv_dma(ks + 4, vKD2)
        elif ks in ffn_at: dm = [x for t in ffn_at[ks] for x in ffn_dma(t) if x]
        sl.stream(0, dm, last=26)
        interleave(p, mains, sl.f)
    p.wait_lg(0); e('s_barrier')
    stamp(4)
    FQ = lambda n: ACC + 16 * (n % 5) + 4 + 8 * (n // 5)
    e(f'v_bfe_u32 {v(vRS)}, v0, 4, 2'); e(f'v_lshlrev_b32 {v(vRS)}, 4, {v(vRS)}'); e(f'v_add_u32 {v(vRS)}, {s(sSP)}, {v(vRS)}')
    e(f'ds_read_b128 {v(vT,4)}, {v(vRS)}'); e(f'ds_read_b128 {v(vT+4,4)}, {v(vRS)} offset:64')
    for k in range(4): e(f'v_accvgpr_write_b32 {a(WF+k)}, {s(sOnes)}')
    set_eps()
    ktail = [x for x in ffn_dma(6) + ffn_dma(7) if x]
    RT = [[vT, vT + 4], [FQ(0), FQ(1)]]; RL = [[FQ(2), FQ(3)], [FQ(4), FQ(5)]]; RAW = [FQ(6), FQ(7)]; EXT = [FQ(8), FQ(9)]
    PV = {}; PK = {}
    for hb in range(2):
        for T_ in range(5):
            base = ACC + 16 * T_ + 8 * hb
            for k in range(0, 8, 2): e(f'v_pk_mul_f32 {v(base+k,2)}, {v(base+k,2)}, {v(RT[hb][k//4] + k%4, 2)}')
            for d in range(4): e(f'v_cvt_pk_bf16_f32 {v(base+d)}, {v(base+2*d)}, {v(base+2*d+1)}')
            PV[T_, hb] = v(base, 4)
            if hb == 0 and T_ == 1:
                e(f'ds_read_b128 {v(FQ(0),4)}, {v(vRS)} offset:128'); e(f'ds_read_b128 {v(FQ(1),4)}, {v(vRS)} offset:192')
            put([ktail.pop(0)])
    e(f's_mov_b32 {s(sT0)}, {fhex(LOG2E)}')
    for hb in range(2):
        for k in range(8): e(f'v_mul_f32 {v(RL[hb][k//4] + k%4)}, {s(sT0)}, {v(RT[hb][k//4] + k%4)}')
        put([ktail.pop(0)])
    assert not ktail
    e(f's_lshl_b32 {s(sT1)}, {s(sT)}, 1'); e(f's_add_u32 {s(sT1)}, {s(sT1)}, {s(sI)}'); e(f's_lshl_b32 {s(sT1)}, {s(sT1)}, 3')
    e(f's_lshl_b32 {s(sT0)}, {s(sQF)}, 1'); e(f's_add_u32 {s(sT0)}, {s(sT0)}, {s(sJ)}'); e(f's_add_u32 {s(sT1)}, {s(sT1)}, {s(sT0)}')
    e(f's_mul_i32 {s(sT1)}, {s(sT1)}, {18*1024}'); e(f's_add_u32 {s(sT1)}, {s(sT1)}, {KVP_OFF}'); e(f's_add_u32 {s(sT0)}, {s(sT1)}, {13*1024}')
    DT = [WF + 4 + 4 * k for k in range(5)]; nd = [0]; stq = []
    def kvmm(aa):
        for T_ in [T_ for T_ in (aa - 1, aa, aa + 1) if 0 <= T_ < 5] + [None]:
            d = a(DT[nd[0] % 5], 4); nd[0] += 1
            for hb in range(2):
                e(f'v_mfma_f32_16x16x32_bf16 {d}, {PK[aa, hb]}, {a(WF,4) if T_ is None else PV[T_, hb]}, {"0" if hb == 0 else d}')
            u = 13 + aa if T_ is None else KV_PAIRS.index((aa, T_))
            stq.append(f'buffer_store_dwordx4 {d}, {v(vL16)}, {s(SWS,4)}, {s(sT2)} offen sc1'); stq.insert(len(stq) - 1, f's_add_u32 {s(sT2)}, {s(sT1)}, {1024*u}')
    for aa in range(6):
        for hb in range(2):
            if aa == 5: break
            if aa == 0: src = [ACC + 80 + 8 * hb, ACC + 84 + 8 * hb]
            else:
                src = RAW
                if hb == 0: kvmm(aa - 1)
                for k in range(8): e(f'v_accvgpr_read_b32 {v(RAW[k//4] + k%4)}, {a(JD + 16*(aa-1) + 8*hb + k)}')
            weave([phi2(src[k//4] + k%4, pr(RT[hb][k//4] + k%4), pr(RL[hb][k//4] + k%4), EXT[k//4] + k%4) for k in range(0, 8, 2)],
                  lambda: put([stq.pop(0), stq.pop(0)]) if stq else None)
            if aa == 0:
                for d in range(4): e(f'v_cvt_pk_bf16_f32 {v(src[0]+d)}, {v(src[d//2] + 2*(d%2))}, {v(src[d//2] + 2*(d%2) + 1)}')
                PK[aa, hb] = v(src[0], 4)
            else:
                for d in range(4): e(f'v_cvt_pk_bf16_f32 {v(EXT[0]+d)}, {v(src[d//2] + 2*(d%2))}, {v(src[d//2] + 2*(d%2) + 1)}')
                for d in range(4): e(f'v_accvgpr_write_b32 {a(JD + 16*(aa-1) + 8*hb + d)}, {v(EXT[0]+d)}')
                PK[aa, hb] = a(JD + 16 * (aa - 1) + 8 * hb, 4)
    kvmm(4); put(stq)
    p.label(f'{name}_hdr'); p.restore(stF)
    stamp(5)
    acc = lambda ai, b: ACC + 16 * ai + 4 * b
    def ftr(G):
        G %= 36; c, g = divmod(G, 4)
        return tr4(G, vTR + 2 * (c // 4) + (g >> 1), (c % 4) * 16384 + (g & 1) * 2048, 8192)
    vPg, vP0 = vT + 4, vT + 6
    e(f'v_mov_b32 {v(vPg)}, {s(sN)}'); e(f'v_mov_b32 {v(vPg+1)}, {s(sN+1)}'); e(f'v_min_u32 {v(vP0)}, 1, v0'); e(f'v_lshlrev_b32 {v(vP0)}, 30, {v(vP0)}')
    e(f's_mov_b32 {s(sInc)}, {6*1024}'); e(f's_mov_b32 {s(sIncL)}, {10*1024}')
    e(f's_cmp_eq_u32 {s(sM)}, 0'); e(f's_cselect_b32 {s(sInc)}, {2*1024}, {s(sInc)}'); e(f's_cselect_b32 {s(sIncL)}, {8*1024}, {s(sIncL)}')
    e(f's_lshl_b32 {s(sT0)}, {s(sT)}, 2'); e(f's_add_u32 {s(sT0)}, {s(sT0)}, {s(sQF)}'); e(f's_lshl_b32 {s(sT0)}, {s(sT0)}, 5'); e(f's_add_u32 {s(sPc)}, {s(sT0)}, {PROG_OFF}')
    e(f's_lshl_b32 {s(sT0)}, {s(sM)}, 3'); e(f's_add_u32 {s(sPg)}, {s(sPc)}, {s(sT0)}')
    vHt, sHt = vRS, sKm
    e(f'v_and_b32 {v(vT)}, 63, v0'); e(f'v_lshrrev_b32 {v(vT+1)}, 3, {v(vT)}'); e(f'v_mul_u32_u24 {v(vT+1)}, {144*1024}, {v(vT+1)}'); e(f'v_and_b32 {v(vHt)}, 7, v0')
    e(f'v_lshl_add_u32 {v(vHt)}, {v(vHt)}, 7, {v(vT+1)}'); e(f'v_cmp_gt_u32 vcc, 32, {v(vT)}'); e(f'v_mov_b32 {v(vT+1)}, 0x40000000')
    e(f's_mul_i32 {s(sT0)}, {s(sJ)}, {2*144*1024}'); e(f's_sub_u32 {s(sHt)}, {s(sH)}, {s(sT0)}')
    e(f'v_cndmask_b32 {v(vHt)}, {v(vT+1)}, {v(vHt)}, vcc')
    def htouch(inc): return ([] if 'noht' in opt else [1]) and [junk(f'buffer_load_dword {v(vJS2)}, {v(vHt)}, {s(SH,4)}, {s(sHt)} offen')] + ([f's_add_u32 {s(sHt)}, {s(sHt)}, {s(inc)}'] if inc else [])
    def put2(sl, k, items):
        for x in items:
            if callable(x):
                while sl.cnt.get(k, 0): k += 1
                sl.fix(k, x, cost=2)
            else: k = sl.stream(k, [x])
        return k
    def check(lab, data, need, reload, pre=(), inline=True):
        seq = [f'v_xor_b32 {v(data)}, {s(sN)}, {v(data)}', f'v_sub_u32 {v(data+1)}, {v(data+1)}, {need}', f'v_lshrrev_b32 {v(data+1)}, 4, {v(data+1)}',
               f'v_or_b32 {v(data)}, {v(data)}, {v(data+1)}', f'v_cmp_ne_u32 vcc, 0, {v(data)}']
        spin = [f's_mov_b32 {s(sSpin)}, {SPIN}', f'{lab}_w2:', reload, 's_waitcnt vmcnt(0)'] + seq + \
               [f's_sub_u32 {s(sSpin)}, {s(sSpin)}, 1', 's_cmp_eq_u64 vcc, 0', f's_cbranch_scc1 {lab}_d', f's_cmp_lg_u32 {s(sSpin)}, 0', f's_cbranch_scc1 {lab}_w2', f's_branch {lab}_d']
        def f():
            if inline:
                put(seq); e('s_nop 0'); e('s_cmp_eq_u64 vcc, 0'); e(f's_cbranch_scc0 {lab}_w'); blk = [f'{lab}_w:'] + spin
            else:
                p.need(v(data, 2)); e(f's_cmp_eq_u32 {s(sCnt)}, 1'); e(f's_cbranch_scc1 {lab}_w')
                blk = [f'{lab}_w:'] + list(pre) + seq + ['s_nop 0', 's_cmp_eq_u64 vcc, 0', f's_cbranch_scc1 {lab}_d'] + spin
            p.label(f'{lab}_d')
            if blk not in slow: slow.append(blk)
        return f
    p.wait_tag('slot0'); e('s_barrier')
    for x in ftr(0) + ftr(1): e(x)
    def prod(h, b): return [f'v_mul_f32 {v(PR + 16*h + 4*b + r)}, {v(acc(2*h, b) + r)}, {v(acc(2*h+1, b) + r)}' for r in range(4)]
    def fin(b, inc):
        o = PR + 4 * b
        return ([f'v_mul_f32 {v(o + 16*h + r)}, {v(o + 16*h + r)}, {v(vRS2+b)}' for h in range(2) for r in range(4)] +
                [f'v_cvt_pk_bf16_f32 {v(o)}, {v(o)}, {v(o+1)}', f'v_cvt_pk_bf16_f32 {v(o+1)}, {v(o+2)}, {v(o+3)}',
                 f'v_cvt_pk_bf16_f32 {v(o+2)}, {v(o+16)}, {v(o+17)}', f'v_cvt_pk_bf16_f32 {v(o+3)}, {v(o+18)}, {v(o+19)}',
                 (f'buffer_store_dwordx4 {v(o,4)}, {v(vL16)}, {s(SH,4)}, {s(sH+b)} offen sc1', 'h')] +
                ([f's_add_u32 {s(sH+b)}, {s(sH+b)}, {s(inc)}'] if inc else []))
    progress = [f'v_add_u32 {v(vPg+1)}, 1, {v(vPg+1)}', f'buffer_store_dwordx2 {v(vPg,2)}, {v(vP0)}, {s(SWS,4)}, {s(sPg)} offen sc1']
    def slab(sl, mains, last):
        for G in range(36):
            c, g = divmod(G, 4)
            for b in range(4):
                for kk in range(2):
                    cc = '0' if (c == 0 and kk == 0) else v(acc(g, b), 4)
                    mains.append(f'v_mfma_f32_16x16x32_bf16 {v(acc(g,b),4)}, {wf(G,kk)}, {xf(b, 2*c+kk)}, {cc}')
            sl.fix(8 * G - 1, lambda G=G: p.need(a(WF + 8 * (G % 3), 8)))
            if g == 2:
                tag = f'slot{(c+1)%9}' if not (last and c == 8) else 'slot2'
                if c == 7: sl.fix(8 * G - 2, lambda: p.wait_tag('h'))
                sl.fix(8 * G - 1, lambda tag=tag: p.wait_tag(tag)); sl.fix(8 * G, 's_barrier')
            if not (last and G >= 34):
                for k, x in enumerate(ftr(G + 2)): sl.fix(8 * G + 2 * k + (1 if g == 2 else 0), x)
        sl.stream(8 * 33 + 5, prod(0, 0), last=8 * 34 - 1, cap=3)
        sl.stream(0, prod(1, 0) + prod(1, 1) + prod(1, 2) + prod(1, 3), last=15)
    def body():
        mains = []; sl = Slots(288)
        slab(sl, mains, False)
        sl.stream(8 * 34 + 1, prod(0, 1) + prod(0, 2) + prod(0, 3), last=287)
        for c in range(9):
            d = [x for x in ffn_dma((c - 1) % 9) if x]
            if c == 0: d[-1] = f's_add_u32 {s(sWo)}, {s(sWo)}, {(128 - 8*CH) & 0xffffffff:#x}'
            if c < 8: sl.stream(32 * c + 17, d, last=32 * c + 31, gap=1)
            else: sl.stream(32 * c + 17, d, last=287, cap=3)
        j1 = [f's_mov_b32 {s(sJo)}, {s(JP[3])}', f's_mov_b32 {s(SJD+2)}, {s(JP[5])}', f's_and_b32 {s(sCr)}, {s(JP[5])}, 15']
        k = sl.stream(16, j1, last=31)
        if 'notouch' not in opt:
            g_ = gtouch(); sl.fix(67, g_[0], cost=2); sl.stream(68, g_[1:])
        jl = [f's_mov_b32 m0, {s(sSP)}']
        for q in range(4):
            jl += [(f'buffer_load_dwordx4 {v(vJS)}, {s(SJS,4)}, {s(sJo)} offen offset:{1024*q} lds', 'job'), f's_add_u32 {s(sJo)}, {s(sJo)}, 8192']
        k = sl.stream(32, jl, last=47, gap=1)
        k = sl.stream(16, fin(0, sInc) + fin(1, sInc) + fin(2, sInc) + fin(3, sInc), gap=1)
        j2 = [f's_mov_b32 {s(sJo)}, {s(JP[4])}'] + [f's_mov_b32 {s(JP[q])}, {s(JP[6+q])}' for q in range(6)]
        j2 += [f's_mov_b32 {s(JP[8])}, 0', f's_mov_b32 {s(JP[11])}, 0']
        j2 += [f'v_xor_b32 {v(vT+u)}, {32*u}, {v(vJT)}' for u in range(1, 4)]
        k = sl.stream(k + 1, j2)
        jt = jtouch(); k = sl.stream(k, jt[:3])
        if jt[3:]:
            k = (k + 2) | 1
            while sl.cnt.get(k, 0): k += 1
            sl.fix(k, jt[3], cost=2)
        assert k < 32 * 6
        j3 = [lambda: p.wait_tag('job')]
        for u in range(4):
            for h in range(2): j3.append(f'ds_read_b64_tr_b16 {a(JD + 4*u + 2*h, 2)}, {v(vT+u) if u else v(vJT)} offset:{2048*h}')
        k = sl.stream(32 * 6, j3, gap=1)
        for u in range(4):
            if u:
                k += 1; sl.fix(k, lambda u=u: put([f's_cmp_le_u32 {s(sCr)}, {u}', f's_cselect_b32 {s(sT0)}, {(144*9 - 9)*1024}, 0', f's_add_u32 {s(sT0)}, {s(sT0)}, {s(sJo)}']), cost=2)
            k = sl.stream(k + 2, [f'buffer_store_dwordx4 {a(JD+4*u,4)}, {v(vL16)}, {s(SJD,4)}, {s(sT0 if u else sJo)} offen offset:{1024*u} sc1'])
        assert k < 8 * 30 - 2, k
        k = sl.stream(8 * 30 + 8, progress); put2(sl, k, htouch(sInc) + [f's_mov_b32 {s(SH+2)}, {PQ_OFF}'])
        vPd, vPa, vPn = vRS + 2, vRS + 1, vT
        pollA = f'buffer_load_dwordx2 {v(vPd,2)}, {v(vPa)}, {s(SWS,4)}, 0 offen sc1'
        if 'lateA' not in opt: sl.stream(32 * 5, [f'v_lshlrev_b32 {v(vPa)}, 3, v0', f'v_add_u32 {v(vPa)}, {PROG_OFF}, {v(vPa)}', pollA])
        if 'lateA' not in opt: sl.fix(8 * 30 - 4, check(name + '_ca', vPd, v(vPn), pollA, inline=False,
               pre=[f'v_and_b32 {v(vPn)}, 3, v0', f'v_min_u32 {v(vPn)}, 1, {v(vPn)}', f'v_lshl_add_u32 {v(vPn)}, {v(vPn)}, 1, 1', f'v_add_u32 {v(vPn)}, {s(sN+1)}, {v(vPn)}']), cost=2)
        def pull():
            e(f's_cmp_eq_u32 {s(sCnt)}, 1'); e(f's_cbranch_scc1 {name}_pw'); p.label(f'{name}_pd')
            t0, t1, t2 = vT, vT + 1, vT + 2
            blk = [f'{name}_pw:', f's_and_b32 {s(sT0)}, {s(sT)}, 7', f's_lshl_b32 {s(sT0)}, {s(sT0)}, 2', f's_add_u32 {s(sT0)}, {s(sT0)}, {s(sW)}',
                   f's_mul_i32 {s(sT1)}, {s(sM)}, 144', f's_mul_i32 {s(sT2)}, {s(sQF)}, 36', f's_add_u32 {s(sT1)}, {s(sT1)}, {s(sT2)}', f's_mul_i32 {s(sT1)}, {s(sT1)}, 9216',
                   f's_mul_i32 {s(sT2)}, {s(sT0)}, {81*128}', f's_add_u32 {s(sT1)}, {s(sT1)}, {s(sT2)}', f's_add_u32 {s(sT1)}, {s(sT1)}, {WT_OFF}',
                   f'v_lshlrev_b32 {v(t0)}, 3, {v(vL16)}', f'v_min_u32 {v(t1)}, {16*128}, {v(t0)}',
                   f'buffer_load_dword {v(vJS2)}, {v(t0)}, {s(SWS,4)}, {s(sT1)} offen', f's_add_u32 {s(sT1)}, {s(sT1)}, 8192',
                   f'buffer_load_dword {v(vJS2)}, {v(t1)}, {s(SWS,4)}, {s(sT1)} offen',
                   f's_mul_i32 {s(sT0)}, {s(sT0)}, 41', f'v_lshrrev_b32 {v(t0)}, 4, {v(vL16)}', f'v_min_u32 {v(t1)}, 40, {v(t0)}', f'v_add_u32 {v(t1)}, {s(sT0)}, {v(t1)}', f'v_min_u32 {v(t1)}, 1295, {v(t1)}',
                   f'v_mul_u32_u24 {v(t2)}, 3641, {v(t1)}', f'v_lshrrev_b32 {v(t2)}, 18, {v(t2)}', f'v_mul_u32_u24 {v(t2)}, {36*1024 - 72*128}, {v(t2)}', f'v_lshl_add_u32 {v(t1)}, {v(t1)}, 7, {v(t2)}',
                   f's_mul_i32 {s(sT1)}, {s(sM)}, 9216', f's_add_u32 {s(sT1)}, {s(sT1)}, {WOT_OFF}',
                   f'buffer_load_dword {v(vJS2)}, {v(t1)}, {s(SWS,4)}, {s(sT1)} offen',
                   f's_lshl_b32 {s(sT0)}, {s(sT)}, 2', f's_add_u32 {s(sT0)}, {s(sT0)}, {s(sQF)}', f's_lshl_b32 {s(sT0)}, {s(sT0)}, 4', f's_lshl_b32 {s(sT1)}, {s(sM)}, 2', f's_add_u32 {s(sT0)}, {s(sT0)}, {s(sT1)}',
                   f's_add_u32 {s(sT0)}, {s(sT0)}, {s(sW)}', f's_mul_i32 {s(sT0)}, {s(sT0)}, {18*128}', f's_add_u32 {s(sT0)}, {s(sT0)}, {PQ_OFF}',
                   f'v_min_u32 {v(t0)}, 17, {v(t0)}', f'v_lshlrev_b32 {v(t0)}, 7, {v(t0)}', f'buffer_load_dword {v(vJS2)}, {v(t0)}, {s(SWS,4)}, {s(sT0)} offen',
                   f's_branch {name}_pd']
            if blk not in slow: slow.append(blk)
        if 'nopull' not in opt and 'lateA' not in opt: sl.fix(8 * 31 + 6, pull, cost=2)
        interleave(p, mains, sl.f)
    def back():
        e(f's_sub_u32 {s(sCnt)}, {s(sCnt)}, 1'); e(f's_cmp_lg_u32 {s(sCnt)}, 0'); e(f's_cbranch_scc1 {name}_loop')
    p.loop(body, f'{name}_loop', back)
    stamp(6)

    sC, sQK = sM, sQF
    SO, SJ, SA, SP_ = SQ, SJS, SJD, SGt
    free_s = JP + [sKV + k for k in range(6)] + sTB + [sJob, sJo, sLine, sTo, sCr, sSP, sOnes]
    sWd, sWs, sH2a, sH2b, sJs, sJd, sAl, sTl, sHi, sRec, sWo2, sW8, sPq0, sPq1, sPart, sFl, sSel, sT3, sM0p, sRf = free_s[:20]
    sH2 = [sH2a, sH2b]; sHd = free_s[20:24]
    ACC2 = XV
    big = lambda f: ACC + 4 * f if f < 24 else XV + 72 + 4 * (f - 24)
    vLx = [vL16, vTg, vRS + 1]; vRD = [vT, vT + 1, vT + 2, vT + 3]; vXO2, vX8 = vJS, vJT
    vXD = [vTR, vTR + 4, vRS + 2]; TQ = [vT + 4, vRS2 + 2]
    assert vTR % 4 == 0 and (vRS + 2) % 4 == 0 and (vRS2 + 2) % 4 == 0 and XV + 72 + 52 <= 252
    vCk = 252
    HBs = [JD, JD + 32, XA + 16, XA + 48]; AR = XA + 80
    hb = lambda c, b, ks: HBs[c % 4] + 16 * b + 4 * ks
    WR = [XA + 128 + 4 * k for k in range(8)] + [XA + 4 * k for k in range(4)] + [WF + 4 * k for k in range(6)] + [JD + 64, JD + 68] + \
         [HBs[n] + 4 * k for n in (1, 2, 3, 0) for k in range(8)] + [AR, AR + 4]
    wreg = lambda f: WR[f]
    def hloads(c):
        out = []
        for b in range(2):
            for ks in range(4): out.append(f'buffer_load_dwordx4 {a(hb(c,b,ks),4)}, {v(vL16)}, {s(SWS,4)}, {s(sH2[b])} offen offset:{1024*ks} sc1')
            out.append(f's_add_u32 {s(sH2[b])}, {s(sH2[b])}, 4096')
        return out
    def sdma(slot, tag):
        return [f's_add_u32 m0, {s(sM0w)}, {slot*16384}'] + \
               [(f'buffer_load_dwordx4 {v(vL16)}, {s(SWS,4)}, {s(sWs)} offen offset:{1024*q} sc1 lds', tag) for q in range(4)] + [f's_add_u32 {s(sWs)}, {s(sWs)}, 16384']
    def wdma(c):
        out = []
        for pc in range(9):
            if pc % 4 == 0: out.append(f's_add_u32 m0, {s(sM0p)}, {(c%4)*SLOT + 4096*(pc//4)}')
            out.append((f'buffer_load_dwordx4 {v(vLx[pc//4])}, {s(SWS,4)}, {s(sWd)} offen offset:{1024*(pc%4)} sc1 lds', f'w{c}'))
        out.append(f's_add_u32 {s(sWd)}, {s(sWd)}, {SLOT}')
        return out
    acc2 = lambda aa, b: ACC2 + 8 * aa + 4 * b
    ar = lambda n, ks: AR + 16 * (n % 3) + 4 * ks
    def ard(n):
        c, aa = divmod(n, 9)
        return [f'ds_read_b128 {a(ar(n,ks),4)}, {v(vRD[c%4])} offset:{ks*9216 + aa*1024}' for ks in range(4)]
    grp = lambda *xs: (lambda: put(list(xs)))
    mains = []; sl = Slots(288 + 648)
    slab(sl, mains, True)
    for n in range(2):
        for k, x in enumerate(ard(n)): sl.fix(8 * (34 + n) + 2 * k + (1 if n == 0 else 0), x)
    sl.stream(8 * 34 + 1, prod(0, 1) + prod(0, 2) + prod(0, 3), last=287)
    sl.stream(17, [x for x in ffn_dma(8) if x][:-1], last=31, gap=1)
    setup = [f's_mul_i32 {s(sT0)}, {s(sC)}, 144', f's_mul_i32 {s(sT1)}, {s(sQK)}, 36', f's_add_u32 {s(sT0)}, {s(sT0)}, {s(sT1)}', f's_mul_i32 {s(sT0)}, {s(sT0)}, 9216',
             f's_add_u32 {s(sT0)}, {s(sT0)}, {WT_OFF}', f's_add_u32 {s(sWs)}, {s(sT0)}, {s(sM0w)}', f's_mul_i32 {s(sM0p)}, {s(sW)}, 9216',
             f's_add_u32 {s(sWd)}, {s(sT0)}, {s(sM0p)}', f's_add_u32 {s(sWd)}, {s(sWd)}, {4*SLOT}',
             f's_lshl_b32 {s(sT0)}, {s(sT)}, 3', f's_lshl_b32 {s(sT2)}, {s(sW)}, 1', f's_add_u32 {s(sT0)}, {s(sT0)}, {s(sT2)}', f's_mul_i32 {s(sT0)}, {s(sT0)}, 144',
             f's_add_u32 {s(sT0)}, {s(sT0)}, {s(sT1)}', f's_lshl_b32 {s(sH2a)}, {s(sT0)}, 10', f's_add_u32 {s(sH2b)}, {s(sH2a)}, {144*1024}']
    k = sl.stream(16, setup); assert k < 48
    if 'lateA' in opt:
        vPd, vPn, vPa = vRS + 2, vTj, vRS + 1
        pollA = f'buffer_load_dwordx2 {v(vPd,2)}, {v(vPa)}, {s(SWS,4)}, 0 offen sc1'
        sl.stream(16, [f'v_lshlrev_b32 {v(vPa)}, 3, v0', f'v_add_u32 {v(vPa)}, {PROG_OFF}, {v(vPa)}', pollA,
                       f'v_and_b32 {v(vPn)}, 3, v0', f'v_min_u32 {v(vPn)}, 1, {v(vPn)}', f'v_lshl_add_u32 {v(vPn)}, {v(vPn)}, 1, 1', f'v_add_u32 {v(vPn)}, {s(sN+1)}, {v(vPn)}'])
        if 'nochkA' not in opt: sl.fix(8 * 10 - 4, check(name + '_ca', vPd, v(vPn), pollA), cost=2)
        sl.spread(81, 111, sdma(0, 'slot0') + sdma(1, 'slot1'))
    for c in range(3 if 'lateA' in opt else 1, 9):
        sl.stream(32 * c + 17, sdma(c - 1, f'slot{c-1}'), last=32 * c + 31 if c < 8 else 287, gap=1 if c < 8 else 0, cap=2 if c < 8 else 3)
    k = sl.stream(16, fin(0, sIncL) + fin(1, sIncL) + fin(2, sIncL) + fin(3, sIncL), gap=1)
    k = sl.stream(8 * 30 + 8, progress); put2(sl, k, htouch(sIncL))
    sl.spread(118, 262, hloads(0) + hloads(1) + hloads(2))
    def srd2(r, ptr): return [f's_mov_b32 {s(r)}, {s(ptr)}', f's_mov_b32 {s(r+1)}, {s(ptr+1)}']
    setup2 = [f'v_add_u32 {v(vLx[1])}, 4096, {v(vL16)}', f'v_add_u32 {v(vLx[2])}, 8192, {v(vL16)}'] + [f'v_add_u32 {v(vRD[n])}, {n*SLOT}, {v(vL16)}' for n in range(4)]
    setup2 += srd2(SX, sXp) + [f's_mov_b32 {s(SX+2)}, {S*D*2}'] + srd2(SO, sOp) + [f's_mov_b32 {s(SO+2)}, {S*D*2}'] + srd2(SJ, SWS) + srd2(SP_, SWS)
    setup2 += [f's_mul_i32 {s(sT0)}, s2, 10923', f's_lshr_b32 {s(sT0)}, {s(sT0)}, 16', f's_mul_i32 {s(sT1)}, {s(sT0)}, 6', f's_sub_u32 {s(sT1)}, s2, {s(sT1)}', f's_lshr_b32 {s(sT1)}, {s(sT1)}, 1',
               f's_mul_i32 {s(sT2)}, {s(sT0)}, 7282', f's_lshr_b32 {s(sT2)}, {s(sT2)}, 16', f's_mul_i32 {s(sT3)}, {s(sT2)}, 9', f's_sub_u32 {s(sTl)}, {s(sT0)}, {s(sT3)}',
               f's_add_u32 {s(sAl)}, {s(sTl)}, {s(sT1)}', f's_sub_u32 {s(sAl)}, {s(sAl)}, 1',
               f's_and_b32 {s(sT3)}, {s(sT0)}, 1', f's_add_u32 {s(sT3)}, {s(sT3)}, {s(sT1)}', f's_sub_u32 {s(sT3)}, {s(sT3)}, 1', f's_and_b32 {s(sHi)}, s2, 1',
               f's_lshl_b32 {s(sJd)}, {s(sHi)}, 10', f's_lshl_b32 {s(sJs)}, {s(sT3)}, 3', f's_add_u32 {s(sJd)}, {s(sJd)}, {s(sJs)}', f's_lshl_b32 {s(sJs)}, {s(sHi)}, 3', f's_add_u32 {s(sJs)}, {s(sJs)}, 2048',
               grp(f's_cmp_lt_u32 {s(sT3)}, 2', f's_cselect_b32 {s(sJd)}, {s(sJd)}, {s(sJs)}'),
               f's_mul_i32 {s(sT0)}, {s(sT0)}, 3072', f's_add_u32 {s(sJd)}, {s(sJd)}, {s(sT0)}', f's_lshl_b32 {s(sT0)}, {s(sW)}, 8', f's_add_u32 {s(sJd)}, {s(sJd)}, {s(sT0)}', f's_add_u32 {s(sJd)}, {s(sJd)}, {REC_OFF}',
               f's_max_i32 {s(sT0)}, {s(sAl)}, {s(sTl)}', grp(f's_cmp_gt_i32 {s(sT0)}, 4', f's_cselect_b32 {s(sT0)}, 1, 0'),
               f's_lshl_b32 {s(sT1)}, {s(sT0)}, 2', f's_sub_u32 {s(sT3)}, {s(sAl)}, {s(sT1)}', f's_sub_u32 {s(sT1)}, {s(sTl)}, {s(sT1)}', f's_add_u32 {s(sT1)}, {s(sT1)}, {s(sT3)}',
               grp(f's_cmp_eq_u32 {s(sHi)}, 0', f's_cselect_b32 {s(sT1)}, {s(sT1)}, 13'), f's_add_u32 {s(sT1)}, {s(sT1)}, {s(sT3)}',
               f's_lshl_b32 {s(sT2)}, {s(sT2)}, 1', f's_add_u32 {s(sT2)}, {s(sT2)}, {s(sT0)}', f's_mul_i32 {s(sT2)}, {s(sT2)}, 18', f's_add_u32 {s(sT1)}, {s(sT1)}, {s(sT2)}',
               f's_lshl_b32 {s(sT1)}, {s(sT1)}, 10', f's_lshl_b32 {s(sT0)}, {s(sW)}, 8', f's_add_u32 {s(sT1)}, {s(sT1)}, {s(sT0)}', f's_add_u32 {s(sJs)}, {s(sT1)}, {KVP_OFF}',
               grp(f's_cmp_lt_u32 {s(sAl)}, 9', f's_cselect_b32 {s(SJ+2)}, {WT_OFF}, 0'),
               grp('s_cmp_lt_u32 s2, 216', f's_cselect_b32 {s(SJ+2)}, {s(SJ+2)}, 0', f's_cselect_b32 {s(SA+2)}, {STAMP_OFF}, 0'),
               f's_lshl_b32 {s(sRf)}, s2, 3', f's_add_u32 {s(sRf)}, {s(sRf)}, {RECF_OFF}',
               f's_lshl_b32 {s(sT0)}, {s(sAl)}, 4', f's_lshl_b32 {s(sT1)}, {s(sW)}, 2', f's_add_u32 {s(sT0)}, {s(sT0)}, {s(sT1)}', f's_mul_i32 {s(sT0)}, {s(sT0)}, 3641']
    for r in range(4): setup2 += [f's_lshr_b32 {s(sHd[r])}, {s(sT0)}, 16'] + ([f's_add_u32 {s(sT0)}, {s(sT0)}, 3641'] if r < 3 else [])
    setup2 += [f'v_and_b32 {v(vXO2)}, 31, v0', f'v_mul_u32_u24 {v(vXO2)}, 1152, {v(vXO2)}', f'v_bfe_u32 {v(vX8)}, v0, 5, 1', f'v_lshl_add_u32 {v(vXO2)}, {v(vX8)}, 4, {v(vXO2)}',
               f's_lshl_b32 {s(sT0)}, {s(sT)}, 2', f's_add_u32 {s(sT0)}, {s(sT0)}, {s(sQK)}', f's_mul_i32 {s(sT0)}, {s(sT0)}, {32*1152}', f's_mul_i32 {s(sT1)}, {s(sC)}, 288',
               f's_add_u32 {s(sT0)}, {s(sT0)}, {s(sT1)}', f'v_add_u32 {v(vX8)}, {s(sT0)}, {v(vXO2)}', f's_lshl_b32 {s(sT1)}, {s(sW)}, 5', f'v_add_u32 {v(vXO2)}, {s(sT1)}, {v(vX8)}',
               f's_mul_i32 {s(sRec)}, {s(sW)}, {9*3072}', f's_add_u32 {s(sRec)}, {s(sRec)}, {REC_OFF}',
               f's_mul_i32 {s(sT1)}, {s(sC)}, {9*1024}', f's_add_u32 {s(sW8)}, {s(sT1)}, {WOT_OFF + 8192}', f's_lshl_b32 {s(sT0)}, {s(sW)}, 10', f's_add_u32 {s(sWo2)}, {s(sT1)}, {s(sT0)}', f's_add_u32 {s(sWo2)}, {s(sWo2)}, {WOT_OFF}',
               f's_lshl_b32 {s(sT0)}, {s(sT)}, 3', f's_lshl_b32 {s(sT1)}, {s(sQK)}, 1', f's_add_u32 {s(sT0)}, {s(sT0)}, {s(sT1)}', f's_mul_i32 {s(sT0)}, {s(sT0)}, 18',
               f's_mul_i32 {s(sT1)}, {s(sW)}, 9', f's_lshr_b32 {s(sT1)}, {s(sT1)}, 1', f's_add_u32 {s(sT0)}, {s(sT0)}, {s(sT1)}', f's_lshl_b32 {s(sT0)}, {s(sT0)}, 10',
               f's_add_u32 {s(sPq0)}, {s(sT0)}, {PQ_OFF}', f's_add_u32 {s(sPq1)}, {s(sPq0)}, {18*1024}',
               f's_and_b32 {s(sT0)}, s2, 0xfc', f's_add_u32 {s(sT0)}, {s(sT0)}, {s(sW)}', f's_lshl_b32 {s(sFl)}, {s(sT0)}, 4', f's_add_u32 {s(sFl)}, {s(sFl)}, {s(sQK)}',
               f's_lshl_b32 {s(sFl)}, {s(sFl)}, 3', f's_add_u32 {s(sFl)}, {s(sFl)}, {FLAG_OFF}',
               f's_lshl_b32 {s(sT0)}, {s(sT0)}, 2', f's_add_u32 {s(sT0)}, {s(sT0)}, {s(sQK)}', f's_mul_i32 {s(sT0)}, {s(sT0)}, 9216', f's_add_u32 {s(sPart)}, {s(sT0)}, {PART_OFF}',
               grp(f's_cmp_eq_u32 {s(sW)}, {s(sQK)}', f's_cselect_b32 {s(SP_+2)}, 0, {STAMP_OFF}'),
               f's_add_u32 {s(sSel)}, {s(sQK)}, 1', f's_and_b32 {s(sSel)}, {s(sSel)}, 3']
    k = sl.stream(82, setup2); assert k < 288 + 40, k
    B0 = 288
    for n in range(81):
        c, aa = divmod(n, 9)
        for b in range(2):
            for ks in range(4):
                cc = '0' if (c == 0 and ks == 0) else v(acc2(aa, b), 4)
                mains.append(f'v_mfma_f32_16x16x32_bf16 {v(acc2(aa,b),4)}, {a(ar(n,ks),4)}, {a(hb(c,b,ks),4)}, {cc}')
        sl.fix(B0 + 8 * n - 1, lambda n=n, c=c, aa=aa: p.need(a(ar(n, 0), 16), *([a(HBs[c % 4], 32)] if aa == 0 else [])))
        late = 0
        if aa == 7 and c < 8:
            tag = ('slot4', 'slot6', 'slot8x')[c] if c < 3 else f'w{c+1}'
            sl.fix(B0 + 8 * n - 1, lambda tag=tag: p.wait_tag(tag)); sl.fix(B0 + 8 * n, 's_barrier'); late = 1
        if aa == 1 and c <= 5: sl.fix(B0 + 8 * n - 3, 's_barrier')
        if n + 2 < 81:
            for k, x in enumerate(ard(n + 2)): sl.fix(B0 + 8 * n + 2 * k + late, x)
    if stamps: sl.fix(B0 - 1, lambda: stamp(7), cost=2)
    if stamps and 'fine' in opt:
        for c in range(1, 9): sl.fix(B0 + 72 * c - 1, lambda c=c: stamp(15 + c), cost=2)
        for c in (2, 4, 6, 8): sl.fix(32 * c - 1, lambda c=c: stamp(24 + c // 2), cost=2)
    sl.stream(B0, prod(1, 0) + prod(1, 1) + prod(1, 2) + prod(1, 3))
    JL = XV + 72; vJo, vJd, vHe, vJt = JL + 40, JL + 41, JL + 42, JL + 44
    jobs0 = [f'v_and_b32 {v(vHe)}, 15, v0', f'v_bfe_u32 {v(vJd)}, v0, 4, 2', f'v_mul_u32_u24 {v(vJo)}, {8*18*1024}, {v(vJd)}', f'v_lshl_add_u32 {v(vJo)}, {v(vHe)}, 4, {v(vJo)}',
             f'v_lshlrev_b32 {v(vJd)}, 28, {v(vJd)}', f'v_lshl_add_u32 {v(vJd)}, {v(vHe)}, 4, {v(vJd)}',
             f's_lshl_b32 {s(sCnt)}, {s(sTl)}, 4', f'v_add_u32 {v(vHe)}, {s(sCnt)}, {v(vHe)}', f'v_mul_u32_u24 {v(vHe)}, 3641, {v(vHe)}', f'v_lshrrev_b32 {v(vHe)}, 16, {v(vHe)}']
    k = sl.stream(8 * 32 + 1, jobs0, last=8 * 33 + 3)
    jobl = []
    for k in range(8):
        jobl += [f'buffer_load_dwordx4 {v(JL+4*k,4)}, {v(vJo)}, {s(SJ,4)}, {s(sJs)} offen sc1', f's_add_u32 {s(sJs)}, {s(sJs)}, {4*8*18*1024}']
    vCd, vCa, vCn = vCk, vCk + 2, vCk + 3
    pollC = f'buffer_load_dwordx2 {v(vCd,2)}, {v(vCa)}, {s(SWS,4)}, {s(sPc)} offen sc1'
    sl.spread(B0 + 6, B0 + 71, [f'v_and_b32 {v(vCn)}, 3, v0', f'v_max_u32 {v(vCa)}, 1, {v(vCn)}', f'v_lshlrev_b32 {v(vCa)}, 3, {v(vCa)}', pollC] + sdma(8, 'slot8x')[:-1] + jobl)
    kf = sl.stream(B0 + 10, fin(0, None) + fin(1, None) + fin(2, None) + fin(3, None))
    if 'nochkB' not in opt: sl.fix(B0 + 70, grp(f's_add_u32 {s(sT0)}, {s(sN+1)}, 5', check(name + '_cb', vCd, s(sT0), pollC)), cost=2)
    for c in range(1, 6):
        sl.spread(B0 + 72 * c + 6, B0 + 72 * c + 71, wdma(c + 3) + ([check(name + '_cc', vCd, v(vCn), pollC)] if c == 4 and 'nochkC' not in opt else []) + hloads(c + 2))
    k = sl.stream(B0 + 72 * 3 + 60, [f'v_lshlrev_b32 {v(vCa)}, 3, {v(vCn)}', f'v_min_u32 {v(vCn)}, 1, {v(vCn)}', f'v_lshl_add_u32 {v(vCn)}, {v(vCn)}, 1, 4', f'v_add_u32 {v(vCn)}, {s(sN+1)}, {v(vCn)}', pollC])
    assert k < B0 + 72 * 4 + 8
    assert kf < B0 + 100, kf - B0
    sl.fix(B0 + 8 * (18 + 7) - 2, lambda: p.wait_tag('h'))
    k = sl.stream(B0 + 8 * (18 + 7) + 2, progress); put2(sl, k, htouch(None))
    jobv = []
    for k in range(1, 8):
        jobv += [f'v_add_f32 {v(JL+r)}, {v(JL+r)}, {v(JL+4*k+r)}' for r in range(4)]
    for sw in ('v_permlane32_swap_b32', 'v_permlane16_swap_b32'):
        jobv += [f'v_mov_b32 {v(vJt+r)}, {v(JL+r)}' for r in range(4)]
        jobv += [f'{sw} {v(vJt+r)}, {v(JL+r)}' for r in range(4)]
        jobv += [f'v_add_f32 {v(JL+r)}, {v(JL+r)}, {v(vJt+r)}' for r in range(4)]
    k = sl.stream(max(kf, B0 + 80), jobv)
    for r in range(4):
        k = sl.stream(k, [f'v_cmp_eq_u32 vcc, {s(sHd[r])}, {v(vHe)}'])
        k = sl.stream(k + 2, [f'v_cndmask_b32 {v(JL+r)}, 0, {v(JL+r)}, vcc'])
    k = sl.stream(k, [f'v_cvt_pk_bf16_f32 {v(JL)}, {v(JL)}, {v(JL+1)}', f'v_cvt_pk_bf16_f32 {v(JL+1)}, {v(JL+2)}, {v(JL+3)}',
                      (f'buffer_store_dwordx2 {v(JL,2)}, {v(vJd)}, {s(SA,4)}, {s(sJd)} offen sc1', 'rec'), f'v_mov_b32 {v(vJt)}, {s(sN)}', f'v_mov_b32 {v(vJt+1)}, {s(sN+1)}'])
    assert k < B0 + 72 * 3 + 10, k - B0
    sl.fix(B0 + 8 * (36 + 7) - 2, lambda: p.wait_tag('rec'))
    sl.stream(B0 + 8 * (36 + 7) + 2, [f'buffer_store_dwordx2 {v(vJt,2)}, {v(vP0)}, {s(SA,4)}, {s(sRf)} offen sc1'])
    REC = lambda tl, pc: big(3 * tl + pc)
    PQ = lambda b, g: big(27 + 5 * b + g)
    def wload(f):
        pc, g = divmod(f, 18)
        return [f's_add_u32 {s(sT2)}, {s(sWo2 if pc < 2 else sW8)}, {g*36*1024 + (4096 if pc == 1 else 0)}', f'buffer_load_dwordx4 {a(wreg(f),4)}, {v(vL16)}, {s(SWS,4)}, {s(sT2)} offen sc1']
    xl = [f'buffer_load_dwordx4 {v(vXD[0],4)}, {v(vXO2)}, {s(SX,4)}, 0 offen', f'buffer_load_dwordx4 {v(vXD[1],4)}, {v(vXO2)}, {s(SX,4)}, 0 offen offset:128',
          f'buffer_load_dwordx4 {v(vXD[2],4)}, {v(vX8)}, {s(SX,4)}, 0 offen offset:256']
    pql = [f'buffer_load_dwordx4 {v(PQ(b,g),4)}, {v(vLx[g//4])}, {s(SWS,4)}, {s(sPq0 if b == 0 else sPq1)} offen offset:{1024*(g%4)} sc1' for b in range(2) for g in range(5)]
    pollR = f'buffer_load_dwordx2 {v(vCd,2)}, {v(vCa)}, {s(SWS,4)}, {s(sT3)} offen sc1'
    k0 = B0 + 72 * 6
    sl.spread(k0, k0 + 71, [f'v_and_b32 {v(vCa)}, 63, v0', f'v_min_u32 {v(vCa)}, 53, {v(vCa)}', f'v_lshlrev_b32 {v(vCa)}, 3, {v(vCa)}', f's_mul_i32 {s(sT3)}, {s(sW)}, {54*8}',
                            f's_add_u32 {s(sT3)}, {s(sT3)}, {RECF_OFF}'] + hloads(8)[:5] + [pollR] + hloads(8)[5:] + xl + pql[:4])
    if 'nochkR' not in opt: sl.fix(k0 + 72, check(name + '_cr', vCd, s(sN+1), pollR), cost=2)
    recl = []
    for f in range(27):
        if f % 12 == 0 and f: recl.append(f's_add_u32 {s(sRec)}, {s(sRec)}, 12288')
        recl.append(f'buffer_load_dwordx4 {v(big(f),4)}, {v(vLx[(f%12)//4])}, {s(SWS,4)}, {s(sRec)} offen offset:{1024*(f%4)} sc1')
    def pub(aa):
        o = acc2(aa, 0); t = TQ[aa & 1]
        return [f'v_cvt_pk_bf16_f32 {v(t+d)}, {v(o+2*d)}, {v(o+2*d+1)}' for d in range(4)] + \
               [(f'buffer_store_dwordx4 {v(t,4)}, {v(vLx[aa//4])}, {s(SP_,4)}, {s(sPart)} offen offset:{1024*(aa%4)} sc1', 'pub')]
    for aa in range(8): sl.stream(B0 + 8 * (72 + aa + 1) + 3, pub(aa))
    sl.spread(k0 + 73, B0 + 647, pql[4:] + recl)
    interleave(p, mains, sl.f)
    p.need(v(PQ(1, 4), 4))
    put(pub(8))
    stamp(8)
    e(f's_cmp_lg_u32 {s(sW)}, {s(sQK)}'); e(f's_cbranch_scc1 {name}_att')
    for u in range(18): p.raw(f'ds_write_b128 {v(vRD[2])}, {v(ACC2+4*u,4)} offset:{1024*u}')
    p.raw('s_waitcnt lgkmcnt(0)')
    p.label(f'{name}_att')
    vEp = TQ[1]
    for r in range(4): e(f'v_mov_b32 {v(vEp+r)}, {fhex(1e-6)}')
    ND = lambda tl, b, z: ACC2 + 16 * (tl % 3) + 8 * b + 4 * z
    OH = lambda tl, b: ACC2 + 48 + 4 * (tl % 2) + 2 * b
    vOW = ACC2 + 56
    e(f's_mul_i32 {s(sT0)}, {s(sW)}, 9'); e(f's_lshr_b32 {s(sT0)}, {s(sT0)}, 1'); e(f's_lshl_b32 {s(sT0)}, {s(sT0)}, 10'); e(f'v_add_u32 {v(vOW)}, {s(sT0)}, {v(vRD[1])}')
    e(f's_and_b32 {s(sT0)}, {s(sW)}, 1'); e(f's_cmp_eq_u32 {s(sT0)}, 1'); e(f's_cbranch_scc1 {name}_oodd')
    st1 = p.snapshot()
    for par in range(2):
        if par:
            p.label(f'{name}_oodd'); p.restore(st1)
        late = [wload(f) for f in range(36)]
        for step in range(11):
            m32, m16, va = [], [], []
            tl = step
            if tl < 9:
                gl = (tl + par) >> 1
                for b in range(2):
                    m32.append(f'v_mfma_f32_16x16x32_bf16 {v(ND(tl,b,0),4)}, {v(REC(tl,0),4)}, {v(PQ(b,gl),4)}, 0')
                    m32.append(f'v_mfma_f32_16x16x32_bf16 {v(ND(tl,b,1),4)}, {v(REC(tl,1),4)}, {v(PQ(b,gl),4)}, {v(vEp,4)}')
            tl = step - 1
            if 0 <= tl < 9:
                gl = (tl + par) >> 1; odd = (tl + par) & 1
                gs = gl + 1 if odd else gl - 1
                if not 0 <= gs <= 4: gs = gl
                for b in range(2):
                    half = v(PQ(b, gs) + (0 if odd else 2), 2)
                    m16.append(f'v_mfma_f32_16x16x16_bf16 {v(ND(tl,b,0),4)}, {v(REC(tl,2),2)}, {half}, {v(ND(tl,b,0),4)}')
                    m16.append(f'v_mfma_f32_16x16x16_bf16 {v(ND(tl,b,1),4)}, {v(REC(tl,2)+2,2)}, {half}, {v(ND(tl,b,1),4)}')
            tl = step - 2
            if 0 <= tl < 9:
                for b in range(2): va += [f'v_rcp_f32 {v(ND(tl,b,1)+r)}, {v(ND(tl,b,1)+r)}' for r in range(4)]
                for b in range(2):
                    va += [f'v_mul_f32 {v(ND(tl,b,0)+r)}, {v(ND(tl,b,0)+r)}, {v(ND(tl,b,1)+r)}' for r in range(4)]
                    va += [f'v_cvt_pk_bf16_f32 {v(OH(tl,b) + d)}, {v(ND(tl,b,0)+2*d)}, {v(ND(tl,b,0)+2*d+1)}' for d in range(2)]
                    va += [f'ds_write_b64 {v(vOW)}, {v(OH(tl,b),2)} offset:{b*18432 + ((tl+par)>>1)*1024 + ((tl+par)&1)*8}']
            mm = m32 + m16
            per = -(-len(va) // max(len(mm) - 1, 1))
            for i_, x in enumerate(mm):
                e(x)
                if late and len(p.vmq) < p.vm_limit and i_ % 2 == 0: put(late.pop(0))
                if i_ == 0 and len(mm) > 4: continue
                for y in va[:per]: e(y)
                va = va[per:]
            for y in va: e(y)
        while late: put(late.pop(0))
        if par == 0:
            stE = p.snapshot(); e(f's_branch {name}_odone')
        else: assert p.snapshot() == stE
    p.label(f'{name}_odone')
    stamp(9)
    tq = TQ[0]
    e(f'v_mov_b32 {v(tq)}, {s(sN)}'); e(f'v_mov_b32 {v(tq+1)}, {s(sN+1)}'); e(f'v_and_b32 {v(tq+2)}, 63, v0'); e(f'v_min_u32 {v(tq+2)}, 1, {v(tq+2)}'); e(f'v_lshlrev_b32 {v(tq+2)}, 30, {v(tq+2)}')
    p.wait_tag('pub')
    e(f'buffer_store_dwordx2 {v(tq,2)}, {v(tq+2)}, {s(SP_,4)}, {s(sFl)} offen sc1')
    p.wait_lg(0); e('s_barrier')
    OF = lambda b, g: big(18 * b + g)
    for g in range(18):
        for b in range(2): e(f'ds_read_b128 {v(OF(b,g),4)}, {v(vRD[1])} offset:{b*18432 + g*1024}')
    e(f'v_and_b32 {v(vCa)}, 3, v0'); e(f'v_cmp_eq_u32 vcc, {s(sQK)}, {v(vCa)}'); e(f'v_mov_b32 {v(vCn)}, {s(sSel)}')
    e(f's_lshl_b32 {s(sFl)}, s2, 7'); e(f's_add_u32 {s(sFl)}, {s(sFl)}, {FLAG_OFF}')
    e(f'v_cndmask_b32 {v(vCa)}, {v(vCa)}, {v(vCn)}, vcc'); e(f'v_lshlrev_b32 {v(vCa)}, 3, {v(vCa)}')
    e(f's_lshl_b32 {s(sT0)}, {s(sW)}, 10'); e(f's_mul_i32 {s(sT2)}, s2, {4*9216}'); e(f's_add_u32 {s(sT2)}, {s(sT2)}, {PART_OFF}')
    sPe = [sPq0, sPq1, sRec]
    for q in range(3):
        e(f's_add_u32 {s(sT1)}, {s(sQK)}, {q+1}'); e(f's_and_b32 {s(sT1)}, {s(sT1)}, 3'); e(f's_mul_i32 {s(sT1)}, {s(sT1)}, 9216'); e(f's_add_u32 {s(sPe[q])}, {s(sT1)}, {s(sT2)}')
    vPa0, vPa1, vOa = vEp, vEp + 1, vEp + 2
    e(f'v_add_u32 {v(vPa0)}, {s(sT0)}, {v(vL16)}'); e(f'v_add_u32 {v(vPa1)}, {s(sT0)}, {v(vLx[1])}'); e(f's_lshl_b32 {s(sT0)}, {s(sW)}, 11'); e(f'v_add_u32 {v(vOa)}, {s(sT0)}, {v(vRD[2])}')
    e(f's_mov_b32 {s(sHi)}, 0xffff0000')
    e(f's_cmp_eq_u32 {s(sW)}, {s(sSel)}'); e(f's_cbranch_scc1 {name}_three')
    st2 = p.snapshot()
    SS = lambda pc: ACC2 + 8 * pc
    DD = lambda pc: ACC2 + 24 + 8 * pc
    U = ACC2 + 48
    pollF = f'buffer_load_dwordx2 {v(vCd,2)}, {v(vCa)}, {s(SWS,4)}, {s(sFl)} offen sc1'
    for npc in (2, 3):
        if npc == 3:
            p.label(f'{name}_three'); p.restore(st2)
        late = [wload(f) for f in range(36, 54)] if npc == 3 else []
        def smm(pc, poll=False):
            for b in range(2):
                for g in range(18):
                    e(f'v_mfma_f32_16x16x32_bf16 {v(SS(pc)+4*b,4)}, {a(wreg(18*pc+g),4)}, {v(OF(b,g),4)}, {"0" if g == 0 else v(SS(pc)+4*b,4)}')
                    if poll and b == 0 and g == 8: e(pollF)
                    elif late and g % 2 == 0 and (not poll or b == 1 or g > 8): put(late.pop(0))
        smm(0, True)
        for pc in range(npc):
            for b in range(2):
                e(f'ds_read_b128 {v(DD(pc)+4*b,4)}, {v(vOa) if pc < 2 else v(vRD[2])} offset:{8192*pc + 1024*b}')
        check(f'{name}_cf{npc}', vCd, s(sN+1), pollF)()
        stamp(10)
        PE = lambda pc, q: AR + 8 + 4 * (3 * pc + q)
        for pc in range(npc):
            for q in range(3): e(f'buffer_load_dwordx4 {a(PE(pc,q),4)}, {v((vPa0, vPa1, vLx[2])[pc])}, {s(SWS,4)}, {s(sPe[q])} offen sc1')
        for pc in range(1, npc): smm(pc)
        stamp(11)
        X = ACC; G = ACC + 24; O = ACC + 40
        for pc in range(npc):
            for d in range(4):
                e(f'v_lshlrev_b32 {v(X+8*pc+2*d)}, 16, {v(vXD[pc]+d)}'); e(f'v_and_b32 {v(X+8*pc+2*d+1)}, {s(sHi)}, {v(vXD[pc]+d)}')
        for pc in range(npc):
            for q in range(3):
                for d in range(4): e(f'v_accvgpr_read_b32 {v(U+8*q+2*d+1)}, {a(PE(pc,q)+d)}')
                for d in range(4):
                    e(f'v_lshlrev_b32 {v(U+8*q+2*d)}, 16, {v(U+8*q+2*d+1)}'); e(f'v_and_b32 {v(U+8*q+2*d+1)}, {s(sHi)}, {v(U+8*q+2*d+1)}')
                for k in range(0, 8, 2): e(f'v_pk_add_f32 {v(DD(pc)+k,2)}, {v(DD(pc)+k,2)}, {v(U+8*q+k,2)}')
            for k in range(8): e(f'v_mul_f32 {v(G+k)}, {fhex(-LOG2E)}, {v(DD(pc)+k)}')
            for k in range(8): e(f'v_exp_f32 {v(G+k)}, {v(G+k)}')
            for k in range(0, 8, 2): e(f'v_pk_mul_f32 {v(DD(pc)+k,2)}, {v(DD(pc)+k,2)}, {v(SS(pc)+k,2)}')
            for k in range(8): e(f'v_add_f32 {v(G+k)}, 1.0, {v(G+k)}')
            for k in range(8): e(f'v_rcp_f32 {v(G+k)}, {v(G+k)}')
            for k in range(0, 8, 2): e(f'v_pk_mul_f32 {v(G+k,2)}, {v(G+k,2)}, {v(DD(pc)+k,2)}')
            for r in range(4): e(f'v_permlane16_swap_b32 {v(G+r)}, {v(G+4+r)}')
            for k in range(0, 8, 2): e(f'v_pk_add_f32 {v(G+k,2)}, {v(G+k,2)}, {v(X+8*pc+k,2)}')
            for d in range(4): e(f'v_cvt_pk_bf16_f32 {v(O+4*pc+d)}, {v(G+2*d)}, {v(G+2*d+1)}')
            e(f'buffer_store_dwordx4 {v(O+4*pc,4)}, {v(vXO2) if pc < 2 else v(vX8)}, {s(SO,4)}, 0 offen offset:{128*pc}')
        if stamps: p.wait_all()
        stamp(12)
        e(f's_branch {END}')
    for blk in slow:
        for x in blk: p.raw(x)
    p.label(END)
    return p, V.nxt, A.nxt, NXV
```

```python
import sys
from asmlib import *
from layout import *
import k1
NAME = 'recurrent_scan__linear_attn_block__glu_gated_bilinear__prompt'
def wrap(name, body, vgpr, accum, sgpr=102):
    return f""".text
.globl {name}
.p2align 8
.type {name},@function
{name}:
{body}
  s_endpgm
.section .rodata,"a"
.p2align 6
.amdhsa_kernel {name}
  .amdhsa_next_free_vgpr {vgpr}
  .amdhsa_next_free_sgpr {sgpr}
  .amdhsa_accum_offset {accum}
  .amdhsa_group_segment_fixed_size 0
  .amdhsa_kernarg_size 80
  .amdhsa_user_sgpr_count 2
  .amdhsa_user_sgpr_kernarg_segment_ptr 1
  .amdhsa_system_sgpr_workgroup_id_x 1
.end_amdhsa_kernel
"""
def build(stamps=False, with_k2=True, opt=()):
    p1, nv, na, nxv = k1.gen_k1('p1_kernel', stamps, opt)
    print('k1', p1.count(), 'vgpr', nv, 'agpr', na, 'x frags in vgpr', nxv, 'nops', sum(1 for i in p1.ins if i.mn == 's_nop'), file=sys.stderr)
    hdr = '; @launch kernel=p1_kernel grid=(256,1,1) block=(256,1,1) lds=163840\n'
    body = wrap('p1_kernel', p1.text(), 512, 256)
    if with_k2:
        import k2
        p2, nv, na = k2.gen_k2('p2_kernel', stamps, opt)
        print('k2', p2.count(), 'vgpr', nv, 'agpr', na, 'nops', sum(1 for i in p2.ins if i.mn == 's_nop'), file=sys.stderr)
        hdr += '; @launch kernel=p2_kernel grid=(256,1,1) block=(256,1,1) lds=163840\n'
        body += wrap('p2_kernel', p2.text(), 512, 256)
    body += '.text\ncode_end:\n'
    ref = open('cdna_kernels/' + NAME + '.s.ref').read().split('\n')
    top = ''.join(l + '\n' for l in ref[:11])
    return top + hdr + '.amdgcn_target "amdgcn-amd-amdhsa--gfx950"\n' + body
def build_m(stamps=False, opt=()):
    import m
    kn = NAME + '_kernel'
    p, nv, na, nxv = m.gen(kn, stamps, opt)
    print('m', p.count(), 'vgpr', nv, 'agpr', na, 'nops', sum(1 for i in p.ins if i.mn == 's_nop'), file=sys.stderr)
    ref = open('cdna_kernels/' + NAME + '.s.ref').read().split('\n')
    top = ''.join(l + '\n' for l in ref[:11])
    return top + '; @launch grid=(256,1,1) block=(256,1,1) lds=163840\n.amdgcn_target "amdgcn-amd-amdhsa--gfx950"\n' + wrap(kn, p.text(), 512, 256) + '.text\ncode_end:\n'
if __name__ == '__main__' and 'merged' in sys.argv:
    open(sys.argv[1], 'w').write(build_m('stamps' in sys.argv, sys.argv[2:]))
elif __name__ == '__main__':
    out = sys.argv[1]; st = 'stamps' in sys.argv; k2 = 'nok2' not in sys.argv
    open(out, 'w').write(build(st, k2, sys.argv[2:]))
```

```python
from asmlib import *
from layout2 import *

LOG2E = 1.4426950408889634
def fhex(x):
    import struct
    return '0x%08x' % struct.unpack('<I', struct.pack('<f', x))[0]

SP0 = 147456
STX = 98304
CH = 64 * 9216

SLOT = 36864
SPIN = 20000
SALT = 0x5bd1e990

def gen(name, stamps=False, opt=()):
    p = Prog(); cap = [None]
    def e(text, tag=None, junk=False):
        if cap[0] is not None: cap[0].append((text, tag, junk))
        else: p.e(text, tag, junk)
    V = Alloc('v', 1, 256); A = Alloc('a', 0, 256); SG = Alloc('s', 56, 100)
    SX, SQ, SGt, SU, SWS, SH, SJS, SJD = 4, 8, 12, 16, 20, 24, 28, 32
    KA = 36
    sW, sI, sJ, sT, sQF, sM = (SG.get(n) for n in ('w', 'i', 'j', 't', 'qf', 'm'))
    sWo, sCnt, sM0w, sJob, sJo, sT0, sT1, sT2 = (SG.get(n) for n in ('wo', 'cnt', 'm0w', 'job', 'jo', 't0', 't1', 't2'))
    sH = SG.get('h', 4, 1); sKV = SG.get('kv', 6, 1); sSP = SG.get('sp'); sLine = SG.get('line'); sKm = SG.get('km'); sTo = SG.get('to')
    mk = [SG.get(f'mk{k}', 2) for k in range(4)]
    sSt = SG.get('st', 2); sStO = SG.get('sto'); sOnes = SG.get('ones')
    JP = [36, 37, 38, 39, 42, 43, 44, 45, 46, 47, 50, 51]
    sXp, sN, sDbg, sOp = 40, 48, 52, 54
    sInc, sIncL, sPg, sPc, sCr, sSpin = mk[0], mk[0] + 1, mk[1], mk[1] + 1, mk[2], mk[2] + 1
    sEps = mk[3]
    vJS = V.get('js'); vJT = V.get('jt'); vTg = V.get('tg')
    ACC = V.get('acc', 64); PR = V.get('prod', 32)
    vTR = V.get('tr', 6, 1); vDM = V.get('dm', 2, 1); vL16 = V.get('l16'); vJS2 = V.get('spare'); vRS = V.get('rs', 4, 2); vRS2 = V.get('rs2', 4, 2)
    vTj = V.get('tj'); vS0 = V.get('s0'); vT = V.get('tmp', 8, 4); vS1 = vT + 7
    NXV = (256 - V.nxt) // 4
    XV = V.get('xv', 4 * NXV)
    WF = A.get('wf', 24); XA = A.get('xa', 4 * (72 - NXV)); JD = A.get('jd', 64)
    fidx = lambda b, ks: 2 * ks + b if b < 2 else 36 + 2 * ks + b - 2
    def xf(b, ks):
        f = fidx(b, ks)
        return v(XV + 4 * f, 4) if f < NXV else a(XA + 4 * (f - NXV), 4)
    def xf_isv(b, ks): return fidx(b, ks) < NXV
    nstamp = [0]
    def stamp(k=None):
        if not stamps: return
        if k is None:
            k = nstamp[0]; nstamp[0] += 1
        p.wait_lg(0)
        if k == 0:
            for n_, r_ in enumerate((101, 101, 3)):
                e(f'v_mov_b32 {v(vS0)}, {s(r_)}'); e(f'v_mov_b32 {v(vS1)}, {4*(29+n_)}'); e(f'buffer_store_dword {v(vS0)}, {v(vS1)}, {s(SWS,4)}, {s(sStO)} offen')
            e(f'v_mov_b32 {v(vS0)}, s100'); e(f'v_mov_b32 {v(vS1)}, 0'); e(f'buffer_store_dword {v(vS0)}, {v(vS1)}, {s(SWS,4)}, {s(sStO)} offen offset:60')
        e(f's_memrealtime {s(sSt,2)}'); p.wait_lg(0)
        e(f'v_mov_b32 {v(vS0)}, {s(sSt)}'); e(f'v_mov_b32 {v(vS1)}, {4*k}')
        e(f'buffer_store_dword {v(vS0)}, {v(vS1)}, {s(SWS,4)}, {s(sStO)} offen')
        e(f's_memtime {s(sSt,2)}'); p.wait_lg(0)
        e(f'v_mov_b32 {v(vS0)}, {s(sSt)}')
        e(f'buffer_store_dword {v(vS0)}, {v(vS1)}, {s(SWS,4)}, {s(sStO)} offen offset:128')

    END = f'{name}_end'
    if stamps: p.raw('s_memrealtime s[100:101]')
    e('s_cmp_ge_u32 s2, 256'); e(f's_cbranch_scc1 {END}')
    e(f's_load_dwordx8 {s(KA,8)}, s[0:1], 0'); e(f's_load_dwordx8 {s(KA+8,8)}, s[0:1], 32'); e(f's_load_dwordx4 {s(KA+16,4)}, s[0:1], 64')
    T = [ACC + 32 + k for k in range(32)] + [PR + k for k in range(32)]
    vLane, vL3, vL4, vC7, vN, vI2, vB = T[0:7]
    vXO = T[8:12]; vXR = T[12:16]
    e(f'v_lshrrev_b32 {v(vB)}, 6, v0'); e(f'v_and_b32 {v(vLane)}, 63, v0')
    e(f'v_readfirstlane_b32 {s(sW)}, {v(vB)}')
    if 'nocode' not in opt:
        p.raw(f's_getpc_b64 {s(sSt,2)}'); p.label(f'{name}_pc')
        e(f's_lshr_b32 {s(sT1)}, s2, 3'); e(f's_lshl_b32 {s(sT1)}, {s(sT1)}, 2'); e(f'v_add_u32 {v(vB)}, {s(sT1)}, {v(vB)}'); e(f'v_mul_u32_u24 {v(vB)}, 5, {v(vB)}')
        e(f'v_min_u32 {v(vI2)}, 4, {v(vLane)}'); e(f'v_add_u32 {v(vB)}, {v(vB)}, {v(vI2)}'); e(f'v_lshlrev_b32 {v(vB)}, 7, {v(vB)}')
        e(f'v_min_u32 {v(vB)}, code_end - {name}_pc - 4, {v(vB)}')
        e(f'global_load_dword {v(vJS2)}, {v(vB)}, {s(sSt,2)}', junk=True)
    e(f'v_lshrrev_b32 {v(vL3)}, 3, {v(vLane)}'); e(f'v_lshrrev_b32 {v(vL4)}, 4, {v(vLane)}'); e(f'v_and_b32 {v(vC7)}, 7, {v(vLane)}')
    e(f'v_and_b32 {v(vN)}, 15, {v(vLane)}'); e(f'v_lshlrev_b32 {v(vL16)}, 4, {v(vLane)}')
    e(f's_and_b32 {s(sQF)}, s2, 3'); e(f's_bfe_u32 {s(sT0)}, s2, 0x10002'); e(f's_lshr_b32 {s(sT1)}, s2, 5')
    e(f's_lshl_b32 {s(sT0)}, {s(sT0)}, 3'); e(f's_add_u32 {s(sT)}, {s(sT0)}, {s(sT1)}'); e(f's_bfe_u32 {s(sM)}, s2, 0x20003')
    e(f's_lshr_b32 {s(sI)}, {s(sW)}, 1'); e(f's_and_b32 {s(sJ)}, {s(sW)}, 1')
    e(f's_lshl_b32 {s(sM0w)}, {s(sW)}, 12'); e(f's_add_u32 {s(sSP)}, {s(sM0w)}, {SP0}')
    e(f's_lshl_b32 {s(sT0)}, {s(sW)}, 5'); e(f'v_add_u32 {v(vB)}, {s(sT0)}, {v(vL3)}'); e(f'v_mul_u32_u24 {v(vB)}, 1152, {v(vB)}')
    for q in range(4):
        e(f'v_or_b32 {v(vI2)}, {4*(q&1)}, {v(vL4)}'); e(f'v_xor_b32 {v(vI2)}, {v(vI2)}, {v(vC7)}')
        e(f'v_lshl_add_u32 {v(vXO[q])}, {v(vI2)}, 4, {v(vB)}')
        if q: e(f'v_add_u32 {v(vXO[q])}, {8192*q}, {v(vXO[q])}')
    e(f's_mul_i32 s3, {s(sT)}, {128*1152}')
    e(f's_lshl_b32 {s(sT0)}, {s(sQF)}, 4'); e(f's_lshl_b32 {s(sT1)}, {s(sM)}, 2'); e(f's_add_u32 {s(sT0)}, {s(sT0)}, {s(sT1)}'); e(f's_add_u32 {s(sT0)}, {s(sT0)}, {s(sW)}')
    e(f's_mul_i32 {s(sT0)}, {s(sT0)}, 18'); e(f'v_min_u32 {v(vB)}, 17, {v(vLane)}'); e(f'v_add_u32 {v(vB)}, {s(sT0)}, {v(vB)}'); e(f'v_lshlrev_b32 {v(vB)}, 7, {v(vB)}')
    if stamps: p.raw(f's_memrealtime {s(sSt,2)}')
    p.wait_lg(0)
    if stamps: p.raw(f's_mov_b32 s101, {s(sSt)}')
    def srd(r, ptr, nbytes, back=0):
        if back:
            e(f's_sub_u32 {s(r)}, {s(ptr)}, {back}'); e(f's_subb_u32 {s(r+1)}, {s(ptr+1)}, 0')
        else:
            e(f's_mov_b32 {s(r)}, {s(ptr)}'); e(f's_mov_b32 {s(r+1)}, {s(ptr+1)}')
        e(f's_mov_b32 {s(r+2)}, {nbytes + back}'); e(f's_mov_b32 {s(r+3)}, 0x20000')
    slow = []
    e('s_cmp_eq_u32 s2, 0'); e(f's_cbranch_scc1 {name}_nw'); p.label(f'{name}_nn')
    slow.append([f'{name}_nw:', f's_memrealtime {s(sSt,2)}', 's_waitcnt lgkmcnt(0)', f's_lshl_b32 {s(sT1)}, {s(sSt+1)}, 4', f's_xor_b32 {s(sT1)}, {s(sT1)}, {SALT}', f's_or_b32 {s(sT2)}, {s(sSt)}, 1',
                 f'v_mov_b32 {v(vT)}, {s(sT2)}', f'v_mov_b32 {v(vT+1)}, {s(sT1)}', f'v_mov_b32 {v(vT+2)}, 0', f's_cmp_lg_u32 {s(sW)}, 0', f's_cbranch_scc1 {name}_nn',
                 f'global_store_dwordx2 {v(vT+2)}, {v(vT,2)}, {s(sDbg,2)} sc1', f's_branch {name}_nn'])
    srd(SX, KA + 0, S * D * 2)
    if 'noxt' not in opt: e(f'buffer_load_dword {v(vJS2)}, {v(vB)}, {s(SX,4)}, s3 offen', junk=True)
    SETA = []; cap[0] = SETA
    srd(SQ, KA + 2, D * 3 * D * 2, back=4096); srd(SGt, KA + 8, D * F * 2); srd(SU, KA + 10, D * F * 2, back=2048)
    srd(SWS, KA + 18, WS_USED); srd(SH, KA + 18, 0); srd(SJS, KA + 12, 0); srd(SJD, KA + 18, REC_OFF)
    if stamps:
        e(f's_lshl_b32 {s(sStO)}, s2, 2'); e(f's_add_u32 {s(sStO)}, {s(sStO)}, {s(sW)}'); e(f's_lshl_b32 {s(sStO)}, {s(sStO)}, 8'); e(f's_add_u32 {s(sStO)}, {s(sStO)}, {STAMP_OFF}')
    vQ = vL4
    e(f'v_lshrrev_b32 {v(vI2)}, 1, {v(vN)}'); e(f'v_xor_b32 {v(vI2)}, {v(vI2)}, {v(vQ)}'); e(f'v_lshlrev_b32 {v(vI2)}, 4, {v(vI2)}')
    e(f'v_lshl_add_u32 {v(vI2)}, {v(vN)}, 7, {v(vI2)}')
    e(f'v_add_u32 {v(vXR[0])}, {s(sM0w)}, {v(vI2)}'); e(f'v_xor_b32 {v(vXR[1])}, 64, {v(vXR[0])}')
    vONE = T[24]
    e(f's_mov_b32 {s(sOnes)}, 0x3f803f80')
    for k in range(4): e(f'v_mov_b32 {v(vONE+k)}, {s(sOnes)}')
    EX = 114688
    e(f's_add_u32 {s(sT0)}, {s(sM0w)}, {EX}'); e(f'v_add_u32 {v(vXR[2])}, {s(sT0)}, {v(vL16)}'); e(f'v_xor_b32 {v(vXR[3])}, 4096, {v(vXR[2])}')
    def wdma_off(dst, stride, rows_per_wave, pp, bit3):
        e(f's_mul_i32 {s(sT0)}, {s(sW)}, {rows_per_wave}'); e(f's_add_u32 {s(sT0)}, {s(sT0)}, {8*pp}')
        e(f'v_add_u32 {v(vB)}, {s(sT0)}, {v(vL3)}'); e(f'v_mul_u32_u24 {v(vB)}, {stride}, {v(vB)}')
        e(f'v_and_b32 {v(vI2)}, 1, {v(vL4)}'); e(f'v_lshlrev_b32 {v(vI2)}, 1, {v(vI2)}')
        if bit3 == 'w':
            e(f's_lshl_b32 {s(sT0)}, {s(sJ)}, 2'); e(f'v_or_b32 {v(vI2)}, {s(sT0)}, {v(vI2)}')
        elif bit3: e(f'v_or_b32 {v(vI2)}, 4, {v(vI2)}')
        e(f'v_xor_b32 {v(vI2)}, {v(vI2)}, {v(vC7)}'); e(f'v_lshl_add_u32 {v(dst)}, {v(vI2)}, 4, {v(vB)}')
        if pp: e(f'v_subrev_u32 {v(dst)}, {1024*pp}, {v(dst)}')
    wdma_off(vDM, 9216, 16, 0, 0); wdma_off(vDM + 1, 9216, 16, 1, 1)
    vQD = T[16:18]; vKD = T[18]
    wdma_off(vQD[0], 3456, 16, 0, 0); wdma_off(vQD[1], 3456, 16, 1, 1); wdma_off(vKD, 3456, 8, 0, 'w')
    vTL, vU = T[19], T[20]
    e(f'v_lshrrev_b32 {v(vI2)}, 3, {v(vN)}'); e(f'v_and_b32 {v(vU)}, 1, {v(vQ)}'); e(f'v_lshl_or_b32 {v(vI2)}, {v(vU)}, 1, {v(vI2)}')
    e(f'v_lshlrev_b32 {v(vI2)}, 5, {v(vI2)}')
    e(f'v_and_b32 {v(vU)}, 3, {v(vN)}'); e(f'v_lshl_or_b32 {v(vI2)}, {v(vU)}, 3, {v(vI2)}')
    e(f'v_lshrrev_b32 {v(vU)}, 2, {v(vN)}'); e(f'v_lshl_or_b32 {v(vTL)}, {v(vU)}, 7, {v(vI2)}')
    e(f'v_lshrrev_b32 {v(vU)}, 1, {v(vQ)}'); e(f'v_lshlrev_b32 {v(vU)}, 12, {v(vU)}')
    e(f'v_and_b32 {v(vI2)}, 1, {v(vQ)}'); e(f'v_lshl_or_b32 {v(vU)}, {v(vI2)}, 10, {v(vU)}'); e(f'v_or_b32 {v(vU)}, {v(vU)}, {v(vTL)}')
    e(f's_lshl_b32 {s(sT0)}, {s(sJ)}, 6'); e(f'v_xor_b32 {v(vTR)}, {s(sT0)}, {v(vU)}'); e(f'v_xor_b32 {v(vTR+1)}, 32, {v(vTR)}')
    for r in (1, 2):
        for tt in range(2): e(f'v_add_u32 {v(vTR+2*r+tt)}, {65536*r}, {v(vTR+tt)}')
    e(f'v_lshlrev_b32 {v(vI2)}, 1, {v(vL4)}'); e(f'v_xor_b32 {v(vI2)}, {v(vI2)}, {v(vC7)}'); e(f'v_lshlrev_b32 {v(vI2)}, 4, {v(vI2)}')
    e(f'v_mul_u32_u24 {v(vU)}, 1152, {v(vL3)}'); e(f'v_add_u32 {v(vJS)}, {v(vU)}, {v(vI2)}')
    e(f'v_lshlrev_b32 {v(vU)}, 9, {v(vQ)}'); e(f'v_add_u32 {v(vU)}, {s(sSP)}, {v(vU)}'); e(f'v_add_u32 {v(vJT)}, {v(vU)}, {v(vTL)}')
    vONE = T[24]; vSEL = T[28]; vF1 = T[34]
    assert vONE % 4 == 0 and vSEL % 4 == 0
    e(f'v_mov_b32 {v(vF1)}, 1.0')
    e(f'v_lshrrev_b32 {v(vU)}, 2, {v(vN)}'); e(f'v_cmp_eq_u32 {s(mk[0],2)}, {v(vU)}, {v(vQ)}')
    e(f'v_and_b32 {v(vU)}, 3, {v(vN)}')
    for k in (1, 2, 3): e(f'v_cmp_eq_u32 {s(mk[k],2)}, {k}, {v(vU)}')
    e(f'v_and_b32 {v(vI2)}, 1, {v(vN)}'); e(f'v_lshlrev_b32 {v(vI2)}, 4, {v(vI2)}'); e(f'v_mov_b32 {v(vB)}, 0x3f80'); e(f'v_lshlrev_b32 {v(vB)}, {v(vI2)}, {v(vB)}')
    e(f'v_cndmask_b32 {v(vB)}, 0, {v(vB)}, {s(mk[0],2)}')
    e(f'v_cmp_gt_u32 vcc, 2, {v(vU)}')
    for k in (0, 1, 4, 5): e(f'v_mov_b32 {v(vSEL+k)}, 0')
    e(f'v_cndmask_b32 {v(vSEL+2)}, 0, {v(vB)}, vcc'); e(f'v_cndmask_b32 {v(vSEL+3)}, {v(vB)}, 0, vcc')
    def ffn_dma(slot, tag=None):
        return [f's_add_u32 m0, {s(sM0w)}, {slot*16384}', None,
                (f'buffer_load_dwordx4 {v(vDM)}, {s(SGt,4)}, {s(sWo)} offen lds', tag or f'slot{slot}'),
                (f'buffer_load_dwordx4 {v(vDM+1)}, {s(SGt,4)}, {s(sWo)} offen offset:1024 lds', tag or f'slot{slot}'),
                (f'buffer_load_dwordx4 {v(vDM)}, {s(SU,4)}, {s(sWo)} offen offset:2048 lds', tag or f'slot{slot}'),
                (f'buffer_load_dwordx4 {v(vDM+1)}, {s(SU,4)}, {s(sWo)} offen offset:3072 lds', tag or f'slot{slot}'),
                f's_add_u32 {s(sWo)}, {s(sWo)}, {CH}']
    def put(lst):
        for x in lst:
            if x is None: continue
            if callable(x): x()
            elif isinstance(x, tuple): e(x[0], x[1])
            else: e(x)
    def kv_dma(ks, vk):
        slot = ks % 6; out = []
        for st in range(6):
            if st % 4 == 0: out.append(f's_add_u32 m0, {s(sKm)}, {slot*24576 + (st//4)*4096}')
            out.append((f'buffer_load_dwordx4 {v(vk)}, {s(SQ,4)}, {s(sKV+st)} offen offset:{1024*(st%4)} lds', f'kv{ks}'))
            out.append(f's_add_u32 {s(sKV+st)}, {s(sKV+st)}, {32*3456}')
        return out
    e(f's_mul_i32 {s(sT0)}, {s(sM)}, 5'); e(f's_sub_u32 {s(sT0)}, {s(sT0)}, 2'); e(f's_max_i32 {s(sT0)}, {s(sT0)}, 0')
    e(f's_mul_i32 {s(sT1)}, {s(sQF)}, 18'); e(f's_add_u32 {s(sT0)}, {s(sT0)}, {s(sT1)}')
    e(f's_lshl_b32 {s(sWo)}, {s(sT0)}, 7')
    e(f's_sub_u32 {s(sT0)}, {s(sM)}, 4'); e(f's_cmp_eq_u32 {s(sM)}, 0'); e(f's_cselect_b32 {s(sT0)}, 11, {s(sT0)}')
    e(f's_add_u32 {s(sT0)}, {s(sT0)}, {s(sT1)}'); e(f's_lshl_b32 {s(sT0)}, {s(sT0)}, 1'); e(f's_add_u32 {s(sT0)}, {s(sT0)}, {s(sJ)}')
    e(f's_lshl_b32 {s(sT1)}, {s(sT)}, 3'); e(f's_lshl_b32 {s(sT2)}, {s(sI)}, 2'); e(f's_add_u32 {s(sT1)}, {s(sT1)}, {s(sT2)}')
    e(f's_lshl_b32 {s(sT2)}, {s(sJ)}, 1')
    sTB = [SG.get(f'tb{b}') for b in range(4)]
    for b in range(4):
        e(f's_xor_b32 {s(sTB[b])}, {s(sT2)}, {b}'); e(f's_add_u32 {s(sTB[b])}, {s(sTB[b])}, {s(sT1)}')
        e(f's_mul_i32 {s(sH+b)}, {s(sTB[b])}, 144'); e(f's_add_u32 {s(sH+b)}, {s(sH+b)}, {s(sT0)}'); e(f's_lshl_b32 {s(sH+b)}, {s(sH+b)}, 10')
    e(f's_cmp_eq_u32 {s(sM)}, 0'); e(f's_cselect_b32 {s(sCnt)}, 2, 4')
    e(f's_lshr_b32 {s(sT0)}, s2, 5'); e(f's_and_b32 {s(sT1)}, s2, 7'); e(f's_lshl_b32 {s(sT0)}, {s(sT0)}, 3'); e(f's_add_u32 {s(sT0)}, {s(sT0)}, {s(sT1)}')
    e(f's_mul_i32 {s(sT0)}, {s(sT0)}, 3'); e(f's_add_u32 {s(sT0)}, {s(sT0)}, {s(sM)}'); e(f's_sub_u32 {s(sT0)}, {s(sT0)}, 1')
    e(f's_lshl_b32 {s(sT0)}, {s(sT0)}, 2'); e(f's_add_u32 {s(sJob)}, {s(sT0)}, {s(sW)}')
    e(f's_cmp_eq_u32 {s(sM)}, 0'); e(f's_cselect_b32 {s(sJob)}, 4096, {s(sJob)}')
    e(f's_mov_b32 {s(sOp)}, {s(KA+14)}'); e(f's_mov_b32 {s(sOp+1)}, {s(KA+15)}')
    e(f's_mul_i32 {s(sLine)}, {s(sQF)}, 3'); e(f's_add_u32 {s(sLine)}, {s(sLine)}, {s(sM)}'); e(f's_sub_u32 {s(sLine)}, {s(sLine)}, 1')
    for n in range(2):
        jb = JP[6 * n: 6 * n + 6]
        e(f's_mov_b32 {s(jb[2])}, {F*D*2}')
        e(f's_cmp_lt_u32 {s(sJob)}, {NJOB_WD}')
        e(f's_cselect_b32 {s(jb[0])}, {s(KA+12)}, {s(KA+4)}'); e(f's_cselect_b32 {s(jb[1])}, {s(KA+13)}, {s(KA+5)}')
        e(f's_cselect_b32 {s(jb[2])}, {s(jb[2])}, {D*D*2}'); e(f's_cselect_b32 {s(sT0)}, 0, {NJOB_WD}')
        e(f's_sub_u32 {s(sT0)}, {s(sJob)}, {s(sT0)}'); e(f's_mul_i32 {s(sT1)}, {s(sT0)}, 7282'); e(f's_lshr_b32 {s(sT1)}, {s(sT1)}, 16')
        e(f's_mul_i32 {s(jb[3])}, {s(sT1)}, {32*1152 - 9*128}'); e(f's_lshl_b32 {s(sT2)}, {s(sT0)}, 7'); e(f's_add_u32 {s(jb[3])}, {s(jb[3])}, {s(sT2)}')
        e(f's_mul_i32 {s(sT2)}, {s(sT1)}, 9'); e(f's_sub_u32 {s(sT0)}, {s(sT0)}, {s(sT2)}'); e(f's_lshl_b32 {s(sT0)}, {s(sT0)}, 2')
        e(f's_mul_i32 {s(sJo)}, {s(sT0)}, 7282'); e(f's_lshr_b32 {s(sJo)}, {s(sJo)}, 16')
        e(f's_mul_i32 {s(sT2)}, {s(sJo)}, 9'); e(f's_sub_u32 {s(sT0)}, {s(sT0)}, {s(sT2)}')
        e(f's_sub_u32 {s(jb[5])}, 9, {s(sT0)}')
        e(f's_mul_i32 {s(sJo)}, {s(sJo)}, {144*9}'); e(f's_add_u32 {s(sJo)}, {s(sJo)}, {s(sT0)}')
        e(f's_mul_i32 {s(sT0)}, {s(sT1)}, 1821'); e(f's_lshr_b32 {s(sT0)}, {s(sT0)}, 16'); e(f's_mul_i32 {s(sT0)}, {s(sT0)}, 36')
        e(f's_sub_u32 {s(sT1)}, {s(sT1)}, {s(sT0)}'); e(f's_and_b32 {s(sT2)}, {s(sT1)}, 1'); e(f's_add_u32 {s(sT0)}, {s(sT0)}, {s(sT2)}'); e(f's_lshr_b32 {s(sT1)}, {s(sT1)}, 1')
        e(f's_mul_i32 {s(sT2)}, {s(sT1)}, 5')
        lo = sum(pos_of_double(d) << (5 * d) for d in range(6)); mi = sum(pos_of_double(6 + d) << (5 * d) for d in range(6)); hi = sum(pos_of_double(12 + d) << (5 * d) for d in range(6))
        e(f's_mov_b32 {s(jb[4])}, {lo}'); e(f's_cmp_ge_u32 {s(sT1)}, 6'); e(f's_cselect_b32 {s(jb[4])}, {mi}, {s(jb[4])}'); e(f's_cselect_b32 {s(sKm)}, 30, 0')
        e(f's_cmp_ge_u32 {s(sT1)}, 12'); e(f's_cselect_b32 {s(jb[4])}, {hi}, {s(jb[4])}'); e(f's_cselect_b32 {s(sKm)}, 60, {s(sKm)}')
        e(f's_sub_u32 {s(sT2)}, {s(sT2)}, {s(sKm)}'); e(f's_lshr_b32 {s(jb[4])}, {s(jb[4])}, {s(sT2)}'); e(f's_and_b32 {s(jb[4])}, {s(jb[4])}, 31')
        e(f's_lshl_b32 {s(jb[4])}, {s(jb[4])}, 1'); e(f's_add_u32 {s(sT0)}, {s(sT0)}, {s(jb[4])}'); e(f's_mul_i32 {s(sT0)}, {s(sT0)}, 9'); e(f's_add_u32 {s(sT0)}, {s(sT0)}, {s(sJo)}')
        e(f's_lshl_b32 {s(sT0)}, {s(sT0)}, 10'); e(f's_lshl_b32 {s(sT1)}, {s(sJob)}, 12')
        e(f's_cmp_lt_u32 {s(sJob)}, {NJOB_WD}'); e(f's_cselect_b32 {s(sT0)}, {s(sT0)}, {s(sT1)}'); e(f's_cselect_b32 {s(jb[5])}, {s(jb[5])}, 9')
        e(f's_add_u32 {s(jb[4])}, {s(sT0)}, {WT_OFF}'); e(f's_add_u32 {s(jb[5])}, {s(jb[5])}, {REC_OFF}')
        e(f's_cmp_lt_u32 {s(sJob)}, {NJOB}'); e(f's_cselect_b32 {s(jb[2])}, {s(jb[2])}, 0'); e(f's_cselect_b32 {s(jb[5])}, {s(jb[5])}, 0')
        if n == 0: e(f's_add_u32 {s(sJob)}, {s(sJob)}, 768')
    e(f's_mov_b32 {s(sXp)}, {s(SX)}'); e(f's_mov_b32 {s(sXp+1)}, {s(SX+1)}')
    QB = 40960
    sQo = sKV
    e(f's_lshl_b32 {s(sT0)}, {s(sQF)}, 8')
    for st in range(6):
        e(f's_add_u32 {s(sKV+st)}, {s(sT0)}, {4096 + 1152*(1 + st//3) + 128*(st%3) - 1024*(st%4)}')
    e(f's_mul_i32 {s(sKm)}, {s(sW)}, 6144')
    e(f's_lshl_b32 {s(sT0)}, {s(sLine)}, 7'); e(f's_add_u32 {s(sT0)}, {s(sT0)}, 4096'); e(f's_lshr_b32 {s(sT1)}, {s(sM0w)}, 1')
    e(f's_cmp_eq_u32 {s(sM)}, 0'); e(f's_cselect_b32 {s(sKV)}, {s(sKV)}, {s(sT0)}'); e(f's_cselect_b32 {s(sKm)}, {s(sKm)}, {s(sT1)}')
    SETB = []; cap[0] = SETB
    vTq = T[21]
    e(f's_cmp_lt_u32 {s(sW)}, 2'); e(f's_cselect_b32 {s(SX)}, {s(SGt)}, {s(SU)}'); e(f's_cselect_b32 {s(SX+1)}, {s(SGt+1)}, {s(SU+1)}')
    e(f's_cselect_b32 {s(sT0)}, 0, 2048'); e(f's_add_u32 {s(SX+2)}, {s(sT0)}, {D*F*2}')
    e(f's_add_u32 {s(sTo)}, {s(sWo)}, {s(sT0)}')
    e(f's_mul_i32 {s(sT0)}, {s(sT)}, 36'); e(f's_mul_i32 {s(sT1)}, {s(sJ)}, 18'); e(f's_add_u32 {s(sT1)}, {s(sT1)}, {s(sT0)}')
    e(f'v_add_u32 {v(vU)}, {s(sT1)}, {v(vLane)}'); e(f'v_mul_u32_u24 {v(vU)}, 9216, {v(vU)}'); e(f'v_mov_b32 {v(vI2)}, 0x40000000')
    e(f'v_cmp_gt_u32 vcc, 18, {v(vLane)}'); e(f'v_cndmask_b32 {v(vTg)}, {v(vI2)}, {v(vU)}, vcc')
    e(f'v_mul_u32_u24 {v(vU)}, 57, {v(vLane)}'); e(f'v_lshrrev_b32 {v(vU)}, 9, {v(vU)}')
    e(f'v_mul_u32_u24 {v(vB)}, 9, {v(vU)}'); e(f'v_sub_u32 {v(vB)}, {v(vLane)}, {v(vB)}')
    e(f's_mul_i32 {s(sT1)}, {s(sW)}, 9'); e(f's_add_u32 {s(sT1)}, {s(sT1)}, {s(sT0)}'); e(f'v_add_u32 {v(vB)}, {s(sT1)}, {v(vB)}'); e(f'v_mul_u32_u24 {v(vB)}, 3456, {v(vB)}')
    e(f'v_lshl_add_u32 {v(vB)}, {v(vU)}, 7, {v(vB)}'); e(f'v_cmp_lt_u32 vcc, 2, {v(vU)}'); e(f'v_add_u32 {v(vTq)}, {1152 - 384}, {v(vB)}'); e(f'v_cndmask_b32 {v(vB)}, {v(vB)}, {v(vTq)}, vcc')
    e(f's_cmp_lt_u32 {s(sLine)}, 9'); e(f's_cselect_b32 {s(sT1)}, 1, 0'); e(f's_cmp_eq_u32 {s(sM)}, 0'); e(f's_cselect_b32 {s(sT1)}, 6, {s(sT1)}')
    e(f'v_cmp_gt_u32 vcc, {s(sT1)}, {v(vU)}'); e(f'v_cndmask_b32 {v(vTq)}, {v(vI2)}, {v(vB)}, vcc')
    junk = lambda t: (lambda: e(t, junk=True))
    def gtouch(): return [junk(f'buffer_load_dword {v(vJS2)}, {v(vTg)}, {s(SX,4)}, {s(sTo)} offen'), f's_add_u32 {s(sTo)}, {s(sTo)}, 128']
    e(f'v_mul_u32_u24 {v(vU)}, 1152, {v(vLane)}'); e(f'v_cmp_gt_u32 vcc, 32, {v(vLane)}'); e(f'v_cndmask_b32 {v(vTj)}, {v(vI2)}, {v(vU)}, vcc')
    def jtouch(): return [f's_mov_b32 {s(SJS+q)}, {s(JP[q])}' for q in range(3)] + ([] if 'nojt' in opt else [junk(f'buffer_load_dword {v(vJS2)}, {v(vTj)}, {s(SJS,4)}, {s(JP[3])} offen')])
    touches = gtouch() + jtouch()
    if 'notouch' in opt: touches = jtouch()[:3]
    else: put([junk(f'buffer_load_dword {v(vJS2)}, {v(vTq)}, {s(SQ,4)}, {s(sKV)} offen')] + gtouch())
    SUM = lambda b: ACC + 4 * b
    SQ_ = lambda b: ACC + 8 + 4 * b
    pend = []
    def stats(b, ks):
        c0 = '0' if ks == 0 else v(SUM(b), 4); c1 = '0' if ks == 0 else v(SQ_(b), 4)
        e(f'v_mfma_f32_16x16x32_bf16 {v(SUM(b),4)}, {v(vONE,4)}, {xf(b,ks)}, {c0}')
        e(f'v_mfma_f32_16x16x32_bf16 {v(SQ_(b),4)}, {xf(b,ks)}, {xf(b,ks)}, {c1}')
    cap[0] = None
    def scc_safe(L):
        for t, _, _ in L:
            mn = t.split()[0]
            if mn.startswith(('s_cselect', 's_addc', 's_subb')): return False
            if mn.startswith('s_') and not mn.startswith(('s_mov', 's_mul')): return True
        return True
    def some(L, n):
        while L and (n > 0 or not scc_safe(L)):
            e(*L.pop(0)); n -= 1
    def xline(l):
        nonlocal pend
        p.wait_tag(f'x{l}')
        if l in (4, 8):
            for k in range(2): e(f'v_add_u32 {v(vXR[k])}, 65536, {v(vXR[k])}')
        cur = []
        for kk in range(2):
            for b in range(2):
                e(f'ds_read_b128 {xf(b, 2*l+kk)}, {v(vXR[kk])} offset:{(l%4)*16384 + b*2048}')
                cur.append((b, 2 * l + kk))
        old, pend = pend, cur
        return old
    LAG = 4
    per = -(-len(SETA) // 36)
    for l in range(9):
        e(f's_add_u32 m0, {s(sM0w)}, {l*16384}')
        if l: e('s_add_u32 s3, s3, 128')
        todo = xline(l - LAG) if l >= LAG else []
        for q in range(4):
            e(f'buffer_load_dwordx4 {v(vXO[q])}, {s(SX,4)}, s3 offen offset:{1024*q} lds', tag=f'x{l}')
            if todo: stats(*todo.pop(0))
            some(SETA, per)
    if stamps: p.raw(f's_memrealtime {s(sSt,2)}'); p.raw('s_waitcnt lgkmcnt(0)'); p.raw(f's_mov_b32 s3, {s(sSt)}')
    some(SETA, 999)
    for l in range(9 - LAG, 9):
        todo = xline(l)
        while todo:
            stats(*todo.pop(0)); some(SETB, 4)
    some(SETB, 999)
    stamp()
    p.wait_lg(0); e('s_barrier')
    stamp()
    while pend: stats(*pend.pop(0))
    st0 = p.snapshot()
    tmpv = T[36]
    CT = [T[40 + 8 * k] for k in range(3)]
    order = [(b, ks) for ks in range(18) for b in range(2)]
    vNn, vNz = T[22], T[35]
    def center(early, mid, late, lab):
        e(f'v_mov_b32 {v(vNz)}, 0'); e(f'global_load_dwordx2 {v(vNn,2)}, {v(vNz)}, {s(sDbg,2)} sc1')
        mem = list(early)
        def one():
            while mem:
                x = mem.pop(0); put([x])
                if callable(x) or isinstance(x, tuple): break
        one()
        for b in range(2):
            for r in range(4): e(f'v_mul_f32 {v(SUM(b)+r)}, {fhex(-1.0/576)}, {v(SUM(b)+r)}')
            one()
        extra = []
        for b in range(2):
            q_ = SQ_(b)
            extra += [f'v_cndmask_b32 {v(tmpv+b)}, {v(q_)}, {v(q_+1)}, {s(mk[1],2)}', f'v_cndmask_b32 {v(tmpv+b)}, {v(tmpv+b)}, {v(q_+2)}, {s(mk[2],2)}',
                      f'v_cndmask_b32 {v(tmpv+b)}, {v(tmpv+b)}, {v(q_+3)}, {s(mk[3],2)}', f'v_cndmask_b32 {v(tmpv+b)}, 0, {v(tmpv+b)}, {s(mk[0],2)}']
        extra += [None] + [f'v_mfma_f32_16x16x4_f32 {v(SQ_(b),4)}, {v(vF1)}, {v(tmpv+b)}, 0' for b in range(2)]
        extra += [f'v_mul_f32 {v(tmpv+b)}, {v(SUM(b))}, {v(SUM(b))}' for b in range(2)] + [f's_mov_b32 {s(sT0)}, {fhex(1.0/576)}', None, None]
        for b in range(2):
            extra += [f'v_fma_f32 {v(tmpv+b)}, {v(SQ_(b))}, {s(sT0)}, -{v(tmpv+b)}', f'v_max_f32 {v(tmpv+b)}, 0, {v(tmpv+b)}',
                      f'v_add_f32 {v(tmpv+b)}, {fhex(1e-5)}, {v(tmpv+b)}', f'v_rsq_f32 {v(vRS+b)}, {v(tmpv+b)}', f'v_rcp_f32 {v(vRS2+b)}, {v(tmpv+b)}']
        reads = []
        for n in range(36 + 2):
            pk, wr = [], None
            if n < 36:
                b, ks = order[n]; t = CT[n % 3]
                m = [f'v_mfma_f32_16x16x32_bf16 {v(t,4)}, {v(vSEL+2,4)}, {xf(b,ks)}, {v(SUM(b),4)}',
                     f'v_mfma_f32_16x16x32_bf16 {v(t+4,4)}, {v(vSEL,4)}, {xf(b,ks)}, {v(SUM(b),4)}']
            else: m = [None, None]
            if n >= 2:
                b, ks = order[n - 2]; t = CT[(n - 2) % 3]; l, fi = divmod(n - 2, 4)
                dst = XV + 4 * fidx(b, ks) if xf_isv(b, ks) else t
                pk = [f'v_cvt_pk_bf16_f32 {v(dst+d)}, {v(t+2*d)}, {v(t+2*d+1)}' for d in range(4)]
                wr = (f'ds_write_b128 {v(vXR[2])}, {v(dst,4)} offset:{(l%3)*16384 + fi*1024}', f'xw{l}')
            put([m[0]] + pk[:2] + [m[1]] + pk[2:] + [wr])
            if n >= 2 and (n - 2) % 4 == 1 and n - 2 >= 4:
                l = (n - 2) // 4 - 1
                p.wait_lgtag(f'xw{l}', f'xr{l-1}', 'sw'); e('s_barrier')
                reads += [(f'ds_read_b128 {xf(2 + fi%2, 2*l + fi//2)}, {v(vXR[3])} offset:{(l%3)*16384 + fi*1024}', f'xr{l}') for fi in range(4)]
                if l == 4:
                    reads += [f'ds_read2st64_b32 {v(vRS+2,2)}, {v(vXR[1])} offset0:0 offset1:1', f'ds_read2st64_b32 {v(vRS2+2,2)}, {v(vXR[1])} offset0:2 offset1:3']
                    reads = [(x, 'xr4') if isinstance(x, str) else x for x in reads]
                if l == 5: mem += list(mid)
                if l == 7: mem += list(late)
            else:
                for _ in range(2):
                    if reads: put([reads.pop(0)])
            for _ in range(2):
                if extra: put([extra.pop(0)])
            if n == 17:
                assert not extra
                e(f'v_lshrrev_b32 {v(vXR[0])}, 2, {v(vL16)}'); e(f's_lshr_b32 {s(sT0)}, {s(sM0w)}, 2'); e(f's_add_u32 {s(sT0)}, {s(sT0)}, {STX}')
                e(f'v_add_u32 {v(vXR[0])}, {s(sT0)}, {v(vXR[0])}'); e(f'v_xor_b32 {v(vXR[1])}, 1024, {v(vXR[0])}')
                e(f'ds_write2st64_b32 {v(vXR[0])}, {v(vRS)}, {v(vRS+1)} offset0:0 offset1:1', 'sw'); e(f'ds_write2st64_b32 {v(vXR[0])}, {v(vRS2)}, {v(vRS2+1)} offset0:2 offset1:3', 'sw')
            one()
        p.wait_lgtag('xw8', 'xr7'); e('s_barrier')
        put([f'ds_read_b128 {xf(2 + fi%2, 16 + fi//2)}, {v(vXR[3])} offset:{2*16384 + fi*1024}' for fi in range(4)])
        put([f'ds_read_b128 {xf(*order[n])}, {v(vXR[2])} offset:{((n//4)%3)*16384 + (n%4)*1024}' for n in range(36) if not xf_isv(*order[n])])
        assert all(n >= 32 for n in range(36) if not xf_isv(*order[n]))
        while mem: one()
        e(f'v_readfirstlane_b32 {s(sN)}, {v(vNn)}'); e(f'v_readfirstlane_b32 {s(sN+1)}, {v(vNn+1)}')
        e(f's_cmp_eq_u32 {s(sN)}, 0'); e(f's_cbranch_scc1 {lab}_nw'); p.label(f'{lab}_nd')
        slow.append([f'{lab}_nw:', f's_mov_b32 {s(sSpin)}, {SPIN}', f'{lab}_nw2:', f'global_load_dwordx2 {v(vNn,2)}, {v(vNz)}, {s(sDbg,2)} sc1', 's_waitcnt vmcnt(0)',
                     f'v_readfirstlane_b32 {s(sN)}, {v(vNn)}', f'v_readfirstlane_b32 {s(sN+1)}, {v(vNn+1)}', f's_sub_u32 {s(sSpin)}, {s(sSpin)}, 1',
                     f's_cmp_lg_u32 {s(sN)}, 0', f's_cbranch_scc1 {lab}_nd', f's_cmp_lg_u32 {s(sSpin)}, 0', f's_cbranch_scc1 {lab}_nw2', f's_branch {lab}_nd'])
        stamp(2)
    def q_dma(c):
        return [f's_add_u32 m0, {s(sKm)}, {QB + 8192*c}', (f'buffer_load_dwordx4 {v(vQD[0])}, {s(SQ,4)}, {s(sQo)} offen lds', f'q{c}'),
                (f'buffer_load_dwordx4 {v(vQD[1])}, {s(SQ,4)}, {s(sQo)} offen offset:1024 lds', f'q{c}'), f's_add_u32 {s(sQo)}, {s(sQo)}, {64*3456}']
    e(f's_cmp_eq_u32 {s(sM)}, 0'); e(f's_cbranch_scc1 {name}_kv')
    e(f's_cmp_lt_u32 {s(sLine)}, 9'); e(f's_cbranch_scc1 {name}_q')
    center([x for c in range(6) for x in ffn_dma(c)], ffn_dma(6) + touches, ffn_dma(7), name + '_f')
    stF = p.snapshot(); stF = (stF[0], [x for x in stF[1] if str(x[1]).startswith('slot')])
    e(f's_branch {name}_hdr')

    def phi2(x, rs, rsl, t):
        return [f'v_pk_mul_f32 {v(t,2)}, {v(x,2)}, {v(rsl[0],2)}{rsl[1]}', f'v_pk_fma_f32 {v(x,2)}, {v(x,2)}, {v(rs[0],2)}, {s(sEps,2)}{rs[2]}',
                f'v_exp_f32_e64 {v(t)}, {v(t)} clamp', f'v_exp_f32_e64 {v(t+1)}, {v(t+1)} clamp',
                f'v_max_f32 {v(x)}, {s(sEps)}, {v(x)}', f'v_max_f32 {v(x+1)}, {s(sEps)}, {v(x+1)}', f'v_pk_add_f32 {v(x,2)}, {v(x,2)}, {v(t,2)}']
    def bc(reg):
        h = reg & 1
        return (reg & ~1, f' op_sel:[0,{h}] op_sel_hi:[1,{h}]', f' op_sel:[0,{h},0] op_sel_hi:[1,{h},1]')
    pr = lambda reg: (reg, '', '')
    def weave(seqs, between=None):
        for k in range(max(map(len, seqs))):
            for sq in seqs:
                if k < len(sq): e(sq[k])
            if between: between()
    def set_eps(): e(f's_mov_b32 {s(sEps)}, {fhex(1e-6)}'); e(f's_mov_b32 {s(sEps+1)}, {fhex(1e-6)}')
    wf = lambda g, kk: a(WF + 8 * (g % 3) + 4 * kk, 4)
    def tr4(g, base_reg, off, kstride):
        out = []
        for kk in range(2):
            for h in range(2):
                out.append(f'ds_read_b64_tr_b16 {a(WF + 8*(g%3) + 4*kk + 2*h, 2)}, {v(base_reg)} offset:{off + kk*kstride + h*512}')
        return out
    p.label(f'{name}_q'); p.restore(st0)
    center([x for c in range(7) for x in q_dma(c)] + ffn_dma(0) + ffn_dma(1), q_dma(7) + q_dma(8) + touches, [], name + '_qq')
    vQT = [ACC + 0, ACC + 1]
    e(f'v_lshrrev_b32 {v(ACC+2)}, 5, v0'); e(f'v_and_b32 {v(ACC+2)}, 1, {v(ACC+2)}'); e(f'v_lshlrev_b32 {v(ACC+2)}, 11, {v(ACC+2)}')
    e(f'v_subrev_u32 {v(ACC+2)}, {QB}, {v(ACC+2)}')
    for tt in range(2): e(f'v_sub_u32 {v(vQT[tt])}, {v(vTR+tt)}, {v(ACC+2)}')
    p.wait_tag('q6'); e('s_barrier')
    qtr = lambda g: tr4(g, vQT[g % 2], ((g // 2) % 4) * 8192 + (32768 if g // 2 == 8 else 0), 4096)
    for x in qtr(0) + qtr(1): e(x)
    nxt_slot = 2
    for g in range(18):
        c, tt = g // 2, g % 2
        mains = []; sl = Slots(8)
        for b in range(4):
            for kk in range(2):
                acc = PR + 16 * tt + 4 * b
                cc = '0' if (c == 0 and kk == 0) else v(acc, 4)
                mains.append(f'v_mfma_f32_16x16x32_bf16 {v(acc,4)}, {wf(g,kk)}, {xf(b, 2*c+kk)}, {cc}')
        sl.fix(-1, lambda g=g: p.need(a(WF + 8 * (g % 3), 8)))
        if g == 10: sl.fix(-1, lambda: p.wait_tag('q8'))
        if g in (2, 6, 10, 14): sl.fix(-1, 's_barrier')
        if g + 2 < 18:
            if g + 2 == 8:
                for tt2 in range(2): sl.fix(-1, f'v_add_u32 {v(vQT[tt2])}, 32768, {v(vQT[tt2])}')
            for k, x in enumerate(qtr(g + 2)): sl.fix(2 * k, x)
        if g in (2, 6, 10, 14):
            sl.stream(0, [x for x in ffn_dma(nxt_slot) if x]); nxt_slot += 1
        interleave(p, mains, sl.f)
    e('s_barrier')
    stamp(3)
    qtail = [x for x in ffn_dma(6) + ffn_dma(7) if x]
    set_eps()
    for b in range(4): e(f'v_mul_f32 {v(ACC+4+b)}, {fhex(LOG2E)}, {v(vRS+b)}')
    for b in range(4):
        weave([phi2(PR + 16 * tt + 4 * b + r, bc(vRS + b), bc(ACC + 4 + b), ACC + 8 + 4 * tt + r) for tt in range(2) for r in (0, 2)],
              lambda: put([qtail.pop(0)]) if qtail else None)
        o = PR + 4 * b
        e(f'v_cvt_pk_bf16_f32 {v(o)}, {v(o)}, {v(o+1)}'); e(f'v_cvt_pk_bf16_f32 {v(o+1)}, {v(o+2)}, {v(o+3)}')
        e(f'v_cvt_pk_bf16_f32 {v(o+2)}, {v(o+16)}, {v(o+17)}'); e(f'v_cvt_pk_bf16_f32 {v(o+3)}, {v(o+18)}, {v(o+19)}')
        e(f's_mul_i32 {s(sT0)}, {s(sTB[b])}, 18'); e(f's_lshl_b32 {s(sT2)}, {s(sLine)}, 1'); e(f's_add_u32 {s(sT0)}, {s(sT0)}, {s(sT2)}'); e(f's_add_u32 {s(sT0)}, {s(sT0)}, {s(sJ)}')
        e(f's_lshl_b32 {s(sT0)}, {s(sT0)}, 10'); e(f's_add_u32 {s(sT0)}, {s(sT0)}, {PQ_OFF}')
        e(f'buffer_store_dwordx4 {v(o,4)}, {v(vL16)}, {s(SWS,4)}, {s(sT0)} offen sc1')
    assert not qtail
    e(f's_branch {name}_hdr')
    p.label(f'{name}_kv'); p.restore(st0)
    center([x for ks in range(4) for x in kv_dma(ks, vKD)], touches, [], name + '_kk')
    def kacc(ct, b):
        if ct >= 5: return ('v', ACC + 16 * (ct - 5) + 4 * b)
        return ('v', ACC + 80 + 4 * b) if ct == 0 else ('a', JD + 16 * (ct - 1) + 4 * b)
    vKT = [vT + k for k in range(4)]
    e(f'v_and_b32 {v(vT+4)}, 15, v0'); e(f'v_lshlrev_b32 {v(vT+4)}, 2, {v(vT+4)}'); e(f'v_add_u32 {v(vT+4)}, {s(sSP)}, {v(vT+4)}')
    e(f'v_bfe_u32 {v(vT+5)}, v0, 4, 2'); e(f'v_mul_u32_u24 {v(vT+5)}, 6144, {v(vT+5)}')
    e(f'v_and_b32 {v(vT+6)}, 0x1ff, {v(vTR)}'); e(f's_lshl_b32 {s(sT0)}, {s(sJ)}, 6'); e(f'v_xor_b32 {v(vT+6)}, {s(sT0)}, {v(vT+6)}')
    for u in range(4):
        e(f's_add_u32 {s(sT0)}, {s(sQF)}, {u}'); e(f's_and_b32 {s(sT1)}, {s(sT0)}, 3'); e(f's_lshl_b32 {s(sT1)}, {s(sT1)}, 5')
        e(f's_lshr_b32 {s(sT0)}, {s(sT0)}, 2'); e(f's_add_u32 {s(sT0)}, {s(sT0)}, {s(sJ)}'); e(f's_lshl_b32 {s(sT0)}, {s(sT0)}, 10')
        e(f'v_xor_b32 {v(vKT[u])}, {s(sT1)}, {v(vT+6)}'); e(f'v_add3_u32 {v(vKT[u])}, {v(vKT[u])}, {s(sT0)}, {v(vT+5)}')
    vKD2 = vT + 6
    e(f'v_mov_b32 {v(vKD2)}, {v(vKD)}')
    NR, LA = 6, 3
    kfr = lambda n: WF + 4 * (n % NR)
    def ktr(n):
        ks, ct = divmod(n, 10); aa = ct % 5
        off = (ks % 2) * 24576 + (aa // 4) * 1024 + (ct // 5) * 3072
        return [f'ds_read_b64_tr_b16 {a(kfr(n) + 2*h, 2)}, {v(vKT[aa % 4])} offset:{off + 512*h}' for h in range(2)]
    p.wait_tag('kv0'); e('s_barrier')
    for n in range(LA):
        for x in ktr(n): e(x)
    ffn_at = {14: [0], 15: [1, 2], 16: [3], 17: [4, 5]}
    for ks in range(18):
        mains = []; sl = Slots(40)
        for ct in range(10):
            n = ks * 10 + ct
            for b in range(4):
                kd, base = kacc(ct, b); acc = R(kd, base, 4)
                mains.append(f'v_mfma_f32_16x16x32_bf16 {acc}, {xf(b,ks)}, {a(kfr(n),4)}, {"0" if ks == 0 else acc}')
            sl.fix(4 * ct - 1, lambda n=n: p.need(a(kfr(n), 4)))
            if n + LA < 180:
                if (n + LA) % 10 == 0:
                    nk = (n + LA) // 10
                    sl.fix(4 * ct - 1, lambda nk=nk: p.wait_tag(f'kv{nk}')); sl.fix(4 * ct, 's_barrier')
                    if nk % 2 == 0:
                        dlt = 49152 if nk % 6 else -98304
                        for u in range(4): sl.fix(4 * ct - 3 + u // 2, f'v_add_u32 {v(vKT[u])}, {dlt & 0xffffffff:#x}, {v(vKT[u])}')
                t2 = ktr(n + LA)
                late = (n + LA) % 10 == 0
                early = (n + LA) % 10 == 9
                sl.fix(4 * ct + (1 if late else 0), t2[0]); sl.fix(4 * ct + (0 if early else 2), t2[1])
        dm = []
        if ks == 3: sl.stream(30, [f'ds_write_b32 {v(vT+4)}, {v(vRS+b)} offset:{64*b}' for b in range(4)])
        if ks <= 13: dm = kv_dma(ks + 4, vKD2)
        elif ks in ffn_at: dm = [x for t in ffn_at[ks] for x in ffn_dma(t) if x]
        sl.stream(0, dm, last=26)
        interleave(p, mains, sl.f)
    p.wait_lg(0); e('s_barrier')
    stamp(4)
    FQ = lambda n: ACC + 16 * (n % 5) + 4 + 8 * (n // 5)
    e(f'v_bfe_u32 {v(vRS)}, v0, 4, 2'); e(f'v_lshlrev_b32 {v(vRS)}, 4, {v(vRS)}'); e(f'v_add_u32 {v(vRS)}, {s(sSP)}, {v(vRS)}')
    e(f'ds_read_b128 {v(vT,4)}, {v(vRS)}'); e(f'ds_read_b128 {v(vT+4,4)}, {v(vRS)} offset:64')
    for k in range(4): e(f'v_accvgpr_write_b32 {a(WF+k)}, {s(sOnes)}')
    set_eps()
    ktail = [x for x in ffn_dma(6) + ffn_dma(7) if x]
    RT = [[vT, vT + 4], [FQ(0), FQ(1)]]; RL = [[FQ(2), FQ(3)], [FQ(4), FQ(5)]]; RAW = [FQ(6), FQ(7)]; EXT = [FQ(8), FQ(9)]
    PV = {}; PK = {}
    for hb in range(2):
        for T_ in range(5):
            base = ACC + 16 * T_ + 8 * hb
            for k in range(0, 8, 2): e(f'v_pk_mul_f32 {v(base+k,2)}, {v(base+k,2)}, {v(RT[hb][k//4] + k%4, 2)}')
            for d in range(4): e(f'v_cvt_pk_bf16_f32 {v(base+d)}, {v(base+2*d)}, {v(base+2*d+1)}')
            PV[T_, hb] = v(base, 4)
            if hb == 0 and T_ == 1:
                e(f'ds_read_b128 {v(FQ(0),4)}, {v(vRS)} offset:128'); e(f'ds_read_b128 {v(FQ(1),4)}, {v(vRS)} offset:192')
            put([ktail.pop(0)])
    e(f's_mov_b32 {s(sT0)}, {fhex(LOG2E)}')
    for hb in range(2):
        for k in range(8): e(f'v_mul_f32 {v(RL[hb][k//4] + k%4)}, {s(sT0)}, {v(RT[hb][k//4] + k%4)}')
        put([ktail.pop(0)])
    assert not ktail
    e(f's_lshl_b32 {s(sT1)}, {s(sT)}, 1'); e(f's_add_u32 {s(sT1)}, {s(sT1)}, {s(sI)}'); e(f's_lshl_b32 {s(sT1)}, {s(sT1)}, 3')
    e(f's_lshl_b32 {s(sT0)}, {s(sQF)}, 1'); e(f's_add_u32 {s(sT0)}, {s(sT0)}, {s(sJ)}'); e(f's_add_u32 {s(sT1)}, {s(sT1)}, {s(sT0)}')
    e(f's_mul_i32 {s(sT1)}, {s(sT1)}, {18*1024}'); e(f's_add_u32 {s(sT1)}, {s(sT1)}, {KVP_OFF}'); e(f's_add_u32 {s(sT0)}, {s(sT1)}, {13*1024}')
    DT = [WF + 4 + 4 * k for k in range(5)]; nd = [0]; stq = []
    def kvmm(aa):
        for T_ in [T_ for T_ in (aa - 1, aa, aa + 1) if 0 <= T_ < 5] + [None]:
            d = a(DT[nd[0] % 5], 4); nd[0] += 1
            for hb in range(2):
                e(f'v_mfma_f32_16x16x32_bf16 {d}, {PK[aa, hb]}, {a(WF,4) if T_ is None else PV[T_, hb]}, {"0" if hb == 0 else d}')
            u = 13 + aa if T_ is None else KV_PAIRS.index((aa, T_))
            stq.append(f'buffer_store_dwordx4 {d}, {v(vL16)}, {s(SWS,4)}, {s(sT2)} offen sc1'); stq.insert(len(stq) - 1, f's_add_u32 {s(sT2)}, {s(sT1)}, {1024*u}')
    for aa in range(6):
        for hb in range(2):
            if aa == 5: break
            if aa == 0: src = [ACC + 80 + 8 * hb, ACC + 84 + 8 * hb]
            else:
                src = RAW
                if hb == 0: kvmm(aa - 1)
                for k in range(8): e(f'v_accvgpr_read_b32 {v(RAW[k//4] + k%4)}, {a(JD + 16*(aa-1) + 8*hb + k)}')
            weave([phi2(src[k//4] + k%4, pr(RT[hb][k//4] + k%4), pr(RL[hb][k//4] + k%4), EXT[k//4] + k%4) for k in range(0, 8, 2)],
                  lambda: put([stq.pop(0), stq.pop(0)]) if stq else None)
            if aa == 0:
                for d in range(4): e(f'v_cvt_pk_bf16_f32 {v(src[0]+d)}, {v(src[d//2] + 2*(d%2))}, {v(src[d//2] + 2*(d%2) + 1)}')
                PK[aa, hb] = v(src[0], 4)
            else:
                for d in range(4): e(f'v_cvt_pk_bf16_f32 {v(EXT[0]+d)}, {v(src[d//2] + 2*(d%2))}, {v(src[d//2] + 2*(d%2) + 1)}')
                for d in range(4): e(f'v_accvgpr_write_b32 {a(JD + 16*(aa-1) + 8*hb + d)}, {v(EXT[0]+d)}')
                PK[aa, hb] = a(JD + 16 * (aa - 1) + 8 * hb, 4)
    kvmm(4); put(stq)
    p.label(f'{name}_hdr'); p.restore(stF)
    stamp(5)
    acc = lambda ai, b: ACC + 16 * ai + 4 * b
    def ftr(G):
        G %= 36; c, g = divmod(G, 4)
        return tr4(G, vTR + 2 * (c // 4) + (g >> 1), (c % 4) * 16384 + (g & 1) * 2048, 8192)
    vPg, vP0 = vT + 4, vT + 6
    e(f'v_mov_b32 {v(vPg)}, {s(sN)}'); e(f'v_mov_b32 {v(vPg+1)}, {s(sN+1)}'); e(f'v_min_u32 {v(vP0)}, 1, v0'); e(f'v_lshlrev_b32 {v(vP0)}, 30, {v(vP0)}')
    e(f's_mov_b32 {s(sInc)}, {6*1024}'); e(f's_mov_b32 {s(sIncL)}, {10*1024}')
    e(f's_cmp_eq_u32 {s(sM)}, 0'); e(f's_cselect_b32 {s(sInc)}, {2*1024}, {s(sInc)}'); e(f's_cselect_b32 {s(sIncL)}, {8*1024}, {s(sIncL)}')
    e(f's_lshl_b32 {s(sT0)}, {s(sT)}, 2'); e(f's_add_u32 {s(sT0)}, {s(sT0)}, {s(sQF)}'); e(f's_lshl_b32 {s(sT0)}, {s(sT0)}, 5'); e(f's_add_u32 {s(sPc)}, {s(sT0)}, {PROG_OFF}')
    e(f's_lshl_b32 {s(sT0)}, {s(sM)}, 3'); e(f's_add_u32 {s(sPg)}, {s(sPc)}, {s(sT0)}')
    vHt, sHt = vRS, sKm
    e(f'v_and_b32 {v(vT)}, 63, v0'); e(f'v_lshrrev_b32 {v(vT+1)}, 3, {v(vT)}'); e(f'v_mul_u32_u24 {v(vT+1)}, {144*1024}, {v(vT+1)}'); e(f'v_and_b32 {v(vHt)}, 7, v0')
    e(f'v_lshl_add_u32 {v(vHt)}, {v(vHt)}, 7, {v(vT+1)}'); e(f'v_cmp_gt_u32 vcc, 32, {v(vT)}'); e(f'v_mov_b32 {v(vT+1)}, 0x40000000')
    e(f's_mul_i32 {s(sT0)}, {s(sJ)}, {2*144*1024}'); e(f's_sub_u32 {s(sHt)}, {s(sH)}, {s(sT0)}')
    e(f'v_cndmask_b32 {v(vHt)}, {v(vT+1)}, {v(vHt)}, vcc')
    def htouch(inc): return ([] if 'noht' in opt else [1]) and [junk(f'buffer_load_dword {v(vJS2)}, {v(vHt)}, {s(SH,4)}, {s(sHt)} offen')] + ([f's_add_u32 {s(sHt)}, {s(sHt)}, {s(inc)}'] if inc else [])
    def put2(sl, k, items):
        for x in items:
            if callable(x):
                while sl.cnt.get(k, 0): k += 1
                sl.fix(k, x, cost=2)
            else: k = sl.stream(k, [x])
        return k
    def check(lab, data, need, reload, pre=(), inline=True):
        seq = [f'v_xor_b32 {v(data)}, {s(sN)}, {v(data)}', f'v_sub_u32 {v(data+1)}, {v(data+1)}, {need}', f'v_lshrrev_b32 {v(data+1)}, 4, {v(data+1)}',
               f'v_or_b32 {v(data)}, {v(data)}, {v(data+1)}', f'v_cmp_ne_u32 vcc, 0, {v(data)}']
        spin = [f's_mov_b32 {s(sSpin)}, {SPIN}', f'{lab}_w2:', reload, 's_waitcnt vmcnt(0)'] + seq + \
               [f's_sub_u32 {s(sSpin)}, {s(sSpin)}, 1', 's_cmp_eq_u64 vcc, 0', f's_cbranch_scc1 {lab}_d', f's_cmp_lg_u32 {s(sSpin)}, 0', f's_cbranch_scc1 {lab}_w2', f's_branch {lab}_d']
        def f():
            if inline:
                put(seq); e('s_nop 0'); e('s_cmp_eq_u64 vcc, 0'); e(f's_cbranch_scc0 {lab}_w'); blk = [f'{lab}_w:'] + spin
            else:
                p.need(v(data, 2)); e(f's_cmp_eq_u32 {s(sCnt)}, 1'); e(f's_cbranch_scc1 {lab}_w')
                blk = [f'{lab}_w:'] + list(pre) + seq + ['s_nop 0', 's_cmp_eq_u64 vcc, 0', f's_cbranch_scc1 {lab}_d'] + spin
            p.label(f'{lab}_d')
            if blk not in slow: slow.append(blk)
        return f
    p.wait_tag('slot0'); e('s_barrier')
    for x in ftr(0) + ftr(1): e(x)
    def prod(h, b): return [f'v_mul_f32 {v(PR + 16*h + 4*b + r)}, {v(acc(2*h, b) + r)}, {v(acc(2*h+1, b) + r)}' for r in range(4)]
    def fin(b, inc):
        o = PR + 4 * b
        return ([f'v_mul_f32 {v(o + 16*h + r)}, {v(o + 16*h + r)}, {v(vRS2+b)}' for h in range(2) for r in range(4)] +
                [f'v_cvt_pk_bf16_f32 {v(o)}, {v(o)}, {v(o+1)}', f'v_cvt_pk_bf16_f32 {v(o+1)}, {v(o+2)}, {v(o+3)}',
                 f'v_cvt_pk_bf16_f32 {v(o+2)}, {v(o+16)}, {v(o+17)}', f'v_cvt_pk_bf16_f32 {v(o+3)}, {v(o+18)}, {v(o+19)}',
                 (f'buffer_store_dwordx4 {v(o,4)}, {v(vL16)}, {s(SH,4)}, {s(sH+b)} offen sc1', 'h')] +
                ([f's_add_u32 {s(sH+b)}, {s(sH+b)}, {s(inc)}'] if inc else []))
    progress = [f'v_add_u32 {v(vPg+1)}, 1, {v(vPg+1)}', f'buffer_store_dwordx2 {v(vPg,2)}, {v(vP0)}, {s(SWS,4)}, {s(sPg)} offen sc1']
    def slab(sl, mains, last):
        for G in range(36):
            c, g = divmod(G, 4)
            for b in range(4):
                for kk in range(2):
                    cc = '0' if (c == 0 and kk == 0) else v(acc(g, b), 4)
                    mains.append(f'v_mfma_f32_16x16x32_bf16 {v(acc(g,b),4)}, {wf(G,kk)}, {xf(b, 2*c+kk)}, {cc}')
            sl.fix(8 * G - 1, lambda G=G: p.need(a(WF + 8 * (G % 3), 8)))
            if g == 2:
                tag = f'slot{(c+1)%9}' if not (last and c == 8) else 'slot2'
                if c == 7: sl.fix(8 * G - 2, lambda: p.wait_tag('h'))
                sl.fix(8 * G - 1, lambda tag=tag: p.wait_tag(tag)); sl.fix(8 * G, 's_barrier')
            if not (last and G >= 34):
                for k, x in enumerate(ftr(G + 2)): sl.fix(8 * G + 2 * k + (1 if g == 2 else 0), x)
        sl.stream(8 * 33 + 5, prod(0, 0), last=8 * 34 - 1, cap=3)
        sl.stream(0, prod(1, 0) + prod(1, 1) + prod(1, 2) + prod(1, 3), last=15)
    def body():
        mains = []; sl = Slots(288)
        slab(sl, mains, False)
        sl.stream(8 * 34 + 1, prod(0, 1) + prod(0, 2) + prod(0, 3), last=287)
        for c in range(9):
            d = [x for x in ffn_dma((c - 1) % 9) if x]
            if c == 0: d[-1] = f's_add_u32 {s(sWo)}, {s(sWo)}, {(128 - 8*CH) & 0xffffffff:#x}'
            if c < 8: sl.stream(32 * c + 17, d, last=32 * c + 31, gap=1)
            else: sl.stream(32 * c + 17, d, last=287, cap=3)
        j1 = [f's_mov_b32 {s(sJo)}, {s(JP[3])}', f's_mov_b32 {s(SJD+2)}, {s(JP[5])}', f's_and_b32 {s(sCr)}, {s(JP[5])}, 15']
        k = sl.stream(16, j1, last=31)
        if 'notouch' not in opt:
            g_ = gtouch(); sl.fix(67, g_[0], cost=2); sl.stream(68, g_[1:])
        jl = [f's_mov_b32 m0, {s(sSP)}']
        for q in range(4):
            jl += [(f'buffer_load_dwordx4 {v(vJS)}, {s(SJS,4)}, {s(sJo)} offen offset:{1024*q} lds', 'job'), f's_add_u32 {s(sJo)}, {s(sJo)}, 8192']
        k = sl.stream(32, jl, last=47, gap=1)
        k = sl.stream(16, fin(0, sInc) + fin(1, sInc) + fin(2, sInc) + fin(3, sInc), gap=1)
        j2 = [f's_mov_b32 {s(sJo)}, {s(JP[4])}'] + [f's_mov_b32 {s(JP[q])}, {s(JP[6+q])}' for q in range(6)]
        j2 += [f's_mov_b32 {s(JP[8])}, 0', f's_mov_b32 {s(JP[11])}, 0']
        j2 += [f'v_xor_b32 {v(vT+u)}, {32*u}, {v(vJT)}' for u in range(1, 4)]
        k = sl.stream(k + 1, j2)
        jt = jtouch(); k = sl.stream(k, jt[:3])
        if jt[3:]:
            k = (k + 2) | 1
            while sl.cnt.get(k, 0): k += 1
            sl.fix(k, jt[3], cost=2)
        assert k < 32 * 6
        j3 = [lambda: p.wait_tag('job')]
        for u in range(4):
            for h in range(2): j3.append(f'ds_read_b64_tr_b16 {a(JD + 4*u + 2*h, 2)}, {v(vT+u) if u else v(vJT)} offset:{2048*h}')
        k = sl.stream(32 * 6, j3, gap=1)
        for u in range(4):
            if u:
                k += 1; sl.fix(k, lambda u=u: put([f's_cmp_le_u32 {s(sCr)}, {u}', f's_cselect_b32 {s(sT0)}, {(144*9 - 9)*1024}, 0', f's_add_u32 {s(sT0)}, {s(sT0)}, {s(sJo)}']), cost=2)
            k = sl.stream(k + 2, [f'buffer_store_dwordx4 {a(JD+4*u,4)}, {v(vL16)}, {s(SJD,4)}, {s(sT0 if u else sJo)} offen offset:{1024*u} sc1'])
        assert k < 8 * 30 - 2, k
        k = sl.stream(8 * 30 + 8, progress); put2(sl, k, htouch(sInc) + [f's_mov_b32 {s(SH+2)}, {PQ_OFF}'])
        vPd, vPa, vPn = vRS + 2, vRS + 1, vT
        pollA = f'buffer_load_dwordx2 {v(vPd,2)}, {v(vPa)}, {s(SWS,4)}, 0 offen sc1'
        if 'lateA' not in opt: sl.stream(32 * 5, [f'v_lshlrev_b32 {v(vPa)}, 3, v0', f'v_add_u32 {v(vPa)}, {PROG_OFF}, {v(vPa)}', pollA])
        if 'lateA' not in opt: sl.fix(8 * 30 - 4, check(name + '_ca', vPd, v(vPn), pollA, inline=False,
               pre=[f'v_and_b32 {v(vPn)}, 3, v0', f'v_min_u32 {v(vPn)}, 1, {v(vPn)}', f'v_lshl_add_u32 {v(vPn)}, {v(vPn)}, 1, 1', f'v_add_u32 {v(vPn)}, {s(sN+1)}, {v(vPn)}']), cost=2)
        def pull():
            e(f's_cmp_eq_u32 {s(sCnt)}, 1'); e(f's_cbranch_scc1 {name}_pw'); p.label(f'{name}_pd')
            t0, t1, t2 = vT, vT + 1, vT + 2
            blk = [f'{name}_pw:', f's_and_b32 {s(sT0)}, {s(sT)}, 7', f's_lshl_b32 {s(sT0)}, {s(sT0)}, 2', f's_add_u32 {s(sT0)}, {s(sT0)}, {s(sW)}',
                   f's_mul_i32 {s(sT1)}, {s(sM)}, 144', f's_mul_i32 {s(sT2)}, {s(sQF)}, 36', f's_add_u32 {s(sT1)}, {s(sT1)}, {s(sT2)}', f's_mul_i32 {s(sT1)}, {s(sT1)}, 9216',
                   f's_mul_i32 {s(sT2)}, {s(sT0)}, {81*128}', f's_add_u32 {s(sT1)}, {s(sT1)}, {s(sT2)}', f's_add_u32 {s(sT1)}, {s(sT1)}, {WT_OFF}',
                   f'v_lshlrev_b32 {v(t0)}, 3, {v(vL16)}', f'v_min_u32 {v(t1)}, {16*128}, {v(t0)}',
                   f'buffer_load_dword {v(vJS2)}, {v(t0)}, {s(SWS,4)}, {s(sT1)} offen', f's_add_u32 {s(sT1)}, {s(sT1)}, 8192',
                   f'buffer_load_dword {v(vJS2)}, {v(t1)}, {s(SWS,4)}, {s(sT1)} offen',
                   f's_mul_i32 {s(sT0)}, {s(sT0)}, 41', f'v_lshrrev_b32 {v(t0)}, 4, {v(vL16)}', f'v_min_u32 {v(t1)}, 40, {v(t0)}', f'v_add_u32 {v(t1)}, {s(sT0)}, {v(t1)}', f'v_min_u32 {v(t1)}, 1295, {v(t1)}',
                   f'v_mul_u32_u24 {v(t2)}, 3641, {v(t1)}', f'v_lshrrev_b32 {v(t2)}, 18, {v(t2)}', f'v_mul_u32_u24 {v(t2)}, {36*1024 - 72*128}, {v(t2)}', f'v_lshl_add_u32 {v(t1)}, {v(t1)}, 7, {v(t2)}',
                   f's_mul_i32 {s(sT1)}, {s(sM)}, 9216', f's_add_u32 {s(sT1)}, {s(sT1)}, {WOT_OFF}',
                   f'buffer_load_dword {v(vJS2)}, {v(t1)}, {s(SWS,4)}, {s(sT1)} offen',
                   f's_lshl_b32 {s(sT0)}, {s(sT)}, 2', f's_add_u32 {s(sT0)}, {s(sT0)}, {s(sQF)}', f's_lshl_b32 {s(sT0)}, {s(sT0)}, 4', f's_lshl_b32 {s(sT1)}, {s(sM)}, 2', f's_add_u32 {s(sT0)}, {s(sT0)}, {s(sT1)}',
                   f's_add_u32 {s(sT0)}, {s(sT0)}, {s(sW)}', f's_mul_i32 {s(sT0)}, {s(sT0)}, {18*128}', f's_add_u32 {s(sT0)}, {s(sT0)}, {PQ_OFF}',
                   f'v_min_u32 {v(t0)}, 17, {v(t0)}', f'v_lshlrev_b32 {v(t0)}, 7, {v(t0)}', f'buffer_load_dword {v(vJS2)}, {v(t0)}, {s(SWS,4)}, {s(sT0)} offen',
                   f's_branch {name}_pd']
            if blk not in slow: slow.append(blk)
        if 'nopull' not in opt and 'lateA' not in opt: sl.fix(8 * 31 + 6, pull, cost=2)
        interleave(p, mains, sl.f)
    def back():
        e(f's_sub_u32 {s(sCnt)}, {s(sCnt)}, 1'); e(f's_cmp_lg_u32 {s(sCnt)}, 0'); e(f's_cbranch_scc1 {name}_loop')
    p.loop(body, f'{name}_loop', back)
    stamp(6)

    sC, sQK = sM, sQF
    SO, SJ, SA, SP_ = SQ, SJS, SJD, SGt
    free_s = JP + [sKV + k for k in range(6)] + sTB + [sJob, sJo, sLine, sTo, sCr, sSP, sOnes]
    sWd, sWs, sH2a, sH2b, sJs, sJd, sAl, sTl, sHi, sRec, sWo2, sW8, sPq0, sPq1, sPart, sFl, sSel, sT3, sM0p, sRf = free_s[:20]
    sH2 = [sH2a, sH2b]; sHd = free_s[20:24]
    ACC2 = XV
    big = lambda f: ACC + 4 * f if f < 24 else XV + 72 + 4 * (f - 24)
    vLx = [vL16, vTg, vRS + 1]; vRD = [vT, vT + 1, vT + 2, vT + 3]; vXO2, vX8 = vJS, vJT
    vXD = [vTR, vTR + 4, vRS + 2]; TQ = [vT + 4, vRS2 + 2]
    assert vTR % 4 == 0 and (vRS + 2) % 4 == 0 and (vRS2 + 2) % 4 == 0 and XV + 72 + 52 <= 252
    vCk = 252
    HBs = [JD, JD + 32, XA + 16, XA + 48]; AR = XA + 80
    hb = lambda c, b, ks: HBs[c % 4] + 16 * b + 4 * ks
    WR = [XA + 128 + 4 * k for k in range(8)] + [XA + 4 * k for k in range(4)] + [WF + 4 * k for k in range(6)] + [JD + 64, JD + 68] + \
         [HBs[n] + 4 * k for n in (1, 2, 3, 0) for k in range(8)] + [AR, AR + 4]
    wreg = lambda f: WR[f]
    def hloads(c):
        out = []
        for b in range(2):
            for ks in range(4): out.append(f'buffer_load_dwordx4 {a(hb(c,b,ks),4)}, {v(vL16)}, {s(SWS,4)}, {s(sH2[b])} offen offset:{1024*ks} sc1')
            out.append(f's_add_u32 {s(sH2[b])}, {s(sH2[b])}, 4096')
        return out
    def sdma(slot, tag):
        return [f's_add_u32 m0, {s(sM0w)}, {slot*16384}'] + \
               [(f'buffer_load_dwordx4 {v(vL16)}, {s(SWS,4)}, {s(sWs)} offen offset:{1024*q} sc1 lds', tag) for q in range(4)] + [f's_add_u32 {s(sWs)}, {s(sWs)}, 16384']
    def wdma(c):
        out = []
        for pc in range(9):
            if pc % 4 == 0: out.append(f's_add_u32 m0, {s(sM0p)}, {(c%4)*SLOT + 4096*(pc//4)}')
            out.append((f'buffer_load_dwordx4 {v(vLx[pc//4])}, {s(SWS,4)}, {s(sWd)} offen offset:{1024*(pc%4)} sc1 lds', f'w{c}'))
        out.append(f's_add_u32 {s(sWd)}, {s(sWd)}, {SLOT}')
        return out
    acc2 = lambda aa, b: ACC2 + 8 * aa + 4 * b
    ar = lambda n, ks: AR + 16 * (n % 3) + 4 * ks
    def ard(n):
        c, aa = divmod(n, 9)
        return [f'ds_read_b128 {a(ar(n,ks),4)}, {v(vRD[c%4])} offset:{ks*9216 + aa*1024}' for ks in range(4)]
    grp = lambda *xs: (lambda: put(list(xs)))
    mains = []; sl = Slots(288 + 648)
    slab(sl, mains, True)
    for n in range(2):
        for k, x in enumerate(ard(n)): sl.fix(8 * (34 + n) + 2 * k + (1 if n == 0 else 0), x)
    sl.stream(8 * 34 + 1, prod(0, 1) + prod(0, 2) + prod(0, 3), last=287)
    sl.stream(17, [x for x in ffn_dma(8) if x][:-1], last=31, gap=1)
    setup = [f's_mul_i32 {s(sT0)}, {s(sC)}, 144', f's_mul_i32 {s(sT1)}, {s(sQK)}, 36', f's_add_u32 {s(sT0)}, {s(sT0)}, {s(sT1)}', f's_mul_i32 {s(sT0)}, {s(sT0)}, 9216',
             f's_add_u32 {s(sT0)}, {s(sT0)}, {WT_OFF}', f's_add_u32 {s(sWs)}, {s(sT0)}, {s(sM0w)}', f's_mul_i32 {s(sM0p)}, {s(sW)}, 9216',
             f's_add_u32 {s(sWd)}, {s(sT0)}, {s(sM0p)}', f's_add_u32 {s(sWd)}, {s(sWd)}, {4*SLOT}',
             f's_lshl_b32 {s(sT0)}, {s(sT)}, 3', f's_lshl_b32 {s(sT2)}, {s(sW)}, 1', f's_add_u32 {s(sT0)}, {s(sT0)}, {s(sT2)}', f's_mul_i32 {s(sT0)}, {s(sT0)}, 144',
             f's_add_u32 {s(sT0)}, {s(sT0)}, {s(sT1)}', f's_lshl_b32 {s(sH2a)}, {s(sT0)}, 10', f's_add_u32 {s(sH2b)}, {s(sH2a)}, {144*1024}']
    k = sl.stream(16, setup); assert k < 48
    if 'lateA' in opt:
        vPd, vPn, vPa = vRS + 2, vTj, vRS + 1
        pollA = f'buffer_load_dwordx2 {v(vPd,2)}, {v(vPa)}, {s(SWS,4)}, 0 offen sc1'
        sl.stream(16, [f'v_lshlrev_b32 {v(vPa)}, 3, v0', f'v_add_u32 {v(vPa)}, {PROG_OFF}, {v(vPa)}', pollA,
                       f'v_and_b32 {v(vPn)}, 3, v0', f'v_min_u32 {v(vPn)}, 1, {v(vPn)}', f'v_lshl_add_u32 {v(vPn)}, {v(vPn)}, 1, 1', f'v_add_u32 {v(vPn)}, {s(sN+1)}, {v(vPn)}'])
        if 'nochkA' not in opt: sl.fix(8 * 10 - 4, check(name + '_ca', vPd, v(vPn), pollA), cost=2)
        sl.spread(81, 111, sdma(0, 'slot0') + sdma(1, 'slot1'))
    for c in range(3 if 'lateA' in opt else 1, 9):
        sl.stream(32 * c + 17, sdma(c - 1, f'slot{c-1}'), last=32 * c + 31 if c < 8 else 287, gap=1 if c < 8 else 0, cap=2 if c < 8 else 3)
    k = sl.stream(16, fin(0, sIncL) + fin(1, sIncL) + fin(2, sIncL) + fin(3, sIncL), gap=1)
    k = sl.stream(8 * 30 + 8, progress); put2(sl, k, htouch(sIncL))
    sl.spread(118, 262, hloads(0) + hloads(1) + hloads(2))
    def srd2(r, ptr): return [f's_mov_b32 {s(r)}, {s(ptr)}', f's_mov_b32 {s(r+1)}, {s(ptr+1)}']
    setup2 = [f'v_add_u32 {v(vLx[1])}, 4096, {v(vL16)}', f'v_add_u32 {v(vLx[2])}, 8192, {v(vL16)}'] + [f'v_add_u32 {v(vRD[n])}, {n*SLOT}, {v(vL16)}' for n in range(4)]
    setup2 += srd2(SX, sXp) + [f's_mov_b32 {s(SX+2)}, {S*D*2}'] + srd2(SO, sOp) + [f's_mov_b32 {s(SO+2)}, {S*D*2}'] + srd2(SJ, SWS) + srd2(SP_, SWS)
    setup2 += [f's_mul_i32 {s(sT0)}, s2, 10923', f's_lshr_b32 {s(sT0)}, {s(sT0)}, 16', f's_mul_i32 {s(sT1)}, {s(sT0)}, 6', f's_sub_u32 {s(sT1)}, s2, {s(sT1)}', f's_lshr_b32 {s(sT1)}, {s(sT1)}, 1',
               f's_mul_i32 {s(sT2)}, {s(sT0)}, 7282', f's_lshr_b32 {s(sT2)}, {s(sT2)}, 16', f's_mul_i32 {s(sT3)}, {s(sT2)}, 9', f's_sub_u32 {s(sTl)}, {s(sT0)}, {s(sT3)}',
               f's_add_u32 {s(sAl)}, {s(sTl)}, {s(sT1)}', f's_sub_u32 {s(sAl)}, {s(sAl)}, 1',
               f's_and_b32 {s(sT3)}, {s(sT0)}, 1', f's_add_u32 {s(sT3)}, {s(sT3)}, {s(sT1)}', f's_sub_u32 {s(sT3)}, {s(sT3)}, 1', f's_and_b32 {s(sHi)}, s2, 1',
               f's_lshl_b32 {s(sJd)}, {s(sHi)}, 10', f's_lshl_b32 {s(sJs)}, {s(sT3)}, 3', f's_add_u32 {s(sJd)}, {s(sJd)}, {s(sJs)}', f's_lshl_b32 {s(sJs)}, {s(sHi)}, 3', f's_add_u32 {s(sJs)}, {s(sJs)}, 2048',
               grp(f's_cmp_lt_u32 {s(sT3)}, 2', f's_cselect_b32 {s(sJd)}, {s(sJd)}, {s(sJs)}'),
               f's_mul_i32 {s(sT0)}, {s(sT0)}, 3072', f's_add_u32 {s(sJd)}, {s(sJd)}, {s(sT0)}', f's_lshl_b32 {s(sT0)}, {s(sW)}, 8', f's_add_u32 {s(sJd)}, {s(sJd)}, {s(sT0)}', f's_add_u32 {s(sJd)}, {s(sJd)}, {REC_OFF}',
               f's_max_i32 {s(sT0)}, {s(sAl)}, {s(sTl)}', grp(f's_cmp_gt_i32 {s(sT0)}, 4', f's_cselect_b32 {s(sT0)}, 1, 0'),
               f's_lshl_b32 {s(sT1)}, {s(sT0)}, 2', f's_sub_u32 {s(sT3)}, {s(sAl)}, {s(sT1)}', f's_sub_u32 {s(sT1)}, {s(sTl)}, {s(sT1)}', f's_add_u32 {s(sT1)}, {s(sT1)}, {s(sT3)}',
               grp(f's_cmp_eq_u32 {s(sHi)}, 0', f's_cselect_b32 {s(sT1)}, {s(sT1)}, 13'), f's_add_u32 {s(sT1)}, {s(sT1)}, {s(sT3)}',
               f's_lshl_b32 {s(sT2)}, {s(sT2)}, 1', f's_add_u32 {s(sT2)}, {s(sT2)}, {s(sT0)}', f's_mul_i32 {s(sT2)}, {s(sT2)}, 18', f's_add_u32 {s(sT1)}, {s(sT1)}, {s(sT2)}',
               f's_lshl_b32 {s(sT1)}, {s(sT1)}, 10', f's_lshl_b32 {s(sT0)}, {s(sW)}, 8', f's_add_u32 {s(sT1)}, {s(sT1)}, {s(sT0)}', f's_add_u32 {s(sJs)}, {s(sT1)}, {KVP_OFF}',
               grp(f's_cmp_lt_u32 {s(sAl)}, 9', f's_cselect_b32 {s(SJ+2)}, {WT_OFF}, 0'),
               grp('s_cmp_lt_u32 s2, 216', f's_cselect_b32 {s(SJ+2)}, {s(SJ+2)}, 0', f's_cselect_b32 {s(SA+2)}, {STAMP_OFF}, 0'),
               f's_lshl_b32 {s(sRf)}, s2, 3', f's_add_u32 {s(sRf)}, {s(sRf)}, {RECF_OFF}',
               f's_lshl_b32 {s(sT0)}, {s(sAl)}, 4', f's_lshl_b32 {s(sT1)}, {s(sW)}, 2', f's_add_u32 {s(sT0)}, {s(sT0)}, {s(sT1)}', f's_mul_i32 {s(sT0)}, {s(sT0)}, 3641']
    for r in range(4): setup2 += [f's_lshr_b32 {s(sHd[r])}, {s(sT0)}, 16'] + ([f's_add_u32 {s(sT0)}, {s(sT0)}, 3641'] if r < 3 else [])
    setup2 += [f'v_and_b32 {v(vXO2)}, 31, v0', f'v_mul_u32_u24 {v(vXO2)}, 1152, {v(vXO2)}', f'v_bfe_u32 {v(vX8)}, v0, 5, 1', f'v_lshl_add_u32 {v(vXO2)}, {v(vX8)}, 4, {v(vXO2)}',
               f's_lshl_b32 {s(sT0)}, {s(sT)}, 2', f's_add_u32 {s(sT0)}, {s(sT0)}, {s(sQK)}', f's_mul_i32 {s(sT0)}, {s(sT0)}, {32*1152}', f's_mul_i32 {s(sT1)}, {s(sC)}, 288',
               f's_add_u32 {s(sT0)}, {s(sT0)}, {s(sT1)}', f'v_add_u32 {v(vX8)}, {s(sT0)}, {v(vXO2)}', f's_lshl_b32 {s(sT1)}, {s(sW)}, 5', f'v_add_u32 {v(vXO2)}, {s(sT1)}, {v(vX8)}',
               f's_mul_i32 {s(sRec)}, {s(sW)}, {9*3072}', f's_add_u32 {s(sRec)}, {s(sRec)}, {REC_OFF}',
               f's_mul_i32 {s(sT1)}, {s(sC)}, {9*1024}', f's_add_u32 {s(sW8)}, {s(sT1)}, {WOT_OFF + 8192}', f's_lshl_b32 {s(sT0)}, {s(sW)}, 10', f's_add_u32 {s(sWo2)}, {s(sT1)}, {s(sT0)}', f's_add_u32 {s(sWo2)}, {s(sWo2)}, {WOT_OFF}',
               f's_lshl_b32 {s(sT0)}, {s(sT)}, 3', f's_lshl_b32 {s(sT1)}, {s(sQK)}, 1', f's_add_u32 {s(sT0)}, {s(sT0)}, {s(sT1)}', f's_mul_i32 {s(sT0)}, {s(sT0)}, 18',
               f's_mul_i32 {s(sT1)}, {s(sW)}, 9', f's_lshr_b32 {s(sT1)}, {s(sT1)}, 1', f's_add_u32 {s(sT0)}, {s(sT0)}, {s(sT1)}', f's_lshl_b32 {s(sT0)}, {s(sT0)}, 10',
               f's_add_u32 {s(sPq0)}, {s(sT0)}, {PQ_OFF}', f's_add_u32 {s(sPq1)}, {s(sPq0)}, {18*1024}',
               f's_and_b32 {s(sT0)}, s2, 0xfc', f's_add_u32 {s(sT0)}, {s(sT0)}, {s(sW)}', f's_lshl_b32 {s(sFl)}, {s(sT0)}, 4', f's_add_u32 {s(sFl)}, {s(sFl)}, {s(sQK)}',
               f's_lshl_b32 {s(sFl)}, {s(sFl)}, 3', f's_add_u32 {s(sFl)}, {s(sFl)}, {FLAG_OFF}',
               f's_lshl_b32 {s(sT0)}, {s(sT0)}, 2', f's_add_u32 {s(sT0)}, {s(sT0)}, {s(sQK)}', f's_mul_i32 {s(sT0)}, {s(sT0)}, 9216', f's_add_u32 {s(sPart)}, {s(sT0)}, {PART_OFF}',
               grp(f's_cmp_eq_u32 {s(sW)}, {s(sQK)}', f's_cselect_b32 {s(SP_+2)}, 0, {STAMP_OFF}'),
               f's_add_u32 {s(sSel)}, {s(sQK)}, 1', f's_and_b32 {s(sSel)}, {s(sSel)}, 3']
    k = sl.stream(82, setup2); assert k < 288 + 40, k
    B0 = 288
    for n in range(81):
        c, aa = divmod(n, 9)
        for b in range(2):
            for ks in range(4):
                cc = '0' if (c == 0 and ks == 0) else v(acc2(aa, b), 4)
                mains.append(f'v_mfma_f32_16x16x32_bf16 {v(acc2(aa,b),4)}, {a(ar(n,ks),4)}, {a(hb(c,b,ks),4)}, {cc}')
        sl.fix(B0 + 8 * n - 1, lambda n=n, c=c, aa=aa: p.need(a(ar(n, 0), 16), *([a(HBs[c % 4], 32)] if aa == 0 else [])))
        late = 0
        if aa == 7 and c < 8:
            tag = ('slot4', 'slot6', 'slot8x')[c] if c < 3 else f'w{c+1}'
            sl.fix(B0 + 8 * n - 1, lambda tag=tag: p.wait_tag(tag)); sl.fix(B0 + 8 * n, 's_barrier'); late = 1
        if aa == 1 and c <= 5: sl.fix(B0 + 8 * n - 3, 's_barrier')
        if n + 2 < 81:
            for k, x in enumerate(ard(n + 2)): sl.fix(B0 + 8 * n + 2 * k + late, x)
    if stamps: sl.fix(B0 - 1, lambda: stamp(7), cost=2)
    if stamps and 'fine' in opt:
        for c in range(1, 9): sl.fix(B0 + 72 * c - 1, lambda c=c: stamp(15 + c), cost=2)
        for c in (2, 4, 6, 8): sl.fix(32 * c - 1, lambda c=c: stamp(24 + c // 2), cost=2)
    sl.stream(B0, prod(1, 0) + prod(1, 1) + prod(1, 2) + prod(1, 3))
    JL = XV + 72; vJo, vJd, vHe, vJt = JL + 40, JL + 41, JL + 42, JL + 44
    jobs0 = [f'v_and_b32 {v(vHe)}, 15, v0', f'v_bfe_u32 {v(vJd)}, v0, 4, 2', f'v_mul_u32_u24 {v(vJo)}, {8*18*1024}, {v(vJd)}', f'v_lshl_add_u32 {v(vJo)}, {v(vHe)}, 4, {v(vJo)}',
             f'v_lshlrev_b32 {v(vJd)}, 28, {v(vJd)}', f'v_lshl_add_u32 {v(vJd)}, {v(vHe)}, 4, {v(vJd)}',
             f's_lshl_b32 {s(sCnt)}, {s(sTl)}, 4', f'v_add_u32 {v(vHe)}, {s(sCnt)}, {v(vHe)}', f'v_mul_u32_u24 {v(vHe)}, 3641, {v(vHe)}', f'v_lshrrev_b32 {v(vHe)}, 16, {v(vHe)}']
    k = sl.stream(8 * 32 + 1, jobs0, last=8 * 33 + 3)
    jobl = []
    for k in range(8):
        jobl += [f'buffer_load_dwordx4 {v(JL+4*k,4)}, {v(vJo)}, {s(SJ,4)}, {s(sJs)} offen sc1', f's_add_u32 {s(sJs)}, {s(sJs)}, {4*8*18*1024}']
    vCd, vCa, vCn = vCk, vCk + 2, vCk + 3
    pollC = f'buffer_load_dwordx2 {v(vCd,2)}, {v(vCa)}, {s(SWS,4)}, {s(sPc)} offen sc1'
    sl.spread(B0 + 6, B0 + 71, [f'v_and_b32 {v(vCn)}, 3, v0', f'v_max_u32 {v(vCa)}, 1, {v(vCn)}', f'v_lshlrev_b32 {v(vCa)}, 3, {v(vCa)}', pollC] + sdma(8, 'slot8x')[:-1] + jobl)
    kf = sl.stream(B0 + 10, fin(0, None) + fin(1, None) + fin(2, None) + fin(3, None))
    if 'nochkB' not in opt: sl.fix(B0 + 70, grp(f's_add_u32 {s(sT0)}, {s(sN+1)}, 5', check(name + '_cb', vCd, s(sT0), pollC)), cost=2)
    for c in range(1, 6):
        sl.spread(B0 + 72 * c + 6, B0 + 72 * c + 71, wdma(c + 3) + ([check(name + '_cc', vCd, v(vCn), pollC)] if c == 4 and 'nochkC' not in opt else []) + hloads(c + 2))
    k = sl.stream(B0 + 72 * 3 + 60, [f'v_lshlrev_b32 {v(vCa)}, 3, {v(vCn)}', f'v_min_u32 {v(vCn)}, 1, {v(vCn)}', f'v_lshl_add_u32 {v(vCn)}, {v(vCn)}, 1, 4', f'v_add_u32 {v(vCn)}, {s(sN+1)}, {v(vCn)}', pollC])
    assert k < B0 + 72 * 4 + 8
    assert kf < B0 + 100, kf - B0
    sl.fix(B0 + 8 * (18 + 7) - 2, lambda: p.wait_tag('h'))
    k = sl.stream(B0 + 8 * (18 + 7) + 2, progress); put2(sl, k, htouch(None))
    jobv = []
    for k in range(1, 8):
        jobv += [f'v_add_f32 {v(JL+r)}, {v(JL+r)}, {v(JL+4*k+r)}' for r in range(4)]
    for sw in ('v_permlane32_swap_b32', 'v_permlane16_swap_b32'):
        jobv += [f'v_mov_b32 {v(vJt+r)}, {v(JL+r)}' for r in range(4)]
        jobv += [f'{sw} {v(vJt+r)}, {v(JL+r)}' for r in range(4)]
        jobv += [f'v_add_f32 {v(JL+r)}, {v(JL+r)}, {v(vJt+r)}' for r in range(4)]
    k = sl.stream(max(kf, B0 + 80), jobv)
    for r in range(4):
        k = sl.stream(k, [f'v_cmp_eq_u32 vcc, {s(sHd[r])}, {v(vHe)}'])
        k = sl.stream(k + 2, [f'v_cndmask_b32 {v(JL+r)}, 0, {v(JL+r)}, vcc'])
    k = sl.stream(k, [f'v_cvt_pk_bf16_f32 {v(JL)}, {v(JL)}, {v(JL+1)}', f'v_cvt_pk_bf16_f32 {v(JL+1)}, {v(JL+2)}, {v(JL+3)}',
                      (f'buffer_store_dwordx2 {v(JL,2)}, {v(vJd)}, {s(SA,4)}, {s(sJd)} offen sc1', 'rec'), f'v_mov_b32 {v(vJt)}, {s(sN)}', f'v_mov_b32 {v(vJt+1)}, {s(sN+1)}'])
    assert k < B0 + 72 * 3 + 10, k - B0
    sl.fix(B0 + 8 * (36 + 7) - 2, lambda: p.wait_tag('rec'))
    sl.stream(B0 + 8 * (36 + 7) + 2, [f'buffer_store_dwordx2 {v(vJt,2)}, {v(vP0)}, {s(SA,4)}, {s(sRf)} offen sc1'])
    REC = lambda tl, pc: big(3 * tl + pc)
    PQ = lambda b, g: big(27 + 5 * b + g)
    def wload(f):
        pc, g = divmod(f, 18)
        return [f's_add_u32 {s(sT2)}, {s(sWo2 if pc < 2 else sW8)}, {g*36*1024 + (4096 if pc == 1 else 0)}', f'buffer_load_dwordx4 {a(wreg(f),4)}, {v(vL16)}, {s(SWS,4)}, {s(sT2)} offen sc1']
    xl = [f'buffer_load_dwordx4 {v(vXD[0],4)}, {v(vXO2)}, {s(SX,4)}, 0 offen', f'buffer_load_dwordx4 {v(vXD[1],4)}, {v(vXO2)}, {s(SX,4)}, 0 offen offset:128',
          f'buffer_load_dwordx4 {v(vXD[2],4)}, {v(vX8)}, {s(SX,4)}, 0 offen offset:256']
    pql = [f'buffer_load_dwordx4 {v(PQ(b,g),4)}, {v(vLx[g//4])}, {s(SWS,4)}, {s(sPq0 if b == 0 else sPq1)} offen offset:{1024*(g%4)} sc1' for b in range(2) for g in range(5)]
    pollR = f'buffer_load_dwordx2 {v(vCd,2)}, {v(vCa)}, {s(SWS,4)}, {s(sT3)} offen sc1'
    k0 = B0 + 72 * 6
    sl.spread(k0, k0 + 71, [f'v_and_b32 {v(vCa)}, 63, v0', f'v_min_u32 {v(vCa)}, 53, {v(vCa)}', f'v_lshlrev_b32 {v(vCa)}, 3, {v(vCa)}', f's_mul_i32 {s(sT3)}, {s(sW)}, {54*8}',
                            f's_add_u32 {s(sT3)}, {s(sT3)}, {RECF_OFF}'] + hloads(8)[:5] + [pollR] + hloads(8)[5:] + xl + pql[:4])
    if 'nochkR' not in opt: sl.fix(k0 + 72, check(name + '_cr', vCd, s(sN+1), pollR), cost=2)
    recl = []
    for f in range(27):
        if f % 12 == 0 and f: recl.append(f's_add_u32 {s(sRec)}, {s(sRec)}, 12288')
        recl.append(f'buffer_load_dwordx4 {v(big(f),4)}, {v(vLx[(f%12)//4])}, {s(SWS,4)}, {s(sRec)} offen offset:{1024*(f%4)} sc1')
    def pub(aa):
        o = acc2(aa, 0); t = TQ[aa & 1]
        return [f'v_cvt_pk_bf16_f32 {v(t+d)}, {v(o+2*d)}, {v(o+2*d+1)}' for d in range(4)] + \
               [(f'buffer_store_dwordx4 {v(t,4)}, {v(vLx[aa//4])}, {s(SP_,4)}, {s(sPart)} offen offset:{1024*(aa%4)} sc1', 'pub')]
    for aa in range(8): sl.stream(B0 + 8 * (72 + aa + 1) + 3, pub(aa))
    sl.spread(k0 + 73, B0 + 647, pql[4:] + recl)
    interleave(p, mains, sl.f)
    p.need(v(PQ(1, 4), 4))
    put(pub(8))
    stamp(8)
    e(f's_cmp_lg_u32 {s(sW)}, {s(sQK)}'); e(f's_cbranch_scc1 {name}_att')
    for u in range(18): p.raw(f'ds_write_b128 {v(vRD[2])}, {v(ACC2+4*u,4)} offset:{1024*u}')
    p.raw('s_waitcnt lgkmcnt(0)')
    p.label(f'{name}_att')
    vEp = TQ[1]
    for r in range(4): e(f'v_mov_b32 {v(vEp+r)}, {fhex(1e-6)}')
    ND = lambda tl, b, z: ACC2 + 16 * (tl % 3) + 8 * b + 4 * z
    OH = lambda tl, b: ACC2 + 48 + 4 * (tl % 2) + 2 * b
    vOW = ACC2 + 56
    e(f's_mul_i32 {s(sT0)}, {s(sW)}, 9'); e(f's_lshr_b32 {s(sT0)}, {s(sT0)}, 1'); e(f's_lshl_b32 {s(sT0)}, {s(sT0)}, 10'); e(f'v_add_u32 {v(vOW)}, {s(sT0)}, {v(vRD[1])}')
    e(f's_and_b32 {s(sT0)}, {s(sW)}, 1'); e(f's_cmp_eq_u32 {s(sT0)}, 1'); e(f's_cbranch_scc1 {name}_oodd')
    st1 = p.snapshot()
    for par in range(2):
        if par:
            p.label(f'{name}_oodd'); p.restore(st1)
        late = [wload(f) for f in range(36)]
        for step in range(11):
            m32, m16, va = [], [], []
            tl = step
            if tl < 9:
                gl = (tl + par) >> 1
                for b in range(2):
                    m32.append(f'v_mfma_f32_16x16x32_bf16 {v(ND(tl,b,0),4)}, {v(REC(tl,0),4)}, {v(PQ(b,gl),4)}, 0')
                    m32.append(f'v_mfma_f32_16x16x32_bf16 {v(ND(tl,b,1),4)}, {v(REC(tl,1),4)}, {v(PQ(b,gl),4)}, {v(vEp,4)}')
            tl = step - 1
            if 0 <= tl < 9:
                gl = (tl + par) >> 1; odd = (tl + par) & 1
                gs = gl + 1 if odd else gl - 1
                if not 0 <= gs <= 4: gs = gl
                for b in range(2):
                    half = v(PQ(b, gs) + (0 if odd else 2), 2)
                    m16.append(f'v_mfma_f32_16x16x16_bf16 {v(ND(tl,b,0),4)}, {v(REC(tl,2),2)}, {half}, {v(ND(tl,b,0),4)}')
                    m16.append(f'v_mfma_f32_16x16x16_bf16 {v(ND(tl,b,1),4)}, {v(REC(tl,2)+2,2)}, {half}, {v(ND(tl,b,1),4)}')
            tl = step - 2
            if 0 <= tl < 9:
                for b in range(2): va += [f'v_rcp_f32 {v(ND(tl,b,1)+r)}, {v(ND(tl,b,1)+r)}' for r in range(4)]
                for b in range(2):
                    va += [f'v_mul_f32 {v(ND(tl,b,0)+r)}, {v(ND(tl,b,0)+r)}, {v(ND(tl,b,1)+r)}' for r in range(4)]
                    va += [f'v_cvt_pk_bf16_f32 {v(OH(tl,b) + d)}, {v(ND(tl,b,0)+2*d)}, {v(ND(tl,b,0)+2*d+1)}' for d in range(2)]
                    va += [f'ds_write_b64 {v(vOW)}, {v(OH(tl,b),2)} offset:{b*18432 + ((tl+par)>>1)*1024 + ((tl+par)&1)*8}']
            mm = m32 + m16
            per = -(-len(va) // max(len(mm) - 1, 1))
            for i_, x in enumerate(mm):
                e(x)
                if late and len(p.vmq) < p.vm_limit and i_ % 2 == 0: put(late.pop(0))
                if i_ == 0 and len(mm) > 4: continue
                for y in va[:per]: e(y)
                va = va[per:]
            for y in va: e(y)
        while late: put(late.pop(0))
        if par == 0:
            stE = p.snapshot(); e(f's_branch {name}_odone')
        else: assert p.snapshot() == stE
    p.label(f'{name}_odone')
    stamp(9)
    tq = TQ[0]
    e(f'v_mov_b32 {v(tq)}, {s(sN)}'); e(f'v_mov_b32 {v(tq+1)}, {s(sN+1)}'); e(f'v_and_b32 {v(tq+2)}, 63, v0'); e(f'v_min_u32 {v(tq+2)}, 1, {v(tq+2)}'); e(f'v_lshlrev_b32 {v(tq+2)}, 30, {v(tq+2)}')
    p.wait_tag('pub')
    e(f'buffer_store_dwordx2 {v(tq,2)}, {v(tq+2)}, {s(SP_,4)}, {s(sFl)} offen sc1')
    p.wait_lg(0); e('s_barrier')
    OF = lambda b, g: big(18 * b + g)
    for g in range(18):
        for b in range(2): e(f'ds_read_b128 {v(OF(b,g),4)}, {v(vRD[1])} offset:{b*18432 + g*1024}')
    e(f'v_and_b32 {v(vCa)}, 3, v0'); e(f'v_cmp_eq_u32 vcc, {s(sQK)}, {v(vCa)}'); e(f'v_mov_b32 {v(vCn)}, {s(sSel)}')
    e(f's_lshl_b32 {s(sFl)}, s2, 7'); e(f's_add_u32 {s(sFl)}, {s(sFl)}, {FLAG_OFF}')
    e(f'v_cndmask_b32 {v(vCa)}, {v(vCa)}, {v(vCn)}, vcc'); e(f'v_lshlrev_b32 {v(vCa)}, 3, {v(vCa)}')
    e(f's_lshl_b32 {s(sT0)}, {s(sW)}, 10'); e(f's_mul_i32 {s(sT2)}, s2, {4*9216}'); e(f's_add_u32 {s(sT2)}, {s(sT2)}, {PART_OFF}')
    sPe = [sPq0, sPq1, sRec]
    for q in range(3):
        e(f's_add_u32 {s(sT1)}, {s(sQK)}, {q+1}'); e(f's_and_b32 {s(sT1)}, {s(sT1)}, 3'); e(f's_mul_i32 {s(sT1)}, {s(sT1)}, 9216'); e(f's_add_u32 {s(sPe[q])}, {s(sT1)}, {s(sT2)}')
    vPa0, vPa1, vOa = vEp, vEp + 1, vEp + 2
    e(f'v_add_u32 {v(vPa0)}, {s(sT0)}, {v(vL16)}'); e(f'v_add_u32 {v(vPa1)}, {s(sT0)}, {v(vLx[1])}'); e(f's_lshl_b32 {s(sT0)}, {s(sW)}, 11'); e(f'v_add_u32 {v(vOa)}, {s(sT0)}, {v(vRD[2])}')
    e(f's_mov_b32 {s(sHi)}, 0xffff0000')
    e(f's_cmp_eq_u32 {s(sW)}, {s(sSel)}'); e(f's_cbranch_scc1 {name}_three')
    st2 = p.snapshot()
    SS = lambda pc: ACC2 + 8 * pc
    DD = lambda pc: ACC2 + 24 + 8 * pc
    U = ACC2 + 48
    pollF = f'buffer_load_dwordx2 {v(vCd,2)}, {v(vCa)}, {s(SWS,4)}, {s(sFl)} offen sc1'
    for npc in (2, 3):
        if npc == 3:
            p.label(f'{name}_three'); p.restore(st2)
        late = [wload(f) for f in range(36, 54)] if npc == 3 else []
        def smm(pc, poll=False):
            for b in range(2):
                for g in range(18):
                    e(f'v_mfma_f32_16x16x32_bf16 {v(SS(pc)+4*b,4)}, {a(wreg(18*pc+g),4)}, {v(OF(b,g),4)}, {"0" if g == 0 else v(SS(pc)+4*b,4)}')
                    if poll and b == 0 and g == 8: e(pollF)
                    elif late and g % 2 == 0 and (not poll or b == 1 or g > 8): put(late.pop(0))
        smm(0, True)
        for pc in range(npc):
            for b in range(2):
                e(f'ds_read_b128 {v(DD(pc)+4*b,4)}, {v(vOa) if pc < 2 else v(vRD[2])} offset:{8192*pc + 1024*b}')
        check(f'{name}_cf{npc}', vCd, s(sN+1), pollF)()
        stamp(10)
        PE = lambda pc, q: AR + 8 + 4 * (3 * pc + q)
        for pc in range(npc):
            for q in range(3): e(f'buffer_load_dwordx4 {a(PE(pc,q),4)}, {v((vPa0, vPa1, vLx[2])[pc])}, {s(SWS,4)}, {s(sPe[q])} offen sc1')
        for pc in range(1, npc): smm(pc)
        stamp(11)
        X = ACC; G = ACC + 24; O = ACC + 40
        for pc in range(npc):
            for d in range(4):
                e(f'v_lshlrev_b32 {v(X+8*pc+2*d)}, 16, {v(vXD[pc]+d)}'); e(f'v_and_b32 {v(X+8*pc+2*d+1)}, {s(sHi)}, {v(vXD[pc]+d)}')
        for pc in range(npc):
            for q in range(3):
                for d in range(4): e(f'v_accvgpr_read_b32 {v(U+8*q+2*d+1)}, {a(PE(pc,q)+d)}')
                for d in range(4):
                    e(f'v_lshlrev_b32 {v(U+8*q+2*d)}, 16, {v(U+8*q+2*d+1)}'); e(f'v_and_b32 {v(U+8*q+2*d+1)}, {s(sHi)}, {v(U+8*q+2*d+1)}')
                for k in range(0, 8, 2): e(f'v_pk_add_f32 {v(DD(pc)+k,2)}, {v(DD(pc)+k,2)}, {v(U+8*q+k,2)}')
            for k in range(8): e(f'v_mul_f32 {v(G+k)}, {fhex(-LOG2E)}, {v(DD(pc)+k)}')
            for k in range(8): e(f'v_exp_f32 {v(G+k)}, {v(G+k)}')
            for k in range(0, 8, 2): e(f'v_pk_mul_f32 {v(DD(pc)+k,2)}, {v(DD(pc)+k,2)}, {v(SS(pc)+k,2)}')
            for k in range(8): e(f'v_add_f32 {v(G+k)}, 1.0, {v(G+k)}')
            for k in range(8): e(f'v_rcp_f32 {v(G+k)}, {v(G+k)}')
            for k in range(0, 8, 2): e(f'v_pk_mul_f32 {v(G+k,2)}, {v(G+k,2)}, {v(DD(pc)+k,2)}')
            for r in range(4): e(f'v_permlane16_swap_b32 {v(G+r)}, {v(G+4+r)}')
            for k in range(0, 8, 2): e(f'v_pk_add_f32 {v(G+k,2)}, {v(G+k,2)}, {v(X+8*pc+k,2)}')
            for d in range(4): e(f'v_cvt_pk_bf16_f32 {v(O+4*pc+d)}, {v(G+2*d)}, {v(G+2*d+1)}')
            e(f'buffer_store_dwordx4 {v(O+4*pc,4)}, {v(vXO2) if pc < 2 else v(vX8)}, {s(SO,4)}, 0 offen offset:{128*pc}')
        if stamps: p.wait_all()
        stamp(12)
        e(f's_branch {END}')
    for blk in slow:
        for x in blk: p.raw(x)
    p.label(END)
    return p, V.nxt, A.nxt, NXV
```

```python
from asmlib import *
from layout2 import *

LOG2E = 1.4426950408889634
def fhex(x):
    import struct
    return '0x%08x' % struct.unpack('<I', struct.pack('<f', x))[0]

SP0 = 147456
STX = 98304
CH = 64 * 9216

SLOT = 36864
SPIN = 20000
SALT = 0x5bd1e990

def gen(name, stamps=False, opt=()):
    p = Prog(); cap = [None]
    def e(text, tag=None, junk=False):
        if cap[0] is not None: cap[0].append((text, tag, junk))
        else: p.e(text, tag, junk)
    V = Alloc('v', 1, 256); A = Alloc('a', 0, 256); SG = Alloc('s', 56, 100)
    SX, SQ, SGt, SU, SWS, SH, SJS, SJD = 4, 8, 12, 16, 20, 24, 28, 32
    KA = 36
    sW, sI, sJ, sT, sQF, sM = (SG.get(n) for n in ('w', 'i', 'j', 't', 'qf', 'm'))
    sWo, sCnt, sM0w, sJob, sJo, sT0, sT1, sT2 = (SG.get(n) for n in ('wo', 'cnt', 'm0w', 'job', 'jo', 't0', 't1', 't2'))
    sH = SG.get('h', 4, 1); sKV = SG.get('kv', 6, 1); sSP = SG.get('sp'); sLine = SG.get('line'); sKm = SG.get('km'); sTo = SG.get('to')
    mk = [SG.get(f'mk{k}', 2) for k in range(4)]
    sSt = SG.get('st', 2); sStO = SG.get('sto'); sOnes = SG.get('ones')
    JP = [36, 37, 38, 39, 42, 43, 44, 45, 46, 47, 50, 51]
    sXp, sN, sDbg, sOp = 40, 48, 52, 54
    sInc, sIncL, sPg, sPc, sCr, sSpin = mk[0], mk[0] + 1, mk[1], mk[1] + 1, mk[2], mk[2] + 1
    sEps = mk[3]
    vJS = V.get('js'); vJT = V.get('jt'); vTg = V.get('tg')
    ACC = V.get('acc', 64); PR = V.get('prod', 32)
    vTR = V.get('tr', 6, 1); vDM = V.get('dm', 2, 1); vL16 = V.get('l16'); vJS2 = V.get('spare'); vRS = V.get('rs', 4, 2); vRS2 = V.get('rs2', 4, 2)
    vTj = V.get('tj'); vS0 = V.get('s0'); vT = V.get('tmp', 8, 4); vS1 = vT + 7
    NXV = (256 - V.nxt) // 4
    XV = V.get('xv', 4 * NXV)
    WF = A.get('wf', 24); XA = A.get('xa', 4 * (72 - NXV)); JD = A.get('jd', 64)
    fidx = lambda b, ks: 2 * ks + b if b < 2 else 36 + 2 * ks + b - 2
    def xf(b, ks):
        f = fidx(b, ks)
        return v(XV + 4 * f, 4) if f < NXV else a(XA + 4 * (f - NXV), 4)
    def xf_isv(b, ks): return fidx(b, ks) < NXV
    nstamp = [0]
    def stamp(k=None):
        if not stamps: return
        if k is None:
            k = nstamp[0]; nstamp[0] += 1
        p.wait_lg(0)
        if k == 0:
            for n_, r_ in enumerate((101, 101, 3)):
                e(f'v_mov_b32 {v(vS0)}, {s(r_)}'); e(f'v_mov_b32 {v(vS1)}, {4*(29+n_)}'); e(f'buffer_store_dword {v(vS0)}, {v(vS1)}, {s(SWS,4)}, {s(sStO)} offen')
            e(f'v_mov_b32 {v(vS0)}, s100'); e(f'v_mov_b32 {v(vS1)}, 0'); e(f'buffer_store_dword {v(vS0)}, {v(vS1)}, {s(SWS,4)}, {s(sStO)} offen offset:60')
        e(f's_memrealtime {s(sSt,2)}'); p.wait_lg(0)
        e(f'v_mov_b32 {v(vS0)}, {s(sSt)}'); e(f'v_mov_b32 {v(vS1)}, {4*k}')
        e(f'buffer_store_dword {v(vS0)}, {v(vS1)}, {s(SWS,4)}, {s(sStO)} offen')
        e(f's_memtime {s(sSt,2)}'); p.wait_lg(0)
        e(f'v_mov_b32 {v(vS0)}, {s(sSt)}')
        e(f'buffer_store_dword {v(vS0)}, {v(vS1)}, {s(SWS,4)}, {s(sStO)} offen offset:128')

    END = f'{name}_end'
    if stamps: p.raw('s_memrealtime s[100:101]')
    e('s_cmp_ge_u32 s2, 256'); e(f's_cbranch_scc1 {END}')
    e(f's_load_dwordx8 {s(KA,8)}, s[0:1], 0'); e(f's_load_dwordx8 {s(KA+8,8)}, s[0:1], 32'); e(f's_load_dwordx4 {s(KA+16,4)}, s[0:1], 64')
    T = [ACC + 32 + k for k in range(32)] + [PR + k for k in range(32)]
    vLane, vL3, vL4, vC7, vN, vI2, vB = T[0:7]
    vXO = T[8:12]; vXR = T[12:16]; vTL, vU = T[19], T[20]
    e(f'v_lshrrev_b32 {v(vB)}, 6, v0'); e(f'v_and_b32 {v(vLane)}, 63, v0')
    e(f'v_readfirstlane_b32 {s(sW)}, {v(vB)}')
    if 'nocode' not in opt:
        p.raw(f's_getpc_b64 {s(sSt,2)}'); p.label(f'{name}_pc')
        e(f's_lshr_b32 {s(sT1)}, s2, 3'); e(f's_lshl_b32 {s(sT1)}, {s(sT1)}, 2'); e(f'v_add_u32 {v(vB)}, {s(sT1)}, {v(vB)}'); e(f'v_mul_u32_u24 {v(vB)}, 5, {v(vB)}')
        e(f'v_min_u32 {v(vI2)}, 4, {v(vLane)}'); e(f'v_add_u32 {v(vB)}, {v(vB)}, {v(vI2)}'); e(f'v_lshlrev_b32 {v(vB)}, 7, {v(vB)}')
        e(f'v_min_u32 {v(vB)}, code_end - {name}_pc - 4, {v(vB)}')
        e(f'global_load_dword {v(vJS2)}, {v(vB)}, {s(sSt,2)}', junk=True)
    e(f'v_lshrrev_b32 {v(vL3)}, 3, {v(vLane)}'); e(f'v_lshrrev_b32 {v(vL4)}, 4, {v(vLane)}'); e(f'v_and_b32 {v(vC7)}, 7, {v(vLane)}')
    e(f'v_and_b32 {v(vN)}, 15, {v(vLane)}'); e(f'v_lshlrev_b32 {v(vL16)}, 4, {v(vLane)}')
    e(f's_and_b32 {s(sQF)}, s2, 3'); e(f's_bfe_u32 {s(sT0)}, s2, 0x10002'); e(f's_lshr_b32 {s(sT1)}, s2, 5')
    e(f's_lshl_b32 {s(sT0)}, {s(sT0)}, 3'); e(f's_add_u32 {s(sT)}, {s(sT0)}, {s(sT1)}'); e(f's_bfe_u32 {s(sM)}, s2, 0x20003')
    e(f's_lshr_b32 {s(sI)}, {s(sW)}, 1'); e(f's_and_b32 {s(sJ)}, {s(sW)}, 1')
    e(f's_lshl_b32 {s(sM0w)}, {s(sW)}, 12'); e(f's_add_u32 {s(sSP)}, {s(sM0w)}, {SP0}')
    e(f's_lshl_b32 {s(sT0)}, {s(sW)}, 5'); e(f'v_add_u32 {v(vB)}, {s(sT0)}, {v(vL3)}'); e(f'v_mul_u32_u24 {v(vB)}, 1152, {v(vB)}')
    for q in range(4):
        e(f'v_or_b32 {v(vI2)}, {4*(q&1)}, {v(vL4)}'); e(f'v_xor_b32 {v(vI2)}, {v(vI2)}, {v(vC7)}')
        e(f'v_lshl_add_u32 {v(vXO[q])}, {v(vI2)}, 4, {v(vB)}')
        if q: e(f'v_add_u32 {v(vXO[q])}, {8192*q}, {v(vXO[q])}')
    e(f's_mul_i32 s3, {s(sT)}, {128*1152}')
    e(f's_lshl_b32 {s(sT0)}, {s(sQF)}, 4'); e(f's_lshl_b32 {s(sT1)}, {s(sM)}, 2'); e(f's_add_u32 {s(sT0)}, {s(sT0)}, {s(sT1)}'); e(f's_add_u32 {s(sT0)}, {s(sT0)}, {s(sW)}')
    e(f's_mul_i32 {s(sT0)}, {s(sT0)}, 18'); e(f'v_min_u32 {v(vB)}, 17, {v(vLane)}'); e(f'v_add_u32 {v(vB)}, {s(sT0)}, {v(vB)}'); e(f'v_lshlrev_b32 {v(vB)}, 7, {v(vB)}')
    if stamps: p.raw(f's_memrealtime {s(sSt,2)}')
    p.wait_lg(0)
    if stamps: p.raw(f's_mov_b32 s101, {s(sSt)}')
    def srd(r, ptr, nbytes, back=0):
        if back:
            e(f's_sub_u32 {s(r)}, {s(ptr)}, {back}'); e(f's_subb_u32 {s(r+1)}, {s(ptr+1)}, 0')
        else:
            e(f's_mov_b32 {s(r)}, {s(ptr)}'); e(f's_mov_b32 {s(r+1)}, {s(ptr+1)}')
        e(f's_mov_b32 {s(r+2)}, {nbytes + back}'); e(f's_mov_b32 {s(r+3)}, 0x20000')
    slow = []
    e('s_cmp_eq_u32 s2, 0'); e(f's_cbranch_scc1 {name}_nw'); p.label(f'{name}_nn')
    slow.append([f'{name}_nw:', f's_memrealtime {s(sSt,2)}', 's_waitcnt lgkmcnt(0)', f's_lshl_b32 {s(sT1)}, {s(sSt+1)}, 4', f's_xor_b32 {s(sT1)}, {s(sT1)}, {SALT}', f's_or_b32 {s(sT2)}, {s(sSt)}, 1',
                 f'v_mov_b32 {v(vT)}, {s(sT2)}', f'v_mov_b32 {v(vT+1)}, {s(sT1)}', f'v_mov_b32 {v(vT+2)}, 0', f's_cmp_lg_u32 {s(sW)}, 0', f's_cbranch_scc1 {name}_nn',
                 f'global_store_dwordx2 {v(vT+2)}, {v(vT,2)}, {s(sDbg,2)} sc1', f's_branch {name}_nn'])
    srd(SX, KA + 0, S * D * 2)
    if 'noxt' not in opt: e(f'buffer_load_dword {v(vJS2)}, {v(vB)}, {s(SX,4)}, s3 offen', junk=True)
    SEC = {}; SEC['srd'] = cap[0] = []
    srd(SQ, KA + 2, D * 3 * D * 2, back=4096); srd(SGt, KA + 8, D * F * 2); srd(SU, KA + 10, D * F * 2, back=2048)
    srd(SWS, KA + 18, WS_USED); srd(SH, KA + 18, 0); srd(SJS, KA + 12, 0); srd(SJD, KA + 18, REC_OFF)
    if stamps:
        e(f's_lshl_b32 {s(sStO)}, s2, 2'); e(f's_add_u32 {s(sStO)}, {s(sStO)}, {s(sW)}'); e(f's_lshl_b32 {s(sStO)}, {s(sStO)}, 8'); e(f's_add_u32 {s(sStO)}, {s(sStO)}, {STAMP_OFF}')
    SEC['xr'] = cap[0] = []
    vQ = vL4
    e(f'v_lshrrev_b32 {v(vI2)}, 1, {v(vN)}'); e(f'v_xor_b32 {v(vI2)}, {v(vI2)}, {v(vQ)}'); e(f'v_lshlrev_b32 {v(vI2)}, 4, {v(vI2)}')
    e(f'v_lshl_add_u32 {v(vI2)}, {v(vN)}, 7, {v(vI2)}')
    e(f'v_add_u32 {v(vXR[0])}, {s(sM0w)}, {v(vI2)}'); e(f'v_xor_b32 {v(vXR[1])}, 64, {v(vXR[0])}')
    vONE = T[24]
    e(f's_mov_b32 {s(sOnes)}, 0x3f803f80')
    for k in range(4): e(f'v_mov_b32 {v(vONE+k)}, {s(sOnes)}')
    vXP = [T[7], T[35]]
    for kk in range(2): e(f'v_xor_b32 {v(vXP[kk])}, 4096, {v(vXR[kk])}')
    e(f'v_add_u32 {v(vXR[2])}, {s(sSP)}, {v(vL16)}'); e(f'v_xor_b32 {v(vXR[3])}, 4096, {v(vXR[2])}')
    SEC['wdma'] = cap[0] = []
    def wdma_off(dst, stride, rows_per_wave, pp, bit3):
        e(f's_mul_i32 {s(sT0)}, {s(sW)}, {rows_per_wave}'); e(f's_add_u32 {s(sT0)}, {s(sT0)}, {8*pp}')
        e(f'v_add_u32 {v(vB)}, {s(sT0)}, {v(vL3)}'); e(f'v_mul_u32_u24 {v(vB)}, {stride}, {v(vB)}')
        e(f'v_and_b32 {v(vI2)}, 1, {v(vL4)}'); e(f'v_lshlrev_b32 {v(vI2)}, 1, {v(vI2)}')
        if bit3 == 'w':
            e(f's_lshl_b32 {s(sT0)}, {s(sJ)}, 2'); e(f'v_or_b32 {v(vI2)}, {s(sT0)}, {v(vI2)}')
        elif bit3: e(f'v_or_b32 {v(vI2)}, 4, {v(vI2)}')
        e(f'v_xor_b32 {v(vI2)}, {v(vI2)}, {v(vC7)}'); e(f'v_lshl_add_u32 {v(dst)}, {v(vI2)}, 4, {v(vB)}')
        if pp: e(f'v_subrev_u32 {v(dst)}, {1024*pp}, {v(dst)}')
    wdma_off(vDM, 9216, 16, 0, 0); wdma_off(vDM + 1, 9216, 16, 1, 1)
    vQD = T[16:18]; vKD = T[18]
    wdma_off(vQD[0], 3456, 16, 0, 0); wdma_off(vQD[1], 3456, 16, 1, 1); wdma_off(vKD, 3456, 8, 0, 'w')
    e(f'v_lshrrev_b32 {v(vI2)}, 3, {v(vN)}'); e(f'v_and_b32 {v(vU)}, 1, {v(vQ)}'); e(f'v_lshl_or_b32 {v(vI2)}, {v(vU)}, 1, {v(vI2)}')
    e(f'v_lshlrev_b32 {v(vI2)}, 5, {v(vI2)}')
    e(f'v_and_b32 {v(vU)}, 3, {v(vN)}'); e(f'v_lshl_or_b32 {v(vI2)}, {v(vU)}, 3, {v(vI2)}')
    e(f'v_lshrrev_b32 {v(vU)}, 2, {v(vN)}'); e(f'v_lshl_or_b32 {v(vTL)}, {v(vU)}, 7, {v(vI2)}')
    e(f'v_lshrrev_b32 {v(vU)}, 1, {v(vQ)}'); e(f'v_lshlrev_b32 {v(vU)}, 12, {v(vU)}')
    e(f'v_and_b32 {v(vI2)}, 1, {v(vQ)}'); e(f'v_lshl_or_b32 {v(vU)}, {v(vI2)}, 10, {v(vU)}'); e(f'v_or_b32 {v(vU)}, {v(vU)}, {v(vTL)}')
    e(f's_lshl_b32 {s(sT0)}, {s(sJ)}, 6'); e(f'v_xor_b32 {v(vTR)}, {s(sT0)}, {v(vU)}'); e(f'v_xor_b32 {v(vTR+1)}, 32, {v(vTR)}')
    for r in (1, 2):
        for tt in range(2): e(f'v_add_u32 {v(vTR+2*r+tt)}, {65536*r}, {v(vTR+tt)}')
    e(f'v_lshlrev_b32 {v(vI2)}, 1, {v(vL4)}'); e(f'v_xor_b32 {v(vI2)}, {v(vI2)}, {v(vC7)}'); e(f'v_lshlrev_b32 {v(vI2)}, 4, {v(vI2)}')
    e(f'v_mul_u32_u24 {v(vU)}, 1152, {v(vL3)}'); e(f'v_add_u32 {v(vJS)}, {v(vU)}, {v(vI2)}')
    e(f'v_lshlrev_b32 {v(vU)}, 9, {v(vQ)}'); e(f'v_add_u32 {v(vU)}, {s(sSP)}, {v(vU)}'); e(f'v_add_u32 {v(vJT)}, {v(vU)}, {v(vTL)}')
    SEC['const'] = cap[0] = []
    vONE = T[24]; vSEL = T[28]; vF1 = T[34]
    assert vONE % 4 == 0 and vSEL % 4 == 0
    e(f'v_mov_b32 {v(vF1)}, 1.0')
    e(f'v_lshrrev_b32 {v(vU)}, 2, {v(vN)}'); e(f'v_cmp_eq_u32 {s(mk[0],2)}, {v(vU)}, {v(vQ)}')
    e(f'v_and_b32 {v(vU)}, 3, {v(vN)}')
    for k in (1, 2, 3): e(f'v_cmp_eq_u32 {s(mk[k],2)}, {k}, {v(vU)}')
    e(f'v_and_b32 {v(vI2)}, 1, {v(vN)}'); e(f'v_lshlrev_b32 {v(vI2)}, 4, {v(vI2)}'); e(f'v_mov_b32 {v(vB)}, 0x3f80'); e(f'v_lshlrev_b32 {v(vB)}, {v(vI2)}, {v(vB)}')
    e(f'v_cndmask_b32 {v(vB)}, 0, {v(vB)}, {s(mk[0],2)}')
    e(f'v_cmp_gt_u32 vcc, 2, {v(vU)}')
    for k in (0, 1, 4, 5): e(f'v_mov_b32 {v(vSEL+k)}, 0')
    e(f'v_cndmask_b32 {v(vSEL+2)}, 0, {v(vB)}, vcc'); e(f'v_cndmask_b32 {v(vSEL+3)}, {v(vB)}, 0, vcc')
    def ffn_dma(slot, tag=None):
        return [f's_add_u32 m0, {s(sM0w)}, {slot*16384}', None,
                (f'buffer_load_dwordx4 {v(vDM)}, {s(SGt,4)}, {s(sWo)} offen lds', tag or f'slot{slot}'),
                (f'buffer_load_dwordx4 {v(vDM+1)}, {s(SGt,4)}, {s(sWo)} offen offset:1024 lds', tag or f'slot{slot}'),
                (f'buffer_load_dwordx4 {v(vDM)}, {s(SU,4)}, {s(sWo)} offen offset:2048 lds', tag or f'slot{slot}'),
                (f'buffer_load_dwordx4 {v(vDM+1)}, {s(SU,4)}, {s(sWo)} offen offset:3072 lds', tag or f'slot{slot}'),
                f's_add_u32 {s(sWo)}, {s(sWo)}, {CH}']
    def put(lst):
        for x in lst:
            if x is None: continue
            if callable(x): x()
            elif isinstance(x, tuple): e(x[0], x[1])
            else: e(x)
    def kv_dma(ks, vk):
        slot = ks % 6; out = []
        for st in range(6):
            if st % 4 == 0: out.append(f's_add_u32 m0, {s(sKm)}, {slot*24576 + (st//4)*4096}')
            out.append((f'buffer_load_dwordx4 {v(vk)}, {s(SQ,4)}, {s(sKV+st)} offen offset:{1024*(st%4)} lds', f'kv{ks}'))
            out.append(f's_add_u32 {s(sKV+st)}, {s(sKV+st)}, {32*3456}')
        return out
    SEC['scal'] = cap[0] = []
    e(f's_mul_i32 {s(sT0)}, {s(sM)}, 5'); e(f's_sub_u32 {s(sT0)}, {s(sT0)}, 2'); e(f's_max_i32 {s(sT0)}, {s(sT0)}, 0')
    e(f's_mul_i32 {s(sT1)}, {s(sQF)}, 18'); e(f's_add_u32 {s(sT0)}, {s(sT0)}, {s(sT1)}')
    e(f's_lshl_b32 {s(sWo)}, {s(sT0)}, 7')
    e(f's_sub_u32 {s(sT0)}, {s(sM)}, 4'); e(f's_cmp_eq_u32 {s(sM)}, 0'); e(f's_cselect_b32 {s(sT0)}, 11, {s(sT0)}')
    e(f's_add_u32 {s(sT0)}, {s(sT0)}, {s(sT1)}'); e(f's_lshl_b32 {s(sT0)}, {s(sT0)}, 1'); e(f's_add_u32 {s(sT0)}, {s(sT0)}, {s(sJ)}')
    e(f's_lshl_b32 {s(sT1)}, {s(sT)}, 3'); e(f's_lshl_b32 {s(sT2)}, {s(sI)}, 2'); e(f's_add_u32 {s(sT1)}, {s(sT1)}, {s(sT2)}')
    e(f's_lshl_b32 {s(sT2)}, {s(sJ)}, 1')
    sTB = [SG.get(f'tb{b}') for b in range(4)]
    for b in range(4):
        e(f's_xor_b32 {s(sTB[b])}, {s(sT2)}, {b}'); e(f's_add_u32 {s(sTB[b])}, {s(sTB[b])}, {s(sT1)}')
        e(f's_mul_i32 {s(sH+b)}, {s(sTB[b])}, 144'); e(f's_add_u32 {s(sH+b)}, {s(sH+b)}, {s(sT0)}'); e(f's_lshl_b32 {s(sH+b)}, {s(sH+b)}, 10')
    e(f's_cmp_eq_u32 {s(sM)}, 0'); e(f's_cselect_b32 {s(sCnt)}, 2, 4')
    e(f's_lshr_b32 {s(sT0)}, s2, 5'); e(f's_and_b32 {s(sT1)}, s2, 7'); e(f's_lshl_b32 {s(sT0)}, {s(sT0)}, 3'); e(f's_add_u32 {s(sT0)}, {s(sT0)}, {s(sT1)}')
    e(f's_mul_i32 {s(sT0)}, {s(sT0)}, 3'); e(f's_add_u32 {s(sT0)}, {s(sT0)}, {s(sM)}'); e(f's_sub_u32 {s(sT0)}, {s(sT0)}, 1')
    e(f's_lshl_b32 {s(sT0)}, {s(sT0)}, 2'); e(f's_add_u32 {s(sJob)}, {s(sT0)}, {s(sW)}')
    e(f's_cmp_eq_u32 {s(sM)}, 0'); e(f's_cselect_b32 {s(sJob)}, 4096, {s(sJob)}')
    e(f's_mov_b32 {s(sOp)}, {s(KA+14)}'); e(f's_mov_b32 {s(sOp+1)}, {s(KA+15)}')
    e(f's_mul_i32 {s(sLine)}, {s(sQF)}, 3'); e(f's_add_u32 {s(sLine)}, {s(sLine)}, {s(sM)}'); e(f's_sub_u32 {s(sLine)}, {s(sLine)}, 1')
    SEC['jobs'] = cap[0] = []
    for n in range(2):
        jb = JP[6 * n: 6 * n + 6]
        e(f's_mov_b32 {s(jb[2])}, {F*D*2}')
        e(f's_cmp_lt_u32 {s(sJob)}, {NJOB_WD}')
        e(f's_cselect_b32 {s(jb[0])}, {s(KA+12)}, {s(KA+4)}'); e(f's_cselect_b32 {s(jb[1])}, {s(KA+13)}, {s(KA+5)}')
        e(f's_cselect_b32 {s(jb[2])}, {s(jb[2])}, {D*D*2}'); e(f's_cselect_b32 {s(sT0)}, 0, {NJOB_WD}')
        e(f's_sub_u32 {s(sT0)}, {s(sJob)}, {s(sT0)}'); e(f's_mul_i32 {s(sT1)}, {s(sT0)}, 7282'); e(f's_lshr_b32 {s(sT1)}, {s(sT1)}, 16')
        e(f's_mul_i32 {s(jb[3])}, {s(sT1)}, {32*1152 - 9*128}'); e(f's_lshl_b32 {s(sT2)}, {s(sT0)}, 7'); e(f's_add_u32 {s(jb[3])}, {s(jb[3])}, {s(sT2)}')
        e(f's_mul_i32 {s(sT2)}, {s(sT1)}, 9'); e(f's_sub_u32 {s(sT0)}, {s(sT0)}, {s(sT2)}'); e(f's_lshl_b32 {s(sT0)}, {s(sT0)}, 2')
        e(f's_mul_i32 {s(sJo)}, {s(sT0)}, 7282'); e(f's_lshr_b32 {s(sJo)}, {s(sJo)}, 16')
        e(f's_mul_i32 {s(sT2)}, {s(sJo)}, 9'); e(f's_sub_u32 {s(sT0)}, {s(sT0)}, {s(sT2)}')
        e(f's_sub_u32 {s(jb[5])}, 9, {s(sT0)}')
        e(f's_mul_i32 {s(sJo)}, {s(sJo)}, {144*9}'); e(f's_add_u32 {s(sJo)}, {s(sJo)}, {s(sT0)}')
        e(f's_mul_i32 {s(sT0)}, {s(sT1)}, 1821'); e(f's_lshr_b32 {s(sT0)}, {s(sT0)}, 16'); e(f's_mul_i32 {s(sT0)}, {s(sT0)}, 36')
        e(f's_sub_u32 {s(sT1)}, {s(sT1)}, {s(sT0)}'); e(f's_and_b32 {s(sT2)}, {s(sT1)}, 1'); e(f's_add_u32 {s(sT0)}, {s(sT0)}, {s(sT2)}'); e(f's_lshr_b32 {s(sT1)}, {s(sT1)}, 1')
        e(f's_mul_i32 {s(sT2)}, {s(sT1)}, 5')
        lo = sum(pos_of_double(d) << (5 * d) for d in range(6)); mi = sum(pos_of_double(6 + d) << (5 * d) for d in range(6)); hi = sum(pos_of_double(12 + d) << (5 * d) for d in range(6))
        e(f's_mov_b32 {s(jb[4])}, {lo}'); e(f's_cmp_ge_u32 {s(sT1)}, 6'); e(f's_cselect_b32 {s(jb[4])}, {mi}, {s(jb[4])}'); e(f's_cselect_b32 {s(mk[3])}, 30, 0')
        e(f's_cmp_ge_u32 {s(sT1)}, 12'); e(f's_cselect_b32 {s(jb[4])}, {hi}, {s(jb[4])}'); e(f's_cselect_b32 {s(mk[3])}, 60, {s(mk[3])}')
        e(f's_sub_u32 {s(sT2)}, {s(sT2)}, {s(mk[3])}'); e(f's_lshr_b32 {s(jb[4])}, {s(jb[4])}, {s(sT2)}'); e(f's_and_b32 {s(jb[4])}, {s(jb[4])}, 31')
        e(f's_lshl_b32 {s(jb[4])}, {s(jb[4])}, 1'); e(f's_add_u32 {s(sT0)}, {s(sT0)}, {s(jb[4])}'); e(f's_mul_i32 {s(sT0)}, {s(sT0)}, 9'); e(f's_add_u32 {s(sT0)}, {s(sT0)}, {s(sJo)}')
        e(f's_lshl_b32 {s(sT0)}, {s(sT0)}, 10'); e(f's_lshl_b32 {s(sT1)}, {s(sJob)}, 12')
        e(f's_cmp_lt_u32 {s(sJob)}, {NJOB_WD}'); e(f's_cselect_b32 {s(sT0)}, {s(sT0)}, {s(sT1)}'); e(f's_cselect_b32 {s(jb[5])}, {s(jb[5])}, 9')
        e(f's_add_u32 {s(jb[4])}, {s(sT0)}, {WT_OFF}'); e(f's_add_u32 {s(jb[5])}, {s(jb[5])}, {REC_OFF}')
        e(f's_cmp_lt_u32 {s(sJob)}, {NJOB}'); e(f's_cselect_b32 {s(jb[2])}, {s(jb[2])}, 0'); e(f's_cselect_b32 {s(jb[5])}, {s(jb[5])}, 0')
        if n == 0: e(f's_add_u32 {s(sJob)}, {s(sJob)}, 768')
    e(f's_mov_b32 {s(sXp)}, {s(SX)}'); e(f's_mov_b32 {s(sXp+1)}, {s(SX+1)}')
    SEC['type'] = cap[0] = []
    QB = 73728
    sQo = sKV
    e(f's_lshl_b32 {s(sT0)}, {s(sQF)}, 8')
    for st in range(6):
        e(f's_add_u32 {s(sKV+st)}, {s(sT0)}, {4096 + 1152*(1 + st//3) + 128*(st%3) - 1024*(st%4)}')
    e(f's_mul_i32 {s(sKm)}, {s(sW)}, 6144')
    e(f's_lshl_b32 {s(sT0)}, {s(sLine)}, 7'); e(f's_add_u32 {s(sT0)}, {s(sT0)}, 4096'); e(f's_lshr_b32 {s(sT1)}, {s(sM0w)}, 1')
    e(f's_cmp_eq_u32 {s(sM)}, 0'); e(f's_cselect_b32 {s(sKV)}, {s(sKV)}, {s(sT0)}'); e(f's_cselect_b32 {s(sKm)}, {s(sKm)}, {s(sT1)}')
    SEC['touch'] = cap[0] = []
    vTq = T[21]
    e(f's_cmp_lt_u32 {s(sW)}, 2'); e(f's_cselect_b32 {s(SH)}, {s(SGt)}, {s(SU)}'); e(f's_cselect_b32 {s(SH+1)}, {s(SGt+1)}, {s(SU+1)}')
    e(f's_cselect_b32 {s(sT0)}, 0, 2048'); e(f's_add_u32 {s(SH+2)}, {s(sT0)}, {D*F*2}')
    e(f's_add_u32 {s(sTo)}, {s(sWo)}, {s(sT0)}')
    e(f's_mul_i32 {s(sT0)}, {s(sT)}, 36'); e(f's_mul_i32 {s(sT1)}, {s(sJ)}, 18'); e(f's_add_u32 {s(sT1)}, {s(sT1)}, {s(sT0)}')
    e(f'v_add_u32 {v(vU)}, {s(sT1)}, {v(vLane)}'); e(f'v_mul_u32_u24 {v(vU)}, 9216, {v(vU)}'); e(f'v_mov_b32 {v(vI2)}, 0x40000000')
    e(f'v_cmp_gt_u32 vcc, 18, {v(vLane)}'); e(f'v_cndmask_b32 {v(vTg)}, {v(vI2)}, {v(vU)}, vcc')
    e(f'v_mul_u32_u24 {v(vU)}, 57, {v(vLane)}'); e(f'v_lshrrev_b32 {v(vU)}, 9, {v(vU)}')
    e(f'v_mul_u32_u24 {v(vB)}, 9, {v(vU)}'); e(f'v_sub_u32 {v(vB)}, {v(vLane)}, {v(vB)}')
    e(f's_mul_i32 {s(sT1)}, {s(sW)}, 9'); e(f's_add_u32 {s(sT1)}, {s(sT1)}, {s(sT0)}'); e(f'v_add_u32 {v(vB)}, {s(sT1)}, {v(vB)}'); e(f'v_mul_u32_u24 {v(vB)}, 3456, {v(vB)}')
    e(f'v_lshl_add_u32 {v(vB)}, {v(vU)}, 7, {v(vB)}'); e(f'v_cmp_lt_u32 vcc, 2, {v(vU)}'); e(f'v_add_u32 {v(vTq)}, {1152 - 384}, {v(vB)}'); e(f'v_cndmask_b32 {v(vB)}, {v(vB)}, {v(vTq)}, vcc')
    e(f's_cmp_lt_u32 {s(sLine)}, 9'); e(f's_cselect_b32 {s(sT1)}, 1, 0'); e(f's_cmp_eq_u32 {s(sM)}, 0'); e(f's_cselect_b32 {s(sT1)}, 6, {s(sT1)}')
    e(f'v_cmp_gt_u32 vcc, {s(sT1)}, {v(vU)}'); e(f'v_cndmask_b32 {v(vTq)}, {v(vI2)}, {v(vB)}, vcc')
    junk = lambda t: (lambda: e(t, junk=True))
    def gtouch(r=SX): return [junk(f'buffer_load_dword {v(vJS2)}, {v(vTg)}, {s(r,4)}, {s(sTo)} offen'), f's_add_u32 {s(sTo)}, {s(sTo)}, 128']
    e(f'v_mul_u32_u24 {v(vU)}, 1152, {v(vLane)}'); e(f'v_cmp_gt_u32 vcc, 32, {v(vLane)}'); e(f'v_cndmask_b32 {v(vTj)}, {v(vI2)}, {v(vU)}, vcc')
    def jtouch(): return [f's_mov_b32 {s(SJS+q)}, {s(JP[q])}' for q in range(3)] + ([] if 'nojt' in opt else [junk(f'buffer_load_dword {v(vJS2)}, {v(vTj)}, {s(SJS,4)}, {s(JP[3])} offen')])
    touches = gtouch() + jtouch()
    if 'notouch' in opt: touches = jtouch()[:3]
    else: put([junk(f'buffer_load_dword {v(vJS2)}, {v(vTq)}, {s(SQ,4)}, {s(sKV)} offen')] + gtouch(SH))
    SEC['late'] = cap[0] = []
    for q in range(3): e(f's_mov_b32 {s(SX+q)}, {s(SH+q)}')
    e(f's_mov_b32 {s(SH)}, {s(SWS)}'); e(f's_mov_b32 {s(SH+1)}, {s(SWS+1)}'); e(f's_mov_b32 {s(SH+2)}, 0')
    SUM = lambda b: ACC + 4 * b
    SQ_ = lambda b: ACC + 16 + 4 * b
    pend = []
    def stats(b, ks):
        c0 = '0' if ks == 0 else v(SUM(b), 4); c1 = '0' if ks == 0 else v(SQ_(b), 4)
        e(f'v_mfma_f32_16x16x32_bf16 {v(SUM(b),4)}, {v(vONE,4)}, {xf(b,ks)}, {c0}')
        e(f'v_mfma_f32_16x16x32_bf16 {v(SQ_(b),4)}, {xf(b,ks)}, {xf(b,ks)}, {c1}')
    cap[0] = None
    tv = [x for x in SEC['touch'] if x[0].startswith('buffer_load')]; ta = [x for x in SEC['touch'] if x[0].startswith('s_add_u32 ' + s(sTo) + ', ' + s(sTo))]
    SEC['touch'] = [x for x in SEC['touch'] if x not in tv and x not in ta]
    SETA = sum((SEC[n] for n in ('srd', 'xr', 'scal', 'type', 'wdma', 'jobs', 'touch', 'const')), []); SETB = tv + ta + SEC['late']
    def scc_safe(L):
        for t, _, _ in L:
            mn = t.split()[0]
            if mn.startswith(('s_cselect', 's_addc', 's_subb')): return False
            if mn.startswith('s_') and not mn.startswith(('s_mov', 's_mul')): return True
        return True
    def some(L, n):
        while L and (n > 0 or not scc_safe(L)):
            e(*L.pop(0)); n -= 1
    def xline(l):
        nonlocal pend
        p.wait_tag(f'x{l}')
        if l in (4, 8):
            for k in range(2): e(f'v_add_u32 {v(vXR[k])}, 65536, {v(vXR[k])}')
        cur = []
        for kk in range(2):
            for b in range(2):
                e(f'ds_read_b128 {xf(b, 2*l+kk)}, {v(vXR[kk])} offset:{(l%4)*16384 + b*2048}')
                cur.append((b, 2 * l + kk))
        if l % 3 == 2:
            e('s_barrier')
            for l2 in range(l - 2, l + 1):
                if l2 in (4, 8):
                    for k in range(2): prd.append(f'v_add_u32 {v(vXP[k])}, 65536, {v(vXP[k])}')
                prd.extend(f'ds_read_b128 {xf(2 + b, 2*l2+kk)}, {v(vXP[kk])} offset:{(l2%4)*16384 + b*2048}' for kk in range(2) for b in range(2))
        old, pend = pend, cur
        return old
    prd = []
    def someP(n):
        for _ in range(n):
            if prd: e(prd.pop(0))
    LAG = 4
    per = -(-len(SETA) // 36)
    for l in range(9):
        e(f's_add_u32 m0, {s(sM0w)}, {l*16384}')
        if l: e('s_add_u32 s3, s3, 128')
        todo = xline(l - LAG) if l >= LAG else []
        for q in range(4):
            e(f'buffer_load_dwordx4 {v(vXO[q])}, {s(SX,4)}, s3 offen offset:{1024*q} lds', tag=f'x{l}')
            if todo: stats(*todo.pop(0))
            someP(1); some(SETA, per)
    if stamps: p.raw(f's_memrealtime {s(sSt,2)}'); p.raw('s_waitcnt lgkmcnt(0)'); p.raw(f's_mov_b32 s3, {s(sSt)}')
    some(SETA, 999)
    if 'tend' not in opt: some(SETB, 999)
    for l in range(9 - LAG, 9):
        todo = xline(l)
        while todo:
            stats(*todo.pop(0)); someP(2)
    while pend:
        stats(*pend.pop(0)); someP(3)
    some(SETB, 999); someP(99)
    stamp()
    for b in range(2):
        for r in range(4): e(f'v_mul_f32 {v(SUM(b)+r)}, {fhex(-1.0/576)}, {v(SUM(b)+r)}')
        e(f'ds_write_b128 {v(vXR[2])}, {v(SUM(b),4)} offset:{1024*b}')
    p.wait_lg(0); e('s_barrier')
    for b in range(2): e(f'ds_read_b128 {v(SUM(2+b),4)}, {v(vXR[3])} offset:{1024*b}')
    stamp()
    st0 = p.snapshot()
    tmpv = T[36]
    CT = [T[40 + 8 * k] for k in range(3)]
    order = [(b, ks) for ks in range(18) for b in range(2)] + [(2 + b, ks) for ks in range(18) for b in range(2)]
    vNn, vNz = T[22], T[38]
    def center(mem, lab):
        e(f'v_mov_b32 {v(vNz)}, 0'); e(f'global_load_dwordx2 {v(vNn,2)}, {v(vNz)}, {s(sDbg,2)} sc1')
        mem = [x for x in mem if x]
        nm = sum(1 for x in mem if not isinstance(x, str)); done = [0]
        def one():
            while mem:
                x = mem.pop(0); put([x])
                if not isinstance(x, str):
                    done[0] += 1; break
        extra = []
        for b in range(2):
            q_ = SQ_(b)
            extra += [f'v_cndmask_b32 {v(tmpv+b)}, {v(q_)}, {v(q_+1)}, {s(mk[1],2)}', f'v_cndmask_b32 {v(tmpv+b)}, {v(tmpv+b)}, {v(q_+2)}, {s(mk[2],2)}',
                      f'v_cndmask_b32 {v(tmpv+b)}, {v(tmpv+b)}, {v(q_+3)}, {s(mk[3],2)}', f'v_cndmask_b32 {v(tmpv+b)}, 0, {v(tmpv+b)}, {s(mk[0],2)}']
        extra += [None] + [f'v_mfma_f32_16x16x4_f32 {v(SQ_(b),4)}, {v(vF1)}, {v(tmpv+b)}, 0' for b in range(2)]
        extra += [f'v_mul_f32 {v(tmpv+b)}, {v(SUM(b))}, {v(SUM(b))}' for b in range(2)] + [f's_mov_b32 {s(sT0)}, {fhex(1.0/576)}', None]
        for b in range(2):
            extra += [f'v_fma_f32 {v(tmpv+b)}, {v(SQ_(b))}, {s(sT0)}, -{v(tmpv+b)}', f'v_max_f32 {v(tmpv+b)}, 0, {v(tmpv+b)}',
                      f'v_add_f32 {v(tmpv+b)}, {fhex(1e-5)}, {v(tmpv+b)}', f'v_rsq_f32 {v(vRS+b)}, {v(tmpv+b)}', f'v_rcp_f32 {v(vRS2+b)}, {v(tmpv+b)}']
        extra += [f'ds_write_b64 {v(vXR[2])}, {v(vRS,2)} offset:2048', f'ds_write_b64 {v(vXR[2])}, {v(vRS2,2)} offset:2056', None, None, None,
                  lambda: (p.wait_lg(0), e('s_barrier')), f'ds_read_b64 {v(vRS+2,2)}, {v(vXR[3])} offset:2048', f'ds_read_b64 {v(vRS2+2,2)}, {v(vXR[3])} offset:2056']
        for n in range(72 + 2):
            pk = [[], [], [], []]; m = [None, None]
            if n < 72:
                b, ks = order[n]; t = CT[n % 3]
                m = [f'v_mfma_f32_16x16x32_bf16 {v(t,4)}, {v(vSEL+2,4)}, {xf(b,ks)}, {v(SUM(b),4)}',
                     f'v_mfma_f32_16x16x32_bf16 {v(t+4,4)}, {v(vSEL,4)}, {xf(b,ks)}, {v(SUM(b),4)}']
            if n >= 2:
                b, ks = order[n - 2]; t = CT[(n - 2) % 3]; f = fidx(b, ks)
                for d in range(4):
                    if f < NXV: pk[d] = [f'v_cvt_pk_bf16_f32 {v(XV + 4*f + d)}, {v(t+2*d)}, {v(t+2*d+1)}']
                    else: pk[d] = [f'v_cvt_pk_bf16_f32 {v(t+2*d)}, {v(t+2*d)}, {v(t+2*d+1)}', f'v_accvgpr_write_b32 {a(XA + 4*(f-NXV) + d)}, {v(t+2*d)}']
            put([m[0]] + pk[0] + pk[1] + [m[1]] + pk[2] + pk[3])
            if extra: put([extra.pop(0)])
            if done[0] * 66 < nm * (n + 1): one()
        assert not extra
        while mem: one()
        e(f'v_readfirstlane_b32 {s(sN)}, {v(vNn)}'); e(f'v_readfirstlane_b32 {s(sN+1)}, {v(vNn+1)}')
        e(f's_cmp_eq_u32 {s(sN)}, 0'); e(f's_cbranch_scc1 {lab}_nw'); p.label(f'{lab}_nd')
        slow.append([f'{lab}_nw:', f's_mov_b32 {s(sSpin)}, {SPIN}', f'{lab}_nw2:', f'global_load_dwordx2 {v(vNn,2)}, {v(vNz)}, {s(sDbg,2)} sc1', 's_waitcnt vmcnt(0)',
                     f'v_readfirstlane_b32 {s(sN)}, {v(vNn)}', f'v_readfirstlane_b32 {s(sN+1)}, {v(vNn+1)}', f's_sub_u32 {s(sSpin)}, {s(sSpin)}, 1',
                     f's_cmp_lg_u32 {s(sN)}, 0', f's_cbranch_scc1 {lab}_nd', f's_cmp_lg_u32 {s(sSpin)}, 0', f's_cbranch_scc1 {lab}_nw2', f's_branch {lab}_nd'])
        stamp(2)
    def q_dma(c):
        return [f's_add_u32 m0, {s(sKm)}, {QB + 8192*c}', (f'buffer_load_dwordx4 {v(vQD[0])}, {s(SQ,4)}, {s(sQo)} offen lds', f'q{c}'),
                (f'buffer_load_dwordx4 {v(vQD[1])}, {s(SQ,4)}, {s(sQo)} offen offset:1024 lds', f'q{c}'), f's_add_u32 {s(sQo)}, {s(sQo)}, {64*3456}']
    e(f's_cmp_eq_u32 {s(sM)}, 0'); e(f's_cbranch_scc1 {name}_kv')
    e(f's_cmp_lt_u32 {s(sLine)}, 9'); e(f's_cbranch_scc1 {name}_q')
    center([x for c in range(8) for x in ffn_dma(c)] + touches, name + '_f')
    stF = p.snapshot(); stF = (stF[0], [x for x in stF[1] if str(x[1]).startswith('slot')])
    e(f's_branch {name}_hdr')

    def phi2(x, rs, rsl, t):
        return [f'v_pk_mul_f32 {v(t,2)}, {v(x,2)}, {v(rsl[0],2)}{rsl[1]}', f'v_pk_fma_f32 {v(x,2)}, {v(x,2)}, {v(rs[0],2)}, {s(sEps,2)}{rs[2]}',
                f'v_exp_f32_e64 {v(t)}, {v(t)} clamp', f'v_exp_f32_e64 {v(t+1)}, {v(t+1)} clamp',
                f'v_max_f32 {v(x)}, {s(sEps)}, {v(x)}', f'v_max_f32 {v(x+1)}, {s(sEps)}, {v(x+1)}', f'v_pk_add_f32 {v(x,2)}, {v(x,2)}, {v(t,2)}']
    def bc(reg):
        h = reg & 1
        return (reg & ~1, f' op_sel:[0,{h}] op_sel_hi:[1,{h}]', f' op_sel:[0,{h},0] op_sel_hi:[1,{h},1]')
    pr = lambda reg: (reg, '', '')
    def weave(seqs, between=None):
        for k in range(max(map(len, seqs))):
            for sq in seqs:
                if k < len(sq): e(sq[k])
            if between: between()
    def set_eps(): e(f's_mov_b32 {s(sEps)}, {fhex(1e-6)}'); e(f's_mov_b32 {s(sEps+1)}, {fhex(1e-6)}')
    wf = lambda g, kk: a(WF + 8 * (g % 3) + 4 * kk, 4)
    def tr4(g, base_reg, off, kstride):
        out = []
        for kk in range(2):
            for h in range(2):
                out.append(f'ds_read_b64_tr_b16 {a(WF + 8*(g%3) + 4*kk + 2*h, 2)}, {v(base_reg)} offset:{off + kk*kstride + h*512}')
        return out
    p.label(f'{name}_q'); p.restore(st0)
    center([x for c in range(9) for x in q_dma(c)] + [x for c in range(4) for x in ffn_dma(c)] + touches, name + '_qq')
    vQT = [ACC + 0, ACC + 1]
    e(f'v_lshrrev_b32 {v(ACC+2)}, 5, v0'); e(f'v_and_b32 {v(ACC+2)}, 1, {v(ACC+2)}'); e(f'v_lshlrev_b32 {v(ACC+2)}, 11, {v(ACC+2)}')
    e(f'v_subrev_u32 {v(ACC+2)}, {QB}, {v(ACC+2)}')
    for tt in range(2): e(f'v_sub_u32 {v(vQT[tt])}, {v(vTR+tt)}, {v(ACC+2)}')
    p.wait_tag('q8'); e('s_barrier')
    qtr = lambda g: tr4(g, vQT[g % 2], ((g // 2) % 4) * 8192 + (32768 if g // 2 == 8 else 0), 4096)
    for x in qtr(0) + qtr(1): e(x)
    nxt_slot = 4
    for g in range(18):
        c, tt = g // 2, g % 2
        mains = []; sl = Slots(8)
        for b in range(4):
            for kk in range(2):
                acc = PR + 16 * tt + 4 * b
                cc = '0' if (c == 0 and kk == 0) else v(acc, 4)
                mains.append(f'v_mfma_f32_16x16x32_bf16 {v(acc,4)}, {wf(g,kk)}, {xf(b, 2*c+kk)}, {cc}')
        sl.fix(-1, lambda g=g: p.need(a(WF + 8 * (g % 3), 8)))
        if g in (2, 6, 10, 14): sl.fix(-1, 's_barrier')
        if g + 2 < 18:
            if g + 2 == 8:
                for tt2 in range(2): sl.fix(-1, f'v_add_u32 {v(vQT[tt2])}, 32768, {v(vQT[tt2])}')
            for k, x in enumerate(qtr(g + 2)): sl.fix(2 * k, x)
        if g in (2, 6, 10, 14):
            sl.stream(0, [x for x in ffn_dma(nxt_slot) if x]); nxt_slot += 1
        interleave(p, mains, sl.f)
    stamp(3)
    qtail = []
    set_eps()
    for b in range(4): e(f'v_mul_f32 {v(ACC+4+b)}, {fhex(LOG2E)}, {v(vRS+b)}')
    for b in range(4):
        weave([phi2(PR + 16 * tt + 4 * b + r, bc(vRS + b), bc(ACC + 4 + b), ACC + 8 + 4 * tt + r) for tt in range(2) for r in (0, 2)],
              lambda: put([qtail.pop(0)]) if qtail else None)
        o = PR + 4 * b
        e(f'v_cvt_pk_bf16_f32 {v(o)}, {v(o)}, {v(o+1)}'); e(f'v_cvt_pk_bf16_f32 {v(o+1)}, {v(o+2)}, {v(o+3)}')
        e(f'v_cvt_pk_bf16_f32 {v(o+2)}, {v(o+16)}, {v(o+17)}'); e(f'v_cvt_pk_bf16_f32 {v(o+3)}, {v(o+18)}, {v(o+19)}')
        e(f's_mul_i32 {s(sT0)}, {s(sTB[b])}, 18'); e(f's_lshl_b32 {s(sT2)}, {s(sLine)}, 1'); e(f's_add_u32 {s(sT0)}, {s(sT0)}, {s(sT2)}'); e(f's_add_u32 {s(sT0)}, {s(sT0)}, {s(sJ)}')
        e(f's_lshl_b32 {s(sT0)}, {s(sT0)}, 10'); e(f's_add_u32 {s(sT0)}, {s(sT0)}, {PQ_OFF}')
        e(f'buffer_store_dwordx4 {v(o,4)}, {v(vL16)}, {s(SWS,4)}, {s(sT0)} offen sc1')
    assert not qtail
    e(f's_branch {name}_hdr')
    p.label(f'{name}_kv'); p.restore(st0)
    center([x for ks in range(6) for x in kv_dma(ks, vKD)] + touches, name + '_kk')
    def kacc(ct, b):
        if ct >= 5: return ('v', ACC + 16 * (ct - 5) + 4 * b)
        return ('v', ACC + 80 + 4 * b) if ct == 0 else ('a', JD + 16 * (ct - 1) + 4 * b)
    vKT = [vT + k for k in range(4)]
    e(f'v_and_b32 {v(vT+4)}, 15, v0'); e(f'v_lshlrev_b32 {v(vT+4)}, 2, {v(vT+4)}'); e(f'v_add_u32 {v(vT+4)}, {s(sSP)}, {v(vT+4)}')
    e(f'v_bfe_u32 {v(vT+5)}, v0, 4, 2'); e(f'v_mul_u32_u24 {v(vT+5)}, 6144, {v(vT+5)}')
    e(f'v_and_b32 {v(vT+6)}, 0x1ff, {v(vTR)}'); e(f's_lshl_b32 {s(sT0)}, {s(sJ)}, 6'); e(f'v_xor_b32 {v(vT+6)}, {s(sT0)}, {v(vT+6)}')
    for u in range(4):
        e(f's_add_u32 {s(sT0)}, {s(sQF)}, {u}'); e(f's_and_b32 {s(sT1)}, {s(sT0)}, 3'); e(f's_lshl_b32 {s(sT1)}, {s(sT1)}, 5')
        e(f's_lshr_b32 {s(sT0)}, {s(sT0)}, 2'); e(f's_add_u32 {s(sT0)}, {s(sT0)}, {s(sJ)}'); e(f's_lshl_b32 {s(sT0)}, {s(sT0)}, 10')
        e(f'v_xor_b32 {v(vKT[u])}, {s(sT1)}, {v(vT+6)}'); e(f'v_add3_u32 {v(vKT[u])}, {v(vKT[u])}, {s(sT0)}, {v(vT+5)}')
    vKD2 = vT + 6
    e(f'v_mov_b32 {v(vKD2)}, {v(vKD)}')
    NR, LA = 6, 3
    kfr = lambda n: WF + 4 * (n % NR)
    def ktr(n):
        ks, ct = divmod(n, 10); aa = ct % 5
        off = (ks % 2) * 24576 + (aa // 4) * 1024 + (ct // 5) * 3072
        return [f'ds_read_b64_tr_b16 {a(kfr(n) + 2*h, 2)}, {v(vKT[aa % 4])} offset:{off + 512*h}' for h in range(2)]
    p.wait_tag('kv0'); e('s_barrier')
    for n in range(LA):
        for x in ktr(n): e(x)
    ffn_at = {14: [0], 15: [1, 2], 16: [3], 17: [4, 5]}
    for ks in range(18):
        mains = []; sl = Slots(40)
        for ct in range(10):
            n = ks * 10 + ct
            for b in range(4):
                kd, base = kacc(ct, b); acc = R(kd, base, 4)
                mains.append(f'v_mfma_f32_16x16x32_bf16 {acc}, {xf(b,ks)}, {a(kfr(n),4)}, {"0" if ks == 0 else acc}')
            sl.fix(4 * ct - 1, lambda n=n: p.need(a(kfr(n), 4)))
            if n + LA < 180:
                if (n + LA) % 10 == 0:
                    nk = (n + LA) // 10
                    sl.fix(4 * ct - 1, lambda nk=nk: p.wait_tag(f'kv{nk}')); sl.fix(4 * ct, 's_barrier')
                    if nk % 2 == 0:
                        dlt = 49152 if nk % 6 else -98304
                        for u in range(4): sl.fix(4 * ct - 3 + u // 2, f'v_add_u32 {v(vKT[u])}, {dlt & 0xffffffff:#x}, {v(vKT[u])}')
                t2 = ktr(n + LA)
                late = (n + LA) % 10 == 0
                early = (n + LA) % 10 == 9
                sl.fix(4 * ct + (1 if late else 0), t2[0]); sl.fix(4 * ct + (0 if early else 2), t2[1])
        dm = []
        if ks == 3: sl.stream(30, [f'ds_write_b32 {v(vT+4)}, {v(vRS+b)} offset:{64*b}' for b in range(4)])
        if 2 <= ks <= 13: dm = kv_dma(ks + 4, vKD2)
        elif ks in ffn_at: dm = [x for t in ffn_at[ks] for x in ffn_dma(t) if x]
        sl.stream(0, dm, last=26)
        interleave(p, mains, sl.f)
    p.wait_lg(0); e('s_barrier')
    stamp(4)
    FQ = lambda n: ACC + 16 * (n % 5) + 4 + 8 * (n // 5)
    e(f'v_bfe_u32 {v(vRS)}, v0, 4, 2'); e(f'v_lshlrev_b32 {v(vRS)}, 4, {v(vRS)}'); e(f'v_add_u32 {v(vRS)}, {s(sSP)}, {v(vRS)}')
    e(f'ds_read_b128 {v(vT,4)}, {v(vRS)}'); e(f'ds_read_b128 {v(vT+4,4)}, {v(vRS)} offset:64')
    for k in range(4): e(f'v_accvgpr_write_b32 {a(WF+k)}, {s(sOnes)}')
    set_eps()
    ktail = [x for x in ffn_dma(6) + ffn_dma(7) if x]
    RT = [[vT, vT + 4], [FQ(0), FQ(1)]]; RL = [[FQ(2), FQ(3)], [FQ(4), FQ(5)]]; RAW = [FQ(6), FQ(7)]; EXT = [FQ(8), FQ(9)]
    PV = {}; PK = {}
    for hb in range(2):
        for T_ in range(5):
            base = ACC + 16 * T_ + 8 * hb
            for k in range(0, 8, 2): e(f'v_pk_mul_f32 {v(base+k,2)}, {v(base+k,2)}, {v(RT[hb][k//4] + k%4, 2)}')
            for d in range(4): e(f'v_cvt_pk_bf16_f32 {v(base+d)}, {v(base+2*d)}, {v(base+2*d+1)}')
            PV[T_, hb] = v(base, 4)
            if hb == 0 and T_ == 1:
                e(f'ds_read_b128 {v(FQ(0),4)}, {v(vRS)} offset:128'); e(f'ds_read_b128 {v(FQ(1),4)}, {v(vRS)} offset:192')
            put([ktail.pop(0)])
    e(f's_mov_b32 {s(sT0)}, {fhex(LOG2E)}')
    for hb in range(2):
        for k in range(8): e(f'v_mul_f32 {v(RL[hb][k//4] + k%4)}, {s(sT0)}, {v(RT[hb][k//4] + k%4)}')
        put([ktail.pop(0)])
    assert not ktail
    e(f's_lshl_b32 {s(sT1)}, {s(sT)}, 1'); e(f's_add_u32 {s(sT1)}, {s(sT1)}, {s(sI)}'); e(f's_lshl_b32 {s(sT1)}, {s(sT1)}, 3')
    e(f's_lshl_b32 {s(sT0)}, {s(sQF)}, 1'); e(f's_add_u32 {s(sT0)}, {s(sT0)}, {s(sJ)}'); e(f's_add_u32 {s(sT1)}, {s(sT1)}, {s(sT0)}')
    e(f's_mul_i32 {s(sT1)}, {s(sT1)}, {18*1024}'); e(f's_add_u32 {s(sT1)}, {s(sT1)}, {KVP_OFF}'); e(f's_add_u32 {s(sT0)}, {s(sT1)}, {13*1024}')
    DT = [WF + 4 + 4 * k for k in range(5)]; nd = [0]; stq = []
    def kvmm(aa):
        for T_ in [T_ for T_ in (aa - 1, aa, aa + 1) if 0 <= T_ < 5] + [None]:
            d = a(DT[nd[0] % 5], 4); nd[0] += 1
            for hb in range(2):
                e(f'v_mfma_f32_16x16x32_bf16 {d}, {PK[aa, hb]}, {a(WF,4) if T_ is None else PV[T_, hb]}, {"0" if hb == 0 else d}')
            u = 13 + aa if T_ is None else KV_PAIRS.index((aa, T_))
            stq.append(f'buffer_store_dwordx4 {d}, {v(vL16)}, {s(SWS,4)}, {s(sT2)} offen sc1'); stq.insert(len(stq) - 1, f's_add_u32 {s(sT2)}, {s(sT1)}, {1024*u}')
    for aa in range(6):
        for hb in range(2):
            if aa == 5: break
            if aa == 0: src = [ACC + 80 + 8 * hb, ACC + 84 + 8 * hb]
            else:
                src = RAW
                if hb == 0: kvmm(aa - 1)
                for k in range(8): e(f'v_accvgpr_read_b32 {v(RAW[k//4] + k%4)}, {a(JD + 16*(aa-1) + 8*hb + k)}')
            weave([phi2(src[k//4] + k%4, pr(RT[hb][k//4] + k%4), pr(RL[hb][k//4] + k%4), EXT[k//4] + k%4) for k in range(0, 8, 2)],
                  lambda: put([stq.pop(0), stq.pop(0)]) if stq else None)
            if aa == 0:
                for d in range(4): e(f'v_cvt_pk_bf16_f32 {v(src[0]+d)}, {v(src[d//2] + 2*(d%2))}, {v(src[d//2] + 2*(d%2) + 1)}')
                PK[aa, hb] = v(src[0], 4)
            else:
                for d in range(4): e(f'v_cvt_pk_bf16_f32 {v(EXT[0]+d)}, {v(src[d//2] + 2*(d%2))}, {v(src[d//2] + 2*(d%2) + 1)}')
                for d in range(4): e(f'v_accvgpr_write_b32 {a(JD + 16*(aa-1) + 8*hb + d)}, {v(EXT[0]+d)}')
                PK[aa, hb] = a(JD + 16 * (aa - 1) + 8 * hb, 4)
    kvmm(4); put(stq)
    p.label(f'{name}_hdr'); p.restore(stF)
    stamp(5)
    acc = lambda ai, b: ACC + 16 * ai + 4 * b
    def ftr(G):
        G %= 36; c, g = divmod(G, 4)
        return tr4(G, vTR + 2 * (c // 4) + (g >> 1), (c % 4) * 16384 + (g & 1) * 2048, 8192)
    vPg, vP0 = vT + 4, vT + 6
    e(f'v_mov_b32 {v(vPg)}, {s(sN)}'); e(f'v_mov_b32 {v(vPg+1)}, {s(sN+1)}'); e(f'v_min_u32 {v(vP0)}, 1, v0'); e(f'v_lshlrev_b32 {v(vP0)}, 30, {v(vP0)}')
    e(f's_mov_b32 {s(sInc)}, {6*1024}'); e(f's_mov_b32 {s(sIncL)}, {10*1024}')
    e(f's_cmp_eq_u32 {s(sM)}, 0'); e(f's_cselect_b32 {s(sInc)}, {2*1024}, {s(sInc)}'); e(f's_cselect_b32 {s(sIncL)}, {8*1024}, {s(sIncL)}')
    e(f's_lshl_b32 {s(sT0)}, {s(sT)}, 2'); e(f's_add_u32 {s(sT0)}, {s(sT0)}, {s(sQF)}'); e(f's_lshl_b32 {s(sT0)}, {s(sT0)}, 5'); e(f's_add_u32 {s(sPc)}, {s(sT0)}, {PROG_OFF}')
    e(f's_lshl_b32 {s(sT0)}, {s(sM)}, 3'); e(f's_add_u32 {s(sPg)}, {s(sPc)}, {s(sT0)}')
    vHt, sHt = vRS, sKm
    e(f'v_and_b32 {v(vT)}, 63, v0'); e(f'v_lshrrev_b32 {v(vT+1)}, 3, {v(vT)}'); e(f'v_mul_u32_u24 {v(vT+1)}, {144*1024}, {v(vT+1)}'); e(f'v_and_b32 {v(vHt)}, 7, v0')
    e(f'v_lshl_add_u32 {v(vHt)}, {v(vHt)}, 7, {v(vT+1)}'); e(f'v_cmp_gt_u32 vcc, 32, {v(vT)}'); e(f'v_mov_b32 {v(vT+1)}, 0x40000000')
    e(f's_mul_i32 {s(sT0)}, {s(sJ)}, {2*144*1024}'); e(f's_sub_u32 {s(sHt)}, {s(sH)}, {s(sT0)}')
    e(f'v_cndmask_b32 {v(vHt)}, {v(vT+1)}, {v(vHt)}, vcc')
    def htouch(inc): return ([] if 'noht' in opt else [1]) and [junk(f'buffer_load_dword {v(vJS2)}, {v(vHt)}, {s(SH,4)}, {s(sHt)} offen')] + ([f's_add_u32 {s(sHt)}, {s(sHt)}, {s(inc)}'] if inc else [])
    def put2(sl, k, items):
        for x in items:
            if callable(x):
                while sl.cnt.get(k, 0): k += 1
                sl.fix(k, x, cost=2)
            else: k = sl.stream(k, [x])
        return k
    def check(lab, data, need, reload, pre=(), inline=True):
        seq = [f'v_xor_b32 {v(data)}, {s(sN)}, {v(data)}', f'v_sub_u32 {v(data+1)}, {v(data+1)}, {need}', f'v_lshrrev_b32 {v(data+1)}, 4, {v(data+1)}',
               f'v_or_b32 {v(data)}, {v(data)}, {v(data+1)}', f'v_cmp_ne_u32 vcc, 0, {v(data)}']
        spin = [f's_mov_b32 {s(sSpin)}, {SPIN}', f'{lab}_w2:', reload, 's_waitcnt vmcnt(0)'] + seq + \
               [f's_sub_u32 {s(sSpin)}, {s(sSpin)}, 1', 's_cmp_eq_u64 vcc, 0', f's_cbranch_scc1 {lab}_d', f's_cmp_lg_u32 {s(sSpin)}, 0', f's_cbranch_scc1 {lab}_w2', f's_branch {lab}_d']
        def f():
            if inline:
                put(seq); e('s_nop 0'); e('s_cmp_eq_u64 vcc, 0'); e(f's_cbranch_scc0 {lab}_w'); blk = [f'{lab}_w:'] + spin
            else:
                p.need(v(data, 2)); e(f's_cmp_eq_u32 {s(sCnt)}, 1'); e(f's_cbranch_scc1 {lab}_w')
                blk = [f'{lab}_w:'] + list(pre) + seq + ['s_nop 0', 's_cmp_eq_u64 vcc, 0', f's_cbranch_scc1 {lab}_d'] + spin
            p.label(f'{lab}_d')
            if blk not in slow: slow.append(blk)
        return f
    p.wait_tag('slot0'); e('s_barrier')
    for x in ftr(0) + ftr(1): e(x)
    def prod(h, b): return [f'v_mul_f32 {v(PR + 16*h + 4*b + r)}, {v(acc(2*h, b) + r)}, {v(acc(2*h+1, b) + r)}' for r in range(4)]
    def fin(b, inc):
        o = PR + 4 * b
        return ([f'v_mul_f32 {v(o + 16*h + r)}, {v(o + 16*h + r)}, {v(vRS2+b)}' for h in range(2) for r in range(4)] +
                [f'v_cvt_pk_bf16_f32 {v(o)}, {v(o)}, {v(o+1)}', f'v_cvt_pk_bf16_f32 {v(o+1)}, {v(o+2)}, {v(o+3)}',
                 f'v_cvt_pk_bf16_f32 {v(o+2)}, {v(o+16)}, {v(o+17)}', f'v_cvt_pk_bf16_f32 {v(o+3)}, {v(o+18)}, {v(o+19)}',
                 (f'buffer_store_dwordx4 {v(o,4)}, {v(vL16)}, {s(SH,4)}, {s(sH+b)} offen sc1', 'h')] +
                ([f's_add_u32 {s(sH+b)}, {s(sH+b)}, {s(inc)}'] if inc else []))
    progress = [f'v_add_u32 {v(vPg+1)}, 1, {v(vPg+1)}', f'buffer_store_dwordx2 {v(vPg,2)}, {v(vP0)}, {s(SWS,4)}, {s(sPg)} offen sc1']
    def slab(sl, mains, last):
        for G in range(36):
            c, g = divmod(G, 4)
            for b in range(4):
                for kk in range(2):
                    cc = '0' if (c == 0 and kk == 0) else v(acc(g, b), 4)
                    mains.append(f'v_mfma_f32_16x16x32_bf16 {v(acc(g,b),4)}, {wf(G,kk)}, {xf(b, 2*c+kk)}, {cc}')
            sl.fix(8 * G - 1, lambda G=G: p.need(a(WF + 8 * (G % 3), 8)))
            if g == 2:
                tag = f'slot{(c+1)%9}' if not (last and c == 8) else 'slot2'
                if c == 7: sl.fix(8 * G - 2, lambda: p.wait_tag('h'))
                sl.fix(8 * G - 1, lambda tag=tag: p.wait_tag(tag)); sl.fix(8 * G, 's_barrier')
            if not (last and G >= 34):
                for k, x in enumerate(ftr(G + 2)): sl.fix(8 * G + 2 * k + (1 if g == 2 else 0), x)
        sl.stream(8 * 33 + 5, prod(0, 0), last=8 * 34 - 1, cap=3)
        sl.stream(0, prod(1, 0) + prod(1, 1) + prod(1, 2) + prod(1, 3), last=15)
    def body():
        mains = []; sl = Slots(288)
        slab(sl, mains, False)
        sl.stream(8 * 34 + 1, prod(0, 1) + prod(0, 2) + prod(0, 3), last=287)
        for c in range(9):
            d = [x for x in ffn_dma((c - 1) % 9) if x]
            if c == 0: d[-1] = f's_add_u32 {s(sWo)}, {s(sWo)}, {(128 - 8*CH) & 0xffffffff:#x}'
            if c < 8: sl.stream(32 * c + 17, d, last=32 * c + 31, gap=1)
            else: sl.stream(32 * c + 17, d, last=287, cap=3)
        j1 = [f's_mov_b32 {s(sJo)}, {s(JP[3])}', f's_mov_b32 {s(SJD+2)}, {s(JP[5])}', f's_and_b32 {s(sCr)}, {s(JP[5])}, 15']
        k = sl.stream(16, j1, last=31)
        if 'notouch' not in opt:
            g_ = gtouch(); sl.fix(67, g_[0], cost=2); sl.stream(68, g_[1:])
        jl = [f's_mov_b32 m0, {s(sSP)}']
        for q in range(4):
            jl += [(f'buffer_load_dwordx4 {v(vJS)}, {s(SJS,4)}, {s(sJo)} offen offset:{1024*q} lds', 'job'), f's_add_u32 {s(sJo)}, {s(sJo)}, 8192']
        k = sl.stream(32, jl, last=47, gap=1)
        k = sl.stream(16, fin(0, sInc) + fin(1, sInc) + fin(2, sInc) + fin(3, sInc), gap=1)
        j2 = [f's_mov_b32 {s(sJo)}, {s(JP[4])}'] + [f's_mov_b32 {s(JP[q])}, {s(JP[6+q])}' for q in range(6)]
        j2 += [f's_mov_b32 {s(JP[8])}, 0', f's_mov_b32 {s(JP[11])}, 0']
        j2 += [f'v_xor_b32 {v(vT+u)}, {32*u}, {v(vJT)}' for u in range(1, 4)]
        k = sl.stream(k + 1, j2)
        jt = jtouch(); k = sl.stream(k, jt[:3])
        if jt[3:]:
            k = (k + 2) | 1
            while sl.cnt.get(k, 0): k += 1
            sl.fix(k, jt[3], cost=2)
        assert k < 32 * 6
        j3 = [lambda: p.wait_tag('job')]
        for u in range(4):
            for h in range(2): j3.append(f'ds_read_b64_tr_b16 {a(JD + 4*u + 2*h, 2)}, {v(vT+u) if u else v(vJT)} offset:{2048*h}')
        k = sl.stream(32 * 6, j3, gap=1)
        for u in range(4):
            if u:
                k += 1; sl.fix(k, lambda u=u: put([f's_cmp_le_u32 {s(sCr)}, {u}', f's_cselect_b32 {s(sT0)}, {(144*9 - 9)*1024}, 0', f's_add_u32 {s(sT0)}, {s(sT0)}, {s(sJo)}']), cost=2)
            k = sl.stream(k + 2, [f'buffer_store_dwordx4 {a(JD+4*u,4)}, {v(vL16)}, {s(SJD,4)}, {s(sT0 if u else sJo)} offen offset:{1024*u} sc1'])
        assert k < 8 * 30 - 2, k
        k = sl.stream(8 * 30 + 8, progress); put2(sl, k, htouch(sInc) + [f's_mov_b32 {s(SH+2)}, {PQ_OFF}'])
        vPd, vPa, vPn = vRS + 2, vRS + 1, vT
        pollA = f'buffer_load_dwordx2 {v(vPd,2)}, {v(vPa)}, {s(SWS,4)}, 0 offen sc1'
        if 'lateA' not in opt: sl.stream(32 * 5, [f'v_lshlrev_b32 {v(vPa)}, 3, v0', f'v_add_u32 {v(vPa)}, {PROG_OFF}, {v(vPa)}', pollA])
        if 'lateA' not in opt: sl.fix(8 * 30 - 4, check(name + '_ca', vPd, v(vPn), pollA, inline=False,
               pre=[f'v_and_b32 {v(vPn)}, 3, v0', f'v_min_u32 {v(vPn)}, 1, {v(vPn)}', f'v_lshl_add_u32 {v(vPn)}, {v(vPn)}, 1, 1', f'v_add_u32 {v(vPn)}, {s(sN+1)}, {v(vPn)}']), cost=2)
        def pull():
            e(f's_cmp_eq_u32 {s(sCnt)}, 1'); e(f's_cbranch_scc1 {name}_pw'); p.label(f'{name}_pd')
            t0, t1, t2 = vT, vT + 1, vT + 2
            blk = [f'{name}_pw:', f's_and_b32 {s(sT0)}, {s(sT)}, 7', f's_lshl_b32 {s(sT0)}, {s(sT0)}, 2', f's_add_u32 {s(sT0)}, {s(sT0)}, {s(sW)}',
                   f's_mul_i32 {s(sT1)}, {s(sM)}, 144', f's_mul_i32 {s(sT2)}, {s(sQF)}, 36', f's_add_u32 {s(sT1)}, {s(sT1)}, {s(sT2)}', f's_mul_i32 {s(sT1)}, {s(sT1)}, 9216',
                   f's_mul_i32 {s(sT2)}, {s(sT0)}, {81*128}', f's_add_u32 {s(sT1)}, {s(sT1)}, {s(sT2)}', f's_add_u32 {s(sT1)}, {s(sT1)}, {WT_OFF}',
                   f'v_lshlrev_b32 {v(t0)}, 3, {v(vL16)}', f'v_min_u32 {v(t1)}, {16*128}, {v(t0)}',
                   f'buffer_load_dword {v(vJS2)}, {v(t0)}, {s(SWS,4)}, {s(sT1)} offen', f's_add_u32 {s(sT1)}, {s(sT1)}, 8192',
                   f'buffer_load_dword {v(vJS2)}, {v(t1)}, {s(SWS,4)}, {s(sT1)} offen',
                   f's_mul_i32 {s(sT0)}, {s(sT0)}, 41', f'v_lshrrev_b32 {v(t0)}, 4, {v(vL16)}', f'v_min_u32 {v(t1)}, 40, {v(t0)}', f'v_add_u32 {v(t1)}, {s(sT0)}, {v(t1)}', f'v_min_u32 {v(t1)}, 1295, {v(t1)}',
                   f'v_mul_u32_u24 {v(t2)}, 3641, {v(t1)}', f'v_lshrrev_b32 {v(t2)}, 18, {v(t2)}', f'v_mul_u32_u24 {v(t2)}, {36*1024 - 72*128}, {v(t2)}', f'v_lshl_add_u32 {v(t1)}, {v(t1)}, 7, {v(t2)}',
                   f's_mul_i32 {s(sT1)}, {s(sM)}, 9216', f's_add_u32 {s(sT1)}, {s(sT1)}, {WOT_OFF}',
                   f'buffer_load_dword {v(vJS2)}, {v(t1)}, {s(SWS,4)}, {s(sT1)} offen',
                   f's_lshl_b32 {s(sT0)}, {s(sT)}, 2', f's_add_u32 {s(sT0)}, {s(sT0)}, {s(sQF)}', f's_lshl_b32 {s(sT0)}, {s(sT0)}, 4', f's_lshl_b32 {s(sT1)}, {s(sM)}, 2', f's_add_u32 {s(sT0)}, {s(sT0)}, {s(sT1)}',
                   f's_add_u32 {s(sT0)}, {s(sT0)}, {s(sW)}', f's_mul_i32 {s(sT0)}, {s(sT0)}, {18*128}', f's_add_u32 {s(sT0)}, {s(sT0)}, {PQ_OFF}',
                   f'v_min_u32 {v(t0)}, 17, {v(t0)}', f'v_lshlrev_b32 {v(t0)}, 7, {v(t0)}', f'buffer_load_dword {v(vJS2)}, {v(t0)}, {s(SWS,4)}, {s(sT0)} offen',
                   f's_branch {name}_pd']
            if blk not in slow: slow.append(blk)
        if 'nopull' not in opt and 'lateA' not in opt: sl.fix(8 * 31 + 6, pull, cost=2)
        interleave(p, mains, sl.f)
    def back():
        e(f's_sub_u32 {s(sCnt)}, {s(sCnt)}, 1'); e(f's_cmp_lg_u32 {s(sCnt)}, 0'); e(f's_cbranch_scc1 {name}_loop')
    p.loop(body, f'{name}_loop', back)
    stamp(6)

    sC, sQK = sM, sQF
    SO, SJ, SA, SP_ = SQ, SJS, SJD, SGt
    free_s = JP + [sKV + k for k in range(6)] + sTB + [sJob, sJo, sLine, sTo, sCr, sSP, sOnes]
    sWd, sWs, sH2a, sH2b, sJs, sJd, sAl, sTl, sHi, sRec, sWo2, sW8, sPq0, sPq1, sPart, sFl, sSel, sT3, sM0p, sRf = free_s[:20]
    sH2 = [sH2a, sH2b]; sHd = free_s[20:24]
    ACC2 = XV
    big = lambda f: ACC + 4 * f if f < 24 else XV + 72 + 4 * (f - 24)
    vLx = [vL16, vTg, vRS + 1]; vRD = [vT, vT + 1, vT + 2, vT + 3]; vXO2, vX8 = vJS, vJT
    vXD = [vTR, vTR + 4, vRS + 2]; TQ = [vT + 4, vRS2 + 2]
    assert vTR % 4 == 0 and (vRS + 2) % 4 == 0 and (vRS2 + 2) % 4 == 0 and XV + 72 + 52 <= 252
    vCk = 252
    HBs = [JD, JD + 32, XA + 16, XA + 48]; AR = XA + 80
    hb = lambda c, b, ks: HBs[c % 4] + 16 * b + 4 * ks
    WR = [XA + 128 + 4 * k for k in range(8)] + [XA + 4 * k for k in range(4)] + [WF + 4 * k for k in range(6)] + [JD + 64, JD + 68] + \
         [HBs[n] + 4 * k for n in (1, 2, 3, 0) for k in range(8)] + [AR, AR + 4]
    wreg = lambda f: WR[f]
    def hloads(c):
        out = []
        for b in range(2):
            for ks in range(4): out.append(f'buffer_load_dwordx4 {a(hb(c,b,ks),4)}, {v(vL16)}, {s(SWS,4)}, {s(sH2[b])} offen offset:{1024*ks} sc1')
            out.append(f's_add_u32 {s(sH2[b])}, {s(sH2[b])}, 4096')
        return out
    def sdma(slot, tag):
        return [f's_add_u32 m0, {s(sM0w)}, {slot*16384}'] + \
               [(f'buffer_load_dwordx4 {v(vL16)}, {s(SWS,4)}, {s(sWs)} offen offset:{1024*q} sc1 lds', tag) for q in range(4)] + [f's_add_u32 {s(sWs)}, {s(sWs)}, 16384']
    def wdma(c):
        out = []
        for pc in range(9):
            if pc % 4 == 0: out.append(f's_add_u32 m0, {s(sM0p)}, {(c%4)*SLOT + 4096*(pc//4)}')
            out.append((f'buffer_load_dwordx4 {v(vLx[pc//4])}, {s(SWS,4)}, {s(sWd)} offen offset:{1024*(pc%4)} sc1 lds', f'w{c}'))
        out.append(f's_add_u32 {s(sWd)}, {s(sWd)}, {SLOT}')
        return out
    acc2 = lambda aa, b: ACC2 + 8 * aa + 4 * b
    ar = lambda n, ks: AR + 16 * (n % 3) + 4 * ks
    def ard(n):
        c, aa = divmod(n, 9)
        return [f'ds_read_b128 {a(ar(n,ks),4)}, {v(vRD[c%4])} offset:{ks*9216 + aa*1024}' for ks in range(4)]
    grp = lambda *xs: (lambda: put(list(xs)))
    mains = []; sl = Slots(288 + 648)
    slab(sl, mains, True)
    for n in range(2):
        for k, x in enumerate(ard(n)): sl.fix(8 * (34 + n) + 2 * k + (1 if n == 0 else 0), x)
    sl.stream(8 * 34 + 1, prod(0, 1) + prod(0, 2) + prod(0, 3), last=287)
    sl.stream(17, [x for x in ffn_dma(8) if x][:-1], last=31, gap=1)
    setup = [f's_mul_i32 {s(sT0)}, {s(sC)}, 144', f's_mul_i32 {s(sT1)}, {s(sQK)}, 36', f's_add_u32 {s(sT0)}, {s(sT0)}, {s(sT1)}', f's_mul_i32 {s(sT0)}, {s(sT0)}, 9216',
             f's_add_u32 {s(sT0)}, {s(sT0)}, {WT_OFF}', f's_add_u32 {s(sWs)}, {s(sT0)}, {s(sM0w)}', f's_mul_i32 {s(sM0p)}, {s(sW)}, 9216',
             f's_add_u32 {s(sWd)}, {s(sT0)}, {s(sM0p)}', f's_add_u32 {s(sWd)}, {s(sWd)}, {4*SLOT}',
             f's_lshl_b32 {s(sT0)}, {s(sT)}, 3', f's_lshl_b32 {s(sT2)}, {s(sW)}, 1', f's_add_u32 {s(sT0)}, {s(sT0)}, {s(sT2)}', f's_mul_i32 {s(sT0)}, {s(sT0)}, 144',
             f's_add_u32 {s(sT0)}, {s(sT0)}, {s(sT1)}', f's_lshl_b32 {s(sH2a)}, {s(sT0)}, 10', f's_add_u32 {s(sH2b)}, {s(sH2a)}, {144*1024}']
    k = sl.stream(16, setup); assert k < 48
    if 'lateA' in opt:
        vPd, vPn, vPa = vRS + 2, vTj, vRS + 1
        pollA = f'buffer_load_dwordx2 {v(vPd,2)}, {v(vPa)}, {s(SWS,4)}, 0 offen sc1'
        sl.stream(16, [f'v_lshlrev_b32 {v(vPa)}, 3, v0', f'v_add_u32 {v(vPa)}, {PROG_OFF}, {v(vPa)}', pollA,
                       f'v_and_b32 {v(vPn)}, 3, v0', f'v_min_u32 {v(vPn)}, 1, {v(vPn)}', f'v_lshl_add_u32 {v(vPn)}, {v(vPn)}, 1, 1', f'v_add_u32 {v(vPn)}, {s(sN+1)}, {v(vPn)}'])
        if 'nochkA' not in opt: sl.fix(8 * 10 - 4, check(name + '_ca', vPd, v(vPn), pollA), cost=2)
        sl.spread(81, 111, sdma(0, 'slot0') + sdma(1, 'slot1'))
    for c in range(3 if 'lateA' in opt else 1, 9):
        sl.stream(32 * c + 17, sdma(c - 1, f'slot{c-1}'), last=32 * c + 31 if c < 8 else 287, gap=1 if c < 8 else 0, cap=2 if c < 8 else 3)
    k = sl.stream(16, fin(0, sIncL) + fin(1, sIncL) + fin(2, sIncL) + fin(3, sIncL), gap=1)
    k = sl.stream(8 * 30 + 8, progress); put2(sl, k, htouch(sIncL))
    sl.spread(118, 262, hloads(0) + hloads(1) + hloads(2))
    def srd2(r, ptr): return [f's_mov_b32 {s(r)}, {s(ptr)}', f's_mov_b32 {s(r+1)}, {s(ptr+1)}']
    setup2 = [f'v_add_u32 {v(vLx[1])}, 4096, {v(vL16)}', f'v_add_u32 {v(vLx[2])}, 8192, {v(vL16)}'] + [f'v_add_u32 {v(vRD[n])}, {n*SLOT}, {v(vL16)}' for n in range(4)]
    setup2 += srd2(SX, sXp) + [f's_mov_b32 {s(SX+2)}, {S*D*2}'] + srd2(SO, sOp) + [f's_mov_b32 {s(SO+2)}, {S*D*2}'] + srd2(SJ, SWS) + srd2(SP_, SWS)
    setup2 += [f's_mul_i32 {s(sT0)}, s2, 10923', f's_lshr_b32 {s(sT0)}, {s(sT0)}, 16', f's_mul_i32 {s(sT1)}, {s(sT0)}, 6', f's_sub_u32 {s(sT1)}, s2, {s(sT1)}', f's_lshr_b32 {s(sT1)}, {s(sT1)}, 1',
               f's_mul_i32 {s(sT2)}, {s(sT0)}, 7282', f's_lshr_b32 {s(sT2)}, {s(sT2)}, 16', f's_mul_i32 {s(sT3)}, {s(sT2)}, 9', f's_sub_u32 {s(sTl)}, {s(sT0)}, {s(sT3)}',
               f's_add_u32 {s(sAl)}, {s(sTl)}, {s(sT1)}', f's_sub_u32 {s(sAl)}, {s(sAl)}, 1',
               f's_and_b32 {s(sT3)}, {s(sT0)}, 1', f's_add_u32 {s(sT3)}, {s(sT3)}, {s(sT1)}', f's_sub_u32 {s(sT3)}, {s(sT3)}, 1', f's_and_b32 {s(sHi)}, s2, 1',
               f's_lshl_b32 {s(sJd)}, {s(sHi)}, 10', f's_lshl_b32 {s(sJs)}, {s(sT3)}, 3', f's_add_u32 {s(sJd)}, {s(sJd)}, {s(sJs)}', f's_lshl_b32 {s(sJs)}, {s(sHi)}, 3', f's_add_u32 {s(sJs)}, {s(sJs)}, 2048',
               grp(f's_cmp_lt_u32 {s(sT3)}, 2', f's_cselect_b32 {s(sJd)}, {s(sJd)}, {s(sJs)}'),
               f's_mul_i32 {s(sT0)}, {s(sT0)}, 3072', f's_add_u32 {s(sJd)}, {s(sJd)}, {s(sT0)}', f's_lshl_b32 {s(sT0)}, {s(sW)}, 8', f's_add_u32 {s(sJd)}, {s(sJd)}, {s(sT0)}', f's_add_u32 {s(sJd)}, {s(sJd)}, {REC_OFF}',
               f's_max_i32 {s(sT0)}, {s(sAl)}, {s(sTl)}', grp(f's_cmp_gt_i32 {s(sT0)}, 4', f's_cselect_b32 {s(sT0)}, 1, 0'),
               f's_lshl_b32 {s(sT1)}, {s(sT0)}, 2', f's_sub_u32 {s(sT3)}, {s(sAl)}, {s(sT1)}', f's_sub_u32 {s(sT1)}, {s(sTl)}, {s(sT1)}', f's_add_u32 {s(sT1)}, {s(sT1)}, {s(sT3)}',
               grp(f's_cmp_eq_u32 {s(sHi)}, 0', f's_cselect_b32 {s(sT1)}, {s(sT1)}, 13'), f's_add_u32 {s(sT1)}, {s(sT1)}, {s(sT3)}',
               f's_lshl_b32 {s(sT2)}, {s(sT2)}, 1', f's_add_u32 {s(sT2)}, {s(sT2)}, {s(sT0)}', f's_mul_i32 {s(sT2)}, {s(sT2)}, 18', f's_add_u32 {s(sT1)}, {s(sT1)}, {s(sT2)}',
               f's_lshl_b32 {s(sT1)}, {s(sT1)}, 10', f's_lshl_b32 {s(sT0)}, {s(sW)}, 8', f's_add_u32 {s(sT1)}, {s(sT1)}, {s(sT0)}', f's_add_u32 {s(sJs)}, {s(sT1)}, {KVP_OFF}',
               grp(f's_cmp_lt_u32 {s(sAl)}, 9', f's_cselect_b32 {s(SJ+2)}, {WT_OFF}, 0'),
               grp('s_cmp_lt_u32 s2, 216', f's_cselect_b32 {s(SJ+2)}, {s(SJ+2)}, 0', f's_cselect_b32 {s(SA+2)}, {STAMP_OFF}, 0'),
               f's_lshl_b32 {s(sRf)}, s2, 3', f's_add_u32 {s(sRf)}, {s(sRf)}, {RECF_OFF}',
               f's_lshl_b32 {s(sT0)}, {s(sAl)}, 4', f's_lshl_b32 {s(sT1)}, {s(sW)}, 2', f's_add_u32 {s(sT0)}, {s(sT0)}, {s(sT1)}', f's_mul_i32 {s(sT0)}, {s(sT0)}, 3641']
    for r in range(4): setup2 += [f's_lshr_b32 {s(sHd[r])}, {s(sT0)}, 16'] + ([f's_add_u32 {s(sT0)}, {s(sT0)}, 3641'] if r < 3 else [])
    setup2 += [f'v_and_b32 {v(vXO2)}, 31, v0', f'v_mul_u32_u24 {v(vXO2)}, 1152, {v(vXO2)}', f'v_bfe_u32 {v(vX8)}, v0, 5, 1', f'v_lshl_add_u32 {v(vXO2)}, {v(vX8)}, 4, {v(vXO2)}',
               f's_lshl_b32 {s(sT0)}, {s(sT)}, 2', f's_add_u32 {s(sT0)}, {s(sT0)}, {s(sQK)}', f's_mul_i32 {s(sT0)}, {s(sT0)}, {32*1152}', f's_mul_i32 {s(sT1)}, {s(sC)}, 288',
               f's_add_u32 {s(sT0)}, {s(sT0)}, {s(sT1)}', f'v_add_u32 {v(vX8)}, {s(sT0)}, {v(vXO2)}', f's_lshl_b32 {s(sT1)}, {s(sW)}, 5', f'v_add_u32 {v(vXO2)}, {s(sT1)}, {v(vX8)}',
               f's_mul_i32 {s(sRec)}, {s(sW)}, {9*3072}', f's_add_u32 {s(sRec)}, {s(sRec)}, {REC_OFF}',
               f's_mul_i32 {s(sT1)}, {s(sC)}, {9*1024}', f's_add_u32 {s(sW8)}, {s(sT1)}, {WOT_OFF + 8192}', f's_lshl_b32 {s(sT0)}, {s(sW)}, 10', f's_add_u32 {s(sWo2)}, {s(sT1)}, {s(sT0)}', f's_add_u32 {s(sWo2)}, {s(sWo2)}, {WOT_OFF}',
               f's_lshl_b32 {s(sT0)}, {s(sT)}, 3', f's_lshl_b32 {s(sT1)}, {s(sQK)}, 1', f's_add_u32 {s(sT0)}, {s(sT0)}, {s(sT1)}', f's_mul_i32 {s(sT0)}, {s(sT0)}, 18',
               f's_mul_i32 {s(sT1)}, {s(sW)}, 9', f's_lshr_b32 {s(sT1)}, {s(sT1)}, 1', f's_add_u32 {s(sT0)}, {s(sT0)}, {s(sT1)}', f's_lshl_b32 {s(sT0)}, {s(sT0)}, 10',
               f's_add_u32 {s(sPq0)}, {s(sT0)}, {PQ_OFF}', f's_add_u32 {s(sPq1)}, {s(sPq0)}, {18*1024}',
               f's_and_b32 {s(sT0)}, s2, 0xfc', f's_add_u32 {s(sT0)}, {s(sT0)}, {s(sW)}', f's_lshl_b32 {s(sFl)}, {s(sT0)}, 4', f's_add_u32 {s(sFl)}, {s(sFl)}, {s(sQK)}',
               f's_lshl_b32 {s(sFl)}, {s(sFl)}, 3', f's_add_u32 {s(sFl)}, {s(sFl)}, {FLAG_OFF}',
               f's_lshl_b32 {s(sT0)}, {s(sT0)}, 2', f's_add_u32 {s(sT0)}, {s(sT0)}, {s(sQK)}', f's_mul_i32 {s(sT0)}, {s(sT0)}, 9216', f's_add_u32 {s(sPart)}, {s(sT0)}, {PART_OFF}',
               grp(f's_cmp_eq_u32 {s(sW)}, {s(sQK)}', f's_cselect_b32 {s(SP_+2)}, 0, {STAMP_OFF}'),
               f's_add_u32 {s(sSel)}, {s(sQK)}, 1', f's_and_b32 {s(sSel)}, {s(sSel)}, 3']
    k = sl.stream(82, setup2); assert k < 288 + 40, k
    B0 = 288
    for n in range(81):
        c, aa = divmod(n, 9)
        for b in range(2):
            for ks in range(4):
                cc = '0' if (c == 0 and ks == 0) else v(acc2(aa, b), 4)
                mains.append(f'v_mfma_f32_16x16x32_bf16 {v(acc2(aa,b),4)}, {a(ar(n,ks),4)}, {a(hb(c,b,ks),4)}, {cc}')
        sl.fix(B0 + 8 * n - 1, lambda n=n, c=c, aa=aa: p.need(a(ar(n, 0), 16), *([a(HBs[c % 4], 32)] if aa == 0 else [])))
        late = 0
        if aa == 7 and c < 8:
            tag = ('slot4', 'slot6', 'slot8x')[c] if c < 3 else f'w{c+1}'
            sl.fix(B0 + 8 * n - 1, lambda tag=tag: p.wait_tag(tag)); sl.fix(B0 + 8 * n, 's_barrier'); late = 1
        if aa == 1 and c <= 5: sl.fix(B0 + 8 * n - 3, 's_barrier')
        if n + 2 < 81:
            for k, x in enumerate(ard(n + 2)): sl.fix(B0 + 8 * n + 2 * k + late, x)
    if stamps: sl.fix(B0 - 1, lambda: stamp(7), cost=2)
    if stamps and 'fine' in opt:
        for c in range(1, 9): sl.fix(B0 + 72 * c - 1, lambda c=c: stamp(15 + c), cost=2)
        for c in (2, 4, 6, 8): sl.fix(32 * c - 1, lambda c=c: stamp(24 + c // 2), cost=2)
    sl.stream(B0, prod(1, 0) + prod(1, 1) + prod(1, 2) + prod(1, 3))
    JL = XV + 72; vJo, vJd, vHe, vJt = JL + 40, JL + 41, JL + 42, JL + 44
    jobs0 = [f'v_and_b32 {v(vHe)}, 15, v0', f'v_bfe_u32 {v(vJd)}, v0, 4, 2', f'v_mul_u32_u24 {v(vJo)}, {8*18*1024}, {v(vJd)}', f'v_lshl_add_u32 {v(vJo)}, {v(vHe)}, 4, {v(vJo)}',
             f'v_lshlrev_b32 {v(vJd)}, 28, {v(vJd)}', f'v_lshl_add_u32 {v(vJd)}, {v(vHe)}, 4, {v(vJd)}',
             f's_lshl_b32 {s(sCnt)}, {s(sTl)}, 4', f'v_add_u32 {v(vHe)}, {s(sCnt)}, {v(vHe)}', f'v_mul_u32_u24 {v(vHe)}, 3641, {v(vHe)}', f'v_lshrrev_b32 {v(vHe)}, 16, {v(vHe)}']
    k = sl.stream(8 * 32 + 1, jobs0, last=8 * 33 + 3)
    jobl = []
    for k in range(8):
        jobl += [f'buffer_load_dwordx4 {v(JL+4*k,4)}, {v(vJo)}, {s(SJ,4)}, {s(sJs)} offen sc1', f's_add_u32 {s(sJs)}, {s(sJs)}, {4*8*18*1024}']
    vCd, vCa, vCn = vCk, vCk + 2, vCk + 3
    pollC = f'buffer_load_dwordx2 {v(vCd,2)}, {v(vCa)}, {s(SWS,4)}, {s(sPc)} offen sc1'
    sl.spread(B0 + 6, B0 + 71, [f'v_and_b32 {v(vCn)}, 3, v0', f'v_max_u32 {v(vCa)}, 1, {v(vCn)}', f'v_lshlrev_b32 {v(vCa)}, 3, {v(vCa)}', pollC] + sdma(8, 'slot8x')[:-1] + jobl)
    kf = sl.stream(B0 + 10, fin(0, None) + fin(1, None) + fin(2, None) + fin(3, None))
    if 'nochkB' not in opt: sl.fix(B0 + 70, grp(f's_add_u32 {s(sT0)}, {s(sN+1)}, 5', check(name + '_cb', vCd, s(sT0), pollC)), cost=2)
    for c in range(1, 6):
        sl.spread(B0 + 72 * c + 6, B0 + 72 * c + 71, wdma(c + 3) + ([check(name + '_cc', vCd, v(vCn), pollC)] if c == 4 and 'nochkC' not in opt else []) + hloads(c + 2))
    k = sl.stream(B0 + 72 * 3 + 60, [f'v_lshlrev_b32 {v(vCa)}, 3, {v(vCn)}', f'v_min_u32 {v(vCn)}, 1, {v(vCn)}', f'v_lshl_add_u32 {v(vCn)}, {v(vCn)}, 1, 4', f'v_add_u32 {v(vCn)}, {s(sN+1)}, {v(vCn)}', pollC])
    assert k < B0 + 72 * 4 + 8
    assert kf < B0 + 100, kf - B0
    sl.fix(B0 + 8 * (18 + 7) - 2, lambda: p.wait_tag('h'))
    k = sl.stream(B0 + 8 * (18 + 7) + 2, progress); put2(sl, k, htouch(None))
    jobv = []
    for k in range(1, 8):
        jobv += [f'v_add_f32 {v(JL+r)}, {v(JL+r)}, {v(JL+4*k+r)}' for r in range(4)]
    for sw in ('v_permlane32_swap_b32', 'v_permlane16_swap_b32'):
        jobv += [f'v_mov_b32 {v(vJt+r)}, {v(JL+r)}' for r in range(4)]
        jobv += [f'{sw} {v(vJt+r)}, {v(JL+r)}' for r in range(4)]
        jobv += [f'v_add_f32 {v(JL+r)}, {v(JL+r)}, {v(vJt+r)}' for r in range(4)]
    k = sl.stream(max(kf, B0 + 80), jobv)
    for r in range(4):
        k = sl.stream(k, [f'v_cmp_eq_u32 vcc, {s(sHd[r])}, {v(vHe)}'])
        k = sl.stream(k + 2, [f'v_cndmask_b32 {v(JL+r)}, 0, {v(JL+r)}, vcc'])
    k = sl.stream(k, [f'v_cvt_pk_bf16_f32 {v(JL)}, {v(JL)}, {v(JL+1)}', f'v_cvt_pk_bf16_f32 {v(JL+1)}, {v(JL+2)}, {v(JL+3)}',
                      (f'buffer_store_dwordx2 {v(JL,2)}, {v(vJd)}, {s(SA,4)}, {s(sJd)} offen sc1', 'rec'), f'v_mov_b32 {v(vJt)}, {s(sN)}', f'v_mov_b32 {v(vJt+1)}, {s(sN+1)}'])
    assert k < B0 + 72 * 3 + 10, k - B0
    sl.fix(B0 + 8 * (36 + 7) - 2, lambda: p.wait_tag('rec'))
    sl.stream(B0 + 8 * (36 + 7) + 2, [f'buffer_store_dwordx2 {v(vJt,2)}, {v(vP0)}, {s(SA,4)}, {s(sRf)} offen sc1'])
    REC = lambda tl, pc: big(3 * tl + pc)
    PQ = lambda b, g: big(27 + 5 * b + g)
    def wload(f):
        pc, g = divmod(f, 18)
        return [f's_add_u32 {s(sT2)}, {s(sWo2 if pc < 2 else sW8)}, {g*36*1024 + (4096 if pc == 1 else 0)}', f'buffer_load_dwordx4 {a(wreg(f),4)}, {v(vL16)}, {s(SWS,4)}, {s(sT2)} offen sc1']
    xl = [f'buffer_load_dwordx4 {v(vXD[0],4)}, {v(vXO2)}, {s(SX,4)}, 0 offen', f'buffer_load_dwordx4 {v(vXD[1],4)}, {v(vXO2)}, {s(SX,4)}, 0 offen offset:128',
          f'buffer_load_dwordx4 {v(vXD[2],4)}, {v(vX8)}, {s(SX,4)}, 0 offen offset:256']
    pql = [f'buffer_load_dwordx4 {v(PQ(b,g),4)}, {v(vLx[g//4])}, {s(SWS,4)}, {s(sPq0 if b == 0 else sPq1)} offen offset:{1024*(g%4)} sc1' for b in range(2) for g in range(5)]
    pollR = f'buffer_load_dwordx2 {v(vCd,2)}, {v(vCa)}, {s(SWS,4)}, {s(sT3)} offen sc1'
    k0 = B0 + 72 * 6
    sl.spread(k0, k0 + 71, [f'v_and_b32 {v(vCa)}, 63, v0', f'v_min_u32 {v(vCa)}, 53, {v(vCa)}', f'v_lshlrev_b32 {v(vCa)}, 3, {v(vCa)}', f's_mul_i32 {s(sT3)}, {s(sW)}, {54*8}',
                            f's_add_u32 {s(sT3)}, {s(sT3)}, {RECF_OFF}'] + hloads(8)[:5] + [pollR] + hloads(8)[5:] + xl + pql[:4])
    if 'nochkR' not in opt: sl.fix(k0 + 72, check(name + '_cr', vCd, s(sN+1), pollR), cost=2)
    recl = []
    for f in range(27):
        if f % 12 == 0 and f: recl.append(f's_add_u32 {s(sRec)}, {s(sRec)}, 12288')
        recl.append(f'buffer_load_dwordx4 {v(big(f),4)}, {v(vLx[(f%12)//4])}, {s(SWS,4)}, {s(sRec)} offen offset:{1024*(f%4)} sc1')
    def pub(aa):
        o = acc2(aa, 0); t = TQ[aa & 1]
        return [f'v_cvt_pk_bf16_f32 {v(t+d)}, {v(o+2*d)}, {v(o+2*d+1)}' for d in range(4)] + \
               [(f'buffer_store_dwordx4 {v(t,4)}, {v(vLx[aa//4])}, {s(SP_,4)}, {s(sPart)} offen offset:{1024*(aa%4)} sc1', 'pub')]
    for aa in range(8): sl.stream(B0 + 8 * (72 + aa + 1) + 3, pub(aa))
    sl.spread(k0 + 73, B0 + 647, pql[4:] + recl)
    interleave(p, mains, sl.f)
    p.need(v(PQ(1, 4), 4))
    put(pub(8))
    stamp(8)
    e(f's_cmp_lg_u32 {s(sW)}, {s(sQK)}'); e(f's_cbranch_scc1 {name}_att')
    for u in range(18): p.raw(f'ds_write_b128 {v(vRD[2])}, {v(ACC2+4*u,4)} offset:{1024*u}')
    p.raw('s_waitcnt lgkmcnt(0)')
    p.label(f'{name}_att')
    vEp = TQ[1]
    for r in range(4): e(f'v_mov_b32 {v(vEp+r)}, {fhex(1e-6)}')
    ND = lambda tl, b, z: ACC2 + 16 * (tl % 3) + 8 * b + 4 * z
    OH = lambda tl, b: ACC2 + 48 + 4 * (tl % 2) + 2 * b
    vOW = ACC2 + 56
    e(f's_mul_i32 {s(sT0)}, {s(sW)}, 9'); e(f's_lshr_b32 {s(sT0)}, {s(sT0)}, 1'); e(f's_lshl_b32 {s(sT0)}, {s(sT0)}, 10'); e(f'v_add_u32 {v(vOW)}, {s(sT0)}, {v(vRD[1])}')
    e(f's_and_b32 {s(sT0)}, {s(sW)}, 1'); e(f's_cmp_eq_u32 {s(sT0)}, 1'); e(f's_cbranch_scc1 {name}_oodd')
    st1 = p.snapshot()
    for par in range(2):
        if par:
            p.label(f'{name}_oodd'); p.restore(st1)
        late = [wload(f) for f in range(36)]
        for step in range(11):
            m32, m16, va = [], [], []
            tl = step
            if tl < 9:
                gl = (tl + par) >> 1
                for b in range(2):
                    m32.append(f'v_mfma_f32_16x16x32_bf16 {v(ND(tl,b,0),4)}, {v(REC(tl,0),4)}, {v(PQ(b,gl),4)}, 0')
                    m32.append(f'v_mfma_f32_16x16x32_bf16 {v(ND(tl,b,1),4)}, {v(REC(tl,1),4)}, {v(PQ(b,gl),4)}, {v(vEp,4)}')
            tl = step - 1
            if 0 <= tl < 9:
                gl = (tl + par) >> 1; odd = (tl + par) & 1
                gs = gl + 1 if odd else gl - 1
                if not 0 <= gs <= 4: gs = gl
                for b in range(2):
                    half = v(PQ(b, gs) + (0 if odd else 2), 2)
                    m16.append(f'v_mfma_f32_16x16x16_bf16 {v(ND(tl,b,0),4)}, {v(REC(tl,2),2)}, {half}, {v(ND(tl,b,0),4)}')
                    m16.append(f'v_mfma_f32_16x16x16_bf16 {v(ND(tl,b,1),4)}, {v(REC(tl,2)+2,2)}, {half}, {v(ND(tl,b,1),4)}')
            tl = step - 2
            if 0 <= tl < 9:
                for b in range(2): va += [f'v_rcp_f32 {v(ND(tl,b,1)+r)}, {v(ND(tl,b,1)+r)}' for r in range(4)]
                for b in range(2):
                    va += [f'v_mul_f32 {v(ND(tl,b,0)+r)}, {v(ND(tl,b,0)+r)}, {v(ND(tl,b,1)+r)}' for r in range(4)]
                    va += [f'v_cvt_pk_bf16_f32 {v(OH(tl,b) + d)}, {v(ND(tl,b,0)+2*d)}, {v(ND(tl,b,0)+2*d+1)}' for d in range(2)]
                    va += [f'ds_write_b64 {v(vOW)}, {v(OH(tl,b),2)} offset:{b*18432 + ((tl+par)>>1)*1024 + ((tl+par)&1)*8}']
            mm = m32 + m16
            per = -(-len(va) // max(len(mm) - 1, 1))
            for i_, x in enumerate(mm):
                e(x)
                if late and len(p.vmq) < p.vm_limit and i_ % 2 == 0: put(late.pop(0))
                if i_ == 0 and len(mm) > 4: continue
                for y in va[:per]: e(y)
                va = va[per:]
            for y in va: e(y)
        while late: put(late.pop(0))
        if par == 0:
            stE = p.snapshot(); e(f's_branch {name}_odone')
        else: assert p.snapshot() == stE
    p.label(f'{name}_odone')
    stamp(9)
    tq = TQ[0]
    e(f'v_mov_b32 {v(tq)}, {s(sN)}'); e(f'v_mov_b32 {v(tq+1)}, {s(sN+1)}'); e(f'v_and_b32 {v(tq+2)}, 63, v0'); e(f'v_min_u32 {v(tq+2)}, 1, {v(tq+2)}'); e(f'v_lshlrev_b32 {v(tq+2)}, 30, {v(tq+2)}')
    p.wait_tag('pub')
    e(f'buffer_store_dwordx2 {v(tq,2)}, {v(tq+2)}, {s(SP_,4)}, {s(sFl)} offen sc1')
    p.wait_lg(0); e('s_barrier')
    OF = lambda b, g: big(18 * b + g)
    for g in range(18):
        for b in range(2): e(f'ds_read_b128 {v(OF(b,g),4)}, {v(vRD[1])} offset:{b*18432 + g*1024}')
    e(f'v_and_b32 {v(vCa)}, 3, v0'); e(f'v_cmp_eq_u32 vcc, {s(sQK)}, {v(vCa)}'); e(f'v_mov_b32 {v(vCn)}, {s(sSel)}')
    e(f's_lshl_b32 {s(sFl)}, s2, 7'); e(f's_add_u32 {s(sFl)}, {s(sFl)}, {FLAG_OFF}')
    e(f'v_cndmask_b32 {v(vCa)}, {v(vCa)}, {v(vCn)}, vcc'); e(f'v_lshlrev_b32 {v(vCa)}, 3, {v(vCa)}')
    e(f's_lshl_b32 {s(sT0)}, {s(sW)}, 10'); e(f's_mul_i32 {s(sT2)}, s2, {4*9216}'); e(f's_add_u32 {s(sT2)}, {s(sT2)}, {PART_OFF}')
    sPe = [sPq0, sPq1, sRec]
    for q in range(3):
        e(f's_add_u32 {s(sT1)}, {s(sQK)}, {q+1}'); e(f's_and_b32 {s(sT1)}, {s(sT1)}, 3'); e(f's_mul_i32 {s(sT1)}, {s(sT1)}, 9216'); e(f's_add_u32 {s(sPe[q])}, {s(sT1)}, {s(sT2)}')
    vPa0, vPa1, vOa = vEp, vEp + 1, vEp + 2
    e(f'v_add_u32 {v(vPa0)}, {s(sT0)}, {v(vL16)}'); e(f'v_add_u32 {v(vPa1)}, {s(sT0)}, {v(vLx[1])}'); e(f's_lshl_b32 {s(sT0)}, {s(sW)}, 11'); e(f'v_add_u32 {v(vOa)}, {s(sT0)}, {v(vRD[2])}')
    e(f's_mov_b32 {s(sHi)}, 0xffff0000')
    e(f's_cmp_eq_u32 {s(sW)}, {s(sSel)}'); e(f's_cbranch_scc1 {name}_three')
    st2 = p.snapshot()
    SS = lambda pc: ACC2 + 8 * pc
    DD = lambda pc: ACC2 + 24 + 8 * pc
    U = ACC2 + 48
    pollF = f'buffer_load_dwordx2 {v(vCd,2)}, {v(vCa)}, {s(SWS,4)}, {s(sFl)} offen sc1'
    for npc in (2, 3):
        if npc == 3:
            p.label(f'{name}_three'); p.restore(st2)
        late = [wload(f) for f in range(36, 54)] if npc == 3 else []
        def smm(pc, poll=False):
            for b in range(2):
                for g in range(18):
                    e(f'v_mfma_f32_16x16x32_bf16 {v(SS(pc)+4*b,4)}, {a(wreg(18*pc+g),4)}, {v(OF(b,g),4)}, {"0" if g == 0 else v(SS(pc)+4*b,4)}')
                    if poll and b == 0 and g == 8: e(pollF)
                    elif late and g % 2 == 0 and (not poll or b == 1 or g > 8): put(late.pop(0))
        smm(0, True)
        for pc in range(npc):
            for b in range(2):
                e(f'ds_read_b128 {v(DD(pc)+4*b,4)}, {v(vOa) if pc < 2 else v(vRD[2])} offset:{8192*pc + 1024*b}')
        check(f'{name}_cf{npc}', vCd, s(sN+1), pollF)()
        stamp(10)
        PE = lambda pc, q: AR + 8 + 4 * (3 * pc + q)
        for pc in range(npc):
            for q in range(3): e(f'buffer_load_dwordx4 {a(PE(pc,q),4)}, {v((vPa0, vPa1, vLx[2])[pc])}, {s(SWS,4)}, {s(sPe[q])} offen sc1')
        for pc in range(1, npc): smm(pc)
        stamp(11)
        X = ACC; G = ACC + 24; O = ACC + 40
        for pc in range(npc):
            for d in range(4):
                e(f'v_lshlrev_b32 {v(X+8*pc+2*d)}, 16, {v(vXD[pc]+d)}'); e(f'v_and_b32 {v(X+8*pc+2*d+1)}, {s(sHi)}, {v(vXD[pc]+d)}')
        for pc in range(npc):
            for q in range(3):
                for d in range(4): e(f'v_accvgpr_read_b32 {v(U+8*q+2*d+1)}, {a(PE(pc,q)+d)}')
                for d in range(4):
                    e(f'v_lshlrev_b32 {v(U+8*q+2*d)}, 16, {v(U+8*q+2*d+1)}'); e(f'v_and_b32 {v(U+8*q+2*d+1)}, {s(sHi)}, {v(U+8*q+2*d+1)}')
                for k in range(0, 8, 2): e(f'v_pk_add_f32 {v(DD(pc)+k,2)}, {v(DD(pc)+k,2)}, {v(U+8*q+k,2)}')
            for k in range(8): e(f'v_mul_f32 {v(G+k)}, {fhex(-LOG2E)}, {v(DD(pc)+k)}')
            for k in range(8): e(f'v_exp_f32 {v(G+k)}, {v(G+k)}')
            for k in range(0, 8, 2): e(f'v_pk_mul_f32 {v(DD(pc)+k,2)}, {v(DD(pc)+k,2)}, {v(SS(pc)+k,2)}')
            for k in range(8): e(f'v_add_f32 {v(G+k)}, 1.0, {v(G+k)}')
            for k in range(8): e(f'v_rcp_f32 {v(G+k)}, {v(G+k)}')
            for k in range(0, 8, 2): e(f'v_pk_mul_f32 {v(G+k,2)}, {v(G+k,2)}, {v(DD(pc)+k,2)}')
            for r in range(4): e(f'v_permlane16_swap_b32 {v(G+r)}, {v(G+4+r)}')
            for k in range(0, 8, 2): e(f'v_pk_add_f32 {v(G+k,2)}, {v(G+k,2)}, {v(X+8*pc+k,2)}')
            for d in range(4): e(f'v_cvt_pk_bf16_f32 {v(O+4*pc+d)}, {v(G+2*d)}, {v(G+2*d+1)}')
            e(f'buffer_store_dwordx4 {v(O+4*pc,4)}, {v(vXO2) if pc < 2 else v(vX8)}, {s(SO,4)}, 0 offen offset:{128*pc}')
        if stamps: p.wait_all()
        stamp(12)
        e(f's_branch {END}')
    for blk in slow:
        for x in blk: p.raw(x)
    p.label(END)
    return p, V.nxt, A.nxt, NXV
```

```python
import sys, build
from layout2 import *
MULT = 4
def tkernel(A, B, wgs=None):
    L = []; e = L.append
    e('s_cmp_ge_u32 s2, 1'); e('s_cbranch_scc1 t_end')
    e('s_load_dwordx2 s[4:5], s[0:1], 72'); e('s_waitcnt lgkmcnt(0)')
    e('s_mov_b32 s8, s4'); e('s_mov_b32 s9, s5'); e('s_mov_b32 s10, 0x10000000'); e('s_mov_b32 s11, 0x20000')
    if wgs is None:
        e('v_lshlrev_b32 v1, 12, v0'); offs = [0, 1024, 2048, 3072]
    else:
        base, step = wgs
        e(f'v_lshrrev_b32 v2, 1, v0'); e('v_and_b32 v2, 7, v2'); e('v_lshlrev_b32 v2, 5, v2')
        e('v_and_b32 v3, 1, v0'); e('v_lshlrev_b32 v3, 2, v3'); e('v_or_b32 v2, v2, v3')
        e(f'v_or_b32 v2, {base}, v2'); e('v_lshlrev_b32 v1, 10, v2'); offs = [0, 256, 512, 768]
    for n, (kern, k, op) in enumerate((A, B)):
        e(f's_mov_b32 s12, {STAMP_OFF + kern*262144 + 4*k}')
        for j, o in enumerate(offs): e(f'buffer_load_dword v{4+j}, v1, s[8:11], s12 offen offset:{o} sc1')
        e('s_waitcnt vmcnt(0)')
        for j in range(1, 4): e(f'v_{op}_u32 v4, v4, v{4+j}')
        e('s_nop 1'); e(f'v_readlane_b32 s{20+n}, v4, 0')
        for l in range(1, 64):
            e(f'v_readlane_b32 s13, v4, {l}'); e('s_nop 0'); e(f's_{op}_u32 s{20+n}, s{20+n}, s13')
    e('s_sub_u32 s20, s21, s20'); e('s_min_u32 s20, s20, 20000'); e(f's_mul_i32 s20, s20, {MULT}')
    e('s_memrealtime s[14:15]'); e('s_waitcnt lgkmcnt(0)')
    e('t_spin:'); e('s_memrealtime s[16:17]'); e('s_waitcnt lgkmcnt(0)'); e('s_sub_u32 s18, s16, s14'); e('s_cmp_lt_u32 s18, s20'); e('s_cbranch_scc1 t_spin')
    e('t_end:')
    return build.wrap('t_kernel', '\n'.join(L), 16, 16)
def make(src, out, A, B, wgs=None):
    s = open(src).read()
    s = s.replace('; @launch grid=', '; @launch kernel=' + build.NAME + '_kernel grid=')
    i = s.index('.amdgcn_target')
    s = s.replace('.text\ncode_end:\n', '.text\ncode_end:\n  s_endpgm\n')
    open(out, 'w').write(s[:i] + '; @launch kernel=t_kernel grid=(1,1,1) block=(64,1,1) lds=0\n' + s[i:] + tkernel(A, B, wgs))
if __name__ == '__main__':
    src, tag = sys.argv[1], sys.argv[2]
    for sp in sys.argv[3:]:
        f = sp.split(':')
        if len(f) == 2: make(src, f'p_{tag}_{f[0]}_{f[1]}.s', (0, int(f[0]), 'min'), (0, int(f[1]), 'min' if f[0] == f[1] else 'max'))
        else: make(src, f'p_{tag}_{f[0]}_{f[1]}_{f[2]}.s', (0, int(f[0]), 'max'), (0, int(f[1]), 'max'), (int(f[2]), 0))
```

```python
import re

REG_RE = re.compile(r'^(-?)(?:abs\()?([vas])(?:\[(\d+):(\d+)\]|(\d+))\)?$')

def regs_of(tok):
    tok = tok.strip()
    if tok in ('vcc',): return [('s', 'vcc')]
    if tok in ('exec',): return [('s', 'exec')]
    if tok == 'm0': return [('s', 'm0')]
    m = REG_RE.match(tok)
    if not m: return []
    k = m.group(2)
    if m.group(3) is not None:
        return [(k, i) for i in range(int(m.group(3)), int(m.group(4)) + 1)]
    return [(k, int(m.group(5)))]

def split_ops(s):
    out, depth, cur = [], 0, ''
    for ch in s:
        if ch in '[(': depth += 1
        if ch in '])': depth -= 1
        if ch == ',' and depth == 0:
            out.append(cur.strip()); cur = ''
        else: cur += ch
    if cur.strip(): out.append(cur.strip())
    return out

TRANS = ('v_exp_f32', 'v_log_f32', 'v_rcp_f32', 'v_rsq_f32', 'v_sqrt_f32')

class I:
    __slots__ = ('text', 'mn', 'rd', 'wr', 'kind', 'passes', 'A', 'B', 'C', 'D', 'tag', 'lds')
    def __init__(self, text, tag=None):
        self.text = text; self.tag = tag
        t = text.split(';')[0].strip()
        mn, _, rest = t.partition(' ')
        self.mn = mn
        ops = split_ops(rest)
        mods = ''
        if ops:
            parts = ops[-1].split()
            ops[-1] = parts[0]; mods = ' '.join(parts[1:])
        self.rd, self.wr = [], []
        self.passes = 0; self.A = self.B = self.C = self.D = []
        self.lds = False
        R = lambda i: regs_of(ops[i]) if i < len(ops) else []
        if mn.startswith('v_mfma'):
            self.kind = 'mfma'
            self.D, self.A, self.B, self.C = R(0), R(1), R(2), R(3)
            self.wr = self.D; self.rd = self.A + self.B + self.C
            if '32x32x16' in mn or mn.endswith('16x16x4_f32'): self.passes = 8
            else: self.passes = 4
            if mn.endswith('x4_f32'): self.kind = 'sgemm'
        elif mn.startswith('ds_read') or mn.startswith('ds_bpermute'):
            self.kind = 'ds'; self.wr = R(0); self.rd = sum((R(i) for i in range(1, len(ops))), [])
        elif mn.startswith('ds_'):
            self.kind = 'ds'; self.rd = sum((R(i) for i in range(len(ops))), [])
        elif mn.startswith('buffer_load'):
            self.kind = 'vmem'
            if 'lds' in mods.split():
                self.lds = True
                self.rd = R(0) + R(1) + R(2) + [('s', 'm0')]
            else:
                self.wr = R(0); self.rd = R(1) + R(2) + R(3)
        elif mn.startswith('buffer_store') or mn.startswith('buffer_atomic'):
            self.kind = 'vmem'; self.rd = R(0) + R(1) + R(2) + R(3); self.D = R(0)
            if mn.startswith('buffer_atomic') and 'sc0' in mods.split(): self.wr = R(0)
        elif mn.startswith('buffer_'):
            self.kind = 'vmem'
        elif mn.startswith('global_store'):
            self.kind = 'vmem'; self.rd = R(0) + R(1) + R(2); self.D = R(1)
        elif mn.startswith('global_load'):
            self.kind = 'vmem'; self.wr = R(0); self.rd = R(1) + R(2)
        elif mn.startswith('s_load') or mn in ('s_memtime', 's_memrealtime'):
            self.kind = 'smem'; self.wr = R(0); self.rd = R(1)
        elif mn in ('s_waitcnt', 's_barrier', 's_nop', 's_sleep', 's_setprio', 's_endpgm') or mn.startswith('s_cbranch') or mn == 's_branch':
            self.kind = 'ctl'
        elif mn.startswith('s_cmp'):
            self.kind = 'salu'; self.rd = R(0) + R(1)
        elif mn.startswith('s_'):
            self.kind = 'salu'; self.wr = R(0); self.rd = sum((R(i) for i in range(1, len(ops))), [])
            if 'saveexec' in mn: self.wr = self.wr + [('s', 'exec')]
        elif mn.startswith('v_'):
            self.kind = 'valu'
            self.wr = R(0); self.rd = sum((R(i) for i in range(1, len(ops))), [])
            if mn.startswith('v_permlane') and 'swap' in mn:
                self.wr = R(0) + R(1); self.rd = R(0) + R(1)
            if mn.startswith(('v_fmac', 'v_dot2c', 'v_writelane')): self.rd = self.rd + R(0)
            if mn.startswith('v_cndmask') and len(ops) == 3: self.rd = self.rd + [('s', 'vcc')]
        elif mn.endswith(':') or mn.startswith('.') or mn == '':
            self.kind = 'meta'
        else:
            raise ValueError('unknown instr: ' + text)

    def states(self):
        if self.kind == 'meta': return 0
        if self.mn == 's_nop': return int(self.text.split()[1]) + 1
        return 1

def need_states(p, c):
    n = 0
    pw, cr, cw = set(p.wr), set(c.rd), set(c.wr)
    vw = {r for r in pw if r[0] in 'va'}
    sw = {r for r in pw if r[0] == 's'}
    if p.kind == 'valu':
        if c.kind in ('mfma', 'sgemm') and vw & cr: n = max(n, 2)
        if c.mn in ('v_readfirstlane_b32', 'v_readlane_b32') and vw & cr: n = max(n, 1)
        if c.mn.startswith('v_permlane') and vw & cr: n = max(n, 2)
        if 'dpp' in c.text and c.kind == 'valu' and vw & cr: n = max(n, 2)
        if p.mn.split('_e')[0] in TRANS and c.kind == 'valu' and vw & cr: n = max(n, 1)
        if p.mn.startswith('v_dot2') and c.kind in ('valu', 'vmem', 'ds') and vw & (cr | cw) and c.mn != p.mn: n = max(n, 3)
        if sw:
            if c.kind == 'vmem' and sw & cr: n = max(n, 5)
            if c.kind == 'valu' and sw & cr: n = max(n, 2)
            if c.kind in ('salu',) and sw & cr: n = max(n, 1)
    if p.kind == 'salu' and ('s', 'm0') in pw and c.kind == 'vmem' and c.lds: n = max(n, 1)
    if p.kind in ('mfma', 'sgemm'):
        D = set(p.D); xdl = p.kind == 'mfma'
        t_ab = {4: 8, 8: 12}[p.passes] if xdl else {4: 6, 8: 10}[p.passes]
        if c.kind in ('mfma', 'sgemm'):
            if D & (set(c.A) | set(c.B)): n = max(n, t_ab)
            if D & set(c.C):
                same = (c.C == p.D and c.kind == p.kind and c.passes == p.passes and c.mn == p.mn)
                if not same: n = max(n, {4: 6, 8: 10}[p.passes])
            elif D & set(c.D): n = max(n, t_ab)
        elif c.kind in ('valu', 'vmem', 'ds'):
            if D & (cr | cw): n = max(n, t_ab)
        if xdl and c.kind == 'valu' and set(p.C) & cw: n = max(n, {4: 3, 8: 7}[p.passes])
    if p.kind == 'vmem' and p.D and ('x4' in p.mn or 'x3' in p.mn) and set(p.D) & cw and c.kind != 'vmem':
        n = max(n, 2)
    return n

class Prog:
    def __init__(self):
        self.ins = []
        self.lgq = []
        self.vmq = []
        self.smem_pending = False
        self.nops = 0
        self.forced = None
        self.site = 0
        self.sites = {}
        self.vm_limit = 63

    def raw(self, text):
        self.ins.append(I(text))

    def label(self, name):
        self.ins.append(I(name + ':'))

    def _emit_wait(self, vm=None, lg=None):
        key = self.site; self.site += 1
        self.sites[key] = (vm, lg)
        if self.forced is not None:
            vm, lg = self.forced[key]
        parts = []
        if vm is not None:
            assert vm <= 63; parts.append(f'vmcnt({vm})'); self.vmq = self.vmq[len(self.vmq) - vm:] if vm < len(self.vmq) else self.vmq
            if vm == 0: self.vmq = []
        if lg is not None:
            lg = min(lg, 15); parts.append(f'lgkmcnt({lg})')
            if lg == 0: self.lgq = []; self.smem_pending = False
            elif lg < len(self.lgq): self.lgq = self.lgq[len(self.lgq) - lg:]
        if parts: self.ins.append(I('s_waitcnt ' + ' '.join(parts)))

    def _needed(self, regs):
        regs = set(regs); vm = lg = None
        for k, e in enumerate(self.lgq):
            if e & regs: lg = len(self.lgq) - 1 - k
        for k, e in enumerate(self.vmq):
            if e[0] & regs: vm = len(self.vmq) - 1 - k
        return vm, lg

    def wait_tag(self, tag, extra_lg=None):
        vm = None
        for k, e in enumerate(self.vmq):
            if e[1] == tag: vm = len(self.vmq) - 1 - k
        self._emit_wait(vm, extra_lg)

    def wait_lgtag(self, *tags):
        vm, lg = self._needed([('tag', t) for t in tags])
        self._emit_wait(None, lg)

    def need(self, *toks):
        regs = sum((regs_of(t) for t in toks), [])
        vm, lg = self._needed(regs)
        self._emit_wait(vm, lg)

    def wait_all(self, vm=True, lg=True):
        self._emit_wait(0 if vm else None, 0 if lg else None)

    def wait_lg(self, n=0):
        self._emit_wait(None, n)

    def e(self, text, tag=None, junk=False):
        i = I(text, tag)
        if junk: i.wr = []
        if i.kind not in ('meta', 'ctl'):
            vm, lg = self._needed(i.rd + i.wr)
            self._emit_wait(vm, lg)
        if i.mn.startswith(('s_cselect', 's_cbranch_scc', 's_addc', 's_subb')):
            for q in reversed(self.ins):
                if q.kind == 'salu' and not q.mn.startswith(('s_mov', 's_cselect', 's_mul', 's_getpc')):
                    want = ('s_cmp',) if not i.mn.startswith(('s_addc', 's_subb')) else ('s_add_u32', 's_sub_u32')
                    assert q.mn.startswith(want), f'SCC feeding {text!r} comes from {q.text!r}'
                    break
        need = 0; dist = 0
        for p in reversed(self.ins):
            if dist >= 20: break
            if p.kind != 'meta':
                n = need_states(p, i) if i.kind not in ('meta',) else 0
                need = max(need, n - dist)
            dist += p.states()
        while need > 0:
            k = min(need, 16); self.ins.append(I(f's_nop {k-1}')); need -= k; self.nops += 1
        self.ins.append(i)
        if i.kind == 'ds': self.lgq.append(set(i.wr) | ({('tag', tag)} if tag else set()))
        elif i.kind == 'smem':
            self.smem_pending = True; self.lgq.append(set(i.wr))
        elif i.kind == 'vmem' and not i.mn.startswith(('buffer_wbl2', 'buffer_inv')):
            self.vmq.append((set(i.wr), tag))
            assert len(self.vmq) <= self.vm_limit, 'vmcnt overflow'
        return i

    def loop(self, body, label, back):
        import copy
        st0 = (copy.deepcopy(self.lgq), copy.deepcopy(self.vmq), list(self.ins), self.site, self.forced, dict(self.sites))
        comb = None
        for rounds in range(4):
            self.lgq, self.vmq, self.ins, self.site = copy.deepcopy(st0[0]), copy.deepcopy(st0[1]), list(st0[2]), st0[3]
            seen = []
            lens = []
            for it in range(3):
                self.site = st0[3]; self.sites = {}
                self.forced = comb
                n0 = len(self.ins)
                body(); back()
                lens.append(len(self.ins) - n0)
                seen.append(dict(self.sites))
            new = {}
            for k in seen[0]:
                def mn(vals):
                    vals = [v for v in vals if v is not None]
                    return min(vals) if vals else None
                vs = [s[k] for s in seen] + ([comb[k]] if comb else [])
                new[k] = (mn([v[0] for v in vs]), mn([v[1] for v in vs]))
            if new == comb: break
            comb = new
        else:
            raise RuntimeError('loop waits did not converge')
        self.lgq, self.vmq, self.ins, self.site = copy.deepcopy(st0[0]), copy.deepcopy(st0[1]), list(st0[2]), st0[3]
        self.forced = comb
        self.label(label)
        n0 = len(self.ins); body(); back(); first = [x.text for x in self.ins[n0:]]
        end_site = self.site
        keep = list(self.ins); q1 = (copy.deepcopy(self.lgq), copy.deepcopy(self.vmq))
        self.site = st0[3]; n1 = len(self.ins); body(); back(); second = [x.text for x in self.ins[n1:]]
        assert first == second, 'loop body differs between first and steady pass (hazard nops or waits)'
        for a, b in ((q1[0], self.lgq), (q1[1], self.vmq)):
            n = min(len(a), len(b))
            assert n == 0 or a[len(a)-n:] == b[len(b)-n:], 'queue tails differ after loop'
        if len(q1[0]) > len(self.lgq): self.lgq = q1[0]
        if len(q1[1]) > len(self.vmq): self.vmq = q1[1]
        self.ins = keep; self.site = end_site; self.forced = st0[4]; self.sites = st0[5]

    def snapshot(self):
        import copy
        return (copy.deepcopy(self.lgq), copy.deepcopy(self.vmq))
    def restore(self, st):
        import copy
        self.lgq, self.vmq = copy.deepcopy(st[0]), copy.deepcopy(st[1])

    def text(self):
        return '\n'.join(('' if i.kind == 'meta' else '  ') + i.text for i in self.ins)

    def count(self):
        from collections import Counter
        return Counter(i.kind for i in self.ins)


class Alloc:
    def __init__(self, kind, lo, hi):
        self.kind, self.nxt, self.hi = kind, lo, hi
        self.names = {}
    def get(self, name, n=1, align=None):
        al = align or (1 if n == 1 else (2 if n < 4 else 4))
        self.nxt = (self.nxt + al - 1) // al * al
        r = self.nxt; self.nxt += n
        assert self.nxt <= self.hi, f'out of {self.kind} regs at {name}'
        self.names[name] = (r, n)
        return r

def R(kind, base, n=1):
    return f'{kind}{base}' if n == 1 else f'{kind}[{base}:{base+n-1}]'
def v(b, n=1): return R('v', b, n)
def a(b, n=1): return R('a', b, n)
def s(b, n=1): return R('s', b, n)

def interleave(p, mains, fillers, per=2):
    def put(x):
        if callable(x): x()
        elif isinstance(x, tuple): p.e(x[0], x[1])
        else: p.e(x)
    for x in fillers.get(-1, []): put(x)
    for k, m in enumerate(mains):
        put(m)
        for x in fillers.get(k, []): put(x)


class Slots:
    def __init__(self, n, cap=2):
        self.n, self.cap = n, cap
        self.f = {}; self.cnt = {}
    @staticmethod
    def cost(x):
        t = x[0] if isinstance(x, tuple) else x
        if isinstance(t, str) and t.startswith('buffer_'): return 2
        if isinstance(t, str) and t.startswith(('v_exp', 'v_rcp', 'v_rsq')): return 2
        return 1
    def fix(self, k, x, cost=None):
        self.f.setdefault(k, []).append(x); self.cnt[k] = self.cnt.get(k, 0) + (cost or self.cost(x))
    def stream(self, start, items, last=None, gap=0, cap=None):
        k = start; cap = cap or self.cap
        last = self.n - 1 if last is None else last
        used = start
        for x in items:
            c = self.cost(x)
            while self.cnt.get(k, 0) + c > cap and k < last: k += 1
            self.fix(k, x); used = k; k = min(k + gap, last)
        return used

    def spread(self, start, last, items, pos=None):
        ismem = lambda x: self.cost(x) == 2 or getattr(x, 'mem', False)
        nm = sum(1 for x in items if ismem(x))
        step = (last - start + 1) / max(nm, 1); done = 0; k = start
        for x in items:
            m = ismem(x); c = 2 if m else 1
            if m:
                k = max(k, start + int(done * step)); done += 1
            elif done < nm:
                k = max(k, start + int(done * step) - 1)
            while self.cnt.get(k, 0) + c > self.cap and k < last: k += 1
            self.fix(k, x, c)
            if m and pos is not None: pos.append(k)
        return k
    def over(self, a, b):
        return sum(max(0, self.cnt.get(k, 0) - self.cap) for k in range(a, b))
```

```python
from asmlib import *
from layout2 import *

LOG2E = 1.4426950408889634
def fhex(x):
    import struct
    return '0x%08x' % struct.unpack('<I', struct.pack('<f', x))[0]

SP0 = 147456
STX = 98304
CH = 64 * 9216

SLOT = 36864
SPIN = 20000
SALT = 0x5bd1e990

def gen(name, stamps=False, opt=()):
    p = Prog(); cap = [None]
    def e(text, tag=None, junk=False):
        if cap[0] is not None: cap[0].append((text, tag, junk))
        else: p.e(text, tag, junk)
    V = Alloc('v', 1, 256); A = Alloc('a', 0, 256); SG = Alloc('s', 56, 100)
    SX, SQ, SGt, SU, SWS, SH, SJS, SJD = 4, 8, 12, 16, 20, 24, 28, 32
    KA = 36
    sW, sI, sJ, sT, sQF, sM = (SG.get(n) for n in ('w', 'i', 'j', 't', 'qf', 'm'))
    sWo, sCnt, sM0w, sJob, sJo, sT0, sT1, sT2 = (SG.get(n) for n in ('wo', 'cnt', 'm0w', 'job', 'jo', 't0', 't1', 't2'))
    sH = SG.get('h', 4, 1); sKV = SG.get('kv', 6, 1); sSP = SG.get('sp'); sLine = SG.get('line'); sKm = SG.get('km'); sTo = SG.get('to')
    mk = [SG.get(f'mk{k}', 2) for k in range(4)]
    sSt = SG.get('st', 2); sStO = SG.get('sto'); sOnes = SG.get('ones')
    JP = [36, 37, 38, 39, 42, 43, 44, 45, 46, 47, 50, 51]
    sXp, sN, sDbg, sOp = 40, 48, 52, 54
    sInc, sIncL, sPg, sPc, sCr, sSpin = mk[0], mk[0] + 1, mk[1], mk[1] + 1, mk[2], mk[2] + 1
    sEps = mk[3]
    vJS = V.get('js'); vJT = V.get('jt'); vTg = V.get('tg')
    ACC = V.get('acc', 64); PR = V.get('prod', 32)
    vTR = V.get('tr', 6, 1); vDM = V.get('dm', 2, 1); vL16 = V.get('l16'); vJS2 = V.get('spare'); vRS = V.get('rs', 4, 2); vRS2 = V.get('rs2', 4, 2)
    vTj = V.get('tj'); vS0 = V.get('s0'); vT = V.get('tmp', 8, 4); vS1 = vT + 7
    NXV = (256 - V.nxt) // 4
    XV = V.get('xv', 4 * NXV)
    WF = A.get('wf', 24); XA = A.get('xa', 4 * (72 - NXV)); JD = A.get('jd', 64)
    fidx = lambda b, ks: 2 * ks + b if b < 2 else 36 + 2 * ks + b - 2
    def xf(b, ks):
        f = fidx(b, ks)
        return v(XV + 4 * f, 4) if f < NXV else a(XA + 4 * (f - NXV), 4)
    def xf_isv(b, ks): return fidx(b, ks) < NXV
    nstamp = [0]
    def stamp(k=None, dyn=False):
        if not stamps: return
        if k is None:
            k = nstamp[0]; nstamp[0] += 1
        p.wait_lg(0)
        if k == 0:
            for n_, r_ in enumerate((101, 101, 3)):
                e(f'v_mov_b32 {v(vS0)}, {s(r_)}'); e(f'v_mov_b32 {v(vS1)}, {4*(29+n_)}'); e(f'buffer_store_dword {v(vS0)}, {v(vS1)}, {s(SWS,4)}, {s(sStO)} offen')
            e(f'v_mov_b32 {v(vS0)}, s100'); e(f'v_mov_b32 {v(vS1)}, 0'); e(f'buffer_store_dword {v(vS0)}, {v(vS1)}, {s(SWS,4)}, {s(sStO)} offen offset:60')
        e(f's_memrealtime {s(sSt,2)}'); p.wait_lg(0)
        e(f'v_mov_b32 {v(vS0)}, {s(sSt)}'); e(f'v_mov_b32 {v(vS1)}, {4*k}')
        if dyn: e(f'v_mov_b32 {v(vS1)}, {s(sCnt)}'); e(f'v_mul_u32_u24 {v(vS1)}, 12, {v(vS1)}'); e(f'v_sub_u32 {v(vS1)}, {4*k}, {v(vS1)}')
        e(f'buffer_store_dword {v(vS0)}, {v(vS1)}, {s(SWS,4)}, {s(sStO)} offen')
        e(f's_memtime {s(sSt,2)}'); p.wait_lg(0)
        e(f'v_mov_b32 {v(vS0)}, {s(sSt)}')
        e(f'buffer_store_dword {v(vS0)}, {v(vS1)}, {s(SWS,4)}, {s(sStO)} offen offset:128')

    END = f'{name}_end'
    if stamps: p.raw('s_memrealtime s[100:101]')
    e('s_cmp_ge_u32 s2, 256'); e(f's_cbranch_scc1 {END}')
    e(f's_load_dwordx8 {s(KA,8)}, s[0:1], 0'); e(f's_load_dwordx8 {s(KA+8,8)}, s[0:1], 32'); e(f's_load_dwordx4 {s(KA+16,4)}, s[0:1], 64')
    T = [ACC + 32 + k for k in range(32)] + [PR + k for k in range(32)]
    vLane, vL3, vL4, vC7, vN, vI2, vB = T[0:7]
    vXO = T[8:12]; vXR = T[12:16]; vTL, vU = T[19], T[20]
    e(f'v_lshrrev_b32 {v(vB)}, 6, v0'); e(f'v_and_b32 {v(vLane)}, 63, v0')
    e(f'v_readfirstlane_b32 {s(sW)}, {v(vB)}')
    if 'nocode' not in opt:
        p.raw(f's_getpc_b64 {s(sSt,2)}'); p.label(f'{name}_pc')
        e(f's_lshr_b32 {s(sT1)}, s2, 3'); e(f's_lshl_b32 {s(sT1)}, {s(sT1)}, 2'); e(f'v_add_u32 {v(vB)}, {s(sT1)}, {v(vB)}'); e(f'v_mul_u32_u24 {v(vB)}, 5, {v(vB)}')
        e(f'v_min_u32 {v(vI2)}, 4, {v(vLane)}'); e(f'v_add_u32 {v(vB)}, {v(vB)}, {v(vI2)}'); e(f'v_lshlrev_b32 {v(vB)}, 7, {v(vB)}')
        e(f'v_min_u32 {v(vB)}, code_end - {name}_pc - 4, {v(vB)}')
        e(f'global_load_dword {v(vJS2)}, {v(vB)}, {s(sSt,2)}', junk=True)
    e(f'v_lshrrev_b32 {v(vL3)}, 3, {v(vLane)}'); e(f'v_lshrrev_b32 {v(vL4)}, 4, {v(vLane)}'); e(f'v_and_b32 {v(vC7)}, 7, {v(vLane)}')
    e(f'v_and_b32 {v(vN)}, 15, {v(vLane)}'); e(f'v_lshlrev_b32 {v(vL16)}, 4, {v(vLane)}')
    e(f's_and_b32 {s(sQF)}, s2, 3'); e(f's_bfe_u32 {s(sT0)}, s2, 0x10002'); e(f's_lshr_b32 {s(sT1)}, s2, 5')
    e(f's_lshl_b32 {s(sT0)}, {s(sT0)}, 3'); e(f's_add_u32 {s(sT)}, {s(sT0)}, {s(sT1)}'); e(f's_bfe_u32 {s(sM)}, s2, 0x20003')
    e(f's_lshr_b32 {s(sI)}, {s(sW)}, 1'); e(f's_and_b32 {s(sJ)}, {s(sW)}, 1')
    e(f's_lshl_b32 {s(sM0w)}, {s(sW)}, 12'); e(f's_add_u32 {s(sSP)}, {s(sM0w)}, {SP0}')
    e(f's_lshl_b32 {s(sT0)}, {s(sW)}, 5'); e(f'v_add_u32 {v(vB)}, {s(sT0)}, {v(vL3)}'); e(f'v_mul_u32_u24 {v(vB)}, 1152, {v(vB)}')
    for q in range(4):
        e(f'v_or_b32 {v(vI2)}, {4*(q&1)}, {v(vL4)}'); e(f'v_xor_b32 {v(vI2)}, {v(vI2)}, {v(vC7)}')
        e(f'v_lshl_add_u32 {v(vXO[q])}, {v(vI2)}, 4, {v(vB)}')
        if q: e(f'v_add_u32 {v(vXO[q])}, {8192*q}, {v(vXO[q])}')
    e(f's_mul_i32 s3, {s(sT)}, {128*1152}')
    e(f's_lshl_b32 {s(sT0)}, {s(sQF)}, 4'); e(f's_lshl_b32 {s(sT1)}, {s(sM)}, 2'); e(f's_add_u32 {s(sT0)}, {s(sT0)}, {s(sT1)}'); e(f's_add_u32 {s(sT0)}, {s(sT0)}, {s(sW)}')
    e(f's_mul_i32 {s(sT0)}, {s(sT0)}, 18'); e(f'v_min_u32 {v(vB)}, 17, {v(vLane)}'); e(f'v_add_u32 {v(vB)}, {s(sT0)}, {v(vB)}'); e(f'v_lshlrev_b32 {v(vB)}, 7, {v(vB)}')
    if stamps: p.raw(f's_memrealtime {s(sSt,2)}')
    p.wait_lg(0)
    if stamps: p.raw(f's_mov_b32 s101, {s(sSt)}')
    def srd(r, ptr, nbytes, back=0):
        if back:
            e(f's_sub_u32 {s(r)}, {s(ptr)}, {back}'); e(f's_subb_u32 {s(r+1)}, {s(ptr+1)}, 0')
        else:
            e(f's_mov_b32 {s(r)}, {s(ptr)}'); e(f's_mov_b32 {s(r+1)}, {s(ptr+1)}')
        e(f's_mov_b32 {s(r+2)}, {nbytes + back}'); e(f's_mov_b32 {s(r+3)}, 0x20000')
    slow = []
    e('s_cmp_eq_u32 s2, 0'); e(f's_cbranch_scc1 {name}_nw'); p.label(f'{name}_nn')
    slow.append([f'{name}_nw:', f's_memrealtime {s(sSt,2)}', 's_waitcnt lgkmcnt(0)', f's_lshl_b32 {s(sT1)}, {s(sSt+1)}, 4', f's_xor_b32 {s(sT1)}, {s(sT1)}, {SALT}', f's_or_b32 {s(sT2)}, {s(sSt)}, 1',
                 f'v_mov_b32 {v(vT)}, {s(sT2)}', f'v_mov_b32 {v(vT+1)}, {s(sT1)}', f'v_mov_b32 {v(vT+2)}, 0', f's_cmp_lg_u32 {s(sW)}, 0', f's_cbranch_scc1 {name}_nn',
                 f'global_store_dwordx2 {v(vT+2)}, {v(vT,2)}, {s(sDbg,2)} sc1', f's_branch {name}_nn'])
    srd(SX, KA + 0, S * D * 2)
    if 'noxt' not in opt: e(f'buffer_load_dword {v(vJS2)}, {v(vB)}, {s(SX,4)}, s3 offen', junk=True)
    SEC = {}; SEC['srd'] = cap[0] = []
    srd(SQ, KA + 2, D * 3 * D * 2, back=4096); srd(SGt, KA + 8, D * F * 2); srd(SU, KA + 10, D * F * 2, back=2048)
    srd(SWS, KA + 18, WS_USED); srd(SH, KA + 18, 0); srd(SJS, KA + 12, 0); srd(SJD, KA + 18, REC_OFF)
    if stamps:
        e(f's_lshl_b32 {s(sStO)}, s2, 2'); e(f's_add_u32 {s(sStO)}, {s(sStO)}, {s(sW)}'); e(f's_lshl_b32 {s(sStO)}, {s(sStO)}, 8'); e(f's_add_u32 {s(sStO)}, {s(sStO)}, {STAMP_OFF}')
    SEC['xr'] = cap[0] = []
    vQ = vL4
    e(f'v_lshrrev_b32 {v(vI2)}, 1, {v(vN)}'); e(f'v_xor_b32 {v(vI2)}, {v(vI2)}, {v(vQ)}'); e(f'v_lshlrev_b32 {v(vI2)}, 4, {v(vI2)}')
    e(f'v_lshl_add_u32 {v(vI2)}, {v(vN)}, 7, {v(vI2)}')
    e(f'v_add_u32 {v(vXR[0])}, {s(sM0w)}, {v(vI2)}'); e(f'v_xor_b32 {v(vXR[1])}, 64, {v(vXR[0])}')
    vONE = T[24]
    e(f's_mov_b32 {s(sOnes)}, 0x3f803f80')
    for k in range(4): e(f'v_mov_b32 {v(vONE+k)}, {s(sOnes)}')
    vXP = [T[7], T[35]]
    for kk in range(2): e(f'v_xor_b32 {v(vXP[kk])}, 4096, {v(vXR[kk])}')
    e(f'v_add_u32 {v(vXR[2])}, {s(sSP)}, {v(vL16)}'); e(f'v_xor_b32 {v(vXR[3])}, 4096, {v(vXR[2])}')
    SEC['wdma'] = cap[0] = []
    def wdma_off(dst, stride, rows_per_wave, pp, bit3):
        e(f's_mul_i32 {s(sT0)}, {s(sW)}, {rows_per_wave}'); e(f's_add_u32 {s(sT0)}, {s(sT0)}, {8*pp}')
        e(f'v_add_u32 {v(vB)}, {s(sT0)}, {v(vL3)}'); e(f'v_mul_u32_u24 {v(vB)}, {stride}, {v(vB)}')
        e(f'v_and_b32 {v(vI2)}, 1, {v(vL4)}'); e(f'v_lshlrev_b32 {v(vI2)}, 1, {v(vI2)}')
        if bit3 == 'w':
            e(f's_lshl_b32 {s(sT0)}, {s(sJ)}, 2'); e(f'v_or_b32 {v(vI2)}, {s(sT0)}, {v(vI2)}')
        elif bit3: e(f'v_or_b32 {v(vI2)}, 4, {v(vI2)}')
        e(f'v_xor_b32 {v(vI2)}, {v(vI2)}, {v(vC7)}'); e(f'v_lshl_add_u32 {v(dst)}, {v(vI2)}, 4, {v(vB)}')
        if pp: e(f'v_subrev_u32 {v(dst)}, {1024*pp}, {v(dst)}')
    wdma_off(vDM, 9216, 16, 0, 0); wdma_off(vDM + 1, 9216, 16, 1, 1)
    vQD = T[16:18]; vKD = T[18]
    wdma_off(vQD[0], 3456, 16, 0, 0); wdma_off(vQD[1], 3456, 16, 1, 1); wdma_off(vKD, 3456, 8, 0, 'w')
    e(f'v_lshrrev_b32 {v(vI2)}, 3, {v(vN)}'); e(f'v_and_b32 {v(vU)}, 1, {v(vQ)}'); e(f'v_lshl_or_b32 {v(vI2)}, {v(vU)}, 1, {v(vI2)}')
    e(f'v_lshlrev_b32 {v(vI2)}, 5, {v(vI2)}')
    e(f'v_and_b32 {v(vU)}, 3, {v(vN)}'); e(f'v_lshl_or_b32 {v(vI2)}, {v(vU)}, 3, {v(vI2)}')
    e(f'v_lshrrev_b32 {v(vU)}, 2, {v(vN)}'); e(f'v_lshl_or_b32 {v(vTL)}, {v(vU)}, 7, {v(vI2)}')
    e(f'v_lshrrev_b32 {v(vU)}, 1, {v(vQ)}'); e(f'v_lshlrev_b32 {v(vU)}, 12, {v(vU)}')
    e(f'v_and_b32 {v(vI2)}, 1, {v(vQ)}'); e(f'v_lshl_or_b32 {v(vU)}, {v(vI2)}, 10, {v(vU)}'); e(f'v_or_b32 {v(vU)}, {v(vU)}, {v(vTL)}')
    e(f's_lshl_b32 {s(sT0)}, {s(sJ)}, 6'); e(f'v_xor_b32 {v(vTR)}, {s(sT0)}, {v(vU)}'); e(f'v_xor_b32 {v(vTR+1)}, 32, {v(vTR)}')
    for r in (1, 2):
        for tt in range(2): e(f'v_add_u32 {v(vTR+2*r+tt)}, {65536*r}, {v(vTR+tt)}')
    e(f'v_lshlrev_b32 {v(vI2)}, 1, {v(vL4)}'); e(f'v_xor_b32 {v(vI2)}, {v(vI2)}, {v(vC7)}'); e(f'v_lshlrev_b32 {v(vI2)}, 4, {v(vI2)}')
    e(f'v_mul_u32_u24 {v(vU)}, 1152, {v(vL3)}'); e(f'v_add_u32 {v(vJS)}, {v(vU)}, {v(vI2)}')
    e(f'v_lshlrev_b32 {v(vU)}, 9, {v(vQ)}'); e(f'v_add_u32 {v(vU)}, {s(sSP)}, {v(vU)}'); e(f'v_add_u32 {v(vJT)}, {v(vU)}, {v(vTL)}')
    SEC['const'] = cap[0] = []
    vONE = T[24]; vSEL = T[28]; vF1 = T[34]
    assert vONE % 4 == 0 and vSEL % 4 == 0
    e(f'v_mov_b32 {v(vF1)}, 1.0')
    e(f'v_lshrrev_b32 {v(vU)}, 2, {v(vN)}'); e(f'v_cmp_eq_u32 {s(mk[0],2)}, {v(vU)}, {v(vQ)}')
    e(f'v_and_b32 {v(vU)}, 3, {v(vN)}')
    for k in (1, 2, 3): e(f'v_cmp_eq_u32 {s(mk[k],2)}, {k}, {v(vU)}')
    e(f'v_and_b32 {v(vI2)}, 1, {v(vN)}'); e(f'v_lshlrev_b32 {v(vI2)}, 4, {v(vI2)}'); e(f'v_mov_b32 {v(vB)}, 0x3f80'); e(f'v_lshlrev_b32 {v(vB)}, {v(vI2)}, {v(vB)}')
    e(f'v_cndmask_b32 {v(vB)}, 0, {v(vB)}, {s(mk[0],2)}')
    e(f'v_cmp_gt_u32 vcc, 2, {v(vU)}')
    for k in (0, 1, 4, 5): e(f'v_mov_b32 {v(vSEL+k)}, 0')
    e(f'v_cndmask_b32 {v(vSEL+2)}, 0, {v(vB)}, vcc'); e(f'v_cndmask_b32 {v(vSEL+3)}, {v(vB)}, 0, vcc')
    def ffn_dma(slot, tag=None):
        return [f's_add_u32 m0, {s(sM0w)}, {slot*16384}', None,
                (f'buffer_load_dwordx4 {v(vDM)}, {s(SGt,4)}, {s(sWo)} offen lds', tag or f'slot{slot}'),
                (f'buffer_load_dwordx4 {v(vDM+1)}, {s(SGt,4)}, {s(sWo)} offen offset:1024 lds', tag or f'slot{slot}'),
                (f'buffer_load_dwordx4 {v(vDM)}, {s(SU,4)}, {s(sWo)} offen offset:2048 lds', tag or f'slot{slot}'),
                (f'buffer_load_dwordx4 {v(vDM+1)}, {s(SU,4)}, {s(sWo)} offen offset:3072 lds', tag or f'slot{slot}'),
                f's_add_u32 {s(sWo)}, {s(sWo)}, {CH}']
    def put(lst):
        for x in lst:
            if x is None: continue
            if callable(x): x()
            elif isinstance(x, tuple): e(x[0], x[1])
            else: e(x)
    def kv_dma(ks, vk):
        slot = ks % 6; out = []
        for st in range(6):
            if st % 4 == 0: out.append(f's_add_u32 m0, {s(sKm)}, {slot*24576 + (st//4)*4096}')
            out.append((f'buffer_load_dwordx4 {v(vk)}, {s(SQ,4)}, {s(sKV+st)} offen offset:{1024*(st%4)} lds', f'kv{ks}'))
            out.append(f's_add_u32 {s(sKV+st)}, {s(sKV+st)}, {32*3456}')
        return out
    SEC['scal'] = cap[0] = []
    e(f's_mul_i32 {s(sT0)}, {s(sM)}, 5'); e(f's_sub_u32 {s(sT0)}, {s(sT0)}, 2'); e(f's_max_i32 {s(sT0)}, {s(sT0)}, 0')
    e(f's_mul_i32 {s(sT1)}, {s(sQF)}, 18'); e(f's_add_u32 {s(sT0)}, {s(sT0)}, {s(sT1)}')
    e(f's_lshl_b32 {s(sWo)}, {s(sT0)}, 7')
    e(f's_sub_u32 {s(sT0)}, {s(sM)}, 4'); e(f's_cmp_eq_u32 {s(sM)}, 0'); e(f's_cselect_b32 {s(sT0)}, 11, {s(sT0)}')
    e(f's_add_u32 {s(sT0)}, {s(sT0)}, {s(sT1)}'); e(f's_lshl_b32 {s(sT0)}, {s(sT0)}, 1'); e(f's_add_u32 {s(sT0)}, {s(sT0)}, {s(sJ)}')
    e(f's_lshl_b32 {s(sT1)}, {s(sT)}, 3'); e(f's_lshl_b32 {s(sT2)}, {s(sI)}, 2'); e(f's_add_u32 {s(sT1)}, {s(sT1)}, {s(sT2)}')
    e(f's_lshl_b32 {s(sT2)}, {s(sJ)}, 1')
    sTB = [SG.get(f'tb{b}') for b in range(4)]
    for b in range(4):
        e(f's_xor_b32 {s(sTB[b])}, {s(sT2)}, {b}'); e(f's_add_u32 {s(sTB[b])}, {s(sTB[b])}, {s(sT1)}')
        e(f's_mul_i32 {s(sH+b)}, {s(sTB[b])}, 144'); e(f's_add_u32 {s(sH+b)}, {s(sH+b)}, {s(sT0)}'); e(f's_lshl_b32 {s(sH+b)}, {s(sH+b)}, 10')
    e(f's_cmp_eq_u32 {s(sM)}, 0'); e(f's_cselect_b32 {s(sCnt)}, 2, 4')
    e(f's_lshr_b32 {s(sT0)}, s2, 5'); e(f's_and_b32 {s(sT1)}, s2, 7'); e(f's_lshl_b32 {s(sT0)}, {s(sT0)}, 3'); e(f's_add_u32 {s(sT0)}, {s(sT0)}, {s(sT1)}')
    e(f's_mul_i32 {s(sT0)}, {s(sT0)}, 3'); e(f's_add_u32 {s(sT0)}, {s(sT0)}, {s(sM)}'); e(f's_sub_u32 {s(sT0)}, {s(sT0)}, 1')
    e(f's_lshl_b32 {s(sT0)}, {s(sT0)}, 2'); e(f's_add_u32 {s(sJob)}, {s(sT0)}, {s(sW)}')
    e(f's_cmp_eq_u32 {s(sM)}, 0'); e(f's_cselect_b32 {s(sJob)}, 4096, {s(sJob)}')
    if 'nojobs' in opt: e(f's_mov_b32 {s(sJob)}, 4096')
    e(f's_mov_b32 {s(sOp)}, {s(KA+14)}'); e(f's_mov_b32 {s(sOp+1)}, {s(KA+15)}')
    e(f's_mul_i32 {s(sLine)}, {s(sQF)}, 3'); e(f's_add_u32 {s(sLine)}, {s(sLine)}, {s(sM)}'); e(f's_sub_u32 {s(sLine)}, {s(sLine)}, 1')
    SEC['jobs'] = cap[0] = []
    for n in range(2):
        jb = JP[6 * n: 6 * n + 6]
        e(f's_mov_b32 {s(jb[2])}, {F*D*2}')
        e(f's_cmp_lt_u32 {s(sJob)}, {NJOB_WD}')
        e(f's_cselect_b32 {s(jb[0])}, {s(KA+12)}, {s(KA+4)}'); e(f's_cselect_b32 {s(jb[1])}, {s(KA+13)}, {s(KA+5)}')
        e(f's_cselect_b32 {s(jb[2])}, {s(jb[2])}, {D*D*2}'); e(f's_cselect_b32 {s(sT0)}, 0, {NJOB_WD}')
        e(f's_sub_u32 {s(sT0)}, {s(sJob)}, {s(sT0)}'); e(f's_mul_i32 {s(sT1)}, {s(sT0)}, 7282'); e(f's_lshr_b32 {s(sT1)}, {s(sT1)}, 16')
        e(f's_mul_i32 {s(jb[3])}, {s(sT1)}, {32*1152 - 9*128}'); e(f's_lshl_b32 {s(sT2)}, {s(sT0)}, 7'); e(f's_add_u32 {s(jb[3])}, {s(jb[3])}, {s(sT2)}')
        e(f's_mul_i32 {s(sT2)}, {s(sT1)}, 9'); e(f's_sub_u32 {s(sT0)}, {s(sT0)}, {s(sT2)}'); e(f's_lshl_b32 {s(sT0)}, {s(sT0)}, 2')
        e(f's_mul_i32 {s(sJo)}, {s(sT0)}, 7282'); e(f's_lshr_b32 {s(sJo)}, {s(sJo)}, 16')
        e(f's_mul_i32 {s(sT2)}, {s(sJo)}, 9'); e(f's_sub_u32 {s(sT0)}, {s(sT0)}, {s(sT2)}')
        e(f's_sub_u32 {s(jb[5])}, 9, {s(sT0)}')
        e(f's_mul_i32 {s(sJo)}, {s(sJo)}, {144*9}'); e(f's_add_u32 {s(sJo)}, {s(sJo)}, {s(sT0)}')
        e(f's_mul_i32 {s(sT0)}, {s(sT1)}, 1821'); e(f's_lshr_b32 {s(sT0)}, {s(sT0)}, 16'); e(f's_mul_i32 {s(sT0)}, {s(sT0)}, 36')
        e(f's_sub_u32 {s(sT1)}, {s(sT1)}, {s(sT0)}'); e(f's_and_b32 {s(sT2)}, {s(sT1)}, 1'); e(f's_add_u32 {s(sT0)}, {s(sT0)}, {s(sT2)}'); e(f's_lshr_b32 {s(sT1)}, {s(sT1)}, 1')
        e(f's_mul_i32 {s(sT2)}, {s(sT1)}, 5')
        lo = sum(pos_of_double(d) << (5 * d) for d in range(6)); mi = sum(pos_of_double(6 + d) << (5 * d) for d in range(6)); hi = sum(pos_of_double(12 + d) << (5 * d) for d in range(6))
        e(f's_mov_b32 {s(jb[4])}, {lo}'); e(f's_cmp_ge_u32 {s(sT1)}, 6'); e(f's_cselect_b32 {s(jb[4])}, {mi}, {s(jb[4])}'); e(f's_cselect_b32 {s(mk[3])}, 30, 0')
        e(f's_cmp_ge_u32 {s(sT1)}, 12'); e(f's_cselect_b32 {s(jb[4])}, {hi}, {s(jb[4])}'); e(f's_cselect_b32 {s(mk[3])}, 60, {s(mk[3])}')
        e(f's_sub_u32 {s(sT2)}, {s(sT2)}, {s(mk[3])}'); e(f's_lshr_b32 {s(jb[4])}, {s(jb[4])}, {s(sT2)}'); e(f's_and_b32 {s(jb[4])}, {s(jb[4])}, 31')
        e(f's_lshl_b32 {s(jb[4])}, {s(jb[4])}, 1'); e(f's_add_u32 {s(sT0)}, {s(sT0)}, {s(jb[4])}'); e(f's_mul_i32 {s(sT0)}, {s(sT0)}, 9'); e(f's_add_u32 {s(sT0)}, {s(sT0)}, {s(sJo)}')
        e(f's_lshl_b32 {s(sT0)}, {s(sT0)}, 10'); e(f's_lshl_b32 {s(sT1)}, {s(sJob)}, 12')
        e(f's_cmp_lt_u32 {s(sJob)}, {NJOB_WD}'); e(f's_cselect_b32 {s(sT0)}, {s(sT0)}, {s(sT1)}'); e(f's_cselect_b32 {s(jb[5])}, {s(jb[5])}, 9')
        e(f's_add_u32 {s(jb[4])}, {s(sT0)}, {WT_OFF}'); e(f's_add_u32 {s(jb[5])}, {s(jb[5])}, {REC_OFF}')
        e(f's_cmp_lt_u32 {s(sJob)}, {NJOB}'); e(f's_cselect_b32 {s(jb[2])}, {s(jb[2])}, 0'); e(f's_cselect_b32 {s(jb[5])}, {s(jb[5])}, 0')
        if n == 0: e(f's_add_u32 {s(sJob)}, {s(sJob)}, 768')
    e(f's_mov_b32 {s(sXp)}, {s(SX)}'); e(f's_mov_b32 {s(sXp+1)}, {s(SX+1)}')
    SEC['park'] = cap[0] = []
    APK = JD + 64; vPw = T[39]; npk = [0]
    def park(r):
        e(f'v_writelane_b32 {v(vPw)}, {s(r)}, {npk[0]}'); npk[0] += 1
    tA, tB, tC, tD, tE, tF = sT0, sT1, sT2, mk[0], mk[0] + 1, mk[1]
    tAl, tTl, tK = mk[1] + 1, mk[2], mk[2] + 1
    e(f's_mul_i32 {s(tA)}, {s(sM)}, 144'); e(f's_mul_i32 {s(tB)}, {s(sQF)}, 36'); e(f's_add_u32 {s(tA)}, {s(tA)}, {s(tB)}'); e(f's_mul_i32 {s(tA)}, {s(tA)}, 9216'); e(f's_add_u32 {s(tA)}, {s(tA)}, {WT_OFF}')
    e(f's_add_u32 {s(tC)}, {s(tA)}, {s(sM0w)}'); park(tC)
    e(f's_mul_i32 {s(tC)}, {s(sW)}, 9216'); park(tC)
    e(f's_add_u32 {s(tA)}, {s(tA)}, {s(tC)}'); e(f's_add_u32 {s(tA)}, {s(tA)}, {4*SLOT}'); park(tA)
    e(f's_lshl_b32 {s(tA)}, {s(sT)}, 3'); e(f's_lshl_b32 {s(tC)}, {s(sW)}, 1'); e(f's_add_u32 {s(tA)}, {s(tA)}, {s(tC)}'); e(f's_mul_i32 {s(tA)}, {s(tA)}, 144')
    e(f's_add_u32 {s(tA)}, {s(tA)}, {s(tB)}'); e(f's_lshl_b32 {s(tA)}, {s(tA)}, 10'); park(tA); e(f's_add_u32 {s(tA)}, {s(tA)}, {144*1024}'); park(tA)
    e(f's_mul_i32 {s(tA)}, s2, 10923'); e(f's_lshr_b32 {s(tA)}, {s(tA)}, 16'); e(f's_mul_i32 {s(tB)}, {s(tA)}, 6'); e(f's_sub_u32 {s(tB)}, s2, {s(tB)}'); e(f's_lshr_b32 {s(tB)}, {s(tB)}, 1')
    e(f's_mul_i32 {s(tC)}, {s(tA)}, 7282'); e(f's_lshr_b32 {s(tC)}, {s(tC)}, 16'); e(f's_mul_i32 {s(tD)}, {s(tC)}, 9'); e(f's_sub_u32 {s(tTl)}, {s(tA)}, {s(tD)}')
    e(f's_add_u32 {s(tAl)}, {s(tTl)}, {s(tB)}'); e(f's_sub_u32 {s(tAl)}, {s(tAl)}, 1'); e(f's_and_b32 {s(tK)}, s2, 1')
    e(f's_and_b32 {s(tD)}, {s(tA)}, 1'); e(f's_add_u32 {s(tD)}, {s(tD)}, {s(tB)}'); e(f's_sub_u32 {s(tD)}, {s(tD)}, 1')
    e(f's_lshl_b32 {s(tE)}, {s(tK)}, 10'); e(f's_lshl_b32 {s(tF)}, {s(tD)}, 3'); e(f's_add_u32 {s(tE)}, {s(tE)}, {s(tF)}'); e(f's_lshl_b32 {s(tF)}, {s(tK)}, 3'); e(f's_add_u32 {s(tF)}, {s(tF)}, 2048')
    e(f's_cmp_lt_u32 {s(tD)}, 2'); e(f's_cselect_b32 {s(tE)}, {s(tE)}, {s(tF)}')
    e(f's_mul_i32 {s(tA)}, {s(tA)}, 3072'); e(f's_add_u32 {s(tE)}, {s(tE)}, {s(tA)}'); e(f's_lshl_b32 {s(tF)}, {s(sW)}, 8'); e(f's_add_u32 {s(tE)}, {s(tE)}, {s(tF)}'); e(f's_add_u32 {s(tE)}, {s(tE)}, {REC_OFF}')
    e(f's_max_i32 {s(tA)}, {s(tAl)}, {s(tTl)}'); e(f's_cmp_gt_i32 {s(tA)}, 4'); e(f's_cselect_b32 {s(tA)}, 1, 0')
    e(f's_lshl_b32 {s(tB)}, {s(tA)}, 2'); e(f's_sub_u32 {s(tD)}, {s(tAl)}, {s(tB)}'); e(f's_sub_u32 {s(tB)}, {s(tTl)}, {s(tB)}'); e(f's_add_u32 {s(tB)}, {s(tB)}, {s(tD)}')
    e(f's_cmp_eq_u32 {s(tK)}, 0'); e(f's_cselect_b32 {s(tB)}, {s(tB)}, 13'); e(f's_add_u32 {s(tB)}, {s(tB)}, {s(tD)}')
    e(f's_lshl_b32 {s(tC)}, {s(tC)}, 1'); e(f's_add_u32 {s(tC)}, {s(tC)}, {s(tA)}'); e(f's_mul_i32 {s(tC)}, {s(tC)}, 18'); e(f's_add_u32 {s(tB)}, {s(tB)}, {s(tC)}')
    e(f's_lshl_b32 {s(tB)}, {s(tB)}, 10'); e(f's_add_u32 {s(tB)}, {s(tB)}, {s(tF)}'); e(f's_add_u32 {s(tB)}, {s(tB)}, {KVP_OFF}'); park(tB); park(tE)
    e(f's_cmp_lt_u32 {s(tAl)}, 9'); e(f's_cselect_b32 {s(tA)}, {WT_OFF}, 0'); e('s_cmp_lt_u32 s2, 216'); e(f's_cselect_b32 {s(tA)}, {s(tA)}, 0'); e(f's_cselect_b32 {s(tB)}, {STAMP_OFF}, 0')
    park(tA); park(tB)
    e(f's_lshl_b32 {s(tA)}, s2, 3'); e(f's_add_u32 {s(tA)}, {s(tA)}, {RECF_OFF}'); park(tA)
    e(f's_lshl_b32 {s(tTl)}, {s(tTl)}, 4'); park(tTl)
    e(f's_lshl_b32 {s(tA)}, {s(tAl)}, 4'); e(f's_lshl_b32 {s(tB)}, {s(sW)}, 2'); e(f's_add_u32 {s(tA)}, {s(tA)}, {s(tB)}'); e(f's_mul_i32 {s(tA)}, {s(tA)}, 3641')
    for r in range(4):
        e(f's_lshr_b32 {s(tB)}, {s(tA)}, 16'); park(tB)
        if r < 3: e(f's_add_u32 {s(tA)}, {s(tA)}, 3641')
    e(f's_lshl_b32 {s(tA)}, {s(sT)}, 2'); e(f's_add_u32 {s(tA)}, {s(tA)}, {s(sQF)}'); e(f's_mul_i32 {s(tC)}, {s(tA)}, {32*1152}'); e(f's_mul_i32 {s(tB)}, {s(sM)}, 288'); e(f's_add_u32 {s(tC)}, {s(tC)}, {s(tB)}'); park(tC)
    e(f's_mul_i32 {s(tB)}, {s(sW)}, {9*3072}'); e(f's_add_u32 {s(tB)}, {s(tB)}, {REC_OFF}'); park(tB)
    e(f's_mul_i32 {s(tB)}, {s(sM)}, {9*1024}'); e(f's_add_u32 {s(tC)}, {s(tB)}, {WOT_OFF + 8192}'); park(tC)
    e(f's_lshl_b32 {s(tC)}, {s(sW)}, 10'); e(f's_add_u32 {s(tB)}, {s(tB)}, {s(tC)}'); e(f's_add_u32 {s(tB)}, {s(tB)}, {WOT_OFF}'); park(tB)
    e(f's_mul_i32 {s(tA)}, {s(tA)}, 36'); e(f's_mul_i32 {s(tB)}, {s(sW)}, 9'); e(f's_lshr_b32 {s(tB)}, {s(tB)}, 1'); e(f's_add_u32 {s(tA)}, {s(tA)}, {s(tB)}'); e(f's_lshl_b32 {s(tA)}, {s(tA)}, 10')
    e(f's_add_u32 {s(tA)}, {s(tA)}, {PQ_OFF}'); park(tA); e(f's_add_u32 {s(tA)}, {s(tA)}, {18*1024}'); park(tA)
    e(f's_and_b32 {s(tA)}, s2, 0xfc'); e(f's_add_u32 {s(tA)}, {s(tA)}, {s(sW)}'); e(f's_lshl_b32 {s(tB)}, {s(tA)}, 4'); e(f's_add_u32 {s(tB)}, {s(tB)}, {s(sQF)}')
    e(f's_lshl_b32 {s(tB)}, {s(tB)}, 3'); e(f's_add_u32 {s(tB)}, {s(tB)}, {FLAG_OFF}'); park(tB)
    e(f's_lshl_b32 {s(tA)}, {s(tA)}, 2'); e(f's_add_u32 {s(tA)}, {s(tA)}, {s(sQF)}'); e(f's_mul_i32 {s(tA)}, {s(tA)}, 9216'); e(f's_add_u32 {s(tA)}, {s(tA)}, {PART_OFF}'); park(tA)
    e(f's_cmp_eq_u32 {s(sW)}, {s(sQF)}'); e(f's_cselect_b32 {s(tA)}, 0, {STAMP_OFF}'); park(tA)
    e(f's_add_u32 {s(tA)}, {s(sQF)}, 1'); e(f's_and_b32 {s(tA)}, {s(tA)}, 3'); park(tA)
    e(f'v_accvgpr_write_b32 {a(APK)}, {v(vPw)}')
    SEC['type'] = cap[0] = []
    QB = 73728
    sQo = sKV
    e(f's_lshl_b32 {s(sT0)}, {s(sQF)}, 8')
    for st in range(6):
        e(f's_add_u32 {s(sKV+st)}, {s(sT0)}, {4096 + 1152*(1 + st//3) + 128*(st%3) - 1024*(st%4)}')
    e(f's_mul_i32 {s(sKm)}, {s(sW)}, 6144')
    e(f's_lshl_b32 {s(sT0)}, {s(sLine)}, 7'); e(f's_add_u32 {s(sT0)}, {s(sT0)}, 4096'); e(f's_lshr_b32 {s(sT1)}, {s(sM0w)}, 1')
    e(f's_cmp_eq_u32 {s(sM)}, 0'); e(f's_cselect_b32 {s(sKV)}, {s(sKV)}, {s(sT0)}'); e(f's_cselect_b32 {s(sKm)}, {s(sKm)}, {s(sT1)}')
    SEC['touch'] = cap[0] = []
    vTq = T[21]
    e(f's_cmp_lt_u32 {s(sW)}, 2'); e(f's_cselect_b32 {s(SH)}, {s(SGt)}, {s(SU)}'); e(f's_cselect_b32 {s(SH+1)}, {s(SGt+1)}, {s(SU+1)}')
    e(f's_cselect_b32 {s(sT0)}, 0, 2048'); e(f's_add_u32 {s(SH+2)}, {s(sT0)}, {D*F*2}')
    e(f's_add_u32 {s(sTo)}, {s(sWo)}, {s(sT0)}')
    e(f's_mul_i32 {s(sT0)}, {s(sT)}, 36'); e(f's_mul_i32 {s(sT1)}, {s(sJ)}, 18'); e(f's_add_u32 {s(sT1)}, {s(sT1)}, {s(sT0)}')
    e(f'v_add_u32 {v(vU)}, {s(sT1)}, {v(vLane)}'); e(f'v_mul_u32_u24 {v(vU)}, 9216, {v(vU)}'); e(f'v_mov_b32 {v(vI2)}, 0x40000000')
    e(f'v_cmp_gt_u32 vcc, 18, {v(vLane)}'); e(f'v_cndmask_b32 {v(vTg)}, {v(vI2)}, {v(vU)}, vcc')
    e(f'v_mul_u32_u24 {v(vU)}, 57, {v(vLane)}'); e(f'v_lshrrev_b32 {v(vU)}, 9, {v(vU)}')
    e(f'v_mul_u32_u24 {v(vB)}, 9, {v(vU)}'); e(f'v_sub_u32 {v(vB)}, {v(vLane)}, {v(vB)}')
    e(f's_mul_i32 {s(sT1)}, {s(sW)}, 9'); e(f's_add_u32 {s(sT1)}, {s(sT1)}, {s(sT0)}'); e(f'v_add_u32 {v(vB)}, {s(sT1)}, {v(vB)}'); e(f'v_mul_u32_u24 {v(vB)}, 3456, {v(vB)}')
    e(f'v_lshl_add_u32 {v(vB)}, {v(vU)}, 7, {v(vB)}'); e(f'v_cmp_lt_u32 vcc, 2, {v(vU)}'); e(f'v_add_u32 {v(vTq)}, {1152 - 384}, {v(vB)}'); e(f'v_cndmask_b32 {v(vB)}, {v(vB)}, {v(vTq)}, vcc')
    e(f's_cmp_lt_u32 {s(sLine)}, 9'); e(f's_cselect_b32 {s(sT1)}, 1, 0'); e(f's_cmp_eq_u32 {s(sM)}, 0'); e(f's_cselect_b32 {s(sT1)}, 6, {s(sT1)}')
    e(f'v_cmp_gt_u32 vcc, {s(sT1)}, {v(vU)}'); e(f'v_cndmask_b32 {v(vTq)}, {v(vI2)}, {v(vB)}, vcc')
    junk = lambda t: (lambda: e(t, junk=True))
    def gtouch(r=SX): return [junk(f'buffer_load_dword {v(vJS2)}, {v(vTg)}, {s(r,4)}, {s(sTo)} offen'), f's_add_u32 {s(sTo)}, {s(sTo)}, 128']
    e(f'v_mul_u32_u24 {v(vU)}, 1152, {v(vLane)}'); e(f'v_cmp_gt_u32 vcc, 32, {v(vLane)}'); e(f'v_cndmask_b32 {v(vTj)}, {v(vI2)}, {v(vU)}, vcc')
    def jtouch(): return [f's_mov_b32 {s(SJS+q)}, {s(JP[q])}' for q in range(3)] + ([] if 'nojt' in opt else [junk(f'buffer_load_dword {v(vJS2)}, {v(vTj)}, {s(SJS,4)}, {s(JP[3])} offen' + (' nt' if 'jnt' in opt else ''))])
    touches = gtouch() + (gtouch() if 't2' in opt else []) + jtouch()
    if 'notouch' in opt: touches = jtouch()[:3]
    else: put([junk(f'buffer_load_dword {v(vJS2)}, {v(vTq)}, {s(SQ,4)}, {s(sKV)} offen')] + gtouch(SH))
    SEC['late'] = cap[0] = []
    for q in range(3): e(f's_mov_b32 {s(SX+q)}, {s(SH+q)}')
    e(f's_mov_b32 {s(SH)}, {s(SWS)}'); e(f's_mov_b32 {s(SH+1)}, {s(SWS+1)}'); e(f's_mov_b32 {s(SH+2)}, 0')
    SUM = lambda b: ACC + 4 * b
    SQ_ = lambda b: ACC + 16 + 4 * b
    pend = []
    def stats(b, ks):
        c0 = '0' if ks == 0 else v(SUM(b), 4); c1 = '0' if ks == 0 else v(SQ_(b), 4)
        e(f'v_mfma_f32_16x16x32_bf16 {v(SUM(b),4)}, {v(vONE,4)}, {xf(b,ks)}, {c0}')
        e(f'v_mfma_f32_16x16x32_bf16 {v(SQ_(b),4)}, {xf(b,ks)}, {xf(b,ks)}, {c1}')
    cap[0] = None
    tv = [x for x in SEC['touch'] if x[0].startswith('buffer_load')]; ta = [x for x in SEC['touch'] if x[0].startswith('s_add_u32 ' + s(sTo) + ', ' + s(sTo))]
    SEC['touch'] = [x for x in SEC['touch'] if x not in tv and x not in ta]
    SETA = sum((SEC[n] for n in ('srd', 'xr', 'scal', 'type', 'wdma', 'jobs', 'park', 'touch', 'const')), []); SETB = tv + ta + SEC['late']
    def scc_safe(L):
        for t, _, _ in L:
            mn = t.split()[0]
            if mn.startswith(('s_cselect', 's_addc', 's_subb')): return False
            if mn.startswith('s_') and not mn.startswith(('s_mov', 's_mul')): return True
        return True
    def some(L, n):
        while L and (n > 0 or not scc_safe(L)):
            e(*L.pop(0)); n -= 1
    def xline(l):
        nonlocal pend
        p.wait_tag(f'x{l}')
        if l in (4, 8):
            for k in range(2): e(f'v_add_u32 {v(vXR[k])}, 65536, {v(vXR[k])}')
        cur = []
        for kk in range(2):
            for b in range(2):
                e(f'ds_read_b128 {xf(b, 2*l+kk)}, {v(vXR[kk])} offset:{(l%4)*16384 + b*2048}')
                cur.append((b, 2 * l + kk))
        if l % 3 == 2:
            e('s_barrier')
            for l2 in range(l - 2, l + 1):
                if l2 in (4, 8):
                    for k in range(2): prd.append(f'v_add_u32 {v(vXP[k])}, 65536, {v(vXP[k])}')
                prd.extend(f'ds_read_b128 {xf(2 + b, 2*l2+kk)}, {v(vXP[kk])} offset:{(l2%4)*16384 + b*2048}' for kk in range(2) for b in range(2))
        old, pend = pend, cur
        return old
    prd = []
    def someP(n):
        for _ in range(n):
            if prd: e(prd.pop(0))
    LAG = 4
    per = -(-len(SETA) // 36)
    for l in range(9):
        e(f's_add_u32 m0, {s(sM0w)}, {l*16384}')
        if l: e('s_add_u32 s3, s3, 128')
        todo = xline(l - LAG) if l >= LAG else []
        for q in range(4):
            e(f'buffer_load_dwordx4 {v(vXO[q])}, {s(SX,4)}, s3 offen offset:{1024*q} lds', tag=f'x{l}')
            if todo: stats(*todo.pop(0))
            someP(1); some(SETA, per)
    if stamps: p.raw(f's_memrealtime {s(sSt,2)}'); p.raw('s_waitcnt lgkmcnt(0)'); p.raw(f's_mov_b32 s3, {s(sSt)}')
    some(SETA, 999)
    if 'tend' not in opt: some(SETB, 999)
    for l in range(9 - LAG, 9):
        todo = xline(l)
        while todo:
            stats(*todo.pop(0)); someP(2)
    while pend:
        stats(*pend.pop(0)); someP(3)
    some(SETB, 999); someP(99)
    stamp()
    for b in range(2):
        for r in range(4): e(f'v_mul_f32 {v(SUM(b)+r)}, {fhex(-1.0/576)}, {v(SUM(b)+r)}')
        e(f'ds_write_b128 {v(vXR[2])}, {v(SUM(b),4)} offset:{1024*b}')
    p.wait_lg(0); e('s_barrier')
    for b in range(2): e(f'ds_read_b128 {v(SUM(2+b),4)}, {v(vXR[3])} offset:{1024*b}')
    stamp()
    st0 = p.snapshot()
    tmpv = T[36]
    CT = [T[40 + 8 * k] for k in range(3)]
    order = [(b, ks) for ks in range(18) for b in range(2)] + [(2 + b, ks) for ks in range(18) for b in range(2)]
    vNn, vNz = T[22], T[38]
    def center(mem, lab):
        e(f'v_mov_b32 {v(vNz)}, 0'); e(f'global_load_dwordx2 {v(vNn,2)}, {v(vNz)}, {s(sDbg,2)} sc1')
        mem = [x for x in mem if x]
        nm = sum(1 for x in mem if not isinstance(x, str)); done = [0]
        def one():
            while mem:
                x = mem.pop(0); put([x])
                if not isinstance(x, str):
                    done[0] += 1; break
        extra = []
        for b in range(2):
            q_ = SQ_(b)
            extra += [f'v_cndmask_b32 {v(tmpv+b)}, {v(q_)}, {v(q_+1)}, {s(mk[1],2)}', f'v_cndmask_b32 {v(tmpv+b)}, {v(tmpv+b)}, {v(q_+2)}, {s(mk[2],2)}',
                      f'v_cndmask_b32 {v(tmpv+b)}, {v(tmpv+b)}, {v(q_+3)}, {s(mk[3],2)}', f'v_cndmask_b32 {v(tmpv+b)}, 0, {v(tmpv+b)}, {s(mk[0],2)}']
        extra += [None] + [f'v_mfma_f32_16x16x4_f32 {v(SQ_(b),4)}, {v(vF1)}, {v(tmpv+b)}, 0' for b in range(2)]
        extra += [f'v_mul_f32 {v(tmpv+b)}, {v(SUM(b))}, {v(SUM(b))}' for b in range(2)] + [f's_mov_b32 {s(sT0)}, {fhex(1.0/576)}', None]
        for b in range(2):
            extra += [f'v_fma_f32 {v(tmpv+b)}, {v(SQ_(b))}, {s(sT0)}, -{v(tmpv+b)}', f'v_max_f32 {v(tmpv+b)}, 0, {v(tmpv+b)}',
                      f'v_add_f32 {v(tmpv+b)}, {fhex(1e-5)}, {v(tmpv+b)}', f'v_rsq_f32 {v(vRS+b)}, {v(tmpv+b)}', f'v_rcp_f32 {v(vRS2+b)}, {v(tmpv+b)}']
        extra += [f'ds_write_b64 {v(vXR[2])}, {v(vRS,2)} offset:2048', f'ds_write_b64 {v(vXR[2])}, {v(vRS2,2)} offset:2056', None, None, None,
                  lambda: (p.wait_lg(0), e('s_barrier')), f'ds_read_b64 {v(vRS+2,2)}, {v(vXR[3])} offset:2048', f'ds_read_b64 {v(vRS2+2,2)}, {v(vXR[3])} offset:2056']
        for n in range(72 + 2):
            pk = [[], [], [], []]; m = [None, None]
            if n < 72:
                b, ks = order[n]; t = CT[n % 3]
                m = [f'v_mfma_f32_16x16x32_bf16 {v(t,4)}, {v(vSEL+2,4)}, {xf(b,ks)}, {v(SUM(b),4)}',
                     f'v_mfma_f32_16x16x32_bf16 {v(t+4,4)}, {v(vSEL,4)}, {xf(b,ks)}, {v(SUM(b),4)}']
            if n >= 2:
                b, ks = order[n - 2]; t = CT[(n - 2) % 3]; f = fidx(b, ks)
                for d in range(4):
                    if f < NXV: pk[d] = [f'v_cvt_pk_bf16_f32 {v(XV + 4*f + d)}, {v(t+2*d)}, {v(t+2*d+1)}']
                    else: pk[d] = [f'v_cvt_pk_bf16_f32 {v(t+2*d)}, {v(t+2*d)}, {v(t+2*d+1)}', f'v_accvgpr_write_b32 {a(XA + 4*(f-NXV) + d)}, {v(t+2*d)}']
            put([m[0]] + pk[0] + pk[1] + [m[1]] + pk[2] + pk[3])
            if extra: put([extra.pop(0)])
            if done[0] * 66 < nm * (n + 1): one()
        assert not extra
        while mem: one()
        e(f'v_readfirstlane_b32 {s(sN)}, {v(vNn)}'); e(f'v_readfirstlane_b32 {s(sN+1)}, {v(vNn+1)}')
        e(f's_cmp_eq_u32 {s(sN)}, 0'); e(f's_cbranch_scc1 {lab}_nw'); p.label(f'{lab}_nd')
        slow.append([f'{lab}_nw:', f's_mov_b32 {s(sSpin)}, {SPIN}', f'{lab}_nw2:', f'global_load_dwordx2 {v(vNn,2)}, {v(vNz)}, {s(sDbg,2)} sc1', 's_waitcnt vmcnt(0)',
                     f'v_readfirstlane_b32 {s(sN)}, {v(vNn)}', f'v_readfirstlane_b32 {s(sN+1)}, {v(vNn+1)}', f's_sub_u32 {s(sSpin)}, {s(sSpin)}, 1',
                     f's_cmp_lg_u32 {s(sN)}, 0', f's_cbranch_scc1 {lab}_nd', f's_cmp_lg_u32 {s(sSpin)}, 0', f's_cbranch_scc1 {lab}_nw2', f's_branch {lab}_nd'])
        stamp(2)
    def q_dma(c):
        return [f's_add_u32 m0, {s(sKm)}, {QB + 8192*c}', (f'buffer_load_dwordx4 {v(vQD[0])}, {s(SQ,4)}, {s(sQo)} offen lds', f'q{c}'),
                (f'buffer_load_dwordx4 {v(vQD[1])}, {s(SQ,4)}, {s(sQo)} offen offset:1024 lds', f'q{c}'), f's_add_u32 {s(sQo)}, {s(sQo)}, {64*3456}']
    e(f's_cmp_eq_u32 {s(sM)}, 0'); e(f's_cbranch_scc1 {name}_kv')
    e(f's_cmp_lt_u32 {s(sLine)}, 9'); e(f's_cbranch_scc1 {name}_q')
    center([x for c in range(8) for x in ffn_dma(c)] + touches, name + '_f')
    stF = p.snapshot(); stF = (stF[0], [x for x in stF[1] if str(x[1]).startswith('slot')])
    e(f's_branch {name}_hdr')

    def phi2(x, rs, rsl, t):
        return [f'v_pk_mul_f32 {v(t,2)}, {v(x,2)}, {v(rsl[0],2)}{rsl[1]}', f'v_pk_fma_f32 {v(x,2)}, {v(x,2)}, {v(rs[0],2)}, {s(sEps,2)}{rs[2]}',
                f'v_exp_f32_e64 {v(t)}, {v(t)} clamp', f'v_exp_f32_e64 {v(t+1)}, {v(t+1)} clamp',
                f'v_max_f32 {v(x)}, {s(sEps)}, {v(x)}', f'v_max_f32 {v(x+1)}, {s(sEps)}, {v(x+1)}', f'v_pk_add_f32 {v(x,2)}, {v(x,2)}, {v(t,2)}']
    def bc(reg):
        h = reg & 1
        return (reg & ~1, f' op_sel:[0,{h}] op_sel_hi:[1,{h}]', f' op_sel:[0,{h},0] op_sel_hi:[1,{h},1]')
    pr = lambda reg: (reg, '', '')
    def weave(seqs, between=None):
        for k in range(max(map(len, seqs))):
            for sq in seqs:
                if k < len(sq): e(sq[k])
            if between: between()
    def set_eps(): e(f's_mov_b32 {s(sEps)}, {fhex(1e-6)}'); e(f's_mov_b32 {s(sEps+1)}, {fhex(1e-6)}')
    wf = lambda g, kk: a(WF + 8 * (g % 3) + 4 * kk, 4)
    def tr4(g, base_reg, off, kstride):
        out = []
        for kk in range(2):
            for h in range(2):
                out.append(f'ds_read_b64_tr_b16 {a(WF + 8*(g%3) + 4*kk + 2*h, 2)}, {v(base_reg)} offset:{off + kk*kstride + h*512}')
        return out
    p.label(f'{name}_q'); p.restore(st0)
    center([x for c in range(9) for x in q_dma(c)] + [x for c in range(4) for x in ffn_dma(c)] + touches, name + '_qq')
    vQT = [ACC + 0, ACC + 1]
    e(f'v_lshrrev_b32 {v(ACC+2)}, 5, v0'); e(f'v_and_b32 {v(ACC+2)}, 1, {v(ACC+2)}'); e(f'v_lshlrev_b32 {v(ACC+2)}, 11, {v(ACC+2)}')
    e(f'v_subrev_u32 {v(ACC+2)}, {QB}, {v(ACC+2)}')
    for tt in range(2): e(f'v_sub_u32 {v(vQT[tt])}, {v(vTR+tt)}, {v(ACC+2)}')
    p.wait_tag('q8'); e('s_barrier')
    qtr = lambda g: tr4(g, vQT[g % 2], ((g // 2) % 4) * 8192 + (32768 if g // 2 == 8 else 0), 4096)
    for x in qtr(0) + qtr(1): e(x)
    nxt_slot = 4
    for g in range(18):
        c, tt = g // 2, g % 2
        mains = []; sl = Slots(8)
        for b in range(4):
            for kk in range(2):
                acc = PR + 16 * tt + 4 * b
                cc = '0' if (c == 0 and kk == 0) else v(acc, 4)
                mains.append(f'v_mfma_f32_16x16x32_bf16 {v(acc,4)}, {wf(g,kk)}, {xf(b, 2*c+kk)}, {cc}')
        sl.fix(-1, lambda g=g: p.need(a(WF + 8 * (g % 3), 8)))
        if g in (2, 6, 10, 14): sl.fix(-1, 's_barrier')
        if g + 2 < 18:
            if g + 2 == 8:
                for tt2 in range(2): sl.fix(-1, f'v_add_u32 {v(vQT[tt2])}, 32768, {v(vQT[tt2])}')
            for k, x in enumerate(qtr(g + 2)): sl.fix(2 * k, x)
        if g in (2, 6, 10, 14):
            sl.stream(0, [x for x in ffn_dma(nxt_slot) if x]); nxt_slot += 1
        interleave(p, mains, sl.f)
    stamp(3)
    qtail = []
    set_eps()
    for b in range(4): e(f'v_mul_f32 {v(ACC+4+b)}, {fhex(LOG2E)}, {v(vRS+b)}')
    for b in range(4):
        weave([phi2(PR + 16 * tt + 4 * b + r, bc(vRS + b), bc(ACC + 4 + b), ACC + 8 + 4 * tt + r) for tt in range(2) for r in (0, 2)],
              lambda: put([qtail.pop(0)]) if qtail else None)
        o = PR + 4 * b
        e(f'v_cvt_pk_bf16_f32 {v(o)}, {v(o)}, {v(o+1)}'); e(f'v_cvt_pk_bf16_f32 {v(o+1)}, {v(o+2)}, {v(o+3)}')
        e(f'v_cvt_pk_bf16_f32 {v(o+2)}, {v(o+16)}, {v(o+17)}'); e(f'v_cvt_pk_bf16_f32 {v(o+3)}, {v(o+18)}, {v(o+19)}')
        e(f's_mul_i32 {s(sT0)}, {s(sTB[b])}, 18'); e(f's_lshl_b32 {s(sT2)}, {s(sLine)}, 1'); e(f's_add_u32 {s(sT0)}, {s(sT0)}, {s(sT2)}'); e(f's_add_u32 {s(sT0)}, {s(sT0)}, {s(sJ)}')
        e(f's_lshl_b32 {s(sT0)}, {s(sT0)}, 10'); e(f's_add_u32 {s(sT0)}, {s(sT0)}, {PQ_OFF}')
        e(f'buffer_store_dwordx4 {v(o,4)}, {v(vL16)}, {s(SWS,4)}, {s(sT0)} offen sc1')
    assert not qtail
    e(f's_branch {name}_hdr')
    p.label(f'{name}_kv'); p.restore(st0)
    center([x for ks in range(6) for x in kv_dma(ks, vKD)] + touches, name + '_kk')
    def kacc(ct, b):
        if ct >= 5: return ('v', ACC + 16 * (ct - 5) + 4 * b)
        return ('v', ACC + 80 + 4 * b) if ct == 0 else ('a', JD + 16 * (ct - 1) + 4 * b)
    vKT = [vT + k for k in range(4)]
    e(f'v_and_b32 {v(vT+4)}, 15, v0'); e(f'v_lshlrev_b32 {v(vT+4)}, 2, {v(vT+4)}'); e(f'v_add_u32 {v(vT+4)}, {s(sSP)}, {v(vT+4)}')
    e(f'v_bfe_u32 {v(vT+5)}, v0, 4, 2'); e(f'v_mul_u32_u24 {v(vT+5)}, 6144, {v(vT+5)}')
    e(f'v_and_b32 {v(vT+6)}, 0x1ff, {v(vTR)}'); e(f's_lshl_b32 {s(sT0)}, {s(sJ)}, 6'); e(f'v_xor_b32 {v(vT+6)}, {s(sT0)}, {v(vT+6)}')
    for u in range(4):
        e(f's_add_u32 {s(sT0)}, {s(sQF)}, {u}'); e(f's_and_b32 {s(sT1)}, {s(sT0)}, 3'); e(f's_lshl_b32 {s(sT1)}, {s(sT1)}, 5')
        e(f's_lshr_b32 {s(sT0)}, {s(sT0)}, 2'); e(f's_add_u32 {s(sT0)}, {s(sT0)}, {s(sJ)}'); e(f's_lshl_b32 {s(sT0)}, {s(sT0)}, 10')
        e(f'v_xor_b32 {v(vKT[u])}, {s(sT1)}, {v(vT+6)}'); e(f'v_add3_u32 {v(vKT[u])}, {v(vKT[u])}, {s(sT0)}, {v(vT+5)}')
    vKD2 = vT + 6
    e(f'v_mov_b32 {v(vKD2)}, {v(vKD)}')
    NR, LA = 6, 3
    kfr = lambda n: WF + 4 * (n % NR)
    def ktr(n):
        ks, ct = divmod(n, 10); aa = ct % 5
        off = (ks % 2) * 24576 + (aa // 4) * 1024 + (ct // 5) * 3072
        return [f'ds_read_b64_tr_b16 {a(kfr(n) + 2*h, 2)}, {v(vKT[aa % 4])} offset:{off + 512*h}' for h in range(2)]
    p.wait_tag('kv0'); e('s_barrier')
    for n in range(LA):
        for x in ktr(n): e(x)
    ffn_at = {14: [0], 15: [1, 2], 16: [3], 17: [4, 5]}
    for ks in range(18):
        mains = []; sl = Slots(40)
        for ct in range(10):
            n = ks * 10 + ct
            for b in range(4):
                kd, base = kacc(ct, b); acc = R(kd, base, 4)
                mains.append(f'v_mfma_f32_16x16x32_bf16 {acc}, {xf(b,ks)}, {a(kfr(n),4)}, {"0" if ks == 0 else acc}')
            sl.fix(4 * ct - 1, lambda n=n: p.need(a(kfr(n), 4)))
            if n + LA < 180:
                if (n + LA) % 10 == 0:
                    nk = (n + LA) // 10
                    sl.fix(4 * ct - 1, lambda nk=nk: p.wait_tag(f'kv{nk}')); sl.fix(4 * ct, 's_barrier')
                    if nk % 2 == 0:
                        dlt = 49152 if nk % 6 else -98304
                        for u in range(4): sl.fix(4 * ct - 3 + u // 2, f'v_add_u32 {v(vKT[u])}, {dlt & 0xffffffff:#x}, {v(vKT[u])}')
                t2 = ktr(n + LA)
                late = (n + LA) % 10 == 0
                early = (n + LA) % 10 == 9
                sl.fix(4 * ct + (1 if late else 0), t2[0]); sl.fix(4 * ct + (0 if early else 2), t2[1])
        dm = []
        if ks == 3: sl.stream(30, [f'ds_write_b32 {v(vT+4)}, {v(vRS+b)} offset:{64*b}' for b in range(4)])
        if 2 <= ks <= 13: dm = kv_dma(ks + 4, vKD2)
        elif ks in ffn_at: dm = [x for t in ffn_at[ks] for x in ffn_dma(t) if x]
        sl.stream(0, dm, last=26)
        interleave(p, mains, sl.f)
    p.wait_lg(0); e('s_barrier')
    stamp(4)
    FQ = lambda n: ACC + 16 * (n % 5) + 4 + 8 * (n // 5)
    e(f'v_bfe_u32 {v(vRS)}, v0, 4, 2'); e(f'v_lshlrev_b32 {v(vRS)}, 4, {v(vRS)}'); e(f'v_add_u32 {v(vRS)}, {s(sSP)}, {v(vRS)}')
    e(f'ds_read_b128 {v(vT,4)}, {v(vRS)}'); e(f'ds_read_b128 {v(vT+4,4)}, {v(vRS)} offset:64')
    for k in range(4): e(f'v_accvgpr_write_b32 {a(WF+k)}, {s(sOnes)}')
    set_eps()
    ktail = [x for x in ffn_dma(6) + ffn_dma(7) if x]
    RT = [[vT, vT + 4], [FQ(0), FQ(1)]]; RL = [[FQ(2), FQ(3)], [FQ(4), FQ(5)]]; RAW = [FQ(6), FQ(7)]; EXT = [FQ(8), FQ(9)]
    PV = {}; PK = {}
    for hb in range(2):
        for T_ in range(5):
            base = ACC + 16 * T_ + 8 * hb
            for k in range(0, 8, 2): e(f'v_pk_mul_f32 {v(base+k,2)}, {v(base+k,2)}, {v(RT[hb][k//4] + k%4, 2)}')
            for d in range(4): e(f'v_cvt_pk_bf16_f32 {v(base+d)}, {v(base+2*d)}, {v(base+2*d+1)}')
            PV[T_, hb] = v(base, 4)
            if hb == 0 and T_ == 1:
                e(f'ds_read_b128 {v(FQ(0),4)}, {v(vRS)} offset:128'); e(f'ds_read_b128 {v(FQ(1),4)}, {v(vRS)} offset:192')
            put([ktail.pop(0)])
    e(f's_mov_b32 {s(sT0)}, {fhex(LOG2E)}')
    for hb in range(2):
        for k in range(8): e(f'v_mul_f32 {v(RL[hb][k//4] + k%4)}, {s(sT0)}, {v(RT[hb][k//4] + k%4)}')
        put([ktail.pop(0)])
    assert not ktail
    e(f's_lshl_b32 {s(sT1)}, {s(sT)}, 1'); e(f's_add_u32 {s(sT1)}, {s(sT1)}, {s(sI)}'); e(f's_lshl_b32 {s(sT1)}, {s(sT1)}, 3')
    e(f's_lshl_b32 {s(sT0)}, {s(sQF)}, 1'); e(f's_add_u32 {s(sT0)}, {s(sT0)}, {s(sJ)}'); e(f's_add_u32 {s(sT1)}, {s(sT1)}, {s(sT0)}')
    e(f's_mul_i32 {s(sT1)}, {s(sT1)}, {18*1024}'); e(f's_add_u32 {s(sT1)}, {s(sT1)}, {KVP_OFF}'); e(f's_add_u32 {s(sT0)}, {s(sT1)}, {13*1024}')
    DT = [WF + 4 + 4 * k for k in range(5)]; nd = [0]; stq = []
    def kvmm(aa):
        for T_ in [T_ for T_ in (aa - 1, aa, aa + 1) if 0 <= T_ < 5] + [None]:
            d = a(DT[nd[0] % 5], 4); nd[0] += 1
            for hb in range(2):
                e(f'v_mfma_f32_16x16x32_bf16 {d}, {PK[aa, hb]}, {a(WF,4) if T_ is None else PV[T_, hb]}, {"0" if hb == 0 else d}')
            u = 13 + aa if T_ is None else KV_PAIRS.index((aa, T_))
            stq.append(f'buffer_store_dwordx4 {d}, {v(vL16)}, {s(SWS,4)}, {s(sT2)} offen sc1'); stq.insert(len(stq) - 1, f's_add_u32 {s(sT2)}, {s(sT1)}, {1024*u}')
    for aa in range(6):
        for hb in range(2):
            if aa == 5: break
            if aa == 0: src = [ACC + 80 + 8 * hb, ACC + 84 + 8 * hb]
            else:
                src = RAW
                if hb == 0: kvmm(aa - 1)
                for k in range(8): e(f'v_accvgpr_read_b32 {v(RAW[k//4] + k%4)}, {a(JD + 16*(aa-1) + 8*hb + k)}')
            weave([phi2(src[k//4] + k%4, pr(RT[hb][k//4] + k%4), pr(RL[hb][k//4] + k%4), EXT[k//4] + k%4) for k in range(0, 8, 2)],
                  lambda: put([stq.pop(0), stq.pop(0)]) if stq else None)
            if aa == 0:
                for d in range(4): e(f'v_cvt_pk_bf16_f32 {v(src[0]+d)}, {v(src[d//2] + 2*(d%2))}, {v(src[d//2] + 2*(d%2) + 1)}')
                PK[aa, hb] = v(src[0], 4)
            else:
                for d in range(4): e(f'v_cvt_pk_bf16_f32 {v(EXT[0]+d)}, {v(src[d//2] + 2*(d%2))}, {v(src[d//2] + 2*(d%2) + 1)}')
                for d in range(4): e(f'v_accvgpr_write_b32 {a(JD + 16*(aa-1) + 8*hb + d)}, {v(EXT[0]+d)}')
                PK[aa, hb] = a(JD + 16 * (aa - 1) + 8 * hb, 4)
    kvmm(4); put(stq)
    p.label(f'{name}_hdr'); p.restore(stF)
    stamp(5)
    acc = lambda ai, b: ACC + 16 * ai + 4 * b
    def ftr(G):
        G %= 36; c, g = divmod(G, 4)
        return tr4(G, vTR + 2 * (c // 4) + (g >> 1), (c % 4) * 16384 + (g & 1) * 2048, 8192)
    vPg, vP0 = vT + 4, vT + 6
    e(f'v_mov_b32 {v(vPg)}, {s(sN)}'); e(f'v_mov_b32 {v(vPg+1)}, {s(sN+1)}'); e(f'v_min_u32 {v(vP0)}, 1, v0'); e(f'v_lshlrev_b32 {v(vP0)}, 30, {v(vP0)}')
    e(f's_mov_b32 {s(sInc)}, {6*1024}'); e(f's_mov_b32 {s(sIncL)}, {10*1024}')
    e(f's_cmp_eq_u32 {s(sM)}, 0'); e(f's_cselect_b32 {s(sInc)}, {2*1024}, {s(sInc)}'); e(f's_cselect_b32 {s(sIncL)}, {8*1024}, {s(sIncL)}')
    e(f's_lshl_b32 {s(sT0)}, {s(sT)}, 2'); e(f's_add_u32 {s(sT0)}, {s(sT0)}, {s(sQF)}'); e(f's_lshl_b32 {s(sT0)}, {s(sT0)}, 5'); e(f's_add_u32 {s(sPc)}, {s(sT0)}, {PROG_OFF}')
    e(f's_lshl_b32 {s(sT0)}, {s(sM)}, 3'); e(f's_add_u32 {s(sPg)}, {s(sPc)}, {s(sT0)}')
    vHt, sHt = vRS, sKm
    e(f'v_and_b32 {v(vT)}, 63, v0'); e(f'v_lshrrev_b32 {v(vT+1)}, 3, {v(vT)}'); e(f'v_mul_u32_u24 {v(vT+1)}, {144*1024}, {v(vT+1)}'); e(f'v_and_b32 {v(vHt)}, 7, v0')
    e(f'v_lshl_add_u32 {v(vHt)}, {v(vHt)}, 7, {v(vT+1)}'); e(f'v_cmp_gt_u32 vcc, 32, {v(vT)}'); e(f'v_mov_b32 {v(vT+1)}, 0x40000000')
    e(f's_mul_i32 {s(sT0)}, {s(sJ)}, {2*144*1024}'); e(f's_sub_u32 {s(sHt)}, {s(sH)}, {s(sT0)}')
    e(f'v_cndmask_b32 {v(vHt)}, {v(vT+1)}, {v(vHt)}, vcc')
    def htouch(inc): return ([] if 'noht' in opt else [1]) and [junk(f'buffer_load_dword {v(vJS2)}, {v(vHt)}, {s(SH,4)}, {s(sHt)} offen')] + ([f's_add_u32 {s(sHt)}, {s(sHt)}, {s(inc)}'] if inc else [])
    def put2(sl, k, items):
        for x in items:
            if callable(x):
                while sl.cnt.get(k, 0): k += 1
                sl.fix(k, x, cost=2)
            else: k = sl.stream(k, [x])
        return k
    def check(lab, data, need, reload, pre=(), inline=True):
        seq = [f'v_xor_b32 {v(data)}, {s(sN)}, {v(data)}', f'v_sub_u32 {v(data+1)}, {v(data+1)}, {need}', f'v_lshrrev_b32 {v(data+1)}, 4, {v(data+1)}',
               f'v_or_b32 {v(data)}, {v(data)}, {v(data+1)}', f'v_cmp_ne_u32 vcc, 0, {v(data)}']
        spin = [f's_mov_b32 {s(sSpin)}, {SPIN}', f'{lab}_w2:', reload, 's_waitcnt vmcnt(0)'] + seq + \
               [f's_sub_u32 {s(sSpin)}, {s(sSpin)}, 1', 's_cmp_eq_u64 vcc, 0', f's_cbranch_scc1 {lab}_d', f's_cmp_lg_u32 {s(sSpin)}, 0', f's_cbranch_scc1 {lab}_w2', f's_branch {lab}_d']
        def f():
            if inline:
                put(seq); e('s_nop 0'); e('s_cmp_eq_u64 vcc, 0'); e(f's_cbranch_scc0 {lab}_w'); blk = [f'{lab}_w:'] + spin
            else:
                p.need(v(data, 2)); e(f's_cmp_eq_u32 {s(sCnt)}, 1'); e(f's_cbranch_scc1 {lab}_w')
                blk = [f'{lab}_w:'] + list(pre) + seq + ['s_nop 0', 's_cmp_eq_u64 vcc, 0', f's_cbranch_scc1 {lab}_d'] + spin
            p.label(f'{lab}_d')
            if blk not in slow: slow.append(blk)
        return f
    p.wait_tag('slot0'); e('s_barrier')
    for x in ftr(0) + ftr(1): e(x)
    def prod(h, b): return [f'v_mul_f32 {v(PR + 16*h + 4*b + r)}, {v(acc(2*h, b) + r)}, {v(acc(2*h+1, b) + r)}' for r in range(4)]
    def fin(b, inc):
        o = PR + 4 * b
        return ([f'v_mul_f32 {v(o + 16*h + r)}, {v(o + 16*h + r)}, {v(vRS2+b)}' for h in range(2) for r in range(4)] +
                [f'v_cvt_pk_bf16_f32 {v(o)}, {v(o)}, {v(o+1)}', f'v_cvt_pk_bf16_f32 {v(o+1)}, {v(o+2)}, {v(o+3)}',
                 f'v_cvt_pk_bf16_f32 {v(o+2)}, {v(o+16)}, {v(o+17)}', f'v_cvt_pk_bf16_f32 {v(o+3)}, {v(o+18)}, {v(o+19)}',
                 (f'buffer_store_dwordx4 {v(o,4)}, {v(vL16)}, {s(SH,4)}, {s(sH+b)} offen sc1', 'h')] +
                ([f's_add_u32 {s(sH+b)}, {s(sH+b)}, {s(inc)}'] if inc else []))
    progress = [f'v_add_u32 {v(vPg+1)}, 1, {v(vPg+1)}', f'buffer_store_dwordx2 {v(vPg,2)}, {v(vP0)}, {s(SWS,4)}, {s(sPg)} offen sc1']
    def slab(sl, mains, last):
        for G in range(36):
            c, g = divmod(G, 4)
            for b in range(4):
                for kk in range(2):
                    cc = '0' if (c == 0 and kk == 0) else v(acc(g, b), 4)
                    mains.append(f'v_mfma_f32_16x16x32_bf16 {v(acc(g,b),4)}, {wf(G,kk)}, {xf(b, 2*c+kk)}, {cc}')
            if G == 0 or (G - 1) % 4 == 2: sl.fix(8 * G - 1, lambda G=G: p.need(a(WF + 8 * (G % 3), 8)))
            if g != 2 and G < 35: sl.fix(8 * G + 6, lambda G=G: p.need(a(WF + 8 * ((G + 1) % 3), 8)))
            if g == 2:
                tag = f'slot{(c+1)%9}' if not (last and c == 8) else 'slot2'
                if c == 7: sl.fix(8 * G - 2, lambda: p.wait_tag('h'))
                sl.fix(8 * G - 1, lambda tag=tag: p.wait_tag(tag)); sl.fix(8 * G, 's_barrier')
            if not (last and G >= 34):
                for k, x in enumerate(ftr(G + 2)): sl.fix(8 * G + 2 * k + (1 if g == 2 else 0), x)
        sl.stream(8 * 33 + 5, prod(0, 0), last=8 * 34 - 1, cap=3)
        sl.stream(0, prod(1, 0) + prod(1, 1) + prod(1, 2) + prod(1, 3), last=15)
    def body():
        mains = []; sl = Slots(288)
        slab(sl, mains, False)
        sl.stream(8 * 34 + 1, prod(0, 1) + prod(0, 2) + prod(0, 3), last=287)
        for c in range(9):
            d = [x for x in ffn_dma((c - 1) % 9) if x]
            if c == 0: d[-1] = f's_add_u32 {s(sWo)}, {s(sWo)}, {(128 - 8*CH) & 0xffffffff:#x}'
            if c < 8: sl.stream(32 * c + 17, d, last=32 * c + 31, gap=1)
            else: sl.stream(32 * c + 17, d, last=287, cap=3)
        j1 = [f's_mov_b32 {s(sJo)}, {s(JP[3])}', f's_mov_b32 {s(SJD+2)}, {s(JP[5])}', f's_and_b32 {s(sCr)}, {s(JP[5])}, 15']
        k = sl.stream(16, j1, last=31)
        if 'notouch' not in opt:
            g_ = gtouch(); sl.fix(67, g_[0], cost=2); sl.stream(68, g_[1:])
        jl = [f's_mov_b32 m0, {s(sSP)}']
        for q in range(4):
            jl += [(f'buffer_load_dwordx4 {v(vJS)}, {s(SJS,4)}, {s(sJo)} offen offset:{1024*q}' + (' nt' if 'jnt' in opt else '') + ' lds', 'job'), f's_add_u32 {s(sJo)}, {s(sJo)}, 8192']
        k = sl.stream(32, jl, last=47, gap=1)
        k = sl.stream(16, fin(0, sInc) + fin(1, sInc) + fin(2, sInc) + fin(3, sInc), gap=1)
        j2 = [f's_mov_b32 {s(sJo)}, {s(JP[4])}'] + [f's_mov_b32 {s(JP[q])}, {s(JP[6+q])}' for q in range(6)]
        j2 += [f's_mov_b32 {s(JP[8])}, 0', f's_mov_b32 {s(JP[11])}, 0']
        j2 += [f'v_xor_b32 {v(vT+u)}, {32*u}, {v(vJT)}' for u in range(1, 4)]
        k = sl.stream(k + 1, j2)
        jt = jtouch(); k = sl.stream(k, jt[:3])
        if jt[3:]:
            k = (k + 2) | 1
            while sl.cnt.get(k, 0): k += 1
            sl.fix(k, jt[3], cost=2)
        assert k < 32 * 6
        j3 = [lambda: p.wait_tag('job')]
        for u in range(4):
            for h in range(2): j3.append(f'ds_read_b64_tr_b16 {a(JD + 4*u + 2*h, 2)}, {v(vT+u) if u else v(vJT)} offset:{2048*h}')
        k = sl.stream(32 * 6, j3, gap=1)
        for u in range(4):
            if u:
                k += 1; sl.fix(k, lambda u=u: put([f's_cmp_le_u32 {s(sCr)}, {u}', f's_cselect_b32 {s(sT0)}, {(144*9 - 9)*1024}, 0', f's_add_u32 {s(sT0)}, {s(sT0)}, {s(sJo)}']), cost=2)
            k = sl.stream(k + 2, [f'buffer_store_dwordx4 {a(JD+4*u,4)}, {v(vL16)}, {s(SJD,4)}, {s(sT0 if u else sJo)} offen offset:{1024*u} sc1'])
        assert k < 8 * 30 - 2, k
        k = sl.stream(8 * 30 + 8, progress); put2(sl, k, htouch(sInc) + [f's_mov_b32 {s(SH+2)}, {0 if "nohst" in opt else PQ_OFF}'])
        vPd, vPa, vPn = vRS + 2, vRS + 1, vT
        pollA = f'buffer_load_dwordx2 {v(vPd,2)}, {v(vPa)}, {s(SWS,4)}, 0 offen sc1'
        if 'lateA' not in opt: sl.stream(32 * 5, [f'v_lshlrev_b32 {v(vPa)}, 3, v0', f'v_add_u32 {v(vPa)}, {PROG_OFF}, {v(vPa)}', pollA])
        if 'lateA' not in opt: sl.fix(8 * 30 - 4, check(name + '_ca', vPd, v(vPn), pollA, inline=False,
               pre=[f'v_and_b32 {v(vPn)}, 3, v0', f'v_min_u32 {v(vPn)}, 1, {v(vPn)}', f'v_lshl_add_u32 {v(vPn)}, {v(vPn)}, 1, 1', f'v_add_u32 {v(vPn)}, {s(sN+1)}, {v(vPn)}']), cost=2)
        def pull():
            e(f's_cmp_eq_u32 {s(sCnt)}, 1'); e(f's_cbranch_scc1 {name}_pw'); p.label(f'{name}_pd')
            t0, t1, t2 = vT, vT + 1, vT + 2
            blk = [f'{name}_pw:', f's_and_b32 {s(sT0)}, {s(sT)}, 7', f's_lshl_b32 {s(sT0)}, {s(sT0)}, 2', f's_add_u32 {s(sT0)}, {s(sT0)}, {s(sW)}',
                   f's_mul_i32 {s(sT1)}, {s(sM)}, 144', f's_mul_i32 {s(sT2)}, {s(sQF)}, 36', f's_add_u32 {s(sT1)}, {s(sT1)}, {s(sT2)}', f's_mul_i32 {s(sT1)}, {s(sT1)}, 9216',
                   f's_mul_i32 {s(sT2)}, {s(sT0)}, {81*128}', f's_add_u32 {s(sT1)}, {s(sT1)}, {s(sT2)}', f's_add_u32 {s(sT1)}, {s(sT1)}, {WT_OFF}',
                   f'v_lshlrev_b32 {v(t0)}, 3, {v(vL16)}', f'v_min_u32 {v(t1)}, {16*128}, {v(t0)}',
                   f'buffer_load_dword {v(vJS2)}, {v(t0)}, {s(SWS,4)}, {s(sT1)} offen', f's_add_u32 {s(sT1)}, {s(sT1)}, 8192',
                   f'buffer_load_dword {v(vJS2)}, {v(t1)}, {s(SWS,4)}, {s(sT1)} offen',
                   f's_mul_i32 {s(sT0)}, {s(sT0)}, 41', f'v_lshrrev_b32 {v(t0)}, 4, {v(vL16)}', f'v_min_u32 {v(t1)}, 40, {v(t0)}', f'v_add_u32 {v(t1)}, {s(sT0)}, {v(t1)}', f'v_min_u32 {v(t1)}, 1295, {v(t1)}',
                   f'v_mul_u32_u24 {v(t2)}, 3641, {v(t1)}', f'v_lshrrev_b32 {v(t2)}, 18, {v(t2)}', f'v_mul_u32_u24 {v(t2)}, {36*1024 - 72*128}, {v(t2)}', f'v_lshl_add_u32 {v(t1)}, {v(t1)}, 7, {v(t2)}',
                   f's_mul_i32 {s(sT1)}, {s(sM)}, 9216', f's_add_u32 {s(sT1)}, {s(sT1)}, {WOT_OFF}',
                   f'buffer_load_dword {v(vJS2)}, {v(t1)}, {s(SWS,4)}, {s(sT1)} offen',
                   f's_lshl_b32 {s(sT0)}, {s(sT)}, 2', f's_add_u32 {s(sT0)}, {s(sT0)}, {s(sQF)}', f's_lshl_b32 {s(sT0)}, {s(sT0)}, 4', f's_lshl_b32 {s(sT1)}, {s(sM)}, 2', f's_add_u32 {s(sT0)}, {s(sT0)}, {s(sT1)}',
                   f's_add_u32 {s(sT0)}, {s(sT0)}, {s(sW)}', f's_mul_i32 {s(sT0)}, {s(sT0)}, {18*128}', f's_add_u32 {s(sT0)}, {s(sT0)}, {PQ_OFF}',
                   f'v_min_u32 {v(t0)}, 17, {v(t0)}', f'v_lshlrev_b32 {v(t0)}, 7, {v(t0)}', f'buffer_load_dword {v(vJS2)}, {v(t0)}, {s(SWS,4)}, {s(sT0)} offen',
                   f's_branch {name}_pd']
            if blk not in slow: slow.append(blk)
        if 'nopull' not in opt and 'lateA' not in opt: sl.fix(8 * 31 + 6, pull, cost=2)
        if stamps and 'floop' in opt:
            for j_, c_ in enumerate((3, 6, 9)): sl.fix(32 * c_ - 2, lambda j_=j_: stamp(28 + j_, True), cost=2)
        if not ov: ov.append(1); print('overflow loop', [sl.over(32*c, 32*c+32) for c in range(9)], file=__import__('sys').stderr)
        interleave(p, mains, sl.f)
    ov = []
    def back():
        e(f's_sub_u32 {s(sCnt)}, {s(sCnt)}, 1'); e(f's_cmp_lg_u32 {s(sCnt)}, 0'); e(f's_cbranch_scc1 {name}_loop')
    p.loop(body, f'{name}_loop', back)
    stamp(6)

    sC, sQK = sM, sQF
    SO, SJ, SA, SP_ = SQ, SJS, SJD, SGt
    free_s = JP + [sKV + k for k in range(6)] + sTB + [sJob, sJo, sLine, sTo, sCr, sSP, sOnes]
    sWd, sWs, sH2a, sH2b, sJs, sJd, sAl, sTl, sHi, sRec, sWo2, sW8, sPq0, sPq1, sPart, sFl, sSel, sT3, sM0p, sRf = free_s[:20]
    sH2 = [sH2a, sH2b]; sHd = free_s[20:24]; sXo = sAl; vPk = vTj
    PARK = [sWs, sM0p, sWd, sH2a, sH2b, sJs, sJd, SJ + 2, SA + 2, sRf, sTl] + sHd + [sXo, sRec, sW8, sWo2, sPq0, sPq1, sFl, sPart, SP_ + 2, sSel]
    ACC2 = XV
    big = lambda f: ACC + 4 * f if f < 24 else XV + 72 + 4 * (f - 24)
    vLx = [vL16, vTg, vRS + 1]; vRD = [vT, vT + 1, vT + 2, vT + 3]; vXO2, vX8 = vJS, vJT
    vXD = [vTR, vTR + 4, vRS + 2]; TQ = [vT + 4, vRS2 + 2]
    assert vTR % 4 == 0 and (vRS + 2) % 4 == 0 and (vRS2 + 2) % 4 == 0 and XV + 72 + 52 <= 252
    vCk = 252
    HBs = [JD, JD + 32, XA + 16, XA + 48]; AR = XA + 80
    hb = lambda c, b, ks: HBs[c % 4] + 16 * b + 4 * ks
    WR = [XA + 128 + 4 * k for k in range(8)] + [XA + 4 * k for k in range(4)] + [WF + 4 * k for k in range(6)] + [JD + 68, AR + 44] + \
         [HBs[n] + 4 * k for n in (1, 2, 3, 0) for k in range(8)] + [AR, AR + 4]
    wreg = lambda f: WR[f]
    assert npk[0] == len(PARK)
    def hloads(c):
        out = []
        for b in range(2):
            for ks in range(4): out.append(f'buffer_load_dwordx4 {a(hb(c,b,ks),4)}, {v(vL16)}, {s(SWS,4)}, {s(sH2[b])} offen offset:{1024*ks} sc1')
            out.append(f's_add_u32 {s(sH2[b])}, {s(sH2[b])}, 4096')
        return out
    def sdma(slot, tag):
        return [f's_add_u32 m0, {s(sM0w)}, {slot*16384}'] + \
               [(f'buffer_load_dwordx4 {v(vL16)}, {s(SWS,4)}, {s(sWs)} offen offset:{1024*q} sc1 lds', tag) for q in range(4)] + [f's_add_u32 {s(sWs)}, {s(sWs)}, 16384']
    def wdma(c):
        out = []
        for pc in range(9):
            if pc % 4 == 0: out.append(f's_add_u32 m0, {s(sM0p)}, {(c%4)*SLOT + 4096*(pc//4)}')
            out.append((f'buffer_load_dwordx4 {v(vLx[pc//4])}, {s(SWS,4)}, {s(sWd)} offen offset:{1024*(pc%4)} sc1 lds', f'w{c}'))
        out.append(f's_add_u32 {s(sWd)}, {s(sWd)}, {SLOT}')
        return out
    acc2 = lambda aa, b: ACC2 + 8 * aa + 4 * b
    ar = lambda n, ks: AR + 16 * (n % 3) + 4 * ks
    def ard(n):
        c, aa = divmod(n, 9)
        return [f'ds_read_b128 {a(ar(n,ks),4)}, {v(vRD[c%4])} offset:{ks*9216 + aa*1024}' for ks in range(4)]
    grp = lambda *xs: (lambda: put(list(xs)))
    mains = []; sl = Slots(288 + 648); B0 = 288
    slab(sl, mains, True)
    for n in range(2):
        for k, x in enumerate(ard(n)): sl.fix(8 * (34 + n) + 2 * k + (1 if n == 0 else 0), x)
    for n in range(81):
        c, aa = divmod(n, 9)
        for b in range(2):
            for ks in range(4):
                cc = '0' if (c == 0 and ks == 0) else v(acc2(aa, b), 4)
                mains.append(f'v_mfma_f32_16x16x32_bf16 {v(acc2(aa,b),4)}, {a(ar(n,ks),4)}, {a(hb(c,b,ks),4)}, {cc}')
        if n == 0 or (aa == 8 and c < 8): sl.fix(B0 + 8 * n - 1, lambda n=n, c=c, aa=aa: p.need(a(ar(n, 0), 16), *([a(HBs[c % 4], 32)] if aa == 0 else [])))
        if n < 80 and not (aa == 7 and c < 8): sl.fix(B0 + 8 * n + 6, lambda n=n + 1: p.need(a(ar(n, 0), 16), *([a(HBs[(n // 9) % 4], 32)] if n % 9 == 0 else [])))
        late = 0
        if aa == 7 and c < 8:
            tag = ('slot4', 'slot6', 'slot8x')[c] if c < 3 else f'w{c+1}'
            sl.fix(B0 + 8 * n - 1, lambda tag=tag: p.wait_tag(tag)); sl.fix(B0 + 8 * n, 's_barrier'); late = 1
        if aa == 1 and c <= 5: sl.fix(B0 + 8 * n - 4, 's_barrier')
        if n + 2 < 81:
            for k, x in enumerate(ard(n + 2)): sl.fix(B0 + 8 * n + 2 * k + late, x)
    if stamps: sl.fix(B0 - 1, lambda: stamp(7), cost=2)
    if stamps and 'fine' in opt:
        for c in range(1, 9): sl.fix(B0 + 72 * c - 1, lambda c=c: stamp(15 + c), cost=2)
        for c in (2, 4, 6, 8): sl.fix(32 * c - 1, lambda c=c: stamp(24 + c // 2), cost=2)
    sl.stream(8 * 34 + 1, prod(0, 1) + prod(0, 2) + prod(0, 3), last=287)
    sl.stream(B0, prod(1, 0) + prod(1, 1) + prod(1, 2) + prod(1, 3))
    def srd2(r, ptr): return [f's_mov_b32 {s(r)}, {s(ptr)}', f's_mov_b32 {s(r+1)}, {s(ptr+1)}']
    rl = lambda a_, b_: [f'v_readlane_b32 {s(PARK[n])}, {v(vPk)}, {n}' for n in range(a_, b_)]
    def fins(start, inc, pos):
        k = start
        for b in range(4):
            f = fin(b, inc); k = sl.stream(k, f[:12], last=pos[b] - 1)
            if inc: sl.stream(pos[b] + 1, f[13:])
        return k
    JL = XV; vJo = XV + 32; JS, vJt = XV + 72, XV + 76; vJd, vHe = vRS + 2, vRS + 3
    vPd, vPn, vPa = vRS + 2, vTg, vRS + 1
    vCd, vCa, vCn = vCk, vCk + 2, vCk + 3
    REC = lambda tl, pc: big(3 * tl + pc)
    PQ = lambda b, g: big(27 + 5 * b + g)
    pollA = f'buffer_load_dwordx2 {v(vPd,2)}, {v(vPa)}, {s(SWS,4)}, 0 offen sc1'
    sl.stream(14, [f'v_lshlrev_b32 {v(vPa)}, 3, v0', f'v_add_u32 {v(vPa)}, {PROG_OFF}, {v(vPa)}'], cap=3)
    pos = []
    st = [fin(b, None)[12] for b in range(4)]
    sl.spread(17, 79, [pollA] + [x for x in ffn_dma(8) if x][:-1] + st, pos)
    fins(16, sIncL, pos[-4:])
    if 'nochkA' not in opt: sl.fix(8 * 10 - 4, check(name + '_ca', vPd, v(vPn), pollA), cost=2)
    k = sl.stream(18, [f'v_accvgpr_read_b32 {v(vPk)}, {a(APK)}', f'v_and_b32 {v(vPn)}, 3, v0', f'v_min_u32 {v(vPn)}, 1, {v(vPn)}', f'v_lshl_add_u32 {v(vPn)}, {v(vPn)}, 1, 1',
                       f'v_add_u32 {v(vPn)}, {s(sN+1)}, {v(vPn)}'] + rl(0, 8) + srd2(SJ, SWS) + rl(10, 11), last=75)
    jobs0 = [f'v_and_b32 {v(vHe)}, 15, v0', f'v_bfe_u32 {v(vJd)}, v0, 4, 2', f'v_mul_u32_u24 {v(vJo)}, {8*18*1024}, {v(vJd)}', f'v_lshl_add_u32 {v(vJo)}, {v(vHe)}, 4, {v(vJo)}',
             f'v_lshlrev_b32 {v(vJd)}, 28, {v(vJd)}', f'v_lshl_add_u32 {v(vJd)}, {v(vHe)}, 4, {v(vJd)}',
             f'v_add_u32 {v(vHe)}, {s(sTl)}, {v(vHe)}', f'v_mul_u32_u24 {v(vHe)}, 3641, {v(vHe)}', f'v_lshrrev_b32 {v(vHe)}, 16, {v(vHe)}']
    jobl = []
    for k in range(8):
        jobl += [f'buffer_load_dwordx4 {v(JL+4*k,4)}, {v(vJo)}, {s(SJ,4)}, {s(sJs)} offen sc1', f's_add_u32 {s(sJs)}, {s(sJs)}, {4*8*18*1024}']
    hl = hloads(0) + hloads(1)
    sl.spread(81, 112, sdma(0, 'slot0') + sdma(1, 'slot1'))
    k = sl.stream(96, jobs0); assert k < 112
    sl.spread(113, 144, sdma(2, 'slot2') + jobl[:8]); sl.spread(145, 176, sdma(3, 'slot3') + jobl[8:])
    sl.spread(177, 208, sdma(4, 'slot4') + hl[:5]); sl.spread(209, 240, sdma(5, 'slot5') + hl[5:10])
    sl.spread(241, 271, sdma(6, 'slot6') + progress + hl[10:15])
    sl.spread(273, 287, sdma(7, 'slot7'))
    k = sl.stream(113, rl(8, 10) + rl(11, 15) + [f'v_add_u32 {v(vRD[n])}, {n*SLOT}, {v(vL16)}' for n in range(4)] + [f'v_add_u32 {v(vLx[1])}, 4096, {v(vL16)}', f'v_add_u32 {v(vLx[2])}, 8192, {v(vL16)}'])
    k = sl.stream(k, rl(15, len(PARK)) + srd2(SX, sXp) + [f's_mov_b32 {s(SX+2)}, {S*D*2}'] + srd2(SO, sOp) + [f's_mov_b32 {s(SO+2)}, {S*D*2}'] + srd2(SP_, SWS) +
                  [f'v_and_b32 {v(vXO2)}, 31, v0', f'v_mul_u32_u24 {v(vXO2)}, 1152, {v(vXO2)}', f'v_bfe_u32 {v(vX8)}, v0, 5, 1', f'v_lshl_add_u32 {v(vXO2)}, {v(vX8)}, 4, {v(vXO2)}',
                   f'v_add_u32 {v(vX8)}, {s(sXo)}, {v(vXO2)}', f's_lshl_b32 {s(sT1)}, {s(sW)}, 5', f'v_add_u32 {v(vXO2)}, {s(sT1)}, {v(vX8)}'])
    assert k < 222, k
    jobv = []
    for k in range(1, 8):
        jobv += [f'v_add_f32 {v(JS+r)}, {v((JL if k == 1 else JS)+r)}, {v(JL+4*k+r)}' for r in range(4)]
    kj = sl.stream(222, jobv); assert kj < B0 - 2, kj
    pollC = f'buffer_load_dwordx2 {v(vCd,2)}, {v(vCa)}, {s(SWS,4)}, {s(sPc)} offen sc1'
    k = sl.stream(256, [f'v_and_b32 {v(vCn)}, 3, v0', f'v_max_u32 {v(vCa)}, 1, {v(vCn)}', f'v_lshlrev_b32 {v(vCa)}, 3, {v(vCa)}']); assert k < B0
    pos = []; h2 = hloads(2); s8 = sdma(8, 'slot8x')[:-1]
    sl.spread(B0 + 1, B0 + 71, hl[15:20] + s8[:3] + [pollC] + s8[3:] + [st[0]] + h2[:3] + [st[1]] + h2[3:7] + [st[2]] + h2[7:] + [st[3]], pos)
    kf = fins(B0 + 10, None, [pos[9], pos[13], pos[17], pos[20]])
    jobv = []
    for sw in ('v_permlane32_swap_b32', 'v_permlane16_swap_b32'):
        jobv += [f'v_mov_b32 {v(vJt+r)}, {v(JS+r)}' for r in range(4)]
        jobv += [f'{sw} {v(vJt+r)}, {v(JS+r)}' for r in range(4)]
        jobv += [f'v_add_f32 {v(JS+r)}, {v(JS+r)}, {v(vJt+r)}' for r in range(4)]
    recst = (f'buffer_store_dwordx2 {v(JS,2)}, {v(vJd)}, {s(SA,4)}, {s(sJd)} offen sc1', 'rec')
    vRf = XV + 80
    recfl = f'buffer_store_dwordx2 {v(vRf,2)}, {v(vP0)}, {s(SA,4)}, {s(sRf)} offen sc1'
    xl = [f'buffer_load_dwordx4 {v(vXD[0],4)}, {v(vXO2)}, {s(SX,4)}, 0 offen', f'buffer_load_dwordx4 {v(vXD[1],4)}, {v(vXO2)}, {s(SX,4)}, 0 offen offset:128',
          f'buffer_load_dwordx4 {v(vXD[2],4)}, {v(vX8)}, {s(SX,4)}, 0 offen offset:256']
    chkB = grp(f's_add_u32 {s(sT0)}, {s(sN+1)}, 5', check(name + '_cb', vCd, s(sT0), pollC))
    for c in range(1, 6):
        pos = []
        mid = {1: [chkB], 4: [check(name + '_cc', vCd, v(vCn), pollC)]}.get(c, [])
        end = {1: [recst], 3: [pollC]}.get(c, [])
        sl.spread(B0 + 72 * c + 5, B0 + 72 * c + 71, wdma(c + 3) + mid + hloads(c + 2) + end, pos)
        if c == 1: krec = pos[-1]
    k = sl.stream(max(kj, kf), jobv)
    for r in range(4):
        k = sl.stream(max(k, B0 + 72 + 40), [f'v_cmp_eq_u32 vcc, {s(sHd[r])}, {v(vHe)}'])
        k = sl.stream(k + 1, [f'v_cndmask_b32 {v(JS+r)}, 0, {v(JS+r)}, vcc'])
    k = sl.stream(k, [f'v_cvt_pk_bf16_f32 {v(JS)}, {v(JS)}, {v(JS+1)}', f'v_cvt_pk_bf16_f32 {v(JS+1)}, {v(JS+2)}, {v(JS+3)}']); assert k < krec, (k, krec)
    k = sl.stream(B0 + 72 * 2, [f'v_mov_b32 {v(vRf)}, {s(sN)}', f'v_mov_b32 {v(vRf+1)}, {s(sN+1)}',
                                f'v_lshlrev_b32 {v(vCa)}, 3, {v(vCn)}', f'v_min_u32 {v(vCn)}, 1, {v(vCn)}', f'v_lshl_add_u32 {v(vCn)}, {v(vCn)}, 1, 4', f'v_add_u32 {v(vCn)}, {s(sN+1)}, {v(vCn)}'])
    sl.fix(B0 + 8 * (18 + 7) - 3, lambda: p.wait_tag('h')); sl.stream(B0 + 8 * (18 + 7) + 2, progress, cap=3)
    sl.fix(B0 + 8 * (27 + 1) - 5, lambda: p.wait_tag('rec')); sl.stream(B0 + 8 * (27 + 1) - 3, [recfl], cap=4)
    def wload(f):
        pc, g = divmod(f, 18)
        return [f's_add_u32 {s(sT2)}, {s(sWo2 if pc < 2 else sW8)}, {g*36*1024 + (4096 if pc == 1 else 0)}', f'buffer_load_dwordx4 {a(wreg(f),4)}, {v(vL16)}, {s(SWS,4)}, {s(sT2)} offen sc1']
    pql = [f'buffer_load_dwordx4 {v(PQ(b,g),4)}, {v(vLx[g//4])}, {s(SWS,4)}, {s(sPq0 if b == 0 else sPq1)} offen offset:{1024*(g%4)} sc1' for b in range(2) for g in range(5)]
    pollR = f'buffer_load_dwordx2 {v(vCd,2)}, {v(vCa)}, {s(SWS,4)}, {s(sT3)} offen sc1'
    k0 = B0 + 72 * 6
    kk = sl.stream(k0 - 30, [f'v_and_b32 {v(vCa)}, 63, v0', f'v_min_u32 {v(vCa)}, 53, {v(vCa)}', f'v_lshlrev_b32 {v(vCa)}, 3, {v(vCa)}', f's_mul_i32 {s(sT3)}, {s(sW)}, {54*8}',
                            f's_add_u32 {s(sT3)}, {s(sT3)}, {RECF_OFF}'])
    assert kk < k0
    sl.spread(k0, k0 + 71, [pollR] + hloads(8) + pql)
    if 'nochkR' not in opt: sl.fix(k0 + 64, check(name + '_cr', vCd, s(sN+1), pollR), cost=2)
    recl = []
    for f in range(27):
        if f % 12 == 0 and f: recl.append(f's_add_u32 {s(sRec)}, {s(sRec)}, 12288')
        recl.append(f'buffer_load_dwordx4 {v(big(f),4)}, {v(vLx[(f%12)//4])}, {s(SWS,4)}, {s(sRec)} offen offset:{1024*(f%4)} sc1')
    def pub(aa):
        o = acc2(aa, 0); t = TQ[aa & 1]
        return [f'v_cvt_pk_bf16_f32 {v(t+d)}, {v(o+2*d)}, {v(o+2*d+1)}' for d in range(4)] + \
               [(f'buffer_store_dwordx4 {v(t,4)}, {v(vLx[aa//4])}, {s(SP_,4)}, {s(sPart)} offen offset:{1024*(aa%4)} sc1', 'pub')]
    for aa in range(8):
        g0 = B0 + 8 * (72 + aa + 1); sl.fix(g0 + 7, pub(aa)[4]); sl.stream(g0 + 2, pub(aa)[:4], last=g0 + 6)
    nr = 20 if 'r20' in opt else 18
    sl.spread(k0 + 72, k0 + 143, recl[:nr + 1]); sl.spread(k0 + 144, B0 + 647, recl[nr + 1:] + xl)
    print('overflow peeled', [sl.over(32*c, 32*c+32) for c in range(9)], 'p2', [sl.over(B0+72*c, B0+72*c+72) for c in range(9)], file=__import__('sys').stderr)
    interleave(p, mains, sl.f)
    put(pub(8))
    stamp(8)
    e(f's_cmp_lg_u32 {s(sW)}, {s(sQK)}'); e(f's_cbranch_scc1 {name}_att')
    for u in range(18): p.raw(f'ds_write_b128 {v(vRD[2])}, {v(ACC2+4*u,4)} offset:{1024*u}')
    p.raw('s_waitcnt lgkmcnt(0)')
    p.label(f'{name}_att')
    vEp = TQ[1]; tq = TQ[0]
    for r in range(4): e(f'v_mov_b32 {v(vEp+r)}, {fhex(1e-6)}')
    ND = lambda tl, b, z: ACC2 + 16 * (tl % 3) + 8 * b + 4 * z
    OH = lambda tl, b: ACC2 + 48 + 4 * (tl % 2) + 2 * b
    vOW = ACC2 + 56; vPa0, vPa1, vOa = ACC2 + 57, ACC2 + 58, ACC2 + 59
    sPe = [sPq0, sPq1, sRec]; sF2 = sJs
    e(f's_mul_i32 {s(sT0)}, {s(sW)}, 9'); e(f's_lshr_b32 {s(sT0)}, {s(sT0)}, 1'); e(f's_lshl_b32 {s(sT0)}, {s(sT0)}, 10'); e(f'v_add_u32 {v(vOW)}, {s(sT0)}, {v(vRD[1])}')
    pollF = f'buffer_load_dwordx2 {v(vCd,2)}, {v(vCa)}, {s(SWS,4)}, {s(sF2)} offen sc1'
    misc0 = [f'v_and_b32 {v(tq+2)}, 63, v0', f'v_min_u32 {v(tq+2)}, 1, {v(tq+2)}', f'v_lshlrev_b32 {v(tq+2)}, 30, {v(tq+2)}', f'v_mov_b32 {v(tq)}, {s(sN)}', f'v_mov_b32 {v(tq+1)}, {s(sN+1)}',
             f'v_and_b32 {v(vCa)}, 3, v0', f'v_cmp_eq_u32 vcc, {s(sQK)}, {v(vCa)}', f'v_mov_b32 {v(vCn)}, {s(sSel)}', f's_lshl_b32 {s(sF2)}, s2, 7', f's_add_u32 {s(sF2)}, {s(sF2)}, {FLAG_OFF}',
             f'v_cndmask_b32 {v(vCa)}, {v(vCa)}, {v(vCn)}, vcc', f'v_lshlrev_b32 {v(vCa)}, 3, {v(vCa)}',
             f's_lshl_b32 {s(sT0)}, {s(sW)}, 10', f'v_add_u32 {v(vPa0)}, {s(sT0)}, {v(vL16)}', f'v_add_u32 {v(vPa1)}, {s(sT0)}, {v(vLx[1])}', f's_lshl_b32 {s(sT0)}, {s(sW)}, 11', f'v_add_u32 {v(vOa)}, {s(sT0)}, {v(vRD[2])}',
             f's_mul_i32 {s(sT0)}, s2, {4*9216}', f's_add_u32 {s(sT0)}, {s(sT0)}, {PART_OFF}']
    for q in range(3): misc0 += [f's_add_u32 {s(sT1)}, {s(sQK)}, {q+1}', f's_and_b32 {s(sT1)}, {s(sT1)}, 3', f's_mul_i32 {s(sT1)}, {s(sT1)}, 9216', f's_add_u32 {s(sPe[q])}, {s(sT1)}, {s(sT0)}']
    misc0 += [f's_mov_b32 {s(sHi)}, 0xffff0000', f's_mov_b32 {s(sHd[0])}, 0x3f80', f's_mov_b32 {s(sHd[1])}, 0x3f800000', f's_mov_b32 {s(sEps)}, {fhex(-LOG2E)}', f's_mov_b32 {s(sEps+1)}, {fhex(-LOG2E)}']
    SIG = int(next((o[3:] for o in opt if o.startswith('sig')), 6))
    e(f's_and_b32 {s(sT0)}, {s(sW)}, 1'); e(f's_cmp_eq_u32 {s(sT0)}, 1'); e(f's_cbranch_scc1 {name}_oodd')
    st1 = p.snapshot()
    for par in range(2):
        if par:
            p.label(f'{name}_oodd'); p.restore(st1)
        late = [wload(f) for f in range(36)]; misc = list(misc0)
        for step in range(11):
            m32, m16, va = [], [], []
            tl = step
            if tl < 9:
                gl = (tl + par) >> 1
                for b in range(2):
                    m32.append(f'v_mfma_f32_16x16x32_bf16 {v(ND(tl,b,0),4)}, {v(REC(tl,0),4)}, {v(PQ(b,gl),4)}, 0')
                    m32.append(f'v_mfma_f32_16x16x32_bf16 {v(ND(tl,b,1),4)}, {v(REC(tl,1),4)}, {v(PQ(b,gl),4)}, {v(vEp,4)}')
            tl = step - 1
            if 0 <= tl < 9:
                gl = (tl + par) >> 1; odd = (tl + par) & 1
                gs = gl + 1 if odd else gl - 1
                if not 0 <= gs <= 4: gs = gl
                for b in range(2):
                    half = v(PQ(b, gs) + (0 if odd else 2), 2)
                    m16.append(f'v_mfma_f32_16x16x16_bf16 {v(ND(tl,b,0),4)}, {v(REC(tl,2),2)}, {half}, {v(ND(tl,b,0),4)}')
                    m16.append(f'v_mfma_f32_16x16x16_bf16 {v(ND(tl,b,1),4)}, {v(REC(tl,2)+2,2)}, {half}, {v(ND(tl,b,1),4)}')
            tl = step - 2
            if 0 <= tl < 9:
                for b in range(2): va += [f'v_rcp_f32 {v(ND(tl,b,1)+r)}, {v(ND(tl,b,1)+r)}' for r in range(4)]
                for b in range(2):
                    va += [f'v_mul_f32 {v(ND(tl,b,0)+r)}, {v(ND(tl,b,0)+r)}, {v(ND(tl,b,1)+r)}' for r in range(4)]
                    va += [f'v_cvt_pk_bf16_f32 {v(OH(tl,b) + d)}, {v(ND(tl,b,0)+2*d)}, {v(ND(tl,b,0)+2*d+1)}' for d in range(2)]
                    va += [f'ds_write_b64 {v(vOW)}, {v(OH(tl,b),2)} offset:{b*18432 + ((tl+par)>>1)*1024 + ((tl+par)&1)*8}']
            else: va, misc = misc[:20], misc[20:]
            if step == SIG:
                p.wait_tag('pub'); e(f'buffer_store_dwordx2 {v(tq,2)}, {v(tq+2)}, {s(SP_,4)}, {s(sFl)} offen sc1')
            if step == 10: e(pollF)
            mm = m32 + m16
            per = -(-len(va) // max(len(mm) - 1, 1))
            for i_, x in enumerate(mm):
                e(x)
                if late and len(p.vmq) < p.vm_limit - 2 and i_ % 2 == 0: put(late.pop(0))
                if i_ == 0 and len(mm) > 4: continue
                for y in va[:per]: e(y)
                va = va[per:]
            for y in va: e(y)
        assert not late and not misc
        if par == 0:
            stE = p.snapshot(); e(f's_branch {name}_odone')
        else: assert p.snapshot() == stE
    p.label(f'{name}_odone')
    stamp(9)
    p.wait_lg(0); e('s_barrier')
    OF = lambda b, g: big(18 * b + g)
    SS = lambda pc: ACC2 + 8 * pc
    DD = lambda pc: ACC2 + 24 + 8 * pc
    for g in range(9):
        for b in range(2): e(f'ds_read_b128 {v(OF(b,g),4)}, {v(vRD[1])} offset:{b*18432 + g*1024}')
    check(f'{name}_cf', vCd, s(sN+1), pollF)()
    stamp(10)
    PV_ = [ACC2 + 60, ACC2 + 64, ACC2 + 68, ACC2 + 48, ACC2 + 52, big(36)]
    for pc in range(2):
        for q in range(3): e(f'buffer_load_dwordx4 {v(PV_[3*pc+q],4)}, {v((vPa0, vPa1)[pc])}, {s(SWS,4)}, {s(sPe[q])} offen sc1')
    for g in range(9, 18):
        for b in range(2): e(f'ds_read_b128 {v(OF(b,g),4)}, {v(vRD[1])} offset:{b*18432 + g*1024}')
    e(f's_cmp_eq_u32 {s(sW)}, {s(sSel)}'); e(f's_cbranch_scc1 {name}_three')
    st2 = p.snapshot()
    for npc in (2, 3):
        if npc == 3:
            p.label(f'{name}_three'); p.restore(st2)
        PE = lambda q: AR + 8 + 4 * q
        late = [wload(f) for f in range(36, 54)] + [[f'buffer_load_dwordx4 {a(PE(q),4)}, {v(vLx[2])}, {s(SWS,4)}, {s(sPe[q])} offen sc1'] for q in range(3)] if npc == 3 else []
        own = [f'ds_read_b128 {v(DD(pc)+4*b,4)}, {v(vOa) if pc < 2 else v(vRD[2])} offset:{8192*pc + 1024*b}' for pc in range(npc) for b in range(2)]
        for pc in range(npc):
            for b in range(2):
                for g in range(18):
                    e(f'v_mfma_f32_16x16x32_bf16 {v(SS(pc)+4*b,4)}, {a(wreg(18*pc+g),4)}, {v(OF(b,g),4)}, {"0" if g == 0 else v(SS(pc)+4*b,4)}')
                    if late and g % 2 == 0: put(late.pop(0))
                    elif pc == 0 and b == 1 and own: e(own.pop(0))
        stamp(11)
        X = ACC; G = ACC + 24; O = ACC + 40; U = ACC + 56
        for pc in range(npc):
            for d in range(4):
                e(f'v_lshlrev_b32 {v(X+8*pc+2*d)}, 16, {v(vXD[pc]+d)}'); e(f'v_and_b32 {v(X+8*pc+2*d+1)}, {s(sHi)}, {v(vXD[pc]+d)}')
        for pc in range(npc):
            for q in range(3):
                src = PV_[3 * pc + q] if pc < 2 else U + 4 * q
                if pc == 2:
                    for d in range(4): e(f'v_accvgpr_read_b32 {v(src+d)}, {a(PE(q)+d)}')
                for d in range(4):
                    for hh in range(2): e(f'v_dot2_f32_bf16 {v(DD(pc)+2*d+hh)}, {v(src+d)}, {s(sHd[hh])}, {v(DD(pc)+2*d+hh)}')
            for k in range(0, 8, 2): e(f'v_pk_mul_f32 {v(G+k,2)}, {v(DD(pc)+k,2)}, {s(sEps,2)}')
            for k in range(8): e(f'v_exp_f32 {v(G+k)}, {v(G+k)}')
            for k in range(0, 8, 2): e(f'v_pk_mul_f32 {v(DD(pc)+k,2)}, {v(DD(pc)+k,2)}, {v(SS(pc)+k,2)}')
            for k in range(0, 8, 2): e(f'v_pk_add_f32 {v(G+k,2)}, {v(G+k,2)}, 1.0 op_sel_hi:[1,0]')
            for k in range(8): e(f'v_rcp_f32 {v(G+k)}, {v(G+k)}')
            for k in range(0, 8, 2): e(f'v_pk_mul_f32 {v(G+k,2)}, {v(G+k,2)}, {v(DD(pc)+k,2)}')
            for r in range(4): e(f'v_permlane16_swap_b32 {v(G+r)}, {v(G+4+r)}')
            for k in range(0, 8, 2): e(f'v_pk_add_f32 {v(G+k,2)}, {v(G+k,2)}, {v(X+8*pc+k,2)}')
            for d in range(4): e(f'v_cvt_pk_bf16_f32 {v(O+4*pc+d)}, {v(G+2*d)}, {v(G+2*d+1)}')
            e(f'buffer_store_dwordx4 {v(O+4*pc,4)}, {v(vXO2) if pc < 2 else v(vX8)}, {s(SO,4)}, 0 offen offset:{128*pc}')
        if stamps: p.wait_all()
        stamp(12)
        e(f's_branch {END}')
    for blk in slow:
        for x in blk: p.raw(x)
    p.label(END)
    return p, V.nxt, A.nxt, NXV
```

```python
from asmlib import *
from layout2 import *

LOG2E = 1.4426950408889634
def fhex(x):
    import struct
    return '0x%08x' % struct.unpack('<I', struct.pack('<f', x))[0]

SP0 = 147456
STX = 98304
CH = 64 * 9216

SLOT = 36864
SPIN = 20000
SALT = 0x5bd1e990

def gen(name, stamps=False, opt=()):
    p = Prog(); cap = [None]
    def e(text, tag=None, junk=False):
        if cap[0] is not None: cap[0].append((text, tag, junk))
        else: p.e(text, tag, junk)
    V = Alloc('v', 1, 256); A = Alloc('a', 0, 256); SG = Alloc('s', 56, 100)
    SX, SQ, SGt, SU, SWS, SH, SJS, SJD = 4, 8, 12, 16, 20, 24, 28, 32
    KA = 36
    sW, sI, sJ, sT, sQF, sM = (SG.get(n) for n in ('w', 'i', 'j', 't', 'qf', 'm'))
    sWo, sCnt, sM0w, sJob, sJo, sT0, sT1, sT2 = (SG.get(n) for n in ('wo', 'cnt', 'm0w', 'job', 'jo', 't0', 't1', 't2'))
    sH = SG.get('h', 4, 1); sKV = SG.get('kv', 6, 1); sSP = SG.get('sp'); sLine = SG.get('line'); sKm = SG.get('km'); sTo = SG.get('to')
    mk = [SG.get(f'mk{k}', 2) for k in range(4)]
    sSt = SG.get('st', 2); sStO = SG.get('sto'); sOnes = SG.get('ones')
    JP = [36, 37, 38, 39, 42, 43, 44, 45, 46, 47, 50, 51]
    sXp, sN, sDbg, sOp = 100, 48, 52, 54
    sInc, sIncL, sPg, sPc, sCr, sSpin = mk[0], mk[0] + 1, mk[1], mk[1] + 1, mk[2], mk[2] + 1
    sEps = mk[3]
    vJS = V.get('js'); vJT = V.get('jt'); vTg = V.get('tg')
    ACC = V.get('acc', 64); PR = V.get('prod', 32)
    vTR = V.get('tr', 6, 1); vDM = V.get('dm', 2, 1); vL16 = V.get('l16'); vJS2 = V.get('spare'); vRS = V.get('rs', 4, 2); vRS2 = V.get('rs2', 4, 2)
    vTj = V.get('tj'); vS0 = V.get('s0'); vT = V.get('tmp', 8, 4); vS1 = vT + 7
    NXV = (256 - V.nxt) // 4
    XV = V.get('xv', 4 * NXV)
    WF = A.get('wf', 24); XA = A.get('xa', 4 * (72 - NXV)); JD = A.get('jd', 64)
    fidx = lambda b, ks: 2 * ks + b if b < 2 else 36 + 2 * ks + b - 2
    def xf(b, ks):
        f = fidx(b, ks)
        return v(XV + 4 * f, 4) if f < NXV else a(XA + 4 * (f - NXV), 4)
    def xf_isv(b, ks): return fidx(b, ks) < NXV
    nstamp = [0]
    def stamp(k=None, dyn=False):
        if not stamps: return
        if k is None:
            k = nstamp[0]; nstamp[0] += 1
        p.wait_lg(0)
        if k == 0:
            for n_, r_ in ((29, v(T[61])), (30, v(T[61])), (31, 's3'), (15, v(T[60]))):
                e(f'v_mov_b32 {v(vS0)}, {r_}'); e(f'v_mov_b32 {v(vS1)}, {4*n_}'); e(f'buffer_store_dword {v(vS0)}, {v(vS1)}, {s(SWS,4)}, {s(sStO)} offen')
        e(f's_memrealtime {s(sSt,2)}'); p.wait_lg(0)
        e(f'v_mov_b32 {v(vS0)}, {s(sSt)}'); e(f'v_mov_b32 {v(vS1)}, {4*k}')
        if dyn: e(f'v_mov_b32 {v(vS1)}, {s(sCnt)}'); e(f'v_mul_u32_u24 {v(vS1)}, 12, {v(vS1)}'); e(f'v_sub_u32 {v(vS1)}, {4*k}, {v(vS1)}')
        e(f'buffer_store_dword {v(vS0)}, {v(vS1)}, {s(SWS,4)}, {s(sStO)} offen')
        e(f's_memtime {s(sSt,2)}'); p.wait_lg(0)
        e(f'v_mov_b32 {v(vS0)}, {s(sSt)}')
        e(f'buffer_store_dword {v(vS0)}, {v(vS1)}, {s(SWS,4)}, {s(sStO)} offen offset:128')

    END = f'{name}_end'
    if stamps: p.raw('s_memrealtime s[98:99]')
    e('s_cmp_ge_u32 s2, 256'); e(f's_cbranch_scc1 {END}')
    e(f's_load_dwordx8 {s(KA,8)}, s[0:1], 0'); e(f's_load_dwordx8 {s(KA+8,8)}, s[0:1], 32'); e(f's_load_dwordx4 {s(KA+16,4)}, s[0:1], 64')
    T = [ACC + 32 + k for k in range(32)] + [PR + k for k in range(32)]
    vLane, vL3, vL4, vC7, vN, vI2, vB = T[0:7]
    vXO = T[8:12]; vXR = T[12:16]; vTL, vU = T[19], T[20]
    e(f'v_lshrrev_b32 {v(vB)}, 6, v0'); e(f'v_and_b32 {v(vLane)}, 63, v0')
    e(f'v_readfirstlane_b32 {s(sW)}, {v(vB)}')
    if 'nocode' not in opt:
        p.raw(f's_getpc_b64 {s(sSt,2)}'); p.label(f'{name}_pc')
        e(f's_lshr_b32 {s(sT1)}, s2, 3'); e(f's_lshl_b32 {s(sT1)}, {s(sT1)}, 2'); e(f'v_add_u32 {v(vB)}, {s(sT1)}, {v(vB)}'); e(f'v_mul_u32_u24 {v(vB)}, 5, {v(vB)}')
        e(f'v_min_u32 {v(vI2)}, 4, {v(vLane)}'); e(f'v_add_u32 {v(vB)}, {v(vB)}, {v(vI2)}'); e(f'v_lshlrev_b32 {v(vB)}, 7, {v(vB)}')
        e(f'v_min_u32 {v(vB)}, code_end - {name}_pc - 4, {v(vB)}')
        e(f'global_load_dword {v(vJS2)}, {v(vB)}, {s(sSt,2)}', junk=True)
    e(f'v_lshrrev_b32 {v(vL3)}, 3, {v(vLane)}'); e(f'v_lshrrev_b32 {v(vL4)}, 4, {v(vLane)}'); e(f'v_and_b32 {v(vC7)}, 7, {v(vLane)}')
    e(f'v_and_b32 {v(vN)}, 15, {v(vLane)}'); e(f'v_lshlrev_b32 {v(vL16)}, 4, {v(vLane)}')
    e(f's_and_b32 {s(sQF)}, s2, 3'); e(f's_bfe_u32 {s(sT0)}, s2, 0x10002'); e(f's_lshr_b32 {s(sT1)}, s2, 5')
    e(f's_lshl_b32 {s(sT0)}, {s(sT0)}, 3'); e(f's_add_u32 {s(sT)}, {s(sT0)}, {s(sT1)}'); e(f's_bfe_u32 {s(sM)}, s2, 0x20003')
    e(f's_lshr_b32 {s(sI)}, {s(sW)}, 1'); e(f's_and_b32 {s(sJ)}, {s(sW)}, 1')
    e(f's_lshl_b32 {s(sM0w)}, {s(sW)}, 12'); e(f's_add_u32 {s(sSP)}, {s(sM0w)}, {SP0}')
    e(f's_lshl_b32 {s(sT0)}, {s(sW)}, 5'); e(f'v_add_u32 {v(vB)}, {s(sT0)}, {v(vL3)}'); e(f'v_mul_u32_u24 {v(vB)}, 1152, {v(vB)}')
    for q in range(4):
        e(f'v_or_b32 {v(vI2)}, {4*(q&1)}, {v(vL4)}'); e(f'v_xor_b32 {v(vI2)}, {v(vI2)}, {v(vC7)}')
        e(f'v_lshl_add_u32 {v(vXO[q])}, {v(vI2)}, 4, {v(vB)}')
        if q: e(f'v_add_u32 {v(vXO[q])}, {8192*q}, {v(vXO[q])}')
    e(f's_mul_i32 s3, {s(sT)}, {128*1152}')
    e(f's_lshl_b32 {s(sT0)}, {s(sQF)}, 4'); e(f's_lshl_b32 {s(sT1)}, {s(sM)}, 2'); e(f's_add_u32 {s(sT0)}, {s(sT0)}, {s(sT1)}'); e(f's_add_u32 {s(sT0)}, {s(sT0)}, {s(sW)}')
    e(f's_mul_i32 {s(sT0)}, {s(sT0)}, 18'); e(f'v_min_u32 {v(vB)}, 17, {v(vLane)}'); e(f'v_add_u32 {v(vB)}, {s(sT0)}, {v(vB)}'); e(f'v_lshlrev_b32 {v(vB)}, 7, {v(vB)}')
    if stamps: p.raw(f's_memrealtime {s(sSt,2)}')
    p.wait_lg(0)
    if stamps: p.raw(f'v_mov_b32 {v(T[60])}, s98'); p.raw(f'v_mov_b32 {v(T[61])}, {s(sSt)}')
    def srd(r, ptr, nbytes, back=0):
        if back:
            e(f's_sub_u32 {s(r)}, {s(ptr)}, {back}'); e(f's_subb_u32 {s(r+1)}, {s(ptr+1)}, 0')
        else:
            e(f's_mov_b32 {s(r)}, {s(ptr)}'); e(f's_mov_b32 {s(r+1)}, {s(ptr+1)}')
        e(f's_mov_b32 {s(r+2)}, {nbytes + back}'); e(f's_mov_b32 {s(r+3)}, 0x20000')
    slow = []
    e('s_cmp_eq_u32 s2, 0'); e(f's_cbranch_scc1 {name}_nw'); p.label(f'{name}_nn')
    slow.append([f'{name}_nw:', f's_memrealtime {s(sSt,2)}', 's_waitcnt lgkmcnt(0)', f's_lshl_b32 {s(sT1)}, {s(sSt+1)}, 4', f's_xor_b32 {s(sT1)}, {s(sT1)}, {SALT}', f's_or_b32 {s(sT2)}, {s(sSt)}, 1',
                 f'v_mov_b32 {v(vT)}, {s(sT2)}', f'v_mov_b32 {v(vT+1)}, {s(sT1)}', f'v_mov_b32 {v(vT+2)}, 0', f's_cmp_lg_u32 {s(sW)}, 0', f's_cbranch_scc1 {name}_nn',
                 f'global_store_dwordx2 {v(vT+2)}, {v(vT,2)}, {s(sDbg,2)} sc1', f's_branch {name}_nn'])
    srd(SX, KA + 0, S * D * 2)
    if 'noxt' not in opt: e(f'buffer_load_dword {v(vJS2)}, {v(vB)}, {s(SX,4)}, s3 offen', junk=True)
    SEC = {}; SEC['srd'] = cap[0] = []
    srd(SQ, KA + 2, D * 3 * D * 2, back=4096); srd(SGt, KA + 8, D * F * 2); srd(SU, KA + 10, D * F * 2, back=2048)
    e(f's_mov_b32 {s(sXp)}, {s(KA)}'); e(f's_mov_b32 {s(sXp+1)}, {s(KA+1)}')
    srd(SWS, KA + 18, WS_USED); srd(SH, KA + 18, 0); srd(SJS, KA + 12, 0); srd(SJD, KA + 18, REC_OFF)
    if stamps:
        e(f's_lshl_b32 {s(sStO)}, s2, 2'); e(f's_add_u32 {s(sStO)}, {s(sStO)}, {s(sW)}'); e(f's_lshl_b32 {s(sStO)}, {s(sStO)}, 8'); e(f's_add_u32 {s(sStO)}, {s(sStO)}, {STAMP_OFF}')
    SEC['xr'] = cap[0] = []
    vQ = vL4
    e(f'v_lshrrev_b32 {v(vI2)}, 1, {v(vN)}'); e(f'v_xor_b32 {v(vI2)}, {v(vI2)}, {v(vQ)}'); e(f'v_lshlrev_b32 {v(vI2)}, 4, {v(vI2)}')
    e(f'v_lshl_add_u32 {v(vI2)}, {v(vN)}, 7, {v(vI2)}')
    e(f'v_add_u32 {v(vXR[0])}, {s(sM0w)}, {v(vI2)}'); e(f'v_xor_b32 {v(vXR[1])}, 64, {v(vXR[0])}')
    vONE = T[24]
    e(f's_mov_b32 {s(sOnes)}, 0x3f803f80')
    for k in range(4): e(f'v_mov_b32 {v(vONE+k)}, {s(sOnes)}')
    vXP = [T[7], T[35]]
    for kk in range(2): e(f'v_xor_b32 {v(vXP[kk])}, 4096, {v(vXR[kk])}')
    e(f'v_add_u32 {v(vXR[2])}, {s(sSP)}, {v(vL16)}'); e(f'v_xor_b32 {v(vXR[3])}, 4096, {v(vXR[2])}')
    SEC['wdma'] = cap[0] = []
    def wdma_off(dst, stride, rows_per_wave, pp, bit3):
        e(f's_mul_i32 {s(sT0)}, {s(sW)}, {rows_per_wave}'); e(f's_add_u32 {s(sT0)}, {s(sT0)}, {8*pp}')
        e(f'v_add_u32 {v(vB)}, {s(sT0)}, {v(vL3)}'); e(f'v_mul_u32_u24 {v(vB)}, {stride}, {v(vB)}')
        e(f'v_and_b32 {v(vI2)}, 1, {v(vL4)}'); e(f'v_lshlrev_b32 {v(vI2)}, 1, {v(vI2)}')
        if bit3 == 'w':
            e(f's_lshl_b32 {s(sT0)}, {s(sJ)}, 2'); e(f'v_or_b32 {v(vI2)}, {s(sT0)}, {v(vI2)}')
        elif bit3: e(f'v_or_b32 {v(vI2)}, 4, {v(vI2)}')
        e(f'v_xor_b32 {v(vI2)}, {v(vI2)}, {v(vC7)}'); e(f'v_lshl_add_u32 {v(dst)}, {v(vI2)}, 4, {v(vB)}')
        if pp: e(f'v_subrev_u32 {v(dst)}, {1024*pp}, {v(dst)}')
    wdma_off(vDM, 9216, 16, 0, 0); wdma_off(vDM + 1, 9216, 16, 1, 1)
    vQD = T[16:18]; vKD = T[18]
    wdma_off(vQD[0], 3456, 16, 0, 0); wdma_off(vQD[1], 3456, 16, 1, 1); wdma_off(vKD, 3456, 8, 0, 'w')
    e(f'v_lshrrev_b32 {v(vI2)}, 3, {v(vN)}'); e(f'v_and_b32 {v(vU)}, 1, {v(vQ)}'); e(f'v_lshl_or_b32 {v(vI2)}, {v(vU)}, 1, {v(vI2)}')
    e(f'v_lshlrev_b32 {v(vI2)}, 5, {v(vI2)}')
    e(f'v_and_b32 {v(vU)}, 3, {v(vN)}'); e(f'v_lshl_or_b32 {v(vI2)}, {v(vU)}, 3, {v(vI2)}')
    e(f'v_lshrrev_b32 {v(vU)}, 2, {v(vN)}'); e(f'v_lshl_or_b32 {v(vTL)}, {v(vU)}, 7, {v(vI2)}')
    e(f'v_lshrrev_b32 {v(vU)}, 1, {v(vQ)}'); e(f'v_lshlrev_b32 {v(vU)}, 12, {v(vU)}')
    e(f'v_and_b32 {v(vI2)}, 1, {v(vQ)}'); e(f'v_lshl_or_b32 {v(vU)}, {v(vI2)}, 10, {v(vU)}'); e(f'v_or_b32 {v(vU)}, {v(vU)}, {v(vTL)}')
    e(f's_lshl_b32 {s(sT0)}, {s(sJ)}, 6'); e(f'v_xor_b32 {v(vTR)}, {s(sT0)}, {v(vU)}'); e(f'v_xor_b32 {v(vTR+1)}, 32, {v(vTR)}')
    for r in (1, 2):
        for tt in range(2): e(f'v_add_u32 {v(vTR+2*r+tt)}, {65536*r}, {v(vTR+tt)}')
    e(f'v_lshlrev_b32 {v(vI2)}, 1, {v(vL4)}'); e(f'v_xor_b32 {v(vI2)}, {v(vI2)}, {v(vC7)}'); e(f'v_lshlrev_b32 {v(vI2)}, 4, {v(vI2)}')
    e(f'v_mul_u32_u24 {v(vU)}, 1152, {v(vL3)}'); e(f'v_add_u32 {v(vJS)}, {v(vU)}, {v(vI2)}')
    e(f'v_lshlrev_b32 {v(vU)}, 9, {v(vQ)}'); e(f'v_add_u32 {v(vU)}, {s(sSP)}, {v(vU)}'); e(f'v_add_u32 {v(vJT)}, {v(vU)}, {v(vTL)}')
    SEC['const'] = cap[0] = []
    vONE = T[24]; vSEL = T[28]; vF1 = T[34]
    assert vONE % 4 == 0 and vSEL % 4 == 0
    e(f'v_mov_b32 {v(vF1)}, 1.0')
    e(f'v_lshrrev_b32 {v(vU)}, 2, {v(vN)}'); e(f'v_cmp_eq_u32 {s(mk[0],2)}, {v(vU)}, {v(vQ)}')
    e(f'v_and_b32 {v(vU)}, 3, {v(vN)}')
    for k in (1, 2, 3): e(f'v_cmp_eq_u32 {s(mk[k],2)}, {k}, {v(vU)}')
    e(f'v_and_b32 {v(vI2)}, 1, {v(vN)}'); e(f'v_lshlrev_b32 {v(vI2)}, 4, {v(vI2)}'); e(f'v_mov_b32 {v(vB)}, 0x3f80'); e(f'v_lshlrev_b32 {v(vB)}, {v(vI2)}, {v(vB)}')
    e(f'v_cndmask_b32 {v(vB)}, 0, {v(vB)}, {s(mk[0],2)}')
    e(f'v_cmp_gt_u32 vcc, 2, {v(vU)}')
    for k in (0, 1, 4, 5): e(f'v_mov_b32 {v(vSEL+k)}, 0')
    e(f'v_cndmask_b32 {v(vSEL+2)}, 0, {v(vB)}, vcc'); e(f'v_cndmask_b32 {v(vSEL+3)}, {v(vB)}, 0, vcc')
    def ffn_dma(slot, tag=None):
        return [f's_add_u32 m0, {s(sM0w)}, {slot*16384}', None,
                (f'buffer_load_dwordx4 {v(vDM)}, {s(SGt,4)}, {s(sWo)} offen lds', tag or f'slot{slot}'),
                (f'buffer_load_dwordx4 {v(vDM+1)}, {s(SGt,4)}, {s(sWo)} offen offset:1024 lds', tag or f'slot{slot}'),
                (f'buffer_load_dwordx4 {v(vDM)}, {s(SU,4)}, {s(sWo)} offen offset:2048 lds', tag or f'slot{slot}'),
                (f'buffer_load_dwordx4 {v(vDM+1)}, {s(SU,4)}, {s(sWo)} offen offset:3072 lds', tag or f'slot{slot}'),
                f's_add_u32 {s(sWo)}, {s(sWo)}, {CH}']
    def put(lst):
        for x in lst:
            if x is None: continue
            if callable(x): x()
            elif isinstance(x, tuple): e(x[0], x[1])
            else: e(x)
    def kv_dma(ks, vk):
        slot = ks % 6; out = []
        for st in range(6):
            if st % 4 == 0: out.append(f's_add_u32 m0, {s(sKm)}, {slot*24576 + (st//4)*4096}')
            out.append((f'buffer_load_dwordx4 {v(vk)}, {s(SQ,4)}, {s(sKV+st)} offen offset:{1024*(st%4)} lds', f'kv{ks}'))
            out.append(f's_add_u32 {s(sKV+st)}, {s(sKV+st)}, {32*3456}')
        return out
    SEC['scal'] = cap[0] = []
    e(f's_mul_i32 {s(sT0)}, {s(sM)}, 5'); e(f's_sub_u32 {s(sT0)}, {s(sT0)}, 2'); e(f's_max_i32 {s(sT0)}, {s(sT0)}, 0')
    e(f's_mul_i32 {s(sT1)}, {s(sQF)}, 18'); e(f's_add_u32 {s(sT0)}, {s(sT0)}, {s(sT1)}')
    e(f's_lshl_b32 {s(sWo)}, {s(sT0)}, 7')
    e(f's_sub_u32 {s(sT0)}, {s(sM)}, 4'); e(f's_cmp_eq_u32 {s(sM)}, 0'); e(f's_cselect_b32 {s(sT0)}, 11, {s(sT0)}')
    e(f's_add_u32 {s(sT0)}, {s(sT0)}, {s(sT1)}'); e(f's_lshl_b32 {s(sT0)}, {s(sT0)}, 1'); e(f's_add_u32 {s(sT0)}, {s(sT0)}, {s(sJ)}')
    e(f's_lshl_b32 {s(sT1)}, {s(sT)}, 3'); e(f's_lshl_b32 {s(sT2)}, {s(sI)}, 2'); e(f's_add_u32 {s(sT1)}, {s(sT1)}, {s(sT2)}')
    e(f's_lshl_b32 {s(sT2)}, {s(sJ)}, 1')
    sTB = [SG.get(f'tb{b}') for b in range(4)]
    for b in range(4):
        e(f's_xor_b32 {s(sTB[b])}, {s(sT2)}, {b}'); e(f's_add_u32 {s(sTB[b])}, {s(sTB[b])}, {s(sT1)}')
        e(f's_mul_i32 {s(sH+b)}, {s(sTB[b])}, 144'); e(f's_add_u32 {s(sH+b)}, {s(sH+b)}, {s(sT0)}'); e(f's_lshl_b32 {s(sH+b)}, {s(sH+b)}, 10')
    e(f's_cmp_eq_u32 {s(sM)}, 0'); e(f's_cselect_b32 {s(sCnt)}, 2, 4')
    e(f's_lshr_b32 {s(sT0)}, s2, 5'); e(f's_and_b32 {s(sT1)}, s2, 7'); e(f's_lshl_b32 {s(sT0)}, {s(sT0)}, 3'); e(f's_add_u32 {s(sT0)}, {s(sT0)}, {s(sT1)}')
    e(f's_mul_i32 {s(sT0)}, {s(sT0)}, 3'); e(f's_add_u32 {s(sT0)}, {s(sT0)}, {s(sM)}'); e(f's_sub_u32 {s(sT0)}, {s(sT0)}, 1')
    e(f's_lshl_b32 {s(sT0)}, {s(sT0)}, 2'); e(f's_add_u32 {s(sJob)}, {s(sT0)}, {s(sW)}')
    if 'nojobs' in opt: e(f's_mov_b32 {s(sJob)}, 4096')
    e(f's_mov_b32 {s(sOp)}, {s(KA+14)}'); e(f's_mov_b32 {s(sOp+1)}, {s(KA+15)}')
    e(f's_mul_i32 {s(sLine)}, {s(sQF)}, 3'); e(f's_add_u32 {s(sLine)}, {s(sLine)}, {s(sM)}'); e(f's_sub_u32 {s(sLine)}, {s(sLine)}, 1')
    SEC['jobs'] = cap[0] = []
    for n in range(2):
        jb = JP[6 * n: 6 * n + 6]
        e(f's_mov_b32 {s(jb[2])}, {F*D*2}')
        e(f's_cmp_lt_u32 {s(sJob)}, {NJOB_WD}')
        e(f's_cselect_b32 {s(jb[0])}, {s(SJS)}, {s(KA+4)}'); e(f's_cselect_b32 {s(jb[1])}, {s(SJS+1)}, {s(KA+5)}')
        e(f's_cselect_b32 {s(jb[2])}, {s(jb[2])}, {D*D*2}'); e(f's_cselect_b32 {s(sT0)}, 0, {NJOB_WD}')
        e(f's_sub_u32 {s(sT0)}, {s(sJob)}, {s(sT0)}'); e(f's_mul_i32 {s(sT1)}, {s(sT0)}, 7282'); e(f's_lshr_b32 {s(sT1)}, {s(sT1)}, 16')
        e(f's_mul_i32 {s(jb[3])}, {s(sT1)}, {32*1152 - 9*128}'); e(f's_lshl_b32 {s(sT2)}, {s(sT0)}, 7'); e(f's_add_u32 {s(jb[3])}, {s(jb[3])}, {s(sT2)}')
        e(f's_mul_i32 {s(sT2)}, {s(sT1)}, 9'); e(f's_sub_u32 {s(sT0)}, {s(sT0)}, {s(sT2)}'); e(f's_lshl_b32 {s(sT0)}, {s(sT0)}, 2')
        e(f's_mul_i32 {s(sJo)}, {s(sT0)}, 7282'); e(f's_lshr_b32 {s(sJo)}, {s(sJo)}, 16')
        e(f's_mul_i32 {s(sT2)}, {s(sJo)}, 9'); e(f's_sub_u32 {s(sT0)}, {s(sT0)}, {s(sT2)}')
        e(f's_sub_u32 {s(jb[5])}, 9, {s(sT0)}')
        e(f's_mul_i32 {s(sJo)}, {s(sJo)}, {144*9}'); e(f's_add_u32 {s(sJo)}, {s(sJo)}, {s(sT0)}')
        e(f's_mul_i32 {s(sT0)}, {s(sT1)}, 1821'); e(f's_lshr_b32 {s(sT0)}, {s(sT0)}, 16'); e(f's_mul_i32 {s(sT0)}, {s(sT0)}, 36')
        e(f's_sub_u32 {s(sT1)}, {s(sT1)}, {s(sT0)}'); e(f's_and_b32 {s(sT2)}, {s(sT1)}, 1'); e(f's_add_u32 {s(sT0)}, {s(sT0)}, {s(sT2)}'); e(f's_lshr_b32 {s(sT1)}, {s(sT1)}, 1')
        e(f's_mul_i32 {s(sT2)}, {s(sT1)}, 5')
        lo = sum(pos_of_double(d) << (5 * d) for d in range(6)); mi = sum(pos_of_double(6 + d) << (5 * d) for d in range(6)); hi = sum(pos_of_double(12 + d) << (5 * d) for d in range(6))
        e(f's_mov_b32 {s(jb[4])}, {lo}'); e(f's_cmp_ge_u32 {s(sT1)}, 6'); e(f's_cselect_b32 {s(jb[4])}, {mi}, {s(jb[4])}'); e(f's_cselect_b32 {s(mk[3])}, 30, 0')
        e(f's_cmp_ge_u32 {s(sT1)}, 12'); e(f's_cselect_b32 {s(jb[4])}, {hi}, {s(jb[4])}'); e(f's_cselect_b32 {s(mk[3])}, 60, {s(mk[3])}')
        e(f's_sub_u32 {s(sT2)}, {s(sT2)}, {s(mk[3])}'); e(f's_lshr_b32 {s(jb[4])}, {s(jb[4])}, {s(sT2)}'); e(f's_and_b32 {s(jb[4])}, {s(jb[4])}, 31')
        e(f's_lshl_b32 {s(jb[4])}, {s(jb[4])}, 1'); e(f's_add_u32 {s(sT0)}, {s(sT0)}, {s(jb[4])}'); e(f's_mul_i32 {s(sT0)}, {s(sT0)}, 9'); e(f's_add_u32 {s(sT0)}, {s(sT0)}, {s(sJo)}')
        e(f's_lshl_b32 {s(sT0)}, {s(sT0)}, 10'); e(f's_lshl_b32 {s(sT1)}, {s(sJob)}, 12')
        e(f's_cmp_lt_u32 {s(sJob)}, {NJOB_WD}'); e(f's_cselect_b32 {s(sT0)}, {s(sT0)}, {s(sT1)}'); e(f's_cselect_b32 {s(jb[5])}, {s(jb[5])}, 9')
        e(f's_add_u32 {s(jb[4])}, {s(sT0)}, {WT_OFF}'); e(f's_add_u32 {s(jb[5])}, {s(jb[5])}, {REC_OFF}')
        e(f's_cmp_lt_u32 {s(sJob)}, {NJOB}'); e(f's_cselect_b32 {s(jb[2])}, {s(jb[2])}, 0'); e(f's_cselect_b32 {s(jb[5])}, {s(jb[5])}, 0')
        if n == 0: e(f's_add_u32 {s(sJob)}, {s(sJob)}, 768')
    for q in range(3): e(f's_mov_b32 {s(SJS+q)}, {s(JP[q])}')
    SEC['park'] = cap[0] = []
    vPw = vRS; npk = [0]
    def park(r):
        e(f'v_writelane_b32 {v(vPw)}, {s(r)}, {npk[0]}'); npk[0] += 1
    tA, tB, tC, tD, tE, tF = (sKV + n for n in range(6))
    tAl, tTl, tK = sTB[:3]
    e(f's_mul_i32 {s(tA)}, {s(sM)}, 144'); e(f's_mul_i32 {s(tB)}, {s(sQF)}, 36'); e(f's_add_u32 {s(tA)}, {s(tA)}, {s(tB)}'); e(f's_mul_i32 {s(tA)}, {s(tA)}, 9216'); e(f's_add_u32 {s(tA)}, {s(tA)}, {WT_OFF}')
    e(f's_add_u32 {s(tC)}, {s(tA)}, {s(sM0w)}'); park(tC)
    e(f's_mul_i32 {s(tC)}, {s(sW)}, 9216'); park(tC)
    e(f's_add_u32 {s(tA)}, {s(tA)}, {s(tC)}'); e(f's_add_u32 {s(tA)}, {s(tA)}, {4*SLOT}'); park(tA)
    e(f's_lshl_b32 {s(tA)}, {s(sT)}, 3'); e(f's_lshl_b32 {s(tC)}, {s(sW)}, 1'); e(f's_add_u32 {s(tA)}, {s(tA)}, {s(tC)}'); e(f's_mul_i32 {s(tA)}, {s(tA)}, 144')
    e(f's_add_u32 {s(tA)}, {s(tA)}, {s(tB)}'); e(f's_lshl_b32 {s(tA)}, {s(tA)}, 10'); park(tA); e(f's_add_u32 {s(tA)}, {s(tA)}, {144*1024}'); park(tA)
    e(f's_mul_i32 {s(tA)}, s2, 10923'); e(f's_lshr_b32 {s(tA)}, {s(tA)}, 16'); e(f's_mul_i32 {s(tB)}, {s(tA)}, 6'); e(f's_sub_u32 {s(tB)}, s2, {s(tB)}'); e(f's_lshr_b32 {s(tB)}, {s(tB)}, 1')
    e(f's_mul_i32 {s(tC)}, {s(tA)}, 7282'); e(f's_lshr_b32 {s(tC)}, {s(tC)}, 16'); e(f's_mul_i32 {s(tD)}, {s(tC)}, 9'); e(f's_sub_u32 {s(tTl)}, {s(tA)}, {s(tD)}')
    e(f's_add_u32 {s(tAl)}, {s(tTl)}, {s(tB)}'); e(f's_sub_u32 {s(tAl)}, {s(tAl)}, 1'); e(f's_and_b32 {s(tK)}, s2, 1')
    e(f's_and_b32 {s(tD)}, {s(tA)}, 1'); e(f's_add_u32 {s(tD)}, {s(tD)}, {s(tB)}'); e(f's_sub_u32 {s(tD)}, {s(tD)}, 1')
    e(f's_lshl_b32 {s(tE)}, {s(tK)}, 10'); e(f's_lshl_b32 {s(tF)}, {s(tD)}, 3'); e(f's_add_u32 {s(tE)}, {s(tE)}, {s(tF)}'); e(f's_lshl_b32 {s(tF)}, {s(tK)}, 3'); e(f's_add_u32 {s(tF)}, {s(tF)}, 2048')
    e(f's_cmp_lt_u32 {s(tD)}, 2'); e(f's_cselect_b32 {s(tE)}, {s(tE)}, {s(tF)}')
    e(f's_mul_i32 {s(tA)}, {s(tA)}, 3072'); e(f's_add_u32 {s(tE)}, {s(tE)}, {s(tA)}'); e(f's_lshl_b32 {s(tF)}, {s(sW)}, 8'); e(f's_add_u32 {s(tE)}, {s(tE)}, {s(tF)}'); e(f's_add_u32 {s(tE)}, {s(tE)}, {REC_OFF}')
    e(f's_max_i32 {s(tA)}, {s(tAl)}, {s(tTl)}'); e(f's_cmp_gt_i32 {s(tA)}, 4'); e(f's_cselect_b32 {s(tA)}, 1, 0')
    e(f's_lshl_b32 {s(tB)}, {s(tA)}, 2'); e(f's_sub_u32 {s(tD)}, {s(tAl)}, {s(tB)}'); e(f's_sub_u32 {s(tB)}, {s(tTl)}, {s(tB)}'); e(f's_add_u32 {s(tB)}, {s(tB)}, {s(tD)}')
    e(f's_cmp_eq_u32 {s(tK)}, 0'); e(f's_cselect_b32 {s(tB)}, {s(tB)}, 13'); e(f's_add_u32 {s(tB)}, {s(tB)}, {s(tD)}')
    e(f's_lshl_b32 {s(tC)}, {s(tC)}, 1'); e(f's_add_u32 {s(tC)}, {s(tC)}, {s(tA)}'); e(f's_mul_i32 {s(tC)}, {s(tC)}, 18'); e(f's_add_u32 {s(tB)}, {s(tB)}, {s(tC)}')
    e(f's_lshl_b32 {s(tB)}, {s(tB)}, 10'); e(f's_add_u32 {s(tB)}, {s(tB)}, {s(tF)}'); e(f's_add_u32 {s(tB)}, {s(tB)}, {KVP_OFF}'); park(tB); park(tE)
    e(f's_cmp_lt_u32 {s(tAl)}, 9'); e(f's_cselect_b32 {s(tA)}, {WT_OFF}, 0'); e('s_cmp_lt_u32 s2, 216'); e(f's_cselect_b32 {s(tA)}, {s(tA)}, 0'); e(f's_cselect_b32 {s(tB)}, {STAMP_OFF}, 0')
    park(tA); park(tB)
    e(f's_lshl_b32 {s(tA)}, s2, 3'); e(f's_add_u32 {s(tA)}, {s(tA)}, {RECF_OFF}'); park(tA)
    e(f's_lshl_b32 {s(tTl)}, {s(tTl)}, 4'); park(tTl)
    e(f's_lshl_b32 {s(tA)}, {s(tAl)}, 4'); e(f's_lshl_b32 {s(tB)}, {s(sW)}, 2'); e(f's_add_u32 {s(tA)}, {s(tA)}, {s(tB)}'); e(f's_mul_i32 {s(tA)}, {s(tA)}, 3641')
    for r in range(4):
        e(f's_lshr_b32 {s(tB)}, {s(tA)}, 16'); park(tB)
        if r < 3: e(f's_add_u32 {s(tA)}, {s(tA)}, 3641')
    SEC['type'] = cap[0] = []
    QB = 73728
    sQo = sKV
    e(f's_lshl_b32 {s(sT0)}, {s(sQF)}, 8')
    for st in range(6):
        e(f's_add_u32 {s(sKV+st)}, {s(sT0)}, {4096 + 1152*(1 + st//3) + 128*(st%3) - 1024*(st%4)}')
    e(f's_mul_i32 {s(sKm)}, {s(sW)}, 6144')
    e(f's_lshl_b32 {s(sT0)}, {s(sLine)}, 7'); e(f's_add_u32 {s(sT0)}, {s(sT0)}, 4096'); e(f's_lshr_b32 {s(sT1)}, {s(sM0w)}, 1')
    e(f's_cmp_eq_u32 {s(sM)}, 0'); e(f's_cselect_b32 {s(sKV)}, {s(sKV)}, {s(sT0)}'); e(f's_cselect_b32 {s(sKm)}, {s(sKm)}, {s(sT1)}')
    SEC['touch'] = cap[0] = []
    vTq = T[21]
    e(f's_cmp_lt_u32 {s(sW)}, 2'); e(f's_cselect_b32 {s(SH)}, {s(SGt)}, {s(SU)}'); e(f's_cselect_b32 {s(SH+1)}, {s(SGt+1)}, {s(SU+1)}')
    e(f's_cselect_b32 {s(sT0)}, 0, 2048'); e(f's_add_u32 {s(SH+2)}, {s(sT0)}, {D*F*2}')
    e(f's_add_u32 {s(sTo)}, {s(sWo)}, {s(sT0)}')
    e(f's_mul_i32 {s(sT0)}, {s(sT)}, 36'); e(f's_mul_i32 {s(sT1)}, {s(sJ)}, 18'); e(f's_add_u32 {s(sT1)}, {s(sT1)}, {s(sT0)}')
    e(f'v_add_u32 {v(vU)}, {s(sT1)}, {v(vLane)}'); e(f'v_mul_u32_u24 {v(vU)}, 9216, {v(vU)}'); e(f'v_mov_b32 {v(vI2)}, 0x40000000')
    e(f'v_cmp_gt_u32 vcc, 18, {v(vLane)}'); e(f'v_cndmask_b32 {v(vTg)}, {v(vI2)}, {v(vU)}, vcc')
    e(f's_lshl_b32 {s(sT1)}, s2, 2'); e(f's_add_u32 {s(sT1)}, {s(sT1)}, {s(sW)}'); e(f's_lshl_b32 {s(sT1)}, {s(sT1)}, 11'); e(f's_add_u32 {s(sT1)}, {s(sT1)}, 4096')
    e(f'v_min_u32 {v(vTq)}, 15, {v(vLane)}'); e(f'v_lshlrev_b32 {v(vTq)}, 7, {v(vTq)}'); e(f'v_add_u32 {v(vTq)}, {s(sT1)}, {v(vTq)}')
    junk = lambda t: (lambda: e(t, junk=True))
    def gtouch(r=SX): return [junk(f'buffer_load_dword {v(vJS2)}, {v(vTg)}, {s(r,4)}, {s(sTo)} offen'), f's_add_u32 {s(sTo)}, {s(sTo)}, 128']
    e(f'v_mul_u32_u24 {v(vU)}, 1152, {v(vLane)}'); e(f'v_cmp_gt_u32 vcc, 32, {v(vLane)}'); e(f'v_cndmask_b32 {v(vTj)}, {v(vI2)}, {v(vU)}, vcc')
    def jtouch(): return [f's_mov_b32 {s(SJS+q)}, {s(JP[q])}' for q in range(3)] + ([] if 'nojt' in opt else [junk(f'buffer_load_dword {v(vJS2)}, {v(vTj)}, {s(SJS,4)}, {s(JP[3])} offen' + (' nt' if 'jnt' in opt else ''))])
    touches = gtouch() + (gtouch() if 't2' in opt else [])
    if 'notouch' in opt: touches = []
    else: put([junk(f'buffer_load_dword {v(vJS2)}, {v(vTq)}, {s(SQ,4)}, 0 offen')] + gtouch(SH))
    SEC['late'] = cap[0] = []
    for q in range(3): e(f's_mov_b32 {s(SX+q)}, {s(SH+q)}')
    e(f's_mov_b32 {s(SH)}, {s(SWS)}'); e(f's_mov_b32 {s(SH+1)}, {s(SWS+1)}'); e(f's_mov_b32 {s(SH+2)}, 0')
    SUM = lambda b: ACC + 4 * b
    SQ_ = lambda b: ACC + 16 + 4 * b
    pend = []
    def stats(b, ks):
        c0 = '0' if ks == 0 else v(SUM(b), 4); c1 = '0' if ks == 0 else v(SQ_(b), 4)
        e(f'v_mfma_f32_16x16x32_bf16 {v(SUM(b),4)}, {v(vONE,4)}, {xf(b,ks)}, {c0}')
        e(f'v_mfma_f32_16x16x32_bf16 {v(SQ_(b),4)}, {xf(b,ks)}, {xf(b,ks)}, {c1}')
    cap[0] = None
    tv = [x for x in SEC['touch'] if x[0].startswith('buffer_load')]; ta = [x for x in SEC['touch'] if x[0].startswith('s_add_u32 ' + s(sTo) + ', ' + s(sTo))]
    SEC['touch'] = [x for x in SEC['touch'] if x not in tv and x not in ta]
    SETA = sum((SEC[n] for n in ('srd', 'xr', 'scal', 'type', 'wdma', 'touch', 'const')), []); SETB = tv + ta + SEC['late']
    def scc_safe(L):
        for t, _, _ in L:
            mn = t.split()[0]
            if mn.startswith(('s_cselect', 's_addc', 's_subb')): return False
            if mn.startswith('s_') and not mn.startswith(('s_mov', 's_mul')): return True
        return True
    def atoms(L):
        L = list(L); out = []
        while L:
            g = [L.pop(0)]
            while not scc_safe(L): g.append(L.pop(0))
            out.append(g[0][0] if len(g) == 1 else (lambda g=g: [e(*x) for x in g]))
        return out
    def some(L, n):
        while L and (n > 0 or not scc_safe(L)):
            e(*L.pop(0)); n -= 1
    def xline(l):
        nonlocal pend
        p.wait_tag(f'x{l}')
        if l in (4, 8):
            for k in range(2): e(f'v_add_u32 {v(vXR[k])}, 65536, {v(vXR[k])}')
        cur = []
        for kk in range(2):
            for b in range(2):
                e(f'ds_read_b128 {xf(b, 2*l+kk)}, {v(vXR[kk])} offset:{(l%4)*16384 + b*2048}')
                cur.append((b, 2 * l + kk))
        if l % 3 == 2:
            e('s_barrier')
            for l2 in range(l - 2, l + 1):
                if l2 in (4, 8):
                    for k in range(2): prd.append(f'v_add_u32 {v(vXP[k])}, 65536, {v(vXP[k])}')
                prd.extend(f'ds_read_b128 {xf(2 + b, 2*l2+kk)}, {v(vXP[kk])} offset:{(l2%4)*16384 + b*2048}' for kk in range(2) for b in range(2))
        old, pend = pend, cur
        return old
    prd = []
    def someP(n):
        for _ in range(n):
            if prd: e(prd.pop(0))
    LAG = int(next((o[3:] for o in opt if o.startswith('lag')), 4))
    per = -(-len(SETA) // 36)
    for l in range(9):
        e(f's_add_u32 m0, {s(sM0w)}, {l*16384}')
        if l: e('s_add_u32 s3, s3, 128')
        todo = xline(l - LAG) if l >= LAG else []
        for q in range(4):
            e(f'buffer_load_dwordx4 {v(vXO[q])}, {s(SX,4)}, s3 offen offset:{1024*q} lds', tag=f'x{l}')
            if todo: stats(*todo.pop(0))
            someP(1); some(SETA, per)
    if stamps: p.raw(f's_memrealtime {s(sSt,2)}'); p.raw('s_waitcnt lgkmcnt(0)'); p.raw(f's_mov_b32 s3, {s(sSt)}')
    some(SETA, 999)
    if 'tend' not in opt: some(SETB, 999)
    for l in range(9 - LAG, 9):
        todo = xline(l)
        while todo:
            stats(*todo.pop(0)); someP(2)
    while pend:
        stats(*pend.pop(0)); someP(3)
    some(SETB, 999); someP(99)
    stamp()
    for b in range(2):
        for r in range(4): e(f'v_mul_f32 {v(SUM(b)+r)}, {fhex(-1.0/576)}, {v(SUM(b)+r)}')
        e(f'ds_write_b128 {v(vXR[2])}, {v(SUM(b),4)} offset:{1024*b}')
    p.wait_lg(0); e('s_barrier')
    for b in range(2): e(f'ds_read_b128 {v(SUM(2+b),4)}, {v(vXR[3])} offset:{1024*b}')
    stamp()
    st0 = p.snapshot()
    tmpv = T[36]
    CT = [T[40 + 8 * k] for k in range(3)]
    order = [(b, ks) for ks in range(18) for b in range(2)] + [(2 + b, ks) for ks in range(18) for b in range(2)]
    vNn, vNz = T[22], T[38]
    def center(mem, lab):
        e(f'v_mov_b32 {v(vNz)}, 0'); e(f'global_load_dwordx2 {v(vNn,2)}, {v(vNz)}, {s(sDbg,2)} sc1')
        mem = [x for x in mem if x]
        nm = sum(1 for x in mem if not isinstance(x, str)); done = [0]
        def one():
            while mem:
                x = mem.pop(0); put([x])
                if not isinstance(x, str):
                    done[0] += 1; break
        extra = []
        for b in range(2):
            q_ = SQ_(b)
            extra += [f'v_cndmask_b32 {v(tmpv+b)}, {v(q_)}, {v(q_+1)}, {s(mk[1],2)}', f'v_cndmask_b32 {v(tmpv+b)}, {v(tmpv+b)}, {v(q_+2)}, {s(mk[2],2)}',
                      f'v_cndmask_b32 {v(tmpv+b)}, {v(tmpv+b)}, {v(q_+3)}, {s(mk[3],2)}', f'v_cndmask_b32 {v(tmpv+b)}, 0, {v(tmpv+b)}, {s(mk[0],2)}']
        extra += [None] + [f'v_mfma_f32_16x16x4_f32 {v(SQ_(b),4)}, {v(vF1)}, {v(tmpv+b)}, 0' for b in range(2)]
        extra += [f'v_mul_f32 {v(tmpv+b)}, {v(SUM(b))}, {v(SUM(b))}' for b in range(2)] + [f's_mov_b32 {s(sT0)}, {fhex(1.0/576)}', None]
        for b in range(2):
            extra += [f'v_fma_f32 {v(tmpv+b)}, {v(SQ_(b))}, {s(sT0)}, -{v(tmpv+b)}', f'v_max_f32 {v(tmpv+b)}, 0, {v(tmpv+b)}',
                      f'v_add_f32 {v(tmpv+b)}, {fhex(1e-5)}, {v(tmpv+b)}', f'v_rsq_f32 {v(vRS+b)}, {v(tmpv+b)}', f'v_rcp_f32 {v(vRS2+b)}, {v(tmpv+b)}']
        extra += [f'ds_write_b64 {v(vXR[2])}, {v(vRS,2)} offset:2048', f'ds_write_b64 {v(vXR[2])}, {v(vRS2,2)} offset:2056', None, None, None,
                  lambda: (p.wait_lg(0), e('s_barrier')), f'ds_read_b64 {v(vRS+2,2)}, {v(vXR[3])} offset:2048', f'ds_read_b64 {v(vRS2+2,2)}, {v(vXR[3])} offset:2056']
        for n in range(72 + 2):
            pk = [[], [], [], []]; m = [None, None]
            if n < 72:
                b, ks = order[n]; t = CT[n % 3]
                m = [f'v_mfma_f32_16x16x32_bf16 {v(t,4)}, {v(vSEL+2,4)}, {xf(b,ks)}, {v(SUM(b),4)}',
                     f'v_mfma_f32_16x16x32_bf16 {v(t+4,4)}, {v(vSEL,4)}, {xf(b,ks)}, {v(SUM(b),4)}']
            if n >= 2:
                b, ks = order[n - 2]; t = CT[(n - 2) % 3]; f = fidx(b, ks)
                for d in range(4):
                    if f < NXV: pk[d] = [f'v_cvt_pk_bf16_f32 {v(XV + 4*f + d)}, {v(t+2*d)}, {v(t+2*d+1)}']
                    else: pk[d] = [f'v_cvt_pk_bf16_f32 {v(t+2*d)}, {v(t+2*d)}, {v(t+2*d+1)}', f'v_accvgpr_write_b32 {a(XA + 4*(f-NXV) + d)}, {v(t+2*d)}']
            put([m[0]] + pk[0] + pk[1] + [m[1]] + pk[2] + pk[3])
            if extra: put([extra.pop(0)])
            if done[0] * 66 < nm * (n + 1): one()
        assert not extra
        while mem: one()
        e(f'v_readfirstlane_b32 {s(sN)}, {v(vNn)}'); e(f'v_readfirstlane_b32 {s(sN+1)}, {v(vNn+1)}')
        e(f's_cmp_eq_u32 {s(sN)}, 0'); e(f's_cbranch_scc1 {lab}_nw'); p.label(f'{lab}_nd')
        slow.append([f'{lab}_nw:', f's_mov_b32 {s(sSpin)}, {SPIN}', f'{lab}_nw2:', f'global_load_dwordx2 {v(vNn,2)}, {v(vNz)}, {s(sDbg,2)} sc1', 's_waitcnt vmcnt(0)',
                     f'v_readfirstlane_b32 {s(sN)}, {v(vNn)}', f'v_readfirstlane_b32 {s(sN+1)}, {v(vNn+1)}', f's_sub_u32 {s(sSpin)}, {s(sSpin)}, 1',
                     f's_cmp_lg_u32 {s(sN)}, 0', f's_cbranch_scc1 {lab}_nd', f's_cmp_lg_u32 {s(sSpin)}, 0', f's_cbranch_scc1 {lab}_nw2', f's_branch {lab}_nd'])
        stamp(2)
    def q_dma(c):
        return [f's_add_u32 m0, {s(sKm)}, {QB + 8192*c}', (f'buffer_load_dwordx4 {v(vQD[0])}, {s(SQ,4)}, {s(sQo)} offen lds', f'q{c}'),
                (f'buffer_load_dwordx4 {v(vQD[1])}, {s(SQ,4)}, {s(sQo)} offen offset:1024 lds', f'q{c}'), f's_add_u32 {s(sQo)}, {s(sQo)}, {64*3456}']
    e(f's_cmp_eq_u32 {s(sM)}, 0'); e(f's_cbranch_scc1 {name}_kv')
    e(f's_cmp_lt_u32 {s(sLine)}, 9'); e(f's_cbranch_scc1 {name}_q')
    center([x for c in range(8) for x in ffn_dma(c)] + touches, name + '_f')
    some(list(SEC['jobs']), 999); put(jtouch()[3:])
    stF = p.snapshot(); stF = (stF[0], [x for x in stF[1] if str(x[1]).startswith('slot')])
    e(f's_branch {name}_hdr')

    def phi2(x, rs, rsl, t):
        return [f'v_pk_mul_f32 {v(t,2)}, {v(x,2)}, {v(rsl[0],2)}{rsl[1]}', f'v_pk_fma_f32 {v(x,2)}, {v(x,2)}, {v(rs[0],2)}, {s(sEps,2)}{rs[2]}',
                f'v_exp_f32_e64 {v(t)}, {v(t)} clamp', f'v_exp_f32_e64 {v(t+1)}, {v(t+1)} clamp',
                f'v_max_f32 {v(x)}, {s(sEps)}, {v(x)}', f'v_max_f32 {v(x+1)}, {s(sEps)}, {v(x+1)}', f'v_pk_add_f32 {v(x,2)}, {v(x,2)}, {v(t,2)}']
    def bc(reg):
        h = reg & 1
        return (reg & ~1, f' op_sel:[0,{h}] op_sel_hi:[1,{h}]', f' op_sel:[0,{h},0] op_sel_hi:[1,{h},1]')
    pr = lambda reg: (reg, '', '')
    def weave(seqs, between=None):
        for k in range(max(map(len, seqs))):
            for sq in seqs:
                if k < len(sq): e(sq[k])
            if between: between()
    def set_eps(): e(f's_mov_b32 {s(sEps)}, {fhex(1e-6)}'); e(f's_mov_b32 {s(sEps+1)}, {fhex(1e-6)}')
    wf = lambda g, kk: a(WF + 8 * (g % 3) + 4 * kk, 4)
    def tr4(g, base_reg, off, kstride):
        out = []
        for kk in range(2):
            for h in range(2):
                out.append(f'ds_read_b64_tr_b16 {a(WF + 8*(g%3) + 4*kk + 2*h, 2)}, {v(base_reg)} offset:{off + kk*kstride + h*512}')
        return out
    p.label(f'{name}_q'); p.restore(st0)
    center([x for c in range(9) for x in q_dma(c)] + [x for c in range(4) for x in ffn_dma(c)] + touches, name + '_qq')
    vQT = [ACC + 0, ACC + 1]
    e(f'v_lshrrev_b32 {v(ACC+2)}, 5, v0'); e(f'v_and_b32 {v(ACC+2)}, 1, {v(ACC+2)}'); e(f'v_lshlrev_b32 {v(ACC+2)}, 11, {v(ACC+2)}')
    e(f'v_subrev_u32 {v(ACC+2)}, {QB}, {v(ACC+2)}')
    for tt in range(2): e(f'v_sub_u32 {v(vQT[tt])}, {v(vTR+tt)}, {v(ACC+2)}')
    p.wait_tag('q8'); e('s_barrier')
    qtr = lambda g: tr4(g, vQT[g % 2], ((g // 2) % 4) * 8192 + (32768 if g // 2 == 8 else 0), 4096)
    for x in qtr(0) + qtr(1): e(x)
    nxt_slot = 4; qj = atoms(SEC['jobs'])
    for g in range(18):
        c, tt = g // 2, g % 2
        mains = []; sl = Slots(8)
        for b in range(4):
            for kk in range(2):
                acc = PR + 16 * tt + 4 * b
                cc = '0' if (c == 0 and kk == 0) else v(acc, 4)
                mains.append(f'v_mfma_f32_16x16x32_bf16 {v(acc,4)}, {wf(g,kk)}, {xf(b, 2*c+kk)}, {cc}')
        sl.fix(-1, lambda g=g: p.need(a(WF + 8 * (g % 3), 8)))
        if g in (2, 6, 10, 14): sl.fix(-1, 's_barrier')
        if g + 2 < 18:
            if g + 2 == 8:
                for tt2 in range(2): sl.fix(-1, f'v_add_u32 {v(vQT[tt2])}, 32768, {v(vQT[tt2])}')
            for k, x in enumerate(qtr(g + 2)): sl.fix(2 * k, x)
        if g in (2, 6, 10, 14):
            sl.stream(0, [x for x in ffn_dma(nxt_slot) if x]); nxt_slot += 1
        else:
            sl.stream(0, qj[:8]); qj = qj[8:]
        interleave(p, mains, sl.f)
    put(qj); put(jtouch()[3:])
    stamp(3)
    qtail = []
    set_eps()
    for b in range(4): e(f'v_mul_f32 {v(ACC+4+b)}, {fhex(LOG2E)}, {v(vRS+b)}')
    for b in range(4):
        weave([phi2(PR + 16 * tt + 4 * b + r, bc(vRS + b), bc(ACC + 4 + b), ACC + 8 + 4 * tt + r) for tt in range(2) for r in (0, 2)],
              lambda: put([qtail.pop(0)]) if qtail else None)
        o = PR + 4 * b
        e(f'v_cvt_pk_bf16_f32 {v(o)}, {v(o)}, {v(o+1)}'); e(f'v_cvt_pk_bf16_f32 {v(o+1)}, {v(o+2)}, {v(o+3)}')
        e(f'v_cvt_pk_bf16_f32 {v(o+2)}, {v(o+16)}, {v(o+17)}'); e(f'v_cvt_pk_bf16_f32 {v(o+3)}, {v(o+18)}, {v(o+19)}')
        e(f's_mul_i32 {s(sT0)}, {s(sTB[b])}, 18'); e(f's_lshl_b32 {s(sT2)}, {s(sLine)}, 1'); e(f's_add_u32 {s(sT0)}, {s(sT0)}, {s(sT2)}'); e(f's_add_u32 {s(sT0)}, {s(sT0)}, {s(sJ)}')
        e(f's_lshl_b32 {s(sT0)}, {s(sT0)}, 10'); e(f's_add_u32 {s(sT0)}, {s(sT0)}, {PQ_OFF}')
        e(f'buffer_store_dwordx4 {v(o,4)}, {v(vL16)}, {s(SWS,4)}, {s(sT0)} offen sc1')
    assert not qtail
    e(f's_branch {name}_hdr')
    p.label(f'{name}_kv'); p.restore(st0)
    center([x for ks in range(6) for x in kv_dma(ks, vKD)] + touches, name + '_kk')
    def kacc(ct, b):
        if ct >= 5: return ('v', ACC + 16 * (ct - 5) + 4 * b)
        return ('v', ACC + 80 + 4 * b) if ct == 0 else ('a', JD + 16 * (ct - 1) + 4 * b)
    vKT = [vT + k for k in range(4)]
    e(f'v_and_b32 {v(vT+4)}, 15, v0'); e(f'v_lshlrev_b32 {v(vT+4)}, 2, {v(vT+4)}'); e(f'v_add_u32 {v(vT+4)}, {s(sSP)}, {v(vT+4)}')
    e(f'v_bfe_u32 {v(vT+5)}, v0, 4, 2'); e(f'v_mul_u32_u24 {v(vT+5)}, 6144, {v(vT+5)}')
    e(f'v_and_b32 {v(vT+6)}, 0x1ff, {v(vTR)}'); e(f's_lshl_b32 {s(sT0)}, {s(sJ)}, 6'); e(f'v_xor_b32 {v(vT+6)}, {s(sT0)}, {v(vT+6)}')
    for u in range(4):
        e(f's_add_u32 {s(sT0)}, {s(sQF)}, {u}'); e(f's_and_b32 {s(sT1)}, {s(sT0)}, 3'); e(f's_lshl_b32 {s(sT1)}, {s(sT1)}, 5')
        e(f's_lshr_b32 {s(sT0)}, {s(sT0)}, 2'); e(f's_add_u32 {s(sT0)}, {s(sT0)}, {s(sJ)}'); e(f's_lshl_b32 {s(sT0)}, {s(sT0)}, 10')
        e(f'v_xor_b32 {v(vKT[u])}, {s(sT1)}, {v(vT+6)}'); e(f'v_add3_u32 {v(vKT[u])}, {v(vKT[u])}, {s(sT0)}, {v(vT+5)}')
    vKD2 = vT + 6
    for q in (2, 5, 8, 11): e(f's_mov_b32 {s(JP[q])}, 0')
    e(f'v_mov_b32 {v(vKD2)}, {v(vKD)}')
    NR, LA = 6, 3
    kfr = lambda n: WF + 4 * (n % NR)
    def ktr(n):
        ks, ct = divmod(n, 10); aa = ct % 5
        off = (ks % 2) * 24576 + (aa // 4) * 1024 + (ct // 5) * 3072
        return [f'ds_read_b64_tr_b16 {a(kfr(n) + 2*h, 2)}, {v(vKT[aa % 4])} offset:{off + 512*h}' for h in range(2)]
    p.wait_tag('kv0'); e('s_barrier')
    for n in range(LA):
        for x in ktr(n): e(x)
    ffn_at = {14: [0], 15: [1, 2], 16: [3], 17: [4, 5]}
    for ks in range(18):
        mains = []; sl = Slots(40)
        for ct in range(10):
            n = ks * 10 + ct
            for b in range(4):
                kd, base = kacc(ct, b); acc = R(kd, base, 4)
                mains.append(f'v_mfma_f32_16x16x32_bf16 {acc}, {xf(b,ks)}, {a(kfr(n),4)}, {"0" if ks == 0 else acc}')
            sl.fix(4 * ct - 1, lambda n=n: p.need(a(kfr(n), 4)))
            if n + LA < 180:
                if (n + LA) % 10 == 0:
                    nk = (n + LA) // 10
                    sl.fix(4 * ct - 1, lambda nk=nk: p.wait_tag(f'kv{nk}')); sl.fix(4 * ct, 's_barrier')
                    if nk % 2 == 0:
                        dlt = 49152 if nk % 6 else -98304
                        for u in range(4): sl.fix(4 * ct - 3 + u // 2, f'v_add_u32 {v(vKT[u])}, {dlt & 0xffffffff:#x}, {v(vKT[u])}')
                t2 = ktr(n + LA)
                late = (n + LA) % 10 == 0
                early = (n + LA) % 10 == 9
                sl.fix(4 * ct + (1 if late else 0), t2[0]); sl.fix(4 * ct + (0 if early else 2), t2[1])
        dm = []
        if ks == 3: sl.stream(30, [f'ds_write_b32 {v(vT+4)}, {v(vRS+b)} offset:{64*b}' for b in range(4)])
        if 2 <= ks <= 13: dm = kv_dma(ks + 4, vKD2)
        elif ks in ffn_at: dm = [x for t in ffn_at[ks] for x in ffn_dma(t) if x]
        sl.stream(0, dm, last=26)
        interleave(p, mains, sl.f)
    p.wait_lg(0); e('s_barrier')
    stamp(4)
    FQ = lambda n: ACC + 16 * (n % 5) + 4 + 8 * (n // 5)
    e(f'v_bfe_u32 {v(vRS)}, v0, 4, 2'); e(f'v_lshlrev_b32 {v(vRS)}, 4, {v(vRS)}'); e(f'v_add_u32 {v(vRS)}, {s(sSP)}, {v(vRS)}')
    e(f'ds_read_b128 {v(vT,4)}, {v(vRS)}'); e(f'ds_read_b128 {v(vT+4,4)}, {v(vRS)} offset:64')
    for k in range(4): e(f'v_accvgpr_write_b32 {a(WF+k)}, {s(sOnes)}')
    set_eps()
    ktail = [x for x in ffn_dma(6) + ffn_dma(7) if x]
    RT = [[vT, vT + 4], [FQ(0), FQ(1)]]; RL = [[FQ(2), FQ(3)], [FQ(4), FQ(5)]]; RAW = [FQ(6), FQ(7)]; EXT = [FQ(8), FQ(9)]
    PV = {}; PK = {}
    for hb in range(2):
        for T_ in range(5):
            base = ACC + 16 * T_ + 8 * hb
            for k in range(0, 8, 2): e(f'v_pk_mul_f32 {v(base+k,2)}, {v(base+k,2)}, {v(RT[hb][k//4] + k%4, 2)}')
            for d in range(4): e(f'v_cvt_pk_bf16_f32 {v(base+d)}, {v(base+2*d)}, {v(base+2*d+1)}')
            PV[T_, hb] = v(base, 4)
            if hb == 0 and T_ == 1:
                e(f'ds_read_b128 {v(FQ(0),4)}, {v(vRS)} offset:128'); e(f'ds_read_b128 {v(FQ(1),4)}, {v(vRS)} offset:192')
            put([ktail.pop(0)])
    e(f's_mov_b32 {s(sT0)}, {fhex(LOG2E)}')
    for hb in range(2):
        for k in range(8): e(f'v_mul_f32 {v(RL[hb][k//4] + k%4)}, {s(sT0)}, {v(RT[hb][k//4] + k%4)}')
        put([ktail.pop(0)])
    assert not ktail
    e(f's_lshl_b32 {s(sT1)}, {s(sT)}, 1'); e(f's_add_u32 {s(sT1)}, {s(sT1)}, {s(sI)}'); e(f's_lshl_b32 {s(sT1)}, {s(sT1)}, 3')
    e(f's_lshl_b32 {s(sT0)}, {s(sQF)}, 1'); e(f's_add_u32 {s(sT0)}, {s(sT0)}, {s(sJ)}'); e(f's_add_u32 {s(sT1)}, {s(sT1)}, {s(sT0)}')
    e(f's_mul_i32 {s(sT1)}, {s(sT1)}, {18*1024}'); e(f's_add_u32 {s(sT1)}, {s(sT1)}, {KVP_OFF}'); e(f's_add_u32 {s(sT0)}, {s(sT1)}, {13*1024}')
    DT = [WF + 4 + 4 * k for k in range(5)]; nd = [0]; stq = []
    def kvmm(aa):
        for T_ in [T_ for T_ in (aa - 1, aa, aa + 1) if 0 <= T_ < 5] + [None]:
            d = a(DT[nd[0] % 5], 4); nd[0] += 1
            for hb in range(2):
                e(f'v_mfma_f32_16x16x32_bf16 {d}, {PK[aa, hb]}, {a(WF,4) if T_ is None else PV[T_, hb]}, {"0" if hb == 0 else d}')
            u = 13 + aa if T_ is None else KV_PAIRS.index((aa, T_))
            stq.append(f'buffer_store_dwordx4 {d}, {v(vL16)}, {s(SWS,4)}, {s(sT2)} offen sc1'); stq.insert(len(stq) - 1, f's_add_u32 {s(sT2)}, {s(sT1)}, {1024*u}')
    for aa in range(6):
        for hb in range(2):
            if aa == 5: break
            if aa == 0: src = [ACC + 80 + 8 * hb, ACC + 84 + 8 * hb]
            else:
                src = RAW
                if hb == 0: kvmm(aa - 1)
                for k in range(8): e(f'v_accvgpr_read_b32 {v(RAW[k//4] + k%4)}, {a(JD + 16*(aa-1) + 8*hb + k)}')
            weave([phi2(src[k//4] + k%4, pr(RT[hb][k//4] + k%4), pr(RL[hb][k//4] + k%4), EXT[k//4] + k%4) for k in range(0, 8, 2)],
                  lambda: put([stq.pop(0), stq.pop(0)]) if stq else None)
            if aa == 0:
                for d in range(4): e(f'v_cvt_pk_bf16_f32 {v(src[0]+d)}, {v(src[d//2] + 2*(d%2))}, {v(src[d//2] + 2*(d%2) + 1)}')
                PK[aa, hb] = v(src[0], 4)
            else:
                for d in range(4): e(f'v_cvt_pk_bf16_f32 {v(EXT[0]+d)}, {v(src[d//2] + 2*(d%2))}, {v(src[d//2] + 2*(d%2) + 1)}')
                for d in range(4): e(f'v_accvgpr_write_b32 {a(JD + 16*(aa-1) + 8*hb + d)}, {v(EXT[0]+d)}')
                PK[aa, hb] = a(JD + 16 * (aa - 1) + 8 * hb, 4)
    kvmm(4); put(stq)
    p.label(f'{name}_hdr'); p.restore(stF)
    stamp(5)
    acc = lambda ai, b: ACC + 16 * ai + 4 * b
    def ftr(G):
        G %= 36; c, g = divmod(G, 4)
        return tr4(G, vTR + 2 * (c // 4) + (g >> 1), (c % 4) * 16384 + (g & 1) * 2048, 8192)
    vPg, vP0 = vT + 4, vT + 6
    e(f'v_mov_b32 {v(vPg)}, {s(sN)}'); e(f'v_mov_b32 {v(vPg+1)}, {s(sN+1)}'); e(f'v_min_u32 {v(vP0)}, 1, v0'); e(f'v_lshlrev_b32 {v(vP0)}, 30, {v(vP0)}')
    e(f's_mov_b32 {s(sInc)}, {6*1024}'); e(f's_mov_b32 {s(sIncL)}, {10*1024}')
    e(f's_cmp_eq_u32 {s(sM)}, 0'); e(f's_cselect_b32 {s(sInc)}, {2*1024}, {s(sInc)}'); e(f's_cselect_b32 {s(sIncL)}, {8*1024}, {s(sIncL)}')
    e(f's_lshl_b32 {s(sT0)}, {s(sT)}, 2'); e(f's_add_u32 {s(sT0)}, {s(sT0)}, {s(sQF)}'); e(f's_lshl_b32 {s(sT0)}, {s(sT0)}, 5'); e(f's_add_u32 {s(sPc)}, {s(sT0)}, {PROG_OFF}')
    e(f's_lshl_b32 {s(sT0)}, {s(sM)}, 3'); e(f's_add_u32 {s(sPg)}, {s(sPc)}, {s(sT0)}')
    htouch = lambda inc: []
    def put2(sl, k, items):
        for x in items:
            if callable(x):
                while sl.cnt.get(k, 0): k += 1
                sl.fix(k, x, cost=2)
            else: k = sl.stream(k, [x])
        return k
    def check(lab, data, need, reload, pre=(), inline=True):
        seq = [f'v_xor_b32 {v(data)}, {s(sN)}, {v(data)}', f'v_sub_u32 {v(data+1)}, {v(data+1)}, {need}', f'v_lshrrev_b32 {v(data+1)}, 4, {v(data+1)}',
               f'v_or_b32 {v(data)}, {v(data)}, {v(data+1)}', f'v_cmp_ne_u32 vcc, 0, {v(data)}']
        spin = [f's_mov_b32 {s(sSpin)}, {SPIN}', f'{lab}_w2:', reload, 's_waitcnt vmcnt(0)'] + seq + \
               [f's_sub_u32 {s(sSpin)}, {s(sSpin)}, 1', 's_cmp_eq_u64 vcc, 0', f's_cbranch_scc1 {lab}_d', f's_cmp_lg_u32 {s(sSpin)}, 0', f's_cbranch_scc1 {lab}_w2', f's_branch {lab}_d']
        def f():
            if inline:
                put(seq); e('s_nop 0'); e('s_cmp_eq_u64 vcc, 0'); e(f's_cbranch_scc0 {lab}_w'); blk = [f'{lab}_w:'] + spin
            else:
                p.need(v(data, 2)); e(f's_cmp_eq_u32 {s(sCnt)}, 1'); e(f's_cbranch_scc1 {lab}_w')
                blk = [f'{lab}_w:'] + list(pre) + seq + ['s_nop 0', 's_cmp_eq_u64 vcc, 0', f's_cbranch_scc1 {lab}_d'] + spin
            p.label(f'{lab}_d')
            if blk not in slow: slow.append(blk)
        return f
    p.wait_tag('slot0'); e('s_barrier')
    for x in ftr(0) + ftr(1): e(x)
    def prod(h, b): return [f'v_mul_f32 {v(PR + 16*h + 4*b + r)}, {v(acc(2*h, b) + r)}, {v(acc(2*h+1, b) + r)}' for r in range(4)]
    def fin(b, inc):
        o = PR + 4 * b
        return ([f'v_mul_f32 {v(o + 16*h + r)}, {v(o + 16*h + r)}, {v(vRS2+b)}' for h in range(2) for r in range(4)] +
                [f'v_cvt_pk_bf16_f32 {v(o)}, {v(o)}, {v(o+1)}', f'v_cvt_pk_bf16_f32 {v(o+1)}, {v(o+2)}, {v(o+3)}',
                 f'v_cvt_pk_bf16_f32 {v(o+2)}, {v(o+16)}, {v(o+17)}', f'v_cvt_pk_bf16_f32 {v(o+3)}, {v(o+18)}, {v(o+19)}',
                 (f'buffer_store_dwordx4 {v(o,4)}, {v(vL16)}, {s(SH,4)}, {s(sH+b)} offen sc1', 'h')] +
                ([f's_add_u32 {s(sH+b)}, {s(sH+b)}, {s(inc)}'] if inc else []))
    progress = [f'v_add_u32 {v(vPg+1)}, 1, {v(vPg+1)}', f'buffer_store_dwordx2 {v(vPg,2)}, {v(vP0)}, {s(SWS,4)}, {s(sPg)} offen sc1']
    def slab(sl, mains, last):
        for G in range(36):
            c, g = divmod(G, 4)
            for b in range(4):
                for kk in range(2):
                    cc = '0' if (c == 0 and kk == 0) else v(acc(g, b), 4)
                    mains.append(f'v_mfma_f32_16x16x32_bf16 {v(acc(g,b),4)}, {wf(G,kk)}, {xf(b, 2*c+kk)}, {cc}')
            if G == 0 or (G - 1) % 4 == 2: sl.fix(8 * G - 1, lambda G=G: p.need(a(WF + 8 * (G % 3), 8)))
            if g != 2 and G < 35: sl.fix(8 * G + 6, lambda G=G: p.need(a(WF + 8 * ((G + 1) % 3), 8)))
            if g == 2:
                tag = f'slot{(c+1)%9}' if not (last and c == 8) else 'slot2'
                if c == 7: sl.fix(8 * G - 2, lambda: p.wait_tag('h'))
                sl.fix(8 * G - 1, lambda tag=tag: p.wait_tag(tag)); sl.fix(8 * G, 's_barrier')
            if not (last and G >= 34):
                for k, x in enumerate(ftr(G + 2)): sl.fix(8 * G + 2 * k + (1 if g == 2 else 0), x)
        sl.stream(8 * 33 + 5, prod(0, 0), last=8 * 34 - 1, cap=3)
        sl.stream(0, prod(1, 0) + prod(1, 1) + prod(1, 2) + prod(1, 3), last=15)
    def body():
        mains = []; sl = Slots(288)
        slab(sl, mains, False)
        sl.stream(8 * 34 + 1, prod(0, 1) + prod(0, 2) + prod(0, 3), last=287)
        for c in range(9):
            d = [x for x in ffn_dma((c - 1) % 9) if x]
            if c == 0: d[-1] = f's_add_u32 {s(sWo)}, {s(sWo)}, {(128 - 8*CH) & 0xffffffff:#x}'
            if c < 8: sl.stream(32 * c + 17, d, last=32 * c + 31, gap=1)
            else: sl.stream(32 * c + 17, d, last=287, cap=3)
        j1 = [f's_mov_b32 {s(sJo)}, {s(JP[3])}', f's_mov_b32 {s(SJD+2)}, {s(JP[5])}', f's_and_b32 {s(sCr)}, {s(JP[5])}, 15']
        k = sl.stream(16, j1, last=31)
        if 'notouch' not in opt:
            g_ = gtouch(); sl.fix(67, g_[0], cost=2); sl.stream(68, g_[1:])
        jl = [f's_mov_b32 m0, {s(sSP)}']
        for q in range(4):
            jl += [(f'buffer_load_dwordx4 {v(vJS)}, {s(SJS,4)}, {s(sJo)} offen offset:{1024*q}' + (' nt' if 'jnt' in opt else '') + ' lds', 'job'), f's_add_u32 {s(sJo)}, {s(sJo)}, 8192']
        k = sl.stream(32, jl, last=47, gap=1)
        k = sl.stream(16, fin(0, sInc) + fin(1, sInc) + fin(2, sInc) + fin(3, sInc), gap=1)
        j2 = [f's_mov_b32 {s(sJo)}, {s(JP[4])}'] + [f's_mov_b32 {s(JP[q])}, {s(JP[6+q])}' for q in range(6)]
        j2 += [f's_mov_b32 {s(JP[8])}, 0', f's_mov_b32 {s(JP[11])}, 0']
        j2 += [f'v_xor_b32 {v(vT+u)}, {32*u}, {v(vJT)}' for u in range(1, 4)]
        k = sl.stream(k + 1, j2)
        jt = jtouch(); k = sl.stream(k, jt[:3])
        if jt[3:]:
            k = (k + 2) | 1
            while sl.cnt.get(k, 0): k += 1
            sl.fix(k, jt[3], cost=2)
        assert k < 32 * 6
        j3 = [lambda: p.wait_tag('job')]
        for u in range(4):
            for h in range(2): j3.append(f'ds_read_b64_tr_b16 {a(JD + 4*u + 2*h, 2)}, {v(vT+u) if u else v(vJT)} offset:{2048*h}')
        k = sl.stream(32 * 6, j3, gap=1)
        for u in range(4):
            if u:
                k += 1; sl.fix(k, lambda u=u: put([f's_cmp_le_u32 {s(sCr)}, {u}', f's_cselect_b32 {s(sT0)}, {(144*9 - 9)*1024}, 0', f's_add_u32 {s(sT0)}, {s(sT0)}, {s(sJo)}']), cost=2)
            k = sl.stream(k + 2, [f'buffer_store_dwordx4 {a(JD+4*u,4)}, {v(vL16)}, {s(SJD,4)}, {s(sT0 if u else sJo)} offen offset:{1024*u} sc1'])
        assert k < 8 * 30 - 2, k
        k = sl.stream(8 * 30 + 8, progress); put2(sl, k, htouch(sInc) + [f's_mov_b32 {s(SH+2)}, {0 if "nohst" in opt else PQ_OFF}'])
        vPd, vPa, vPn = vRS + 2, vRS + 1, vT
        pollA = f'buffer_load_dwordx2 {v(vPd,2)}, {v(vPa)}, {s(SWS,4)}, 0 offen sc1'
        if 'lateA' not in opt: sl.stream(32 * 5, [f'v_lshlrev_b32 {v(vPa)}, 3, v0', f'v_add_u32 {v(vPa)}, {PROG_OFF}, {v(vPa)}', pollA])
        if 'lateA' not in opt: sl.fix(8 * 30 - 4, check(name + '_ca', vPd, v(vPn), pollA, inline=False,
               pre=[f'v_and_b32 {v(vPn)}, 3, v0', f'v_min_u32 {v(vPn)}, 1, {v(vPn)}', f'v_lshl_add_u32 {v(vPn)}, {v(vPn)}, 1, 1', f'v_add_u32 {v(vPn)}, {s(sN+1)}, {v(vPn)}']), cost=2)
        def pull():
            e(f's_cmp_eq_u32 {s(sCnt)}, 1'); e(f's_cbranch_scc1 {name}_pw'); p.label(f'{name}_pd')
            t0, t1, t2 = vT, vT + 1, vT + 2
            blk = [f'{name}_pw:', f's_and_b32 {s(sT0)}, {s(sT)}, 7', f's_lshl_b32 {s(sT0)}, {s(sT0)}, 2', f's_add_u32 {s(sT0)}, {s(sT0)}, {s(sW)}',
                   f's_mul_i32 {s(sT1)}, {s(sM)}, 144', f's_mul_i32 {s(sT2)}, {s(sQF)}, 36', f's_add_u32 {s(sT1)}, {s(sT1)}, {s(sT2)}', f's_mul_i32 {s(sT1)}, {s(sT1)}, 9216',
                   f's_mul_i32 {s(sT2)}, {s(sT0)}, {81*128}', f's_add_u32 {s(sT1)}, {s(sT1)}, {s(sT2)}', f's_add_u32 {s(sT1)}, {s(sT1)}, {WT_OFF}',
                   f'v_lshlrev_b32 {v(t0)}, 3, {v(vL16)}', f'v_min_u32 {v(t1)}, {16*128}, {v(t0)}',
                   f'buffer_load_dword {v(vJS2)}, {v(t0)}, {s(SWS,4)}, {s(sT1)} offen', f's_add_u32 {s(sT1)}, {s(sT1)}, 8192',
                   f'buffer_load_dword {v(vJS2)}, {v(t1)}, {s(SWS,4)}, {s(sT1)} offen',
                   f's_mul_i32 {s(sT0)}, {s(sT0)}, 41', f'v_lshrrev_b32 {v(t0)}, 4, {v(vL16)}', f'v_min_u32 {v(t1)}, 40, {v(t0)}', f'v_add_u32 {v(t1)}, {s(sT0)}, {v(t1)}', f'v_min_u32 {v(t1)}, 1295, {v(t1)}',
                   f'v_mul_u32_u24 {v(t2)}, 3641, {v(t1)}', f'v_lshrrev_b32 {v(t2)}, 18, {v(t2)}', f'v_mul_u32_u24 {v(t2)}, {36*1024 - 72*128}, {v(t2)}', f'v_lshl_add_u32 {v(t1)}, {v(t1)}, 7, {v(t2)}',
                   f's_mul_i32 {s(sT1)}, {s(sM)}, 9216', f's_add_u32 {s(sT1)}, {s(sT1)}, {WOT_OFF}',
                   f'buffer_load_dword {v(vJS2)}, {v(t1)}, {s(SWS,4)}, {s(sT1)} offen',
                   f's_lshl_b32 {s(sT0)}, {s(sT)}, 2', f's_add_u32 {s(sT0)}, {s(sT0)}, {s(sQF)}', f's_lshl_b32 {s(sT0)}, {s(sT0)}, 4', f's_lshl_b32 {s(sT1)}, {s(sM)}, 2', f's_add_u32 {s(sT0)}, {s(sT0)}, {s(sT1)}',
                   f's_add_u32 {s(sT0)}, {s(sT0)}, {s(sW)}', f's_mul_i32 {s(sT0)}, {s(sT0)}, {18*128}', f's_add_u32 {s(sT0)}, {s(sT0)}, {PQ_OFF}',
                   f'v_min_u32 {v(t0)}, 17, {v(t0)}', f'v_lshlrev_b32 {v(t0)}, 7, {v(t0)}', f'buffer_load_dword {v(vJS2)}, {v(t0)}, {s(SWS,4)}, {s(sT0)} offen',
                   f's_branch {name}_pd']
            if blk not in slow: slow.append(blk)
        if 'nopull' not in opt and 'lateA' not in opt: sl.fix(8 * 31 + 6, pull, cost=2)
        k = sl.stream(70, atoms(SEC['park'])); assert k < 8 * 33, k
        if stamps and 'floop' in opt:
            for j_, c_ in enumerate((3, 6, 9)): sl.fix(32 * c_ - 2, lambda j_=j_: stamp(28 + j_, True), cost=2)
        if not ov: ov.append(1); print('overflow loop', [sl.over(32*c, 32*c+32) for c in range(9)], file=__import__('sys').stderr)
        interleave(p, mains, sl.f)
    ov = []
    def back():
        e(f's_sub_u32 {s(sCnt)}, {s(sCnt)}, 1'); e(f's_cmp_lg_u32 {s(sCnt)}, 0'); e(f's_cbranch_scc1 {name}_loop')
    p.loop(body, f'{name}_loop', back)
    stamp(6)

    sC, sQK = sM, sQF
    SO, SJ, SA, SP_ = SQ, SJS, SJD, SGt
    free_s = JP + [sKV + k for k in range(6)] + sTB + [sJob, sJo, sLine, sTo, sCr, sSP, sOnes]
    sWd, sWs, sH2a, sH2b, sJs, sJd, sAl, sTl, sHi, sRec, sWo2, sW8, sPq0, sPq1, sPart, sFl, sSel, sT3, sM0p, sRf = free_s[:20]
    sH2 = [sH2a, sH2b]; sHd = free_s[20:24]; sXo = sAl; vPk = vPw
    PARK = [sWs, sM0p, sWd, sH2a, sH2b, sJs, sJd, SJ + 2, SA + 2, sRf, sTl] + sHd
    ACC2 = XV
    big = lambda f: ACC + 4 * f if f < 24 else XV + 72 + 4 * (f - 24)
    vLx = [vL16, vTg, vRS + 1]; vRD = [vT, vT + 1, vT + 2, vT + 3]; vXO2, vX8 = vJS, vJT
    vXD = [vTR, vTR + 4, vRS + 2]; TQ = [vT + 4, vRS2 + 2]
    assert vTR % 4 == 0 and (vRS + 2) % 4 == 0 and (vRS2 + 2) % 4 == 0 and XV + 72 + 52 <= 252
    vCk = 252
    HBs = [JD, JD + 32, XA + 16, XA + 48]; AR = XA + 80
    hb = lambda c, b, ks: HBs[c % 4] + 16 * b + 4 * ks
    WR = [XA + 128 + 4 * k for k in range(8)] + [XA + 4 * k for k in range(4)] + [WF + 4 * k for k in range(6)] + [JD + 68, AR + 44] + \
         [HBs[n] + 4 * k for n in (1, 2, 3, 0) for k in range(8)] + [AR, AR + 4]
    wreg = lambda f: WR[f]
    assert npk[0] == len(PARK)
    def hloads(c):
        out = []
        for b in range(2):
            for ks in range(4): out.append(f'buffer_load_dwordx4 {a(hb(c,b,ks),4)}, {v(vL16)}, {s(SWS,4)}, {s(sH2[b])} offen offset:{1024*ks} sc1')
            out.append(f's_add_u32 {s(sH2[b])}, {s(sH2[b])}, 4096')
        return out
    def sdma(slot, tag):
        return [f's_add_u32 m0, {s(sM0w)}, {slot*16384}'] + \
               [(f'buffer_load_dwordx4 {v(vL16)}, {s(SWS,4)}, {s(sWs)} offen offset:{1024*q} sc1 lds', tag) for q in range(4)] + [f's_add_u32 {s(sWs)}, {s(sWs)}, 16384']
    def wdma(c):
        out = []
        for pc in range(9):
            if pc % 4 == 0: out.append(f's_add_u32 m0, {s(sM0p)}, {(c%4)*SLOT + 4096*(pc//4)}')
            out.append((f'buffer_load_dwordx4 {v(vLx[pc//4])}, {s(SWS,4)}, {s(sWd)} offen offset:{1024*(pc%4)} sc1 lds', f'w{c}'))
        out.append(f's_add_u32 {s(sWd)}, {s(sWd)}, {SLOT}')
        return out
    acc2 = lambda aa, b: ACC2 + 8 * aa + 4 * b
    ar = lambda n, ks: AR + 16 * (n % 3) + 4 * ks
    def ard(n):
        c, aa = divmod(n, 9)
        return [f'ds_read_b128 {a(ar(n,ks),4)}, {v(vRD[c%4])} offset:{ks*9216 + aa*1024}' for ks in range(4)]
    grp = lambda *xs: (lambda: put(list(xs)))
    mains = []; sl = Slots(288 + 648); B0 = 288
    slab(sl, mains, True)
    for n in range(2):
        for k, x in enumerate(ard(n)): sl.fix(8 * (34 + n) + 2 * k + (1 if n == 0 else 0), x)
    for n in range(81):
        c, aa = divmod(n, 9)
        for b in range(2):
            for ks in range(4):
                cc = '0' if (c == 0 and ks == 0) else v(acc2(aa, b), 4)
                mains.append(f'v_mfma_f32_16x16x32_bf16 {v(acc2(aa,b),4)}, {a(ar(n,ks),4)}, {a(hb(c,b,ks),4)}, {cc}')
        if n == 0 or (aa == 8 and c < 8): sl.fix(B0 + 8 * n - 1, lambda n=n, c=c, aa=aa: p.need(a(ar(n, 0), 16), *([a(HBs[c % 4], 32)] if aa == 0 else [])))
        if n < 80 and not (aa == 7 and c < 8): sl.fix(B0 + 8 * n + 6, lambda n=n + 1: p.need(a(ar(n, 0), 16), *([a(HBs[(n // 9) % 4], 32)] if n % 9 == 0 else [])))
        late = 0
        if aa == 7 and c < 8:
            tag = ('slot4', 'slot6', 'slot8x')[c] if c < 3 else f'w{c+1}'
            sl.fix(B0 + 8 * n - 1, lambda tag=tag: p.wait_tag(tag)); sl.fix(B0 + 8 * n, 's_barrier'); late = 1
        if aa == 1 and c <= 5: sl.fix(B0 + 8 * n - 4, 's_barrier')
        if n + 2 < 81:
            for k, x in enumerate(ard(n + 2)): sl.fix(B0 + 8 * n + 2 * k + late, x)
    if stamps: sl.fix(B0 - 1, lambda: stamp(7), cost=2)
    if stamps and 'fine' in opt:
        for c in range(1, 9): sl.fix(B0 + 72 * c - 1, lambda c=c: stamp(15 + c), cost=2)
        for c in (2, 4, 6, 8): sl.fix(32 * c - 1, lambda c=c: stamp(24 + c // 2), cost=2)
    sl.stream(8 * 34 + 1, prod(0, 1) + prod(0, 2) + prod(0, 3), last=287)
    sl.stream(B0, prod(1, 0) + prod(1, 1) + prod(1, 2) + prod(1, 3))
    def srd2(r, ptr): return [f's_mov_b32 {s(r)}, {s(ptr)}', f's_mov_b32 {s(r+1)}, {s(ptr+1)}']
    rl = lambda a_, b_: [f'v_readlane_b32 {s(PARK[n])}, {v(vPk)}, {n}' for n in range(a_, b_)]
    def fins(start, inc, pos):
        k = start
        for b in range(4):
            f = fin(b, inc); k = sl.stream(k, f[:12], last=pos[b] - 1)
            if inc: sl.stream(pos[b] + 1, f[13:])
        return k
    JL = XV; vJo = XV + 32; JS, vJt = XV + 72, XV + 76; vJd, vHe = vRS + 2, vRS + 3
    vPd, vPn, vPa = vRS + 2, vTg, vRS + 1
    vCd, vCa, vCn = vCk, vCk + 2, vCk + 3
    REC = lambda tl, pc: big(3 * tl + pc)
    PQ = lambda b, g: big(27 + 5 * b + g)
    pollA = f'buffer_load_dwordx2 {v(vPd,2)}, {v(vPa)}, {s(SWS,4)}, 0 offen sc1'
    sl.stream(14, [f'v_lshlrev_b32 {v(vPa)}, 3, v0', f'v_add_u32 {v(vPa)}, {PROG_OFF}, {v(vPa)}'], cap=3)
    pos = []
    st = [fin(b, None)[12] for b in range(4)]
    sl.spread(17, 79, [pollA] + [x for x in ffn_dma(8) if x][:-1] + st, pos)
    fins(16, sIncL, pos[-4:])
    if 'nochkA' not in opt: sl.fix(8 * 10 - 4, check(name + '_ca', vPd, v(vPn), pollA), cost=2)
    k = sl.stream(18, [f'v_and_b32 {v(vPn)}, 3, v0', f'v_min_u32 {v(vPn)}, 1, {v(vPn)}', f'v_lshl_add_u32 {v(vPn)}, {v(vPn)}, 1, 1',
                       f'v_add_u32 {v(vPn)}, {s(sN+1)}, {v(vPn)}'] + rl(0, 8) + srd2(SJ, SWS) + rl(10, 11), last=75)
    jobs0 = [f'v_and_b32 {v(vHe)}, 15, v0', f'v_bfe_u32 {v(vJd)}, v0, 4, 2', f'v_mul_u32_u24 {v(vJo)}, {8*18*1024}, {v(vJd)}', f'v_lshl_add_u32 {v(vJo)}, {v(vHe)}, 4, {v(vJo)}',
             f'v_lshlrev_b32 {v(vJd)}, 28, {v(vJd)}', f'v_lshl_add_u32 {v(vJd)}, {v(vHe)}, 4, {v(vJd)}',
             f'v_add_u32 {v(vHe)}, {s(sTl)}, {v(vHe)}', f'v_mul_u32_u24 {v(vHe)}, 3641, {v(vHe)}', f'v_lshrrev_b32 {v(vHe)}, 16, {v(vHe)}']
    jobl = []
    for k in range(8):
        jobl += [f'buffer_load_dwordx4 {v(JL+4*k,4)}, {v(vJo)}, {s(SJ,4)}, {s(sJs)} offen sc1', f's_add_u32 {s(sJs)}, {s(sJs)}, {4*8*18*1024}']
    hl = hloads(0) + hloads(1)
    sl.spread(81, 112, sdma(0, 'slot0') + sdma(1, 'slot1'))
    k = sl.stream(96, jobs0); assert k < 112
    sl.spread(113, 144, sdma(2, 'slot2') + jobl[:8]); sl.spread(145, 176, sdma(3, 'slot3') + jobl[8:])
    sl.spread(177, 208, sdma(4, 'slot4') + hl[:5]); sl.spread(209, 240, sdma(5, 'slot5') + hl[5:10])
    sl.spread(241, 271, sdma(6, 'slot6') + progress + hl[10:15])
    sl.spread(273, 287, sdma(7, 'slot7'))
    k = sl.stream(113, rl(8, 10) + rl(11, 15) + [f'v_add_u32 {v(vRD[n])}, {n*SLOT}, {v(vL16)}' for n in range(4)] + [f'v_add_u32 {v(vLx[1])}, 4096, {v(vL16)}', f'v_add_u32 {v(vLx[2])}, 8192, {v(vL16)}'])
    tA, tB = sT1, sT2
    k = sl.stream(k, srd2(SX, sXp) + [f's_mov_b32 {s(SX+2)}, {S*D*2}'] + srd2(SO, sOp) + [f's_mov_b32 {s(SO+2)}, {S*D*2}'] + srd2(SP_, SWS) +
                  [f's_lshl_b32 {s(tA)}, {s(sT)}, 2', f's_add_u32 {s(tA)}, {s(tA)}, {s(sQF)}', f's_mul_i32 {s(sXo)}, {s(tA)}, {32*1152}', f's_mul_i32 {s(tB)}, {s(sM)}, 288', f's_add_u32 {s(sXo)}, {s(sXo)}, {s(tB)}',
                   f's_mul_i32 {s(tA)}, {s(tA)}, 36', f's_mul_i32 {s(tB)}, {s(sW)}, 9', f's_lshr_b32 {s(tB)}, {s(tB)}, 1', f's_add_u32 {s(tA)}, {s(tA)}, {s(tB)}', f's_lshl_b32 {s(tA)}, {s(tA)}, 10',
                   f's_add_u32 {s(sPq0)}, {s(tA)}, {PQ_OFF}', f's_add_u32 {s(sPq1)}, {s(sPq0)}, {18*1024}',
                   f's_mul_i32 {s(sRec)}, {s(sW)}, {9*3072}', f's_add_u32 {s(sRec)}, {s(sRec)}, {REC_OFF}'])
    setup4 = [f'v_and_b32 {v(vXO2)}, 31, v0', f'v_mul_u32_u24 {v(vXO2)}, 1152, {v(vXO2)}', f'v_bfe_u32 {v(vX8)}, v0, 5, 1', f'v_lshl_add_u32 {v(vXO2)}, {v(vX8)}, 4, {v(vXO2)}',
              f'v_add_u32 {v(vX8)}, {s(sXo)}, {v(vXO2)}', f's_lshl_b32 {s(tA)}, {s(sW)}, 5', f'v_add_u32 {v(vXO2)}, {s(tA)}, {v(vX8)}',
              f's_mul_i32 {s(tB)}, {s(sM)}, {9*1024}', f's_add_u32 {s(sW8)}, {s(tB)}, {WOT_OFF + 8192}', f's_lshl_b32 {s(tA)}, {s(sW)}, 10', f's_add_u32 {s(tB)}, {s(tB)}, {s(tA)}', f's_add_u32 {s(sWo2)}, {s(tB)}, {WOT_OFF}',
              f's_and_b32 {s(tA)}, s2, 0xfc', f's_add_u32 {s(tA)}, {s(tA)}, {s(sW)}', f's_lshl_b32 {s(tB)}, {s(tA)}, 4', f's_add_u32 {s(tB)}, {s(tB)}, {s(sQF)}', f's_lshl_b32 {s(tB)}, {s(tB)}, 3', f's_add_u32 {s(sFl)}, {s(tB)}, {FLAG_OFF}',
              f's_lshl_b32 {s(tA)}, {s(tA)}, 2', f's_add_u32 {s(tA)}, {s(tA)}, {s(sQF)}', f's_mul_i32 {s(tA)}, {s(tA)}, 9216', f's_add_u32 {s(sPart)}, {s(tA)}, {PART_OFF}',
              grp(f's_cmp_eq_u32 {s(sW)}, {s(sQF)}', f's_cselect_b32 {s(SP_+2)}, 0, {STAMP_OFF}'), f's_add_u32 {s(sSel)}, {s(sQF)}, 1', f's_and_b32 {s(sSel)}, {s(sSel)}, 3']
    assert k < 222, k
    jobv = []
    for k in range(1, 8):
        jobv += [f'v_add_f32 {v(JS+r)}, {v((JL if k == 1 else JS)+r)}, {v(JL+4*k+r)}' for r in range(4)]
    kj = sl.stream(222, jobv); assert kj < B0 - 2, kj
    pollC = f'buffer_load_dwordx2 {v(vCd,2)}, {v(vCa)}, {s(SWS,4)}, {s(sPc)} offen sc1'
    k = sl.stream(256, [f'v_and_b32 {v(vCn)}, 3, v0', f'v_max_u32 {v(vCa)}, 1, {v(vCn)}', f'v_lshlrev_b32 {v(vCa)}, 3, {v(vCa)}']); assert k < B0
    pos = []; h2 = hloads(2); s8 = sdma(8, 'slot8x')[:-1]
    sl.spread(B0 + 1, B0 + 71, hl[15:20] + s8[:3] + [pollC] + s8[3:] + [st[0]] + h2[:3] + [st[1]] + h2[3:7] + [st[2]] + h2[7:] + [st[3]], pos)
    kf = fins(B0 + 10, None, [pos[9], pos[13], pos[17], pos[20]])
    jobv = []
    for sw in ('v_permlane32_swap_b32', 'v_permlane16_swap_b32'):
        jobv += [f'v_mov_b32 {v(vJt+r)}, {v(JS+r)}' for r in range(4)]
        jobv += [f'{sw} {v(vJt+r)}, {v(JS+r)}' for r in range(4)]
        jobv += [f'v_add_f32 {v(JS+r)}, {v(JS+r)}, {v(vJt+r)}' for r in range(4)]
    recst = (f'buffer_store_dwordx2 {v(JS,2)}, {v(vJd)}, {s(SA,4)}, {s(sJd)} offen sc1', 'rec')
    vRf = XV + 80
    recfl = f'buffer_store_dwordx2 {v(vRf,2)}, {v(vP0)}, {s(SA,4)}, {s(sRf)} offen sc1'
    xl = [f'buffer_load_dwordx4 {v(vXD[0],4)}, {v(vXO2)}, {s(SX,4)}, 0 offen', f'buffer_load_dwordx4 {v(vXD[1],4)}, {v(vXO2)}, {s(SX,4)}, 0 offen offset:128',
          f'buffer_load_dwordx4 {v(vXD[2],4)}, {v(vX8)}, {s(SX,4)}, 0 offen offset:256']
    chkB = grp(f's_add_u32 {s(sT0)}, {s(sN+1)}, 5', check(name + '_cb', vCd, s(sT0), pollC))
    for c in range(1, 6):
        pos = []
        mid = {1: [chkB], 4: [check(name + '_cc', vCd, v(vCn), pollC)]}.get(c, [])
        end = {1: [recst], 3: [pollC]}.get(c, [])
        sl.spread(B0 + 72 * c + 5, B0 + 72 * c + 71, wdma(c + 3) + mid + hloads(c + 2) + end, pos)
        if c == 1: krec = pos[-1]
    k = sl.stream(max(kj, kf), jobv)
    for r in range(4):
        k = sl.stream(max(k, B0 + 72 + 40), [f'v_cmp_eq_u32 vcc, {s(sHd[r])}, {v(vHe)}'])
        k = sl.stream(k + 1, [f'v_cndmask_b32 {v(JS+r)}, 0, {v(JS+r)}, vcc'])
    k = sl.stream(k, [f'v_cvt_pk_bf16_f32 {v(JS)}, {v(JS)}, {v(JS+1)}', f'v_cvt_pk_bf16_f32 {v(JS+1)}, {v(JS+2)}, {v(JS+3)}']); assert k < krec, (k, krec)
    k = sl.stream(B0 + 72 * 2, [f'v_mov_b32 {v(vRf)}, {s(sN)}', f'v_mov_b32 {v(vRf+1)}, {s(sN+1)}',
                                f'v_lshlrev_b32 {v(vCa)}, 3, {v(vCn)}', f'v_min_u32 {v(vCn)}, 1, {v(vCn)}', f'v_lshl_add_u32 {v(vCn)}, {v(vCn)}, 1, 4', f'v_add_u32 {v(vCn)}, {s(sN+1)}, {v(vCn)}'])
    k = sl.stream(k, setup4); assert k < B0 + 72 * 5, k
    sl.fix(B0 + 8 * (18 + 7) - 3, lambda: p.wait_tag('h')); sl.stream(B0 + 8 * (18 + 7) + 2, progress, cap=3)
    sl.fix(B0 + 8 * (27 + 1) - 5, lambda: p.wait_tag('rec')); sl.stream(B0 + 8 * (27 + 1) - 3, [recfl], cap=4)
    def wload(f):
        pc, g = divmod(f, 18)
        return [f's_add_u32 {s(sT2)}, {s(sWo2 if pc < 2 else sW8)}, {g*36*1024 + (4096 if pc == 1 else 0)}', f'buffer_load_dwordx4 {a(wreg(f),4)}, {v(vL16)}, {s(SWS,4)}, {s(sT2)} offen sc1']
    pql = [f'buffer_load_dwordx4 {v(PQ(b,g),4)}, {v(vLx[g//4])}, {s(SWS,4)}, {s(sPq0 if b == 0 else sPq1)} offen offset:{1024*(g%4)} sc1' for b in range(2) for g in range(5)]
    pollR = f'buffer_load_dwordx2 {v(vCd,2)}, {v(vCa)}, {s(SWS,4)}, {s(sT3)} offen sc1'
    k0 = B0 + 72 * 6
    kk = sl.stream(k0 - 30, [f'v_and_b32 {v(vCa)}, 63, v0', f'v_min_u32 {v(vCa)}, 53, {v(vCa)}', f'v_lshlrev_b32 {v(vCa)}, 3, {v(vCa)}', f's_mul_i32 {s(sT3)}, {s(sW)}, {54*8}',
                            f's_add_u32 {s(sT3)}, {s(sT3)}, {RECF_OFF}'])
    assert kk < k0
    sl.spread(k0, k0 + 71, [pollR] + hloads(8) + pql)
    if 'nochkR' not in opt: sl.fix(k0 + 64, check(name + '_cr', vCd, s(sN+1), pollR), cost=2)
    recl = []
    for f in range(27):
        if f % 12 == 0 and f: recl.append(f's_add_u32 {s(sRec)}, {s(sRec)}, 12288')
        recl.append(f'buffer_load_dwordx4 {v(big(f),4)}, {v(vLx[(f%12)//4])}, {s(SWS,4)}, {s(sRec)} offen offset:{1024*(f%4)} sc1')
    def pub(aa):
        o = acc2(aa, 0); t = TQ[aa & 1]
        return [f'v_cvt_pk_bf16_f32 {v(t+d)}, {v(o+2*d)}, {v(o+2*d+1)}' for d in range(4)] + \
               [(f'buffer_store_dwordx4 {v(t,4)}, {v(vLx[aa//4])}, {s(SP_,4)}, {s(sPart)} offen offset:{1024*(aa%4)} sc1', 'pub')]
    for aa in range(8):
        g0 = B0 + 8 * (72 + aa + 1); sl.fix(g0 + 7, pub(aa)[4]); sl.stream(g0 + 2, pub(aa)[:4], last=g0 + 6)
    nr = 20 if 'r20' in opt else 18
    sl.spread(k0 + 72, k0 + 143, recl[:nr + 1]); sl.spread(k0 + 144, B0 + 647, recl[nr + 1:] + xl)
    print('overflow peeled', [sl.over(32*c, 32*c+32) for c in range(9)], 'p2', [sl.over(B0+72*c, B0+72*c+72) for c in range(9)], file=__import__('sys').stderr)
    interleave(p, mains, sl.f)
    put(pub(8))
    stamp(8)
    e(f's_cmp_lg_u32 {s(sW)}, {s(sQK)}'); e(f's_cbranch_scc1 {name}_att')
    for u in range(18): p.raw(f'ds_write_b128 {v(vRD[2])}, {v(ACC2+4*u,4)} offset:{1024*u}')
    p.raw('s_waitcnt lgkmcnt(0)')
    p.label(f'{name}_att')
    vEp = TQ[1]; tq = TQ[0]
    for r in range(4): e(f'v_mov_b32 {v(vEp+r)}, {fhex(1e-6)}')
    ND = lambda tl, b, z: ACC2 + 16 * (tl % 3) + 8 * b + 4 * z
    OH = lambda tl, b: ACC2 + 48 + 4 * (tl % 2) + 2 * b
    vOW = ACC2 + 56; vPa0, vPa1, vOa = ACC2 + 57, ACC2 + 58, ACC2 + 59
    sPe = [sPq0, sPq1, sRec]; sF2 = sJs
    e(f's_mul_i32 {s(sT0)}, {s(sW)}, 9'); e(f's_lshr_b32 {s(sT0)}, {s(sT0)}, 1'); e(f's_lshl_b32 {s(sT0)}, {s(sT0)}, 10'); e(f'v_add_u32 {v(vOW)}, {s(sT0)}, {v(vRD[1])}')
    pollF = f'buffer_load_dwordx2 {v(vCd,2)}, {v(vCa)}, {s(SWS,4)}, {s(sF2)} offen sc1'
    misc0 = [f'v_and_b32 {v(tq+2)}, 63, v0', f'v_min_u32 {v(tq+2)}, 1, {v(tq+2)}', f'v_lshlrev_b32 {v(tq+2)}, 30, {v(tq+2)}', f'v_mov_b32 {v(tq)}, {s(sN)}', f'v_mov_b32 {v(tq+1)}, {s(sN+1)}',
             f'v_and_b32 {v(vCa)}, 3, v0', f'v_cmp_eq_u32 vcc, {s(sQK)}, {v(vCa)}', f'v_mov_b32 {v(vCn)}, {s(sSel)}', f's_lshl_b32 {s(sF2)}, s2, 7', f's_add_u32 {s(sF2)}, {s(sF2)}, {FLAG_OFF}',
             f'v_cndmask_b32 {v(vCa)}, {v(vCa)}, {v(vCn)}, vcc', f'v_lshlrev_b32 {v(vCa)}, 3, {v(vCa)}',
             f's_lshl_b32 {s(sT0)}, {s(sW)}, 10', f'v_add_u32 {v(vPa0)}, {s(sT0)}, {v(vL16)}', f'v_add_u32 {v(vPa1)}, {s(sT0)}, {v(vLx[1])}', f's_lshl_b32 {s(sT0)}, {s(sW)}, 11', f'v_add_u32 {v(vOa)}, {s(sT0)}, {v(vRD[2])}',
             f's_mul_i32 {s(sT0)}, s2, {4*9216}', f's_add_u32 {s(sT0)}, {s(sT0)}, {PART_OFF}']
    for q in range(3): misc0 += [f's_add_u32 {s(sT1)}, {s(sQK)}, {q+1}', f's_and_b32 {s(sT1)}, {s(sT1)}, 3', f's_mul_i32 {s(sT1)}, {s(sT1)}, 9216', f's_add_u32 {s(sPe[q])}, {s(sT1)}, {s(sT0)}']
    misc0 += [f's_mov_b32 {s(sHi)}, 0xffff0000', f's_mov_b32 {s(sHd[0])}, 0x3f80', f's_mov_b32 {s(sHd[1])}, 0x3f800000', f's_mov_b32 {s(sEps)}, {fhex(-LOG2E)}', f's_mov_b32 {s(sEps+1)}, {fhex(-LOG2E)}']
    SIG = int(next((o[3:] for o in opt if o.startswith('sig')), 6))
    e(f's_and_b32 {s(sT0)}, {s(sW)}, 1'); e(f's_cmp_eq_u32 {s(sT0)}, 1'); e(f's_cbranch_scc1 {name}_oodd')
    st1 = p.snapshot()
    for par in range(2):
        if par:
            p.label(f'{name}_oodd'); p.restore(st1)
        late = [wload(f) for f in range(36)]; misc = list(misc0)
        for step in range(11):
            m32, m16, va = [], [], []
            tl = step
            if tl < 9:
                gl = (tl + par) >> 1
                for b in range(2):
                    m32.append(f'v_mfma_f32_16x16x32_bf16 {v(ND(tl,b,0),4)}, {v(REC(tl,0),4)}, {v(PQ(b,gl),4)}, 0')
                    m32.append(f'v_mfma_f32_16x16x32_bf16 {v(ND(tl,b,1),4)}, {v(REC(tl,1),4)}, {v(PQ(b,gl),4)}, {v(vEp,4)}')
            tl = step - 1
            if 0 <= tl < 9:
                gl = (tl + par) >> 1; odd = (tl + par) & 1
                gs = gl + 1 if odd else gl - 1
                if not 0 <= gs <= 4: gs = gl
                for b in range(2):
                    half = v(PQ(b, gs) + (0 if odd else 2), 2)
                    m16.append(f'v_mfma_f32_16x16x16_bf16 {v(ND(tl,b,0),4)}, {v(REC(tl,2),2)}, {half}, {v(ND(tl,b,0),4)}')
                    m16.append(f'v_mfma_f32_16x16x16_bf16 {v(ND(tl,b,1),4)}, {v(REC(tl,2)+2,2)}, {half}, {v(ND(tl,b,1),4)}')
            tl = step - 2
            if 0 <= tl < 9:
                for b in range(2): va += [f'v_rcp_f32 {v(ND(tl,b,1)+r)}, {v(ND(tl,b,1)+r)}' for r in range(4)]
                for b in range(2):
                    va += [f'v_mul_f32 {v(ND(tl,b,0)+r)}, {v(ND(tl,b,0)+r)}, {v(ND(tl,b,1)+r)}' for r in range(4)]
                    va += [f'v_cvt_pk_bf16_f32 {v(OH(tl,b) + d)}, {v(ND(tl,b,0)+2*d)}, {v(ND(tl,b,0)+2*d+1)}' for d in range(2)]
                    va += [f'ds_write_b64 {v(vOW)}, {v(OH(tl,b),2)} offset:{b*18432 + ((tl+par)>>1)*1024 + ((tl+par)&1)*8}']
            else: va, misc = misc[:20], misc[20:]
            if step == SIG:
                p.wait_tag('pub'); e(f'buffer_store_dwordx2 {v(tq,2)}, {v(tq+2)}, {s(SP_,4)}, {s(sFl)} offen sc1')
            if step == 10: e(pollF)
            mm = m32 + m16
            per = -(-len(va) // max(len(mm) - 1, 1))
            for i_, x in enumerate(mm):
                e(x)
                if late and len(p.vmq) < p.vm_limit - 2 and i_ % 2 == 0: put(late.pop(0))
                if i_ == 0 and len(mm) > 4: continue
                for y in va[:per]: e(y)
                va = va[per:]
            for y in va: e(y)
        assert not late and not misc
        if par == 0:
            stE = p.snapshot(); e(f's_branch {name}_odone')
        else: assert p.snapshot() == stE
    p.label(f'{name}_odone')
    stamp(9)
    p.wait_lg(0); e('s_barrier')
    OF = lambda b, g: big(18 * b + g)
    SS = lambda pc: ACC2 + 8 * pc
    DD = lambda pc: ACC2 + 24 + 8 * pc
    for g in range(9):
        for b in range(2): e(f'ds_read_b128 {v(OF(b,g),4)}, {v(vRD[1])} offset:{b*18432 + g*1024}')
    check(f'{name}_cf', vCd, s(sN+1), pollF)()
    stamp(10)
    PV_ = [ACC2 + 60, ACC2 + 64, ACC2 + 68, ACC2 + 48, ACC2 + 52, big(36)]
    for pc in range(2):
        for q in range(3): e(f'buffer_load_dwordx4 {v(PV_[3*pc+q],4)}, {v((vPa0, vPa1)[pc])}, {s(SWS,4)}, {s(sPe[q])} offen sc1')
    for g in range(9, 18):
        for b in range(2): e(f'ds_read_b128 {v(OF(b,g),4)}, {v(vRD[1])} offset:{b*18432 + g*1024}')
    e(f's_cmp_eq_u32 {s(sW)}, {s(sSel)}'); e(f's_cbranch_scc1 {name}_three')
    st2 = p.snapshot()
    for npc in (2, 3):
        if npc == 3:
            p.label(f'{name}_three'); p.restore(st2)
        PE = lambda q: AR + 8 + 4 * q
        late = [wload(f) for f in range(36, 54)] + [[f'buffer_load_dwordx4 {a(PE(q),4)}, {v(vLx[2])}, {s(SWS,4)}, {s(sPe[q])} offen sc1'] for q in range(3)] if npc == 3 else []
        own = [f'ds_read_b128 {v(DD(pc)+4*b,4)}, {v(vOa) if pc < 2 else v(vRD[2])} offset:{8192*pc + 1024*b}' for pc in range(npc) for b in range(2)]
        for pc in range(npc):
            for b in range(2):
                for g in range(18):
                    e(f'v_mfma_f32_16x16x32_bf16 {v(SS(pc)+4*b,4)}, {a(wreg(18*pc+g),4)}, {v(OF(b,g),4)}, {"0" if g == 0 else v(SS(pc)+4*b,4)}')
                    if late and g % 2 == 0: put(late.pop(0))
                    elif pc == 0 and b == 1 and own: e(own.pop(0))
        stamp(11)
        X = ACC; G = ACC + 24; O = ACC + 40; U = ACC + 56
        for pc in range(npc):
            for d in range(4):
                e(f'v_lshlrev_b32 {v(X+8*pc+2*d)}, 16, {v(vXD[pc]+d)}'); e(f'v_and_b32 {v(X+8*pc+2*d+1)}, {s(sHi)}, {v(vXD[pc]+d)}')
        for pc in range(npc):
            for q in range(3):
                src = PV_[3 * pc + q] if pc < 2 else U + 4 * q
                if pc == 2:
                    for d in range(4): e(f'v_accvgpr_read_b32 {v(src+d)}, {a(PE(q)+d)}')
                for d in range(4):
                    for hh in range(2): e(f'v_dot2_f32_bf16 {v(DD(pc)+2*d+hh)}, {v(src+d)}, {s(sHd[hh])}, {v(DD(pc)+2*d+hh)}')
            for k in range(0, 8, 2): e(f'v_pk_mul_f32 {v(G+k,2)}, {v(DD(pc)+k,2)}, {s(sEps,2)}')
            for k in range(8): e(f'v_exp_f32 {v(G+k)}, {v(G+k)}')
            for k in range(0, 8, 2): e(f'v_pk_mul_f32 {v(DD(pc)+k,2)}, {v(DD(pc)+k,2)}, {v(SS(pc)+k,2)}')
            for k in range(0, 8, 2): e(f'v_pk_add_f32 {v(G+k,2)}, {v(G+k,2)}, 1.0 op_sel_hi:[1,0]')
            for k in range(8): e(f'v_rcp_f32 {v(G+k)}, {v(G+k)}')
            for k in range(0, 8, 2): e(f'v_pk_mul_f32 {v(G+k,2)}, {v(G+k,2)}, {v(DD(pc)+k,2)}')
            for r in range(4): e(f'v_permlane16_swap_b32 {v(G+r)}, {v(G+4+r)}')
            for k in range(0, 8, 2): e(f'v_pk_add_f32 {v(G+k,2)}, {v(G+k,2)}, {v(X+8*pc+k,2)}')
            for d in range(4): e(f'v_cvt_pk_bf16_f32 {v(O+4*pc+d)}, {v(G+2*d)}, {v(G+2*d+1)}')
            e(f'buffer_store_dwordx4 {v(O+4*pc,4)}, {v(vXO2) if pc < 2 else v(vX8)}, {s(SO,4)}, 0 offen offset:{128*pc}')
        if stamps: p.wait_all()
        stamp(12)
        e(f's_branch {END}')
    for blk in slow:
        for x in blk: p.raw(x)
    p.label(END)
    return p, V.nxt, A.nxt, NXV
```

```python
from asmlib import *
from layout2 import *

LOG2E = 1.4426950408889634
def fhex(x):
    import struct
    return '0x%08x' % struct.unpack('<I', struct.pack('<f', x))[0]

SP0 = 147456
STX = 98304
CH = 64 * 9216

SLOT = 36864
SPIN = 20000
SALT = 0x5bd1e990

def gen(name, stamps=False, opt=()):
    p = Prog(); cap = [None]
    def e(text, tag=None, junk=False):
        if cap[0] is not None: cap[0].append((text, tag, junk))
        else: p.e(text, tag, junk)
    V = Alloc('v', 1, 256); A = Alloc('a', 0, 256); SG = Alloc('s', 56, 100)
    SX, SQ, SGt, SU, SWS, SH, SJS, SJD = 4, 8, 12, 16, 20, 24, 28, 32
    KA = 36
    sW, sI, sJ, sT, sQF, sM = (SG.get(n) for n in ('w', 'i', 'j', 't', 'qf', 'm'))
    sWo, sCnt, sM0w, sJob, sJo, sT0, sT1, sT2 = (SG.get(n) for n in ('wo', 'cnt', 'm0w', 'job', 'jo', 't0', 't1', 't2'))
    sH = SG.get('h', 4, 1); sKV = SG.get('kv', 6, 1); sSP = SG.get('sp'); sLine = SG.get('line'); sKm = SG.get('km'); sTo = SG.get('to')
    mk = [SG.get(f'mk{k}', 2) for k in range(4)]
    sSt = SG.get('st', 2); sStO = SG.get('sto'); sOnes = SG.get('ones')
    JP = [36, 37, 38, 39, 42, 43, 44, 45, 46, 47, 50, 51]
    sXp, sN, sDbg, sOp = 100, 48, 52, 54
    sInc, sIncL, sPg, sPc, sCr, sSpin = mk[0], mk[0] + 1, mk[1], mk[1] + 1, mk[2], mk[2] + 1
    sEps = mk[3]
    vJS = V.get('js'); vJT = V.get('jt'); vTg = V.get('tg')
    ACC = V.get('acc', 64); PR = V.get('prod', 32)
    vTR = V.get('tr', 6, 1); vDM = V.get('dm', 2, 1); vL16 = V.get('l16'); vJS2 = V.get('spare'); vRS = V.get('rs', 4, 2); vRS2 = V.get('rs2', 4, 2)
    vTj = V.get('tj'); vS0 = V.get('s0'); vT = V.get('tmp', 8, 4); vS1 = vT + 7
    NXV = (256 - V.nxt) // 4
    XV = V.get('xv', 4 * NXV)
    WF = A.get('wf', 24); XA = A.get('xa', 4 * (72 - NXV)); JD = A.get('jd', 64)
    fidx = lambda b, ks: 2 * ks + b if b < 2 else 36 + 2 * ks + b - 2
    def xf(b, ks):
        f = fidx(b, ks)
        return v(XV + 4 * f, 4) if f < NXV else a(XA + 4 * (f - NXV), 4)
    def xf_isv(b, ks): return fidx(b, ks) < NXV
    nstamp = [0]
    def stamp(k=None, dyn=False):
        if not stamps: return
        if k is None:
            k = nstamp[0]; nstamp[0] += 1
        p.wait_lg(0)
        if k == 0:
            for n_, r_ in ((29, v(T[61])), (30, v(T[61])), (31, 's3'), (15, v(T[60]))):
                e(f'v_mov_b32 {v(vS0)}, {r_}'); e(f'v_mov_b32 {v(vS1)}, {4*n_}'); e(f'buffer_store_dword {v(vS0)}, {v(vS1)}, {s(SWS,4)}, {s(sStO)} offen')
        e(f's_memrealtime {s(sSt,2)}'); p.wait_lg(0)
        e(f'v_mov_b32 {v(vS0)}, {s(sSt)}'); e(f'v_mov_b32 {v(vS1)}, {4*k}')
        if dyn: e(f'v_mov_b32 {v(vS1)}, {s(sCnt)}'); e(f'v_mul_u32_u24 {v(vS1)}, 12, {v(vS1)}'); e(f'v_sub_u32 {v(vS1)}, {4*k}, {v(vS1)}')
        e(f'buffer_store_dword {v(vS0)}, {v(vS1)}, {s(SWS,4)}, {s(sStO)} offen')
        e(f's_memtime {s(sSt,2)}'); p.wait_lg(0)
        e(f'v_mov_b32 {v(vS0)}, {s(sSt)}')
        e(f'buffer_store_dword {v(vS0)}, {v(vS1)}, {s(SWS,4)}, {s(sStO)} offen offset:128')

    END = f'{name}_end'
    if stamps: p.raw('s_memrealtime s[98:99]')
    e('s_cmp_ge_u32 s2, 256'); e(f's_cbranch_scc1 {END}')
    e(f's_load_dwordx8 {s(KA,8)}, s[0:1], 0'); e(f's_load_dwordx8 {s(KA+8,8)}, s[0:1], 32'); e(f's_load_dwordx4 {s(KA+16,4)}, s[0:1], 64')
    T = [ACC + 32 + k for k in range(32)] + [PR + k for k in range(32)]
    vLane, vL3, vL4, vC7, vN, vI2, vB = T[0:7]
    vXO = T[8:12]; vXR = T[12:16]; vTL, vU = T[19], T[20]
    e(f'v_lshrrev_b32 {v(vB)}, 6, v0'); e(f'v_and_b32 {v(vLane)}, 63, v0')
    e(f'v_readfirstlane_b32 {s(sW)}, {v(vB)}')
    if 'nocode' not in opt:
        p.raw(f's_getpc_b64 {s(sSt,2)}'); p.label(f'{name}_pc')
        e(f's_lshr_b32 {s(sT1)}, s2, 3'); e(f's_lshl_b32 {s(sT1)}, {s(sT1)}, 2'); e(f'v_add_u32 {v(vB)}, {s(sT1)}, {v(vB)}'); e(f'v_mul_u32_u24 {v(vB)}, 5, {v(vB)}')
        e(f'v_min_u32 {v(vI2)}, 4, {v(vLane)}'); e(f'v_add_u32 {v(vB)}, {v(vB)}, {v(vI2)}'); e(f'v_lshlrev_b32 {v(vB)}, 7, {v(vB)}')
        e(f'v_min_u32 {v(vB)}, code_end - {name}_pc - 4, {v(vB)}')
        e(f'global_load_dword {v(vJS2)}, {v(vB)}, {s(sSt,2)}', junk=True)
    e(f'v_lshrrev_b32 {v(vL3)}, 3, {v(vLane)}'); e(f'v_lshrrev_b32 {v(vL4)}, 4, {v(vLane)}'); e(f'v_and_b32 {v(vC7)}, 7, {v(vLane)}')
    e(f'v_and_b32 {v(vN)}, 15, {v(vLane)}'); e(f'v_lshlrev_b32 {v(vL16)}, 4, {v(vLane)}')
    e(f's_and_b32 {s(sQF)}, s2, 3'); e(f's_bfe_u32 {s(sT0)}, s2, 0x10002'); e(f's_lshr_b32 {s(sT1)}, s2, 5')
    e(f's_lshl_b32 {s(sT0)}, {s(sT0)}, 3'); e(f's_add_u32 {s(sT)}, {s(sT0)}, {s(sT1)}'); e(f's_bfe_u32 {s(sM)}, s2, 0x20003')
    e(f's_lshr_b32 {s(sI)}, {s(sW)}, 1'); e(f's_and_b32 {s(sJ)}, {s(sW)}, 1')
    e(f's_lshl_b32 {s(sM0w)}, {s(sW)}, 12'); e(f's_add_u32 {s(sSP)}, {s(sM0w)}, {SP0}')
    e(f's_lshl_b32 {s(sT0)}, {s(sW)}, 5'); e(f'v_add_u32 {v(vB)}, {s(sT0)}, {v(vL3)}'); e(f'v_mul_u32_u24 {v(vB)}, 1152, {v(vB)}')
    for q in range(4):
        e(f'v_or_b32 {v(vI2)}, {4*(q&1)}, {v(vL4)}'); e(f'v_xor_b32 {v(vI2)}, {v(vI2)}, {v(vC7)}')
        e(f'v_lshl_add_u32 {v(vXO[q])}, {v(vI2)}, 4, {v(vB)}')
        if q: e(f'v_add_u32 {v(vXO[q])}, {8192*q}, {v(vXO[q])}')
    e(f's_mul_i32 s3, {s(sT)}, {128*1152}')
    e(f's_lshl_b32 {s(sT0)}, {s(sQF)}, 4'); e(f's_lshl_b32 {s(sT1)}, {s(sM)}, 2'); e(f's_add_u32 {s(sT0)}, {s(sT0)}, {s(sT1)}'); e(f's_add_u32 {s(sT0)}, {s(sT0)}, {s(sW)}')
    e(f's_mul_i32 {s(sT0)}, {s(sT0)}, 18'); e(f'v_min_u32 {v(vB)}, 17, {v(vLane)}'); e(f'v_add_u32 {v(vB)}, {s(sT0)}, {v(vB)}'); e(f'v_lshlrev_b32 {v(vB)}, 7, {v(vB)}')
    if stamps: p.raw(f's_memrealtime {s(sSt,2)}')
    p.wait_lg(0)
    if stamps: p.raw(f'v_mov_b32 {v(T[60])}, s98'); p.raw(f'v_mov_b32 {v(T[61])}, {s(sSt)}')
    def srd(r, ptr, nbytes, back=0):
        if back:
            e(f's_sub_u32 {s(r)}, {s(ptr)}, {back}'); e(f's_subb_u32 {s(r+1)}, {s(ptr+1)}, 0')
        else:
            e(f's_mov_b32 {s(r)}, {s(ptr)}'); e(f's_mov_b32 {s(r+1)}, {s(ptr+1)}')
        e(f's_mov_b32 {s(r+2)}, {nbytes + back}'); e(f's_mov_b32 {s(r+3)}, 0x20000')
    slow = []
    e('s_cmp_eq_u32 s2, 0'); e(f's_cbranch_scc1 {name}_nw'); p.label(f'{name}_nn')
    slow.append([f'{name}_nw:', f's_memrealtime {s(sSt,2)}', 's_waitcnt lgkmcnt(0)', f's_lshl_b32 {s(sT1)}, {s(sSt+1)}, 4', f's_xor_b32 {s(sT1)}, {s(sT1)}, {SALT}', f's_or_b32 {s(sT2)}, {s(sSt)}, 1',
                 f'v_mov_b32 {v(vT)}, {s(sT2)}', f'v_mov_b32 {v(vT+1)}, {s(sT1)}', f'v_mov_b32 {v(vT+2)}, 0', f's_cmp_lg_u32 {s(sW)}, 0', f's_cbranch_scc1 {name}_nn',
                 f'global_store_dwordx2 {v(vT+2)}, {v(vT,2)}, {s(sDbg,2)} sc1', f's_branch {name}_nn'])
    srd(SX, KA + 0, S * D * 2)
    if 'noxt' not in opt: e(f'buffer_load_dword {v(vJS2)}, {v(vB)}, {s(SX,4)}, s3 offen', junk=True)
    SEC = {}; SEC['srd'] = cap[0] = []
    srd(SQ, KA + 2, D * 3 * D * 2, back=4096); srd(SGt, KA + 8, D * F * 2); srd(SU, KA + 10, D * F * 2, back=2048)
    e(f's_mov_b32 {s(sXp)}, {s(KA)}'); e(f's_mov_b32 {s(sXp+1)}, {s(KA+1)}')
    srd(SWS, KA + 18, WS_USED); srd(SH, KA + 18, 0); srd(SJS, KA + 12, 0); srd(SJD, KA + 18, REC_OFF)
    if stamps:
        e(f's_lshl_b32 {s(sStO)}, s2, 2'); e(f's_add_u32 {s(sStO)}, {s(sStO)}, {s(sW)}'); e(f's_lshl_b32 {s(sStO)}, {s(sStO)}, 8'); e(f's_add_u32 {s(sStO)}, {s(sStO)}, {STAMP_OFF}')
    SEC['xr'] = cap[0] = []
    vQ = vL4
    e(f'v_lshrrev_b32 {v(vI2)}, 1, {v(vN)}'); e(f'v_xor_b32 {v(vI2)}, {v(vI2)}, {v(vQ)}'); e(f'v_lshlrev_b32 {v(vI2)}, 4, {v(vI2)}')
    e(f'v_lshl_add_u32 {v(vI2)}, {v(vN)}, 7, {v(vI2)}')
    e(f'v_add_u32 {v(vXR[0])}, {s(sM0w)}, {v(vI2)}'); e(f'v_xor_b32 {v(vXR[1])}, 64, {v(vXR[0])}')
    vONE = T[24]
    e(f's_mov_b32 {s(sOnes)}, 0x3f803f80')
    for k in range(4): e(f'v_mov_b32 {v(vONE+k)}, {s(sOnes)}')
    vXP = [T[7], T[35]]
    for kk in range(2): e(f'v_xor_b32 {v(vXP[kk])}, 4096, {v(vXR[kk])}')
    e(f'v_add_u32 {v(vXR[2])}, {s(sSP)}, {v(vL16)}'); e(f'v_xor_b32 {v(vXR[3])}, 4096, {v(vXR[2])}')
    SEC['wdma'] = cap[0] = []
    def wdma_off(dst, stride, rows_per_wave, pp, bit3):
        e(f's_mul_i32 {s(sT0)}, {s(sW)}, {rows_per_wave}'); e(f's_add_u32 {s(sT0)}, {s(sT0)}, {8*pp}')
        e(f'v_add_u32 {v(vB)}, {s(sT0)}, {v(vL3)}'); e(f'v_mul_u32_u24 {v(vB)}, {stride}, {v(vB)}')
        e(f'v_and_b32 {v(vI2)}, 1, {v(vL4)}'); e(f'v_lshlrev_b32 {v(vI2)}, 1, {v(vI2)}')
        if bit3 == 'w':
            e(f's_lshl_b32 {s(sT0)}, {s(sJ)}, 2'); e(f'v_or_b32 {v(vI2)}, {s(sT0)}, {v(vI2)}')
        elif bit3: e(f'v_or_b32 {v(vI2)}, 4, {v(vI2)}')
        e(f'v_xor_b32 {v(vI2)}, {v(vI2)}, {v(vC7)}'); e(f'v_lshl_add_u32 {v(dst)}, {v(vI2)}, 4, {v(vB)}')
        if pp: e(f'v_subrev_u32 {v(dst)}, {1024*pp}, {v(dst)}')
    wdma_off(vDM, 9216, 16, 0, 0); wdma_off(vDM + 1, 9216, 16, 1, 1)
    vQD = T[16:18]
    wdma_off(vQD[0], 3456, 16, 0, 0); wdma_off(vQD[1], 3456, 16, 1, 1)
    e(f'v_lshrrev_b32 {v(vI2)}, 3, {v(vN)}'); e(f'v_and_b32 {v(vU)}, 1, {v(vQ)}'); e(f'v_lshl_or_b32 {v(vI2)}, {v(vU)}, 1, {v(vI2)}')
    e(f'v_lshlrev_b32 {v(vI2)}, 5, {v(vI2)}')
    e(f'v_and_b32 {v(vU)}, 3, {v(vN)}'); e(f'v_lshl_or_b32 {v(vI2)}, {v(vU)}, 3, {v(vI2)}')
    e(f'v_lshrrev_b32 {v(vU)}, 2, {v(vN)}'); e(f'v_lshl_or_b32 {v(vTL)}, {v(vU)}, 7, {v(vI2)}')
    e(f'v_lshrrev_b32 {v(vU)}, 1, {v(vQ)}'); e(f'v_lshlrev_b32 {v(vU)}, 12, {v(vU)}')
    e(f'v_and_b32 {v(vI2)}, 1, {v(vQ)}'); e(f'v_lshl_or_b32 {v(vU)}, {v(vI2)}, 10, {v(vU)}'); e(f'v_or_b32 {v(vU)}, {v(vU)}, {v(vTL)}')
    e(f's_lshl_b32 {s(sT0)}, {s(sJ)}, 6'); e(f'v_xor_b32 {v(vTR)}, {s(sT0)}, {v(vU)}'); e(f'v_xor_b32 {v(vTR+1)}, 32, {v(vTR)}')
    for r in (1, 2):
        for tt in range(2): e(f'v_add_u32 {v(vTR+2*r+tt)}, {65536*r}, {v(vTR+tt)}')
    e(f'v_lshlrev_b32 {v(vI2)}, 1, {v(vL4)}'); e(f'v_xor_b32 {v(vI2)}, {v(vI2)}, {v(vC7)}'); e(f'v_lshlrev_b32 {v(vI2)}, 4, {v(vI2)}')
    e(f'v_mul_u32_u24 {v(vU)}, 1152, {v(vL3)}'); e(f'v_add_u32 {v(vJS)}, {v(vU)}, {v(vI2)}')
    e(f'v_lshlrev_b32 {v(vU)}, 9, {v(vQ)}'); e(f'v_add_u32 {v(vU)}, {s(sSP)}, {v(vU)}'); e(f'v_add_u32 {v(vJT)}, {v(vU)}, {v(vTL)}')
    SEC['const'] = cap[0] = []
    vONE = T[24]; vSEL = T[28]; vF1 = T[34]
    assert vONE % 4 == 0 and vSEL % 4 == 0
    e(f'v_mov_b32 {v(vF1)}, 1.0')
    e(f'v_lshrrev_b32 {v(vU)}, 2, {v(vN)}'); e(f'v_cmp_eq_u32 {s(mk[0],2)}, {v(vU)}, {v(vQ)}')
    e(f'v_and_b32 {v(vU)}, 3, {v(vN)}')
    for k in (1, 2, 3): e(f'v_cmp_eq_u32 {s(mk[k],2)}, {k}, {v(vU)}')
    e(f'v_and_b32 {v(vI2)}, 1, {v(vN)}'); e(f'v_lshlrev_b32 {v(vI2)}, 4, {v(vI2)}'); e(f'v_mov_b32 {v(vB)}, 0x3f80'); e(f'v_lshlrev_b32 {v(vB)}, {v(vI2)}, {v(vB)}')
    e(f'v_cndmask_b32 {v(vB)}, 0, {v(vB)}, {s(mk[0],2)}')
    e(f'v_cmp_gt_u32 vcc, 2, {v(vU)}')
    for k in (0, 1, 4, 5): e(f'v_mov_b32 {v(vSEL+k)}, 0')
    e(f'v_cndmask_b32 {v(vSEL+2)}, 0, {v(vB)}, vcc'); e(f'v_cndmask_b32 {v(vSEL+3)}, {v(vB)}, 0, vcc')
    def ffn_dma(slot, tag=None):
        return [f's_add_u32 m0, {s(sM0w)}, {slot*16384}', None,
                (f'buffer_load_dwordx4 {v(vDM)}, {s(SGt,4)}, {s(sWo)} offen lds', tag or f'slot{slot}'),
                (f'buffer_load_dwordx4 {v(vDM+1)}, {s(SGt,4)}, {s(sWo)} offen offset:1024 lds', tag or f'slot{slot}'),
                (f'buffer_load_dwordx4 {v(vDM)}, {s(SU,4)}, {s(sWo)} offen offset:2048 lds', tag or f'slot{slot}'),
                (f'buffer_load_dwordx4 {v(vDM+1)}, {s(SU,4)}, {s(sWo)} offen offset:3072 lds', tag or f'slot{slot}'),
                f's_add_u32 {s(sWo)}, {s(sWo)}, {CH}']
    def put(lst):
        for x in lst:
            if x is None: continue
            if callable(x): x()
            elif isinstance(x, tuple): e(x[0], x[1])
            else: e(x)
    def kv_dma(n, vk):
        out = []
        for st in range(3):
            if st != 1: out.append(f's_add_u32 m0, {s(sKm)}, {(n % 6)*24576 + (st//2)*4096}')
            for pp in range(2): out.append((f'buffer_load_dwordx4 {v(vk[pp])}, {s(SQ,4)}, {s(sKV+st)} offen offset:{2048*(st%2) + 1024*pp} lds', f'kv{n}'))
            out.append(f's_add_u32 {s(sKV+st)}, {s(sKV+st)}, {(64*3456 if n != 8 else 1152 - 8*64*3456) & 0xffffffff:#x}')
        return out
    SEC['scal'] = cap[0] = []
    e(f's_mul_i32 {s(sT0)}, {s(sM)}, 5'); e(f's_sub_u32 {s(sT0)}, {s(sT0)}, 2'); e(f's_max_i32 {s(sT0)}, {s(sT0)}, 0')
    e(f's_mul_i32 {s(sT1)}, {s(sQF)}, 18'); e(f's_add_u32 {s(sT0)}, {s(sT0)}, {s(sT1)}')
    e(f's_lshl_b32 {s(sWo)}, {s(sT0)}, 7')
    e(f's_sub_u32 {s(sT0)}, {s(sM)}, 4'); e(f's_cmp_eq_u32 {s(sM)}, 0'); e(f's_cselect_b32 {s(sT0)}, 11, {s(sT0)}')
    e(f's_add_u32 {s(sT0)}, {s(sT0)}, {s(sT1)}'); e(f's_lshl_b32 {s(sT0)}, {s(sT0)}, 1'); e(f's_add_u32 {s(sT0)}, {s(sT0)}, {s(sJ)}')
    e(f's_lshl_b32 {s(sT1)}, {s(sT)}, 3'); e(f's_lshl_b32 {s(sT2)}, {s(sI)}, 2'); e(f's_add_u32 {s(sT1)}, {s(sT1)}, {s(sT2)}')
    e(f's_lshl_b32 {s(sT2)}, {s(sJ)}, 1')
    sTB = [SG.get(f'tb{b}') for b in range(4)]
    for b in range(4):
        e(f's_xor_b32 {s(sTB[b])}, {s(sT2)}, {b}'); e(f's_add_u32 {s(sTB[b])}, {s(sTB[b])}, {s(sT1)}')
        e(f's_mul_i32 {s(sH+b)}, {s(sTB[b])}, 144'); e(f's_add_u32 {s(sH+b)}, {s(sH+b)}, {s(sT0)}'); e(f's_lshl_b32 {s(sH+b)}, {s(sH+b)}, 10')
    e(f's_cmp_eq_u32 {s(sM)}, 0'); e(f's_cselect_b32 {s(sCnt)}, 2, 4')
    e(f's_lshr_b32 {s(sT0)}, s2, 5'); e(f's_and_b32 {s(sT1)}, s2, 7'); e(f's_lshl_b32 {s(sT0)}, {s(sT0)}, 3'); e(f's_add_u32 {s(sT0)}, {s(sT0)}, {s(sT1)}')
    e(f's_mul_i32 {s(sT0)}, {s(sT0)}, 3'); e(f's_add_u32 {s(sT0)}, {s(sT0)}, {s(sM)}'); e(f's_sub_u32 {s(sT0)}, {s(sT0)}, 1')
    e(f's_lshl_b32 {s(sT0)}, {s(sT0)}, 2'); e(f's_add_u32 {s(sJob)}, {s(sT0)}, {s(sW)}')
    if 'nojobs' in opt: e(f's_mov_b32 {s(sJob)}, 4096')
    e(f's_mov_b32 {s(sOp)}, {s(KA+14)}'); e(f's_mov_b32 {s(sOp+1)}, {s(KA+15)}')
    e(f's_mul_i32 {s(sLine)}, {s(sQF)}, 3'); e(f's_add_u32 {s(sLine)}, {s(sLine)}, {s(sM)}'); e(f's_sub_u32 {s(sLine)}, {s(sLine)}, 1')
    SEC['jobs'] = cap[0] = []
    for n in range(2):
        jb = JP[6 * n: 6 * n + 6]
        e(f's_mov_b32 {s(jb[2])}, {F*D*2}')
        e(f's_cmp_lt_u32 {s(sJob)}, {NJOB_WD}')
        e(f's_cselect_b32 {s(jb[0])}, {s(SJS)}, {s(KA+4)}'); e(f's_cselect_b32 {s(jb[1])}, {s(SJS+1)}, {s(KA+5)}')
        e(f's_cselect_b32 {s(jb[2])}, {s(jb[2])}, {D*D*2}'); e(f's_cselect_b32 {s(sT0)}, 0, {NJOB_WD}')
        e(f's_sub_u32 {s(sT0)}, {s(sJob)}, {s(sT0)}'); e(f's_mul_i32 {s(sT1)}, {s(sT0)}, 7282'); e(f's_lshr_b32 {s(sT1)}, {s(sT1)}, 16')
        e(f's_mul_i32 {s(jb[3])}, {s(sT1)}, {32*1152 - 9*128}'); e(f's_lshl_b32 {s(sT2)}, {s(sT0)}, 7'); e(f's_add_u32 {s(jb[3])}, {s(jb[3])}, {s(sT2)}')
        e(f's_mul_i32 {s(sT2)}, {s(sT1)}, 9'); e(f's_sub_u32 {s(sT0)}, {s(sT0)}, {s(sT2)}'); e(f's_lshl_b32 {s(sT0)}, {s(sT0)}, 2')
        e(f's_mul_i32 {s(sJo)}, {s(sT0)}, 7282'); e(f's_lshr_b32 {s(sJo)}, {s(sJo)}, 16')
        e(f's_mul_i32 {s(sT2)}, {s(sJo)}, 9'); e(f's_sub_u32 {s(sT0)}, {s(sT0)}, {s(sT2)}')
        e(f's_sub_u32 {s(jb[5])}, 9, {s(sT0)}')
        e(f's_mul_i32 {s(sJo)}, {s(sJo)}, {144*9}'); e(f's_add_u32 {s(sJo)}, {s(sJo)}, {s(sT0)}')
        e(f's_mul_i32 {s(sT0)}, {s(sT1)}, 1821'); e(f's_lshr_b32 {s(sT0)}, {s(sT0)}, 16'); e(f's_mul_i32 {s(sT0)}, {s(sT0)}, 36')
        e(f's_sub_u32 {s(sT1)}, {s(sT1)}, {s(sT0)}'); e(f's_and_b32 {s(sT2)}, {s(sT1)}, 1'); e(f's_add_u32 {s(sT0)}, {s(sT0)}, {s(sT2)}'); e(f's_lshr_b32 {s(sT1)}, {s(sT1)}, 1')
        e(f's_mul_i32 {s(sT2)}, {s(sT1)}, 5')
        lo = sum(pos_of_double(d) << (5 * d) for d in range(6)); mi = sum(pos_of_double(6 + d) << (5 * d) for d in range(6)); hi = sum(pos_of_double(12 + d) << (5 * d) for d in range(6))
        e(f's_mov_b32 {s(jb[4])}, {lo}'); e(f's_cmp_ge_u32 {s(sT1)}, 6'); e(f's_cselect_b32 {s(jb[4])}, {mi}, {s(jb[4])}'); e(f's_cselect_b32 {s(mk[3])}, 30, 0')
        e(f's_cmp_ge_u32 {s(sT1)}, 12'); e(f's_cselect_b32 {s(jb[4])}, {hi}, {s(jb[4])}'); e(f's_cselect_b32 {s(mk[3])}, 60, {s(mk[3])}')
        e(f's_sub_u32 {s(sT2)}, {s(sT2)}, {s(mk[3])}'); e(f's_lshr_b32 {s(jb[4])}, {s(jb[4])}, {s(sT2)}'); e(f's_and_b32 {s(jb[4])}, {s(jb[4])}, 31')
        e(f's_lshl_b32 {s(jb[4])}, {s(jb[4])}, 1'); e(f's_add_u32 {s(sT0)}, {s(sT0)}, {s(jb[4])}'); e(f's_mul_i32 {s(sT0)}, {s(sT0)}, 9'); e(f's_add_u32 {s(sT0)}, {s(sT0)}, {s(sJo)}')
        e(f's_lshl_b32 {s(sT0)}, {s(sT0)}, 10'); e(f's_lshl_b32 {s(sT1)}, {s(sJob)}, 12')
        e(f's_cmp_lt_u32 {s(sJob)}, {NJOB_WD}'); e(f's_cselect_b32 {s(sT0)}, {s(sT0)}, {s(sT1)}'); e(f's_cselect_b32 {s(jb[5])}, {s(jb[5])}, 9')
        e(f's_add_u32 {s(jb[4])}, {s(sT0)}, {WT_OFF}'); e(f's_add_u32 {s(jb[5])}, {s(jb[5])}, {REC_OFF}')
        e(f's_cmp_lt_u32 {s(sJob)}, {NJOB}'); e(f's_cselect_b32 {s(jb[2])}, {s(jb[2])}, 0'); e(f's_cselect_b32 {s(jb[5])}, {s(jb[5])}, 0')
        if n == 0: e(f's_add_u32 {s(sJob)}, {s(sJob)}, 768')
    for q in range(3): e(f's_mov_b32 {s(SJS+q)}, {s(JP[q])}')
    SEC['park'] = cap[0] = []
    vPw = vRS; npk = [0]
    def park(r):
        e(f'v_writelane_b32 {v(vPw)}, {s(r)}, {npk[0]}'); npk[0] += 1
    tA, tB, tC, tD, tE, tF = (sKV + n for n in range(6))
    tAl, tTl, tK = sTB[:3]
    e(f's_mul_i32 {s(tA)}, {s(sM)}, 144'); e(f's_mul_i32 {s(tB)}, {s(sQF)}, 36'); e(f's_add_u32 {s(tA)}, {s(tA)}, {s(tB)}'); e(f's_mul_i32 {s(tA)}, {s(tA)}, 9216'); e(f's_add_u32 {s(tA)}, {s(tA)}, {WT_OFF}')
    e(f's_add_u32 {s(tC)}, {s(tA)}, {s(sM0w)}'); park(tC)
    e(f's_mul_i32 {s(tC)}, {s(sW)}, 9216'); park(tC)
    e(f's_add_u32 {s(tA)}, {s(tA)}, {s(tC)}'); e(f's_add_u32 {s(tA)}, {s(tA)}, {4*SLOT}'); park(tA)
    e(f's_lshl_b32 {s(tA)}, {s(sT)}, 3'); e(f's_lshl_b32 {s(tC)}, {s(sW)}, 1'); e(f's_add_u32 {s(tA)}, {s(tA)}, {s(tC)}'); e(f's_mul_i32 {s(tA)}, {s(tA)}, 144')
    e(f's_add_u32 {s(tA)}, {s(tA)}, {s(tB)}'); e(f's_lshl_b32 {s(tA)}, {s(tA)}, 10'); park(tA); e(f's_add_u32 {s(tA)}, {s(tA)}, {144*1024}'); park(tA)
    e(f's_mul_i32 {s(tA)}, s2, 10923'); e(f's_lshr_b32 {s(tA)}, {s(tA)}, 16'); e(f's_mul_i32 {s(tB)}, {s(tA)}, 6'); e(f's_sub_u32 {s(tB)}, s2, {s(tB)}'); e(f's_lshr_b32 {s(tB)}, {s(tB)}, 1')
    e(f's_mul_i32 {s(tC)}, {s(tA)}, 7282'); e(f's_lshr_b32 {s(tC)}, {s(tC)}, 16'); e(f's_mul_i32 {s(tD)}, {s(tC)}, 9'); e(f's_sub_u32 {s(tTl)}, {s(tA)}, {s(tD)}')
    e(f's_add_u32 {s(tAl)}, {s(tTl)}, {s(tB)}'); e(f's_sub_u32 {s(tAl)}, {s(tAl)}, 1'); e(f's_and_b32 {s(tK)}, s2, 1')
    e(f's_and_b32 {s(tD)}, {s(tA)}, 1'); e(f's_add_u32 {s(tD)}, {s(tD)}, {s(tB)}'); e(f's_sub_u32 {s(tD)}, {s(tD)}, 1')
    e(f's_lshl_b32 {s(tE)}, {s(tK)}, 10'); e(f's_lshl_b32 {s(tF)}, {s(tD)}, 3'); e(f's_add_u32 {s(tE)}, {s(tE)}, {s(tF)}'); e(f's_lshl_b32 {s(tF)}, {s(tK)}, 3'); e(f's_add_u32 {s(tF)}, {s(tF)}, 2048')
    e(f's_cmp_lt_u32 {s(tD)}, 2'); e(f's_cselect_b32 {s(tE)}, {s(tE)}, {s(tF)}')
    e(f's_mul_i32 {s(tA)}, {s(tA)}, 3072'); e(f's_add_u32 {s(tE)}, {s(tE)}, {s(tA)}'); e(f's_lshl_b32 {s(tF)}, {s(sW)}, 8'); e(f's_add_u32 {s(tE)}, {s(tE)}, {s(tF)}'); e(f's_add_u32 {s(tE)}, {s(tE)}, {REC_OFF}')
    e(f's_max_i32 {s(tA)}, {s(tAl)}, {s(tTl)}'); e(f's_cmp_gt_i32 {s(tA)}, 4'); e(f's_cselect_b32 {s(tA)}, 1, 0')
    e(f's_lshl_b32 {s(tB)}, {s(tA)}, 2'); e(f's_sub_u32 {s(tD)}, {s(tAl)}, {s(tB)}'); e(f's_sub_u32 {s(tB)}, {s(tTl)}, {s(tB)}'); e(f's_add_u32 {s(tB)}, {s(tB)}, {s(tD)}')
    e(f's_cmp_eq_u32 {s(tK)}, 0'); e(f's_cselect_b32 {s(tB)}, {s(tB)}, 13'); e(f's_add_u32 {s(tB)}, {s(tB)}, {s(tD)}')
    e(f's_lshl_b32 {s(tC)}, {s(tC)}, 1'); e(f's_add_u32 {s(tC)}, {s(tC)}, {s(tA)}'); e(f's_mul_i32 {s(tC)}, {s(tC)}, 18'); e(f's_add_u32 {s(tB)}, {s(tB)}, {s(tC)}')
    e(f's_lshl_b32 {s(tB)}, {s(tB)}, 10'); e(f's_add_u32 {s(tB)}, {s(tB)}, {s(tF)}'); e(f's_add_u32 {s(tB)}, {s(tB)}, {KVP_OFF}'); park(tB); park(tE)
    e(f's_cmp_lt_u32 {s(tAl)}, 9'); e(f's_cselect_b32 {s(tA)}, {WT_OFF}, 0'); e('s_cmp_lt_u32 s2, 216'); e(f's_cselect_b32 {s(tA)}, {s(tA)}, 0'); e(f's_cselect_b32 {s(tB)}, {STAMP_OFF}, 0')
    park(tA); park(tB)
    e(f's_lshl_b32 {s(tA)}, s2, 3'); e(f's_add_u32 {s(tA)}, {s(tA)}, {RECF_OFF}'); park(tA)
    e(f's_lshl_b32 {s(tTl)}, {s(tTl)}, 4'); park(tTl)
    e(f's_lshl_b32 {s(tA)}, {s(tAl)}, 4'); e(f's_lshl_b32 {s(tB)}, {s(sW)}, 2'); e(f's_add_u32 {s(tA)}, {s(tA)}, {s(tB)}'); e(f's_mul_i32 {s(tA)}, {s(tA)}, 3641')
    for r in range(4):
        e(f's_lshr_b32 {s(tB)}, {s(tA)}, 16'); park(tB)
        if r < 3: e(f's_add_u32 {s(tA)}, {s(tA)}, 3641')
    SEC['type'] = cap[0] = []
    QB = 73728
    sQo = sKV
    e(f's_lshl_b32 {s(sT0)}, {s(sQF)}, 8')
    for st in range(3):
        e(f's_add_u32 {s(sKV+st)}, {s(sT0)}, {4096 + 1152 + 128*st - 2048*(st%2)}')
    e(f's_mul_i32 {s(sKm)}, {s(sW)}, 6144')
    e(f's_lshl_b32 {s(sT0)}, {s(sLine)}, 7'); e(f's_add_u32 {s(sT0)}, {s(sT0)}, 4096'); e(f's_lshr_b32 {s(sT1)}, {s(sM0w)}, 1')
    e(f's_cmp_eq_u32 {s(sM)}, 0'); e(f's_cselect_b32 {s(sKV)}, {s(sKV)}, {s(sT0)}'); e(f's_cselect_b32 {s(sKm)}, {s(sKm)}, {s(sT1)}')
    SEC['touch'] = cap[0] = []
    vTq = T[21]
    e(f's_cmp_lt_u32 {s(sW)}, 2'); e(f's_cselect_b32 {s(SH)}, {s(SGt)}, {s(SU)}'); e(f's_cselect_b32 {s(SH+1)}, {s(SGt+1)}, {s(SU+1)}')
    e(f's_cselect_b32 {s(sT0)}, 0, 2048'); e(f's_add_u32 {s(SH+2)}, {s(sT0)}, {D*F*2}')
    e(f's_add_u32 {s(sTo)}, {s(sWo)}, {s(sT0)}')
    e(f's_mul_i32 {s(sT0)}, {s(sT)}, 36'); e(f's_mul_i32 {s(sT1)}, {s(sJ)}, 18'); e(f's_add_u32 {s(sT1)}, {s(sT1)}, {s(sT0)}')
    e(f'v_add_u32 {v(vU)}, {s(sT1)}, {v(vLane)}'); e(f'v_mul_u32_u24 {v(vU)}, 9216, {v(vU)}'); e(f'v_mov_b32 {v(vI2)}, 0x40000000')
    e(f'v_cmp_gt_u32 vcc, 18, {v(vLane)}'); e(f'v_cndmask_b32 {v(vTg)}, {v(vI2)}, {v(vU)}, vcc')
    e(f's_lshl_b32 {s(sT1)}, s2, 2'); e(f's_add_u32 {s(sT1)}, {s(sT1)}, {s(sW)}'); e(f's_lshl_b32 {s(sT1)}, {s(sT1)}, 11'); e(f's_add_u32 {s(sT1)}, {s(sT1)}, 4096')
    e(f'v_min_u32 {v(vTq)}, 15, {v(vLane)}'); e(f'v_lshlrev_b32 {v(vTq)}, 7, {v(vTq)}'); e(f'v_add_u32 {v(vTq)}, {s(sT1)}, {v(vTq)}')
    junk = lambda t: (lambda: e(t, junk=True))
    def gtouch(r=SX): return [junk(f'buffer_load_dword {v(vJS2)}, {v(vTg)}, {s(r,4)}, {s(sTo)} offen'), f's_add_u32 {s(sTo)}, {s(sTo)}, 128']
    e(f'v_mul_u32_u24 {v(vU)}, 1152, {v(vLane)}'); e(f'v_cmp_gt_u32 vcc, 32, {v(vLane)}'); e(f'v_cndmask_b32 {v(vTj)}, {v(vI2)}, {v(vU)}, vcc')
    def jtouch(): return [f's_mov_b32 {s(SJS+q)}, {s(JP[q])}' for q in range(3)] + ([] if 'nojt' in opt else [junk(f'buffer_load_dword {v(vJS2)}, {v(vTj)}, {s(SJS,4)}, {s(JP[3])} offen' + (' nt' if 'jnt' in opt else ''))])
    touches = gtouch() + (gtouch() if 't2' in opt else [])
    if 'notouch' in opt: touches = []
    else: put([junk(f'buffer_load_dword {v(vJS2)}, {v(vTq)}, {s(SQ,4)}, 0 offen')] + gtouch(SH))
    SEC['late'] = cap[0] = []
    for q in range(3): e(f's_mov_b32 {s(SX+q)}, {s(SH+q)}')
    e(f's_mov_b32 {s(SH)}, {s(SWS)}'); e(f's_mov_b32 {s(SH+1)}, {s(SWS+1)}'); e(f's_mov_b32 {s(SH+2)}, 0')
    SUM = lambda b: ACC + 4 * b
    SQ_ = lambda b: ACC + 16 + 4 * b
    pend = []
    def stats(b, ks):
        c0 = '0' if ks == 0 else v(SUM(b), 4); c1 = '0' if ks == 0 else v(SQ_(b), 4)
        e(f'v_mfma_f32_16x16x32_bf16 {v(SUM(b),4)}, {v(vONE,4)}, {xf(b,ks)}, {c0}')
        e(f'v_mfma_f32_16x16x32_bf16 {v(SQ_(b),4)}, {xf(b,ks)}, {xf(b,ks)}, {c1}')
    cap[0] = None
    tv = [x for x in SEC['touch'] if x[0].startswith('buffer_load')]; ta = [x for x in SEC['touch'] if x[0].startswith('s_add_u32 ' + s(sTo) + ', ' + s(sTo))]
    SEC['touch'] = [x for x in SEC['touch'] if x not in tv and x not in ta]
    SETA = sum((SEC[n] for n in ('srd', 'xr', 'scal', 'type', 'wdma', 'touch', 'const')), []); SETB = tv + ta + SEC['late']
    def scc_safe(L):
        for t, _, _ in L:
            mn = t.split()[0]
            if mn.startswith(('s_cselect', 's_addc', 's_subb')): return False
            if mn.startswith('s_') and not mn.startswith(('s_mov', 's_mul')): return True
        return True
    def atoms(L):
        L = list(L); out = []
        while L:
            g = [L.pop(0)]
            while not scc_safe(L): g.append(L.pop(0))
            out.append(g[0][0] if len(g) == 1 else (lambda g=g: [e(*x) for x in g]))
        return out
    def some(L, n):
        while L and (n > 0 or not scc_safe(L)):
            e(*L.pop(0)); n -= 1
    def xline(l):
        nonlocal pend
        p.wait_tag(f'x{l}')
        if l in (4, 8):
            for k in range(2): e(f'v_add_u32 {v(vXR[k])}, 65536, {v(vXR[k])}')
        cur = []
        for kk in range(2):
            for b in range(2):
                e(f'ds_read_b128 {xf(b, 2*l+kk)}, {v(vXR[kk])} offset:{(l%4)*16384 + b*2048}')
                cur.append((b, 2 * l + kk))
        if l % 3 == 2:
            e('s_barrier')
            for l2 in range(l - 2, l + 1):
                if l2 in (4, 8):
                    for k in range(2): prd.append(f'v_add_u32 {v(vXP[k])}, 65536, {v(vXP[k])}')
                prd.extend(f'ds_read_b128 {xf(2 + b, 2*l2+kk)}, {v(vXP[kk])} offset:{(l2%4)*16384 + b*2048}' for kk in range(2) for b in range(2))
        old, pend = pend, cur
        return old
    prd = []
    def someP(n):
        for _ in range(n):
            if prd: e(prd.pop(0))
    LAG = int(next((o[3:] for o in opt if o.startswith('lag')), 4))
    per = -(-len(SETA) // 36)
    for l in range(9):
        e(f's_add_u32 m0, {s(sM0w)}, {l*16384}')
        if l: e('s_add_u32 s3, s3, 128')
        todo = xline(l - LAG) if l >= LAG else []
        for q in range(4):
            e(f'buffer_load_dwordx4 {v(vXO[q])}, {s(SX,4)}, s3 offen offset:{1024*q} lds', tag=f'x{l}')
            if todo: stats(*todo.pop(0))
            someP(1); some(SETA, per)
    if stamps: p.raw(f's_memrealtime {s(sSt,2)}'); p.raw('s_waitcnt lgkmcnt(0)'); p.raw(f's_mov_b32 s3, {s(sSt)}')
    some(SETA, 999)
    if 'tend' not in opt: some(SETB, 999)
    for l in range(9 - LAG, 9):
        todo = xline(l)
        while todo:
            stats(*todo.pop(0)); someP(2)
    while pend:
        stats(*pend.pop(0)); someP(3)
    some(SETB, 999); someP(99)
    stamp()
    for b in range(2):
        for r in range(4): e(f'v_mul_f32 {v(SUM(b)+r)}, {fhex(-1.0/576)}, {v(SUM(b)+r)}')
        e(f'ds_write_b128 {v(vXR[2])}, {v(SUM(b),4)} offset:{1024*b}')
    p.wait_lg(0); e('s_barrier')
    for b in range(2): e(f'ds_read_b128 {v(SUM(2+b),4)}, {v(vXR[3])} offset:{1024*b}')
    stamp()
    st0 = p.snapshot()
    tmpv = T[36]
    CT = [T[40 + 8 * k] for k in range(3)]
    order = [(b, ks) for ks in range(18) for b in range(2)] + [(2 + b, ks) for ks in range(18) for b in range(2)]
    vNn, vNz = T[22], T[38]
    def center(mem, lab):
        e(f'v_mov_b32 {v(vNz)}, 0'); e(f'global_load_dwordx2 {v(vNn,2)}, {v(vNz)}, {s(sDbg,2)} sc1')
        mem = [x for x in mem if x]
        nm = sum(1 for x in mem if not isinstance(x, str)); done = [0]
        def one():
            while mem:
                x = mem.pop(0); put([x])
                if not isinstance(x, str):
                    done[0] += 1; break
        extra = []
        for b in range(2):
            q_ = SQ_(b)
            extra += [f'v_cndmask_b32 {v(tmpv+b)}, {v(q_)}, {v(q_+1)}, {s(mk[1],2)}', f'v_cndmask_b32 {v(tmpv+b)}, {v(tmpv+b)}, {v(q_+2)}, {s(mk[2],2)}',
                      f'v_cndmask_b32 {v(tmpv+b)}, {v(tmpv+b)}, {v(q_+3)}, {s(mk[3],2)}', f'v_cndmask_b32 {v(tmpv+b)}, 0, {v(tmpv+b)}, {s(mk[0],2)}']
        extra += [None] + [f'v_mfma_f32_16x16x4_f32 {v(SQ_(b),4)}, {v(vF1)}, {v(tmpv+b)}, 0' for b in range(2)]
        extra += [f'v_mul_f32 {v(tmpv+b)}, {v(SUM(b))}, {v(SUM(b))}' for b in range(2)] + [f's_mov_b32 {s(sT0)}, {fhex(1.0/576)}', None]
        for b in range(2):
            extra += [f'v_fma_f32 {v(tmpv+b)}, {v(SQ_(b))}, {s(sT0)}, -{v(tmpv+b)}', f'v_max_f32 {v(tmpv+b)}, 0, {v(tmpv+b)}',
                      f'v_add_f32 {v(tmpv+b)}, {fhex(1e-5)}, {v(tmpv+b)}', f'v_rsq_f32 {v(vRS+b)}, {v(tmpv+b)}', f'v_rcp_f32 {v(vRS2+b)}, {v(tmpv+b)}']
        extra += [f'ds_write_b64 {v(vXR[2])}, {v(vRS,2)} offset:2048', f'ds_write_b64 {v(vXR[2])}, {v(vRS2,2)} offset:2056', None, None, None,
                  lambda: (p.wait_lg(0), e('s_barrier')), f'ds_read_b64 {v(vRS+2,2)}, {v(vXR[3])} offset:2048', f'ds_read_b64 {v(vRS2+2,2)}, {v(vXR[3])} offset:2056']
        for n in range(72 + 2):
            pk = [[], [], [], []]; m = [None, None]
            if n < 72:
                b, ks = order[n]; t = CT[n % 3]
                m = [f'v_mfma_f32_16x16x32_bf16 {v(t,4)}, {v(vSEL+2,4)}, {xf(b,ks)}, {v(SUM(b),4)}',
                     f'v_mfma_f32_16x16x32_bf16 {v(t+4,4)}, {v(vSEL,4)}, {xf(b,ks)}, {v(SUM(b),4)}']
            if n >= 2:
                b, ks = order[n - 2]; t = CT[(n - 2) % 3]; f = fidx(b, ks)
                for d in range(4):
                    if f < NXV: pk[d] = [f'v_cvt_pk_bf16_f32 {v(XV + 4*f + d)}, {v(t+2*d)}, {v(t+2*d+1)}']
                    else: pk[d] = [f'v_cvt_pk_bf16_f32 {v(t+2*d)}, {v(t+2*d)}, {v(t+2*d+1)}', f'v_accvgpr_write_b32 {a(XA + 4*(f-NXV) + d)}, {v(t+2*d)}']
            put([m[0]] + pk[0] + pk[1] + [m[1]] + pk[2] + pk[3])
            if extra: put([extra.pop(0)])
            if done[0] * 66 < nm * (n + 1): one()
        assert not extra
        while mem: one()
        e(f'v_readfirstlane_b32 {s(sN)}, {v(vNn)}'); e(f'v_readfirstlane_b32 {s(sN+1)}, {v(vNn+1)}')
        e(f's_cmp_eq_u32 {s(sN)}, 0'); e(f's_cbranch_scc1 {lab}_nw'); p.label(f'{lab}_nd')
        slow.append([f'{lab}_nw:', f's_mov_b32 {s(sSpin)}, {SPIN}', f'{lab}_nw2:', f'global_load_dwordx2 {v(vNn,2)}, {v(vNz)}, {s(sDbg,2)} sc1', 's_waitcnt vmcnt(0)',
                     f'v_readfirstlane_b32 {s(sN)}, {v(vNn)}', f'v_readfirstlane_b32 {s(sN+1)}, {v(vNn+1)}', f's_sub_u32 {s(sSpin)}, {s(sSpin)}, 1',
                     f's_cmp_lg_u32 {s(sN)}, 0', f's_cbranch_scc1 {lab}_nd', f's_cmp_lg_u32 {s(sSpin)}, 0', f's_cbranch_scc1 {lab}_nw2', f's_branch {lab}_nd'])
        stamp(2)
    def q_dma(c):
        return [f's_add_u32 m0, {s(sKm)}, {QB + 8192*c}', (f'buffer_load_dwordx4 {v(vQD[0])}, {s(SQ,4)}, {s(sQo)} offen lds', f'q{c}'),
                (f'buffer_load_dwordx4 {v(vQD[1])}, {s(SQ,4)}, {s(sQo)} offen offset:1024 lds', f'q{c}'), f's_add_u32 {s(sQo)}, {s(sQo)}, {64*3456}']
    e(f's_cmp_eq_u32 {s(sM)}, 0'); e(f's_cbranch_scc1 {name}_kv')
    e(f's_cmp_lt_u32 {s(sLine)}, 9'); e(f's_cbranch_scc1 {name}_q')
    center([x for c in range(7) for x in ffn_dma(c)] + touches, name + '_f')
    some(list(SEC['jobs']), 999); put(jtouch()[3:])
    stF = p.snapshot(); stF = (stF[0], [x for x in stF[1] if str(x[1]).startswith('slot')])
    e(f's_branch {name}_hdr')

    def phi2(x, rs, rsl, t):
        return [f'v_pk_mul_f32 {v(t,2)}, {v(x,2)}, {v(rsl[0],2)}{rsl[1]}', f'v_pk_fma_f32 {v(x,2)}, {v(x,2)}, {v(rs[0],2)}, {s(sEps,2)}{rs[2]}',
                f'v_exp_f32_e64 {v(t)}, {v(t)} clamp', f'v_exp_f32_e64 {v(t+1)}, {v(t+1)} clamp',
                f'v_max_f32 {v(x)}, {s(sEps)}, {v(x)}', f'v_max_f32 {v(x+1)}, {s(sEps)}, {v(x+1)}', f'v_pk_add_f32 {v(x,2)}, {v(x,2)}, {v(t,2)}']
    def bc(reg):
        h = reg & 1
        return (reg & ~1, f' op_sel:[0,{h}] op_sel_hi:[1,{h}]', f' op_sel:[0,{h},0] op_sel_hi:[1,{h},1]')
    pr = lambda reg: (reg, '', '')
    def weave(seqs, between=None):
        for k in range(max(map(len, seqs))):
            for sq in seqs:
                if k < len(sq): e(sq[k])
            if between: between()
    def set_eps(): e(f's_mov_b32 {s(sEps)}, {fhex(1e-6)}'); e(f's_mov_b32 {s(sEps+1)}, {fhex(1e-6)}')
    wf = lambda g, kk: a(WF + 8 * (g % 3) + 4 * kk, 4)
    def tr4(g, base_reg, off, kstride):
        out = []
        for kk in range(2):
            for h in range(2):
                out.append(f'ds_read_b64_tr_b16 {a(WF + 8*(g%3) + 4*kk + 2*h, 2)}, {v(base_reg)} offset:{off + kk*kstride + h*512}')
        return out
    p.label(f'{name}_q'); p.restore(st0)
    center([x for c in range(9) for x in q_dma(c)] + [x for c in range(4) for x in ffn_dma(c)] + touches, name + '_qq')
    vQT = [ACC + 0, ACC + 1]
    e(f'v_lshrrev_b32 {v(ACC+2)}, 5, v0'); e(f'v_and_b32 {v(ACC+2)}, 1, {v(ACC+2)}'); e(f'v_lshlrev_b32 {v(ACC+2)}, 11, {v(ACC+2)}')
    e(f'v_subrev_u32 {v(ACC+2)}, {QB}, {v(ACC+2)}')
    for tt in range(2): e(f'v_sub_u32 {v(vQT[tt])}, {v(vTR+tt)}, {v(ACC+2)}')
    p.wait_tag('q8'); e('s_barrier')
    qtr = lambda g: tr4(g, vQT[g % 2], ((g // 2) % 4) * 8192 + (32768 if g // 2 == 8 else 0), 4096)
    for x in qtr(0) + qtr(1): e(x)
    nxt_slot = 4; qj = atoms(SEC['jobs'])
    for g in range(18):
        c, tt = g // 2, g % 2
        mains = []; sl = Slots(8)
        for b in range(4):
            for kk in range(2):
                acc = PR + 16 * tt + 4 * b
                cc = '0' if (c == 0 and kk == 0) else v(acc, 4)
                mains.append(f'v_mfma_f32_16x16x32_bf16 {v(acc,4)}, {wf(g,kk)}, {xf(b, 2*c+kk)}, {cc}')
        sl.fix(-1, lambda g=g: p.need(a(WF + 8 * (g % 3), 8)))
        if g in (2, 6, 10): sl.fix(-1, 's_barrier')
        if g + 2 < 18:
            if g + 2 == 8:
                for tt2 in range(2): sl.fix(-1, f'v_add_u32 {v(vQT[tt2])}, 32768, {v(vQT[tt2])}')
            for k, x in enumerate(qtr(g + 2)): sl.fix(2 * k, x)
        if g in (2, 6, 10):
            sl.stream(0, [x for x in ffn_dma(nxt_slot) if x]); nxt_slot += 1
        else:
            sl.stream(0, qj[:8]); qj = qj[8:]
        interleave(p, mains, sl.f)
    put(qj); put(jtouch()[3:])
    stamp(3)
    qtail = []
    set_eps()
    for b in range(4): e(f'v_mul_f32 {v(ACC+4+b)}, {fhex(LOG2E)}, {v(vRS+b)}')
    for b in range(4):
        weave([phi2(PR + 16 * tt + 4 * b + r, bc(vRS + b), bc(ACC + 4 + b), ACC + 8 + 4 * tt + r) for tt in range(2) for r in (0, 2)],
              lambda: put([qtail.pop(0)]) if qtail else None)
        o = PR + 4 * b
        e(f'v_cvt_pk_bf16_f32 {v(o)}, {v(o)}, {v(o+1)}'); e(f'v_cvt_pk_bf16_f32 {v(o+1)}, {v(o+2)}, {v(o+3)}')
        e(f'v_cvt_pk_bf16_f32 {v(o+2)}, {v(o+16)}, {v(o+17)}'); e(f'v_cvt_pk_bf16_f32 {v(o+3)}, {v(o+18)}, {v(o+19)}')
        e(f's_mul_i32 {s(sT0)}, {s(sTB[b])}, 18'); e(f's_lshl_b32 {s(sT2)}, {s(sLine)}, 1'); e(f's_add_u32 {s(sT0)}, {s(sT0)}, {s(sT2)}'); e(f's_add_u32 {s(sT0)}, {s(sT0)}, {s(sJ)}')
        e(f's_lshl_b32 {s(sT0)}, {s(sT0)}, 10'); e(f's_add_u32 {s(sT0)}, {s(sT0)}, {PQ_OFF}')
        e(f'buffer_store_dwordx4 {v(o,4)}, {v(vL16)}, {s(SWS,4)}, {s(sT0)} offen sc1')
    assert not qtail
    e(f's_branch {name}_hdr')
    p.label(f'{name}_kv'); p.restore(st0)
    center([x for n in range(6) for x in kv_dma(n, vQD)] + touches, name + '_kk')
    def kacc(ps, aa, b):
        n = 16 * aa + 4 * b
        if ps == 0: return v(ACC + n, 4)
        return v(ACC + 88 + n, 4) if n < 8 else a(JD + 64 + n - 8, 4) if n < 16 else a(JD + n - 16, 4)
    vKT = [vT + k for k in range(4)]; vKD = [vT + 4, vT + 5]; vTw = vT + 6
    for pp in range(2): e(f'v_mov_b32 {v(vKD[pp])}, {v(vQD[pp])}')
    e(f'v_bfe_u32 {v(ACC)}, v0, 5, 1'); e(f'v_mul_u32_u24 {v(ACC)}, 6144, {v(ACC)}'); e(f'v_and_b32 {v(ACC+1)}, 0x5ff, {v(vTR)}')
    e(f's_lshl_b32 {s(sT0)}, {s(sJ)}, 6'); e(f'v_xor_b32 {v(ACC+1)}, {s(sT0)}, {v(ACC+1)}')
    for u in range(4):
        e(f's_add_u32 {s(sT0)}, {s(sQF)}, {u}'); e(f's_and_b32 {s(sT1)}, {s(sT0)}, 3'); e(f's_lshl_b32 {s(sT1)}, {s(sT1)}, 5')
        e(f's_lshr_b32 {s(sT0)}, {s(sT0)}, 2'); e(f's_add_u32 {s(sT0)}, {s(sT0)}, {s(sJ)}'); e(f's_lshl_b32 {s(sT0)}, {s(sT0)}, 11')
        e(f'v_xor_b32 {v(vKT[u])}, {s(sT1)}, {v(ACC+1)}'); e(f'v_add3_u32 {v(vKT[u])}, {v(vKT[u])}, {s(sT0)}, {v(ACC)}')
    def ktr(G):
        n, aa = divmod(G, 5)
        return tr4(G, vKT[aa % 4], (n % 2) * 24576 + (aa // 4) * 2048, 12288)
    p.wait_tag('kv0'); e('s_barrier')
    for x in ktr(0) + ktr(1): e(x)
    mains = []; sl = Slots(720)
    for G in range(90):
        n, aa = divmod(G, 5); c = n % 9
        for b in range(4):
            for kk in range(2):
                acc = kacc(n // 9, aa, b)
                mains.append(f'v_mfma_f32_16x16x32_bf16 {acc}, {xf(b, 2*c+kk)}, {wf(G,kk)}, {"0" if (c == 0 and kk == 0) else acc}')
        bar = lambda G_: G_ % 10 == 3
        if G == 0 or bar(G - 1): sl.fix(8 * G - 1, lambda G=G: p.need(a(WF + 8 * (G % 3), 8)))
        if not bar(G) and G < 89: sl.fix(8 * G + 6, lambda G=G: p.need(a(WF + 8 * ((G + 1) % 3), 8)))
        if bar(G):
            sl.fix(8 * G - 1, lambda n=n: p.wait_tag(f'kv{min(n+2, 17)}')); sl.fix(8 * G, 's_barrier')
        if G % 10 == 7 and G < 80:
            dlt = 49152 if (n + 1) % 6 else -98304
            for u in range(4): sl.fix(8 * G + 7 + 0 * u, f'v_add_u32 {v(vKT[u])}, {dlt & 0xffffffff:#x}, {v(vKT[u])}')
        if G + 2 < 90:
            for k, x in enumerate(ktr(G + 2)): sl.fix(8 * G + 2 * k + (1 if bar(G) else 0), x)
    fd = lambda t: [x for x in ffn_dma(t) if x]
    for n in range(2, 18, 2):
        dm = kv_dma(n + 4, vKD) + kv_dma(n + 5, vKD) if n <= 12 else [x for t in range(3 * (n - 14) // 2, 3 * (n - 14) // 2 + 3) for x in fd(t)]
        sl.spread(40 * n + 25, min(40 * n + 103, 719), dm)
    set_eps_l = [f's_mov_b32 {s(sEps)}, {fhex(1e-6)}', f's_mov_b32 {s(sEps+1)}, {fhex(LOG2E)}']
    k = sl.stream(30, [f's_mov_b32 {s(JP[q])}, 0' for q in (2, 5, 8, 11)] + set_eps_l +
                  [f'v_and_b32 {v(vTw)}, 15, v0', f'v_lshlrev_b32 {v(vTw)}, 2, {v(vTw)}', f'v_add_u32 {v(vTw)}, {s(sSP)}, {v(vTw)}'] +
                  [f'ds_write_b32 {v(vTw)}, {v(vRS+b)} offset:{64*b}' for b in range(4)] +
                  [f'v_bfe_u32 {v(vTw)}, v0, 4, 2', f'v_lshlrev_b32 {v(vTw)}, 4, {v(vTw)}', f'v_add_u32 {v(vTw)}, {s(sSP)}, {v(vTw)}'] +
                  [f'ds_read_b128 {v(ACC + 80 + 4*b, 4)}, {v(vTw)} offset:{64*b}' for b in range(2)] +
                  [f's_lshl_b32 {s(sT1)}, {s(sT)}, 1', f's_add_u32 {s(sT1)}, {s(sT1)}, {s(sI)}', f's_lshl_b32 {s(sT1)}, {s(sT1)}, 3', f's_lshl_b32 {s(sT0)}, {s(sQF)}, 1',
                   f's_add_u32 {s(sT0)}, {s(sT0)}, {s(sJ)}', f's_add_u32 {s(sT1)}, {s(sT1)}, {s(sT0)}', f's_mul_i32 {s(sT1)}, {s(sT1)}, {18*1024}', f's_add_u32 {s(sT1)}, {s(sT1)}, {KVP_OFF}'])
    ph = []; tt = [vRS, vRS + 1, vRS + 2, vRS + 3]
    for b in range(4):
        rt = ACC + 80 + 4 * (b % 2)
        for aa in range(5):
            x = ACC + 16 * aa + 4 * b
            ph += [f'v_fma_f32 {v(x+r)}, {v(x+r)}, {v(rt+r)}, {s(sEps)}' for r in range(4)] + [f'v_mul_f32 {v(tt[r])}, {s(sEps+1)}, {v(x+r)}' for r in range(4)]
            ph += [f'v_exp_f32_e64 {v(tt[r])}, {v(tt[r])} clamp' for r in range(4)] + [f'v_max_f32 {v(x+r)}, {s(sEps)}, {v(x+r)}' for r in range(4)]
            ph += [f'v_add_f32 {v(x+r)}, {v(x+r)}, {v(tt[r])}' for r in range(4)]
            ph += [f'v_cvt_pk_bf16_f32 {v(ACC + 16*aa + 8*(b//2) + 2*(b%2) + d)}, {v(x+2*d)}, {v(x+2*d+1)}' for d in range(2)]
            if aa == 4 and b < 2: ph.insert(len(ph) - 18, f'ds_read_b128 {v(rt,4)}, {v(vTw)} offset:{64*(b+2)}')
    room = sum(max(0, 2 - sl.cnt.get(k_, 0)) for k_ in range(364, 720)); tot = sum(Slots.cost(x) for x in ph)
    every = max(1, int((720 - 364) / max(tot - room + 24, 1)))
    k_ = 364
    for x in ph:
        while k_ < 719 and sl.cnt.get(k_, 0) + Slots.cost(x) > (3 if (k_ % every == 0) else 2) and not (Slots.cost(x) == 2 and sl.cnt.get(k_, 0) == 1 and k_ % every == 0): k_ += 1
        sl.fix(k_, x)
    print('kv overflow', sl.over(0, 360), sl.over(360, 720), 'last', sl.cnt.get(719), 'every', every, file=__import__('sys').stderr)
    interleave(p, mains, sl.f)
    PK = {(aa, hb): v(ACC + 16 * aa + 8 * hb, 4) for aa in range(5) for hb in range(2)}
    RT = [[vT, ACC + 80], [vRS, ACC + 84]]
    RT = [[vT, vRS], [ACC + 80, ACC + 84]]
    e(f'ds_read_b128 {v(vT,4)}, {v(vTw)}'); e(f'v_mov_b32 {v(vT+4)}, {v(vTw)}')
    p.wait_lg(0); e('s_barrier')
    stamp(4)
    e(f'ds_read_b64 {v(vRS,2)}, {v(vT+4)} offset:64'); e(f'ds_read_b64 {v(vRS+2,2)}, {v(vT+4)} offset:72')
    for k in range(4): e(f'v_accvgpr_write_b32 {a(WF+k)}, {s(sOnes)}')
    FQ = [ACC + 16 * aa + 4 + 8 * hb for aa in range(5) for hb in range(2)]
    PV = {}; DT = [WF + 4 + 4 * k for k in range(5)]; nd = [0]; mq = []; stq = [x for x in fd(6)]
    def kvmm(aa):
        for T_ in [T_ for T_ in (aa - 1, aa, aa + 1) if 0 <= T_ < 5] + [None]:
            d = a(DT[nd[0] % 5], 4); nd[0] += 1
            u = 13 + aa if T_ is None else KV_PAIRS.index((aa, T_))
            for hb in range(2):
                mq.append((f'v_mfma_f32_16x16x32_bf16 {d}, {PK[aa, hb]}, {a(WF,4) if T_ is None else PV[T_, hb]}, {"0" if hb == 0 else d}',
                           [f's_add_u32 {s(sT2)}, {s(sT1)}, {1024*u}', f'buffer_store_dwordx4 {d}, {v(vL16)}, {s(SWS,4)}, {s(sT2)} offen sc1'] if hb else []))
    pend_st = []
    def tick():
        if mq:
            m_, st_ = mq.pop(0); e(m_)
            if st_: pend_st.append([6, st_])
        for x in pend_st: x[0] -= 1
        if pend_st and pend_st[0][0] <= 0: put(pend_st.pop(0)[1])
        elif stq and not mq: put([stq.pop(0)])
    spare = FQ.pop()
    for T_ in range(5):
        for hb in range(2):
            if T_ == 0 and hb == 0: q0, q1 = ACC + 88, ACC + 92
            else:
                q0, q1 = FQ.pop(0), spare
                src = kacc(1, T_, 2 * hb); base = int(src[2:src.index(':')])
                for k in range(8):
                    e(f'v_accvgpr_read_b32 {v((q0, q1)[k//4] + k%4)}, {a(base + k)}')
                    if k % 2: tick()
            for k in range(0, 8, 2): e(f'v_pk_mul_f32 {v((q0, q1)[k//4] + k%4, 2)}, {v((q0, q1)[k//4] + k%4, 2)}, {v(RT[hb][k//4] + k%4, 2)}')
            for d in range(4): e(f'v_cvt_pk_bf16_f32 {v(q0+d)}, {v((q0, q1)[d//2] + 2*(d%2))}, {v((q0, q1)[d//2] + 2*(d%2) + 1)}')
            PV[T_, hb] = v(q0, 4)
        if T_ >= 1: kvmm(T_ - 1)
    kvmm(4)
    while mq or pend_st or stq: tick()
    p.label(f'{name}_hdr'); p.restore(stF)
    stamp(5)
    acc = lambda ai, b: ACC + 16 * ai + 4 * b
    def ftr(G):
        G %= 36; c, g = divmod(G, 4)
        return tr4(G, vTR + 2 * (c // 4) + (g >> 1), (c % 4) * 16384 + (g & 1) * 2048, 8192)
    vPg, vP0 = vT + 4, vT + 6
    e(f'v_mov_b32 {v(vPg)}, {s(sN)}'); e(f'v_mov_b32 {v(vPg+1)}, {s(sN+1)}'); e(f'v_min_u32 {v(vP0)}, 1, v0'); e(f'v_lshlrev_b32 {v(vP0)}, 30, {v(vP0)}')
    e(f's_mov_b32 {s(sInc)}, {6*1024}'); e(f's_mov_b32 {s(sIncL)}, {10*1024}')
    e(f's_cmp_eq_u32 {s(sM)}, 0'); e(f's_cselect_b32 {s(sInc)}, {2*1024}, {s(sInc)}'); e(f's_cselect_b32 {s(sIncL)}, {8*1024}, {s(sIncL)}')
    e(f's_lshl_b32 {s(sT0)}, {s(sT)}, 2'); e(f's_add_u32 {s(sT0)}, {s(sT0)}, {s(sQF)}'); e(f's_lshl_b32 {s(sT0)}, {s(sT0)}, 5'); e(f's_add_u32 {s(sPc)}, {s(sT0)}, {PROG_OFF}')
    e(f's_lshl_b32 {s(sT0)}, {s(sM)}, 3'); e(f's_add_u32 {s(sPg)}, {s(sPc)}, {s(sT0)}')
    htouch = lambda inc: []
    def put2(sl, k, items):
        for x in items:
            if callable(x):
                while sl.cnt.get(k, 0): k += 1
                sl.fix(k, x, cost=2)
            else: k = sl.stream(k, [x])
        return k
    def check(lab, data, need, reload, pre=(), inline=True):
        seq = [f'v_xor_b32 {v(data)}, {s(sN)}, {v(data)}', f'v_sub_u32 {v(data+1)}, {v(data+1)}, {need}', f'v_lshrrev_b32 {v(data+1)}, 4, {v(data+1)}',
               f'v_or_b32 {v(data)}, {v(data)}, {v(data+1)}', f'v_cmp_ne_u32 vcc, 0, {v(data)}']
        spin = [f's_mov_b32 {s(sSpin)}, {SPIN}', f'{lab}_w2:', reload, 's_waitcnt vmcnt(0)'] + seq + \
               [f's_sub_u32 {s(sSpin)}, {s(sSpin)}, 1', 's_cmp_eq_u64 vcc, 0', f's_cbranch_scc1 {lab}_d', f's_cmp_lg_u32 {s(sSpin)}, 0', f's_cbranch_scc1 {lab}_w2', f's_branch {lab}_d']
        def f():
            if inline:
                put(seq); e('s_nop 0'); e('s_cmp_eq_u64 vcc, 0'); e(f's_cbranch_scc0 {lab}_w'); blk = [f'{lab}_w:'] + spin
            else:
                p.need(v(data, 2)); e(f's_cmp_eq_u32 {s(sCnt)}, 1'); e(f's_cbranch_scc1 {lab}_w')
                blk = [f'{lab}_w:'] + list(pre) + seq + ['s_nop 0', 's_cmp_eq_u64 vcc, 0', f's_cbranch_scc1 {lab}_d'] + spin
            p.label(f'{lab}_d')
            if blk not in slow: slow.append(blk)
        return f
    p.wait_tag('slot1', 0); e('s_barrier')
    for x in ftr(0) + ftr(1): e(x)
    def prod(h, b): return [f'v_mul_f32 {v(PR + 16*h + 4*b + r)}, {v(acc(2*h, b) + r)}, {v(acc(2*h+1, b) + r)}' for r in range(4)]
    def fin(b, inc):
        o = PR + 4 * b
        return ([f'v_mul_f32 {v(o + 16*h + r)}, {v(o + 16*h + r)}, {v(vRS2+b)}' for h in range(2) for r in range(4)] +
                [f'v_cvt_pk_bf16_f32 {v(o)}, {v(o)}, {v(o+1)}', f'v_cvt_pk_bf16_f32 {v(o+1)}, {v(o+2)}, {v(o+3)}',
                 f'v_cvt_pk_bf16_f32 {v(o+2)}, {v(o+16)}, {v(o+17)}', f'v_cvt_pk_bf16_f32 {v(o+3)}, {v(o+18)}, {v(o+19)}',
                 (f'buffer_store_dwordx4 {v(o,4)}, {v(vL16)}, {s(SH,4)}, {s(sH+b)} offen sc1', 'h')] +
                ([f's_add_u32 {s(sH+b)}, {s(sH+b)}, {s(inc)}'] if inc else []))
    progress = [f'v_add_u32 {v(vPg+1)}, 1, {v(vPg+1)}', f'buffer_store_dwordx2 {v(vPg,2)}, {v(vP0)}, {s(SWS,4)}, {s(sPg)} offen sc1']
    def slab(sl, mains, last):
        for G in range(36):
            c, g = divmod(G, 4)
            for b in range(4):
                for kk in range(2):
                    cc = '0' if (c == 0 and kk == 0) else v(acc(g, b), 4)
                    mains.append(f'v_mfma_f32_16x16x32_bf16 {v(acc(g,b),4)}, {wf(G,kk)}, {xf(b, 2*c+kk)}, {cc}')
            bar = lambda G_: G_ % 4 == 2 and (last or G_ // 4 in (1, 4, 7))
            if G == 0 or bar(G - 1): sl.fix(8 * G - 1, lambda G=G: p.need(a(WF + 8 * (G % 3), 8)))
            if not bar(G) and G < 35: sl.fix(8 * G + 6, lambda G=G: p.need(a(WF + 8 * ((G + 1) % 3), 8)))
            if bar(G):
                tag = (f'slot{(c+1)%9}' if c < 8 else 'slot2') if last else f'slot{(c+3)%9}'
                if c == 7: sl.fix(8 * G - 3, lambda: p.wait_tag('h'))
                sl.fix(8 * G - 1, lambda tag=tag: p.wait_tag(tag)); sl.fix(8 * G, 's_barrier')
            if not (last and G >= 34):
                for k, x in enumerate(ftr(G + 2)): sl.fix(8 * G + 2 * k + (1 if bar(G) else 0), x)
        sl.stream(8 * 33 + 5, prod(0, 0), last=8 * 34 - 1, cap=3)
        sl.stream(0, prod(1, 0) + prod(1, 1) + prod(1, 2) + prod(1, 3), last=15)
    def body():
        mains = []; sl = Slots(288)
        slab(sl, mains, False)
        sl.stream(8 * 34 + 1, prod(0, 1) + prod(0, 2) + prod(0, 3), last=287)
        fd = lambda t: [x for x in ffn_dma(t) if x]
        d8 = fd(8); d8[-1] = f's_add_u32 {s(sWo)}, {s(sWo)}, {(128 - 8*CH) & 0xffffffff:#x}'
        jl = [f's_mov_b32 {s(sJo)}, {s(JP[3])}', f's_mov_b32 m0, {s(sSP)}']
        for q in range(4):
            jl += [(f'buffer_load_dwordx4 {v(vJS)}, {s(SJS,4)}, {s(sJo)} offen offset:{1024*q}' + (' nt' if 'jnt' in opt else '') + ' lds', 'job'), f's_add_u32 {s(sJo)}, {s(sJo)}, 8192']
        st = [fin(b, None)[12] for b in range(4)]; pos = []
        g_ = gtouch(); g_[0].mem = True
        if 'notouch' in opt: g_ = []
        sl.spread(17, 47, jl + [st[0]], pos)
        sl.spread(49, 143, fd(7)[:3] + [st[1]] + fd(7)[3:] + [st[2]] + d8[:3] + [st[3]] + d8[3:] + g_ + fd(0), pos)
        sl.spread(145, 239, fd(1) + fd(2) + fd(3))
        sl.spread(241, 287, fd(4) + progress + fd(5) + fd(6))
        k = 16
        for b, ps in enumerate((pos[4], pos[7], pos[10], pos[13])):
            f = fin(b, sInc); k = sl.stream(k, f[:12], last=ps - 1); sl.stream(ps + 1, f[13:])
        k = sl.stream(pos[13], [f's_mov_b32 {s(SJD+2)}, {s(JP[5])}', f's_and_b32 {s(sCr)}, {s(JP[5])}, 15'])
        j2 = [f's_mov_b32 {s(sJo)}, {s(JP[4])}'] + [f's_mov_b32 {s(JP[q])}, {s(JP[6+q])}' for q in range(6)]
        j2 += [f's_mov_b32 {s(JP[8])}, 0', f's_mov_b32 {s(JP[11])}, 0']
        j2 += [f'v_xor_b32 {v(vT+u)}, {32*u}, {v(vJT)}' for u in range(1, 4)]
        k = sl.stream(k + 1, j2)
        jt = jtouch(); k = sl.stream(k, jt[:3])
        if jt[3:]:
            k = (k + 2) | 1
            while sl.cnt.get(k, 0): k += 1
            sl.fix(k, jt[3], cost=2)
        assert k < 32 * 6
        j3 = [lambda: p.wait_tag('job')]
        for u in range(4):
            for h in range(2): j3.append(f'ds_read_b64_tr_b16 {a(JD + 4*u + 2*h, 2)}, {v(vT+u) if u else v(vJT)} offset:{2048*h}')
        k = sl.stream(32 * 6, j3, gap=1)
        for u in range(4):
            if u:
                k += 1; sl.fix(k, lambda u=u: put([f's_cmp_le_u32 {s(sCr)}, {u}', f's_cselect_b32 {s(sT0)}, {(144*9 - 9)*1024}, 0', f's_add_u32 {s(sT0)}, {s(sT0)}, {s(sJo)}']), cost=2)
            k = sl.stream(k + 2, [f'buffer_store_dwordx4 {a(JD+4*u,4)}, {v(vL16)}, {s(SJD,4)}, {s(sT0 if u else sJo)} offen offset:{1024*u} sc1'])
        assert k < 8 * 30 - 3, k
        sl.stream(8 * 20, [f's_mov_b32 {s(SH+2)}, {0 if "nohst" in opt else PQ_OFF}'])
        vPd, vPa, vPn = vRS + 2, vRS + 1, vT
        pollA = f'buffer_load_dwordx2 {v(vPd,2)}, {v(vPa)}, {s(SWS,4)}, 0 offen sc1'
        if 'lateA' not in opt: sl.stream(32 * 5, [f'v_lshlrev_b32 {v(vPa)}, 3, v0', f'v_add_u32 {v(vPa)}, {PROG_OFF}, {v(vPa)}', pollA])
        if 'lateA' not in opt: sl.fix(8 * 30 - 4, check(name + '_ca', vPd, v(vPn), pollA, inline=False,
               pre=[f'v_and_b32 {v(vPn)}, 3, v0', f'v_min_u32 {v(vPn)}, 1, {v(vPn)}', f'v_lshl_add_u32 {v(vPn)}, {v(vPn)}, 1, 1', f'v_add_u32 {v(vPn)}, {s(sN+1)}, {v(vPn)}']), cost=2)
        def pull():
            e(f's_cmp_eq_u32 {s(sCnt)}, 1'); e(f's_cbranch_scc1 {name}_pw'); p.label(f'{name}_pd')
            t0, t1, t2 = vT, vT + 1, vT + 2
            blk = [f'{name}_pw:', f's_and_b32 {s(sT0)}, {s(sT)}, 7', f's_lshl_b32 {s(sT0)}, {s(sT0)}, 2', f's_add_u32 {s(sT0)}, {s(sT0)}, {s(sW)}',
                   f's_mul_i32 {s(sT1)}, {s(sM)}, 144', f's_mul_i32 {s(sT2)}, {s(sQF)}, 36', f's_add_u32 {s(sT1)}, {s(sT1)}, {s(sT2)}', f's_mul_i32 {s(sT1)}, {s(sT1)}, 9216',
                   f's_mul_i32 {s(sT2)}, {s(sT0)}, {81*128}', f's_add_u32 {s(sT1)}, {s(sT1)}, {s(sT2)}', f's_add_u32 {s(sT1)}, {s(sT1)}, {WT_OFF}',
                   f'v_lshlrev_b32 {v(t0)}, 3, {v(vL16)}', f'v_min_u32 {v(t1)}, {16*128}, {v(t0)}',
                   f'buffer_load_dword {v(vJS2)}, {v(t0)}, {s(SWS,4)}, {s(sT1)} offen', f's_add_u32 {s(sT1)}, {s(sT1)}, 8192',
                   f'buffer_load_dword {v(vJS2)}, {v(t1)}, {s(SWS,4)}, {s(sT1)} offen',
                   f's_mul_i32 {s(sT0)}, {s(sT0)}, 41', f'v_lshrrev_b32 {v(t0)}, 4, {v(vL16)}', f'v_min_u32 {v(t1)}, 40, {v(t0)}', f'v_add_u32 {v(t1)}, {s(sT0)}, {v(t1)}', f'v_min_u32 {v(t1)}, 1295, {v(t1)}',
                   f'v_mul_u32_u24 {v(t2)}, 3641, {v(t1)}', f'v_lshrrev_b32 {v(t2)}, 18, {v(t2)}', f'v_mul_u32_u24 {v(t2)}, {36*1024 - 72*128}, {v(t2)}', f'v_lshl_add_u32 {v(t1)}, {v(t1)}, 7, {v(t2)}',
                   f's_mul_i32 {s(sT1)}, {s(sM)}, 9216', f's_add_u32 {s(sT1)}, {s(sT1)}, {WOT_OFF}',
                   f'buffer_load_dword {v(vJS2)}, {v(t1)}, {s(SWS,4)}, {s(sT1)} offen',
                   f's_lshl_b32 {s(sT0)}, {s(sT)}, 2', f's_add_u32 {s(sT0)}, {s(sT0)}, {s(sQF)}', f's_lshl_b32 {s(sT0)}, {s(sT0)}, 4', f's_lshl_b32 {s(sT1)}, {s(sM)}, 2', f's_add_u32 {s(sT0)}, {s(sT0)}, {s(sT1)}',
                   f's_add_u32 {s(sT0)}, {s(sT0)}, {s(sW)}', f's_mul_i32 {s(sT0)}, {s(sT0)}, {18*128}', f's_add_u32 {s(sT0)}, {s(sT0)}, {PQ_OFF}',
                   f'v_min_u32 {v(t0)}, 17, {v(t0)}', f'v_lshlrev_b32 {v(t0)}, 7, {v(t0)}', f'buffer_load_dword {v(vJS2)}, {v(t0)}, {s(SWS,4)}, {s(sT0)} offen',
                   f's_branch {name}_pd']
            if blk not in slow: slow.append(blk)
        if 'nopull' not in opt and 'lateA' not in opt: sl.fix(8 * 31 + 6, pull, cost=2)
        k = sl.stream(70, atoms(SEC['park'])); assert k < 8 * 33, k
        if stamps and 'floop' in opt:
            for j_, c_ in enumerate((3, 6, 9)): sl.fix(32 * c_ - 2, lambda j_=j_: stamp(28 + j_, True), cost=2)
        if not ov: ov.append(1); print('overflow loop', [sl.over(32*c, 32*c+32) for c in range(9)], file=__import__('sys').stderr)
        interleave(p, mains, sl.f)
    ov = []
    def back():
        e(f's_sub_u32 {s(sCnt)}, {s(sCnt)}, 1'); e(f's_cmp_lg_u32 {s(sCnt)}, 0'); e(f's_cbranch_scc1 {name}_loop')
    p.loop(body, f'{name}_loop', back)
    stamp(6)

    sC, sQK = sM, sQF
    SO, SJ, SA, SP_ = SQ, SJS, SJD, SGt
    free_s = JP + [sKV + k for k in range(6)] + sTB + [sJob, sJo, sLine, sTo, sCr, sSP, sOnes]
    sWd, sWs, sH2a, sH2b, sJs, sJd, sAl, sTl, sHi, sRec, sWo2, sW8, sPq0, sPq1, sPart, sFl, sSel, sT3, sM0p, sRf = free_s[:20]
    sH2 = [sH2a, sH2b]; sHd = free_s[20:24]; sXo = sAl; vPk = vPw
    PARK = [sWs, sM0p, sWd, sH2a, sH2b, sJs, sJd, SJ + 2, SA + 2, sRf, sTl] + sHd
    ACC2 = XV
    big = lambda f: ACC + 4 * f if f < 24 else XV + 72 + 4 * (f - 24)
    vLx = [vL16, vTg, vRS + 1]; vRD = [vT, vT + 1, vT + 2, vT + 3]; vXO2, vX8 = vJS, vJT
    vXD = [vTR, vTR + 4, vRS + 2]; TQ = [vT + 4, vRS2 + 2]
    assert vTR % 4 == 0 and (vRS + 2) % 4 == 0 and (vRS2 + 2) % 4 == 0 and XV + 72 + 52 <= 252
    vCk = 252
    HBs = [JD, JD + 32, XA + 16, XA + 48]; AR = XA + 80
    hb = lambda c, b, ks: HBs[c % 4] + 16 * b + 4 * ks
    WR = [XA + 128 + 4 * k for k in range(8)] + [XA + 4 * k for k in range(4)] + [WF + 4 * k for k in range(6)] + [JD + 68, AR + 44] + \
         [HBs[n] + 4 * k for n in (1, 2, 3, 0) for k in range(8)] + [AR, AR + 4]
    wreg = lambda f: WR[f]
    assert npk[0] == len(PARK)
    def hloads(c):
        out = []
        for b in range(2):
            for ks in range(4): out.append(f'buffer_load_dwordx4 {a(hb(c,b,ks),4)}, {v(vL16)}, {s(SWS,4)}, {s(sH2[b])} offen offset:{1024*ks} sc1')
            out.append(f's_add_u32 {s(sH2[b])}, {s(sH2[b])}, 4096')
        return out
    def sdma(slot, tag):
        return [f's_add_u32 m0, {s(sM0w)}, {slot*16384}'] + \
               [(f'buffer_load_dwordx4 {v(vL16)}, {s(SWS,4)}, {s(sWs)} offen offset:{1024*q} sc1 lds', tag) for q in range(4)] + [f's_add_u32 {s(sWs)}, {s(sWs)}, 16384']
    def wdma(c):
        out = []
        for pc in range(9):
            if pc % 4 == 0: out.append(f's_add_u32 m0, {s(sM0p)}, {(c%4)*SLOT + 4096*(pc//4)}')
            out.append((f'buffer_load_dwordx4 {v(vLx[pc//4])}, {s(SWS,4)}, {s(sWd)} offen offset:{1024*(pc%4)} sc1 lds', f'w{c}'))
        out.append(f's_add_u32 {s(sWd)}, {s(sWd)}, {SLOT}')
        return out
    acc2 = lambda aa, b: ACC2 + 8 * aa + 4 * b
    ar = lambda n, ks: AR + 16 * (n % 3) + 4 * ks
    def ard(n):
        c, aa = divmod(n, 9)
        return [f'ds_read_b128 {a(ar(n,ks),4)}, {v(vRD[c%4])} offset:{ks*9216 + aa*1024}' for ks in range(4)]
    grp = lambda *xs: (lambda: put(list(xs)))
    mains = []; sl = Slots(288 + 648); B0 = 288
    slab(sl, mains, True)
    for n in range(2):
        for k, x in enumerate(ard(n)): sl.fix(8 * (34 + n) + 2 * k + (1 if n == 0 else 0), x)
    for n in range(81):
        c, aa = divmod(n, 9)
        for b in range(2):
            for ks in range(4):
                cc = '0' if (c == 0 and ks == 0) else v(acc2(aa, b), 4)
                mains.append(f'v_mfma_f32_16x16x32_bf16 {v(acc2(aa,b),4)}, {a(ar(n,ks),4)}, {a(hb(c,b,ks),4)}, {cc}')
        if n == 0 or (aa == 8 and c < 8): sl.fix(B0 + 8 * n - 1, lambda n=n, c=c, aa=aa: p.need(a(ar(n, 0), 16), *([a(HBs[c % 4], 32)] if aa == 0 else [])))
        if n < 80 and not (aa == 7 and c < 8): sl.fix(B0 + 8 * n + 6, lambda n=n + 1: p.need(a(ar(n, 0), 16), *([a(HBs[(n // 9) % 4], 32)] if n % 9 == 0 else [])))
        late = 0
        if aa == 7 and c < 8:
            tag = ('slot4', 'slot6', 'slot8x')[c] if c < 3 else f'w{c+1}'
            sl.fix(B0 + 8 * n - 1, lambda tag=tag: p.wait_tag(tag)); sl.fix(B0 + 8 * n, 's_barrier'); late = 1
        if aa == 1 and c <= 5: sl.fix(B0 + 8 * n - 4, 's_barrier')
        if n + 2 < 81:
            for k, x in enumerate(ard(n + 2)): sl.fix(B0 + 8 * n + 2 * k + late, x)
    if stamps: sl.fix(B0 - 1, lambda: stamp(7), cost=2)
    if stamps and 'fine' in opt:
        for c in range(1, 9): sl.fix(B0 + 72 * c - 1, lambda c=c: stamp(15 + c), cost=2)
        for c in (2, 4, 6, 8): sl.fix(32 * c - 1, lambda c=c: stamp(24 + c // 2), cost=2)
    sl.stream(8 * 34 + 1, prod(0, 1) + prod(0, 2) + prod(0, 3), last=287)
    sl.stream(B0, prod(1, 0) + prod(1, 1) + prod(1, 2) + prod(1, 3))
    def srd2(r, ptr): return [f's_mov_b32 {s(r)}, {s(ptr)}', f's_mov_b32 {s(r+1)}, {s(ptr+1)}']
    rl = lambda a_, b_: [f'v_readlane_b32 {s(PARK[n])}, {v(vPk)}, {n}' for n in range(a_, b_)]
    def fins(start, inc, pos):
        k = start
        for b in range(4):
            f = fin(b, inc); k = sl.stream(k, f[:12], last=pos[b] - 1)
            if inc: sl.stream(pos[b] + 1, f[13:])
        return k
    JL = XV; vJo = XV + 32; JS, vJt = XV + 72, XV + 76; vJd, vHe = vRS + 2, vRS + 3
    vPd, vPn, vPa = vRS + 2, vTg, vRS + 1
    vCd, vCa, vCn = vCk, vCk + 2, vCk + 3
    REC = lambda tl, pc: big(3 * tl + pc)
    PQ = lambda b, g: big(27 + 5 * b + g)
    pollA = f'buffer_load_dwordx2 {v(vPd,2)}, {v(vPa)}, {s(SWS,4)}, 0 offen sc1'
    sl.stream(14, [f'v_lshlrev_b32 {v(vPa)}, 3, v0', f'v_add_u32 {v(vPa)}, {PROG_OFF}, {v(vPa)}'], cap=3)
    pos = []
    st = [fin(b, None)[12] for b in range(4)]
    fd = lambda t: [x for x in ffn_dma(t) if x]
    sl.spread(17, 79, [pollA] + fd(7)[:3] + [st[0]] + fd(7)[3:] + [st[1]] + fd(8)[:3] + [st[2]] + fd(8)[3:-1] + [st[3]], pos)
    fins(16, sIncL, [pos[3], pos[6], pos[9], pos[12]])
    if 'nochkA' not in opt: sl.fix(8 * 10 - 4, check(name + '_ca', vPd, v(vPn), pollA), cost=2)
    k = sl.stream(18, [f'v_and_b32 {v(vPn)}, 3, v0', f'v_min_u32 {v(vPn)}, 1, {v(vPn)}', f'v_lshl_add_u32 {v(vPn)}, {v(vPn)}, 1, 1',
                       f'v_add_u32 {v(vPn)}, {s(sN+1)}, {v(vPn)}'] + rl(0, 8) + srd2(SJ, SWS) + rl(10, 11), last=75)
    jobs0 = [f'v_and_b32 {v(vHe)}, 15, v0', f'v_bfe_u32 {v(vJd)}, v0, 4, 2', f'v_mul_u32_u24 {v(vJo)}, {8*18*1024}, {v(vJd)}', f'v_lshl_add_u32 {v(vJo)}, {v(vHe)}, 4, {v(vJo)}',
             f'v_lshlrev_b32 {v(vJd)}, 28, {v(vJd)}', f'v_lshl_add_u32 {v(vJd)}, {v(vHe)}, 4, {v(vJd)}',
             f'v_add_u32 {v(vHe)}, {s(sTl)}, {v(vHe)}', f'v_mul_u32_u24 {v(vHe)}, 3641, {v(vHe)}', f'v_lshrrev_b32 {v(vHe)}, 16, {v(vHe)}']
    jobl = []
    for k in range(8):
        jobl += [f'buffer_load_dwordx4 {v(JL+4*k,4)}, {v(vJo)}, {s(SJ,4)}, {s(sJs)} offen sc1', f's_add_u32 {s(sJs)}, {s(sJs)}, {4*8*18*1024}']
    hl = hloads(0) + hloads(1)
    sl.spread(81, 112, sdma(0, 'slot0') + sdma(1, 'slot1'))
    k = sl.stream(96, jobs0); assert k < 112
    sl.spread(113, 144, sdma(2, 'slot2') + jobl[:8]); sl.spread(145, 176, sdma(3, 'slot3') + jobl[8:])
    sl.spread(177, 208, sdma(4, 'slot4') + hl[:5]); sl.spread(209, 240, sdma(5, 'slot5') + hl[5:10])
    sl.spread(241, 271, sdma(6, 'slot6') + progress + hl[10:15])
    sl.spread(273, 287, sdma(7, 'slot7'))
    k = sl.stream(113, rl(8, 10) + rl(11, 15) + [f'v_add_u32 {v(vRD[n])}, {n*SLOT}, {v(vL16)}' for n in range(4)] + [f'v_add_u32 {v(vLx[1])}, 4096, {v(vL16)}', f'v_add_u32 {v(vLx[2])}, 8192, {v(vL16)}'])
    tA, tB = sT1, sT2
    k = sl.stream(k, srd2(SX, sXp) + [f's_mov_b32 {s(SX+2)}, {S*D*2}'] + srd2(SO, sOp) + [f's_mov_b32 {s(SO+2)}, {S*D*2}'] + srd2(SP_, SWS) +
                  [f's_lshl_b32 {s(tA)}, {s(sT)}, 2', f's_add_u32 {s(tA)}, {s(tA)}, {s(sQF)}', f's_mul_i32 {s(sXo)}, {s(tA)}, {32*1152}', f's_mul_i32 {s(tB)}, {s(sM)}, 288', f's_add_u32 {s(sXo)}, {s(sXo)}, {s(tB)}',
                   f's_mul_i32 {s(tA)}, {s(tA)}, 36', f's_mul_i32 {s(tB)}, {s(sW)}, 9', f's_lshr_b32 {s(tB)}, {s(tB)}, 1', f's_add_u32 {s(tA)}, {s(tA)}, {s(tB)}', f's_lshl_b32 {s(tA)}, {s(tA)}, 10',
                   f's_add_u32 {s(sPq0)}, {s(tA)}, {PQ_OFF}', f's_add_u32 {s(sPq1)}, {s(sPq0)}, {18*1024}',
                   f's_mul_i32 {s(sRec)}, {s(sW)}, {9*3072}', f's_add_u32 {s(sRec)}, {s(sRec)}, {REC_OFF}'])
    setup4 = [f'v_and_b32 {v(vXO2)}, 31, v0', f'v_mul_u32_u24 {v(vXO2)}, 1152, {v(vXO2)}', f'v_bfe_u32 {v(vX8)}, v0, 5, 1', f'v_lshl_add_u32 {v(vXO2)}, {v(vX8)}, 4, {v(vXO2)}',
              f'v_add_u32 {v(vX8)}, {s(sXo)}, {v(vXO2)}', f's_lshl_b32 {s(tA)}, {s(sW)}, 5', f'v_add_u32 {v(vXO2)}, {s(tA)}, {v(vX8)}',
              f's_mul_i32 {s(tB)}, {s(sM)}, {9*1024}', f's_add_u32 {s(sW8)}, {s(tB)}, {WOT_OFF + 8192}', f's_lshl_b32 {s(tA)}, {s(sW)}, 10', f's_add_u32 {s(tB)}, {s(tB)}, {s(tA)}', f's_add_u32 {s(sWo2)}, {s(tB)}, {WOT_OFF}',
              f's_and_b32 {s(tA)}, s2, 0xfc', f's_add_u32 {s(tA)}, {s(tA)}, {s(sW)}', f's_lshl_b32 {s(tB)}, {s(tA)}, 4', f's_add_u32 {s(tB)}, {s(tB)}, {s(sQF)}', f's_lshl_b32 {s(tB)}, {s(tB)}, 3', f's_add_u32 {s(sFl)}, {s(tB)}, {FLAG_OFF}',
              f's_lshl_b32 {s(tA)}, {s(tA)}, 2', f's_add_u32 {s(tA)}, {s(tA)}, {s(sQF)}', f's_mul_i32 {s(tA)}, {s(tA)}, 9216', f's_add_u32 {s(sPart)}, {s(tA)}, {PART_OFF}',
              grp(f's_cmp_eq_u32 {s(sW)}, {s(sQF)}', f's_cselect_b32 {s(SP_+2)}, 0, {STAMP_OFF}'), f's_add_u32 {s(sSel)}, {s(sQF)}, 1', f's_and_b32 {s(sSel)}, {s(sSel)}, 3']
    assert k < 222, k
    jobv = []
    for k in range(1, 8):
        jobv += [f'v_add_f32 {v(JS+r)}, {v((JL if k == 1 else JS)+r)}, {v(JL+4*k+r)}' for r in range(4)]
    kj = sl.stream(222, jobv); assert kj < B0 - 2, kj
    pollC = f'buffer_load_dwordx2 {v(vCd,2)}, {v(vCa)}, {s(SWS,4)}, {s(sPc)} offen sc1'
    k = sl.stream(256, [f'v_and_b32 {v(vCn)}, 3, v0', f'v_max_u32 {v(vCa)}, 1, {v(vCn)}', f'v_lshlrev_b32 {v(vCa)}, 3, {v(vCa)}']); assert k < B0
    pos = []; h2 = hloads(2); s8 = sdma(8, 'slot8x')[:-1]
    sl.spread(B0 + 1, B0 + 71, hl[15:20] + s8[:3] + [pollC] + s8[3:] + [st[0]] + h2[:3] + [st[1]] + h2[3:7] + [st[2]] + h2[7:] + [st[3]], pos)
    kf = fins(B0 + 10, None, [pos[9], pos[13], pos[17], pos[20]])
    jobv = []
    for sw in ('v_permlane32_swap_b32', 'v_permlane16_swap_b32'):
        jobv += [f'v_mov_b32 {v(vJt+r)}, {v(JS+r)}' for r in range(4)]
        jobv += [f'{sw} {v(vJt+r)}, {v(JS+r)}' for r in range(4)]
        jobv += [f'v_add_f32 {v(JS+r)}, {v(JS+r)}, {v(vJt+r)}' for r in range(4)]
    recst = (f'buffer_store_dwordx2 {v(JS,2)}, {v(vJd)}, {s(SA,4)}, {s(sJd)} offen sc1', 'rec')
    vRf = XV + 80
    recfl = f'buffer_store_dwordx2 {v(vRf,2)}, {v(vP0)}, {s(SA,4)}, {s(sRf)} offen sc1'
    xl = [f'buffer_load_dwordx4 {v(vXD[0],4)}, {v(vXO2)}, {s(SX,4)}, 0 offen', f'buffer_load_dwordx4 {v(vXD[1],4)}, {v(vXO2)}, {s(SX,4)}, 0 offen offset:128',
          f'buffer_load_dwordx4 {v(vXD[2],4)}, {v(vX8)}, {s(SX,4)}, 0 offen offset:256']
    chkB = grp(f's_add_u32 {s(sT0)}, {s(sN+1)}, 5', check(name + '_cb', vCd, s(sT0), pollC))
    for c in range(1, 6):
        pos = []
        mid = {1: [chkB], 4: [check(name + '_cc', vCd, v(vCn), pollC)]}.get(c, [])
        end = {1: [recst], 3: [pollC]}.get(c, [])
        sl.spread(B0 + 72 * c + 5, B0 + 72 * c + 71, wdma(c + 3) + mid + hloads(c + 2) + end, pos)
        if c == 1: krec = pos[-1]
    k = sl.stream(max(kj, kf), jobv)
    for r in range(4):
        k = sl.stream(max(k, B0 + 72 + 40), [f'v_cmp_eq_u32 vcc, {s(sHd[r])}, {v(vHe)}'])
        k = sl.stream(k + 1, [f'v_cndmask_b32 {v(JS+r)}, 0, {v(JS+r)}, vcc'])
    k = sl.stream(k, [f'v_cvt_pk_bf16_f32 {v(JS)}, {v(JS)}, {v(JS+1)}', f'v_cvt_pk_bf16_f32 {v(JS+1)}, {v(JS+2)}, {v(JS+3)}']); assert k < krec, (k, krec)
    k = sl.stream(B0 + 72 * 2, [f'v_mov_b32 {v(vRf)}, {s(sN)}', f'v_mov_b32 {v(vRf+1)}, {s(sN+1)}',
                                f'v_lshlrev_b32 {v(vCa)}, 3, {v(vCn)}', f'v_min_u32 {v(vCn)}, 1, {v(vCn)}', f'v_lshl_add_u32 {v(vCn)}, {v(vCn)}, 1, 4', f'v_add_u32 {v(vCn)}, {s(sN+1)}, {v(vCn)}'])
    k = sl.stream(k, setup4); assert k < B0 + 72 * 5, k
    sl.fix(B0 + 8 * (18 + 7) - 3, lambda: p.wait_tag('h')); sl.stream(B0 + 8 * (18 + 7) + 2, progress, cap=3)
    sl.fix(B0 + 8 * (27 + 1) - 5, lambda: p.wait_tag('rec')); sl.stream(B0 + 8 * (27 + 1) - 3, [recfl], cap=4)
    def wload(f):
        pc, g = divmod(f, 18)
        return [f's_add_u32 {s(sT2)}, {s(sWo2 if pc < 2 else sW8)}, {g*36*1024 + (4096 if pc == 1 else 0)}', f'buffer_load_dwordx4 {a(wreg(f),4)}, {v(vL16)}, {s(SWS,4)}, {s(sT2)} offen sc1']
    pql = [f'buffer_load_dwordx4 {v(PQ(b,g),4)}, {v(vLx[g//4])}, {s(SWS,4)}, {s(sPq0 if b == 0 else sPq1)} offen offset:{1024*(g%4)} sc1' for b in range(2) for g in range(5)]
    pollR = f'buffer_load_dwordx2 {v(vCd,2)}, {v(vCa)}, {s(SWS,4)}, {s(sT3)} offen sc1'
    k0 = B0 + 72 * 6
    kk = sl.stream(k0 - 30, [f'v_and_b32 {v(vCa)}, 63, v0', f'v_min_u32 {v(vCa)}, 53, {v(vCa)}', f'v_lshlrev_b32 {v(vCa)}, 3, {v(vCa)}', f's_mul_i32 {s(sT3)}, {s(sW)}, {54*8}',
                            f's_add_u32 {s(sT3)}, {s(sT3)}, {RECF_OFF}'])
    assert kk < k0
    sl.spread(k0, k0 + 71, [pollR] + hloads(8) + pql)
    if 'nochkR' not in opt: sl.fix(k0 + 64, check(name + '_cr', vCd, s(sN+1), pollR), cost=2)
    recl = []
    for f in range(27):
        if f % 12 == 0 and f: recl.append(f's_add_u32 {s(sRec)}, {s(sRec)}, 12288')
        recl.append(f'buffer_load_dwordx4 {v(big(f),4)}, {v(vLx[(f%12)//4])}, {s(SWS,4)}, {s(sRec)} offen offset:{1024*(f%4)} sc1')
    def pub(aa):
        o = acc2(aa, 0); t = TQ[aa & 1]
        return [f'v_cvt_pk_bf16_f32 {v(t+d)}, {v(o+2*d)}, {v(o+2*d+1)}' for d in range(4)] + \
               [(f'buffer_store_dwordx4 {v(t,4)}, {v(vLx[aa//4])}, {s(SP_,4)}, {s(sPart)} offen offset:{1024*(aa%4)} sc1', 'pub')]
    for aa in range(8):
        ks_ = k0 + 144 + (max(39 + 4 * aa, 8 * aa + 15) if 'publate' in opt else 8 * aa + 15); sl.fix(ks_, pub(aa)[4]); sl.stream(ks_ - 4, pub(aa)[:4], last=ks_ - 1)
    sF2, sOw, sPw = sJs, sJd, sRf; sPe = [sWs, sWd, sH2a, sH2b]
    kk = sl.stream(k0 + 74, [f'v_and_b32 {v(vCa)}, 3, v0', f'v_cmp_eq_u32 vcc, {s(sQK)}, {v(vCa)}', f'v_mov_b32 {v(vCn)}, {s(sSel)}', f's_lshl_b32 {s(sF2)}, s2, 7',
                             f'v_cndmask_b32 {v(vCa)}, {v(vCa)}, {v(vCn)}, vcc', f'v_lshlrev_b32 {v(vCa)}, 3, {v(vCa)}', f's_add_u32 {s(sF2)}, {s(sF2)}, {FLAG_OFF}',
                             f's_mul_i32 {s(sOw)}, {s(sW)}, 9', f's_lshr_b32 {s(sOw)}, {s(sOw)}, 1', f's_lshl_b32 {s(sOw)}, {s(sOw)}, 10', f's_lshl_b32 {s(sPw)}, {s(sW)}, 10',
                             f's_mul_i32 {s(sPe[3])}, s2, {4*9216}', f's_add_u32 {s(sPe[3])}, {s(sPe[3])}, {PART_OFF}'] +
                   [x for q in range(3) for x in (f's_add_u32 {s(sT1)}, {s(sQK)}, {q+1}', f's_and_b32 {s(sT1)}, {s(sT1)}, 3', f's_mul_i32 {s(sT1)}, {s(sT1)}, 9216', f's_add_u32 {s(sPe[q])}, {s(sT1)}, {s(sPe[3])}')] +
                   [f's_mov_b32 {s(sHi)}, 0xffff0000', f's_mov_b32 {s(sHd[0])}, 0x3f80', f's_mov_b32 {s(sHd[1])}, 0x3f800000', f's_mov_b32 {s(sEps)}, {fhex(-LOG2E)}', f's_mov_b32 {s(sEps+1)}, {fhex(-LOG2E)}'])
    nr = 20 if 'r20' in opt else 18
    sl.spread(k0 + 72, k0 + 143, recl[:nr + 1]); sl.spread(k0 + 144, k0 + 144 + (37 if 'publate' in opt else 71), recl[nr + 1:] + xl)
    print('overflow peeled', [sl.over(32*c, 32*c+32) for c in range(9)], 'p2', [sl.over(B0+72*c, B0+72*c+72) for c in range(9)], file=__import__('sys').stderr)
    interleave(p, mains, sl.f)
    put(pub(8))
    stamp(8)
    e(f's_cmp_lg_u32 {s(sW)}, {s(sQK)}'); e(f's_cbranch_scc1 {name}_att')
    for u in range(18): p.raw(f'ds_write_b128 {v(vRD[2])}, {v(ACC2+4*u,4)} offset:{1024*u}')
    p.raw('s_waitcnt lgkmcnt(0)')
    p.label(f'{name}_att')
    vEp = TQ[1]; tq = TQ[0]
    for r in range(4): e(f'v_mov_b32 {v(vEp+r)}, {fhex(1e-6)}')
    ND = lambda tl, b, z: ACC2 + 16 * (tl % 3) + 8 * b + 4 * z
    OH = lambda tl, b: ACC2 + 48 + 4 * (tl % 2) + 2 * b
    vOW, vPa0, vPa1, vOa = ACC2 + 56, ACC2 + 57, ACC2 + 58, ACC2 + 59
    e(f'v_add_u32 {v(vOW)}, {s(sOw)}, {v(vRD[1])}')
    pollF = f'buffer_load_dwordx2 {v(vCd,2)}, {v(vCa)}, {s(SWS,4)}, {s(sF2)} offen sc1'
    misc0 = [f'v_and_b32 {v(tq+2)}, 63, v0', f'v_min_u32 {v(tq+2)}, 1, {v(tq+2)}', f'v_lshlrev_b32 {v(tq+2)}, 30, {v(tq+2)}', f'v_mov_b32 {v(tq)}, {s(sN)}', f'v_mov_b32 {v(tq+1)}, {s(sN+1)}',
             f'v_add_u32 {v(vPa0)}, {s(sPw)}, {v(vL16)}', f'v_add_u32 {v(vPa1)}, {s(sPw)}, {v(vLx[1])}', f'v_add_u32 {v(vOa)}, {s(sPw)}, {v(vRD[2])}', f'v_add_u32 {v(vOa)}, {s(sPw)}, {v(vOa)}']
    SIG = int(next((o[3:] for o in opt if o.startswith('sig')), 6))
    e(f's_and_b32 {s(sT0)}, {s(sW)}, 1'); e(f's_cmp_eq_u32 {s(sT0)}, 1'); e(f's_cbranch_scc1 {name}_oodd')
    st1 = p.snapshot()
    for par in range(2):
        if par:
            p.label(f'{name}_oodd'); p.restore(st1)
        late = [wload(f) for f in range(36)]; misc = list(misc0)
        if 'nowl' in opt: lateq, late = late, []
        for step in range(11):
            m32, m16, va = [], [], []
            tl = step
            if tl < 9:
                gl = (tl + par) >> 1
                for b in range(2):
                    m32.append(f'v_mfma_f32_16x16x32_bf16 {v(ND(tl,b,0),4)}, {v(REC(tl,0),4)}, {v(PQ(b,gl),4)}, 0')
                    m32.append(f'v_mfma_f32_16x16x32_bf16 {v(ND(tl,b,1),4)}, {v(REC(tl,1),4)}, {v(PQ(b,gl),4)}, {v(vEp,4)}')
            tl = step - 1
            if 0 <= tl < 9:
                gl = (tl + par) >> 1; odd = (tl + par) & 1
                gs = gl + 1 if odd else gl - 1
                if not 0 <= gs <= 4: gs = gl
                for b in range(2):
                    half = v(PQ(b, gs) + (0 if odd else 2), 2)
                    m16.append(f'v_mfma_f32_16x16x16_bf16 {v(ND(tl,b,0),4)}, {v(REC(tl,2),2)}, {half}, {v(ND(tl,b,0),4)}')
                    m16.append(f'v_mfma_f32_16x16x16_bf16 {v(ND(tl,b,1),4)}, {v(REC(tl,2)+2,2)}, {half}, {v(ND(tl,b,1),4)}')
            tl = step - 2
            if 0 <= tl < 9:
                for b in range(2): va += [f'v_rcp_f32 {v(ND(tl,b,1)+r)}, {v(ND(tl,b,1)+r)}' for r in (0, 2)]
                for b in range(2):
                    va += [f'v_mul_f32 {v(ND(tl,b,0)+r)}, {v(ND(tl,b,0)+r)}, {v(ND(tl,b,1)+(r&2))}' for r in range(4)]
                    va += [f'v_cvt_pk_bf16_f32 {v(OH(tl,b) + d)}, {v(ND(tl,b,0)+2*d)}, {v(ND(tl,b,0)+2*d+1)}' for d in range(2)]
                    va += [f'ds_write_b64 {v(vOW)}, {v(OH(tl,b),2)} offset:{b*18432 + ((tl+par)>>1)*1024 + ((tl+par)&1)*8}']
            else: va, misc = misc[:20], misc[20:]
            if 'ofine' in opt and step in (2, 4, 6, 8, 10): vS0_ = 1; stamp(15 + step // 2)
            if step == SIG:
                p.wait_tag('pub'); e(f'buffer_store_dwordx2 {v(tq,2)}, {v(tq+2)}, {s(SP_,4)}, {s(sFl)} offen sc1')
            if step == 10: e(pollF)
            mm = m32 + m16
            per = -(-len(va) // max(len(mm) - 1, 1))
            for i_, x in enumerate(mm):
                e(x)
                if late and len(p.vmq) < p.vm_limit - 2 and i_ % 2 == 0: put(late.pop(0))
                if i_ == 0 and len(mm) > 4: continue
                for y in va[:per]: e(y)
                va = va[per:]
            for y in va: e(y)
        if 'nowl' in opt:
            stamp(21)
            for x in lateq: put(x)
        assert not late and not misc
        if par == 0:
            stE = p.snapshot(); e(f's_branch {name}_odone')
        else: assert p.snapshot() == stE
    p.label(f'{name}_odone')
    stamp(9)
    p.wait_lg(0); e('s_barrier')
    OF = lambda b, g: big(18 * b + g)
    SS = lambda pc: ACC2 + 8 * pc
    DD = lambda pc: ACC2 + 24 + 8 * pc
    for g in range(9):
        for b in range(2): e(f'ds_read_b128 {v(OF(b,g),4)}, {v(vRD[1])} offset:{b*18432 + g*1024}')
    check(f'{name}_cf', vCd, s(sN+1), pollF)()
    stamp(10)
    PV_ = [ACC2 + 60, ACC2 + 64, ACC2 + 68, ACC2 + 48, ACC2 + 52, big(36)]
    for pc in range(2):
        for q in range(3): e(f'buffer_load_dwordx4 {v(PV_[3*pc+q],4)}, {v((vPa0, vPa1)[pc])}, {s(SWS,4)}, {s(sPe[q])} offen sc1')
    for g in range(9, 18):
        for b in range(2): e(f'ds_read_b128 {v(OF(b,g),4)}, {v(vRD[1])} offset:{b*18432 + g*1024}')
    e(f's_cmp_eq_u32 {s(sW)}, {s(sSel)}'); e(f's_cbranch_scc1 {name}_three')
    st2 = p.snapshot()
    for npc in (2, 3):
        if npc == 3:
            p.label(f'{name}_three'); p.restore(st2)
        PE = lambda q: AR + 8 + 4 * q
        late = [wload(f) for f in range(36, 54)] + [[f'buffer_load_dwordx4 {a(PE(q),4)}, {v(vLx[2])}, {s(SWS,4)}, {s(sPe[q])} offen sc1'] for q in range(3)] if npc == 3 else []
        own = [f'ds_read_b128 {v(DD(pc)+4*b,4)}, {v(vOa) if pc < 2 else v(vRD[2])} offset:{8192*pc + 1024*b}' for pc in range(npc) for b in range(2)]
        for pc in range(npc):
            for b in range(2):
                for g in range(18):
                    e(f'v_mfma_f32_16x16x32_bf16 {v(SS(pc)+4*b,4)}, {a(wreg(18*pc+g),4)}, {v(OF(b,g),4)}, {"0" if g == 0 else v(SS(pc)+4*b,4)}')
                    if late and g % 2 == 0: put(late.pop(0))
                    elif pc == 0 and b == 1 and own: e(own.pop(0))
        stamp(11)
        X = ACC; G = ACC + 24; O = ACC + 40; U = ACC + 56
        for pc in range(npc):
            for d in range(4):
                e(f'v_lshlrev_b32 {v(X+8*pc+2*d)}, 16, {v(vXD[pc]+d)}'); e(f'v_and_b32 {v(X+8*pc+2*d+1)}, {s(sHi)}, {v(vXD[pc]+d)}')
        for pc in range(npc):
            for q in range(3):
                src = PV_[3 * pc + q] if pc < 2 else U + 4 * q
                if pc == 2:
                    for d in range(4): e(f'v_accvgpr_read_b32 {v(src+d)}, {a(PE(q)+d)}')
                for d in range(4):
                    for hh in range(2): e(f'v_dot2_f32_bf16 {v(DD(pc)+2*d+hh)}, {v(src+d)}, {s(sHd[hh])}, {v(DD(pc)+2*d+hh)}')
            for k in range(0, 8, 2): e(f'v_pk_mul_f32 {v(G+k,2)}, {v(DD(pc)+k,2)}, {s(sEps,2)}')
            for k in range(8): e(f'v_exp_f32 {v(G+k)}, {v(G+k)}')
            for k in range(0, 8, 2): e(f'v_pk_mul_f32 {v(DD(pc)+k,2)}, {v(DD(pc)+k,2)}, {v(SS(pc)+k,2)}')
            for k in range(0, 8, 2): e(f'v_pk_add_f32 {v(G+k,2)}, {v(G+k,2)}, 1.0 op_sel_hi:[1,0]')
            for k in range(8): e(f'v_rcp_f32 {v(G+k)}, {v(G+k)}')
            for k in range(0, 8, 2): e(f'v_pk_mul_f32 {v(G+k,2)}, {v(G+k,2)}, {v(DD(pc)+k,2)}')
            for r in range(4): e(f'v_permlane16_swap_b32 {v(G+r)}, {v(G+4+r)}')
            for k in range(0, 8, 2): e(f'v_pk_add_f32 {v(G+k,2)}, {v(G+k,2)}, {v(X+8*pc+k,2)}')
            for d in range(4): e(f'v_cvt_pk_bf16_f32 {v(O+4*pc+d)}, {v(G+2*d)}, {v(G+2*d+1)}')
            e(f'buffer_store_dwordx4 {v(O+4*pc,4)}, {v(vXO2) if pc < 2 else v(vX8)}, {s(SO,4)}, 0 offen offset:{128*pc}')
        if stamps: p.wait_all()
        stamp(12)
        e(f's_branch {END}')
    for blk in slow:
        for x in blk: p.raw(x)
    p.label(END)
    return p, V.nxt, A.nxt, NXV
```

```python
from asmlib import *
from layout2 import *

LOG2E = 1.4426950408889634
def fhex(x):
    import struct
    return '0x%08x' % struct.unpack('<I', struct.pack('<f', x))[0]

SP0 = 147456
STX = 98304
CH = 64 * 9216

SLOT = 36864
SPIN = 20000
SALT = 0x5bd1e990

def gen(name, stamps=False, opt=()):
    p = Prog(); cap = [None]
    def e(text, tag=None, junk=False):
        if cap[0] is not None: cap[0].append((text, tag, junk))
        else: p.e(text, tag, junk)
    V = Alloc('v', 1, 256); A = Alloc('a', 0, 256); SG = Alloc('s', 56, 100)
    SX, SQ, SGt, SU, SWS, SH, SJS, SJD = 4, 8, 12, 16, 20, 24, 28, 32
    KA = 36
    sW, sI, sJ, sT, sQF, sM = (SG.get(n) for n in ('w', 'i', 'j', 't', 'qf', 'm'))
    sWo, sCnt, sM0w, sJob, sJo, sT0, sT1, sT2 = (SG.get(n) for n in ('wo', 'cnt', 'm0w', 'job', 'jo', 't0', 't1', 't2'))
    sH = SG.get('h', 4, 1); sKV = SG.get('kv', 6, 1); sSP = SG.get('sp'); sLine = SG.get('line'); sKm = SG.get('km'); sTo = SG.get('to')
    mk = [SG.get(f'mk{k}', 2) for k in range(4)]
    sSt = SG.get('st', 2); sStO = SG.get('sto'); sOnes = SG.get('ones')
    JP = [36, 37, 38, 39, 42, 43, 44, 45, 46, 47, 50, 51]
    sXp, sN, sDbg, sOp = 100, 48, 52, 54
    sInc, sIncL, sPg, sPc, sCr, sSpin = mk[0], mk[0] + 1, mk[1], mk[1] + 1, mk[2], mk[2] + 1
    sEps = mk[3]
    vJS = V.get('js'); vJT = V.get('jt'); vTg = V.get('tg')
    ACC = V.get('acc', 64); PR = V.get('prod', 32)
    vTR = V.get('tr', 6, 1); vDM = V.get('dm', 2, 1); vL16 = V.get('l16'); vJS2 = V.get('spare'); vRS = V.get('rs', 4, 2); vRS2 = V.get('rs2', 4, 2)
    vTj = V.get('tj'); vS0 = V.get('s0'); vT = V.get('tmp', 8, 4); vS1 = vT + 7
    NXV = (256 - V.nxt) // 4
    XV = V.get('xv', 4 * NXV)
    WF = A.get('wf', 24); XA = A.get('xa', 4 * (72 - NXV)); JD = A.get('jd', 64)
    fidx = lambda b, ks: 2 * ks + b if b < 2 else 36 + 2 * ks + b - 2
    def xf(b, ks):
        f = fidx(b, ks)
        return v(XV + 4 * f, 4) if f < NXV else a(XA + 4 * (f - NXV), 4)
    def xf_isv(b, ks): return fidx(b, ks) < NXV
    nstamp = [0]
    def stamp(k=None, dyn=False):
        if not stamps: return
        if k is None:
            k = nstamp[0]; nstamp[0] += 1
        p.wait_lg(0)
        if k == 0:
            for n_, r_ in ((29, v(T[61])), (30, v(T[61])), (31, 's3'), (15, v(T[60]))):
                e(f'v_mov_b32 {v(vS0)}, {r_}'); e(f'v_mov_b32 {v(vS1)}, {4*n_}'); e(f'buffer_store_dword {v(vS0)}, {v(vS1)}, {s(SWS,4)}, {s(sStO)} offen')
        e(f's_memrealtime {s(sSt,2)}'); p.wait_lg(0)
        e(f'v_mov_b32 {v(vS0)}, {s(sSt)}'); e(f'v_mov_b32 {v(vS1)}, {4*k}')
        if dyn: e(f'v_mov_b32 {v(vS1)}, {s(sCnt)}'); e(f'v_mul_u32_u24 {v(vS1)}, 12, {v(vS1)}'); e(f'v_sub_u32 {v(vS1)}, {4*k}, {v(vS1)}')
        e(f'buffer_store_dword {v(vS0)}, {v(vS1)}, {s(SWS,4)}, {s(sStO)} offen')
        e(f's_memtime {s(sSt,2)}'); p.wait_lg(0)
        e(f'v_mov_b32 {v(vS0)}, {s(sSt)}')
        e(f'buffer_store_dword {v(vS0)}, {v(vS1)}, {s(SWS,4)}, {s(sStO)} offen offset:128')

    END = f'{name}_end'
    if stamps: p.raw('s_memrealtime s[98:99]')
    e('s_cmp_ge_u32 s2, 256'); e(f's_cbranch_scc1 {END}')
    e(f's_load_dwordx8 {s(KA,8)}, s[0:1], 0'); e(f's_load_dwordx8 {s(KA+8,8)}, s[0:1], 32'); e(f's_load_dwordx4 {s(KA+16,4)}, s[0:1], 64')
    T = [ACC + 32 + k for k in range(32)] + [PR + k for k in range(32)]
    vLane, vL3, vL4, vC7, vN, vI2, vB = T[0:7]
    vXO = T[8:12]; vXR = T[12:16]; vTL, vU = T[19], T[20]
    e(f'v_lshrrev_b32 {v(vB)}, 6, v0'); e(f'v_and_b32 {v(vLane)}, 63, v0')
    e(f'v_readfirstlane_b32 {s(sW)}, {v(vB)}')
    if 'nocode' not in opt:
        p.raw(f's_getpc_b64 {s(sSt,2)}'); p.label(f'{name}_pc')
        e(f's_lshr_b32 {s(sT1)}, s2, 3'); e(f's_lshl_b32 {s(sT1)}, {s(sT1)}, 2'); e(f'v_add_u32 {v(vB)}, {s(sT1)}, {v(vB)}'); e(f'v_mul_u32_u24 {v(vB)}, 5, {v(vB)}')
        e(f'v_min_u32 {v(vI2)}, 4, {v(vLane)}'); e(f'v_add_u32 {v(vB)}, {v(vB)}, {v(vI2)}'); e(f'v_lshlrev_b32 {v(vB)}, 7, {v(vB)}')
        e(f'v_min_u32 {v(vB)}, code_end - {name}_pc - 4, {v(vB)}')
        e(f'global_load_dword {v(vJS2)}, {v(vB)}, {s(sSt,2)}', junk=True)
    e(f'v_lshrrev_b32 {v(vL3)}, 3, {v(vLane)}'); e(f'v_lshrrev_b32 {v(vL4)}, 4, {v(vLane)}'); e(f'v_and_b32 {v(vC7)}, 7, {v(vLane)}')
    e(f'v_and_b32 {v(vN)}, 15, {v(vLane)}'); e(f'v_lshlrev_b32 {v(vL16)}, 4, {v(vLane)}')
    e(f's_and_b32 {s(sQF)}, s2, 3'); e(f's_bfe_u32 {s(sT0)}, s2, 0x10002'); e(f's_lshr_b32 {s(sT1)}, s2, 5')
    e(f's_lshl_b32 {s(sT0)}, {s(sT0)}, 3'); e(f's_add_u32 {s(sT)}, {s(sT0)}, {s(sT1)}'); e(f's_bfe_u32 {s(sM)}, s2, 0x20003')
    e(f's_lshr_b32 {s(sI)}, {s(sW)}, 1'); e(f's_and_b32 {s(sJ)}, {s(sW)}, 1')
    e(f's_lshl_b32 {s(sM0w)}, {s(sW)}, 12'); e(f's_add_u32 {s(sSP)}, {s(sM0w)}, {SP0}')
    e(f's_lshl_b32 {s(sT0)}, {s(sW)}, 5'); e(f'v_add_u32 {v(vB)}, {s(sT0)}, {v(vL3)}'); e(f'v_mul_u32_u24 {v(vB)}, 1152, {v(vB)}')
    for q in range(4):
        e(f'v_or_b32 {v(vI2)}, {4*(q&1)}, {v(vL4)}'); e(f'v_xor_b32 {v(vI2)}, {v(vI2)}, {v(vC7)}')
        e(f'v_lshl_add_u32 {v(vXO[q])}, {v(vI2)}, 4, {v(vB)}')
        if q: e(f'v_add_u32 {v(vXO[q])}, {8192*q}, {v(vXO[q])}')
    e(f's_mul_i32 s3, {s(sT)}, {128*1152}')
    e(f's_lshl_b32 {s(sT0)}, {s(sQF)}, 4'); e(f's_lshl_b32 {s(sT1)}, {s(sM)}, 2'); e(f's_add_u32 {s(sT0)}, {s(sT0)}, {s(sT1)}'); e(f's_add_u32 {s(sT0)}, {s(sT0)}, {s(sW)}')
    e(f's_mul_i32 {s(sT0)}, {s(sT0)}, 18'); e(f'v_min_u32 {v(vB)}, 17, {v(vLane)}'); e(f'v_add_u32 {v(vB)}, {s(sT0)}, {v(vB)}'); e(f'v_lshlrev_b32 {v(vB)}, 7, {v(vB)}')
    if stamps: p.raw(f's_memrealtime {s(sSt,2)}')
    p.wait_lg(0)
    if stamps: p.raw(f'v_mov_b32 {v(T[60])}, s98'); p.raw(f'v_mov_b32 {v(T[61])}, {s(sSt)}')
    def srd(r, ptr, nbytes, back=0):
        if back:
            e(f's_sub_u32 {s(r)}, {s(ptr)}, {back}'); e(f's_subb_u32 {s(r+1)}, {s(ptr+1)}, 0')
        else:
            e(f's_mov_b32 {s(r)}, {s(ptr)}'); e(f's_mov_b32 {s(r+1)}, {s(ptr+1)}')
        e(f's_mov_b32 {s(r+2)}, {nbytes + back}'); e(f's_mov_b32 {s(r+3)}, 0x20000')
    slow = []
    e('s_cmp_eq_u32 s2, 0'); e(f's_cbranch_scc1 {name}_nw'); p.label(f'{name}_nn')
    slow.append([f'{name}_nw:', f's_memrealtime {s(sSt,2)}', 's_waitcnt lgkmcnt(0)', f's_lshl_b32 {s(sT1)}, {s(sSt+1)}, 4', f's_xor_b32 {s(sT1)}, {s(sT1)}, {SALT}', f's_or_b32 {s(sT2)}, {s(sSt)}, 1',
                 f'v_mov_b32 {v(vT)}, {s(sT2)}', f'v_mov_b32 {v(vT+1)}, {s(sT1)}', f'v_mov_b32 {v(vT+2)}, 0', f's_cmp_lg_u32 {s(sW)}, 0', f's_cbranch_scc1 {name}_nn',
                 f'global_store_dwordx2 {v(vT+2)}, {v(vT,2)}, {s(sDbg,2)} sc1', f's_branch {name}_nn'])
    srd(SX, KA + 0, S * D * 2)
    if 'noxt' not in opt: e(f'buffer_load_dword {v(vJS2)}, {v(vB)}, {s(SX,4)}, s3 offen', junk=True)
    SEC = {}; SEC['srd'] = cap[0] = []
    srd(SQ, KA + 2, D * 3 * D * 2, back=4096); srd(SGt, KA + 8, D * F * 2); srd(SU, KA + 10, D * F * 2, back=2048)
    e(f's_mov_b32 {s(sXp)}, {s(KA)}'); e(f's_mov_b32 {s(sXp+1)}, {s(KA+1)}')
    srd(SWS, KA + 18, WS_USED); srd(SH, KA + 18, 0); srd(SJS, KA + 12, 0); srd(SJD, KA + 18, REC_OFF)
    if stamps:
        e(f's_lshl_b32 {s(sStO)}, s2, 2'); e(f's_add_u32 {s(sStO)}, {s(sStO)}, {s(sW)}'); e(f's_lshl_b32 {s(sStO)}, {s(sStO)}, 8'); e(f's_add_u32 {s(sStO)}, {s(sStO)}, {STAMP_OFF}')
    SEC['xr'] = cap[0] = []
    vQ = vL4
    e(f'v_lshrrev_b32 {v(vI2)}, 1, {v(vN)}'); e(f'v_xor_b32 {v(vI2)}, {v(vI2)}, {v(vQ)}'); e(f'v_lshlrev_b32 {v(vI2)}, 4, {v(vI2)}')
    e(f'v_lshl_add_u32 {v(vI2)}, {v(vN)}, 7, {v(vI2)}')
    e(f'v_add_u32 {v(vXR[0])}, {s(sM0w)}, {v(vI2)}'); e(f'v_xor_b32 {v(vXR[1])}, 64, {v(vXR[0])}')
    vONE = T[24]
    e(f's_mov_b32 {s(sOnes)}, 0x3f803f80')
    for k in range(4): e(f'v_mov_b32 {v(vONE+k)}, {s(sOnes)}')
    vXP = [T[7], T[35]]
    for kk in range(2): e(f'v_xor_b32 {v(vXP[kk])}, 4096, {v(vXR[kk])}')
    e(f'v_add_u32 {v(vXR[2])}, {s(sSP)}, {v(vL16)}'); e(f'v_xor_b32 {v(vXR[3])}, 4096, {v(vXR[2])}')
    SEC['wdma'] = cap[0] = []
    def wdma_off(dst, stride, rows_per_wave, pp, bit3):
        e(f's_mul_i32 {s(sT0)}, {s(sW)}, {rows_per_wave}'); e(f's_add_u32 {s(sT0)}, {s(sT0)}, {8*pp}')
        e(f'v_add_u32 {v(vB)}, {s(sT0)}, {v(vL3)}'); e(f'v_mul_u32_u24 {v(vB)}, {stride}, {v(vB)}')
        e(f'v_and_b32 {v(vI2)}, 1, {v(vL4)}'); e(f'v_lshlrev_b32 {v(vI2)}, 1, {v(vI2)}')
        if bit3 == 'w':
            e(f's_lshl_b32 {s(sT0)}, {s(sJ)}, 2'); e(f'v_or_b32 {v(vI2)}, {s(sT0)}, {v(vI2)}')
        elif bit3: e(f'v_or_b32 {v(vI2)}, 4, {v(vI2)}')
        e(f'v_xor_b32 {v(vI2)}, {v(vI2)}, {v(vC7)}'); e(f'v_lshl_add_u32 {v(dst)}, {v(vI2)}, 4, {v(vB)}')
        if pp: e(f'v_subrev_u32 {v(dst)}, {1024*pp}, {v(dst)}')
    wdma_off(vDM, 9216, 16, 0, 0); wdma_off(vDM + 1, 9216, 16, 1, 1)
    vQD = T[16:18]
    wdma_off(vQD[0], 3456, 16, 0, 0); wdma_off(vQD[1], 3456, 16, 1, 1)
    e(f'v_lshrrev_b32 {v(vI2)}, 3, {v(vN)}'); e(f'v_and_b32 {v(vU)}, 1, {v(vQ)}'); e(f'v_lshl_or_b32 {v(vI2)}, {v(vU)}, 1, {v(vI2)}')
    e(f'v_lshlrev_b32 {v(vI2)}, 5, {v(vI2)}')
    e(f'v_and_b32 {v(vU)}, 3, {v(vN)}'); e(f'v_lshl_or_b32 {v(vI2)}, {v(vU)}, 3, {v(vI2)}')
    e(f'v_lshrrev_b32 {v(vU)}, 2, {v(vN)}'); e(f'v_lshl_or_b32 {v(vTL)}, {v(vU)}, 7, {v(vI2)}')
    e(f'v_lshrrev_b32 {v(vU)}, 1, {v(vQ)}'); e(f'v_lshlrev_b32 {v(vU)}, 12, {v(vU)}')
    e(f'v_and_b32 {v(vI2)}, 1, {v(vQ)}'); e(f'v_lshl_or_b32 {v(vU)}, {v(vI2)}, 10, {v(vU)}'); e(f'v_or_b32 {v(vU)}, {v(vU)}, {v(vTL)}')
    e(f's_lshl_b32 {s(sT0)}, {s(sJ)}, 6'); e(f'v_xor_b32 {v(vTR)}, {s(sT0)}, {v(vU)}'); e(f'v_xor_b32 {v(vTR+1)}, 32, {v(vTR)}')
    for r in (1, 2):
        for tt in range(2): e(f'v_add_u32 {v(vTR+2*r+tt)}, {65536*r}, {v(vTR+tt)}')
    e(f'v_lshlrev_b32 {v(vI2)}, 1, {v(vL4)}'); e(f'v_xor_b32 {v(vI2)}, {v(vI2)}, {v(vC7)}'); e(f'v_lshlrev_b32 {v(vI2)}, 4, {v(vI2)}')
    e(f'v_mul_u32_u24 {v(vU)}, 1152, {v(vL3)}'); e(f'v_add_u32 {v(vJS)}, {v(vU)}, {v(vI2)}')
    e(f'v_lshlrev_b32 {v(vU)}, 9, {v(vQ)}'); e(f'v_add_u32 {v(vU)}, {s(sSP)}, {v(vU)}'); e(f'v_add_u32 {v(vJT)}, {v(vU)}, {v(vTL)}')
    SEC['const'] = cap[0] = []
    vONE = T[24]; vSEL = T[28]; vF1 = T[34]
    assert vONE % 4 == 0 and vSEL % 4 == 0
    e(f'v_mov_b32 {v(vF1)}, 1.0')
    e(f'v_lshrrev_b32 {v(vU)}, 2, {v(vN)}'); e(f'v_cmp_eq_u32 {s(mk[0],2)}, {v(vU)}, {v(vQ)}')
    e(f'v_and_b32 {v(vU)}, 3, {v(vN)}')
    for k in (1, 2, 3): e(f'v_cmp_eq_u32 {s(mk[k],2)}, {k}, {v(vU)}')
    e(f'v_and_b32 {v(vI2)}, 1, {v(vN)}'); e(f'v_lshlrev_b32 {v(vI2)}, 4, {v(vI2)}'); e(f'v_mov_b32 {v(vB)}, 0x3f80'); e(f'v_lshlrev_b32 {v(vB)}, {v(vI2)}, {v(vB)}')
    e(f'v_cndmask_b32 {v(vB)}, 0, {v(vB)}, {s(mk[0],2)}')
    e(f'v_cmp_gt_u32 vcc, 2, {v(vU)}')
    for k in (0, 1, 4, 5): e(f'v_mov_b32 {v(vSEL+k)}, 0')
    e(f'v_cndmask_b32 {v(vSEL+2)}, 0, {v(vB)}, vcc'); e(f'v_cndmask_b32 {v(vSEL+3)}, {v(vB)}, 0, vcc')
    def ffn_dma(slot, tag=None):
        return [f's_add_u32 m0, {s(sM0w)}, {slot*16384}', None,
                (f'buffer_load_dwordx4 {v(vDM)}, {s(SGt,4)}, {s(sWo)} offen lds', tag or f'slot{slot}'),
                (f'buffer_load_dwordx4 {v(vDM+1)}, {s(SGt,4)}, {s(sWo)} offen offset:1024 lds', tag or f'slot{slot}'),
                (f'buffer_load_dwordx4 {v(vDM)}, {s(SU,4)}, {s(sWo)} offen offset:2048 lds', tag or f'slot{slot}'),
                (f'buffer_load_dwordx4 {v(vDM+1)}, {s(SU,4)}, {s(sWo)} offen offset:3072 lds', tag or f'slot{slot}'),
                f's_add_u32 {s(sWo)}, {s(sWo)}, {CH}']
    def put(lst):
        for x in lst:
            if x is None: continue
            if callable(x): x()
            elif isinstance(x, tuple): e(x[0], x[1])
            else: e(x)
    def kv_dma(n, vk):
        out = []
        for st in range(3):
            if st != 1: out.append(f's_add_u32 m0, {s(sKm)}, {(n % 6)*24576 + (st//2)*4096}')
            for pp in range(2): out.append((f'buffer_load_dwordx4 {v(vk[pp])}, {s(SQ,4)}, {s(sKV+st)} offen offset:{2048*(st%2) + 1024*pp} lds', f'kv{n}'))
            out.append(f's_add_u32 {s(sKV+st)}, {s(sKV+st)}, {(64*3456 if n != 8 else 1152 - 8*64*3456) & 0xffffffff:#x}')
        return out
    SEC['scal'] = cap[0] = []
    e(f's_mul_i32 {s(sT0)}, {s(sM)}, 5'); e(f's_sub_u32 {s(sT0)}, {s(sT0)}, 2'); e(f's_max_i32 {s(sT0)}, {s(sT0)}, 0')
    e(f's_mul_i32 {s(sT1)}, {s(sQF)}, 18'); e(f's_add_u32 {s(sT0)}, {s(sT0)}, {s(sT1)}')
    e(f's_lshl_b32 {s(sWo)}, {s(sT0)}, 7')
    e(f's_sub_u32 {s(sT0)}, {s(sM)}, 4'); e(f's_cmp_eq_u32 {s(sM)}, 0'); e(f's_cselect_b32 {s(sT0)}, 11, {s(sT0)}')
    e(f's_add_u32 {s(sT0)}, {s(sT0)}, {s(sT1)}'); e(f's_lshl_b32 {s(sT0)}, {s(sT0)}, 1'); e(f's_add_u32 {s(sT0)}, {s(sT0)}, {s(sJ)}')
    e(f's_lshl_b32 {s(sT1)}, {s(sT)}, 3'); e(f's_lshl_b32 {s(sT2)}, {s(sI)}, 2'); e(f's_add_u32 {s(sT1)}, {s(sT1)}, {s(sT2)}')
    e(f's_lshl_b32 {s(sT2)}, {s(sJ)}, 1')
    sTB = [SG.get(f'tb{b}') for b in range(4)]
    for b in range(4):
        e(f's_xor_b32 {s(sTB[b])}, {s(sT2)}, {b}'); e(f's_add_u32 {s(sTB[b])}, {s(sTB[b])}, {s(sT1)}')
        e(f's_mul_i32 {s(sH+b)}, {s(sTB[b])}, 144'); e(f's_add_u32 {s(sH+b)}, {s(sH+b)}, {s(sT0)}'); e(f's_lshl_b32 {s(sH+b)}, {s(sH+b)}, 10')
    e(f's_cmp_eq_u32 {s(sM)}, 0'); e(f's_cselect_b32 {s(sCnt)}, 2, 4')
    e(f's_lshr_b32 {s(sT0)}, s2, 5'); e(f's_and_b32 {s(sT1)}, s2, 7'); e(f's_lshl_b32 {s(sT0)}, {s(sT0)}, 3'); e(f's_add_u32 {s(sT0)}, {s(sT0)}, {s(sT1)}')
    e(f's_mul_i32 {s(sT0)}, {s(sT0)}, 3'); e(f's_add_u32 {s(sT0)}, {s(sT0)}, {s(sM)}'); e(f's_sub_u32 {s(sT0)}, {s(sT0)}, 1')
    e(f's_lshl_b32 {s(sT0)}, {s(sT0)}, 2'); e(f's_add_u32 {s(sJob)}, {s(sT0)}, {s(sW)}')
    if 'nojobs' in opt: e(f's_mov_b32 {s(sJob)}, 4096')
    e(f's_mov_b32 {s(sOp)}, {s(KA+14)}'); e(f's_mov_b32 {s(sOp+1)}, {s(KA+15)}')
    e(f's_mul_i32 {s(sLine)}, {s(sQF)}, 3'); e(f's_add_u32 {s(sLine)}, {s(sLine)}, {s(sM)}'); e(f's_sub_u32 {s(sLine)}, {s(sLine)}, 1')
    SEC['jobs'] = cap[0] = []
    for n in range(2):
        jb = JP[6 * n: 6 * n + 6]
        e(f's_mov_b32 {s(jb[2])}, {F*D*2}')
        e(f's_cmp_lt_u32 {s(sJob)}, {NJOB_WD}')
        e(f's_cselect_b32 {s(jb[0])}, {s(SJS)}, {s(KA+4)}'); e(f's_cselect_b32 {s(jb[1])}, {s(SJS+1)}, {s(KA+5)}')
        e(f's_cselect_b32 {s(jb[2])}, {s(jb[2])}, {D*D*2}'); e(f's_cselect_b32 {s(sT0)}, 0, {NJOB_WD}')
        e(f's_sub_u32 {s(sT0)}, {s(sJob)}, {s(sT0)}'); e(f's_mul_i32 {s(sT1)}, {s(sT0)}, 7282'); e(f's_lshr_b32 {s(sT1)}, {s(sT1)}, 16')
        e(f's_mul_i32 {s(jb[3])}, {s(sT1)}, {32*1152 - 9*128}'); e(f's_lshl_b32 {s(sT2)}, {s(sT0)}, 7'); e(f's_add_u32 {s(jb[3])}, {s(jb[3])}, {s(sT2)}')
        e(f's_mul_i32 {s(sT2)}, {s(sT1)}, 9'); e(f's_sub_u32 {s(sT0)}, {s(sT0)}, {s(sT2)}'); e(f's_lshl_b32 {s(sT0)}, {s(sT0)}, 2')
        e(f's_mul_i32 {s(sJo)}, {s(sT0)}, 7282'); e(f's_lshr_b32 {s(sJo)}, {s(sJo)}, 16')
        e(f's_mul_i32 {s(sT2)}, {s(sJo)}, 9'); e(f's_sub_u32 {s(sT0)}, {s(sT0)}, {s(sT2)}')
        e(f's_sub_u32 {s(jb[5])}, 9, {s(sT0)}')
        e(f's_mul_i32 {s(sJo)}, {s(sJo)}, {144*9}'); e(f's_add_u32 {s(sJo)}, {s(sJo)}, {s(sT0)}')
        e(f's_mul_i32 {s(sT0)}, {s(sT1)}, 1821'); e(f's_lshr_b32 {s(sT0)}, {s(sT0)}, 16'); e(f's_mul_i32 {s(sT0)}, {s(sT0)}, 36')
        e(f's_sub_u32 {s(sT1)}, {s(sT1)}, {s(sT0)}'); e(f's_and_b32 {s(sT2)}, {s(sT1)}, 1'); e(f's_add_u32 {s(sT0)}, {s(sT0)}, {s(sT2)}'); e(f's_lshr_b32 {s(sT1)}, {s(sT1)}, 1')
        e(f's_mul_i32 {s(sT2)}, {s(sT1)}, 5')
        lo = sum(pos_of_double(d) << (5 * d) for d in range(6)); mi = sum(pos_of_double(6 + d) << (5 * d) for d in range(6)); hi = sum(pos_of_double(12 + d) << (5 * d) for d in range(6))
        e(f's_mov_b32 {s(jb[4])}, {lo}'); e(f's_cmp_ge_u32 {s(sT1)}, 6'); e(f's_cselect_b32 {s(jb[4])}, {mi}, {s(jb[4])}'); e(f's_cselect_b32 {s(mk[3])}, 30, 0')
        e(f's_cmp_ge_u32 {s(sT1)}, 12'); e(f's_cselect_b32 {s(jb[4])}, {hi}, {s(jb[4])}'); e(f's_cselect_b32 {s(mk[3])}, 60, {s(mk[3])}')
        e(f's_sub_u32 {s(sT2)}, {s(sT2)}, {s(mk[3])}'); e(f's_lshr_b32 {s(jb[4])}, {s(jb[4])}, {s(sT2)}'); e(f's_and_b32 {s(jb[4])}, {s(jb[4])}, 31')
        e(f's_lshl_b32 {s(jb[4])}, {s(jb[4])}, 1'); e(f's_add_u32 {s(sT0)}, {s(sT0)}, {s(jb[4])}'); e(f's_mul_i32 {s(sT0)}, {s(sT0)}, 9'); e(f's_add_u32 {s(sT0)}, {s(sT0)}, {s(sJo)}')
        e(f's_lshl_b32 {s(sT0)}, {s(sT0)}, 10'); e(f's_lshl_b32 {s(sT1)}, {s(sJob)}, 12')
        e(f's_cmp_lt_u32 {s(sJob)}, {NJOB_WD}'); e(f's_cselect_b32 {s(sT0)}, {s(sT0)}, {s(sT1)}'); e(f's_cselect_b32 {s(jb[5])}, {s(jb[5])}, 9')
        e(f's_add_u32 {s(jb[4])}, {s(sT0)}, {WT_OFF}'); e(f's_add_u32 {s(jb[5])}, {s(jb[5])}, {REC_OFF}')
        e(f's_cmp_lt_u32 {s(sJob)}, {NJOB}'); e(f's_cselect_b32 {s(jb[2])}, {s(jb[2])}, 0'); e(f's_cselect_b32 {s(jb[5])}, {s(jb[5])}, 0')
        if n == 0: e(f's_add_u32 {s(sJob)}, {s(sJob)}, 768')
    for q in range(3): e(f's_mov_b32 {s(SJS+q)}, {s(JP[q])}')
    if 'j3' in opt:
        e(f's_mul_i32 {s(sT0)}, {s(sJob)}, 21846'); e(f's_lshr_b32 {s(sT0)}, {s(sT0)}, 16'); e(f's_mul_i32 {s(sT0)}, {s(sT0)}, 3'); e(f's_sub_u32 {s(sJob)}, {s(sJob)}, {s(sT0)}'); e(f's_add_u32 {s(sJob)}, {s(sJob)}, 2')
    SEC['park'] = cap[0] = []
    vPw = vRS; npk = [0]
    def park(r):
        e(f'v_writelane_b32 {v(vPw)}, {s(r)}, {npk[0]}'); npk[0] += 1
    tA, tB, tC, tD, tE, tF = (sKV + n for n in range(6))
    tAl, tTl, tK = sTB[:3]
    e(f's_mul_i32 {s(tA)}, {s(sM)}, 144'); e(f's_mul_i32 {s(tB)}, {s(sQF)}, 36'); e(f's_add_u32 {s(tA)}, {s(tA)}, {s(tB)}'); e(f's_mul_i32 {s(tA)}, {s(tA)}, 9216'); e(f's_add_u32 {s(tA)}, {s(tA)}, {WT_OFF}')
    e(f's_add_u32 {s(tC)}, {s(tA)}, {s(sM0w)}'); park(tC)
    e(f's_mul_i32 {s(tC)}, {s(sW)}, 9216'); park(tC)
    e(f's_add_u32 {s(tA)}, {s(tA)}, {s(tC)}'); e(f's_add_u32 {s(tA)}, {s(tA)}, {4*SLOT}'); park(tA)
    e(f's_lshl_b32 {s(tA)}, {s(sT)}, 3'); e(f's_lshl_b32 {s(tC)}, {s(sW)}, 1'); e(f's_add_u32 {s(tA)}, {s(tA)}, {s(tC)}'); e(f's_mul_i32 {s(tA)}, {s(tA)}, 144')
    e(f's_add_u32 {s(tA)}, {s(tA)}, {s(tB)}'); e(f's_lshl_b32 {s(tA)}, {s(tA)}, 10'); park(tA); e(f's_add_u32 {s(tA)}, {s(tA)}, {144*1024}'); park(tA)
    e(f's_mul_i32 {s(tA)}, s2, 10923'); e(f's_lshr_b32 {s(tA)}, {s(tA)}, 16'); e(f's_mul_i32 {s(tB)}, {s(tA)}, 6'); e(f's_sub_u32 {s(tB)}, s2, {s(tB)}'); e(f's_lshr_b32 {s(tB)}, {s(tB)}, 1')
    e(f's_mul_i32 {s(tC)}, {s(tA)}, 7282'); e(f's_lshr_b32 {s(tC)}, {s(tC)}, 16'); e(f's_mul_i32 {s(tD)}, {s(tC)}, 9'); e(f's_sub_u32 {s(tTl)}, {s(tA)}, {s(tD)}')
    e(f's_add_u32 {s(tAl)}, {s(tTl)}, {s(tB)}'); e(f's_sub_u32 {s(tAl)}, {s(tAl)}, 1'); e(f's_and_b32 {s(tK)}, s2, 1')
    e(f's_and_b32 {s(tD)}, {s(tA)}, 1'); e(f's_add_u32 {s(tD)}, {s(tD)}, {s(tB)}'); e(f's_sub_u32 {s(tD)}, {s(tD)}, 1')
    e(f's_lshl_b32 {s(tE)}, {s(tK)}, 10'); e(f's_lshl_b32 {s(tF)}, {s(tD)}, 3'); e(f's_add_u32 {s(tE)}, {s(tE)}, {s(tF)}'); e(f's_lshl_b32 {s(tF)}, {s(tK)}, 3'); e(f's_add_u32 {s(tF)}, {s(tF)}, 2048')
    e(f's_cmp_lt_u32 {s(tD)}, 2'); e(f's_cselect_b32 {s(tE)}, {s(tE)}, {s(tF)}')
    e(f's_mul_i32 {s(tA)}, {s(tA)}, 3072'); e(f's_add_u32 {s(tE)}, {s(tE)}, {s(tA)}'); e(f's_lshl_b32 {s(tF)}, {s(sW)}, 8'); e(f's_add_u32 {s(tE)}, {s(tE)}, {s(tF)}'); e(f's_add_u32 {s(tE)}, {s(tE)}, {REC_OFF}')
    e(f's_max_i32 {s(tA)}, {s(tAl)}, {s(tTl)}'); e(f's_cmp_gt_i32 {s(tA)}, 4'); e(f's_cselect_b32 {s(tA)}, 1, 0')
    e(f's_lshl_b32 {s(tB)}, {s(tA)}, 2'); e(f's_sub_u32 {s(tD)}, {s(tAl)}, {s(tB)}'); e(f's_sub_u32 {s(tB)}, {s(tTl)}, {s(tB)}'); e(f's_add_u32 {s(tB)}, {s(tB)}, {s(tD)}')
    e(f's_cmp_eq_u32 {s(tK)}, 0'); e(f's_cselect_b32 {s(tB)}, {s(tB)}, 13'); e(f's_add_u32 {s(tB)}, {s(tB)}, {s(tD)}')
    e(f's_lshl_b32 {s(tC)}, {s(tC)}, 1'); e(f's_add_u32 {s(tC)}, {s(tC)}, {s(tA)}'); e(f's_mul_i32 {s(tC)}, {s(tC)}, 18'); e(f's_add_u32 {s(tB)}, {s(tB)}, {s(tC)}')
    e(f's_lshl_b32 {s(tB)}, {s(tB)}, 10'); e(f's_add_u32 {s(tB)}, {s(tB)}, {s(tF)}'); e(f's_add_u32 {s(tB)}, {s(tB)}, {KVP_OFF}'); park(tB); park(tE)
    e(f's_cmp_lt_u32 {s(tAl)}, 9'); e(f's_cselect_b32 {s(tA)}, {WT_OFF}, 0'); e('s_cmp_lt_u32 s2, 216'); e(f's_cselect_b32 {s(tA)}, {s(tA)}, 0'); e(f's_cselect_b32 {s(tB)}, {STAMP_OFF}, 0')
    park(tA); park(tB)
    e(f's_lshl_b32 {s(tA)}, s2, 3'); e(f's_add_u32 {s(tA)}, {s(tA)}, {RECF_OFF}'); park(tA)
    e(f's_lshl_b32 {s(tTl)}, {s(tTl)}, 4'); park(tTl)
    e(f's_lshl_b32 {s(tA)}, {s(tAl)}, 4'); e(f's_lshl_b32 {s(tB)}, {s(sW)}, 2'); e(f's_add_u32 {s(tA)}, {s(tA)}, {s(tB)}'); e(f's_mul_i32 {s(tA)}, {s(tA)}, 3641')
    for r in range(4):
        e(f's_lshr_b32 {s(tB)}, {s(tA)}, 16'); park(tB)
        if r < 3: e(f's_add_u32 {s(tA)}, {s(tA)}, 3641')
    SEC['type'] = cap[0] = []
    QB = 73728
    sQo = sKV
    e(f's_lshl_b32 {s(sT0)}, {s(sQF)}, 8')
    for st in range(3):
        e(f's_add_u32 {s(sKV+st)}, {s(sT0)}, {4096 + 1152 + 128*st - 2048*(st%2)}')
    e(f's_mul_i32 {s(sKm)}, {s(sW)}, 6144')
    e(f's_lshl_b32 {s(sT0)}, {s(sLine)}, 7'); e(f's_add_u32 {s(sT0)}, {s(sT0)}, 4096'); e(f's_lshr_b32 {s(sT1)}, {s(sM0w)}, 1')
    e(f's_cmp_eq_u32 {s(sM)}, 0'); e(f's_cselect_b32 {s(sKV)}, {s(sKV)}, {s(sT0)}'); e(f's_cselect_b32 {s(sKm)}, {s(sKm)}, {s(sT1)}')
    SEC['touch'] = cap[0] = []
    vTq = T[21]
    e(f's_cmp_lt_u32 {s(sW)}, 2'); e(f's_cselect_b32 {s(SH)}, {s(SGt)}, {s(SU)}'); e(f's_cselect_b32 {s(SH+1)}, {s(SGt+1)}, {s(SU+1)}')
    e(f's_cselect_b32 {s(sT0)}, 0, 2048'); e(f's_add_u32 {s(SH+2)}, {s(sT0)}, {D*F*2}')
    e(f's_add_u32 {s(sTo)}, {s(sWo)}, {s(sT0)}')
    e(f's_mul_i32 {s(sT0)}, {s(sT)}, 36'); e(f's_mul_i32 {s(sT1)}, {s(sJ)}, 18'); e(f's_add_u32 {s(sT1)}, {s(sT1)}, {s(sT0)}')
    e(f'v_add_u32 {v(vU)}, {s(sT1)}, {v(vLane)}'); e(f'v_mul_u32_u24 {v(vU)}, 9216, {v(vU)}'); e(f'v_mov_b32 {v(vI2)}, 0x40000000')
    e(f'v_cmp_gt_u32 vcc, 18, {v(vLane)}'); e(f'v_cndmask_b32 {v(vTg)}, {v(vI2)}, {v(vU)}, vcc')
    e(f's_lshl_b32 {s(sT1)}, s2, 2'); e(f's_add_u32 {s(sT1)}, {s(sT1)}, {s(sW)}'); e(f's_lshl_b32 {s(sT1)}, {s(sT1)}, 11'); e(f's_add_u32 {s(sT1)}, {s(sT1)}, 4096')
    e(f'v_min_u32 {v(vTq)}, 15, {v(vLane)}'); e(f'v_lshlrev_b32 {v(vTq)}, 7, {v(vTq)}'); e(f'v_add_u32 {v(vTq)}, {s(sT1)}, {v(vTq)}')
    junk = lambda t: (lambda: e(t, junk=True))
    def gtouch(r=SX): return [junk(f'buffer_load_dword {v(vJS2)}, {v(vTg)}, {s(r,4)}, {s(sTo)} offen'), f's_add_u32 {s(sTo)}, {s(sTo)}, 128']
    e(f'v_mul_u32_u24 {v(vU)}, 1152, {v(vLane)}'); e(f'v_cmp_gt_u32 vcc, 32, {v(vLane)}'); e(f'v_cndmask_b32 {v(vTj)}, {v(vI2)}, {v(vU)}, vcc')
    def jtouch(): return [f's_mov_b32 {s(SJS+q)}, {s(JP[q])}' for q in range(3)] + ([] if 'nojt' in opt else [junk(f'buffer_load_dword {v(vJS2)}, {v(vTj)}, {s(SJS,4)}, {s(JP[3])} offen' + (' nt' if 'jnt' in opt else ''))])
    touches = gtouch() + (gtouch() if 't2' in opt else [])
    if 'notouch' in opt: touches = []
    else: put([junk(f'buffer_load_dword {v(vJS2)}, {v(vTq)}, {s(SQ,4)}, 0 offen')] + gtouch(SH))
    SEC['late'] = cap[0] = []
    for q in range(3): e(f's_mov_b32 {s(SX+q)}, {s(SH+q)}')
    e(f's_mov_b32 {s(SH)}, {s(SWS)}'); e(f's_mov_b32 {s(SH+1)}, {s(SWS+1)}'); e(f's_mov_b32 {s(SH+2)}, 0')
    SUM = lambda b: ACC + 4 * b
    SQ_ = lambda b: ACC + 16 + 4 * b
    pend = []
    def stats(b, ks):
        c0 = '0' if ks == 0 else v(SUM(b), 4); c1 = '0' if ks == 0 else v(SQ_(b), 4)
        e(f'v_mfma_f32_16x16x32_bf16 {v(SUM(b),4)}, {v(vONE,4)}, {xf(b,ks)}, {c0}')
        e(f'v_mfma_f32_16x16x32_bf16 {v(SQ_(b),4)}, {xf(b,ks)}, {xf(b,ks)}, {c1}')
    cap[0] = None
    tv = [x for x in SEC['touch'] if x[0].startswith('buffer_load')]; ta = [x for x in SEC['touch'] if x[0].startswith('s_add_u32 ' + s(sTo) + ', ' + s(sTo))]
    SEC['touch'] = [x for x in SEC['touch'] if x not in tv and x not in ta]
    SETA = sum((SEC[n] for n in ('srd', 'xr', 'scal', 'type', 'wdma', 'touch', 'const')), []); SETB = tv + ta + SEC['late']
    def scc_safe(L):
        for t, _, _ in L:
            mn = t.split()[0]
            if mn.startswith(('s_cselect', 's_addc', 's_subb')): return False
            if mn.startswith('s_') and not mn.startswith(('s_mov', 's_mul')): return True
        return True
    def atoms(L):
        L = list(L); out = []
        while L:
            g = [L.pop(0)]
            while not scc_safe(L): g.append(L.pop(0))
            out.append(g[0][0] if len(g) == 1 else (lambda g=g: [e(*x) for x in g]))
        return out
    def some(L, n):
        while L and (n > 0 or not scc_safe(L)):
            e(*L.pop(0)); n -= 1
    def xline(l):
        nonlocal pend
        p.wait_tag(f'x{l}')
        if l in (4, 8):
            for k in range(2): e(f'v_add_u32 {v(vXR[k])}, 65536, {v(vXR[k])}')
        cur = []
        for kk in range(2):
            for b in range(2):
                e(f'ds_read_b128 {xf(b, 2*l+kk)}, {v(vXR[kk])} offset:{(l%4)*16384 + b*2048}')
                cur.append((b, 2 * l + kk))
        if l % 3 == 2:
            e('s_barrier')
            for l2 in range(l - 2, l + 1):
                if l2 in (4, 8):
                    for k in range(2): prd.append(f'v_add_u32 {v(vXP[k])}, 65536, {v(vXP[k])}')
                prd.extend(f'ds_read_b128 {xf(2 + b, 2*l2+kk)}, {v(vXP[kk])} offset:{(l2%4)*16384 + b*2048}' for kk in range(2) for b in range(2))
        old, pend = pend, cur
        return old
    prd = []
    def someP(n):
        for _ in range(n):
            if prd: e(prd.pop(0))
    LAG = int(next((o[3:] for o in opt if o.startswith('lag')), 4))
    per = -(-len(SETA) // 36)
    for l in range(9):
        e(f's_add_u32 m0, {s(sM0w)}, {l*16384}')
        if l: e('s_add_u32 s3, s3, 128')
        todo = xline(l - LAG) if l >= LAG else []
        for q in range(4):
            e(f'buffer_load_dwordx4 {v(vXO[q])}, {s(SX,4)}, s3 offen offset:{1024*q} lds', tag=f'x{l}')
            if todo: stats(*todo.pop(0))
            someP(1); some(SETA, per)
    if stamps: p.raw(f's_memrealtime {s(sSt,2)}'); p.raw('s_waitcnt lgkmcnt(0)'); p.raw(f's_mov_b32 s3, {s(sSt)}')
    some(SETA, 999)
    if 'tend' not in opt: some(SETB, 999)
    for l in range(9 - LAG, 9):
        todo = xline(l)
        while todo:
            stats(*todo.pop(0)); someP(2)
    while pend:
        stats(*pend.pop(0)); someP(3)
    some(SETB, 999); someP(99)
    stamp()
    for b in range(2):
        for r in range(4): e(f'v_mul_f32 {v(SUM(b)+r)}, {fhex(-1.0/576)}, {v(SUM(b)+r)}')
        e(f'ds_write_b128 {v(vXR[2])}, {v(SUM(b),4)} offset:{1024*b}')
    p.wait_lg(0); e('s_barrier')
    for b in range(2): e(f'ds_read_b128 {v(SUM(2+b),4)}, {v(vXR[3])} offset:{1024*b}')
    stamp()
    st0 = p.snapshot()
    tmpv = T[36]
    CT = [T[40 + 8 * k] for k in range(3)]
    order = [(b, ks) for ks in range(18) for b in range(2)] + [(2 + b, ks) for ks in range(18) for b in range(2)]
    vNn, vNz = T[22], T[38]
    def center(mem, lab):
        e(f'v_mov_b32 {v(vNz)}, 0'); e(f'global_load_dwordx2 {v(vNn,2)}, {v(vNz)}, {s(sDbg,2)} sc1')
        mem = [x for x in mem if x]
        nm = sum(1 for x in mem if not isinstance(x, str)); done = [0]
        def one():
            while mem:
                x = mem.pop(0); put([x])
                if not isinstance(x, str):
                    done[0] += 1; break
        extra = []
        for b in range(2):
            q_ = SQ_(b)
            extra += [f'v_cndmask_b32 {v(tmpv+b)}, {v(q_)}, {v(q_+1)}, {s(mk[1],2)}', f'v_cndmask_b32 {v(tmpv+b)}, {v(tmpv+b)}, {v(q_+2)}, {s(mk[2],2)}',
                      f'v_cndmask_b32 {v(tmpv+b)}, {v(tmpv+b)}, {v(q_+3)}, {s(mk[3],2)}', f'v_cndmask_b32 {v(tmpv+b)}, 0, {v(tmpv+b)}, {s(mk[0],2)}']
        extra += [None] + [f'v_mfma_f32_16x16x4_f32 {v(SQ_(b),4)}, {v(vF1)}, {v(tmpv+b)}, 0' for b in range(2)]
        extra += [f'v_mul_f32 {v(tmpv+b)}, {v(SUM(b))}, {v(SUM(b))}' for b in range(2)] + [f's_mov_b32 {s(sT0)}, {fhex(1.0/576)}', None]
        for b in range(2):
            extra += [f'v_fma_f32 {v(tmpv+b)}, {v(SQ_(b))}, {s(sT0)}, -{v(tmpv+b)}', f'v_max_f32 {v(tmpv+b)}, 0, {v(tmpv+b)}',
                      f'v_add_f32 {v(tmpv+b)}, {fhex(1e-5)}, {v(tmpv+b)}', f'v_rsq_f32 {v(vRS+b)}, {v(tmpv+b)}', f'v_rcp_f32 {v(vRS2+b)}, {v(tmpv+b)}']
        extra += [f'ds_write_b64 {v(vXR[2])}, {v(vRS,2)} offset:2048', f'ds_write_b64 {v(vXR[2])}, {v(vRS2,2)} offset:2056', None, None, None,
                  lambda: (p.wait_lg(0), e('s_barrier')), f'ds_read_b64 {v(vRS+2,2)}, {v(vXR[3])} offset:2048', f'ds_read_b64 {v(vRS2+2,2)}, {v(vXR[3])} offset:2056']
        for n in range(72 + 2):
            pk = [[], [], [], []]; m = [None, None]
            if n < 72:
                b, ks = order[n]; t = CT[n % 3]
                m = [f'v_mfma_f32_16x16x32_bf16 {v(t,4)}, {v(vSEL+2,4)}, {xf(b,ks)}, {v(SUM(b),4)}',
                     f'v_mfma_f32_16x16x32_bf16 {v(t+4,4)}, {v(vSEL,4)}, {xf(b,ks)}, {v(SUM(b),4)}']
            if n >= 2:
                b, ks = order[n - 2]; t = CT[(n - 2) % 3]; f = fidx(b, ks)
                for d in range(4):
                    if f < NXV: pk[d] = [f'v_cvt_pk_bf16_f32 {v(XV + 4*f + d)}, {v(t+2*d)}, {v(t+2*d+1)}']
                    else: pk[d] = [f'v_cvt_pk_bf16_f32 {v(t+2*d)}, {v(t+2*d)}, {v(t+2*d+1)}', f'v_accvgpr_write_b32 {a(XA + 4*(f-NXV) + d)}, {v(t+2*d)}']
            put([m[0]] + pk[0] + pk[1] + [m[1]] + pk[2] + pk[3])
            if extra: put([extra.pop(0)])
            if done[0] * 66 < nm * (n + 1): one()
        assert not extra
        while mem: one()
        e(f'v_readfirstlane_b32 {s(sN)}, {v(vNn)}'); e(f'v_readfirstlane_b32 {s(sN+1)}, {v(vNn+1)}')
        e(f's_cmp_eq_u32 {s(sN)}, 0'); e(f's_cbranch_scc1 {lab}_nw'); p.label(f'{lab}_nd')
        slow.append([f'{lab}_nw:', f's_mov_b32 {s(sSpin)}, {SPIN}', f'{lab}_nw2:', f'global_load_dwordx2 {v(vNn,2)}, {v(vNz)}, {s(sDbg,2)} sc1', 's_waitcnt vmcnt(0)',
                     f'v_readfirstlane_b32 {s(sN)}, {v(vNn)}', f'v_readfirstlane_b32 {s(sN+1)}, {v(vNn+1)}', f's_sub_u32 {s(sSpin)}, {s(sSpin)}, 1',
                     f's_cmp_lg_u32 {s(sN)}, 0', f's_cbranch_scc1 {lab}_nd', f's_cmp_lg_u32 {s(sSpin)}, 0', f's_cbranch_scc1 {lab}_nw2', f's_branch {lab}_nd'])
        stamp(2)
    def q_dma(c):
        return [f's_add_u32 m0, {s(sKm)}, {QB + 8192*c}', (f'buffer_load_dwordx4 {v(vQD[0])}, {s(SQ,4)}, {s(sQo)} offen lds', f'q{c}'),
                (f'buffer_load_dwordx4 {v(vQD[1])}, {s(SQ,4)}, {s(sQo)} offen offset:1024 lds', f'q{c}'), f's_add_u32 {s(sQo)}, {s(sQo)}, {64*3456}']
    e(f's_cmp_eq_u32 {s(sM)}, 0'); e(f's_cbranch_scc1 {name}_kv')
    e(f's_cmp_lt_u32 {s(sLine)}, 9'); e(f's_cbranch_scc1 {name}_q')
    center([x for c in range(7) for x in ffn_dma(c)] + touches, name + '_f')
    some(list(SEC['jobs']), 999); put(jtouch()[3:])
    stF = p.snapshot(); stF = (stF[0], [x for x in stF[1] if str(x[1]).startswith('slot')])
    e(f's_branch {name}_hdr')

    def phi2(x, rs, rsl, t):
        return [f'v_pk_mul_f32 {v(t,2)}, {v(x,2)}, {v(rsl[0],2)}{rsl[1]}', f'v_pk_fma_f32 {v(x,2)}, {v(x,2)}, {v(rs[0],2)}, {s(sEps,2)}{rs[2]}',
                f'v_exp_f32_e64 {v(t)}, {v(t)} clamp', f'v_exp_f32_e64 {v(t+1)}, {v(t+1)} clamp',
                f'v_max_f32 {v(x)}, {s(sEps)}, {v(x)}', f'v_max_f32 {v(x+1)}, {s(sEps)}, {v(x+1)}', f'v_pk_add_f32 {v(x,2)}, {v(x,2)}, {v(t,2)}']
    def bc(reg):
        h = reg & 1
        return (reg & ~1, f' op_sel:[0,{h}] op_sel_hi:[1,{h}]', f' op_sel:[0,{h},0] op_sel_hi:[1,{h},1]')
    pr = lambda reg: (reg, '', '')
    def weave(seqs, between=None):
        for k in range(max(map(len, seqs))):
            for sq in seqs:
                if k < len(sq): e(sq[k])
            if between: between()
    def set_eps(): e(f's_mov_b32 {s(sEps)}, {fhex(1e-6)}'); e(f's_mov_b32 {s(sEps+1)}, {fhex(1e-6)}')
    wf = lambda g, kk: a(WF + 8 * (g % 3) + 4 * kk, 4)
    def tr4(g, base_reg, off, kstride):
        out = []
        for kk in range(2):
            for h in range(2):
                out.append(f'ds_read_b64_tr_b16 {a(WF + 8*(g%3) + 4*kk + 2*h, 2)}, {v(base_reg)} offset:{off + kk*kstride + h*512}')
        return out
    p.label(f'{name}_q'); p.restore(st0)
    center([x for c in range(9) for x in q_dma(c)] + [x for c in range(4) for x in ffn_dma(c)] + touches, name + '_qq')
    vQT = [ACC + 0, ACC + 1]
    e(f'v_lshrrev_b32 {v(ACC+2)}, 5, v0'); e(f'v_and_b32 {v(ACC+2)}, 1, {v(ACC+2)}'); e(f'v_lshlrev_b32 {v(ACC+2)}, 11, {v(ACC+2)}')
    e(f'v_subrev_u32 {v(ACC+2)}, {QB}, {v(ACC+2)}')
    for tt in range(2): e(f'v_sub_u32 {v(vQT[tt])}, {v(vTR+tt)}, {v(ACC+2)}')
    p.wait_tag('q8'); e('s_barrier')
    qtr = lambda g: tr4(g, vQT[g % 2], ((g // 2) % 4) * 8192 + (32768 if g // 2 == 8 else 0), 4096)
    for x in qtr(0) + qtr(1): e(x)
    nxt_slot = 4; qj = atoms(SEC['jobs'])
    for g in range(18):
        c, tt = g // 2, g % 2
        mains = []; sl = Slots(8)
        for b in range(4):
            for kk in range(2):
                acc = PR + 16 * tt + 4 * b
                cc = '0' if (c == 0 and kk == 0) else v(acc, 4)
                mains.append(f'v_mfma_f32_16x16x32_bf16 {v(acc,4)}, {wf(g,kk)}, {xf(b, 2*c+kk)}, {cc}')
        sl.fix(-1, lambda g=g: p.need(a(WF + 8 * (g % 3), 8)))
        if g in (2, 6, 10): sl.fix(-1, 's_barrier')
        if g + 2 < 18:
            if g + 2 == 8:
                for tt2 in range(2): sl.fix(-1, f'v_add_u32 {v(vQT[tt2])}, 32768, {v(vQT[tt2])}')
            for k, x in enumerate(qtr(g + 2)): sl.fix(2 * k, x)
        if g in (2, 6, 10):
            sl.stream(0, [x for x in ffn_dma(nxt_slot) if x]); nxt_slot += 1
        else:
            sl.stream(0, qj[:8]); qj = qj[8:]
        interleave(p, mains, sl.f)
    put(qj); put(jtouch()[3:])
    stamp(3)
    qtail = []
    set_eps()
    for b in range(4): e(f'v_mul_f32 {v(ACC+4+b)}, {fhex(LOG2E)}, {v(vRS+b)}')
    for b in range(4):
        weave([phi2(PR + 16 * tt + 4 * b + r, bc(vRS + b), bc(ACC + 4 + b), ACC + 8 + 4 * tt + r) for tt in range(2) for r in (0, 2)],
              lambda: put([qtail.pop(0)]) if qtail else None)
        o = PR + 4 * b
        e(f'v_cvt_pk_bf16_f32 {v(o)}, {v(o)}, {v(o+1)}'); e(f'v_cvt_pk_bf16_f32 {v(o+1)}, {v(o+2)}, {v(o+3)}')
        e(f'v_cvt_pk_bf16_f32 {v(o+2)}, {v(o+16)}, {v(o+17)}'); e(f'v_cvt_pk_bf16_f32 {v(o+3)}, {v(o+18)}, {v(o+19)}')
        e(f's_mul_i32 {s(sT0)}, {s(sTB[b])}, 18'); e(f's_lshl_b32 {s(sT2)}, {s(sLine)}, 1'); e(f's_add_u32 {s(sT0)}, {s(sT0)}, {s(sT2)}'); e(f's_add_u32 {s(sT0)}, {s(sT0)}, {s(sJ)}')
        e(f's_lshl_b32 {s(sT0)}, {s(sT0)}, 10'); e(f's_add_u32 {s(sT0)}, {s(sT0)}, {PQ_OFF}')
        e(f'buffer_store_dwordx4 {v(o,4)}, {v(vL16)}, {s(SWS,4)}, {s(sT0)} offen sc1')
    assert not qtail
    e(f's_branch {name}_hdr')
    p.label(f'{name}_kv'); p.restore(st0)
    center([x for n in range(6) for x in kv_dma(n, vQD)] + touches, name + '_kk')
    def kacc(ps, aa, b):
        n = 16 * aa + 4 * b
        if ps == 0: return v(ACC + n, 4)
        return v(ACC + 88 + n, 4) if n < 8 else a(JD + 64 + n - 8, 4) if n < 16 else a(JD + n - 16, 4)
    vKT = [vT + k for k in range(4)]; vKD = [vT + 4, vT + 5]; vTw = vT + 6
    for pp in range(2): e(f'v_mov_b32 {v(vKD[pp])}, {v(vQD[pp])}')
    e(f'v_bfe_u32 {v(ACC)}, v0, 5, 1'); e(f'v_mul_u32_u24 {v(ACC)}, 6144, {v(ACC)}'); e(f'v_and_b32 {v(ACC+1)}, 0x5ff, {v(vTR)}')
    e(f's_lshl_b32 {s(sT0)}, {s(sJ)}, 6'); e(f'v_xor_b32 {v(ACC+1)}, {s(sT0)}, {v(ACC+1)}')
    for u in range(4):
        e(f's_add_u32 {s(sT0)}, {s(sQF)}, {u}'); e(f's_and_b32 {s(sT1)}, {s(sT0)}, 3'); e(f's_lshl_b32 {s(sT1)}, {s(sT1)}, 5')
        e(f's_lshr_b32 {s(sT0)}, {s(sT0)}, 2'); e(f's_add_u32 {s(sT0)}, {s(sT0)}, {s(sJ)}'); e(f's_lshl_b32 {s(sT0)}, {s(sT0)}, 11')
        e(f'v_xor_b32 {v(vKT[u])}, {s(sT1)}, {v(ACC+1)}'); e(f'v_add3_u32 {v(vKT[u])}, {v(vKT[u])}, {s(sT0)}, {v(ACC)}')
    def ktr(G):
        n, aa = divmod(G, 5)
        return tr4(G, vKT[aa % 4], (n % 2) * 24576 + (aa // 4) * 2048, 12288)
    p.wait_tag('kv0'); e('s_barrier')
    for x in ktr(0) + ktr(1): e(x)
    mains = []; sl = Slots(720)
    for G in range(90):
        n, aa = divmod(G, 5); c = n % 9
        for b in range(4):
            for kk in range(2):
                acc = kacc(n // 9, aa, b)
                mains.append(f'v_mfma_f32_16x16x32_bf16 {acc}, {xf(b, 2*c+kk)}, {wf(G,kk)}, {"0" if (c == 0 and kk == 0) else acc}')
        bar = lambda G_: G_ % 10 == 3
        if G == 0 or bar(G - 1): sl.fix(8 * G - 1, lambda G=G: p.need(a(WF + 8 * (G % 3), 8)))
        if not bar(G) and G < 89: sl.fix(8 * G + 6, lambda G=G: p.need(a(WF + 8 * ((G + 1) % 3), 8)))
        if bar(G):
            sl.fix(8 * G - 1, lambda n=n: p.wait_tag(f'kv{min(n+2, 17)}')); sl.fix(8 * G, 's_barrier')
        if G % 10 == 7 and G < 80:
            dlt = 49152 if (n + 1) % 6 else -98304
            for u in range(4): sl.fix(8 * G + 7 + 0 * u, f'v_add_u32 {v(vKT[u])}, {dlt & 0xffffffff:#x}, {v(vKT[u])}')
        if G + 2 < 90:
            for k, x in enumerate(ktr(G + 2)): sl.fix(8 * G + 2 * k + (1 if bar(G) else 0), x)
    fd = lambda t: [x for x in ffn_dma(t) if x]
    for n in range(2, 18, 2):
        dm = kv_dma(n + 4, vKD) + kv_dma(n + 5, vKD) if n <= 12 else [x for t in range(3 * (n - 14) // 2, 3 * (n - 14) // 2 + 3) for x in fd(t)]
        sl.spread(40 * n + 25, min(40 * n + 103, 719), dm)
    set_eps_l = [f's_mov_b32 {s(sEps)}, {fhex(1e-6)}', f's_mov_b32 {s(sEps+1)}, {fhex(LOG2E)}']
    k = sl.stream(30, [f's_mov_b32 {s(JP[q])}, 0' for q in (2, 5, 8, 11)] + set_eps_l +
                  [f'v_and_b32 {v(vTw)}, 15, v0', f'v_lshlrev_b32 {v(vTw)}, 2, {v(vTw)}', f'v_add_u32 {v(vTw)}, {s(sSP)}, {v(vTw)}'] +
                  [f'ds_write_b32 {v(vTw)}, {v(vRS+b)} offset:{64*b}' for b in range(4)] +
                  [f'v_bfe_u32 {v(vTw)}, v0, 4, 2', f'v_lshlrev_b32 {v(vTw)}, 4, {v(vTw)}', f'v_add_u32 {v(vTw)}, {s(sSP)}, {v(vTw)}'] +
                  [f'ds_read_b128 {v(ACC + 80 + 4*b, 4)}, {v(vTw)} offset:{64*b}' for b in range(2)] +
                  [f's_lshl_b32 {s(sT1)}, {s(sT)}, 1', f's_add_u32 {s(sT1)}, {s(sT1)}, {s(sI)}', f's_lshl_b32 {s(sT1)}, {s(sT1)}, 3', f's_lshl_b32 {s(sT0)}, {s(sQF)}, 1',
                   f's_add_u32 {s(sT0)}, {s(sT0)}, {s(sJ)}', f's_add_u32 {s(sT1)}, {s(sT1)}, {s(sT0)}', f's_mul_i32 {s(sT1)}, {s(sT1)}, {18*1024}', f's_add_u32 {s(sT1)}, {s(sT1)}, {KVP_OFF}'])
    ph = []; tt = [vRS, vRS + 1, vRS + 2, vRS + 3]
    for b in range(4):
        rt = ACC + 80 + 4 * (b % 2)
        for aa in range(5):
            x = ACC + 16 * aa + 4 * b
            ph += [f'v_fma_f32 {v(x+r)}, {v(x+r)}, {v(rt+r)}, {s(sEps)}' for r in range(4)] + [f'v_mul_f32 {v(tt[r])}, {s(sEps+1)}, {v(x+r)}' for r in range(4)]
            ph += [f'v_exp_f32_e64 {v(tt[r])}, {v(tt[r])} clamp' for r in range(4)] + [f'v_max_f32 {v(x+r)}, {s(sEps)}, {v(x+r)}' for r in range(4)]
            ph += [f'v_add_f32 {v(x+r)}, {v(x+r)}, {v(tt[r])}' for r in range(4)]
            ph += [f'v_cvt_pk_bf16_f32 {v(ACC + 16*aa + 8*(b//2) + 2*(b%2) + d)}, {v(x+2*d)}, {v(x+2*d+1)}' for d in range(2)]
            if aa == 4 and b < 2: ph.insert(len(ph) - 18, f'ds_read_b128 {v(rt,4)}, {v(vTw)} offset:{64*(b+2)}')
    room = sum(max(0, 2 - sl.cnt.get(k_, 0)) for k_ in range(364, 720)); tot = sum(Slots.cost(x) for x in ph)
    every = max(1, int((720 - 364) / max(tot - room + 24, 1)))
    k_ = 364
    for x in ph:
        while k_ < 719 and sl.cnt.get(k_, 0) + Slots.cost(x) > (3 if (k_ % every == 0) else 2) and not (Slots.cost(x) == 2 and sl.cnt.get(k_, 0) == 1 and k_ % every == 0): k_ += 1
        sl.fix(k_, x)
    print('kv overflow', sl.over(0, 360), sl.over(360, 720), 'last', sl.cnt.get(719), 'every', every, file=__import__('sys').stderr)
    interleave(p, mains, sl.f)
    PK = {(aa, hb): v(ACC + 16 * aa + 8 * hb, 4) for aa in range(5) for hb in range(2)}
    RT = [[vT, ACC + 80], [vRS, ACC + 84]]
    RT = [[vT, vRS], [ACC + 80, ACC + 84]]
    e(f'ds_read_b128 {v(vT,4)}, {v(vTw)}'); e(f'v_mov_b32 {v(vT+4)}, {v(vTw)}')
    p.wait_lg(0); e('s_barrier')
    stamp(4)
    e(f'ds_read_b64 {v(vRS,2)}, {v(vT+4)} offset:64'); e(f'ds_read_b64 {v(vRS+2,2)}, {v(vT+4)} offset:72')
    for k in range(4): e(f'v_accvgpr_write_b32 {a(WF+k)}, {s(sOnes)}')
    FQ = [ACC + 16 * aa + 4 + 8 * hb for aa in range(5) for hb in range(2)]
    PV = {}; DT = [WF + 4 + 4 * k for k in range(5)]; nd = [0]; mq = []; stq = [x for x in fd(6)]
    def kvmm(aa):
        for T_ in [T_ for T_ in (aa - 1, aa, aa + 1) if 0 <= T_ < 5] + [None]:
            d = a(DT[nd[0] % 5], 4); nd[0] += 1
            u = 13 + aa if T_ is None else KV_PAIRS.index((aa, T_))
            for hb in range(2):
                mq.append((f'v_mfma_f32_16x16x32_bf16 {d}, {PK[aa, hb]}, {a(WF,4) if T_ is None else PV[T_, hb]}, {"0" if hb == 0 else d}',
                           [f's_add_u32 {s(sT2)}, {s(sT1)}, {1024*u}', f'buffer_store_dwordx4 {d}, {v(vL16)}, {s(SWS,4)}, {s(sT2)} offen sc1'] if hb else []))
    pend_st = []
    def tick():
        if mq:
            m_, st_ = mq.pop(0); e(m_)
            if st_: pend_st.append([6, st_])
        for x in pend_st: x[0] -= 1
        if pend_st and pend_st[0][0] <= 0: put(pend_st.pop(0)[1])
        elif stq and not mq: put([stq.pop(0)])
    spare = FQ.pop()
    for T_ in range(5):
        for hb in range(2):
            if T_ == 0 and hb == 0: q0, q1 = ACC + 88, ACC + 92
            else:
                q0, q1 = FQ.pop(0), spare
                src = kacc(1, T_, 2 * hb); base = int(src[2:src.index(':')])
                for k in range(8):
                    e(f'v_accvgpr_read_b32 {v((q0, q1)[k//4] + k%4)}, {a(base + k)}')
                    if k % 2: tick()
            for k in range(0, 8, 2): e(f'v_pk_mul_f32 {v((q0, q1)[k//4] + k%4, 2)}, {v((q0, q1)[k//4] + k%4, 2)}, {v(RT[hb][k//4] + k%4, 2)}')
            for d in range(4): e(f'v_cvt_pk_bf16_f32 {v(q0+d)}, {v((q0, q1)[d//2] + 2*(d%2))}, {v((q0, q1)[d//2] + 2*(d%2) + 1)}')
            PV[T_, hb] = v(q0, 4)
        if T_ >= 1: kvmm(T_ - 1)
    kvmm(4)
    while mq or pend_st or stq: tick()
    p.label(f'{name}_hdr'); p.restore(stF)
    stamp(5)
    acc = lambda ai, b: ACC + 16 * ai + 4 * b
    def ftr(G):
        G %= 36; c, g = divmod(G, 4)
        return tr4(G, vTR + 2 * (c // 4) + (g >> 1), (c % 4) * 16384 + (g & 1) * 2048, 8192)
    vPg, vP0 = vT + 4, vT + 6
    e(f'v_mov_b32 {v(vPg)}, {s(sN)}'); e(f'v_mov_b32 {v(vPg+1)}, {s(sN+1)}'); e(f'v_min_u32 {v(vP0)}, 1, v0'); e(f'v_lshlrev_b32 {v(vP0)}, 30, {v(vP0)}')
    e(f's_mov_b32 {s(sInc)}, {6*1024}'); e(f's_mov_b32 {s(sIncL)}, {10*1024}')
    e(f's_cmp_eq_u32 {s(sM)}, 0'); e(f's_cselect_b32 {s(sInc)}, {2*1024}, {s(sInc)}'); e(f's_cselect_b32 {s(sIncL)}, {8*1024}, {s(sIncL)}')
    e(f's_lshl_b32 {s(sT0)}, {s(sT)}, 2'); e(f's_add_u32 {s(sT0)}, {s(sT0)}, {s(sQF)}'); e(f's_lshl_b32 {s(sPc)}, {s(sT0)}, 7'); e(f's_add_u32 {s(sPc)}, {s(sPc)}, {CL_OFF}')
    e(f's_mul_i32 {s(sT0)}, {s(sT0)}, 3'); e(f's_add_u32 {s(sT0)}, {s(sT0)}, {s(sM)}'); e(f's_sub_u32 {s(sT0)}, {s(sT0)}, 1')
    e(f's_lshl_b32 {s(sT1)}, {s(sQF)}, 4'); e(f's_add_u32 {s(sT1)}, {s(sT1)}, {s(sT)}'); e(f's_add_u32 {s(sT1)}, {s(sT1)}, 192')
    e(f's_cmp_eq_u32 {s(sM)}, 0'); e(f's_cselect_b32 {s(sT0)}, {s(sT1)}, {s(sT0)}'); e(f's_lshl_b32 {s(sT0)}, {s(sT0)}, 3'); e(f's_add_u32 {s(sPg)}, {s(sT0)}, {PROG_OFF}')
    htouch = lambda inc: []
    def put2(sl, k, items):
        for x in items:
            if callable(x):
                while sl.cnt.get(k, 0): k += 1
                sl.fix(k, x, cost=2)
            else: k = sl.stream(k, [x])
        return k
    def check(lab, data, need, reload, pre=(), inline=True):
        seq = [f'v_xor_b32 {v(data)}, {s(sN)}, {v(data)}', f'v_sub_u32 {v(data+1)}, {v(data+1)}, {need}', f'v_lshrrev_b32 {v(data+1)}, 4, {v(data+1)}',
               f'v_or_b32 {v(data)}, {v(data)}, {v(data+1)}', f'v_cmp_ne_u32 vcc, 0, {v(data)}']
        SL = next((o[2:] for o in opt if o.startswith('sl') and o[2:].isdigit()), None)
        spin = [f's_mov_b32 {s(sSpin)}, {SPIN}', f'{lab}_w2:'] + ([f's_sleep {SL}'] if SL and not lab.endswith('_cf') else []) + [reload, 's_waitcnt vmcnt(0)'] + seq + \
               [f's_sub_u32 {s(sSpin)}, {s(sSpin)}, 1', 's_cmp_eq_u64 vcc, 0', f's_cbranch_scc1 {lab}_d', f's_cmp_lg_u32 {s(sSpin)}, 0', f's_cbranch_scc1 {lab}_w2', f's_branch {lab}_d']
        def f():
            if inline:
                put(seq); e('s_nop 0'); e('s_cmp_eq_u64 vcc, 0'); e(f's_cbranch_scc0 {lab}_w'); blk = [f'{lab}_w:'] + spin
            else:
                p.need(v(data, 2)); e(f's_cmp_eq_u32 {s(sCnt)}, 1'); e(f's_cbranch_scc1 {lab}_w')
                blk = [f'{lab}_w:'] + list(pre) + seq + ['s_nop 0', 's_cmp_eq_u64 vcc, 0', f's_cbranch_scc1 {lab}_d'] + spin
            p.label(f'{lab}_d')
            if blk not in slow: slow.append(blk)
        return f
    p.wait_tag('slot1', 0); e('s_barrier')
    for x in ftr(0) + ftr(1): e(x)
    def prod(h, b): return [f'v_mul_f32 {v(PR + 16*h + 4*b + r)}, {v(acc(2*h, b) + r)}, {v(acc(2*h+1, b) + r)}' for r in range(4)]
    def fin(b, inc):
        o = PR + 4 * b
        return ([f'v_mul_f32 {v(o + 16*h + r)}, {v(o + 16*h + r)}, {v(vRS2+b)}' for h in range(2) for r in range(4)] +
                [f'v_cvt_pk_bf16_f32 {v(o)}, {v(o)}, {v(o+1)}', f'v_cvt_pk_bf16_f32 {v(o+1)}, {v(o+2)}, {v(o+3)}',
                 f'v_cvt_pk_bf16_f32 {v(o+2)}, {v(o+16)}, {v(o+17)}', f'v_cvt_pk_bf16_f32 {v(o+3)}, {v(o+18)}, {v(o+19)}',
                 (f'buffer_store_dwordx4 {v(o,4)}, {v(vL16)}, {s(SH,4)}, {s(sH+b)} offen sc1', 'h')] +
                ([f's_add_u32 {s(sH+b)}, {s(sH+b)}, {s(inc)}'] if inc else []))
    progress = [f'v_add_u32 {v(vPg+1)}, 1, {v(vPg+1)}', f'buffer_store_dwordx2 {v(vPg,2)}, {v(vP0)}, {s(SWS,4)}, {s(sPg)} offen sc1']
    def slab(sl, mains, last):
        for G in range(36):
            c, g = divmod(G, 4)
            for b in range(4):
                for kk in range(2):
                    cc = '0' if (c == 0 and kk == 0) else v(acc(g, b), 4)
                    mains.append(f'v_mfma_f32_16x16x32_bf16 {v(acc(g,b),4)}, {wf(G,kk)}, {xf(b, 2*c+kk)}, {cc}')
            bar = lambda G_: G_ % 4 == 2 and (last or G_ // 4 in (1, 4, 7))
            if G == 0 or bar(G - 1): sl.fix(8 * G - 1, lambda G=G: p.need(a(WF + 8 * (G % 3), 8)))
            if not bar(G) and G < 35: sl.fix(8 * G + 6, lambda G=G: p.need(a(WF + 8 * ((G + 1) % 3), 8)))
            if bar(G):
                tag = (f'slot{(c+1)%9}' if c < 8 else 'slot2') if last else f'slot{(c+3)%9}'
                if c == 7: sl.fix(8 * G - 3, lambda: p.wait_tag('h'))
                sl.fix(8 * G - 1, lambda tag=tag: p.wait_tag(tag)); sl.fix(8 * G, 's_barrier')
            if not (last and G >= 34):
                for k, x in enumerate(ftr(G + 2)): sl.fix(8 * G + 2 * k + (1 if bar(G) else 0), x)
        sl.stream(8 * 33 + 5, prod(0, 0), last=8 * 34 - 1, cap=3)
        sl.stream(0, prod(1, 0) + prod(1, 1) + prod(1, 2) + prod(1, 3), last=15)
    def body():
        mains = []; sl = Slots(288)
        slab(sl, mains, False)
        sl.stream(8 * 34 + 1, prod(0, 1) + prod(0, 2) + prod(0, 3), last=287)
        fd = lambda t: [x for x in ffn_dma(t) if x]
        d8 = fd(8); d8[-1] = f's_add_u32 {s(sWo)}, {s(sWo)}, {(128 - 8*CH) & 0xffffffff:#x}'
        jl = [f's_mov_b32 {s(sJo)}, {s(JP[3])}', f's_mov_b32 m0, {s(sSP)}']
        if 'j3' in opt: jl.insert(0, lambda: put([f's_cmp_eq_u32 {s(sCnt)}, {s(sJob)}', f's_cselect_b32 {s(SJS+2)}, 0, {s(SJS+2)}']))
        for q in range(4):
            jl += [(f'buffer_load_dwordx4 {v(vJS)}, {s(SJS,4)}, {s(sJo)} offen offset:{1024*q}' + (' nt' if 'jnt' in opt else '') + ' lds', 'job'), f's_add_u32 {s(sJo)}, {s(sJo)}, 8192']
        st = [fin(b, None)[12] for b in range(4)]; pos = []
        g_ = gtouch(); g_[0].mem = True
        if 'notouch' in opt: g_ = []
        if 'slowlate' in opt:
            sl.spread(49, 143, fd(7) + st + jl + g_ + d8 + fd(0), pos)
            hp = pos[4:8]; jpos = pos[11]
        else:
            sl.spread(17, 47, jl + [st[0]], pos)
            sl.spread(49, 143, fd(7)[:3] + [st[1]] + fd(7)[3:] + [st[2]] + d8[:3] + [st[3]] + d8[3:] + g_ + fd(0), pos)
            hp = (pos[4], pos[7], pos[10], pos[13]); jpos = pos[13]
        sl.spread(145, 239, fd(1) + fd(2) + fd(3))
        once = [lambda: put([f's_cmp_eq_u32 {s(sCnt)}, 2', f's_cselect_b32 {s(sT0)}, {s(sPg)}, 0x20000000']), progress[0], progress[1].replace(s(sPg) + ' offen', s(sT0) + ' offen')]
        sl.spread(241, 287, fd(4) + once + fd(5) + fd(6))
        k = 16
        for b, ps in enumerate(hp):
            f = fin(b, sInc); k = sl.stream(k, f[:12], last=ps - 1); sl.stream(ps + 1, f[13:])
        k = sl.stream(jpos + 1, [f's_mov_b32 {s(SJD+2)}, {s(JP[5])}', f's_and_b32 {s(sCr)}, {s(JP[5])}, 15'])
        j2 = [f's_mov_b32 {s(sJo)}, {s(JP[4])}'] + [f's_mov_b32 {s(JP[q])}, {s(JP[6+q])}' for q in range(6)]
        j2 += [f's_mov_b32 {s(JP[8])}, 0', f's_mov_b32 {s(JP[11])}, 0']
        if 'j3' in opt:
            cs = lambda *xs: (lambda: put([f's_cmp_eq_u32 {s(sCnt)}, {s(sJob)}'] + list(xs)))
            j2 = [j2[0], cs(f's_cselect_b32 {s(SJD+2)}, 0, {s(SJD+2)}', *[f's_cselect_b32 {s(JP[q])}, {s(JP[q])}, {s(JP[6+q])}' for q in (0, 1)]),
                  cs(*[f's_cselect_b32 {s(JP[q])}, {s(JP[q])}, {s(JP[6+q])}' for q in (2, 3, 4)]),
                  cs(f's_cselect_b32 {s(JP[5])}, {s(JP[5])}, {s(JP[11])}', f's_cselect_b32 {s(JP[8])}, {s(JP[8])}, 0', f's_cselect_b32 {s(JP[11])}, {s(JP[11])}, 0')]
        j2 += [f'v_xor_b32 {v(vT+u)}, {32*u}, {v(vJT)}' for u in range(1, 4)]
        k = sl.stream(k + 1, j2)
        jt = jtouch(); k = sl.stream(k, jt[:3])
        if jt[3:]:
            k = (k + 2) | 1
            while sl.cnt.get(k, 0): k += 1
            sl.fix(k, jt[3], cost=2)
        assert k < 32 * 6
        j3 = [lambda: p.wait_tag('job')]
        for u in range(4):
            for h in range(2): j3.append(f'ds_read_b64_tr_b16 {a(JD + 4*u + 2*h, 2)}, {v(vT+u) if u else v(vJT)} offset:{2048*h}')
        k = sl.stream(32 * 6 + (10 if 'slowlate' in opt else 0), j3, gap=1)
        for u in range(4):
            if u:
                k += 1; sl.fix(k, lambda u=u: put([f's_cmp_le_u32 {s(sCr)}, {u}', f's_cselect_b32 {s(sT0)}, {(144*9 - 9)*1024}, 0', f's_add_u32 {s(sT0)}, {s(sT0)}, {s(sJo)}']), cost=2)
            k = sl.stream(k + 2, [f'buffer_store_dwordx4 {a(JD+4*u,4)}, {v(vL16)}, {s(SJD,4)}, {s(sT0 if u else sJo)} offen offset:{1024*u} sc1'])
        assert k < 240, k
        sl.stream(8 * 20, [f's_mov_b32 {s(SH+2)}, {0 if "nohst" in opt else PQ_OFF}'])
        vPd, vPa, vPn = vRS + 2, vRS + 1, vT
        pollA = f'buffer_load_dwordx2 {v(vPd,2)}, {v(vPa)}, {s(SWS,4)}, 0 offen sc1'
        if 'lateA' not in opt: sl.stream(32 * 5, [f'v_lshlrev_b32 {v(vPa)}, 3, v0', f'v_add_u32 {v(vPa)}, {PROG_OFF}, {v(vPa)}', pollA])
        if 'lateA' not in opt: sl.fix(8 * 30 - 4, check(name + '_ca', vPd, v(vPn), pollA, inline=False,
               pre=[f'v_and_b32 {v(vPn)}, 3, v0', f'v_min_u32 {v(vPn)}, 1, {v(vPn)}', f'v_lshl_add_u32 {v(vPn)}, {v(vPn)}, 1, 1', f'v_add_u32 {v(vPn)}, {s(sN+1)}, {v(vPn)}']), cost=2)
        def pull():
            e(f's_cmp_eq_u32 {s(sCnt)}, 1'); e(f's_cbranch_scc1 {name}_pw'); p.label(f'{name}_pd')
            t0, t1, t2 = vT, vT + 1, vT + 2
            blk = [f'{name}_pw:', f's_and_b32 {s(sT0)}, {s(sT)}, 7', f's_lshl_b32 {s(sT0)}, {s(sT0)}, 2', f's_add_u32 {s(sT0)}, {s(sT0)}, {s(sW)}',
                   f's_mul_i32 {s(sT1)}, {s(sM)}, 144', f's_mul_i32 {s(sT2)}, {s(sQF)}, 36', f's_add_u32 {s(sT1)}, {s(sT1)}, {s(sT2)}', f's_mul_i32 {s(sT1)}, {s(sT1)}, 9216',
                   f's_mul_i32 {s(sT2)}, {s(sT0)}, {81*128}', f's_add_u32 {s(sT1)}, {s(sT1)}, {s(sT2)}', f's_add_u32 {s(sT1)}, {s(sT1)}, {WT_OFF}',
                   f'v_lshlrev_b32 {v(t0)}, 3, {v(vL16)}', f'v_min_u32 {v(t1)}, {16*128}, {v(t0)}',
                   f'buffer_load_dword {v(vJS2)}, {v(t0)}, {s(SWS,4)}, {s(sT1)} offen', f's_add_u32 {s(sT1)}, {s(sT1)}, 8192',
                   f'buffer_load_dword {v(vJS2)}, {v(t1)}, {s(SWS,4)}, {s(sT1)} offen',
                   f's_mul_i32 {s(sT0)}, {s(sT0)}, 41', f'v_lshrrev_b32 {v(t0)}, 4, {v(vL16)}', f'v_min_u32 {v(t1)}, 40, {v(t0)}', f'v_add_u32 {v(t1)}, {s(sT0)}, {v(t1)}', f'v_min_u32 {v(t1)}, 1295, {v(t1)}',
                   f'v_mul_u32_u24 {v(t2)}, 3641, {v(t1)}', f'v_lshrrev_b32 {v(t2)}, 18, {v(t2)}', f'v_mul_u32_u24 {v(t2)}, {36*1024 - 72*128}, {v(t2)}', f'v_lshl_add_u32 {v(t1)}, {v(t1)}, 7, {v(t2)}',
                   f's_mul_i32 {s(sT1)}, {s(sM)}, 9216', f's_add_u32 {s(sT1)}, {s(sT1)}, {WOT_OFF}',
                   f'buffer_load_dword {v(vJS2)}, {v(t1)}, {s(SWS,4)}, {s(sT1)} offen',
                   f's_lshl_b32 {s(sT0)}, {s(sT)}, 2', f's_add_u32 {s(sT0)}, {s(sT0)}, {s(sQF)}', f's_lshl_b32 {s(sT0)}, {s(sT0)}, 4', f's_lshl_b32 {s(sT1)}, {s(sM)}, 2', f's_add_u32 {s(sT0)}, {s(sT0)}, {s(sT1)}',
                   f's_add_u32 {s(sT0)}, {s(sT0)}, {s(sW)}', f's_mul_i32 {s(sT0)}, {s(sT0)}, {18*128}', f's_add_u32 {s(sT0)}, {s(sT0)}, {PQ_OFF}',
                   f'v_min_u32 {v(t0)}, 17, {v(t0)}', f'v_lshlrev_b32 {v(t0)}, 7, {v(t0)}', f'buffer_load_dword {v(vJS2)}, {v(t0)}, {s(SWS,4)}, {s(sT0)} offen',
                   f's_branch {name}_pd']
            if blk not in slow: slow.append(blk)
        if 'nopull' not in opt and 'lateA' not in opt: sl.fix(8 * 31 + 6, pull, cost=2)
        k = sl.stream(70, atoms(SEC['park'])); assert k < 8 * 33, k
        k = sl.stream(k, [f's_mul_i32 {s(tA)}, s2, 1214', f's_lshr_b32 {s(tA)}, {s(tA)}, 16', f's_lshl_b32 {s(tA)}, {s(tA)}, 4', f's_add_u32 {s(tA)}, {s(tA)}, {192 - 48}', f's_mul_i32 {s(tB)}, {s(sW)}, 48',
                      lambda: put(['s_cmp_lt_u32 s2, 216', f's_cselect_b32 {s(tA)}, {s(tA)}, 0', f's_cselect_b32 {s(tC)}, 1, 3']),
                      f'v_and_b32 {v(vPa)}, 63, v0', f'v_cmp_gt_u32 vcc, 48, {v(vPa)}', f'v_mov_b32 {v(vPd)}, {s(tA)}', f'v_mov_b32 {v(vPd+1)}, {s(tB)}', f'v_mov_b32 {v(vPn)}, {s(tC)}',
                      f'v_cndmask_b32 {v(vPd)}, {v(vPd)}, {v(vPd+1)}, vcc', f'v_cndmask_b32 {v(vPn)}, {v(vPn)}, 3, vcc', f'v_add_u32 {v(vPa)}, {v(vPa)}, {v(vPd)}',
                      f'v_lshlrev_b32 {v(vPa)}, 3, {v(vPa)}', f'v_add_u32 {v(vPa)}, {PROG_OFF}, {v(vPa)}', f'v_add_u32 {v(vPn)}, {s(sN+1)}, {v(vPn)}']); assert k < 8 * 33, k
        if stamps and 'floop' in opt:
            for j_, c_ in enumerate((3, 6, 9)): sl.fix(32 * c_ - 2, lambda j_=j_: stamp(28 + j_, True), cost=2)
        if not ov: ov.append(1); print('overflow loop', [sl.over(32*c, 32*c+32) for c in range(9)], file=__import__('sys').stderr)
        interleave(p, mains, sl.f)
    ov = []
    def back():
        e(f's_sub_u32 {s(sCnt)}, {s(sCnt)}, 1'); e(f's_cmp_lg_u32 {s(sCnt)}, 0'); e(f's_cbranch_scc1 {name}_loop')
    p.loop(body, f'{name}_loop', back)
    stamp(6)

    sC, sQK = sM, sQF
    SO, SJ, SA, SP_ = SQ, SJS, SJD, SGt
    free_s = JP + [sKV + k for k in range(6)] + sTB + [sJob, sJo, sLine, sTo, sCr, sSP, sOnes]
    sWd, sWs, sH2a, sH2b, sJs, sJd, sAl, sTl, sHi, sRec, sWo2, sW8, sPq0, sPq1, sPart, sFl, sSel, sT3, sM0p, sRf = free_s[:20]
    sH2 = [sH2a, sH2b]; sHd = free_s[20:24]; sXo = sAl; vPk = vPw
    PARK = [sWs, sM0p, sWd, sH2a, sH2b, sJs, sJd, SJ + 2, SA + 2, sRf, sTl] + sHd
    ACC2 = XV
    big = lambda f: ACC + 4 * f if f < 24 else XV + 72 + 4 * (f - 24)
    vLx = [vL16, vTg, vRS + 1]; vRD = [vT, vT + 1, vT + 2, vT + 3]; vXO2, vX8 = vJS, vJT
    vXD = [vTR, vTR + 4, vRS + 2]; TQ = [vT + 4, vRS2 + 2]
    assert vTR % 4 == 0 and (vRS + 2) % 4 == 0 and (vRS2 + 2) % 4 == 0 and XV + 72 + 52 <= 252
    vCk = 252
    HBs = [JD, JD + 32, XA + 16, XA + 48]; AR = XA + 80
    hb = lambda c, b, ks: HBs[c % 4] + 16 * b + 4 * ks
    WR = [XA + 128 + 4 * k for k in range(8)] + [XA + 4 * k for k in range(4)] + [WF + 4 * k for k in range(6)] + [JD + 68, AR + 44] + \
         [HBs[n] + 4 * k for n in (1, 2, 3, 0) for k in range(8)] + [AR, AR + 4]
    wreg = lambda f: WR[f]
    assert npk[0] == len(PARK)
    def hloads(c):
        out = []
        for b in range(2):
            for ks in range(4): out.append(f'buffer_load_dwordx4 {a(hb(c,b,ks),4)}, {v(vL16)}, {s(SWS,4)}, {s(sH2[b])} offen offset:{1024*ks} sc1')
            out.append(f's_add_u32 {s(sH2[b])}, {s(sH2[b])}, 4096')
        return out
    def sdma(slot, tag):
        return [f's_add_u32 m0, {s(sM0w)}, {slot*16384}'] + \
               [(f'buffer_load_dwordx4 {v(vL16)}, {s(SWS,4)}, {s(sWs)} offen offset:{1024*q} sc1 lds', tag) for q in range(4)] + [f's_add_u32 {s(sWs)}, {s(sWs)}, 16384']
    def wdma(c):
        out = []
        for pc in range(9):
            if pc % 4 == 0: out.append(f's_add_u32 m0, {s(sM0p)}, {(c%4)*SLOT + 4096*(pc//4)}')
            out.append((f'buffer_load_dwordx4 {v(vLx[pc//4])}, {s(SWS,4)}, {s(sWd)} offen offset:{1024*(pc%4)} sc1 lds', f'w{c}'))
        out.append(f's_add_u32 {s(sWd)}, {s(sWd)}, {SLOT}')
        return out
    acc2 = lambda aa, b: ACC2 + 8 * aa + 4 * b
    ar = lambda n, ks: AR + 16 * (n % 3) + 4 * ks
    def ard(n):
        c, aa = divmod(n, 9)
        return [f'ds_read_b128 {a(ar(n,ks),4)}, {v(vRD[c%4])} offset:{ks*9216 + aa*1024}' for ks in range(4)]
    grp = lambda *xs: (lambda: put(list(xs)))
    mains = []; sl = Slots(288 + 648); B0 = 288
    slab(sl, mains, True)
    for n in range(2):
        for k, x in enumerate(ard(n)): sl.fix(8 * (34 + n) + 2 * k + (1 if n == 0 else 0), x)
    for n in range(81):
        c, aa = divmod(n, 9)
        for b in range(2):
            for ks in range(4):
                cc = '0' if (c == 0 and ks == 0) else v(acc2(aa, b), 4)
                mains.append(f'v_mfma_f32_16x16x32_bf16 {v(acc2(aa,b),4)}, {a(ar(n,ks),4)}, {a(hb(c,b,ks),4)}, {cc}')
        if n == 0 or (aa == 8 and c < 8): sl.fix(B0 + 8 * n - 1, lambda n=n, c=c, aa=aa: p.need(a(ar(n, 0), 16), *([a(HBs[c % 4], 32)] if aa == 0 else [])))
        if n < 80 and not (aa == 7 and c < 8): sl.fix(B0 + 8 * n + 6, lambda n=n + 1: p.need(a(ar(n, 0), 16), *([a(HBs[(n // 9) % 4], 32)] if n % 9 == 0 else [])))
        late = 0
        if aa == 7 and c < 8:
            tag = ('slot4', 'slot6', 'slot8x')[c] if c < 3 else f'w{c+1}'
            sl.fix(B0 + 8 * n - 1, lambda tag=tag: p.wait_tag(tag)); sl.fix(B0 + 8 * n, 's_barrier'); late = 1
        if aa == 1 and c <= 5: sl.fix(B0 + 8 * n - 4, 's_barrier')
        if n + 2 < 81:
            for k, x in enumerate(ard(n + 2)): sl.fix(B0 + 8 * n + 2 * k + late, x)
    if stamps: sl.fix(B0 - 1, lambda: stamp(7), cost=2)
    if stamps and 'fine' in opt:
        for c in range(1, 9): sl.fix(B0 + 72 * c - 1, lambda c=c: stamp(15 + c), cost=2)
        for c in (2, 4, 6, 8): sl.fix(32 * c - 1, lambda c=c: stamp(24 + c // 2), cost=2)
    sl.stream(8 * 34 + 1, prod(0, 1) + prod(0, 2) + prod(0, 3), last=287)
    sl.stream(B0, prod(1, 0) + prod(1, 1) + prod(1, 2) + prod(1, 3))
    def srd2(r, ptr): return [f's_mov_b32 {s(r)}, {s(ptr)}', f's_mov_b32 {s(r+1)}, {s(ptr+1)}']
    rl = lambda a_, b_: [f'v_readlane_b32 {s(PARK[n])}, {v(vPk)}, {n}' for n in range(a_, b_)]
    def fins(start, inc, pos):
        k = start
        for b in range(4):
            f = fin(b, inc); k = sl.stream(k, f[:12], last=pos[b] - 1)
            if inc: sl.stream(pos[b] + 1, f[13:])
        return k
    JL = XV; vJo = XV + 32; JS, vJt = XV + 72, XV + 76; vJd, vHe = vRS + 2, vRS + 3
    vPd, vPn, vPa = vRS + 2, vT, vRS + 1
    vCd, vCa, vCn = vCk, vCk + 2, vCk + 3
    REC = lambda tl, pc: big(3 * tl + pc)
    PQ = lambda b, g: big(27 + 5 * b + g)
    pollA = f'buffer_load_dwordx2 {v(vPd,2)}, {v(vPa)}, {s(SWS,4)}, 0 offen sc1'
    sl.stream(34, [f's_lshl_b32 {s(sPg)}, {s(sM)}, 3', f's_add_u32 {s(sPg)}, {s(sPg)}, {s(sPc)}'])
    pos = []
    st = [fin(b, None)[12] for b in range(4)]
    fd = lambda t: [x for x in ffn_dma(t) if x]
    sl.spread(17, 79, [pollA] + fd(7)[:3] + [st[0]] + fd(7)[3:] + [st[1]] + fd(8)[:3] + [st[2]] + fd(8)[3:-1] + [st[3]], pos)
    fins(16, sIncL, [pos[3], pos[6], pos[9], pos[12]])
    if 'nochkA' not in opt: sl.fix(8 * 10 - 4, check(name + '_ca', vPd, v(vPn), pollA), cost=2)
    k = sl.stream(18, [] + rl(0, 8) + srd2(SJ, SWS) + rl(10, 11), last=75)
    jobs0 = [f'v_and_b32 {v(vHe)}, 15, v0', f'v_bfe_u32 {v(vJd)}, v0, 4, 2', f'v_mul_u32_u24 {v(vJo)}, {8*18*1024}, {v(vJd)}', f'v_lshl_add_u32 {v(vJo)}, {v(vHe)}, 4, {v(vJo)}',
             f'v_lshlrev_b32 {v(vJd)}, 28, {v(vJd)}', f'v_lshl_add_u32 {v(vJd)}, {v(vHe)}, 4, {v(vJd)}',
             f'v_add_u32 {v(vHe)}, {s(sTl)}, {v(vHe)}', f'v_mul_u32_u24 {v(vHe)}, 3641, {v(vHe)}', f'v_lshrrev_b32 {v(vHe)}, 16, {v(vHe)}']
    jobl = []
    for k in range(8):
        jobl += [f'buffer_load_dwordx4 {v(JL+4*k,4)}, {v(vJo)}, {s(SJ,4)}, {s(sJs)} offen sc1', f's_add_u32 {s(sJs)}, {s(sJs)}, {4*8*18*1024}']
    hl = hloads(0) + hloads(1)
    sl.spread(81, 112, sdma(0, 'slot0') + sdma(1, 'slot1'))
    k = sl.stream(96, jobs0); assert k < 112
    sl.spread(113, 144, sdma(2, 'slot2') + jobl[:8]); sl.spread(145, 176, sdma(3, 'slot3') + jobl[8:])
    sl.spread(177, 208, sdma(4, 'slot4') + hl[:5]); sl.spread(209, 240, sdma(5, 'slot5') + hl[5:10])
    sl.spread(241, 271, sdma(6, 'slot6') + progress + hl[10:15])
    sl.spread(273, 287, sdma(7, 'slot7'))
    k = sl.stream(113, rl(8, 10) + rl(11, 15) + [f'v_add_u32 {v(vRD[n])}, {n*SLOT}, {v(vL16)}' for n in range(4)] + [f'v_add_u32 {v(vLx[1])}, 4096, {v(vL16)}', f'v_add_u32 {v(vLx[2])}, 8192, {v(vL16)}'])
    tA, tB = sT1, sT2
    k = sl.stream(k, srd2(SX, sXp) + [f's_mov_b32 {s(SX+2)}, {S*D*2}'] + srd2(SO, sOp) + [f's_mov_b32 {s(SO+2)}, {S*D*2}'] + srd2(SP_, SWS) +
                  [f's_lshl_b32 {s(tA)}, {s(sT)}, 2', f's_add_u32 {s(tA)}, {s(tA)}, {s(sQF)}', f's_mul_i32 {s(sXo)}, {s(tA)}, {32*1152}', f's_mul_i32 {s(tB)}, {s(sM)}, 288', f's_add_u32 {s(sXo)}, {s(sXo)}, {s(tB)}',
                   f's_mul_i32 {s(tA)}, {s(tA)}, 36', f's_mul_i32 {s(tB)}, {s(sW)}, 9', f's_lshr_b32 {s(tB)}, {s(tB)}, 1', f's_add_u32 {s(tA)}, {s(tA)}, {s(tB)}', f's_lshl_b32 {s(tA)}, {s(tA)}, 10',
                   f's_add_u32 {s(sPq0)}, {s(tA)}, {PQ_OFF}', f's_add_u32 {s(sPq1)}, {s(sPq0)}, {18*1024}',
                   f's_mul_i32 {s(sRec)}, {s(sW)}, {9*3072}', f's_add_u32 {s(sRec)}, {s(sRec)}, {REC_OFF}'])
    setup4 = [f'v_and_b32 {v(vXO2)}, 31, v0', f'v_mul_u32_u24 {v(vXO2)}, 1152, {v(vXO2)}', f'v_bfe_u32 {v(vX8)}, v0, 5, 1', f'v_lshl_add_u32 {v(vXO2)}, {v(vX8)}, 4, {v(vXO2)}',
              f'v_add_u32 {v(vX8)}, {s(sXo)}, {v(vXO2)}', f's_lshl_b32 {s(tA)}, {s(sW)}, 5', f'v_add_u32 {v(vXO2)}, {s(tA)}, {v(vX8)}',
              f's_mul_i32 {s(tB)}, {s(sM)}, {9*1024}', f's_add_u32 {s(sW8)}, {s(tB)}, {WOT_OFF + 8192}', f's_lshl_b32 {s(tA)}, {s(sW)}, 10', f's_add_u32 {s(tB)}, {s(tB)}, {s(tA)}', f's_add_u32 {s(sWo2)}, {s(tB)}, {WOT_OFF}',
              f's_and_b32 {s(tA)}, s2, 0xfc', f's_add_u32 {s(tA)}, {s(tA)}, {s(sW)}', f's_lshl_b32 {s(tB)}, {s(tA)}, 4', f's_add_u32 {s(tB)}, {s(tB)}, {s(sQF)}', f's_lshl_b32 {s(tB)}, {s(tB)}, 3', f's_add_u32 {s(sFl)}, {s(tB)}, {FLAG_OFF}',
              f's_lshl_b32 {s(tA)}, {s(tA)}, 2', f's_add_u32 {s(tA)}, {s(tA)}, {s(sQF)}', f's_mul_i32 {s(tA)}, {s(tA)}, 9216', f's_add_u32 {s(sPart)}, {s(tA)}, {PART_OFF}',
              grp(f's_cmp_eq_u32 {s(sW)}, {s(sQF)}', f's_cselect_b32 {s(SP_+2)}, 0, {STAMP_OFF}'), f's_add_u32 {s(sSel)}, {s(sQF)}, 1', f's_and_b32 {s(sSel)}, {s(sSel)}, 3']
    assert k < 222, k
    jobv = []
    for k in range(1, 8):
        jobv += [f'v_add_f32 {v(JS+r)}, {v((JL if k == 1 else JS)+r)}, {v(JL+4*k+r)}' for r in range(4)]
    kj = sl.stream(222, jobv); assert kj < B0 - 2, kj
    pollC = f'buffer_load_dwordx2 {v(vCd,2)}, {v(vCa)}, {s(SWS,4)}, {s(sPc)} offen sc1'
    k = sl.stream(256, [f'v_and_b32 {v(vCn)}, 3, v0', f'v_max_u32 {v(vCa)}, 1, {v(vCn)}', f'v_lshlrev_b32 {v(vCa)}, 3, {v(vCa)}']); assert k < B0
    pos = []; h2 = hloads(2); s8 = sdma(8, 'slot8x')[:-1]
    sl.spread(B0 + 1, B0 + 71, hl[15:20] + s8[:3] + [pollC] + s8[3:] + [st[0]] + h2[:3] + [st[1]] + h2[3:7] + [st[2]] + h2[7:] + [st[3]], pos)
    kf = fins(B0 + 10, None, [pos[9], pos[13], pos[17], pos[20]])
    jobv = []
    for sw in ('v_permlane32_swap_b32', 'v_permlane16_swap_b32'):
        jobv += [f'v_mov_b32 {v(vJt+r)}, {v(JS+r)}' for r in range(4)]
        jobv += [f'{sw} {v(vJt+r)}, {v(JS+r)}' for r in range(4)]
        jobv += [f'v_add_f32 {v(JS+r)}, {v(JS+r)}, {v(vJt+r)}' for r in range(4)]
    recst = (f'buffer_store_dwordx2 {v(JS,2)}, {v(vJd)}, {s(SA,4)}, {s(sJd)} offen sc1', 'rec')
    vRf = XV + 80
    recfl = f'buffer_store_dwordx2 {v(vRf,2)}, {v(vP0)}, {s(SA,4)}, {s(sRf)} offen sc1'
    xl = [f'buffer_load_dwordx4 {v(vXD[0],4)}, {v(vXO2)}, {s(SX,4)}, 0 offen', f'buffer_load_dwordx4 {v(vXD[1],4)}, {v(vXO2)}, {s(SX,4)}, 0 offen offset:128',
          f'buffer_load_dwordx4 {v(vXD[2],4)}, {v(vX8)}, {s(SX,4)}, 0 offen offset:256']
    chkB = grp(f's_add_u32 {s(sT0)}, {s(sN+1)}, 5', check(name + '_cb', vCd, s(sT0), pollC))
    for c in range(1, 6):
        pos = []
        mid = {1: [chkB], 4: [check(name + '_cc', vCd, v(vCn), pollC)]}.get(c, [])
        end = {1: [recst], 3: [pollC]}.get(c, [])
        sl.spread(B0 + 72 * c + 5, B0 + 72 * c + 71, wdma(c + 3) + mid + hloads(c + 2) + end, pos)
        if c == 1: krec = pos[-1]
    k = sl.stream(max(kj, kf), jobv)
    for r in range(4):
        k = sl.stream(max(k, B0 + 72 + 40), [f'v_cmp_eq_u32 vcc, {s(sHd[r])}, {v(vHe)}'])
        k = sl.stream(k + 1, [f'v_cndmask_b32 {v(JS+r)}, 0, {v(JS+r)}, vcc'])
    k = sl.stream(k, [f'v_cvt_pk_bf16_f32 {v(JS)}, {v(JS)}, {v(JS+1)}', f'v_cvt_pk_bf16_f32 {v(JS+1)}, {v(JS+2)}, {v(JS+3)}']); assert k < krec, (k, krec)
    k = sl.stream(B0 + 72 * 2, [f'v_mov_b32 {v(vRf)}, {s(sN)}', f'v_mov_b32 {v(vRf+1)}, {s(sN+1)}',
                                f'v_lshlrev_b32 {v(vCa)}, 3, {v(vCn)}', f'v_min_u32 {v(vCn)}, 1, {v(vCn)}', f'v_lshl_add_u32 {v(vCn)}, {v(vCn)}, 1, 4', f'v_add_u32 {v(vCn)}, {s(sN+1)}, {v(vCn)}'])
    k = sl.stream(k, setup4); assert k < B0 + 72 * 5, k
    sl.fix(B0 + 8 * (18 + 7) - 3, lambda: p.wait_tag('h')); sl.stream(B0 + 8 * (18 + 7) + 2, progress, cap=3)
    sl.fix(B0 + 8 * (27 + 1) - 5, lambda: p.wait_tag('rec')); sl.stream(B0 + 8 * (27 + 1) - 3, [recfl], cap=4)
    def wload(f):
        pc, g = divmod(f, 18)
        return [f's_add_u32 {s(sT2)}, {s(sWo2 if pc < 2 else sW8)}, {g*36*1024 + (4096 if pc == 1 else 0)}', f'buffer_load_dwordx4 {a(wreg(f),4)}, {v(vL16)}, {s(SWS if (pc < 2 or "w3" not in opt) else SA,4)}, {s(sT2)} offen sc1']
    pql = [f'buffer_load_dwordx4 {v(PQ(b,g),4)}, {v(vLx[g//4])}, {s(SWS,4)}, {s(sPq0 if b == 0 else sPq1)} offen offset:{1024*(g%4)} sc1' for b in range(2) for g in range(5)]
    pollR = f'buffer_load_dwordx2 {v(vCd,2)}, {v(vCa)}, {s(SWS,4)}, {s(sT3)} offen sc1'
    k0 = B0 + 72 * 6
    kk = sl.stream(k0 - 30, [f'v_and_b32 {v(vCa)}, 63, v0', f'v_min_u32 {v(vCa)}, 53, {v(vCa)}', f'v_lshlrev_b32 {v(vCa)}, 3, {v(vCa)}', f's_mul_i32 {s(sT3)}, {s(sW)}, {54*8}',
                            f's_add_u32 {s(sT3)}, {s(sT3)}, {RECF_OFF}'])
    assert kk < k0
    sl.spread(k0, k0 + 71, [pollR] + hloads(8) + pql)
    if 'nochkR' not in opt: sl.fix(k0 + 64, check(name + '_cr', vCd, s(sN+1), pollR), cost=2)
    recl = []
    for f in range(27):
        if f % 12 == 0 and f: recl.append(f's_add_u32 {s(sRec)}, {s(sRec)}, 12288')
        recl.append(f'buffer_load_dwordx4 {v(big(f),4)}, {v(vLx[(f%12)//4])}, {s(SWS,4)}, {s(sRec)} offen offset:{1024*(f%4)} sc1')
    def pub(aa):
        o = acc2(aa, 0); t = TQ[aa & 1]
        return [f'v_cvt_pk_bf16_f32 {v(t+d)}, {v(o+2*d)}, {v(o+2*d+1)}' for d in range(4)] + \
               [(f'buffer_store_dwordx4 {v(t,4)}, {v(vLx[aa//4])}, {s(SP_,4)}, {s(sPart)} offen offset:{1024*(aa%4)} sc1', 'pub')]
    for aa in range(8):
        ks_ = k0 + 144 + (max(39 + 4 * aa, 8 * aa + 15) if 'publate' in opt else 8 * aa + 15); sl.fix(ks_, pub(aa)[4]); sl.stream(ks_ - 4, pub(aa)[:4], last=ks_ - 1)
    sF2, sOw, sPw = sJs, sJd, sRf; sPe = [sWs, sWd, sH2a, sH2b]
    kk = sl.stream(k0 + 74, [f'v_and_b32 {v(vCa)}, 3, v0', f'v_cmp_eq_u32 vcc, {s(sQK)}, {v(vCa)}', f'v_mov_b32 {v(vCn)}, {s(sSel)}', f's_lshl_b32 {s(sF2)}, s2, 7',
                             f'v_cndmask_b32 {v(vCa)}, {v(vCa)}, {v(vCn)}, vcc', f'v_lshlrev_b32 {v(vCa)}, 3, {v(vCa)}', f's_add_u32 {s(sF2)}, {s(sF2)}, {FLAG_OFF}',
                             f's_mul_i32 {s(sOw)}, {s(sW)}, 9', f's_lshr_b32 {s(sOw)}, {s(sOw)}, 1', f's_lshl_b32 {s(sOw)}, {s(sOw)}, 10', f's_lshl_b32 {s(sPw)}, {s(sW)}, 10',
                             f's_mul_i32 {s(sPe[3])}, s2, {4*9216}', f's_add_u32 {s(sPe[3])}, {s(sPe[3])}, {PART_OFF}'] +
                   [x for q in range(3) for x in (f's_add_u32 {s(sT1)}, {s(sQK)}, {q+1}', f's_and_b32 {s(sT1)}, {s(sT1)}, 3', f's_mul_i32 {s(sT1)}, {s(sT1)}, 9216', f's_add_u32 {s(sPe[q])}, {s(sT1)}, {s(sPe[3])}')] +
                   [grp(f's_cmp_eq_u32 {s(sW)}, {s(sSel)}', f's_cselect_b32 {s(SA+2)}, {STAMP_OFF}, 0'), f's_mov_b32 {s(sHi)}, 0xffff0000', f's_mov_b32 {s(sHd[0])}, 0x3f80', f's_mov_b32 {s(sHd[1])}, 0x3f800000', f's_mov_b32 {s(sEps)}, {fhex(-LOG2E)}', f's_mov_b32 {s(sEps+1)}, {fhex(-LOG2E)}'])
    nr = 20 if 'r20' in opt else 18
    sl.spread(k0 + 72, k0 + 143, recl[:nr + 1]); sl.spread(k0 + 144, k0 + 144 + (37 if 'publate' in opt else 71), recl[nr + 1:] + xl)
    print('overflow peeled', [sl.over(32*c, 32*c+32) for c in range(9)], 'p2', [sl.over(B0+72*c, B0+72*c+72) for c in range(9)], file=__import__('sys').stderr)
    interleave(p, mains, sl.f)
    put(pub(8))
    stamp(8)
    e(f's_cmp_lg_u32 {s(sW)}, {s(sQK)}'); e(f's_cbranch_scc1 {name}_att')
    for u in range(18): p.raw(f'ds_write_b128 {v(vRD[2])}, {v(ACC2+4*u,4)} offset:{1024*u}')
    p.raw('s_waitcnt lgkmcnt(0)')
    p.label(f'{name}_att')
    vEp = TQ[1]; tq = TQ[0]
    for r in range(4): e(f'v_mov_b32 {v(vEp+r)}, {fhex(1e-6)}')
    ND = lambda tl, b, z: ACC2 + 16 * (tl % 3) + 8 * b + 4 * z
    OH = lambda tl, b: ACC2 + 48 + 4 * (tl % 2) + 2 * b
    vOW, vPa0, vPa1, vOa = ACC2 + 56, ACC2 + 57, ACC2 + 58, ACC2 + 59
    e(f'v_add_u32 {v(vOW)}, {s(sOw)}, {v(vRD[1])}')
    pollF = f'buffer_load_dwordx2 {v(vCd,2)}, {v(vCa)}, {s(SWS,4)}, {s(sF2)} offen sc1'
    misc0 = [f'v_and_b32 {v(tq+2)}, 63, v0', f'v_min_u32 {v(tq+2)}, 1, {v(tq+2)}', f'v_lshlrev_b32 {v(tq+2)}, 30, {v(tq+2)}', f'v_mov_b32 {v(tq)}, {s(sN)}', f'v_mov_b32 {v(tq+1)}, {s(sN+1)}',
             f'v_add_u32 {v(vPa0)}, {s(sPw)}, {v(vL16)}', f'v_add_u32 {v(vPa1)}, {s(sPw)}, {v(vLx[1])}', f'v_add_u32 {v(vOa)}, {s(sPw)}, {v(vRD[2])}', f'v_add_u32 {v(vOa)}, {s(sPw)}, {v(vOa)}']
    SIG = int(next((o[3:] for o in opt if o.startswith('sig')), 6))
    e(f's_and_b32 {s(sT0)}, {s(sW)}, 1'); e(f's_cmp_eq_u32 {s(sT0)}, 1'); e(f's_cbranch_scc1 {name}_oodd')
    st1 = p.snapshot()
    for par in range(2):
        if par:
            p.label(f'{name}_oodd'); p.restore(st1)
        late = [wload(f) for f in range(54 if 'w3' in opt else 36)]; misc = list(misc0)
        if 'nowl' in opt: lateq, late = late, []
        for step in range(11):
            m32, m16, va = [], [], []
            tl = step
            if tl < 9:
                gl = (tl + par) >> 1
                for b in range(2):
                    m32.append(f'v_mfma_f32_16x16x32_bf16 {v(ND(tl,b,0),4)}, {v(REC(tl,0),4)}, {v(PQ(b,gl),4)}, 0')
                    m32.append(f'v_mfma_f32_16x16x32_bf16 {v(ND(tl,b,1),4)}, {v(REC(tl,1),4)}, {v(PQ(b,gl),4)}, {v(vEp,4)}')
            tl = step - 1
            if 0 <= tl < 9:
                gl = (tl + par) >> 1; odd = (tl + par) & 1
                gs = gl + 1 if odd else gl - 1
                if not 0 <= gs <= 4: gs = gl
                for b in range(2):
                    half = v(PQ(b, gs) + (0 if odd else 2), 2)
                    m16.append(f'v_mfma_f32_16x16x16_bf16 {v(ND(tl,b,0),4)}, {v(REC(tl,2),2)}, {half}, {v(ND(tl,b,0),4)}')
                    m16.append(f'v_mfma_f32_16x16x16_bf16 {v(ND(tl,b,1),4)}, {v(REC(tl,2)+2,2)}, {half}, {v(ND(tl,b,1),4)}')
            tl = step - 2
            if 0 <= tl < 9:
                for b in range(2): va += [f'v_rcp_f32 {v(ND(tl,b,1)+r)}, {v(ND(tl,b,1)+r)}' for r in (0, 2)]
                for b in range(2):
                    va += [f'v_mul_f32 {v(ND(tl,b,0)+r)}, {v(ND(tl,b,0)+r)}, {v(ND(tl,b,1)+(r&2))}' for r in range(4)]
                    va += [f'v_cvt_pk_bf16_f32 {v(OH(tl,b) + d)}, {v(ND(tl,b,0)+2*d)}, {v(ND(tl,b,0)+2*d+1)}' for d in range(2)]
                    va += [f'ds_write_b64 {v(vOW)}, {v(OH(tl,b),2)} offset:{b*18432 + ((tl+par)>>1)*1024 + ((tl+par)&1)*8}']
            else: va, misc = misc[:20], misc[20:]
            if 'ofine' in opt and step in (2, 4, 6, 8, 10): vS0_ = 1; stamp(15 + step // 2)
            if step == SIG:
                p.wait_tag('pub'); e(f'buffer_store_dwordx2 {v(tq,2)}, {v(tq+2)}, {s(SP_,4)}, {s(sFl)} offen sc1')
            if step == 10:
                while late: put(late.pop(0))
                e(pollF)
            mm = m32 + m16
            per = -(-len(va) // max(len(mm) - 1, 1))
            for i_, x in enumerate(mm):
                e(x)
                if late and len(p.vmq) < p.vm_limit - 2 and (i_ % 2 == 0 or len(late) <= 18): put(late.pop(0))
                if i_ == 0 and len(mm) > 4: continue
                for y in va[:per]: e(y)
                va = va[per:]
            for y in va: e(y)
        if 'nowl' in opt:
            stamp(21)
            for x in lateq: put(x)
        assert not late and not misc
        if par == 0:
            stE = p.snapshot(); e(f's_branch {name}_odone')
        else: assert p.snapshot() == stE
    p.label(f'{name}_odone')
    stamp(9)
    p.wait_lg(0); e('s_barrier')
    OF = lambda b, g: big(18 * b + g)
    SS = lambda pc: ACC2 + 8 * pc
    DD = lambda pc: ACC2 + 24 + 8 * pc
    for g in range(9):
        for b in range(2): e(f'ds_read_b128 {v(OF(b,g),4)}, {v(vRD[1])} offset:{b*18432 + g*1024}')
    check(f'{name}_cf', vCd, s(sN+1), pollF)()
    stamp(10)
    PV_ = [ACC2 + 60, ACC2 + 64, ACC2 + 68, ACC2 + 48, ACC2 + 52, big(36)]
    for pc in range(2):
        for q in range(3): e(f'buffer_load_dwordx4 {v(PV_[3*pc+q],4)}, {v((vPa0, vPa1)[pc])}, {s(SWS,4)}, {s(sPe[q])} offen sc1')
    for g in range(9, 18):
        for b in range(2): e(f'ds_read_b128 {v(OF(b,g),4)}, {v(vRD[1])} offset:{b*18432 + g*1024}')
    e(f's_cmp_eq_u32 {s(sW)}, {s(sSel)}'); e(f's_cbranch_scc1 {name}_three')
    st2 = p.snapshot()
    for npc in (2, 3):
        if npc == 3:
            p.label(f'{name}_three'); p.restore(st2)
        PE = lambda q: AR + 8 + 4 * q
        late = ([] if 'w3' in opt else [wload(f) for f in range(36, 54)]) + [[f'buffer_load_dwordx4 {a(PE(q),4)}, {v(vLx[2])}, {s(SWS,4)}, {s(sPe[q])} offen sc1'] for q in range(3)] if npc == 3 else []
        own = [f'ds_read_b128 {v(DD(pc)+4*b,4)}, {v(vOa) if pc < 2 else v(vRD[2])} offset:{8192*pc + 1024*b}' for pc in range(npc) for b in range(2)]
        for pc in range(npc):
            for b in range(2):
                for g in range(18):
                    e(f'v_mfma_f32_16x16x32_bf16 {v(SS(pc)+4*b,4)}, {a(wreg(18*pc+g),4)}, {v(OF(b,g),4)}, {"0" if g == 0 else v(SS(pc)+4*b,4)}')
                    if late and g % 2 == 0: put(late.pop(0))
                    elif pc == 0 and b == 1 and own: e(own.pop(0))
        stamp(11)
        X = ACC; G = ACC + 24; O = ACC + 40; U = ACC + 56
        for pc in range(npc):
            for d in range(4):
                e(f'v_lshlrev_b32 {v(X+8*pc+2*d)}, 16, {v(vXD[pc]+d)}'); e(f'v_and_b32 {v(X+8*pc+2*d+1)}, {s(sHi)}, {v(vXD[pc]+d)}')
        for pc in range(npc):
            for q in range(3):
                src = PV_[3 * pc + q] if pc < 2 else U + 4 * q
                if pc == 2:
                    for d in range(4): e(f'v_accvgpr_read_b32 {v(src+d)}, {a(PE(q)+d)}')
                for d in range(4):
                    for hh in range(2): e(f'v_dot2_f32_bf16 {v(DD(pc)+2*d+hh)}, {v(src+d)}, {s(sHd[hh])}, {v(DD(pc)+2*d+hh)}')
            for k in range(0, 8, 2): e(f'v_pk_mul_f32 {v(G+k,2)}, {v(DD(pc)+k,2)}, {s(sEps,2)}')
            for k in range(8): e(f'v_exp_f32 {v(G+k)}, {v(G+k)}')
            for k in range(0, 8, 2): e(f'v_pk_mul_f32 {v(DD(pc)+k,2)}, {v(DD(pc)+k,2)}, {v(SS(pc)+k,2)}')
            for k in range(0, 8, 2): e(f'v_pk_add_f32 {v(G+k,2)}, {v(G+k,2)}, 1.0 op_sel_hi:[1,0]')
            for k in range(8): e(f'v_rcp_f32 {v(G+k)}, {v(G+k)}')
            for k in range(0, 8, 2): e(f'v_pk_mul_f32 {v(G+k,2)}, {v(G+k,2)}, {v(DD(pc)+k,2)}')
            for r in range(4): e(f'v_permlane16_swap_b32 {v(G+r)}, {v(G+4+r)}')
            for k in range(0, 8, 2): e(f'v_pk_add_f32 {v(G+k,2)}, {v(G+k,2)}, {v(X+8*pc+k,2)}')
            for d in range(4): e(f'v_cvt_pk_bf16_f32 {v(O+4*pc+d)}, {v(G+2*d)}, {v(G+2*d+1)}')
            e(f'buffer_store_dwordx4 {v(O+4*pc,4)}, {v(vXO2) if pc < 2 else v(vX8)}, {s(SO,4)}, 0 offen offset:{128*pc}')
        if stamps: p.wait_all()
        stamp(12)
        e(f's_branch {END}')
    for blk in slow:
        for x in blk: p.raw(x)
    p.label(END)
    return p, V.nxt, A.nxt, NXV
```
